```python
import torch

def _softmax(x, axis=-1):
    return torch.softmax(x, dim=axis)
def _gelu(x):
    return torch.nn.functional.gelu(x, approximate="tanh")
def _silu(x):
    return torch.nn.functional.silu(x)
def _sigmoid(x):
    return torch.sigmoid(x)
def _layernorm(x, axis=-1, eps=1e-5):
    m = x.mean(dim=axis, keepdim=True)
    v = x.var(dim=axis, keepdim=True, unbiased=False)
    return (x - m) / torch.sqrt(v + eps)
def _scatter_add(tgt, idx, src, axis=0):
    return tgt.clone().index_add_(axis, idx, src)
def _segment_sum(src, seg, n):
    out = torch.zeros((n,) + src.shape[1:], dtype=src.dtype)
    return out.index_add_(0, seg, src)
def _pad(x, pw):
    flat = tuple(v for pair in reversed(pw) for v in pair)
    return torch.nn.functional.pad(x, flat)

kernel_name = 'interleave_layers__mha_block_cached__glu_gated_swiglu__decode'

def setup_inputs():

    _w = (lambda a: (lambda t: t.to(torch.bfloat16) if t.is_floating_point() else t)(torch.as_tensor(a)))
    def _A_setup():
        B, Sq, D = 1, 1, 448
        H, Sk, Dh = 16, 32768, 256
        return {
            "x": _w((lambda *s: torch.randn(*s, dtype=torch.bfloat16) * 0.05)(B, Sq, D)),
            "k_cache": _w((lambda *s: torch.randn(*s, dtype=torch.bfloat16) * 1.6)(B, H, Sk, Dh)),
            "v_cache": _w((lambda *s: torch.randn(*s, dtype=torch.bfloat16) * 0.8)(B, H, Sk, Dh)),
            "wq": _w((lambda *s: torch.randn(*s, dtype=torch.bfloat16) * 1.6)(D, H * Dh) * (D ** -0.5)),
            "wo": _w((lambda *s: torch.randn(*s, dtype=torch.bfloat16) * 0.8)(H * Dh, D) * ((H * Dh) ** -0.5)),
        }
    _A_in = _A_setup()

    def _B_setup():
        B, S, D, F = 1, 1, 448, 1792
        return {
            "x": _w((lambda *s: torch.randn(*s, dtype=torch.bfloat16) * 0.05)(B, S, D)),
            "w1": _w((lambda *s: torch.randn(*s, dtype=torch.bfloat16) * 0.4)(D, F) * (2.0 / D) ** 0.5),
            "w3": _w((lambda *s: torch.randn(*s, dtype=torch.bfloat16) * 0.4)(D, F) * (2.0 / D) ** 0.5),
            "w2": _w((lambda *s: torch.randn(*s, dtype=torch.bfloat16) * 0.4)(F, D) * (2.0 / F) ** 0.5),
        }
    _B_in = _B_setup()

    return {
        "A_x": _A_in["x"],
        "A_k_cache": _A_in["k_cache"],
        "A_v_cache": _A_in["v_cache"],
        "A_wq": _A_in["wq"],
        "A_wo": _A_in["wo"],
        "B_x": _B_in["x"],
        "B_w1": _B_in["w1"],
        "B_w3": _B_in["w3"],
        "B_w2": _B_in["w2"],
    }

def reference(A_x, A_k_cache, A_v_cache, A_wq, A_wo, B_x, B_w1, B_w3, B_w2):
    def _A_ref(x, k_cache, v_cache, wq, wo):
        B, Sq, D = x.shape
        H, Dh = 16, 256
        q = (lambda x, *d: x.permute(*d))((x @ wq).reshape(B, Sq, H, Dh), 0, 2, 1, 3)
        scores = torch.einsum("bhqd,bhkd->bhqk", q, k_cache) * (Dh ** -0.5)
        p = _softmax(scores, axis=-1)
        o = torch.einsum("bhqk,bhkd->bhqd", p, v_cache)
        return (lambda x, *d: x.permute(*d))(o, 0, 2, 1, 3).reshape(B, Sq, H * Dh) @ wo

    def _B_ref(x, w1, w3, w2):
        gate = torch.einsum("bsd,df->bsf", x, w1)
        up = torch.einsum("bsd,df->bsf", x, w3)
        h = _silu(gate) * up
        out = torch.einsum("bsf,fd->bsd", h, w2)
        return out

    x = A_x
    x = x + _A_ref(_layernorm(x, axis=-1), A_k_cache, A_v_cache, A_wq, A_wo)
    x = x + _B_ref(_layernorm(x, axis=-1), B_w1, B_w3, B_w2)
    x = x + _A_ref(_layernorm(x, axis=-1), A_k_cache, A_v_cache, A_wq, A_wo)
    x = x + _B_ref(_layernorm(x, axis=-1), B_w1, B_w3, B_w2)
    return x
```

```python
class Asm:
    def __init__(self):
        self.lines = []
        self.nlabel = 0
    def __call__(self, s=""):
        for ln in s.split("\n"):
            self.lines.append(ln)
    def e(self, s):
        self.lines.append("    " + s)
    def label(self, name):
        self.lines.append(name + ":")
    def newlabel(self, base="L"):
        self.nlabel += 1
        return "%s_%d" % (base, self.nlabel)
    def comment(self, s):
        self.lines.append("    ; " + s)
    def text(self):
        return "\n".join(self.lines) + "\n"

HEADER = """; Kernarg layout (96 bytes, ptrs only, base s[0:1]):
"""

def kernel_wrap(name, body, grid, block, lds, vgpr=256, sgpr=102, accum=256, extra_desc=""):
    s = HEADER
    s += "; @launch grid=(%d,%d,%d) block=(%d,%d,%d) lds=%d\n" % (grid + block + (lds,))
    s += '.amdgcn_target "amdgcn-amd-amdhsa--gfx950"\n.text\n'
    s += ".globl %s\n.p2align 8\n.type %s,@function\n%s:\n" % (name, name, name)
    s += body
    s += '.section .rodata,"a"\n.p2align 6\n.amdhsa_kernel %s\n' % name
    s += "  .amdhsa_next_free_vgpr %d\n  .amdhsa_next_free_sgpr %d\n  .amdhsa_accum_offset %d\n" % (vgpr, sgpr, accum)
    s += "  .amdhsa_group_segment_fixed_size 0\n  .amdhsa_kernarg_size 96\n  .amdhsa_user_sgpr_count 2\n"
    s += "  .amdhsa_user_sgpr_kernarg_segment_ptr 1\n  .amdhsa_system_sgpr_workgroup_id_x 1\n"
    s += extra_desc
    s += ".end_amdhsa_kernel\n"
    return s
```

```python
import sys, os
sys.path.insert(0, os.path.dirname(os.path.abspath(__file__)))
from asmlib import Asm

KNAME = "interleave_layers__mha_block_cached__glu_gated_swiglu__decode_kernel"

L_Q = 0
L_Z = 2176
L_SM = 2688
L_RED = 2752
L_P = 3072
L_W = 7168
LDS_TOTAL = 163840
RING_NONE = 7168
RING_A = 80896
VEC_A = 72704
RING_BCD = 65024
B_IMG3 = 7296
B_WAVE = 14464
CD_WAVE = 14336

M1 = 0x0; M1_R = 0x60000; M1_SLOT = 384
M2 = 0xC0000; M3 = 0xC4000; M4 = 0xC8000; M5 = 0xCC000; M6 = 0xCE000; MR = 0x2000
DBG = 0x200000

NRES_PAIRS = 7
NRES_T = 2 * NRES_PAIRS
NSTR_T = 32 - NRES_T
STRIDE = 16384
SPIN_LIMIT = 1 << 18
C_EXP = 0x3DB8AA3B
LOG2E = 0x3FB8AA3B

sW, sWave = 2, 3
pX, pK, pV, pWq, pWo, pW1, pW3, pW2, pOut, pDbg, pWs = 8, 10, 12, 14, 16, 20, 22, 24, 26, 28, 30
sKB, sVB = 32, 34
sCUR = 36
sSlot, sRs, sRe, sOff, sLeft, sSeg, sCs, sPass = 40, 41, 42, 43, 44, 45, 46, 47
sRole, sIdx, sH, sC, sNS, sVec, sWl, sSpin = 48, 49, 50, 51, 52, 53, 54, 55
sM = [56, 58, 60, 62]
sMd, sRet, sEx = 64, 66, 68
sT0, sT1, sT2, sT3, sT4, sT5 = 70, 71, 72, 73, 74, 75
sA = 76
sB = 78
sT15 = 80
sRho = 81
sWS = 84
sRet2 = 88

vL = 0
vo = [1, 2, 3, 4]
vPh, vAd, vPa = 5, 6, 7
vSC = 8
vACC = 16
vLsum = 8


def sp(r, n=2):
    return "s[%d:%d]" % (r, r + n - 1)


def vr(r, n):
    return "v[%d:%d]" % (r, r + n - 1) if n > 1 else "v%d" % r


def res_reg(m, t, hh=None):
    base = m * 64 + 4 * t
    if m < 3:
        b = 64 + base; p = "v"
    else:
        b = base - 192; p = "a"
    if hh is None:
        return "%s[%d:%d]" % (p, b, b + 3)
    return "%s[%d:%d]" % (p, b + 2 * hh, b + 2 * hh + 1)


class Gen:
    def __init__(self, opt):
        self.o = opt
        self.a = Asm()
        self.e = self.a.e

    def lab(self, n):
        self.a.label(n)

    def nl(self, b="L"):
        return self.a.newlabel(b)

    def nop(self, n):
        if n > 0:
            self.e("s_nop %d" % (n - 1))

    def bf16r(self, dst, src, tmp):
        self.e("v_cvt_pk_bf16_f32 v%d, v%d, v%d" % (tmp, src, src))
        self.e("v_and_b32 v%d, 0xffff0000, v%d" % (dst, tmp))

    def allreduce16(self, x, op):
        e = self.e
        for n in (8, 4, 2, 1):
            self.nop(2)
            e("%s_dpp v%d, v%d, v%d row_ror:%d row_mask:0xf bank_mask:0xf" % (op, x, x, x, n))

    def xrows(self, x, tmp, op):
        e = self.e
        e("v_mov_b32 v%d, v%d" % (tmp, x)); self.nop(2)
        e("v_permlane16_swap_b32 v%d, v%d" % (x, tmp)); self.nop(1)
        e("%s v%d, v%d, v%d" % (op, x, x, tmp))
        e("v_mov_b32 v%d, v%d" % (tmp, x)); self.nop(2)
        e("v_permlane32_swap_b32 v%d, v%d" % (x, tmp)); self.nop(1)
        e("%s v%d, v%d, v%d" % (op, x, x, tmp))

    def allreduce64(self, x, tmp, op):
        self.allreduce16(x, op)
        self.xrows(x, tmp, op)

    def poll(self, loads, regs, tmp, name="P"):
        e = self.e
        L = self.nl(name); D = self.nl(name + "d")
        e("s_mov_b32 s%d, 0" % sSpin)
        self.lab(L)
        for ld in loads:
            e(ld)
        e("s_waitcnt vmcnt(0)")
        rr = list(regs)
        if len(rr) == 1:
            t = rr[0]
        else:
            first = True
            while rr:
                if first:
                    if len(rr) >= 3:
                        e("v_max3_u32 v%d, v%d, v%d, v%d" % (tmp, rr[0], rr[1], rr[2])); rr = rr[3:]
                    else:
                        e("v_max_u32 v%d, v%d, v%d" % (tmp, rr[0], rr[1])); rr = rr[2:]
                    first = False
                elif len(rr) >= 2:
                    e("v_max3_u32 v%d, v%d, v%d, v%d" % (tmp, tmp, rr[0], rr[1])); rr = rr[2:]
                else:
                    e("v_max_u32 v%d, v%d, v%d" % (tmp, tmp, rr[0])); rr = rr[1:]
            t = tmp
        e("v_cmp_eq_u32 vcc, -1, v%d" % t)
        e("s_cbranch_vccz %s" % D)
        e("s_add_u32 s%d, s%d, 1" % (sSpin, sSpin))
        e("s_cmp_lt_u32 s%d, %d" % (sSpin, SPIN_LIMIT))
        e("s_cbranch_scc1 %s" % L)
        self.lab(D)

    def addr(self, dst, base, off_imm=0, off_sregs=()):
        e = self.e
        if off_imm:
            e("s_add_u32 s%d, s%d, 0x%x" % (dst, base, off_imm))
        else:
            e("s_add_u32 s%d, s%d, 0" % (dst, base))
        e("s_addc_u32 s%d, s%d, 0" % (dst + 1, base + 1))
        for r in off_sregs:
            e("s_add_u32 s%d, s%d, s%d" % (dst, dst, r))
            e("s_addc_u32 s%d, s%d, 0" % (dst + 1, dst + 1))

    def issue(self):
        e = self.e
        pol = self.o.get("pol", " nt")
        e("s_mov_b32 m0, s%d" % sSlot)
        e("s_add_u32 s%d, s%d, 4096" % (sSlot, sSlot))
        for s in range(4):
            e("buffer_load_dwordx4 v%d, %s, s%d offen offset:%d%s lds" % (vo[s], sp(sCUR, 4), sOff, s * 1024, pol))
        e("s_cmp_eq_u32 s%d, s%d" % (sSlot, sRe))
        e("s_cselect_b32 s%d, s%d, s%d" % (sSlot, sRs, sSlot))
        e("s_add_u32 s%d, s%d, %d" % (sOff, sOff, STRIDE))
        e("s_sub_u32 s%d, s%d, 1" % (sLeft, sLeft))
        e("s_cmp_lg_u32 s%d, 0" % sLeft)
        sk = self.nl("Isk")
        e("s_cbranch_scc1 %s" % sk)
        e("s_call_b64 %s, L_switch" % sp(sRet))
        self.lab(sk)

    def kpat(self):
        e = self.e
        e("v_and_b32 v%d, 7, v%d" % (vo[0], vL))
        e("v_lshlrev_b32 v%d, 9, v%d" % (vo[0], vo[0]))
        e("v_lshrrev_b32 v%d, 3, v%d" % (vo[1], vL))
        e("v_lshl_add_u32 v%d, v%d, 4, v%d" % (vo[0], vo[1], vo[0]))
        self.pat_fin()

    def vpat(self):
        e = self.e
        e("v_bfe_u32 v%d, v%d, 1, 3" % (vo[0], vL))
        e("v_lshlrev_b32 v%d, 9, v%d" % (vo[0], vo[0]))
        e("v_lshrrev_b32 v%d, 4, v%d" % (vo[1], vL))
        e("v_lshl_add_u32 v%d, v%d, 5, v%d" % (vo[0], vo[1], vo[0]))
        e("v_and_b32 v%d, 1, v%d" % (vo[1], vL))
        e("v_lshl_add_u32 v%d, v%d, 4, v%d" % (vo[0], vo[1], vo[0]))
        self.pat_fin()

    def pat_fin(self):
        e = self.e
        e("v_add_u32 v%d, 3072, v%d" % (vo[0], vo[0]))
        for s in range(1, 4):
            e("v_subrev_u32 v%d, %d, v%d" % (vo[s], 896 * s, vo[0]))

    def emit_switch(self):
        e = self.e
        self.lab("L_switch")
        e("s_add_u32 s%d, s%d, 1" % (sSeg, sSeg))
        e("s_cmp_eq_u32 s%d, 5" % sSeg)
        e("s_cbranch_scc1 L_sw_end")
        e("s_bitcmp1_b32 s%d, 0" % sSeg)
        e("s_cbranch_scc0 L_sw_v")
        e("s_mov_b32 s%d, s%d" % (sCUR, sKB)); e("s_mov_b32 s%d, s%d" % (sCUR + 1, sKB + 1))
        e("s_mov_b32 s%d, 0" % sOff); e("s_mov_b32 s%d, 64" % sLeft)
        self.kpat()
        e("s_setpc_b64 %s" % sp(sRet))
        self.lab("L_sw_v")
        e("s_mov_b32 s%d, s%d" % (sCUR, sVB)); e("s_mov_b32 s%d, s%d" % (sCUR + 1, sVB + 1))
        e("s_mov_b32 s%d, %d" % (sOff, 2 * NRES_T * STRIDE)); e("s_mov_b32 s%d, %d" % (sLeft, 2 * NSTR_T))
        self.vpat()
        e("s_setpc_b64 %s" % sp(sRet))
        self.lab("L_sw_end")
        e("s_mov_b32 s%d, 0" % (sCUR + 2))
        e("s_mov_b32 s%d, 0" % sOff); e("s_mov_b32 s%d, 0x7fffffff" % sLeft)
        e("s_setpc_b64 %s" % sp(sRet))

    def adv_cs(self):
        e = self.e
        e("s_add_u32 s%d, s%d, 8192" % (sCs, sCs))
        e("s_cmp_eq_u32 s%d, s%d" % (sCs, sRe))
        e("s_cselect_b32 s%d, s%d, s%d" % (sCs, sRs, sCs))

    def step_issue(self):
        self.e("s_waitcnt vmcnt(4)")
        self.issue()
        self.e("s_waitcnt vmcnt(4)")
        self.issue()

    def prologue(self):
        e = self.e
        e("s_cmp_ge_u32 s2, 256")
        e("s_cbranch_scc1 L_end")
        e("s_load_dwordx16 s[8:23], s[0:1], 0")
        e("s_load_dwordx8 s[24:31], s[0:1], 64")
        e("v_lshrrev_b32 v1, 6, v0")
        e("v_and_b32 v%d, 63, v0" % vL)
        e("s_nop 0")
        e("v_readfirstlane_b32 s%d, v1" % sWave)
        x, r = sT0, sT1
        e("s_and_b32 s%d, s2, 7" % x)
        e("s_lshr_b32 s%d, s2, 3" % r)
        e("s_mov_b32 s%d, 0" % sRole); e("s_mov_b32 s%d, 0" % sIdx)
        e("s_cmp_lt_u32 s%d, 8" % r); e("s_cbranch_scc0 L_r1")
        e("s_cmp_lt_u32 s%d, 7" % x); e("s_cbranch_scc0 L_rdone")
        e("s_mov_b32 s%d, 1" % sRole); e("s_lshl_b32 s%d, s%d, 3" % (sIdx, x)); e("s_add_u32 s%d, s%d, s%d" % (sIdx, sIdx, r))
        e("s_branch L_rdone")
        self.lab("L_r1")
        e("s_cmp_lt_u32 s%d, 16" % r); e("s_cbranch_scc0 L_r2")
        e("s_sub_u32 s%d, s%d, 8" % (sT2, r))
        e("s_lshr_b32 s%d, s%d, 1" % (sT3, sT2)); e("s_lshl_b32 s%d, s%d, 3" % (sT3, sT3)); e("s_add_u32 s%d, s%d, s%d" % (sT3, sT3, x))
        e("s_cmp_lt_u32 s%d, 28" % sT3); e("s_cbranch_scc0 L_rdone")
        e("s_mov_b32 s%d, 2" % sRole); e("s_and_b32 s%d, s%d, 1" % (sT2, sT2)); e("s_lshl_b32 s%d, s%d, 1" % (sIdx, sT3))
        e("s_add_u32 s%d, s%d, s%d" % (sIdx, sIdx, sT2))
        e("s_branch L_rdone")
        self.lab("L_r2")
        e("s_cmp_lt_u32 s%d, 20" % r); e("s_cbranch_scc0 L_r3")
        e("s_cmp_lt_u32 s%d, 7" % x); e("s_cbranch_scc0 L_rdone")
        e("s_mov_b32 s%d, 3" % sRole); e("s_lshl_b32 s%d, s%d, 2" % (sIdx, x)); e("s_add_u32 s%d, s%d, s%d" % (sIdx, sIdx, r))
        e("s_sub_u32 s%d, s%d, 16" % (sIdx, sIdx))
        e("s_branch L_rdone")
        self.lab("L_r3")
        e("s_cmp_lt_u32 s%d, 28" % r); e("s_cbranch_scc0 L_rdone")
        e("s_mov_b32 s%d, 4" % sRole); e("s_sub_u32 s%d, s%d, 20" % (sIdx, r)); e("s_lshl_b32 s%d, s%d, 3" % (sIdx, sIdx))
        e("s_add_u32 s%d, s%d, s%d" % (sIdx, sIdx, x))
        self.lab("L_rdone")
        e("s_lshr_b32 s%d, s2, 4" % sH); e("s_and_b32 s%d, s2, 15" % sC)
        e("s_mov_b32 s%d, %d" % (sT0, RING_BCD)); e("s_mov_b32 s%d, 6" % sNS)
        e("s_cmp_eq_u32 s%d, 0" % sRole)
        e("s_cselect_b32 s%d, %d, s%d" % (sT0, RING_NONE, sT0)); e("s_cselect_b32 s%d, 8, s%d" % (sNS, sNS))
        e("s_cmp_eq_u32 s%d, 1" % sRole)
        e("s_cselect_b32 s%d, %d, s%d" % (sT0, RING_A, sT0)); e("s_cselect_b32 s%d, 4, s%d" % (sNS, sNS))
        e("s_lshl_b32 s%d, s%d, 12" % (sT1, sNS))
        e("s_mul_i32 s%d, s%d, s%d" % (sT2, sT1, sWave))
        e("s_add_u32 s%d, s%d, s%d" % (sRs, sT0, sT2))
        e("s_add_u32 s%d, s%d, s%d" % (sRe, sRs, sT1))
        e("s_mov_b32 s%d, s%d" % (sSlot, sRs)); e("s_mov_b32 s%d, s%d" % (sCs, sRs))
        e("s_lshl_b32 s%d, s%d, 10" % (sT2, sWave)); e("s_add_u32 s%d, s%d, %d" % (sVec, sT2, L_P))
        e("s_lshl_b32 s%d, s%d, 11" % (sT2, sWave)); e("s_add_u32 s%d, s%d, %d" % (sT2, sT2, VEC_A))
        e("s_cmp_eq_u32 s%d, 1" % sRole); e("s_cselect_b32 s%d, s%d, s%d" % (sVec, sT2, sVec))
        e("s_mov_b32 s%d, %d" % (sT2, CD_WAVE))
        e("s_cselect_b32 s%d, 16384, s%d" % (sT2, sT2))
        e("s_cmp_eq_u32 s%d, 2" % sRole); e("s_cselect_b32 s%d, %d, s%d" % (sT2, B_WAVE, sT2))
        e("s_mul_i32 s%d, s%d, s%d" % (sWl, sT2, sWave)); e("s_add_u32 s%d, s%d, %d" % (sWl, sWl, L_W))
        e("s_mov_b32 s%d, 0x00010001" % sM[0]); e("s_mov_b32 s%d, 0x00010001" % (sM[0] + 1))
        for u in range(1, 4):
            e("s_lshl_b64 %s, %s, %d" % (sp(sM[u]), sp(sM[0]), u))
        e("s_mov_b32 s%d, 0" % sPass)
        e("s_waitcnt lgkmcnt(0)")
        e("s_lshl_b32 s%d, s%d, 4" % (sT0, sH)); e("s_add_u32 s%d, s%d, s%d" % (sT0, sT0, sC))
        e("s_lshl_b32 s%d, s%d, 20" % (sT0, sT0))
        e("s_lshl_b32 s%d, s%d, 12" % (sT1, sWave)); e("s_add_u32 s%d, s%d, s%d" % (sT0, sT0, sT1))
        for (dst, src) in ((sKB, pK), (sVB, pV)):
            e("s_add_u32 s%d, s%d, s%d" % (dst, src, sT0)); e("s_addc_u32 s%d, s%d, 0" % (dst + 1, src + 1))
            e("s_sub_u32 s%d, s%d, 3072" % (dst, dst)); e("s_subb_u32 s%d, s%d, 0" % (dst + 1, dst + 1))
            e("s_and_b32 s%d, s%d, 0xffff" % (dst + 1, dst + 1))
        e("s_mov_b32 s%d, s%d" % (sCUR, sVB)); e("s_mov_b32 s%d, s%d" % (sCUR + 1, sVB + 1))
        e("s_mov_b32 s%d, %d" % (sCUR + 2, 3072 + 63 * STRIDE + 4096)); e("s_mov_b32 s%d, 0x20000" % (sCUR + 3))
        e("s_mov_b32 s%d, 0" % sOff); e("s_mov_b32 s%d, %d" % (sLeft, 2 * NRES_T)); e("s_mov_b32 s%d, 0" % sSeg)
        self.vpat()

    def weights_dma(self):
        e = self.e
        e("s_mov_b32 s%d, 0x20000" % (sWS + 3))
        e("s_cmp_eq_u32 s%d, 0" % sRole); e("s_cbranch_scc1 L_wdone")
        e("s_cmp_eq_u32 s%d, 1" % sRole); e("s_cbranch_scc1 L_wA")
        e("s_cmp_eq_u32 s%d, 2" % sRole); e("s_cbranch_scc1 L_wB")
        e("s_cmp_eq_u32 s%d, 3" % sRole)
        e("s_cselect_b32 s%d, s%d, s%d" % (sWS, pW2, pWq)); e("s_cselect_b32 s%d, s%d, s%d" % (sWS + 1, pW2 + 1, pWq + 1))
        e("s_mov_b32 s%d, %d" % (sWS + 2, 448 * 8192)); e("s_mov_b32 s%d, 8192" % sT0)
        e("s_cselect_b32 s%d, %d, s%d" % (sWS + 2, 1792 * 896, sWS + 2))
        e("s_cselect_b32 s%d, 896, s%d" % (sT0, sT0))
        e("s_and_b32 s%d, s%d, 0xffff" % (sWS + 1, sWS + 1))
        e("v_lshrrev_b32 v8, 1, v%d" % vL); e("v_mul_lo_u32 v8, v8, s%d" % sT0)
        e("v_and_b32 v9, 1, v%d" % vL); e("v_lshl_add_u32 v8, v9, 4, v8")
        e("s_mul_i32 s%d, s%d, %d" % (sT1, sWave, 448 * 896)); e("s_lshl_b32 s%d, s%d, 5" % (sT2, sIdx)); e("s_add_u32 s%d, s%d, s%d" % (sT1, sT1, sT2))
        e("s_lshl_b32 s%d, s%d, 7" % (sT2, sIdx)); e("s_lshl_b32 s%d, s%d, 5" % (sT3, sWave)); e("s_add_u32 s%d, s%d, s%d" % (sT2, sT2, sT3))
        e("s_cmp_eq_u32 s%d, 3" % sRole)
        e("s_cselect_b32 s%d, s%d, s%d" % (sT1, sT1, sT2))
        e("s_lshl_b32 s%d, s%d, 5" % (sT0, sT0))
        e("s_mov_b32 s%d, s%d" % (sT2, sWl))
        for m in range(14):
            e("s_mov_b32 m0, s%d" % sT2); e("s_add_u32 s%d, s%d, 1024" % (sT2, sT2))
            e("buffer_load_dwordx4 v8, %s, s%d offen lds" % (sp(sWS, 4), sT1))
            e("s_add_u32 s%d, s%d, s%d" % (sT1, sT1, sT0))
        e("s_branch L_wdone")
        self.lab("L_wA")
        e("s_mov_b32 s%d, s%d" % (sWS, pWo)); e("s_and_b32 s%d, s%d, 0xffff" % (sWS + 1, pWo + 1)); e("s_mov_b32 s%d, %d" % (sWS + 2, 4096 * 896))
        e("v_mul_u32_u24 v8, 896, v%d" % vL)
        e("s_mul_i32 s%d, s%d, %d" % (sT1, sWave, 1024 * 896)); e("s_lshl_b32 s%d, s%d, 4" % (sT2, sIdx)); e("s_add_u32 s%d, s%d, s%d" % (sT1, sT1, sT2))
        e("s_mov_b32 s%d, s%d" % (sT2, sWl))
        for m in range(16):
            e("s_mov_b32 m0, s%d" % sT2); e("s_add_u32 s%d, s%d, 1024" % (sT2, sT2))
            e("buffer_load_dwordx4 v8, %s, s%d offen lds" % (sp(sWS, 4), sT1))
            e("s_add_u32 s%d, s%d, %d" % (sT1, sT1, 64 * 896))
        e("s_branch L_wdone")
        self.lab("L_wB")
        e("v_mul_u32_u24 v8, 3584, v%d" % vL)
        for (mat, ptr) in ((0, pW1), (1, pW3)):
            e("s_mov_b32 s%d, s%d" % (sWS, ptr)); e("s_and_b32 s%d, s%d, 0xffff" % (sWS + 1, ptr + 1)); e("s_mov_b32 s%d, %d" % (sWS + 2, 448 * 3584))
            e("s_lshl_b32 s%d, s%d, 6" % (sT1, sIdx)); e("s_lshl_b32 s%d, s%d, 4" % (sT2, sWave)); e("s_add_u32 s%d, s%d, s%d" % (sT1, sT1, sT2))
            e("s_add_u32 s%d, s%d, %d" % (sT2, sWl, mat * B_IMG3))
            for m in range(7):
                e("s_mov_b32 m0, s%d" % sT2); e("s_add_u32 s%d, s%d, 1024" % (sT2, sT2))
                e("buffer_load_dwordx4 v8, %s, s%d offen lds" % (sp(sWS, 4), sT1))
                e("s_add_u32 s%d, s%d, %d" % (sT1, sT1, 64 * 3584))
        self.lab("L_wdone")

    def clear_mailboxes(self):
        e = self.e
        e("v_mov_b32 v10, -1")
        e("s_lshl_b32 s%d, s%d, 2" % (sT0, sH)); e("s_add_u32 s%d, s%d, s%d" % (sT0, sT0, sWave)); e("s_lshl_b32 s%d, s%d, 4" % (sT0, sT0))
        e("s_add_u32 s%d, s%d, s%d" % (sT0, sT0, sC)); e("s_mul_i32 s%d, s%d, %d" % (sT0, sT0, M1_SLOT))
        self.addr(sA, pWs, M1, [sT0])
        e("v_lshlrev_b32 v8, 2, v%d" % vL)
        e("v_and_b32 v9, 1, v%d" % vL); e("v_lshlrev_b32 v9, 2, v9"); e("v_add_u32 v9, 256, v9")
        for rho in range(2):
            e("global_store_dword v8, v10, %s sc1" % sp(sA))
            e("global_store_dword v9, v10, %s sc1" % sp(sA))
            if rho == 0:
                e("s_add_u32 s%d, s%d, 0x%x" % (sA, sA, M1_R)); e("s_addc_u32 s%d, s%d, 0" % (sA + 1, sA + 1))
        e("s_cmp_eq_u32 s%d, 0" % sWave); e("s_cbranch_scc0 L_cdone")
        e("s_cmp_eq_u32 s%d, 0" % sRole); e("s_cbranch_scc1 L_cdone")
        e("v_and_b32 v8, 31, v%d" % vL); e("v_lshlrev_b32 v8, 2, v8")
        e("s_lshl_b32 s%d, s%d, 7" % (sT0, sIdx))
        e("v_add_u32 v8, s%d, v8" % sT0)
        e("s_cmp_eq_u32 s%d, 1" % sRole); e("s_cbranch_scc1 L_cA")
        e("s_cmp_eq_u32 s%d, 2" % sRole); e("s_cbranch_scc1 L_cB")
        e("s_cmp_eq_u32 s%d, 3" % sRole); e("s_cbranch_scc1 L_cC")
        for off in (M2, M2 + MR, M6, M6 + MR):
            self.addr(sA, pWs, off); e("global_store_dword v8, v10, %s sc1" % sp(sA))
        e("s_branch L_cdone")
        self.lab("L_cA")
        for off in (M3, M3 + MR):
            self.addr(sA, pWs, off); e("global_store_dword v8, v10, %s sc1" % sp(sA))
        e("s_branch L_cdone")
        self.lab("L_cB")
        for off in (M4, M4 + MR):
            self.addr(sA, pWs, off); e("global_store_dword v8, v10, %s sc1" % sp(sA))
        e("s_branch L_cdone")
        self.lab("L_cC")
        self.addr(sA, pWs, M5); e("global_store_dword v8, v10, %s sc1" % sp(sA))
        self.lab("L_cdone")
        e("v_mov_b32 v11, 0")
        e("v_lshlrev_b32 v8, 2, v%d" % vL); e("v_add_u32 v8, %d, v8" % L_Z)
        e("ds_write_b32 v8, v11"); e("ds_write_b32 v8, v11 offset:256")
        e("s_waitcnt vmcnt(0) lgkmcnt(0)")
        e("s_barrier")
        e("s_cmp_eq_u32 s%d, 0" % sWave); e("s_cbranch_scc0 L_cnt_done")
        e("v_mov_b32 v8, 0"); e("v_mov_b32 v9, 1")
        e("v_cmp_eq_u32 vcc, 0, v%d" % vL)
        e("s_and_saveexec_b64 %s, vcc" % sp(sEx))
        e("global_atomic_add v8, v9, %s" % sp(pDbg))
        e("s_mov_b64 exec, %s" % sp(sEx))
        self.lab("L_cnt_done")

    def layernorm_to_vec(self):
        e = self.e
        X = 40
        for d in range(4):
            e("v_lshlrev_b32 v%d, 16, v%d" % (X + 2 * d, 32 + d))
            e("v_and_b32 v%d, 0xffff0000, v%d" % (X + 2 * d + 1, 32 + d))
        e("v_cmp_gt_u32 vcc, 56, v%d" % vL)
        e("v_add_f32 v48, v40, v41"); e("v_add_f32 v49, v42, v43"); e("v_add_f32 v50, v44, v45"); e("v_add_f32 v51, v46, v47")
        e("v_add_f32 v48, v48, v49"); e("v_add_f32 v50, v50, v51"); e("v_add_f32 v48, v48, v50")
        e("v_cndmask_b32 v48, 0, v48, vcc")
        self.allreduce64(48, 49, "v_add_f32")
        e("v_mul_f32 v48, 0x3b124925, v48")
        for i in range(8):
            e("v_sub_f32 v%d, v%d, v48" % (52 + i, X + i))
        e("v_mul_f32 v49, v52, v52")
        for i in range(1, 8):
            e("v_fmac_f32 v49, v%d, v%d" % (52 + i, 52 + i))
        e("v_cndmask_b32 v49, 0, v49, vcc")
        self.allreduce64(49, 50, "v_add_f32")
        e("v_mul_f32 v49, 0x3b124925, v49")
        self.bf16r(48, 48, 50)
        self.bf16r(49, 49, 50)
        e("v_add_f32 v49, 0x3727c5ac, v49")
        self.bf16r(49, 49, 50)
        e("v_sqrt_f32 v49, v49"); self.nop(1)
        self.bf16r(49, 49, 50)
        e("v_rcp_f32 v49, v49")
        for i in range(8):
            e("v_sub_f32 v%d, v%d, v48" % (52 + i, X + i))
        for i in range(0, 8, 2):
            e("v_cvt_pk_bf16_f32 v%d, v%d, v%d" % (36 + i // 2, 52 + i, 53 + i))
        for d in range(4):
            e("v_lshlrev_b32 v%d, 16, v%d" % (52 + 2 * d, 36 + d))
            e("v_and_b32 v%d, 0xffff0000, v%d" % (53 + 2 * d, 36 + d))
        for i in range(8):
            e("v_mul_f32 v%d, v%d, v49" % (52 + i, 52 + i))
        for i in range(0, 8, 2):
            e("v_cvt_pk_bf16_f32 v%d, v%d, v%d" % (36 + i // 2, 52 + i, 53 + i))
        e("v_lshlrev_b32 v48, 4, v%d" % vL); e("v_add_u32 v48, s%d, v48" % sVec)
        e("ds_write_b128 v48, v[36:39]")
        e("s_waitcnt lgkmcnt(0)")

    def gemv_chain(self, n, a_off, b_step, b_second, acc=8):
        e = self.e
        m = 0
        first = True
        while m < n:
            nb = min(4, n - m)
            for k in range(nb):
                o0, o1 = a_off(m + k)
                e("ds_read2_b64 v[%d:%d], v6 offset0:%d offset1:%d" % (32 + 4 * k, 35 + 4 * k, o0, o1))
                e("ds_read_b64_tr_b16 v[%d:%d], v7 offset:%d" % (48 + 4 * k, 49 + 4 * k, (m + k) * b_step))
                e("ds_read_b64_tr_b16 v[%d:%d], v7 offset:%d" % (50 + 4 * k, 51 + 4 * k, (m + k) * b_step + b_second))
            e("s_waitcnt lgkmcnt(0)")
            for k in range(nb):
                c = "0" if first else vr(acc, 4)
                e("v_mfma_f32_16x16x32_bf16 %s, %s, %s, %s" % (vr(acc, 4), vr(32 + 4 * k, 4), vr(48 + 4 * k, 4), c))
                first = False
            m += nb
        self.nop(8)

    def lane_rc(self):
        e = self.e
        e("v_lshrrev_b32 v10, 4, v%d" % vL); e("v_bfe_u32 v11, v%d, 2, 2" % vL)
        e("v_and_b32 v12, 3, v%d" % vL); e("v_and_b32 v13, 15, v%d" % vL)

    def stage_D(self, rho_reg_is_next):
        e = self.e
        self.layernorm_to_vec()
        self.lane_rc()
        e("v_lshlrev_b32 v6, 3, v10"); e("v_add_u32 v6, s%d, v6" % sVec)
        e("v_lshl_add_u32 v7, v10, 2, v11"); e("v_lshlrev_b32 v7, 5, v7"); e("v_lshl_add_u32 v7, v12, 3, v7"); e("v_add_u32 v7, s%d, v7" % sWl)
        self.gemv_chain(14, lambda m: (8 * m, 8 * m + 4), 1024, 512)
        e("v_mov_b32_dpp v9, v8 quad_perm:[1,0,3,2] row_mask:0xf bank_mask:0xf")
        e("v_cvt_pk_bf16_f32 v9, v8, v9")
        e("v_mov_b32 v14, -2"); e("v_min_u32 v9, v9, v14")
        e("s_lshl_b32 s%d, s%d, 7" % (sT0, sIdx)); e("s_lshl_b32 s%d, s%d, 5" % (sT1, sWave)); e("s_add_u32 s%d, s%d, s%d" % (sT0, sT0, sT1))
        e("v_lshlrev_b32 v14, 1, v%d" % vL); e("v_add_u32 v14, s%d, v14" % sT0)
        e("s_mov_b64 exec, 0x5555")
        e("global_store_dword v14, v9, %s sc1" % sp(sA))
        e("s_mov_b64 exec, -1")

    def p1a(self):
        e = self.e
        e("v_lshrrev_b32 v%d, 5, v%d" % (vPh, vL)); e("v_lshlrev_b32 v%d, 12, v%d" % (vPh, vPh))
        e("v_and_b32 v%d, 31, v%d" % (vAd, vL)); e("v_lshl_add_u32 v%d, v%d, 3, v%d" % (vPh, vAd, vPh))
        for T in range(NRES_T):
            self.step_issue()
            e("v_add_u32 v%d, s%d, v%d" % (vAd, sCs, vPh))
            for t in range(16):
                e("ds_read_b64_tr_b16 %s, v%d offset:%d" % (res_reg(T >> 1, t, T & 1), vAd, t * 256))
            self.adv_cs()
            e("s_waitcnt lgkmcnt(0)")

    def gather_q(self):
        e = self.e
        e("s_cmp_eq_u32 s%d, 0" % sPass); e("s_cbranch_scc0 L_gq")
        L = self.nl("Lc"); Dn = self.nl("Lcd")
        e("v_mov_b32 v8, 0"); e("s_mov_b32 s%d, 0" % sSpin)
        self.lab(L)
        e("global_load_dword v9, v8, %s sc1" % sp(pDbg))
        e("s_waitcnt vmcnt(0)")
        e("v_cmp_gt_u32 vcc, 256, v9")
        e("s_cbranch_vccz %s" % Dn)
        e("s_add_u32 s%d, s%d, 1" % (sSpin, sSpin)); e("s_cmp_lt_u32 s%d, %d" % (sSpin, SPIN_LIMIT)); e("s_cbranch_scc1 %s" % L)
        self.lab(Dn)
        self.lab("L_gq")
        e("s_lshl_b32 s%d, s%d, 13" % (sT0, sPass)); e("s_lshl_b32 s%d, s%d, 9" % (sT1, sH))
        self.addr(sA, pWs, M6, [sT0, sT1])
        e("v_and_b32 v8, 31, v%d" % vL); e("v_lshlrev_b32 v8, 4, v8")
        self.poll(["global_load_dwordx4 v[32:35], v8, %s sc1" % sp(sA)], [32, 33, 34, 35], 36, "Pq")
        e("s_lshl_b32 s%d, s%d, 9" % (sT0, sWave))
        e("v_add_u32 v8, s%d, v8" % sT0)
        e("ds_write_b128 v8, v[32:35] offset:%d" % L_Q)
        e("s_waitcnt lgkmcnt(0)")

    def kphase(self):
        e = self.e
        vQ, vZ = 16, 17
        e("v_bfe_u32 v%d, v%d, 3, 1" % (vPh, vL)); e("v_lshlrev_b32 v%d, 12, v%d" % (vPh, vPh))
        e("v_lshrrev_b32 v%d, 4, v%d" % (vAd, vL)); e("v_lshl_add_u32 v%d, v%d, 7, v%d" % (vPh, vAd, vPh))
        e("v_lshlrev_b32 v%d, 4, v%d" % (vQ, vAd))
        e("v_and_b32 v%d, 7, v%d" % (vAd, vL)); e("v_lshl_add_u32 v%d, v%d, 4, v%d" % (vPh, vAd, vPh))
        e("s_lshl_b32 s%d, s%d, 9" % (sT0, sWave)); e("s_add_u32 s%d, s%d, %d" % (sT0, sT0, L_Q))
        e("v_add_u32 v%d, s%d, v%d" % (vQ, sT0, vQ))
        e("v_mov_b32 v%d, %d" % (vZ, L_Z))
        for i in range(8):
            e("v_mov_b32 v%d, 0" % (vSC + i))
        first_skip = self.nl("Kskip")
        e("s_mov_b32 s%d, 0" % sT15)
        e("s_cmp_eq_u32 s%d, 0" % sPass)
        e("s_cbranch_scc1 L_k0")
        e("s_waitcnt vmcnt(0)")
        e("s_branch %s" % first_skip)
        for a in range(2):
            self.lab("L_k%d" % a)
            self.step_issue()
            if a == 0:
                self.lab(first_skip)
            e("s_lshl_b64 %s, %s, s%d" % (sp(sMd), sp(sM[0]), sT15))
            e("v_add_u32 v%d, s%d, v%d" % (vAd, sCs, vPh))
            e("v_cndmask_b32 v%d, v%d, v%d, %s" % (vPa, vZ, vQ, sp(sMd)))
            for b in range(2):
                for k in range(4):
                    c8 = 4 * b + k
                    e("ds_read_b128 v[%d:%d], v%d offset:%d" % (32 + 4 * k, 35 + 4 * k, vPa, c8 * 64))
                    e("ds_read_b128 v[%d:%d], v%d offset:%d" % (48 + 4 * k, 51 + 4 * k, vAd, c8 * 512))
                e("s_waitcnt lgkmcnt(0)")
                for k in range(4):
                    e("v_mfma_f32_16x16x32_bf16 %s, %s, %s, %s" % (vr(vSC + 4 * a, 4), vr(32 + 4 * k, 4), vr(48 + 4 * k, 4), vr(vSC + 4 * a, 4)))
            self.adv_cs()
            e("s_add_u32 s%d, s%d, 1" % (sT15, sT15))
            e("s_and_b32 s%d, s%d, 15" % (sT15, sT15))
            e("s_cbranch_scc1 L_k%d" % a)
        self.nop(8)

    def softmax(self):
        e = self.e
        S = vSC
        for i in range(0, 8, 2):
            e("v_cvt_pk_bf16_f32 v32, v%d, v%d" % (S + i, S + i + 1))
            e("v_lshlrev_b32 v%d, 16, v32" % (S + i)); e("v_and_b32 v%d, 0xffff0000, v32" % (S + i + 1))
        e("v_max3_f32 v32, v%d, v%d, v%d" % (S, S + 1, S + 2)); e("v_max3_f32 v32, v32, v%d, v%d" % (S + 3, S + 4))
        e("v_max3_f32 v32, v32, v%d, v%d" % (S + 5, S + 6)); e("v_max_f32 v32, v32, v%d" % (S + 7))
        self.allreduce64(32, 33, "v_max_f32")
        e("s_lshl_b32 s%d, s%d, 2" % (sT0, sWave)); e("s_add_u32 s%d, s%d, %d" % (sT0, sT0, L_SM))
        e("v_mov_b32 v33, s%d" % sT0)
        e("ds_write_b32 v33, v32")
        e("s_waitcnt lgkmcnt(0)")
        e("s_barrier")
        e("v_mov_b32 v33, %d" % L_SM)
        e("ds_read_b128 v[36:39], v33")
        e("s_waitcnt lgkmcnt(0)")
        e("v_max3_f32 v32, v36, v37, v38"); e("v_max_f32 v32, v32, v39")
        e("s_mov_b32 s%d, 0x%x" % (sT0, C_EXP))
        for i in range(8):
            e("v_sub_f32 v%d, v%d, v32" % (S + i, S + i))
        for i in range(8):
            e("v_mul_f32 v%d, s%d, v%d" % (S + i, sT0, S + i))
        for i in range(8):
            e("v_exp_f32 v%d, v%d" % (S + i, S + i))
        self.nop(1)
        e("v_lshrrev_b32 v33, 4, v%d" % vL); e("v_lshlrev_b32 v33, 7, v33")
        e("v_and_b32 v34, 15, v%d" % vL); e("v_lshl_add_u32 v33, v34, 1, v33")
        e("s_lshl_b32 s%d, s%d, 10" % (sT0, sWave)); e("s_add_u32 s%d, s%d, %d" % (sT0, sT0, L_P))
        e("v_add_u32 v33, s%d, v33" % sT0)
        for i in range(0, 8, 2):
            a, r = i >> 2, i & 3
            e("v_cvt_pk_bf16_f32 v%d, v%d, v%d" % (36 + i // 2, S + i, S + i + 1))
            e("ds_write_b16 v33, v%d offset:%d" % (36 + i // 2, a * 512 + r * 32))
            e("ds_write_b16_d16_hi v33, v%d offset:%d" % (36 + i // 2, a * 512 + (r + 1) * 32))
        e("v_add_f32 v34, v%d, v%d" % (S, S + 1)); e("v_add_f32 v35, v%d, v%d" % (S + 2, S + 3))
        e("v_add_f32 v40, v%d, v%d" % (S + 4, S + 5)); e("v_add_f32 v41, v%d, v%d" % (S + 6, S + 7))
        e("v_add_f32 v34, v34, v35"); e("v_add_f32 v40, v40, v41"); e("v_add_f32 v34, v34, v40")
        self.allreduce64(34, 35, "v_add_f32")
        e("v_mov_b32 v%d, v34" % vLsum)
        e("v_mov_b32 v9, v32")
        e("s_waitcnt lgkmcnt(0)")

    def vphase(self):
        e = self.e
        e("v_lshrrev_b32 v%d, 5, v%d" % (vPh, vL)); e("v_lshlrev_b32 v%d, 12, v%d" % (vPh, vPh))
        e("v_and_b32 v%d, 31, v%d" % (vAd, vL)); e("v_lshl_add_u32 v%d, v%d, 3, v%d" % (vPh, vAd, vPh))
        e("v_lshrrev_b32 v%d, 4, v%d" % (vPa, vL)); e("v_lshlrev_b32 v%d, 3, v%d" % (vPa, vPa))
        e("s_lshl_b32 s%d, s%d, 10" % (sT0, sWave)); e("s_add_u32 s%d, s%d, %d" % (sT0, sT0, L_P))
        e("v_add_u32 v%d, s%d, v%d" % (vPa, sT0, vPa))
        for i in range(16):
            e("v_mov_b32 v%d, 0" % (vACC + i))
        acc = lambda T4: vr(vACC + 4 * T4, 4)
        after = {1: 0, 3: 1, 6: 2, 8: 3, 11: 4, 13: 5, 16: 6}
        for i in range(NSTR_T):
            T = NRES_T + i
            self.step_issue()
            e("v_add_u32 v%d, s%d, v%d" % (vAd, sCs, vPh))
            e("ds_read_b64 v[32:33], v%d offset:%d" % (vPa, T * 32))
            for b in range(2):
                us = (2 * b, 2 * b + 1)
                k = 0
                for u in us:
                    for T4 in range(4):
                        e("ds_read_b64_tr_b16 v[%d:%d], v%d offset:%d" % (48 + 2 * k, 49 + 2 * k, vAd, (4 * T4 + u) * 256))
                        k += 1
                if b == 0:
                    e("s_waitcnt lgkmcnt(8)")
                for j, u in enumerate(us):
                    e("v_cndmask_b32 v%d, 0, v32, %s" % (36 + 2 * j, sp(sM[u])))
                    e("v_cndmask_b32 v%d, 0, v33, %s" % (37 + 2 * j, sp(sM[u])))
                e("s_waitcnt lgkmcnt(0)")
                k = 0
                for j, u in enumerate(us):
                    for T4 in range(4):
                        e("v_mfma_f32_16x16x16_bf16 %s, %s, %s, %s" % (acc(T4), vr(36 + 2 * j, 2), vr(48 + 2 * k, 2), acc(T4)))
                        k += 1
            self.adv_cs()
            if i in after:
                self.res_pair(after[i])
        self.nop(8)

    def res_pair(self, m):
        e = self.e
        acc = lambda T4: vr(vACC + 4 * T4, 4)
        e("ds_read2_b64 v[32:35], v%d offset0:%d offset1:%d" % (vPa, 8 * m, 8 * m + 4))
        e("s_waitcnt lgkmcnt(0)")
        for u in range(4):
            A = 36 + 4 * (u & 1)
            for d in range(4):
                e("v_cndmask_b32 v%d, 0, v%d, %s" % (A + d, 32 + d, sp(sM[u])))
            self.nop(2)
            for T4 in range(4):
                e("v_mfma_f32_16x16x32_bf16 %s, %s, %s, %s" % (acc(T4), vr(A, 4), res_reg(m, 4 * T4 + u), acc(T4)))

    def combine_publish(self):
        e = self.e
        for u in range(4):
            X, Y, Z, W = (vACC + 4 * t + u for t in range(4))
            e("v_permlane16_swap_b32 v%d, v%d" % (X, Y))
            e("v_permlane16_swap_b32 v%d, v%d" % (Z, W))
        self.nop(2)
        for u in range(4):
            e("v_permlane32_swap_b32 v%d, v%d" % (vACC + u, vACC + 8 + u))
        e("v_lshrrev_b32 v32, 4, v%d" % vL); e("v_lshlrev_b32 v32, 8, v32")
        e("v_and_b32 v33, 15, v%d" % vL); e("v_lshl_add_u32 v32, v33, 2, v32")
        e("s_lshl_b32 s%d, s%d, 10" % (sT0, sWave)); e("s_add_u32 s%d, s%d, %d" % (sT0, sT0, L_P))
        e("v_add_u32 v32, s%d, v32" % sT0)
        for u in range(4):
            e("ds_write_b32 v32, v%d offset:%d" % (vACC + u, u * 64))
        e("s_lshl_b32 s%d, s%d, 2" % (sT0, sWave)); e("s_add_u32 s%d, s%d, %d" % (sT0, sT0, L_SM + 16))
        e("v_mov_b32 v33, s%d" % sT0)
        e("ds_write_b32 v33, v%d" % vLsum)
        e("s_waitcnt lgkmcnt(0)")
        e("s_barrier")
        e("s_lshl_b32 s%d, s%d, 8" % (sT0, sWave)); e("s_add_u32 s%d, s%d, %d" % (sT0, sT0, L_P))
        e("v_lshlrev_b32 v40, 2, v%d" % vL); e("v_add_u32 v32, s%d, v40" % sT0)
        for w in range(4):
            e("ds_read_b32 v%d, v32 offset:%d" % (34 + w, w * 1024))
        e("v_mov_b32 v33, %d" % (L_SM + 16))
        e("ds_read_b128 v[44:47], v33")
        e("s_waitcnt lgkmcnt(0)")
        e("v_add_f32 v34, v34, v35"); e("v_add_f32 v36, v36, v37"); e("v_add_f32 v34, v34, v36")
        e("v_add_f32 v44, v44, v45"); e("v_add_f32 v46, v46, v47"); e("v_add_f32 v44, v44, v46")
        e("v_mov_b32 v41, -2")
        e("v_min_u32 v34, v34, v41")
        e("v_and_b32 v42, 1, v%d" % vL); e("v_cmp_eq_u32 vcc, 1, v42"); self.nop(2)
        e("v_cndmask_b32 v43, v9, v44, vcc"); e("v_min_u32 v43, v43, v41")
        e("v_lshlrev_b32 v42, 2, v42"); e("v_add_u32 v42, 256, v42")
        e("s_lshl_b32 s%d, s%d, 2" % (sT0, sH)); e("s_add_u32 s%d, s%d, s%d" % (sT0, sT0, sWave)); e("s_lshl_b32 s%d, s%d, 4" % (sT0, sT0))
        e("s_add_u32 s%d, s%d, s%d" % (sT0, sT0, sC)); e("s_mul_i32 s%d, s%d, %d" % (sT0, sT0, M1_SLOT))
        e("s_mul_i32 s%d, s%d, 0x%x" % (sT1, sPass, M1_R))
        self.addr(sA, pWs, M1, [sT0, sT1])
        e("global_store_dword v40, v34, %s sc1" % sp(sA))
        e("global_store_dword v42, v43, %s sc1" % sp(sA))
        e("s_barrier")

    def topup(self):
        e = self.e
        L = self.nl("Tu"); D = self.nl("Tud")
        e("s_cmp_eq_u32 s%d, 0" % sPass); e("s_cbranch_scc0 %s" % D)
        e("s_sub_u32 s%d, s%d, 2" % (sT5, sNS))
        self.lab(L)
        self.issue()
        e("s_sub_u32 s%d, s%d, 1" % (sT5, sT5))
        e("s_cmp_lg_u32 s%d, 0" % sT5); e("s_cbranch_scc1 %s" % L)
        self.lab(D)

    def stage_S1(self):
        e = self.e
        e("s_mul_i32 s%d, s%d, %d" % (sT0, sIdx, 16 * M1_SLOT)); e("s_mul_i32 s%d, s%d, 0x%x" % (sT1, sPass, M1_R))
        self.addr(sA, pWs, M1 + 2304, [sT0, sT1])
        e("v_lshrrev_b32 v10, 4, v%d" % vL); e("v_mul_u32_u24 v10, %d, v10" % M1_SLOT)
        e("v_and_b32 v11, 15, v%d" % vL); e("v_lshl_add_u32 v11, v11, 4, v10")
        e("v_add_u32 v10, 256, v10")
        loads = []; regs = []
        for j in range(4):
            off = j * 4 * M1_SLOT - 2304
            loads.append("global_load_dwordx4 v[%d:%d], v11, %s offset:%d sc1" % (32 + 4 * j, 35 + 4 * j, sp(sA), off))
            loads.append("global_load_dwordx2 v[%d:%d], v10, %s offset:%d sc1" % (48 + 2 * j, 49 + 2 * j, sp(sA), off))
        self.poll(loads, list(range(32, 56)), 56, "Ps1")
        e("v_max3_f32 v56, v48, v50, v52"); e("v_max_f32 v56, v56, v54")
        self.xrows(56, 57, "v_max_f32")
        e("s_mov_b32 s%d, 0x%x" % (sT0, C_EXP))
        for j in range(4):
            e("v_sub_f32 v%d, v%d, v56" % (48 + 2 * j, 48 + 2 * j))
        for j in range(4):
            e("v_mul_f32 v%d, s%d, v%d" % (48 + 2 * j, sT0, 48 + 2 * j))
        for j in range(4):
            e("v_exp_f32 v%d, v%d" % (48 + 2 * j, 48 + 2 * j))
        self.nop(1)
        e("v_mul_f32 v56, v48, v49")
        for j in range(1, 4):
            e("v_fmac_f32 v56, v%d, v%d" % (48 + 2 * j, 49 + 2 * j))
        for d in range(4):
            e("v_mul_f32 v%d, v48, v%d" % (32 + d, 32 + d))
        for j in range(1, 4):
            for d in range(4):
                e("v_fmac_f32 v%d, v%d, v%d" % (32 + d, 48 + 2 * j, 32 + 4 * j + d))
        self.xrows(56, 57, "v_add_f32")
        e("v_rcp_f32 v56, v56")
        e("v_permlane32_swap_b32 v32, v34"); e("v_permlane32_swap_b32 v33, v35"); self.nop(1)
        e("v_add_f32 v32, v32, v34"); e("v_add_f32 v33, v33, v35")
        e("v_mov_b32 v34, v32"); e("v_mov_b32 v35, v33"); self.nop(2)
        e("v_permlane16_swap_b32 v32, v34"); e("v_permlane16_swap_b32 v33, v35"); self.nop(1)
        e("v_add_f32 v32, v32, v34"); e("v_add_f32 v33, v33, v35")
        e("v_mul_f32 v32, v32, v56"); e("v_mul_f32 v33, v33, v56")
        e("v_cvt_pk_bf16_f32 v32, v32, v33")
        e("v_mov_b32 v41, -2"); e("v_min_u32 v32, v32, v41")
        e("v_and_b32 v34, 15, v%d" % vL); e("v_lshlrev_b32 v34, 3, v34")
        e("v_lshrrev_b32 v35, 5, v%d" % vL); e("v_lshl_add_u32 v34, v35, 2, v34")
        e("s_lshl_b32 s%d, s%d, 13" % (sT0, sPass)); e("s_lshl_b32 s%d, s%d, 7" % (sT1, sIdx))
        self.addr(sA, pWs, M2, [sT0, sT1])
        e("s_mov_b32 exec_lo, 0xffff"); e("s_mov_b32 exec_hi, 0xffff")
        e("global_store_dword v34, v32, %s sc1" % sp(sA))
        e("s_mov_b64 exec, -1")

    def reduce_waves16(self, src):
        e = self.e
        e("v_and_b32 v14, 15, v%d" % vL); e("v_lshlrev_b32 v14, 2, v14")
        e("s_lshl_b32 s%d, s%d, 6" % (sT0, sWave)); e("s_add_u32 s%d, s%d, %d" % (sT0, sT0, L_RED))
        e("v_add_u32 v15, s%d, v14" % sT0)
        e("ds_write_b32 v15, v%d" % src)
        e("s_waitcnt lgkmcnt(0)")
        e("s_barrier")
        for w in range(4):
            e("ds_read_b32 v%d, v14 offset:%d" % (16 + w, L_RED + w * 64))
        e("s_waitcnt lgkmcnt(0)")
        e("v_add_f32 v16, v16, v17"); e("v_add_f32 v18, v18, v19"); e("v_add_f32 v8, v16, v18")

    def stage_A(self):
        e = self.e
        e("v_and_b32 v20, 7, v%d" % vL); e("v_lshlrev_b32 v20, 1, v20")
        e("s_cmp_eq_u32 s%d, 0" % sPass); e("s_cbranch_scc0 L_A_r1")
        e("s_lshl_b32 s%d, s%d, 4" % (sT0, sIdx))
        self.addr(sB, pX, 0, [sT0])
        e("s_branch L_A_r2")
        self.lab("L_A_r1")
        e("s_lshr_b32 s%d, s%d, 1" % (sT0, sIdx)); e("s_lshl_b32 s%d, s%d, 7" % (sT0, sT0))
        e("s_and_b32 s%d, s%d, 1" % (sT1, sIdx)); e("s_lshl_b32 s%d, s%d, 4" % (sT1, sT1))
        self.addr(sB, pWs, M5, [sT0, sT1])
        self.lab("L_A_r2")
        e("global_load_ushort v21, v20, %s sc1" % sp(sB))
        e("s_lshl_b32 s%d, s%d, 13" % (sT0, sPass)); e("s_lshl_b32 s%d, s%d, 11" % (sT1, sWave))
        self.addr(sA, pWs, M2, [sT0, sT1])
        e("v_lshlrev_b32 v8, 4, v%d" % vL)
        self.poll(["global_load_dwordx4 v[32:35], v8, %s sc1" % sp(sA),
                   "global_load_dwordx4 v[36:39], v8, %s offset:1024 sc1" % sp(sA)], list(range(32, 40)), 40, "Pa")
        e("v_add_u32 v8, s%d, v8" % sVec)
        e("ds_write_b128 v8, v[32:35]"); e("ds_write_b128 v8, v[36:39] offset:1024")
        self.lane_rc()
        e("v_and_b32 v6, 1, v13"); e("v_lshlrev_b32 v6, 3, v6"); e("v_lshl_add_u32 v6, v10, 4, v6"); e("v_add_u32 v6, s%d, v6" % sVec)
        e("v_lshrrev_b32 v7, 1, v12"); e("v_lshl_add_u32 v7, v7, 2, v11"); e("v_lshl_add_u32 v7, v10, 3, v7"); e("v_lshlrev_b32 v7, 4, v7")
        e("v_and_b32 v14, 1, v12"); e("v_lshl_add_u32 v7, v14, 3, v7"); e("v_add_u32 v7, s%d, v7" % sWl)
        e("s_waitcnt lgkmcnt(0)")
        self.gemv_chain(16, lambda m: (16 * m, 16 * m + 8), 1024, 512)
        e("v_add_f32_dpp v8, v9, v8 row_ror:8 row_mask:0xf bank_mask:0xf")
        self.reduce_waves16(8)
        e("s_cmp_eq_u32 s%d, 0" % sWave); e("s_cbranch_scc0 L_A_done")
        self.bf16r(8, 8, 9)
        e("v_lshlrev_b32 v21, 16, v21")
        e("v_add_f32 v8, v8, v21")
        self.nop(1)
        e("v_mov_b32_dpp v9, v8 quad_perm:[1,0,3,2] row_mask:0xf bank_mask:0xf")
        e("v_cvt_pk_bf16_f32 v9, v8, v9")
        e("v_mov_b32 v14, -2"); e("v_min_u32 v9, v9, v14")
        e("s_lshl_b32 s%d, s%d, 13" % (sT0, sPass)); e("s_lshl_b32 s%d, s%d, 7" % (sT1, sIdx))
        self.addr(sA, pWs, M3, [sT0, sT1])
        e("v_lshlrev_b32 v14, 1, v%d" % vL)
        e("s_mov_b64 exec, 0x55")
        e("global_store_dword v14, v9, %s sc1" % sp(sA))
        e("s_mov_b64 exec, -1")
        self.lab("L_A_done")

    def gather_x(self, base_off, slot_shift_mode):
        e = self.e
        e("v_min_u32 v8, 55, v%d" % vL)
        if slot_shift_mode == "M3":
            e("v_lshlrev_b32 v8, 7, v8")
        else:
            e("v_and_b32 v9, 1, v8"); e("v_lshrrev_b32 v8, 1, v8"); e("v_lshlrev_b32 v8, 7, v8"); e("v_lshl_add_u32 v8, v9, 4, v8")
        self.poll(["global_load_dwordx4 v[32:35], v8, %s sc1" % sp(sA)], [32, 33, 34, 35], 36, "Px")

    def stage_B(self):
        e = self.e
        e("s_lshl_b32 s%d, s%d, 13" % (sT0, sPass))
        self.addr(sA, pWs, M3, [sT0])
        self.gather_x(M3, "M3")
        self.layernorm_to_vec()
        self.lane_rc()
        e("v_lshlrev_b32 v6, 3, v10"); e("v_add_u32 v6, s%d, v6" % sVec)
        e("v_lshl_add_u32 v7, v10, 2, v11"); e("v_lshlrev_b32 v7, 4, v7")
        e("v_and_b32 v14, 1, v12"); e("v_lshl_add_u32 v7, v14, 3, v7")
        e("v_lshrrev_b32 v14, 1, v12"); e("v_mul_u32_u24 v14, %d, v14" % B_IMG3); e("v_add_u32 v7, v7, v14"); e("v_add_u32 v7, s%d, v7" % sWl)
        self.gemv_chain(14, lambda m: (8 * m, 8 * m + 4), 512, 256)
        self.bf16r(8, 8, 9)
        self.nop(1)
        e("v_mov_b32_dpp v10, v8 row_ror:8 row_mask:0xf bank_mask:0xf")
        e("v_mul_f32 v11, 0xbfb8aa3b, v8")
        e("v_exp_f32 v11, v11"); self.nop(1)
        e("v_add_f32 v11, 1.0, v11")
        e("v_rcp_f32 v11, v11"); self.nop(1)
        e("v_mul_f32 v11, v8, v11")
        self.bf16r(11, 11, 12)
        e("v_mul_f32 v11, v11, v10")
        self.nop(1)
        e("v_mov_b32_dpp v12, v11 quad_perm:[1,0,3,2] row_mask:0xf bank_mask:0xf")
        e("v_cvt_pk_bf16_f32 v12, v11, v12")
        e("v_mov_b32 v14, -2"); e("v_min_u32 v12, v12, v14")
        e("s_lshl_b32 s%d, s%d, 13" % (sT0, sPass)); e("s_lshl_b32 s%d, s%d, 7" % (sT1, sIdx)); e("s_lshl_b32 s%d, s%d, 4" % (sT2, sWave))
        self.addr(sA, pWs, M4, [sT0, sT1, sT2])
        e("v_lshlrev_b32 v14, 1, v%d" % vL)
        e("s_mov_b64 exec, 0x55")
        e("global_store_dword v14, v12, %s sc1" % sp(sA))
        e("s_mov_b64 exec, -1")

    def stage_C(self):
        e = self.e
        e("s_lshl_b32 s%d, s%d, 13" % (sT0, sPass)); e("s_lshl_b32 s%d, s%d, 8" % (sT1, sIdx))
        self.addr(sB, pWs, M3, [sT0, sT1])
        e("v_bfe_u32 v20, v%d, 3, 1" % vL); e("v_lshlrev_b32 v20, 7, v20")
        e("v_bfe_u32 v21, v%d, 1, 2" % vL); e("v_lshl_add_u32 v20, v21, 2, v20")
        self.poll(["global_load_dword v22, v20, %s sc1" % sp(sB)], [22], 23, "Pr")
        e("s_lshl_b32 s%d, s%d, 13" % (sT0, sPass)); e("s_mul_i32 s%d, s%d, %d" % (sT1, sWave, 14 * 128))
        self.addr(sA, pWs, M4, [sT0, sT1])
        e("v_min_u32 v8, 55, v%d" % vL)
        e("v_and_b32 v9, 3, v8"); e("v_lshrrev_b32 v8, 2, v8"); e("v_lshlrev_b32 v8, 7, v8"); e("v_lshl_add_u32 v8, v9, 4, v8")
        self.poll(["global_load_dwordx4 v[32:35], v8, %s sc1" % sp(sA)], [32, 33, 34, 35], 36, "Ph")
        e("v_lshlrev_b32 v8, 4, v%d" % vL); e("v_add_u32 v8, s%d, v8" % sVec)
        e("ds_write_b128 v8, v[32:35]")
        self.lane_rc()
        e("v_lshlrev_b32 v6, 3, v10"); e("v_add_u32 v6, s%d, v6" % sVec)
        e("v_lshl_add_u32 v7, v10, 2, v11"); e("v_lshlrev_b32 v7, 5, v7"); e("v_lshl_add_u32 v7, v12, 3, v7"); e("v_add_u32 v7, s%d, v7" % sWl)
        e("s_waitcnt lgkmcnt(0)")
        self.gemv_chain(14, lambda m: (8 * m, 8 * m + 4), 1024, 512)
        self.reduce_waves16(8)
        e("s_cmp_eq_u32 s%d, 0" % sWave); e("s_cbranch_scc0 L_C_done")
        self.bf16r(8, 8, 9)
        e("v_and_b32 v23, 1, v%d" % vL); e("v_cmp_eq_u32 vcc, 1, v23")
        e("v_lshlrev_b32 v23, 16, v22"); e("v_and_b32 v22, 0xffff0000, v22")
        e("v_cndmask_b32 v22, v23, v22, vcc")
        e("v_add_f32 v8, v8, v22")
        self.nop(1)
        e("v_mov_b32_dpp v9, v8 quad_perm:[1,0,3,2] row_mask:0xf bank_mask:0xf")
        e("v_cvt_pk_bf16_f32 v9, v8, v9")
        e("v_lshlrev_b32 v14, 1, v%d" % vL)
        e("s_cmp_eq_u32 s%d, 0" % sPass); e("s_cbranch_scc0 L_C_out")
        e("v_mov_b32 v15, -2"); e("v_min_u32 v9, v9, v15")
        e("s_lshl_b32 s%d, s%d, 7" % (sT1, sIdx))
        self.addr(sA, pWs, M5, [sT1])
        e("s_mov_b64 exec, 0x5555")
        e("global_store_dword v14, v9, %s sc1" % sp(sA))
        e("s_mov_b64 exec, -1")
        e("s_branch L_C_done")
        self.lab("L_C_out")
        e("s_lshl_b32 s%d, s%d, 5" % (sT1, sIdx))
        self.addr(sA, pOut, 0, [sT1])
        e("s_mov_b64 exec, 0x5555")
        e("global_store_dword v14, v9, %s" % sp(sA))
        e("s_mov_b64 exec, -1")
        self.lab("L_C_done")

    def build(self):
        e = self.e
        self.prologue()
        self.weights_dma()
        self.clear_mailboxes()
        self.issue(); self.issue()
        e("s_cmp_eq_u32 s%d, 4" % sRole); e("s_cbranch_scc0 L_noq1")
        e("v_min_u32 v8, 55, v%d" % vL); e("v_lshlrev_b32 v8, 4, v8")
        e("global_load_dwordx4 v[32:35], v8, %s" % sp(pX))
        e("s_waitcnt vmcnt(0)")
        self.addr(sA, pWs, M6)
        e("s_call_b64 %s, L_stageD" % sp(sRet2))
        self.lab("L_noq1")
        self.p1a()
        self.lab("L_pass")
        self.gather_q()
        self.kphase()
        self.softmax()
        self.vphase()
        self.combine_publish()
        e("s_cmp_eq_u32 s%d, 1" % sRole); e("s_cbranch_scc1 L_roleA")
        e("s_cmp_eq_u32 s%d, 4" % sRole); e("s_cbranch_scc1 L_roleD")
        self.topup()
        e("s_cmp_eq_u32 s%d, 2" % sRole); e("s_cbranch_scc1 L_roleB")
        e("s_cmp_eq_u32 s%d, 3" % sRole); e("s_cbranch_scc1 L_roleC")
        e("s_branch L_next")
        self.lab("L_roleA")
        self.stage_A()
        self.topup()
        e("s_branch L_next")
        self.lab("L_roleB")
        self.stage_B()
        e("s_branch L_next")
        self.lab("L_roleC")
        self.stage_C()
        e("s_branch L_next")
        self.lab("L_roleD")
        e("s_cmp_eq_u32 s%d, 0" % sWave); e("s_cbranch_scc0 L_D_s1done")
        self.stage_S1()
        self.lab("L_D_s1done")
        self.topup()
        e("s_cmp_eq_u32 s%d, 0" % sPass); e("s_cbranch_scc0 L_next")
        self.addr(sA, pWs, M5)
        self.gather_x(M5, "M5")
        self.addr(sA, pWs, M6 + MR)
        e("s_call_b64 %s, L_stageD" % sp(sRet2))
        self.lab("L_next")
        e("s_add_u32 s%d, s%d, 1" % (sPass, sPass))
        e("s_cmp_lt_u32 s%d, 2" % sPass)
        e("s_cbranch_scc1 L_pass")
        e("s_waitcnt vmcnt(0)")
        self.lab("L_end")
        e("s_endpgm")
        self.lab("L_stageD")
        self.stage_D(None)
        e("s_setpc_b64 %s" % sp(sRet2))
        self.emit_switch()
        return self.a.text()


HEADER = """; Persistent fused decode kernel: [attn -> mlp] x2, V tiles kept resident in registers across the two attention passes.
; @launch grid=(256,1,1) block=(256,1,1) lds=%d
.amdgcn_target "amdgcn-amd-amdhsa--gfx950"
.text
.globl %s
.p2align 8
.type %s,@function
%s:
"""
FOOTER = """.section .rodata,"a"
.p2align 6
.amdhsa_kernel %s
  .amdhsa_next_free_vgpr 512
  .amdhsa_next_free_sgpr 102
  .amdhsa_accum_offset 256
  .amdhsa_group_segment_fixed_size 0
  .amdhsa_kernarg_size 96
  .amdhsa_user_sgpr_count 2
  .amdhsa_user_sgpr_kernarg_segment_ptr 1
  .amdhsa_system_sgpr_workgroup_id_x 1
  .amdhsa_float_denorm_mode_32 3
.end_amdhsa_kernel
"""


def generate(opt=None):
    opt = opt or {}
    g = Gen(opt)
    body = g.build()
    return HEADER % (LDS_TOTAL, KNAME, KNAME, KNAME) + body + FOOTER % KNAME


if __name__ == "__main__":
    out = sys.argv[1] if len(sys.argv) > 1 else "gen/kernel.s"
    opt = {}
    for kv in sys.argv[2:]:
        k, v = kv.split("=")
        opt[k] = v
    open(out, "w").write(generate(opt))
    print("wrote", out)
```

```python
import sys, os
sys.path.insert(0, os.path.dirname(os.path.abspath(__file__)))
from asmlib import Asm

KNAME = "interleave_layers__mha_block_cached__glu_gated_swiglu__decode_kernel"

L_Q = 0
L_Z = 2176
L_SM = 2688
L_RED = 2752
L_ST = 3008
L_P = 3072
L_W = 7168
LDS_TOTAL = 163840
RING_NONE = 7168
RING_ROLE = 65536
O_ROW = 912
B_IMG3 = 28704
C_WAVE = 14336

M1 = 0x0; M1_R = 0x60000; M1_SLOT = 384
M2 = 0x100000; M2_R = 0x20000; M2_SLOT = 1792; M3 = 0xC4000; M4 = 0xC8000; M5 = 0xCC000; M6 = 0xCE000; MR = 0x2000
DBG = 0x200000

NRES_PAIRS = 7
NRES_T = 2 * NRES_PAIRS
NSTR_T = 32 - NRES_T
STRIDE = 16384
SPIN_LIMIT = 1 << 18
C_EXP = 0x3DB8AA3B
LOG2E = 0x3FB8AA3B

sW, sWave = 2, 3
pX, pK, pV, pWq, pWo, pW1, pW3, pW2, pOut, pDbg, pWs = 8, 10, 12, 14, 16, 20, 22, 24, 26, 28, 30
sKB, sVB = 32, 34
sCUR = 36
sSlot, sRs, sRe, sOff, sLeft, sSeg, sCs, sPass = 40, 41, 42, 43, 44, 45, 46, 47
sRole, sIdx, sH, sC, sNS, sVec, sWl, sSpin = 48, 49, 50, 51, 52, 53, 54, 55
sM = [56, 58, 60, 62]
sMd, sRet, sEx = 64, 66, 68
sT0, sT1, sT2, sT3, sT4, sT5 = 70, 71, 72, 73, 74, 75
sA = 76
sB = 78
sT15 = 80
sRho = 81
sWS = 84
sRet2 = 88
sWlds, sWlstep, sWoff, sWoff0, sWstep = 94, 95, 96, 97, 98
sWex = 82

vL = 0
vo = [1, 2, 3, 4]
vPh, vAd, vPa = 5, 6, 7
vSC = 8
vACC = 16
vLsum = 8
vW = 12


def sp(r, n=2):
    return "s[%d:%d]" % (r, r + n - 1)


def vr(r, n):
    return "v[%d:%d]" % (r, r + n - 1) if n > 1 else "v%d" % r


def res_reg(m, t, hh=None):
    base = m * 64 + 4 * t
    if m < 3:
        b = 64 + base; p = "v"
    else:
        b = base - 192; p = "a"
    if hh is None:
        return "%s[%d:%d]" % (p, b, b + 3)
    return "%s[%d:%d]" % (p, b + 2 * hh, b + 2 * hh + 1)


class Gen:
    def __init__(self, opt):
        self.o = opt
        self.a = Asm()
        self.e = self.a.e

    def lab(self, n):
        self.a.label(n)

    def nl(self, b="L"):
        return self.a.newlabel(b)

    def nop(self, n):
        if n > 0:
            self.e("s_nop %d" % (n - 1))

    def bf16r(self, dst, src, tmp):
        self.e("v_cvt_pk_bf16_f32 v%d, v%d, v%d" % (tmp, src, src))
        self.e("v_and_b32 v%d, 0xffff0000, v%d" % (dst, tmp))

    def allreduce16(self, x, op):
        e = self.e
        for n in (8, 4, 2, 1):
            self.nop(2)
            e("%s_dpp v%d, v%d, v%d row_ror:%d row_mask:0xf bank_mask:0xf" % (op, x, x, x, n))

    def xrows(self, x, tmp, op):
        e = self.e
        e("v_mov_b32 v%d, v%d" % (tmp, x)); self.nop(2)
        e("v_permlane16_swap_b32 v%d, v%d" % (x, tmp)); self.nop(1)
        e("%s v%d, v%d, v%d" % (op, x, x, tmp))
        e("v_mov_b32 v%d, v%d" % (tmp, x)); self.nop(2)
        e("v_permlane32_swap_b32 v%d, v%d" % (x, tmp)); self.nop(1)
        e("%s v%d, v%d, v%d" % (op, x, x, tmp))

    def allreduce64(self, x, tmp, op):
        self.allreduce16(x, op)
        self.xrows(x, tmp, op)

    def poll(self, loads, regs, tmp, name="P"):
        e = self.e
        L = self.nl(name); D = self.nl(name + "d")
        e("s_mov_b32 s%d, 0" % sSpin)
        self.lab(L)
        for ld in loads:
            e(ld)
        e("s_waitcnt vmcnt(0)")
        rr = list(regs)
        if len(rr) == 1:
            t = rr[0]
        else:
            first = True
            while rr:
                if first:
                    if len(rr) >= 3:
                        e("v_max3_u32 v%d, v%d, v%d, v%d" % (tmp, rr[0], rr[1], rr[2])); rr = rr[3:]
                    else:
                        e("v_max_u32 v%d, v%d, v%d" % (tmp, rr[0], rr[1])); rr = rr[2:]
                    first = False
                elif len(rr) >= 2:
                    e("v_max3_u32 v%d, v%d, v%d, v%d" % (tmp, tmp, rr[0], rr[1])); rr = rr[2:]
                else:
                    e("v_max_u32 v%d, v%d, v%d" % (tmp, tmp, rr[0])); rr = rr[1:]
            t = tmp
        e("v_cmp_eq_u32 vcc, -1, v%d" % t)
        e("s_cbranch_vccz %s" % D)
        e("s_add_u32 s%d, s%d, 1" % (sSpin, sSpin))
        e("s_cmp_lt_u32 s%d, %d" % (sSpin, SPIN_LIMIT))
        e("s_cbranch_scc1 %s" % L)
        self.lab(D)

    def addr(self, dst, base, off_imm=0, off_sregs=()):
        e = self.e
        if off_imm:
            e("s_add_u32 s%d, s%d, 0x%x" % (dst, base, off_imm))
        else:
            e("s_add_u32 s%d, s%d, 0" % (dst, base))
        e("s_addc_u32 s%d, s%d, 0" % (dst + 1, base + 1))
        for r in off_sregs:
            e("s_add_u32 s%d, s%d, s%d" % (dst, dst, r))
            e("s_addc_u32 s%d, s%d, 0" % (dst + 1, dst + 1))

    def stamp(self, idx):
        if not self.o.get("stamps"):
            return
        e = self.e
        sk = self.nl("St")
        e("s_cmp_eq_u32 s%d, 0" % sWave); e("s_cbranch_scc0 %s" % sk)
        e("s_memrealtime s[90:91]")
        e("s_waitcnt lgkmcnt(0)")
        e("s_lshl_b32 s92, s%d, 5" % sPass); e("s_add_u32 s92, s92, %d" % (L_ST + idx * 4))
        e("v_mov_b32 v62, s92"); e("v_mov_b32 v63, s90")
        e("ds_write_b32 v62, v63")
        e("s_waitcnt lgkmcnt(0)")
        self.lab(sk)

    def dump_stamps(self):
        if not self.o.get("stamps"):
            return
        e = self.e
        sk = self.nl("Sd")
        e("s_cmp_eq_u32 s%d, 0" % sWave); e("s_cbranch_scc0 %s" % sk)
        e("v_and_b32 v8, 15, v%d" % vL); e("v_lshlrev_b32 v8, 2, v8")
        e("ds_read_b32 v9, v8 offset:%d" % L_ST)
        e("s_lshl_b32 s%d, s2, 6" % sT0)
        self.addr(sA, pWs, DBG, [sT0])
        e("s_waitcnt lgkmcnt(0)")
        e("global_store_dword v8, v9, %s" % sp(sA))
        self.lab(sk)

    def issue(self):
        e = self.e
        pol = self.o.get("pol", " nt")
        e("s_mov_b32 m0, s%d" % sSlot)
        e("s_add_u32 s%d, s%d, 4096" % (sSlot, sSlot))
        for s in range(4):
            e("buffer_load_dwordx4 v%d, %s, s%d offen offset:%d%s lds" % (vo[s], sp(sCUR, 4), sOff, s * 1024, pol))
        e("s_cmp_eq_u32 s%d, s%d" % (sSlot, sRe))
        e("s_cselect_b32 s%d, s%d, s%d" % (sSlot, sRs, sSlot))
        e("s_add_u32 s%d, s%d, %d" % (sOff, sOff, STRIDE))
        e("s_sub_u32 s%d, s%d, 1" % (sLeft, sLeft))
        e("s_cmp_lg_u32 s%d, 0" % sLeft)
        sk = self.nl("Isk")
        e("s_cbranch_scc1 %s" % sk)
        e("s_call_b64 %s, L_switch" % sp(sRet))
        self.lab(sk)

    def kpat(self):
        e = self.e
        e("v_and_b32 v%d, 7, v%d" % (vo[0], vL))
        e("v_lshlrev_b32 v%d, 9, v%d" % (vo[0], vo[0]))
        e("v_lshrrev_b32 v%d, 3, v%d" % (vo[1], vL))
        e("v_lshl_add_u32 v%d, v%d, 4, v%d" % (vo[0], vo[1], vo[0]))
        self.pat_fin()

    def vpat(self):
        e = self.e
        e("v_bfe_u32 v%d, v%d, 1, 3" % (vo[0], vL))
        e("v_lshlrev_b32 v%d, 9, v%d" % (vo[0], vo[0]))
        e("v_lshrrev_b32 v%d, 4, v%d" % (vo[1], vL))
        e("v_lshl_add_u32 v%d, v%d, 5, v%d" % (vo[0], vo[1], vo[0]))
        e("v_and_b32 v%d, 1, v%d" % (vo[1], vL))
        e("v_lshl_add_u32 v%d, v%d, 4, v%d" % (vo[0], vo[1], vo[0]))
        self.pat_fin()

    def pat_fin(self):
        e = self.e
        e("v_add_u32 v%d, 3072, v%d" % (vo[0], vo[0]))
        for s in range(1, 4):
            e("v_subrev_u32 v%d, %d, v%d" % (vo[s], 896 * s, vo[0]))

    def emit_switch(self):
        e = self.e
        self.lab("L_switch")
        e("s_add_u32 s%d, s%d, 1" % (sSeg, sSeg))
        e("s_cmp_eq_u32 s%d, 5" % sSeg)
        e("s_cbranch_scc1 L_sw_end")
        e("s_bitcmp1_b32 s%d, 0" % sSeg)
        e("s_cbranch_scc0 L_sw_v")
        e("s_mov_b32 s%d, s%d" % (sCUR, sKB)); e("s_mov_b32 s%d, s%d" % (sCUR + 1, sKB + 1))
        e("s_mov_b32 s%d, 0" % sOff); e("s_mov_b32 s%d, 64" % sLeft)
        self.kpat()
        e("s_setpc_b64 %s" % sp(sRet))
        self.lab("L_sw_v")
        e("s_mov_b32 s%d, s%d" % (sCUR, sVB)); e("s_mov_b32 s%d, s%d" % (sCUR + 1, sVB + 1))
        e("s_mov_b32 s%d, %d" % (sOff, 2 * NRES_T * STRIDE)); e("s_mov_b32 s%d, %d" % (sLeft, 2 * NSTR_T))
        self.vpat()
        e("s_setpc_b64 %s" % sp(sRet))
        self.lab("L_sw_end")
        e("s_mov_b32 s%d, 0" % (sCUR + 2))
        e("s_mov_b32 s%d, 0" % sOff); e("s_mov_b32 s%d, 0x7fffffff" % sLeft)
        e("s_setpc_b64 %s" % sp(sRet))

    def adv_cs(self):
        e = self.e
        e("s_add_u32 s%d, s%d, 8192" % (sCs, sCs))
        e("s_cmp_eq_u32 s%d, s%d" % (sCs, sRe))
        e("s_cselect_b32 s%d, s%d, s%d" % (sCs, sRs, sCs))

    def step_issue(self):
        self.e("s_waitcnt vmcnt(4)")
        self.issue()
        self.e("s_waitcnt vmcnt(4)")
        self.issue()

    NX = 16

    def xop(self, i):
        e = self.e
        if i == 7:
            e("s_cmp_eq_u32 s%d, 2" % sRole)
            e("s_cselect_b32 s%d, s%d, s%d" % (sWS, pW3, sWS))
            e("s_cselect_b32 s%d, s%d, s%d" % (sT0, pW3 + 1, sWS + 1))
            e("s_and_b32 s%d, s%d, 0xffff" % (sWS + 1, sT0))
            e("s_add_u32 s%d, s%d, %d" % (sT0, sWlds, B_IMG3 - 7 * 1024))
            e("s_cmp_eq_u32 s%d, 2" % sRole)
            e("s_cselect_b32 s%d, s%d, s%d" % (sWoff, sWoff0, sWoff))
            e("s_cselect_b32 s%d, s%d, s%d" % (sWlds, sT0, sWlds))
        if i == 14:
            e("s_cmp_eq_u32 s%d, 1" % sRole)
            e("s_cselect_b32 s%d, s%d, 0" % (sWS + 2, sWS + 2))
            e("s_cselect_b32 s%d, s%d, s%d" % (sWlds, sWlds, sVec))
            e("s_cselect_b32 s%d, s%d, 0" % (sWlstep, sWlstep))
        e("s_mov_b32 m0, s%d" % sWlds); e("s_add_u32 s%d, s%d, s%d" % (sWlds, sWlds, sWlstep))
        e("s_mov_b64 exec, %s" % sp(sWex))
        e("buffer_load_dwordx4 v%d, %s, s%d offen lds" % (vW, sp(sWS, 4), sWoff))
        e("s_mov_b64 exec, -1")
        e("s_add_u32 s%d, s%d, s%d" % (sWoff, sWoff, sWstep))

    def group(self, u):
        if u >= 2:
            self.e("s_waitcnt vmcnt(%d)" % (5 if (u - 1) < self.NX else 4))
        self.issue()
        if u < self.NX:
            self.xop(u)

    def prologue(self):
        e = self.e
        e("s_cmp_ge_u32 s2, 256")
        e("s_cbranch_scc1 L_end")
        e("s_load_dwordx16 s[8:23], s[0:1], 0")
        e("s_load_dwordx8 s[24:31], s[0:1], 64")
        e("v_lshrrev_b32 v1, 6, v0")
        e("v_and_b32 v%d, 63, v0" % vL)
        e("s_nop 0")
        e("v_readfirstlane_b32 s%d, v1" % sWave)
        x, r = sT0, sT1
        e("s_and_b32 s%d, s2, 7" % x)
        e("s_lshr_b32 s%d, s2, 3" % r)
        e("s_mov_b32 s%d, 0" % sRole); e("s_mov_b32 s%d, 0" % sIdx)
        e("s_cmp_lt_u32 s%d, 8" % r); e("s_cbranch_scc0 L_r1")
        e("s_mov_b32 s%d, 1" % sRole); e("s_lshl_b32 s%d, s%d, 3" % (sIdx, r)); e("s_add_u32 s%d, s%d, s%d" % (sIdx, sIdx, x))
        e("s_branch L_rdone")
        self.lab("L_r1")
        e("s_cmp_lt_u32 s%d, 16" % r); e("s_cbranch_scc0 L_r2")
        e("s_sub_u32 s%d, s%d, 8" % (sT2, r))
        e("s_lshr_b32 s%d, s%d, 1" % (sT3, sT2)); e("s_lshl_b32 s%d, s%d, 3" % (sT3, sT3)); e("s_add_u32 s%d, s%d, s%d" % (sT3, sT3, x))
        e("s_cmp_lt_u32 s%d, 28" % sT3); e("s_cbranch_scc0 L_rdone")
        e("s_mov_b32 s%d, 2" % sRole); e("s_and_b32 s%d, s%d, 1" % (sT2, sT2)); e("s_lshl_b32 s%d, s%d, 1" % (sIdx, sT3))
        e("s_add_u32 s%d, s%d, s%d" % (sIdx, sIdx, sT2))
        e("s_branch L_rdone")
        self.lab("L_r2")
        e("s_cmp_lt_u32 s%d, 20" % r); e("s_cbranch_scc0 L_r3")
        e("s_cmp_lt_u32 s%d, 7" % x); e("s_cbranch_scc0 L_rdone")
        e("s_mov_b32 s%d, 3" % sRole); e("s_lshl_b32 s%d, s%d, 2" % (sIdx, x)); e("s_add_u32 s%d, s%d, s%d" % (sIdx, sIdx, r))
        e("s_sub_u32 s%d, s%d, 16" % (sIdx, sIdx))
        e("s_branch L_rdone")
        self.lab("L_r3")
        e("s_cmp_lt_u32 s%d, 28" % r); e("s_cbranch_scc0 L_rdone")
        e("s_mov_b32 s%d, 4" % sRole); e("s_sub_u32 s%d, s%d, 20" % (sIdx, r)); e("s_lshl_b32 s%d, s%d, 3" % (sIdx, sIdx))
        e("s_add_u32 s%d, s%d, s%d" % (sIdx, sIdx, x))
        self.lab("L_rdone")
        e("s_lshr_b32 s%d, s2, 4" % sH); e("s_and_b32 s%d, s2, 15" % sC)
        e("s_mov_b32 s%d, %d" % (sT0, RING_ROLE)); e("s_mov_b32 s%d, 6" % sNS)
        e("s_cmp_eq_u32 s%d, 0" % sRole)
        e("s_cselect_b32 s%d, %d, s%d" % (sT0, RING_NONE, sT0)); e("s_cselect_b32 s%d, 8, s%d" % (sNS, sNS))
        e("s_lshl_b32 s%d, s%d, 12" % (sT1, sNS))
        e("s_mul_i32 s%d, s%d, s%d" % (sT2, sT1, sWave))
        e("s_add_u32 s%d, s%d, s%d" % (sRs, sT0, sT2))
        e("s_add_u32 s%d, s%d, s%d" % (sRe, sRs, sT1))
        e("s_mov_b32 s%d, s%d" % (sSlot, sRs)); e("s_mov_b32 s%d, s%d" % (sCs, sRs))
        e("s_lshl_b32 s%d, s%d, 10" % (sT2, sWave)); e("s_add_u32 s%d, s%d, %d" % (sVec, sT2, L_P))
        e("s_mov_b32 s%d, 0x00010001" % sM[0]); e("s_mov_b32 s%d, 0x00010001" % (sM[0] + 1))
        for u in range(1, 4):
            e("s_lshl_b64 %s, %s, %d" % (sp(sM[u]), sp(sM[0]), u))
        e("s_mov_b32 s%d, 0" % sPass)
        e("s_waitcnt lgkmcnt(0)")
        e("s_lshl_b32 s%d, s%d, 4" % (sT0, sH)); e("s_add_u32 s%d, s%d, s%d" % (sT0, sT0, sC))
        e("s_lshl_b32 s%d, s%d, 20" % (sT0, sT0))
        e("s_lshl_b32 s%d, s%d, 12" % (sT1, sWave)); e("s_add_u32 s%d, s%d, s%d" % (sT0, sT0, sT1))
        for (dst, src) in ((sKB, pK), (sVB, pV)):
            e("s_add_u32 s%d, s%d, s%d" % (dst, src, sT0)); e("s_addc_u32 s%d, s%d, 0" % (dst + 1, src + 1))
            e("s_sub_u32 s%d, s%d, 3072" % (dst, dst)); e("s_subb_u32 s%d, s%d, 0" % (dst + 1, dst + 1))
            e("s_and_b32 s%d, s%d, 0xffff" % (dst + 1, dst + 1))
        e("s_mov_b32 s%d, s%d" % (sCUR, sVB)); e("s_mov_b32 s%d, s%d" % (sCUR + 1, sVB + 1))
        e("s_mov_b32 s%d, %d" % (sCUR + 2, 3072 + 63 * STRIDE + 4096)); e("s_mov_b32 s%d, 0x20000" % (sCUR + 3))
        e("s_mov_b32 s%d, 0" % sOff); e("s_mov_b32 s%d, %d" % (sLeft, 2 * NRES_T)); e("s_mov_b32 s%d, 0" % sSeg)
        self.vpat()

    def weights_setup(self):
        e = self.e
        e("s_mov_b32 s%d, 0x20000" % (sWS + 3))
        e("s_mov_b64 %s, -1" % sp(sWex))
        e("s_mov_b32 s%d, s%d" % (sWS, pWq)); e("s_and_b32 s%d, s%d, 0xffff" % (sWS + 1, pWq + 1)); e("s_mov_b32 s%d, 0" % (sWS + 2))
        e("s_mov_b32 s%d, s%d" % (sWlds, sVec))
        e("s_mov_b32 s%d, 0" % sWlstep); e("s_mov_b32 s%d, 0" % sWoff); e("s_mov_b32 s%d, 0" % sWoff0); e("s_mov_b32 s%d, 0" % sWstep)
        e("v_mov_b32 v%d, 0" % vW)
        e("s_cmp_eq_u32 s%d, 0" % sRole); e("s_cbranch_scc1 L_wdone")
        e("s_mov_b32 s%d, 1024" % sWlstep)
        e("s_cmp_eq_u32 s%d, 1" % sRole); e("s_cbranch_scc1 L_wO")
        e("s_cmp_eq_u32 s%d, 2" % sRole); e("s_cbranch_scc1 L_wB")
        e("s_cmp_eq_u32 s%d, 3" % sRole); e("s_cbranch_scc1 L_wC")
        e("s_mov_b32 s%d, %d" % (sWS + 2, 448 * 8192))
        e("v_lshrrev_b32 v9, 3, v%d" % vL); e("v_lshlrev_b32 v%d, 13, v9" % vW)
        e("v_bfe_u32 v9, v%d, 4, 2" % vL); e("v_lshlrev_b32 v9, 1, v9")
        e("v_and_b32 v10, 7, v%d" % vL); e("v_xor_b32 v9, v9, v10"); e("v_lshl_add_u32 v%d, v9, 4, v%d" % (vW, vW))
        e("s_mul_i32 s%d, s%d, %d" % (sT1, sWave, 14 * 8 * 8192)); e("s_lshl_b32 s%d, s%d, 7" % (sT2, sIdx)); e("s_add_u32 s%d, s%d, s%d" % (sWoff, sT1, sT2))
        e("s_mov_b32 s%d, %d" % (sWstep, 8 * 8192))
        e("s_mul_i32 s%d, s%d, %d" % (sWlds, sWave, 14 * 1024)); e("s_add_u32 s%d, s%d, %d" % (sWlds, sWlds, L_W))
        e("s_branch L_wdone")
        self.lab("L_wC")
        e("s_mov_b32 s%d, s%d" % (sWS, pW2)); e("s_and_b32 s%d, s%d, 0xffff" % (sWS + 1, pW2 + 1)); e("s_mov_b32 s%d, %d" % (sWS + 2, 1792 * 896))
        e("v_lshrrev_b32 v9, 1, v%d" % vL); e("v_mul_u32_u24 v%d, 896, v9" % vW)
        e("v_and_b32 v9, 1, v%d" % vL); e("v_lshl_add_u32 v%d, v9, 4, v%d" % (vW, vW))
        e("s_mul_i32 s%d, s%d, %d" % (sT1, sWave, 448 * 896)); e("s_lshl_b32 s%d, s%d, 5" % (sT2, sIdx)); e("s_add_u32 s%d, s%d, s%d" % (sWoff, sT1, sT2))
        e("s_mov_b32 s%d, %d" % (sWstep, 32 * 896))
        e("s_mul_i32 s%d, s%d, %d" % (sWlds, sWave, C_WAVE)); e("s_add_u32 s%d, s%d, %d" % (sWlds, sWlds, L_W))
        e("s_branch L_wdone")
        self.lab("L_wO")
        e("s_mov_b32 s%d, s%d" % (sWS, pWo)); e("s_and_b32 s%d, s%d, 0xffff" % (sWS + 1, pWo + 1)); e("s_mov_b32 s%d, %d" % (sWS + 2, 4096 * 896))
        e("v_lshlrev_b32 v%d, 4, v%d" % (vW, vL))
        e("s_lshl_b32 s%d, s%d, 6" % (sT1, sIdx)); e("s_lshl_b32 s%d, s%d, 4" % (sT2, sWave)); e("s_add_u32 s%d, s%d, s%d" % (sT1, sT1, sT2))
        e("s_mul_i32 s%d, s%d, 896" % (sWoff, sT1))
        e("s_mov_b32 s%d, 896" % sWstep); e("s_mov_b32 s%d, %d" % (sWlstep, O_ROW))
        e("s_mul_i32 s%d, s%d, %d" % (sWlds, sWave, 16 * O_ROW)); e("s_add_u32 s%d, s%d, %d" % (sWlds, sWlds, L_W))
        e("s_mov_b32 s%d, -1" % sWex); e("s_mov_b32 s%d, 0x00ffffff" % (sWex + 1))
        e("s_branch L_wdone")
        self.lab("L_wB")
        e("s_mov_b32 s%d, s%d" % (sWS, pW1)); e("s_and_b32 s%d, s%d, 0xffff" % (sWS + 1, pW1 + 1)); e("s_mov_b32 s%d, %d" % (sWS + 2, 448 * 3584))
        e("v_lshrrev_b32 v9, 2, v%d" % vL); e("v_mul_u32_u24 v%d, 3584, v9" % vW)
        e("v_and_b32 v9, 3, v%d" % vL); e("v_lshl_add_u32 v%d, v9, 4, v%d" % (vW, vW))
        e("s_mul_i32 s%d, s%d, %d" % (sT1, sWave, 7 * 16 * 3584)); e("s_lshl_b32 s%d, s%d, 6" % (sT2, sIdx)); e("s_add_u32 s%d, s%d, s%d" % (sWoff, sT1, sT2))
        e("s_mov_b32 s%d, s%d" % (sWoff0, sWoff))
        e("s_mov_b32 s%d, %d" % (sWstep, 16 * 3584))
        e("s_mul_i32 s%d, s%d, %d" % (sWlds, sWave, 7 * 1024)); e("s_add_u32 s%d, s%d, %d" % (sWlds, sWlds, L_W))
        self.lab("L_wdone")

    def clear_mailboxes(self):
        e = self.e
        e("v_mov_b32 v10, -1")
        e("s_lshl_b32 s%d, s%d, 2" % (sT0, sH)); e("s_add_u32 s%d, s%d, s%d" % (sT0, sT0, sWave)); e("s_lshl_b32 s%d, s%d, 4" % (sT0, sT0))
        e("s_add_u32 s%d, s%d, s%d" % (sT0, sT0, sC)); e("s_mul_i32 s%d, s%d, %d" % (sT0, sT0, M1_SLOT))
        self.addr(sA, pWs, M1, [sT0])
        e("v_lshlrev_b32 v8, 2, v%d" % vL)
        e("v_and_b32 v9, 1, v%d" % vL); e("v_lshlrev_b32 v9, 2, v9"); e("v_add_u32 v9, 256, v9")
        for rho in range(2):
            e("global_store_dword v8, v10, %s sc1" % sp(sA))
            e("global_store_dword v9, v10, %s sc1" % sp(sA))
            if rho == 0:
                e("s_add_u32 s%d, s%d, 0x%x" % (sA, sA, M1_R)); e("s_addc_u32 s%d, s%d, 0" % (sA + 1, sA + 1))
        e("s_cmp_eq_u32 s%d, 0" % sWave); e("s_cbranch_scc0 L_cdone")
        e("s_cmp_eq_u32 s%d, 0" % sRole); e("s_cbranch_scc1 L_cdone")
        e("v_and_b32 v8, 31, v%d" % vL); e("v_lshlrev_b32 v8, 2, v8")
        e("s_lshl_b32 s%d, s%d, 7" % (sT0, sIdx))
        e("v_add_u32 v8, s%d, v8" % sT0)
        e("s_cmp_eq_u32 s%d, 1" % sRole); e("s_cbranch_scc1 L_cA")
        e("s_cmp_eq_u32 s%d, 2" % sRole); e("s_cbranch_scc1 L_cB")
        e("s_cmp_eq_u32 s%d, 3" % sRole); e("s_cbranch_scc1 L_cC")
        for off in (M3, M3 + MR, M6, M6 + MR):
            self.addr(sA, pWs, off); e("global_store_dword v8, v10, %s sc1" % sp(sA))
        e("s_branch L_cdone")
        self.lab("L_cA")
        e("s_mul_i32 s%d, s%d, %d" % (sT0, sIdx, M2_SLOT))
        e("v_lshlrev_b32 v8, 2, v%d" % vL)
        for rho in range(2):
            self.addr(sA, pWs, M2 + rho * M2_R, [sT0])
            for k in range(7):
                e("global_store_dword v8, v10, %s offset:%d sc1" % (sp(sA), k * 256))
        e("s_branch L_cdone")
        self.lab("L_cB")
        for off in (M4, M4 + MR):
            self.addr(sA, pWs, off); e("global_store_dword v8, v10, %s sc1" % sp(sA))
        e("s_branch L_cdone")
        self.lab("L_cC")
        self.addr(sA, pWs, M5); e("global_store_dword v8, v10, %s sc1" % sp(sA))
        self.lab("L_cdone")
        e("v_mov_b32 v11, 0")
        e("v_lshlrev_b32 v8, 2, v%d" % vL); e("v_add_u32 v8, %d, v8" % L_Z)
        e("ds_write_b32 v8, v11"); e("ds_write_b32 v8, v11 offset:256")

    def count_cleared(self):
        e = self.e
        e("s_waitcnt lgkmcnt(0)")
        e("s_barrier")
        e("s_cmp_eq_u32 s%d, 0" % sWave); e("s_cbranch_scc0 L_cnt_done")
        e("v_mov_b32 v10, 0"); e("v_mov_b32 v11, 1")
        e("s_mov_b64 exec, 1")
        e("global_atomic_add v10, v11, %s" % sp(pDbg))
        e("s_mov_b64 exec, -1")
        self.lab("L_cnt_done")

    def layernorm_to_vec(self):
        e = self.e
        X = 40
        for d in range(4):
            e("v_lshlrev_b32 v%d, 16, v%d" % (X + 2 * d, 32 + d))
            e("v_and_b32 v%d, 0xffff0000, v%d" % (X + 2 * d + 1, 32 + d))
        e("v_cmp_gt_u32 vcc, 56, v%d" % vL)
        e("v_add_f32 v48, v40, v41"); e("v_add_f32 v49, v42, v43"); e("v_add_f32 v50, v44, v45"); e("v_add_f32 v51, v46, v47")
        e("v_add_f32 v48, v48, v49"); e("v_add_f32 v50, v50, v51"); e("v_add_f32 v48, v48, v50")
        e("v_cndmask_b32 v48, 0, v48, vcc")
        self.allreduce64(48, 49, "v_add_f32")
        e("v_mul_f32 v48, 0x3b124925, v48")
        for i in range(8):
            e("v_sub_f32 v%d, v%d, v48" % (52 + i, X + i))
        e("v_mul_f32 v49, v52, v52")
        for i in range(1, 8):
            e("v_fmac_f32 v49, v%d, v%d" % (52 + i, 52 + i))
        e("v_cndmask_b32 v49, 0, v49, vcc")
        self.allreduce64(49, 50, "v_add_f32")
        e("v_mul_f32 v49, 0x3b124925, v49")
        self.bf16r(48, 48, 50)
        self.bf16r(49, 49, 50)
        e("v_add_f32 v49, 0x3727c5ac, v49")
        self.bf16r(49, 49, 50)
        e("v_sqrt_f32 v49, v49"); self.nop(1)
        self.bf16r(49, 49, 50)
        e("v_rcp_f32 v49, v49")
        for i in range(8):
            e("v_sub_f32 v%d, v%d, v48" % (52 + i, X + i))
        for i in range(0, 8, 2):
            e("v_cvt_pk_bf16_f32 v%d, v%d, v%d" % (36 + i // 2, 52 + i, 53 + i))
        for d in range(4):
            e("v_lshlrev_b32 v%d, 16, v%d" % (52 + 2 * d, 36 + d))
            e("v_and_b32 v%d, 0xffff0000, v%d" % (53 + 2 * d, 36 + d))
        for i in range(8):
            e("v_mul_f32 v%d, v%d, v49" % (52 + i, 52 + i))
        for i in range(0, 8, 2):
            e("v_cvt_pk_bf16_f32 v%d, v%d, v%d" % (36 + i // 2, 52 + i, 53 + i))
        e("v_lshlrev_b32 v48, 4, v%d" % vL); e("v_add_u32 v48, s%d, v48" % sVec)
        e("ds_write_b128 v48, v[36:39]")
        e("s_waitcnt lgkmcnt(0)")

    def gemv_chain(self, n, a_off, b_step, b_second, acc=8):
        e = self.e
        m = 0
        first = True
        while m < n:
            nb = min(4, n - m)
            for k in range(nb):
                o0, o1 = a_off(m + k)
                e("ds_read2_b64 v[%d:%d], v6 offset0:%d offset1:%d" % (32 + 4 * k, 35 + 4 * k, o0, o1))
                e("ds_read_b64_tr_b16 v[%d:%d], v7 offset:%d" % (48 + 4 * k, 49 + 4 * k, (m + k) * b_step))
                e("ds_read_b64_tr_b16 v[%d:%d], v7 offset:%d" % (50 + 4 * k, 51 + 4 * k, (m + k) * b_step + b_second))
            e("s_waitcnt lgkmcnt(0)")
            for k in range(nb):
                c = "0" if first else vr(acc, 4)
                e("v_mfma_f32_16x16x32_bf16 %s, %s, %s, %s" % (vr(acc, 4), vr(32 + 4 * k, 4), vr(48 + 4 * k, 4), c))
                first = False
            m += nb
        self.nop(8)

    def lane_rc(self):
        e = self.e
        e("v_lshrrev_b32 v10, 4, v%d" % vL); e("v_bfe_u32 v11, v%d, 2, 2" % vL)
        e("v_and_b32 v12, 3, v%d" % vL); e("v_and_b32 v13, 15, v%d" % vL)

    def stage_D(self, rho_reg_is_next):
        e = self.e
        self.layernorm_to_vec()
        self.lane_rc()
        e("v_lshlrev_b32 v6, 3, v10"); e("v_add_u32 v6, s%d, v6" % sVec)
        e("v_lshl_add_u32 v7, v10, 2, v11")
        e("v_bfe_u32 v14, v7, 1, 2"); e("v_xor_b32 v14, s%d, v14" % sWave)
        e("v_lshlrev_b32 v7, 7, v7"); e("v_lshl_add_u32 v7, v14, 5, v7"); e("v_lshl_add_u32 v7, v12, 3, v7"); e("v_add_u32 v7, %d, v7" % L_W)
        self.gemv_chain(14, lambda m: (8 * m, 8 * m + 4), 4096, 2048)
        e("v_mov_b32_dpp v9, v8 quad_perm:[1,0,3,2] row_mask:0xf bank_mask:0xf")
        e("v_cvt_pk_bf16_f32 v9, v8, v9")
        e("v_mov_b32 v14, -2"); e("v_min_u32 v9, v9, v14")
        e("s_lshl_b32 s%d, s%d, 7" % (sT0, sIdx)); e("s_lshl_b32 s%d, s%d, 5" % (sT1, sWave)); e("s_add_u32 s%d, s%d, s%d" % (sT0, sT0, sT1))
        e("v_lshlrev_b32 v14, 1, v%d" % vL); e("v_add_u32 v14, s%d, v14" % sT0)
        e("s_mov_b64 exec, 0x5555")
        e("global_store_dword v14, v9, %s sc1" % sp(sA))
        e("s_mov_b64 exec, -1")

    def p1a(self):
        e = self.e
        e("v_lshrrev_b32 v%d, 5, v%d" % (vPh, vL)); e("v_lshlrev_b32 v%d, 12, v%d" % (vPh, vPh))
        e("v_and_b32 v%d, 31, v%d" % (vAd, vL)); e("v_lshl_add_u32 v%d, v%d, 3, v%d" % (vPh, vAd, vPh))
        for T in range(NRES_T):
            self.group(2 * T + 2)
            if T == 1:
                self.e("s_waitcnt vmcnt(5)")
                self.count_cleared()
                self.issue(); self.xop(2 * T + 3)
            elif T == 9:
                assert 2 * T + 2 > 15
                self.e("s_waitcnt vmcnt(4)")
                e("s_cmp_eq_u32 s%d, 4" % sRole); e("s_cbranch_scc0 L_noq1")
                e("s_barrier")
                self.addr(sA, pWs, M6)
                e("s_call_b64 %s, L_stageD" % sp(sRet2))
                self.lab("L_noq1")
                self.issue()
                e("v_lshrrev_b32 v%d, 5, v%d" % (vPh, vL)); e("v_lshlrev_b32 v%d, 12, v%d" % (vPh, vPh))
                e("v_and_b32 v%d, 31, v%d" % (vAd, vL)); e("v_lshl_add_u32 v%d, v%d, 3, v%d" % (vPh, vAd, vPh))
            else:
                self.group(2 * T + 3)
            e("v_add_u32 v%d, s%d, v%d" % (vAd, sCs, vPh))
            for t in range(16):
                e("ds_read_b64_tr_b16 %s, v%d offset:%d" % (res_reg(T >> 1, t, T & 1), vAd, t * 256))
            self.adv_cs()
            e("s_waitcnt lgkmcnt(0)")

    def gather_q(self):
        e = self.e
        e("s_cmp_eq_u32 s%d, 0" % sPass); e("s_cbranch_scc0 L_gq")
        L = self.nl("Lc"); Dn = self.nl("Lcd")
        e("v_mov_b32 v8, 0"); e("s_mov_b32 s%d, 0" % sSpin)
        self.lab(L)
        e("global_load_dword v9, v8, %s sc1" % sp(pDbg))
        e("s_waitcnt vmcnt(0)")
        e("v_cmp_gt_u32 vcc, 256, v9")
        e("s_cbranch_vccz %s" % Dn)
        e("s_add_u32 s%d, s%d, 1" % (sSpin, sSpin)); e("s_cmp_lt_u32 s%d, %d" % (sSpin, SPIN_LIMIT)); e("s_cbranch_scc1 %s" % L)
        self.lab(Dn)
        self.lab("L_gq")
        e("s_lshl_b32 s%d, s%d, 13" % (sT0, sPass)); e("s_lshl_b32 s%d, s%d, 9" % (sT1, sH))
        self.addr(sA, pWs, M6, [sT0, sT1])
        e("v_and_b32 v8, 31, v%d" % vL); e("v_lshlrev_b32 v8, 4, v8")
        self.poll(["global_load_dwordx4 v[32:35], v8, %s sc1" % sp(sA)], [32, 33, 34, 35], 36, "Pq")
        e("s_lshl_b32 s%d, s%d, 9" % (sT0, sWave))
        e("v_add_u32 v8, s%d, v8" % sT0)
        e("ds_write_b128 v8, v[32:35] offset:%d" % L_Q)
        e("s_waitcnt lgkmcnt(0)")

    def kphase(self):
        e = self.e
        vQ, vZ = 16, 17
        e("v_bfe_u32 v%d, v%d, 3, 1" % (vPh, vL)); e("v_lshlrev_b32 v%d, 12, v%d" % (vPh, vPh))
        e("v_lshrrev_b32 v%d, 4, v%d" % (vAd, vL)); e("v_lshl_add_u32 v%d, v%d, 7, v%d" % (vPh, vAd, vPh))
        e("v_lshlrev_b32 v%d, 4, v%d" % (vQ, vAd))
        e("v_and_b32 v%d, 7, v%d" % (vAd, vL)); e("v_lshl_add_u32 v%d, v%d, 4, v%d" % (vPh, vAd, vPh))
        e("s_lshl_b32 s%d, s%d, 9" % (sT0, sWave)); e("s_add_u32 s%d, s%d, %d" % (sT0, sT0, L_Q))
        e("v_add_u32 v%d, s%d, v%d" % (vQ, sT0, vQ))
        e("v_mov_b32 v%d, %d" % (vZ, L_Z))
        for i in range(8):
            e("v_mov_b32 v%d, 0" % (vSC + i))
        first_skip = self.nl("Kskip")
        e("s_mov_b32 s%d, 0" % sT15)
        e("s_cmp_eq_u32 s%d, 0" % sPass)
        e("s_cbranch_scc1 L_k0")
        e("s_waitcnt vmcnt(0)")
        e("s_branch %s" % first_skip)
        for a in range(2):
            self.lab("L_k%d" % a)
            self.step_issue()
            if a == 0:
                self.lab(first_skip)
            e("s_lshl_b64 %s, %s, s%d" % (sp(sMd), sp(sM[0]), sT15))
            e("v_add_u32 v%d, s%d, v%d" % (vAd, sCs, vPh))
            e("v_cndmask_b32 v%d, v%d, v%d, %s" % (vPa, vZ, vQ, sp(sMd)))
            for b in range(2):
                for k in range(4):
                    c8 = 4 * b + k
                    e("ds_read_b128 v[%d:%d], v%d offset:%d" % (32 + 4 * k, 35 + 4 * k, vPa, c8 * 64))
                    e("ds_read_b128 v[%d:%d], v%d offset:%d" % (48 + 4 * k, 51 + 4 * k, vAd, c8 * 512))
                e("s_waitcnt lgkmcnt(0)")
                for k in range(4):
                    e("v_mfma_f32_16x16x32_bf16 %s, %s, %s, %s" % (vr(vSC + 4 * a, 4), vr(32 + 4 * k, 4), vr(48 + 4 * k, 4), vr(vSC + 4 * a, 4)))
            self.adv_cs()
            e("s_add_u32 s%d, s%d, 1" % (sT15, sT15))
            e("s_and_b32 s%d, s%d, 15" % (sT15, sT15))
            e("s_cbranch_scc1 L_k%d" % a)
        self.nop(8)

    def softmax(self):
        e = self.e
        S = vSC
        for i in range(0, 8, 2):
            e("v_cvt_pk_bf16_f32 v32, v%d, v%d" % (S + i, S + i + 1))
            e("v_lshlrev_b32 v%d, 16, v32" % (S + i)); e("v_and_b32 v%d, 0xffff0000, v32" % (S + i + 1))
        e("v_max3_f32 v32, v%d, v%d, v%d" % (S, S + 1, S + 2)); e("v_max3_f32 v32, v32, v%d, v%d" % (S + 3, S + 4))
        e("v_max3_f32 v32, v32, v%d, v%d" % (S + 5, S + 6)); e("v_max_f32 v32, v32, v%d" % (S + 7))
        self.allreduce64(32, 33, "v_max_f32")
        e("s_lshl_b32 s%d, s%d, 2" % (sT0, sWave)); e("s_add_u32 s%d, s%d, %d" % (sT0, sT0, L_SM))
        e("v_mov_b32 v33, s%d" % sT0)
        e("ds_write_b32 v33, v32")
        e("s_waitcnt lgkmcnt(0)")
        e("s_barrier")
        e("v_mov_b32 v33, %d" % L_SM)
        e("ds_read_b128 v[36:39], v33")
        e("s_waitcnt lgkmcnt(0)")
        e("v_max3_f32 v32, v36, v37, v38"); e("v_max_f32 v32, v32, v39")
        e("s_mov_b32 s%d, 0x%x" % (sT0, C_EXP))
        for i in range(8):
            e("v_sub_f32 v%d, v%d, v32" % (S + i, S + i))
        for i in range(8):
            e("v_mul_f32 v%d, s%d, v%d" % (S + i, sT0, S + i))
        for i in range(8):
            e("v_exp_f32 v%d, v%d" % (S + i, S + i))
        self.nop(1)
        e("v_lshrrev_b32 v33, 4, v%d" % vL); e("v_lshlrev_b32 v33, 7, v33")
        e("v_and_b32 v34, 15, v%d" % vL); e("v_lshl_add_u32 v33, v34, 1, v33")
        e("s_lshl_b32 s%d, s%d, 10" % (sT0, sWave)); e("s_add_u32 s%d, s%d, %d" % (sT0, sT0, L_P))
        e("v_add_u32 v33, s%d, v33" % sT0)
        for i in range(0, 8, 2):
            a, r = i >> 2, i & 3
            e("v_cvt_pk_bf16_f32 v%d, v%d, v%d" % (36 + i // 2, S + i, S + i + 1))
            e("ds_write_b16 v33, v%d offset:%d" % (36 + i // 2, a * 512 + r * 32))
            e("ds_write_b16_d16_hi v33, v%d offset:%d" % (36 + i // 2, a * 512 + (r + 1) * 32))
        e("v_add_f32 v34, v%d, v%d" % (S, S + 1)); e("v_add_f32 v35, v%d, v%d" % (S + 2, S + 3))
        e("v_add_f32 v40, v%d, v%d" % (S + 4, S + 5)); e("v_add_f32 v41, v%d, v%d" % (S + 6, S + 7))
        e("v_add_f32 v34, v34, v35"); e("v_add_f32 v40, v40, v41"); e("v_add_f32 v34, v34, v40")
        self.allreduce64(34, 35, "v_add_f32")
        e("v_mov_b32 v%d, v34" % vLsum)
        e("v_mov_b32 v9, v32")
        e("s_waitcnt lgkmcnt(0)")

    def vphase(self):
        e = self.e
        e("v_lshrrev_b32 v%d, 5, v%d" % (vPh, vL)); e("v_lshlrev_b32 v%d, 12, v%d" % (vPh, vPh))
        e("v_and_b32 v%d, 31, v%d" % (vAd, vL)); e("v_lshl_add_u32 v%d, v%d, 3, v%d" % (vPh, vAd, vPh))
        e("v_lshrrev_b32 v%d, 4, v%d" % (vPa, vL)); e("v_lshlrev_b32 v%d, 3, v%d" % (vPa, vPa))
        e("s_lshl_b32 s%d, s%d, 10" % (sT0, sWave)); e("s_add_u32 s%d, s%d, %d" % (sT0, sT0, L_P))
        e("v_add_u32 v%d, s%d, v%d" % (vPa, sT0, vPa))
        for i in range(16):
            e("v_mov_b32 v%d, 0" % (vACC + i))
        acc = lambda T4: vr(vACC + 4 * T4, 4)
        after = {1: 0, 3: 1, 6: 2, 8: 3, 11: 4, 13: 5, 16: 6}
        for i in range(NSTR_T):
            T = NRES_T + i
            self.step_issue()
            e("v_add_u32 v%d, s%d, v%d" % (vAd, sCs, vPh))
            e("ds_read_b64 v[32:33], v%d offset:%d" % (vPa, T * 32))
            for b in range(2):
                us = (2 * b, 2 * b + 1)
                k = 0
                for u in us:
                    for T4 in range(4):
                        e("ds_read_b64_tr_b16 v[%d:%d], v%d offset:%d" % (48 + 2 * k, 49 + 2 * k, vAd, (4 * T4 + u) * 256))
                        k += 1
                if b == 0:
                    e("s_waitcnt lgkmcnt(8)")
                for j, u in enumerate(us):
                    e("v_cndmask_b32 v%d, 0, v32, %s" % (36 + 2 * j, sp(sM[u])))
                    e("v_cndmask_b32 v%d, 0, v33, %s" % (37 + 2 * j, sp(sM[u])))
                e("s_waitcnt lgkmcnt(0)")
                k = 0
                for j, u in enumerate(us):
                    for T4 in range(4):
                        e("v_mfma_f32_16x16x16_bf16 %s, %s, %s, %s" % (acc(T4), vr(36 + 2 * j, 2), vr(48 + 2 * k, 2), acc(T4)))
                        k += 1
            self.adv_cs()
            if i in after:
                self.res_pair(after[i])
        self.nop(8)

    def res_pair(self, m):
        e = self.e
        acc = lambda T4: vr(vACC + 4 * T4, 4)
        e("ds_read2_b64 v[32:35], v%d offset0:%d offset1:%d" % (vPa, 8 * m, 8 * m + 4))
        e("s_waitcnt lgkmcnt(0)")
        for u in range(4):
            A = 36 + 4 * (u & 1)
            for d in range(4):
                e("v_cndmask_b32 v%d, 0, v%d, %s" % (A + d, 32 + d, sp(sM[u])))
            self.nop(2)
            for T4 in range(4):
                e("v_mfma_f32_16x16x32_bf16 %s, %s, %s, %s" % (acc(T4), vr(A, 4), res_reg(m, 4 * T4 + u), acc(T4)))

    def combine_publish(self):
        e = self.e
        for u in range(4):
            X, Y, Z, W = (vACC + 4 * t + u for t in range(4))
            e("v_permlane16_swap_b32 v%d, v%d" % (X, Y))
            e("v_permlane16_swap_b32 v%d, v%d" % (Z, W))
        self.nop(2)
        for u in range(4):
            e("v_permlane32_swap_b32 v%d, v%d" % (vACC + u, vACC + 8 + u))
        e("v_lshrrev_b32 v32, 4, v%d" % vL); e("v_lshlrev_b32 v32, 8, v32")
        e("v_and_b32 v33, 15, v%d" % vL); e("v_lshl_add_u32 v32, v33, 2, v32")
        e("s_lshl_b32 s%d, s%d, 10" % (sT0, sWave)); e("s_add_u32 s%d, s%d, %d" % (sT0, sT0, L_P))
        e("v_add_u32 v32, s%d, v32" % sT0)
        for u in range(4):
            e("ds_write_b32 v32, v%d offset:%d" % (vACC + u, u * 64))
        e("s_lshl_b32 s%d, s%d, 2" % (sT0, sWave)); e("s_add_u32 s%d, s%d, %d" % (sT0, sT0, L_SM + 16))
        e("v_mov_b32 v33, s%d" % sT0)
        e("ds_write_b32 v33, v%d" % vLsum)
        e("s_waitcnt lgkmcnt(0)")
        e("s_barrier")
        e("s_lshl_b32 s%d, s%d, 8" % (sT0, sWave)); e("s_add_u32 s%d, s%d, %d" % (sT0, sT0, L_P))
        e("v_lshlrev_b32 v40, 2, v%d" % vL); e("v_add_u32 v32, s%d, v40" % sT0)
        for w in range(4):
            e("ds_read_b32 v%d, v32 offset:%d" % (34 + w, w * 1024))
        e("v_mov_b32 v33, %d" % (L_SM + 16))
        e("ds_read_b128 v[44:47], v33")
        e("s_waitcnt lgkmcnt(0)")
        e("v_add_f32 v34, v34, v35"); e("v_add_f32 v36, v36, v37"); e("v_add_f32 v34, v34, v36")
        e("v_add_f32 v44, v44, v45"); e("v_add_f32 v46, v46, v47"); e("v_add_f32 v44, v44, v46")
        e("v_mov_b32 v41, -2")
        e("v_min_u32 v34, v34, v41")
        e("v_and_b32 v42, 1, v%d" % vL); e("v_cmp_eq_u32 vcc, 1, v42"); self.nop(2)
        e("v_cndmask_b32 v43, v9, v44, vcc"); e("v_min_u32 v43, v43, v41")
        e("v_lshlrev_b32 v42, 2, v42"); e("v_add_u32 v42, 256, v42")
        e("s_lshl_b32 s%d, s%d, 2" % (sT0, sH)); e("s_add_u32 s%d, s%d, s%d" % (sT0, sT0, sWave)); e("s_lshl_b32 s%d, s%d, 4" % (sT0, sT0))
        e("s_add_u32 s%d, s%d, s%d" % (sT0, sT0, sC)); e("s_mul_i32 s%d, s%d, %d" % (sT0, sT0, M1_SLOT))
        e("s_mul_i32 s%d, s%d, 0x%x" % (sT1, sPass, M1_R))
        self.addr(sA, pWs, M1, [sT0, sT1])
        e("global_store_dword v40, v34, %s sc1" % sp(sA))
        e("global_store_dword v42, v43, %s sc1" % sp(sA))
        e("s_barrier")

    def topup(self):
        e = self.e
        L = self.nl("Tu"); D = self.nl("Tud")
        e("s_cmp_eq_u32 s%d, 0" % sPass); e("s_cbranch_scc0 %s" % D)
        e("s_sub_u32 s%d, s%d, 2" % (sT5, sNS))
        self.lab(L)
        self.issue()
        e("s_sub_u32 s%d, s%d, 1" % (sT5, sT5))
        e("s_cmp_lg_u32 s%d, 0" % sT5); e("s_cbranch_scc1 %s" % L)
        self.lab(D)

    def stage_S1(self):
        e = self.e
        e("s_mul_i32 s%d, s%d, %d" % (sT0, sIdx, 16 * M1_SLOT)); e("s_mul_i32 s%d, s%d, 0x%x" % (sT1, sPass, M1_R))
        self.addr(sA, pWs, M1 + 2304, [sT0, sT1])
        e("v_lshrrev_b32 v10, 4, v%d" % vL); e("v_mul_u32_u24 v10, %d, v10" % M1_SLOT)
        e("v_and_b32 v11, 15, v%d" % vL); e("v_lshl_add_u32 v11, v11, 4, v10")
        e("v_add_u32 v10, 256, v10")
        loads = []; regs = []
        for j in range(4):
            off = j * 4 * M1_SLOT - 2304
            loads.append("global_load_dwordx4 v[%d:%d], v11, %s offset:%d sc1" % (32 + 4 * j, 35 + 4 * j, sp(sA), off))
            loads.append("global_load_dwordx2 v[%d:%d], v10, %s offset:%d sc1" % (48 + 2 * j, 49 + 2 * j, sp(sA), off))
        self.poll(loads, list(range(32, 56)), 56, "Ps1")
        e("v_max3_f32 v56, v48, v50, v52"); e("v_max_f32 v56, v56, v54")
        self.xrows(56, 57, "v_max_f32")
        e("s_mov_b32 s%d, 0x%x" % (sT0, C_EXP))
        for j in range(4):
            e("v_sub_f32 v%d, v%d, v56" % (48 + 2 * j, 48 + 2 * j))
        for j in range(4):
            e("v_mul_f32 v%d, s%d, v%d" % (48 + 2 * j, sT0, 48 + 2 * j))
        for j in range(4):
            e("v_exp_f32 v%d, v%d" % (48 + 2 * j, 48 + 2 * j))
        self.nop(1)
        e("v_mul_f32 v56, v48, v49")
        for j in range(1, 4):
            e("v_fmac_f32 v56, v%d, v%d" % (48 + 2 * j, 49 + 2 * j))
        for d in range(4):
            e("v_mul_f32 v%d, v48, v%d" % (32 + d, 32 + d))
        for j in range(1, 4):
            for d in range(4):
                e("v_fmac_f32 v%d, v%d, v%d" % (32 + d, 48 + 2 * j, 32 + 4 * j + d))
        self.xrows(56, 57, "v_add_f32")
        e("v_rcp_f32 v56, v56")
        e("v_permlane32_swap_b32 v32, v34"); e("v_permlane32_swap_b32 v33, v35"); self.nop(1)
        e("v_add_f32 v32, v32, v34"); e("v_add_f32 v33, v33, v35")
        e("v_mov_b32 v34, v32"); e("v_mov_b32 v35, v33"); self.nop(2)
        e("v_permlane16_swap_b32 v32, v34"); e("v_permlane16_swap_b32 v33, v35"); self.nop(1)
        e("v_add_f32 v32, v32, v34"); e("v_add_f32 v33, v33, v35")
        e("v_mul_f32 v32, v32, v56"); e("v_mul_f32 v33, v33, v56")
        e("v_cvt_pk_bf16_f32 v32, v32, v33")
        e("v_mov_b32 v41, -2"); e("v_min_u32 v32, v32, v41")
        e("v_and_b32 v34, 15, v%d" % vL); e("v_lshlrev_b32 v34, 3, v34")
        e("v_lshrrev_b32 v35, 5, v%d" % vL); e("v_lshl_add_u32 v34, v35, 2, v34"); e("v_add_u32 v34, s%d, v34" % sVec)
        e("ds_write_b32 v34, v32")
        if self.o.get("dbg_a"):
            e("s_lshl_b32 s%d, s%d, 13" % (sT0, sPass)); e("s_lshl_b32 s%d, s%d, 7" % (sT1, sIdx))
            self.addr(sA, pWs, 0xC0000, [sT0, sT1])
            e("v_subrev_u32 v35, s%d, v34" % sVec)
            e("global_store_dword v35, v32, %s" % sp(sA))
        self.lane_rc()
        e("v_lshlrev_b32 v6, 3, v10"); e("v_add_u32 v6, s%d, v6" % sVec)
        e("v_lshl_add_u32 v7, v10, 2, v11"); e("v_mul_u32_u24 v7, %d, v7" % O_ROW); e("v_lshl_add_u32 v7, v12, 3, v7")
        e("s_mul_i32 s%d, s%d, 224" % (sT0, sWave)); e("s_add_u32 s%d, s%d, %d" % (sT0, sT0, L_W)); e("v_add_u32 v7, s%d, v7" % sT0)
        e("s_waitcnt lgkmcnt(0)")
        e("ds_read2_b64 v[36:39], v6 offset0:0 offset1:4"); e("ds_read2_b64 v[40:43], v6 offset0:8 offset1:12")
        for c0 in range(0, 7, 2):
            cts = [c for c in (c0, c0 + 1) if c < 7]
            k = 0
            for ct in cts:
                for m in range(2):
                    e("ds_read_b64_tr_b16 v[%d:%d], v7 offset:%d" % (48 + 4 * k, 49 + 4 * k, m * 32 * O_ROW + ct * 32))
                    e("ds_read_b64_tr_b16 v[%d:%d], v7 offset:%d" % (50 + 4 * k, 51 + 4 * k, (m * 32 + 16) * O_ROW + ct * 32))
                    k += 1
            e("s_waitcnt lgkmcnt(0)")
            k = 0
            for ct in cts:
                for m in range(2):
                    c = "0" if m == 0 else vr(8 + 4 * ct, 4)
                    e("v_mfma_f32_16x16x32_bf16 %s, %s, %s, %s" % (vr(8 + 4 * ct, 4), vr(36 + 4 * m, 4), vr(48 + 4 * k, 4), c))
                    k += 1
        self.nop(8)
        for row in range(1, 4):
            e("s_mov_b32 exec_lo, 0x%x" % (0xffff0000 if row == 1 else 0))
            e("s_mov_b32 exec_hi, 0x%x" % (0 if row == 1 else (0xffff << (16 * (row - 2)))))
            e("v_mov_b32 v8, v%d" % (8 + 4 * row))
            if row < 3:
                e("v_mov_b32 v24, v%d" % (24 + 4 * row))
        e("s_mov_b64 exec, -1")
        e("v_mov_b32 v41, -2"); e("v_min_u32 v8, v8, v41"); e("v_min_u32 v24, v24, v41")
        e("s_mul_i32 s%d, s%d, %d" % (sT0, sIdx, M2_SLOT)); e("s_mul_i32 s%d, s%d, 0x%x" % (sT1, sPass, M2_R)); e("s_mul_i32 s%d, s%d, 448" % (sT2, sWave))
        self.addr(sA, pWs, M2, [sT0, sT1, sT2])
        e("v_lshlrev_b32 v40, 2, v%d" % vL)
        e("global_store_dword v40, v8, %s sc1" % sp(sA))
        e("s_mov_b32 exec_hi, 0xffff")
        e("global_store_dword v40, v24, %s offset:256 sc1" % sp(sA))
        e("s_mov_b64 exec, -1")

    def reduce_waves16(self, src):
        e = self.e
        e("v_and_b32 v14, 15, v%d" % vL); e("v_lshlrev_b32 v14, 2, v14")
        e("s_lshl_b32 s%d, s%d, 6" % (sT0, sWave)); e("s_add_u32 s%d, s%d, %d" % (sT0, sT0, L_RED))
        e("v_add_u32 v15, s%d, v14" % sT0)
        e("ds_write_b32 v15, v%d" % src)
        e("s_waitcnt lgkmcnt(0)")
        e("s_barrier")
        for w in range(4):
            e("ds_read_b32 v%d, v14 offset:%d" % (16 + w, L_RED + w * 64))
        e("s_waitcnt lgkmcnt(0)")
        e("v_add_f32 v16, v16, v17"); e("v_add_f32 v18, v18, v19"); e("v_add_f32 v8, v16, v18")

    def stage_R(self):
        e = self.e
        e("v_lshrrev_b32 v20, 4, v%d" % vL); e("v_lshlrev_b32 v20, 2, v20")
        e("s_cmp_eq_u32 s%d, 0" % sPass); e("s_cbranch_scc0 L_R_r1")
        e("s_lshl_b32 s%d, s%d, 4" % (sT0, sIdx))
        self.addr(sB, pX, 0, [sT0])
        e("s_branch L_R_r2")
        self.lab("L_R_r1")
        e("s_lshr_b32 s%d, s%d, 1" % (sT0, sIdx)); e("s_lshl_b32 s%d, s%d, 7" % (sT0, sT0))
        e("s_and_b32 s%d, s%d, 1" % (sT1, sIdx)); e("s_lshl_b32 s%d, s%d, 4" % (sT1, sT1))
        self.addr(sB, pWs, M5, [sT0, sT1])
        self.lab("L_R_r2")
        e("global_load_dword v21, v20, %s sc1" % sp(sB))
        e("s_lshl_b32 s%d, s%d, 5" % (sT0, sIdx)); e("s_mul_i32 s%d, s%d, 0x%x" % (sT1, sPass, M2_R))
        self.addr(sA, pWs, M2, [sT0, sT1])
        e("v_mul_u32_u24 v8, %d, v%d" % (M2_SLOT, vL))
        self.poll(["global_load_dwordx4 v[32:35], v8, %s sc1" % sp(sA),
                   "global_load_dwordx4 v[36:39], v8, %s offset:16 sc1" % sp(sA)], list(range(32, 40)), 40, "Pa")
        for d in range(4):
            e("v_permlane32_swap_b32 v%d, v%d" % (32 + d, 36 + d))
        self.nop(1)
        for d in range(4):
            e("v_add_f32 v%d, v%d, v%d" % (32 + d, 32 + d, 36 + d))
        self.nop(2)
        e("v_permlane16_swap_b32 v32, v34"); e("v_permlane16_swap_b32 v33, v35"); self.nop(1)
        e("v_add_f32 v32, v32, v34"); e("v_add_f32 v33, v33, v35")
        for n in (8, 4, 2, 1):
            self.nop(1)
            e("v_add_f32_dpp v32, v32, v32 row_ror:%d row_mask:0xf bank_mask:0xf" % n)
            e("v_add_f32_dpp v33, v33, v33 row_ror:%d row_mask:0xf bank_mask:0xf" % n)
        e("v_cvt_pk_bf16_f32 v34, v32, v33")
        e("v_lshlrev_b32 v32, 16, v34"); e("v_and_b32 v33, 0xffff0000, v34")
        e("v_lshlrev_b32 v35, 16, v21"); e("v_and_b32 v36, 0xffff0000, v21")
        e("v_add_f32 v32, v32, v35"); e("v_add_f32 v33, v33, v36")
        e("v_cvt_pk_bf16_f32 v34, v32, v33")
        e("v_mov_b32 v41, -2"); e("v_min_u32 v34, v34, v41")
        e("s_lshl_b32 s%d, s%d, 13" % (sT0, sPass)); e("s_lshl_b32 s%d, s%d, 7" % (sT1, sIdx))
        self.addr(sA, pWs, M3, [sT0, sT1])
        e("s_mov_b32 exec_lo, 0x00010001"); e("s_mov_b32 exec_hi, 0x00010001")
        e("global_store_dword v20, v34, %s sc1" % sp(sA))
        e("s_mov_b64 exec, -1")

    def gather_x(self, base_off, slot_shift_mode):
        e = self.e
        e("v_min_u32 v8, 55, v%d" % vL)
        if slot_shift_mode == "M3":
            e("v_lshlrev_b32 v8, 7, v8")
        else:
            e("v_and_b32 v9, 1, v8"); e("v_lshrrev_b32 v8, 1, v8"); e("v_lshlrev_b32 v8, 7, v8"); e("v_lshl_add_u32 v8, v9, 4, v8")
        self.poll(["global_load_dwordx4 v[32:35], v8, %s sc1" % sp(sA)], [32, 33, 34, 35], 36, "Px")

    def stage_B(self):
        e = self.e
        e("s_lshl_b32 s%d, s%d, 13" % (sT0, sPass))
        self.addr(sA, pWs, M3, [sT0])
        self.gather_x(M3, "M3")
        self.layernorm_to_vec()
        self.lane_rc()
        e("v_lshlrev_b32 v6, 3, v10"); e("v_add_u32 v6, s%d, v6" % sVec)
        e("v_lshl_add_u32 v7, v10, 2, v11"); e("v_lshlrev_b32 v7, 6, v7")
        e("v_and_b32 v14, 1, v12"); e("v_lshl_add_u32 v7, v14, 3, v7")
        e("v_lshrrev_b32 v14, 1, v12"); e("v_mul_u32_u24 v14, %d, v14" % B_IMG3); e("v_add_u32 v7, v7, v14")
        e("s_lshl_b32 s%d, s%d, 4" % (sT0, sWave)); e("s_add_u32 s%d, s%d, %d" % (sT0, sT0, L_W)); e("v_add_u32 v7, s%d, v7" % sT0)
        self.gemv_chain(14, lambda m: (8 * m, 8 * m + 4), 2048, 1024)
        self.bf16r(8, 8, 9)
        self.nop(1)
        e("v_mov_b32_dpp v10, v8 row_ror:8 row_mask:0xf bank_mask:0xf")
        e("v_mul_f32 v11, 0xbfb8aa3b, v8")
        e("v_exp_f32 v11, v11"); self.nop(1)
        e("v_add_f32 v11, 1.0, v11")
        e("v_rcp_f32 v11, v11"); self.nop(1)
        e("v_mul_f32 v11, v8, v11")
        self.bf16r(11, 11, 12)
        e("v_mul_f32 v11, v11, v10")
        self.nop(1)
        e("v_mov_b32_dpp v12, v11 quad_perm:[1,0,3,2] row_mask:0xf bank_mask:0xf")
        e("v_cvt_pk_bf16_f32 v12, v11, v12")
        e("v_mov_b32 v14, -2"); e("v_min_u32 v12, v12, v14")
        e("s_lshl_b32 s%d, s%d, 13" % (sT0, sPass)); e("s_lshl_b32 s%d, s%d, 7" % (sT1, sIdx)); e("s_lshl_b32 s%d, s%d, 4" % (sT2, sWave))
        self.addr(sA, pWs, M4, [sT0, sT1, sT2])
        e("v_lshlrev_b32 v14, 1, v%d" % vL)
        e("s_mov_b64 exec, 0x55")
        e("global_store_dword v14, v12, %s sc1" % sp(sA))
        e("s_mov_b64 exec, -1")

    def stage_C(self):
        e = self.e
        e("s_lshl_b32 s%d, s%d, 13" % (sT0, sPass)); e("s_lshl_b32 s%d, s%d, 8" % (sT1, sIdx))
        self.addr(sB, pWs, M3, [sT0, sT1])
        e("v_bfe_u32 v20, v%d, 3, 1" % vL); e("v_lshlrev_b32 v20, 7, v20")
        e("v_bfe_u32 v21, v%d, 1, 2" % vL); e("v_lshl_add_u32 v20, v21, 2, v20")
        self.poll(["global_load_dword v22, v20, %s sc1" % sp(sB)], [22], 23, "Pr")
        e("s_lshl_b32 s%d, s%d, 13" % (sT0, sPass)); e("s_mul_i32 s%d, s%d, %d" % (sT1, sWave, 14 * 128))
        self.addr(sA, pWs, M4, [sT0, sT1])
        e("v_min_u32 v8, 55, v%d" % vL)
        e("v_and_b32 v9, 3, v8"); e("v_lshrrev_b32 v8, 2, v8"); e("v_lshlrev_b32 v8, 7, v8"); e("v_lshl_add_u32 v8, v9, 4, v8")
        self.poll(["global_load_dwordx4 v[32:35], v8, %s sc1" % sp(sA)], [32, 33, 34, 35], 36, "Ph")
        e("v_lshlrev_b32 v8, 4, v%d" % vL); e("v_add_u32 v8, s%d, v8" % sVec)
        e("ds_write_b128 v8, v[32:35]")
        self.lane_rc()
        e("v_lshlrev_b32 v6, 3, v10"); e("v_add_u32 v6, s%d, v6" % sVec)
        e("s_mul_i32 s%d, s%d, %d" % (sT0, sWave, C_WAVE)); e("s_add_u32 s%d, s%d, %d" % (sT0, sT0, L_W))
        e("v_lshl_add_u32 v7, v10, 2, v11"); e("v_lshlrev_b32 v7, 5, v7"); e("v_lshl_add_u32 v7, v12, 3, v7"); e("v_add_u32 v7, s%d, v7" % sT0)
        e("s_waitcnt lgkmcnt(0)")
        self.gemv_chain(14, lambda m: (8 * m, 8 * m + 4), 1024, 512)
        self.reduce_waves16(8)
        e("s_cmp_eq_u32 s%d, 0" % sWave); e("s_cbranch_scc0 L_C_done")
        self.bf16r(8, 8, 9)
        e("v_and_b32 v23, 1, v%d" % vL); e("v_cmp_eq_u32 vcc, 1, v23")
        e("v_lshlrev_b32 v23, 16, v22"); e("v_and_b32 v22, 0xffff0000, v22")
        e("v_cndmask_b32 v22, v23, v22, vcc")
        e("v_add_f32 v8, v8, v22")
        self.nop(1)
        e("v_mov_b32_dpp v9, v8 quad_perm:[1,0,3,2] row_mask:0xf bank_mask:0xf")
        e("v_cvt_pk_bf16_f32 v9, v8, v9")
        e("v_lshlrev_b32 v14, 1, v%d" % vL)
        e("s_cmp_eq_u32 s%d, 0" % sPass); e("s_cbranch_scc0 L_C_out")
        e("v_mov_b32 v15, -2"); e("v_min_u32 v9, v9, v15")
        e("s_lshl_b32 s%d, s%d, 7" % (sT1, sIdx))
        self.addr(sA, pWs, M5, [sT1])
        e("s_mov_b64 exec, 0x5555")
        e("global_store_dword v14, v9, %s sc1" % sp(sA))
        e("s_mov_b64 exec, -1")
        e("s_branch L_C_done")
        self.lab("L_C_out")
        e("s_lshl_b32 s%d, s%d, 5" % (sT1, sIdx))
        self.addr(sA, pOut, 0, [sT1])
        e("s_mov_b64 exec, 0x5555")
        e("global_store_dword v14, v9, %s" % sp(sA))
        e("s_mov_b64 exec, -1")
        self.lab("L_C_done")

    def build(self):
        e = self.e
        self.prologue()
        self.stamp(0)
        self.weights_setup()
        e("v_min_u32 v9, 55, v%d" % vL); e("v_lshlrev_b32 v9, 4, v9")
        e("global_load_dwordx4 v[32:35], v9, %s" % sp(pX))
        self.clear_mailboxes()
        self.group(0); self.group(1)
        self.stamp(1)
        self.p1a()
        self.stamp(2)
        self.lab("L_pass")
        self.gather_q()
        self.stamp(3)
        self.kphase()
        self.stamp(4)
        self.softmax()
        self.vphase()
        self.stamp(5)
        self.combine_publish()
        self.stamp(6)
        e("s_cmp_eq_u32 s%d, 1" % sRole); e("s_cbranch_scc1 L_roleO")
        e("s_cmp_eq_u32 s%d, 4" % sRole); e("s_cbranch_scc1 L_roleD")
        self.topup()
        e("s_cmp_eq_u32 s%d, 2" % sRole); e("s_cbranch_scc1 L_roleB")
        e("s_cmp_eq_u32 s%d, 3" % sRole); e("s_cbranch_scc1 L_roleC")
        e("s_branch L_next")
        self.lab("L_roleO")
        self.stage_S1()
        self.topup()
        e("s_branch L_next")
        self.lab("L_roleB")
        self.stage_B()
        e("s_branch L_next")
        self.lab("L_roleC")
        self.stage_C()
        e("s_branch L_next")
        self.lab("L_roleD")
        e("s_cmp_eq_u32 s%d, 0" % sWave); e("s_cbranch_scc0 L_D_rdone")
        e("s_cmp_lt_u32 s%d, 56" % sIdx); e("s_cbranch_scc0 L_D_rdone")
        self.stage_R()
        self.lab("L_D_rdone")
        self.topup()
        e("s_cmp_eq_u32 s%d, 0" % sPass); e("s_cbranch_scc0 L_next")
        self.addr(sA, pWs, M5)
        self.gather_x(M5, "M5")
        self.addr(sA, pWs, M6 + MR)
        e("s_call_b64 %s, L_stageD" % sp(sRet2))
        self.lab("L_next")
        self.stamp(7)
        e("s_add_u32 s%d, s%d, 1" % (sPass, sPass))
        e("s_cmp_lt_u32 s%d, 2" % sPass)
        e("s_cbranch_scc1 L_pass")
        self.dump_stamps()
        e("s_waitcnt vmcnt(0)")
        self.lab("L_end")
        e("s_endpgm")
        self.lab("L_stageD")
        self.stage_D(None)
        e("s_setpc_b64 %s" % sp(sRet2))
        self.emit_switch()
        return self.a.text()


HEADER = """; Persistent fused decode kernel: [attn -> mlp] x2, V tiles kept resident in registers across the two attention passes.
; @launch grid=(256,1,1) block=(256,1,1) lds=%d
.amdgcn_target "amdgcn-amd-amdhsa--gfx950"
.text
.globl %s
.p2align 8
.type %s,@function
%s:
"""
FOOTER = """.section .rodata,"a"
.p2align 6
.amdhsa_kernel %s
  .amdhsa_next_free_vgpr 512
  .amdhsa_next_free_sgpr 102
  .amdhsa_accum_offset 256
  .amdhsa_group_segment_fixed_size 0
  .amdhsa_kernarg_size 96
  .amdhsa_user_sgpr_count 2
  .amdhsa_user_sgpr_kernarg_segment_ptr 1
  .amdhsa_system_sgpr_workgroup_id_x 1
  .amdhsa_float_denorm_mode_32 3
.end_amdhsa_kernel
"""


def generate(opt=None):
    opt = opt or {}
    g = Gen(opt)
    body = g.build()
    return HEADER % (LDS_TOTAL, KNAME, KNAME, KNAME) + body + FOOTER % KNAME


if __name__ == "__main__":
    out = sys.argv[1] if len(sys.argv) > 1 else "gen/kernel.s"
    opt = {}
    for kv in sys.argv[2:]:
        k, v = kv.split("=")
        opt[k] = v
    open(out, "w").write(generate(opt))
    print("wrote", out)
```

```python
import sys, os
sys.path.insert(0, os.path.dirname(os.path.abspath(__file__)))
from asmlib import Asm

KNAME = "interleave_layers__mha_block_cached__glu_gated_swiglu__decode_kernel"

L_Q = 0
L_Z = 2176
L_SM = 2688
L_RED = 2752
L_ST = 2048
L_P = 3072
L_W = 7168
LDS_TOTAL = 163840
RING_NONE = 7168
RING_ROLE = 65536
O_ROW = 912
B_IMG3 = 28704
C_WAVE = 14336

M1 = 0x0; M1_R = 0x60000; M1_SLOT = 384
M2 = 0x100000; M2_R = 0x20000; M2_SLOT = 1792; M3 = 0xC4000; M4 = 0xC8000; M5 = 0xCC000; M6 = 0xCE000; MR = 0x2000
DBG = 0x200000

NRES_PAIRS = 7
NRES_T = 2 * NRES_PAIRS
NSTR_T = 32 - NRES_T
STRIDE = 16384
SPIN_LIMIT = 1 << 18
C_EXP = 0x3DB8AA3B
LOG2E = 0x3FB8AA3B

sW, sWave = 2, 3
pX, pK, pV, pWq, pWo, pW1, pW3, pW2, pOut, pDbg, pWs = 8, 10, 12, 14, 16, 20, 22, 24, 26, 28, 30
sKB, sVB = 32, 34
sCUR = 36
sSlot, sRs, sRe, sOff, sLeft, sSeg, sCs, sPass = 40, 41, 42, 43, 44, 45, 46, 47
sRole, sIdx, sH, sC, sNS, sVec, sWl, sSpin = 48, 49, 50, 51, 52, 53, 54, 55
sM = [56, 58, 60, 62]
sMd, sRet, sEx = 64, 66, 68
sT0, sT1, sT2, sT3, sT4, sT5 = 70, 71, 72, 73, 74, 75
sA = 76
sB = 78
sT15 = 80
sRho = 81
sWS = 84
sRet2 = 88
sWlds, sWlstep, sWoff, sWoff0, sWstep = 94, 95, 96, 97, 98
sAlloc = 99
sQok = 100
sRot = 101
sWo2 = 4
sWlds0, sWwrap = 6, 7
sWex = 82

vL = 0
vo = [1, 2, 3, 4]
vPh, vAd, vPa = 5, 6, 7
vSC = 8
vACC = 16
vLsum = 8
vW = 12


def sp(r, n=2):
    return "s[%d:%d]" % (r, r + n - 1)


def vr(r, n):
    return "v[%d:%d]" % (r, r + n - 1) if n > 1 else "v%d" % r


def res_reg(m, t, hh=None):
    base = m * 64 + 4 * t
    if m < 3:
        b = 64 + base; p = "v"
    else:
        b = base - 192; p = "a"
    if hh is None:
        return "%s[%d:%d]" % (p, b, b + 3)
    return "%s[%d:%d]" % (p, b + 2 * hh, b + 2 * hh + 1)


class LQ:
    def __init__(self, g):
        self.g = g; self.q = []
    def issue(self, instr, tag):
        self.g.e(instr); self.q.append(tag)
    def wait(self, tags):
        idx = [i for i, t in enumerate(self.q) if t in tags]
        if not idx:
            return
        last = max(idx)
        n = len(self.q) - 1 - last
        self.g.e("s_waitcnt lgkmcnt(%d)" % min(n, 15))
        self.q = self.q[last + 1:] if n <= 15 else self.q[len(self.q) - 15:]
    def drain(self):
        if self.q:
            self.g.e("s_waitcnt lgkmcnt(0)")
        self.q = []


class Gen:
    def __init__(self, opt):
        self.o = opt
        self.near = int(opt.get("near", 0))
        self.stride = 32768 if self.near else 16384
        self.stag = int(opt.get("stag", 0))
        self.l2pf = int(opt.get("l2pf", 0))
        self.l2pol = opt.get("l2pol", " nt")
        self.wpf = int(opt.get("wpf", 1))
        self.gapw = int(opt.get("gapw", 1))
        self.R = int(opt.get("R", 2))
        self.kalloc = int(opt.get("kalloc", 0))
        self.a = Asm()
        self.e = self.a.e

    def lab(self, n):
        self.a.label(n)

    def nl(self, b="L"):
        return self.a.newlabel(b)

    def nop(self, n):
        if n > 0:
            self.e("s_nop %d" % (n - 1))

    def bf16r(self, dst, src, tmp):
        self.e("v_cvt_pk_bf16_f32 v%d, v%d, v%d" % (tmp, src, src))
        self.e("v_and_b32 v%d, 0xffff0000, v%d" % (dst, tmp))

    def allreduce16(self, x, op):
        e = self.e
        for n in (8, 4, 2, 1):
            self.nop(2)
            e("%s_dpp v%d, v%d, v%d row_ror:%d row_mask:0xf bank_mask:0xf" % (op, x, x, x, n))

    def xrows(self, x, tmp, op):
        e = self.e
        e("v_mov_b32 v%d, v%d" % (tmp, x)); self.nop(2)
        e("v_permlane16_swap_b32 v%d, v%d" % (x, tmp)); self.nop(1)
        e("%s v%d, v%d, v%d" % (op, x, x, tmp))
        e("v_mov_b32 v%d, v%d" % (tmp, x)); self.nop(2)
        e("v_permlane32_swap_b32 v%d, v%d" % (x, tmp)); self.nop(1)
        e("%s v%d, v%d, v%d" % (op, x, x, tmp))

    def allreduce64(self, x, tmp, op):
        self.allreduce16(x, op)
        self.xrows(x, tmp, op)

    def poll(self, loads, regs, tmp, name="P"):
        e = self.e
        L = self.nl(name); D = self.nl(name + "d")
        e("s_mov_b32 s%d, 0" % sSpin)
        self.lab(L)
        for ld in loads:
            e(ld)
        e("s_waitcnt vmcnt(0)")
        rr = list(regs)
        if len(rr) == 1:
            t = rr[0]
        else:
            first = True
            while rr:
                if first:
                    if len(rr) >= 3:
                        e("v_max3_u32 v%d, v%d, v%d, v%d" % (tmp, rr[0], rr[1], rr[2])); rr = rr[3:]
                    else:
                        e("v_max_u32 v%d, v%d, v%d" % (tmp, rr[0], rr[1])); rr = rr[2:]
                    first = False
                elif len(rr) >= 2:
                    e("v_max3_u32 v%d, v%d, v%d, v%d" % (tmp, tmp, rr[0], rr[1])); rr = rr[2:]
                else:
                    e("v_max_u32 v%d, v%d, v%d" % (tmp, tmp, rr[0])); rr = rr[1:]
            t = tmp
        e("v_cmp_eq_u32 vcc, -1, v%d" % t)
        e("s_cbranch_vccz %s" % D)
        e("s_add_u32 s%d, s%d, 1" % (sSpin, sSpin))
        e("s_cmp_lt_u32 s%d, %d" % (sSpin, SPIN_LIMIT))
        e("s_cbranch_scc1 %s" % L)
        self.lab(D)

    def addr(self, dst, base, off_imm=0, off_sregs=()):
        e = self.e
        if off_imm:
            e("s_add_u32 s%d, s%d, 0x%x" % (dst, base, off_imm))
        else:
            e("s_add_u32 s%d, s%d, 0" % (dst, base))
        e("s_addc_u32 s%d, s%d, 0" % (dst + 1, base + 1))
        for r in off_sregs:
            e("s_add_u32 s%d, s%d, s%d" % (dst, dst, r))
            e("s_addc_u32 s%d, s%d, 0" % (dst + 1, dst + 1))

    def stamp(self, idx):
        if not self.o.get("stamps"):
            return
        e = self.e
        sk = self.nl("St")
        e("s_cmp_eq_u32 s%d, 0" % sWave); e("s_cbranch_scc0 %s" % sk)
        e("s_memrealtime s[90:91]")
        e("s_waitcnt lgkmcnt(0)")
        e("s_lshl_b32 s92, s%d, 6" % sPass); e("s_add_u32 s92, s92, %d" % (L_ST + idx * 4))
        e("v_mov_b32 v62, s92"); e("v_mov_b32 v63, s90")
        e("ds_write_b32 v62, v63")
        e("s_waitcnt lgkmcnt(0)")
        self.lab(sk)

    def dbg_span(self, first):
        if not self.o.get("span"):
            return
        e = self.e
        sk = self.nl("Sp")
        e("s_cmp_eq_u32 s%d, 0" % sWave); e("s_cbranch_scc0 %s" % sk)
        e("s_memrealtime s[90:91]")
        e("s_waitcnt lgkmcnt(0)")
        if first == 2:
            e("s_not_b32 s90, s90")
        e("v_mov_b32 v62, %d" % (4 * first)); e("v_mov_b32 v63, s90")
        e("s_mov_b64 exec, 1")
        e("global_atomic_umax v62, v63, %s" % sp(pDbg))
        e("s_mov_b64 exec, -1")
        self.lab(sk)

    def dbg_span_pass(self, base):
        if not self.o.get("span"):
            return
        e = self.e
        sk = self.nl("Sp")
        e("s_cmp_eq_u32 s%d, 0" % sWave); e("s_cbranch_scc0 %s" % sk)
        e("s_memrealtime s[90:91]")
        e("s_waitcnt lgkmcnt(0)")
        e("s_lshl_b32 s92, s%d, 2" % sPass); e("s_add_u32 s92, s92, %d" % (4 * base))
        e("v_mov_b32 v62, s92"); e("v_mov_b32 v63, s90")
        e("s_mov_b64 exec, 1")
        e("global_atomic_umax v62, v63, %s" % sp(pDbg))
        e("s_mov_b64 exec, -1")
        e("s_waitcnt vmcnt(0)")
        self.lab(sk)

    def dump_stamps(self):
        if not self.o.get("stamps"):
            return
        e = self.e
        sk = self.nl("Sd")
        e("s_cmp_eq_u32 s%d, 0" % sWave); e("s_cbranch_scc0 %s" % sk)
        e("v_and_b32 v8, 31, v%d" % vL); e("v_lshlrev_b32 v8, 2, v8")
        e("ds_read_b32 v9, v8 offset:%d" % L_ST)
        e("s_lshl_b32 s%d, s2, 7" % sT0)
        self.addr(sA, pWs, DBG, [sT0])
        e("s_waitcnt lgkmcnt(0)")
        e("global_store_dword v8, v9, %s" % sp(sA))
        self.lab(sk)

    def issue(self):
        e = self.e
        pol = self.o.get("pol", " nt")
        e("s_mov_b32 m0, s%d" % sSlot)
        e("s_add_u32 s%d, s%d, 4096" % (sSlot, sSlot))
        if self.kalloc:
            la = self.nl("Ia"); ld = self.nl("Id")
            e("s_cmp_gt_u32 s%d, 0" % sAlloc)
            e("s_cbranch_scc1 %s" % la)
        for s in range(4):
            e("buffer_load_dwordx4 v%d, %s, s%d offen offset:%d%s lds" % (vo[s], sp(sCUR, 4), sOff, s * 1024, pol))
        if self.kalloc:
            e("s_branch %s" % ld)
            self.lab(la)
            for s in range(4):
                e("buffer_load_dwordx4 v%d, %s, s%d offen offset:%d lds" % (vo[s], sp(sCUR, 4), sOff, s * 1024))
            e("s_sub_u32 s%d, s%d, 1" % (sAlloc, sAlloc))
            self.lab(ld)
        e("s_cmp_eq_u32 s%d, s%d" % (sSlot, sRe))
        e("s_cselect_b32 s%d, s%d, s%d" % (sSlot, sRs, sSlot))
        e("s_add_u32 s%d, s%d, %d" % (sOff, sOff, self.stride))
        if self.stag:
            e("s_and_b32 s%d, s%d, 0x%x" % (sOff, sOff, 64 * self.stride - 1))
        e("s_sub_u32 s%d, s%d, 1" % (sLeft, sLeft))
        e("s_cmp_lg_u32 s%d, 0" % sLeft)
        sk = self.nl("Isk")
        e("s_cbranch_scc1 %s" % sk)
        e("s_call_b64 %s, L_switch" % sp(sRet))
        self.lab(sk)

    def kpat(self):
        e = self.e
        e("v_and_b32 v%d, 7, v%d" % (vo[0], vL))
        e("v_lshlrev_b32 v%d, 9, v%d" % (vo[0], vo[0]))
        e("v_lshrrev_b32 v%d, 3, v%d" % (vo[1], vL))
        e("v_lshl_add_u32 v%d, v%d, 4, v%d" % (vo[0], vo[1], vo[0]))
        self.pat_fin()

    def vpat(self):
        e = self.e
        e("v_bfe_u32 v%d, v%d, 1, 3" % (vo[0], vL))
        e("v_lshlrev_b32 v%d, 9, v%d" % (vo[0], vo[0]))
        e("v_lshrrev_b32 v%d, 4, v%d" % (vo[1], vL))
        e("v_lshl_add_u32 v%d, v%d, 5, v%d" % (vo[0], vo[1], vo[0]))
        e("v_and_b32 v%d, 1, v%d" % (vo[1], vL))
        e("v_lshl_add_u32 v%d, v%d, 4, v%d" % (vo[0], vo[1], vo[0]))
        self.pat_fin()

    def pat_fin(self):
        e = self.e
        e("v_add_u32 v%d, 3072, v%d" % (vo[0], vo[0]))
        for s in range(1, 4):
            e("v_subrev_u32 v%d, %d, v%d" % (vo[s], 896 * s, vo[0]))

    def emit_switch(self):
        e = self.e
        self.lab("L_switch")
        e("s_add_u32 s%d, s%d, 1" % (sSeg, sSeg))
        e("s_cmp_eq_u32 s%d, 5" % sSeg)
        e("s_cbranch_scc1 L_sw_end")
        e("s_bitcmp1_b32 s%d, 0" % sSeg)
        e("s_cbranch_scc0 L_sw_v")
        e("s_mov_b32 s%d, s%d" % (sCUR, sKB)); e("s_mov_b32 s%d, s%d" % (sCUR + 1, sKB + 1))
        e("s_mov_b32 s%d, s%d" % (sOff, sRot)); e("s_mov_b32 s%d, 64" % sLeft)
        if self.kalloc:
            e("s_cmp_eq_u32 s%d, 1" % sSeg)
            e("s_cselect_b32 s%d, %d, 0" % (sAlloc, self.kalloc))
        self.kpat()
        e("s_setpc_b64 %s" % sp(sRet))
        self.lab("L_sw_v")
        e("s_mov_b32 s%d, s%d" % (sCUR, sVB)); e("s_mov_b32 s%d, s%d" % (sCUR + 1, sVB + 1))
        e("s_add_u32 s%d, s%d, %d" % (sOff, sRot, 2 * NRES_T * self.stride)); e("s_and_b32 s%d, s%d, 0x%x" % (sOff, sOff, 64 * self.stride - 1))
        e("s_mov_b32 s%d, %d" % (sLeft, 2 * NSTR_T))
        self.vpat()
        e("s_setpc_b64 %s" % sp(sRet))
        self.lab("L_sw_end")
        e("s_mov_b32 s%d, 0" % (sCUR + 2))
        e("s_mov_b32 s%d, 0" % sOff); e("s_mov_b32 s%d, 0x7fffffff" % sLeft)
        e("s_setpc_b64 %s" % sp(sRet))

    def adv_cs(self):
        e = self.e
        e("s_add_u32 s%d, s%d, 8192" % (sCs, sCs))
        e("s_cmp_eq_u32 s%d, s%d" % (sCs, sRe))
        e("s_cselect_b32 s%d, s%d, s%d" % (sCs, sRs, sCs))

    def step_issue(self):
        w = 4 * (self.R - 1)
        self.e("s_waitcnt vmcnt(%d)" % w)
        self.issue()
        self.e("s_waitcnt vmcnt(%d)" % w)
        self.issue()

    def gwait(self, u):
        lo = max(0, u - self.R + 1)
        cnt = sum(4 + (1 if g < self.NX else 0) for g in range(lo, u))
        self.e("s_waitcnt vmcnt(%d)" % cnt)

    NX = 16

    def xop(self, i):
        e = self.e
        if i == 7:
            e("s_cmp_eq_u32 s%d, 2" % sRole)
            e("s_cselect_b32 s%d, s%d, s%d" % (sWS, sWo2, sWS))
            e("s_cselect_b32 s%d, s%d, s%d" % (sWS + 1, sWo2 + 1, sWS + 1))
            e("s_cselect_b32 s%d, s%d, s%d" % (sWoff, sWoff0, sWoff))
            e("s_cselect_b32 s%d, s%d, s%d" % (sWlds, sWlds0, sWlds))
        if 0 < i < 14:
            e("s_cmp_eq_u32 s%d, %d" % (sWwrap, i))
            e("s_cselect_b32 s%d, s%d, s%d" % (sWoff, sWoff0, sWoff))
            e("s_cselect_b32 s%d, s%d, s%d" % (sWlds, sWlds0, sWlds))
        if i == 14:
            e("s_cmp_eq_u32 s%d, 1" % sRole)
            e("s_cselect_b32 s%d, s%d, 0" % (sWS + 2, sWS + 2))
            e("s_cselect_b32 s%d, s%d, s%d" % (sWlds, sWlds, sVec))
            e("s_cselect_b32 s%d, s%d, 0" % (sWlstep, sWlstep))
        e("s_mov_b32 m0, s%d" % sWlds); e("s_add_u32 s%d, s%d, s%d" % (sWlds, sWlds, sWlstep))
        e("s_mov_b64 exec, %s" % sp(sWex))
        e("buffer_load_dwordx4 v%d, %s, s%d offen lds" % (vW, sp(sWS, 4), sWoff))
        e("s_mov_b64 exec, -1")
        e("s_add_u32 s%d, s%d, s%d" % (sWoff, sWoff, sWstep))

    def group(self, u):
        if u >= self.R:
            self.gwait(u)
        self.issue()
        if u < self.NX:
            self.xop(u)

    def prologue(self):
        e = self.e
        e("s_cmp_ge_u32 s2, 256")
        e("s_cbranch_scc1 L_end")
        e("s_load_dwordx16 s[8:23], s[0:1], 0")
        e("s_load_dwordx8 s[24:31], s[0:1], 64")
        e("v_lshrrev_b32 v1, 6, v0")
        e("v_and_b32 v%d, 63, v0" % vL)
        e("s_nop 0")
        e("v_readfirstlane_b32 s%d, v1" % sWave)
        x, r = sT0, sT1
        e("s_and_b32 s%d, s2, 7" % x)
        e("s_lshr_b32 s%d, s2, 3" % r)
        e("s_mov_b32 s%d, 0" % sRole); e("s_mov_b32 s%d, 0" % sIdx)
        e("s_cmp_lt_u32 s%d, 8" % r); e("s_cbranch_scc0 L_r1")
        e("s_mov_b32 s%d, 1" % sRole); e("s_lshl_b32 s%d, s%d, 3" % (sIdx, r)); e("s_add_u32 s%d, s%d, s%d" % (sIdx, sIdx, x))
        e("s_branch L_rdone")
        self.lab("L_r1")
        e("s_cmp_lt_u32 s%d, 16" % r); e("s_cbranch_scc0 L_r2")
        e("s_sub_u32 s%d, s%d, 8" % (sT2, r))
        e("s_lshr_b32 s%d, s%d, 1" % (sT3, sT2)); e("s_lshl_b32 s%d, s%d, 3" % (sT3, sT3)); e("s_add_u32 s%d, s%d, s%d" % (sT3, sT3, x))
        e("s_cmp_lt_u32 s%d, 28" % sT3); e("s_cbranch_scc0 L_rdone")
        e("s_mov_b32 s%d, 2" % sRole); e("s_and_b32 s%d, s%d, 1" % (sT2, sT2)); e("s_lshl_b32 s%d, s%d, 1" % (sIdx, sT3))
        e("s_add_u32 s%d, s%d, s%d" % (sIdx, sIdx, sT2))
        e("s_branch L_rdone")
        self.lab("L_r2")
        e("s_cmp_lt_u32 s%d, 20" % r); e("s_cbranch_scc0 L_r3")
        e("s_cmp_lt_u32 s%d, 7" % x); e("s_cbranch_scc0 L_rdone")
        e("s_mov_b32 s%d, 3" % sRole); e("s_lshl_b32 s%d, s%d, 2" % (sIdx, x)); e("s_add_u32 s%d, s%d, s%d" % (sIdx, sIdx, r))
        e("s_sub_u32 s%d, s%d, 16" % (sIdx, sIdx))
        e("s_branch L_rdone")
        self.lab("L_r3")
        e("s_cmp_lt_u32 s%d, 28" % r); e("s_cbranch_scc0 L_rdone")
        e("s_mov_b32 s%d, 4" % sRole); e("s_sub_u32 s%d, s%d, 20" % (sIdx, r)); e("s_lshl_b32 s%d, s%d, 3" % (sIdx, sIdx))
        e("s_add_u32 s%d, s%d, s%d" % (sIdx, sIdx, x))
        self.lab("L_rdone")
        e("s_lshr_b32 s%d, s2, 4" % sH); e("s_and_b32 s%d, s2, 15" % sC)
        e("s_mov_b32 s%d, %d" % (sT0, RING_ROLE)); e("s_mov_b32 s%d, 6" % sNS)
        e("s_cmp_eq_u32 s%d, 0" % sRole)
        e("s_cselect_b32 s%d, %d, s%d" % (sT0, RING_NONE, sT0)); e("s_cselect_b32 s%d, 8, s%d" % (sNS, sNS))
        e("s_lshl_b32 s%d, s%d, 12" % (sT1, sNS))
        e("s_mul_i32 s%d, s%d, s%d" % (sT2, sT1, sWave))
        e("s_add_u32 s%d, s%d, s%d" % (sRs, sT0, sT2))
        e("s_add_u32 s%d, s%d, s%d" % (sRe, sRs, sT1))
        e("s_mov_b32 s%d, s%d" % (sSlot, sRs)); e("s_mov_b32 s%d, s%d" % (sCs, sRs))
        e("s_lshl_b32 s%d, s%d, 10" % (sT2, sWave)); e("s_add_u32 s%d, s%d, %d" % (sVec, sT2, L_P))
        e("s_mov_b32 s%d, 0x00010001" % sM[0]); e("s_mov_b32 s%d, 0x00010001" % (sM[0] + 1))
        for u in range(1, 4):
            e("s_lshl_b64 %s, %s, %d" % (sp(sM[u]), sp(sM[0]), u))
        e("s_mov_b32 s%d, 0" % sPass)
        e("s_waitcnt lgkmcnt(0)")
        if not self.near:
            e("s_lshl_b32 s%d, s%d, 4" % (sT0, sH)); e("s_add_u32 s%d, s%d, s%d" % (sT0, sT0, sC))
            e("s_lshl_b32 s%d, s%d, 20" % (sT0, sT0))
            e("s_lshl_b32 s%d, s%d, 12" % (sT1, sWave)); e("s_add_u32 s%d, s%d, s%d" % (sT0, sT0, sT1))
        else:
            e("s_lshl_b32 s%d, s%d, 24" % (sT0, sH))
            e("s_lshr_b32 s%d, s2, 3" % sT1); e("s_and_b32 s%d, s%d, 1" % (sT1, sT1)); e("s_lshl_b32 s%d, s%d, 2" % (sT1, sT1))
            e("s_and_b32 s%d, s2, 3" % sT2); e("s_add_u32 s%d, s%d, s%d" % (sT1, sT1, sT2)); e("s_lshl_b32 s%d, s%d, 21" % (sT1, sT1))
            e("s_add_u32 s%d, s%d, s%d" % (sT0, sT0, sT1))
            e("s_lshr_b32 s%d, s2, 2" % sT1); e("s_xor_b32 s%d, s%d, s2" % (sT1, sT1))
            e("s_xor_b32 s%d, s%d, %d" % (sT1, sT1, int(self.o.get("cpol", 0)))); e("s_and_b32 s%d, s%d, 1" % (sT1, sT1))
            e("s_lshl_b32 s%d, s%d, 13" % (sT1, sT1)); e("s_add_u32 s%d, s%d, s%d" % (sT0, sT0, sT1))
            e("s_and_b32 s%d, s%d, 1" % (sT1, sWave)); e("s_lshl_b32 s%d, s%d, 12" % (sT1, sT1)); e("s_add_u32 s%d, s%d, s%d" % (sT0, sT0, sT1))
            e("s_lshr_b32 s%d, s%d, 1" % (sT1, sWave)); e("s_lshl_b32 s%d, s%d, 14" % (sT1, sT1)); e("s_add_u32 s%d, s%d, s%d" % (sT0, sT0, sT1))
        e("s_mov_b32 s%d, 0" % sAlloc)
        for (dst, src) in ((sKB, pK), (sVB, pV)):
            e("s_add_u32 s%d, s%d, s%d" % (dst, src, sT0)); e("s_addc_u32 s%d, s%d, 0" % (dst + 1, src + 1))
            e("s_sub_u32 s%d, s%d, 3072" % (dst, dst)); e("s_subb_u32 s%d, s%d, 0" % (dst + 1, dst + 1))
            e("s_and_b32 s%d, s%d, 0xffff" % (dst + 1, dst + 1))
        e("s_mov_b32 s%d, s%d" % (sCUR, sVB)); e("s_mov_b32 s%d, s%d" % (sCUR + 1, sVB + 1))
        e("s_mov_b32 s%d, %d" % (sCUR + 2, 3072 + 63 * self.stride + 4096)); e("s_mov_b32 s%d, 0x20000" % (sCUR + 3))
        if self.stag:
            e("s_mul_i32 s%d, s2, %d" % (sRot, self.stag)); e("s_and_b32 s%d, s%d, 63" % (sRot, sRot)); e("s_mul_i32 s%d, s%d, %d" % (sRot, sRot, self.stride))
        else:
            e("s_mov_b32 s%d, 0" % sRot)
        e("s_mov_b32 s%d, s%d" % (sOff, sRot)); e("s_mov_b32 s%d, %d" % (sLeft, 2 * NRES_T)); e("s_mov_b32 s%d, 0" % sSeg)
        self.vpat()

    def weights_setup(self, which):
        e0 = self.e
        sfx = "_" + which
        def e(x):
            for lb in ("L_wdone", "L_wO", "L_wB", "L_wC"):
                x = x.replace(lb, lb + sfx)
            e0(x)
        lab0 = self.lab
        self.lab = lambda n: lab0(n + sfx)
        e("s_mov_b32 s%d, 0x20000" % (sWS + 3))
        e("s_mov_b64 %s, -1" % sp(sWex))
        e("s_mov_b32 s%d, s%d" % (sWS, pWq)); e("s_and_b32 s%d, s%d, 0xffff" % (sWS + 1, pWq + 1)); e("s_mov_b32 s%d, 0" % (sWS + 2))
        e("s_mov_b32 s%d, s%d" % (sWlds, sVec))
        e("s_mov_b32 s%d, 0" % sWlstep); e("s_mov_b32 s%d, 0" % sWoff); e("s_mov_b32 s%d, 0" % sWoff0); e("s_mov_b32 s%d, 0" % sWstep)
        e("s_mov_b32 s%d, 99" % sWwrap); e("s_mov_b32 s%d, 0" % sWlds0); e("s_mov_b64 %s, 0" % sp(sWo2))
        e("v_mov_b32 v%d, 0" % vW)
        e("s_cmp_eq_u32 s%d, 0" % sRole); e("s_cbranch_scc1 L_wdone")
        if which == "start" and self.gapw:
            e("s_cmp_eq_u32 s%d, 2" % sRole); e("s_cbranch_scc1 L_wdone")
            e("s_cmp_eq_u32 s%d, 3" % sRole); e("s_cbranch_scc1 L_wdone")
        e("s_mov_b32 s%d, 1024" % sWlstep)
        e("s_cmp_eq_u32 s%d, 1" % sRole); e("s_cbranch_scc1 L_wO")
        e("s_cmp_eq_u32 s%d, 2" % sRole); e("s_cbranch_scc1 L_wB")
        e("s_cmp_eq_u32 s%d, 3" % sRole); e("s_cbranch_scc1 L_wC")
        e("s_mov_b32 s%d, %d" % (sWS + 2, 448 * 8192))
        e("v_lshrrev_b32 v9, 3, v%d" % vL); e("v_lshlrev_b32 v%d, 13, v9" % vW)
        e("v_bfe_u32 v9, v%d, 4, 2" % vL); e("v_lshlrev_b32 v9, 1, v9")
        e("v_and_b32 v10, 7, v%d" % vL); e("v_xor_b32 v9, v9, v10"); e("v_lshl_add_u32 v%d, v9, 4, v%d" % (vW, vW))
        e("s_mul_i32 s%d, s%d, %d" % (sT1, sWave, 14 * 8 * 8192)); e("s_lshl_b32 s%d, s%d, 7" % (sT2, sIdx)); e("s_add_u32 s%d, s%d, s%d" % (sWoff, sT1, sT2))
        e("s_mov_b32 s%d, %d" % (sWstep, 8 * 8192))
        e("s_mul_i32 s%d, s%d, %d" % (sWlds, sWave, 14 * 1024)); e("s_add_u32 s%d, s%d, %d" % (sWlds, sWlds, L_W))
        e("s_branch L_wdone")
        self.lab("L_wC")
        e("s_mov_b32 s%d, s%d" % (sWS, pW2)); e("s_and_b32 s%d, s%d, 0xffff" % (sWS + 1, pW2 + 1)); e("s_mov_b32 s%d, %d" % (sWS + 2, 1792 * 896))
        e("v_lshrrev_b32 v9, 1, v%d" % vL); e("v_mul_u32_u24 v%d, 896, v9" % vW)
        e("v_and_b32 v9, 1, v%d" % vL); e("v_lshl_add_u32 v%d, v9, 4, v%d" % (vW, vW))
        e("s_mul_i32 s%d, s%d, %d" % (sT1, sWave, 448 * 896)); e("s_lshl_b32 s%d, s%d, 5" % (sT2, sIdx)); e("s_add_u32 s%d, s%d, s%d" % (sWoff, sT1, sT2))
        e("s_mov_b32 s%d, %d" % (sWstep, 32 * 896))
        e("s_mul_i32 s%d, s%d, %d" % (sWlds, sWave, C_WAVE)); e("s_add_u32 s%d, s%d, %d" % (sWlds, sWlds, L_W))
        e("s_mov_b32 s%d, s%d" % (sWoff0, sWoff)); e("s_mov_b32 s%d, s%d" % (sWlds0, sWlds))
        e("s_and_b32 s%d, s%d, 3" % (sT0, sIdx)); e("s_mul_i32 s%d, s%d, 7" % (sT0, sT0)); e("s_add_u32 s%d, s%d, 1" % (sT0, sT0)); e("s_lshr_b32 s%d, s%d, 1" % (sT0, sT0))
        e("s_sub_u32 s%d, 14, s%d" % (sWwrap, sT0))
        e("s_mul_i32 s%d, s%d, %d" % (sT1, sT0, 32 * 896)); e("s_add_u32 s%d, s%d, s%d" % (sWoff, sWoff, sT1))
        e("s_lshl_b32 s%d, s%d, 10" % (sT1, sT0)); e("s_add_u32 s%d, s%d, s%d" % (sWlds, sWlds, sT1))
        e("s_branch L_wdone")
        self.lab("L_wO")
        e("s_mov_b32 s%d, s%d" % (sWS, pWo)); e("s_and_b32 s%d, s%d, 0xffff" % (sWS + 1, pWo + 1)); e("s_mov_b32 s%d, %d" % (sWS + 2, 4096 * 896))
        e("v_lshlrev_b32 v%d, 4, v%d" % (vW, vL))
        e("s_lshl_b32 s%d, s%d, 6" % (sT1, sIdx)); e("s_lshl_b32 s%d, s%d, 4" % (sT2, sWave)); e("s_add_u32 s%d, s%d, s%d" % (sT1, sT1, sT2))
        e("s_mul_i32 s%d, s%d, 896" % (sWoff, sT1))
        e("s_mov_b32 s%d, 896" % sWstep); e("s_mov_b32 s%d, %d" % (sWlstep, O_ROW))
        e("s_mul_i32 s%d, s%d, %d" % (sWlds, sWave, 16 * O_ROW)); e("s_add_u32 s%d, s%d, %d" % (sWlds, sWlds, L_W))
        e("s_mov_b32 s%d, -1" % sWex); e("s_mov_b32 s%d, 0x00ffffff" % (sWex + 1))
        e("s_branch L_wdone")
        self.lab("L_wB")
        e("s_bitcmp1_b32 s%d, 0" % sIdx)
        e("s_cselect_b32 s%d, s%d, s%d" % (sWS, pW3, pW1)); e("s_cselect_b32 s%d, s%d, s%d" % (sWS + 1, pW3 + 1, pW1 + 1))
        e("s_cselect_b32 s%d, s%d, s%d" % (sWo2, pW1, pW3)); e("s_cselect_b32 s%d, s%d, s%d" % (sWo2 + 1, pW1 + 1, pW3 + 1))
        e("s_cselect_b32 s%d, %d, 0" % (sT3, B_IMG3)); e("s_cselect_b32 s%d, 0, %d" % (sT4, B_IMG3))
        e("s_and_b32 s%d, s%d, 0xffff" % (sWS + 1, sWS + 1)); e("s_and_b32 s%d, s%d, 0xffff" % (sWo2 + 1, sWo2 + 1))
        e("s_mov_b32 s%d, %d" % (sWS + 2, 448 * 3584))
        e("v_lshrrev_b32 v9, 2, v%d" % vL); e("v_mul_u32_u24 v%d, 3584, v9" % vW)
        e("v_and_b32 v9, 3, v%d" % vL); e("v_lshl_add_u32 v%d, v9, 4, v%d" % (vW, vW))
        e("s_mul_i32 s%d, s%d, %d" % (sT1, sWave, 7 * 16 * 3584)); e("s_lshl_b32 s%d, s%d, 6" % (sT2, sIdx)); e("s_add_u32 s%d, s%d, s%d" % (sWoff, sT1, sT2))
        e("s_mov_b32 s%d, s%d" % (sWoff0, sWoff))
        e("s_mov_b32 s%d, %d" % (sWstep, 16 * 3584))
        e("s_mul_i32 s%d, s%d, %d" % (sWlds, sWave, 7 * 1024)); e("s_add_u32 s%d, s%d, %d" % (sWlds, sWlds, L_W))
        e("s_add_u32 s%d, s%d, s%d" % (sWlds0, sWlds, sT4)); e("s_add_u32 s%d, s%d, s%d" % (sWlds, sWlds, sT3))
        self.lab("L_wdone")
        self.lab = lab0

    def clear_mailboxes(self):
        e = self.e
        e("v_mov_b32 v10, -1")
        e("s_lshl_b32 s%d, s%d, 2" % (sT0, sH)); e("s_add_u32 s%d, s%d, s%d" % (sT0, sT0, sWave)); e("s_lshl_b32 s%d, s%d, 4" % (sT0, sT0))
        e("s_add_u32 s%d, s%d, s%d" % (sT0, sT0, sC)); e("s_mul_i32 s%d, s%d, %d" % (sT0, sT0, M1_SLOT))
        self.addr(sA, pWs, M1, [sT0])
        e("v_lshlrev_b32 v8, 2, v%d" % vL)
        e("v_and_b32 v9, 1, v%d" % vL); e("v_lshlrev_b32 v9, 2, v9"); e("v_add_u32 v9, 256, v9")
        for rho in range(2):
            e("global_store_dword v8, v10, %s sc1" % sp(sA))
            e("global_store_dword v9, v10, %s sc1" % sp(sA))
            if rho == 0:
                e("s_add_u32 s%d, s%d, 0x%x" % (sA, sA, M1_R)); e("s_addc_u32 s%d, s%d, 0" % (sA + 1, sA + 1))
        e("s_cmp_eq_u32 s%d, 0" % sWave); e("s_cbranch_scc0 L_cdone")
        e("s_cmp_eq_u32 s%d, 0" % sRole); e("s_cbranch_scc1 L_cdone")
        e("v_and_b32 v8, 31, v%d" % vL); e("v_lshlrev_b32 v8, 2, v8")
        e("s_lshl_b32 s%d, s%d, 7" % (sT0, sIdx))
        e("v_add_u32 v8, s%d, v8" % sT0)
        e("s_cmp_eq_u32 s%d, 1" % sRole); e("s_cbranch_scc1 L_cA")
        e("s_cmp_eq_u32 s%d, 2" % sRole); e("s_cbranch_scc1 L_cB")
        e("s_cmp_eq_u32 s%d, 3" % sRole); e("s_cbranch_scc1 L_cC")
        for off in (M3, M3 + MR, M6, M6 + MR):
            self.addr(sA, pWs, off); e("global_store_dword v8, v10, %s sc1" % sp(sA))
        e("s_branch L_cdone")
        self.lab("L_cA")
        e("s_mul_i32 s%d, s%d, %d" % (sT0, sIdx, M2_SLOT))
        e("v_lshlrev_b32 v8, 2, v%d" % vL)
        for rho in range(2):
            self.addr(sA, pWs, M2 + rho * M2_R, [sT0])
            for k in range(7):
                e("global_store_dword v8, v10, %s offset:%d sc1" % (sp(sA), k * 256))
        e("s_branch L_cdone")
        self.lab("L_cB")
        for off in (M4, M4 + MR):
            self.addr(sA, pWs, off); e("global_store_dword v8, v10, %s sc1" % sp(sA))
        e("s_branch L_cdone")
        self.lab("L_cC")
        self.addr(sA, pWs, M5); e("global_store_dword v8, v10, %s sc1" % sp(sA))
        self.lab("L_cdone")
        e("v_mov_b32 v11, 0")
        e("v_lshlrev_b32 v8, 2, v%d" % vL); e("v_add_u32 v8, %d, v8" % L_Z)
        e("ds_write_b32 v8, v11"); e("ds_write_b32 v8, v11 offset:256")

    def count_cleared(self):
        e = self.e
        e("s_waitcnt lgkmcnt(0)")
        e("s_barrier")
        e("s_cmp_eq_u32 s%d, 0" % sWave); e("s_cbranch_scc0 L_cnt_done")
        e("v_mov_b32 v10, 0"); e("v_mov_b32 v11, 1")
        e("s_mov_b64 exec, 1")
        e("global_atomic_add v10, v11, %s" % sp(pDbg))
        e("s_mov_b64 exec, -1")
        self.lab("L_cnt_done")

    def layernorm_to_vec(self):
        e = self.e
        X = 40
        for d in range(4):
            e("v_lshlrev_b32 v%d, 16, v%d" % (X + 2 * d, 32 + d))
            e("v_and_b32 v%d, 0xffff0000, v%d" % (X + 2 * d + 1, 32 + d))
        e("v_cmp_gt_u32 vcc, 56, v%d" % vL)
        e("v_add_f32 v48, v40, v41"); e("v_add_f32 v49, v42, v43"); e("v_add_f32 v50, v44, v45"); e("v_add_f32 v51, v46, v47")
        e("v_add_f32 v48, v48, v49"); e("v_add_f32 v50, v50, v51"); e("v_add_f32 v48, v48, v50")
        e("v_cndmask_b32 v48, 0, v48, vcc")
        self.allreduce64(48, 49, "v_add_f32")
        e("v_mul_f32 v48, 0x3b124925, v48")
        for i in range(8):
            e("v_sub_f32 v%d, v%d, v48" % (52 + i, X + i))
        e("v_mul_f32 v49, v52, v52")
        for i in range(1, 8):
            e("v_fmac_f32 v49, v%d, v%d" % (52 + i, 52 + i))
        e("v_cndmask_b32 v49, 0, v49, vcc")
        self.allreduce64(49, 50, "v_add_f32")
        e("v_mul_f32 v49, 0x3b124925, v49")
        self.bf16r(48, 48, 50)
        self.bf16r(49, 49, 50)
        e("v_add_f32 v49, 0x3727c5ac, v49")
        self.bf16r(49, 49, 50)
        e("v_sqrt_f32 v49, v49"); self.nop(1)
        self.bf16r(49, 49, 50)
        e("v_rcp_f32 v49, v49")
        for i in range(8):
            e("v_sub_f32 v%d, v%d, v48" % (52 + i, X + i))
        for i in range(0, 8, 2):
            e("v_cvt_pk_bf16_f32 v%d, v%d, v%d" % (36 + i // 2, 52 + i, 53 + i))
        for d in range(4):
            e("v_lshlrev_b32 v%d, 16, v%d" % (52 + 2 * d, 36 + d))
            e("v_and_b32 v%d, 0xffff0000, v%d" % (53 + 2 * d, 36 + d))
        for i in range(8):
            e("v_mul_f32 v%d, v%d, v49" % (52 + i, 52 + i))
        for i in range(0, 8, 2):
            e("v_cvt_pk_bf16_f32 v%d, v%d, v%d" % (36 + i // 2, 52 + i, 53 + i))
        e("v_lshlrev_b32 v48, 4, v%d" % vL); e("v_add_u32 v48, s%d, v48" % sVec)
        e("ds_write_b128 v48, v[36:39]")
        e("s_waitcnt lgkmcnt(0)")

    def gemv_chain(self, n, a_off, b_step, b_second, acc=8):
        e = self.e
        m = 0
        first = True
        while m < n:
            nb = min(4, n - m)
            for k in range(nb):
                o0, o1 = a_off(m + k)
                e("ds_read2_b64 v[%d:%d], v6 offset0:%d offset1:%d" % (32 + 4 * k, 35 + 4 * k, o0, o1))
                e("ds_read_b64_tr_b16 v[%d:%d], v7 offset:%d" % (48 + 4 * k, 49 + 4 * k, (m + k) * b_step))
                e("ds_read_b64_tr_b16 v[%d:%d], v7 offset:%d" % (50 + 4 * k, 51 + 4 * k, (m + k) * b_step + b_second))
            e("s_waitcnt lgkmcnt(0)")
            for k in range(nb):
                c = "0" if first else vr(acc, 4)
                e("v_mfma_f32_16x16x32_bf16 %s, %s, %s, %s" % (vr(acc, 4), vr(32 + 4 * k, 4), vr(48 + 4 * k, 4), c))
                first = False
            m += nb
        self.nop(8)

    def lane_rc(self):
        e = self.e
        e("v_lshrrev_b32 v10, 4, v%d" % vL); e("v_bfe_u32 v11, v%d, 2, 2" % vL)
        e("v_and_b32 v12, 3, v%d" % vL); e("v_and_b32 v13, 15, v%d" % vL)

    def stage_D(self, rho_reg_is_next):
        e = self.e
        self.layernorm_to_vec()
        self.lane_rc()
        e("v_lshlrev_b32 v6, 3, v10"); e("v_add_u32 v6, s%d, v6" % sVec)
        e("v_lshl_add_u32 v7, v10, 2, v11")
        e("v_bfe_u32 v14, v7, 1, 2"); e("v_xor_b32 v14, s%d, v14" % sWave)
        e("v_lshlrev_b32 v7, 7, v7"); e("v_lshl_add_u32 v7, v14, 5, v7"); e("v_lshl_add_u32 v7, v12, 3, v7"); e("v_add_u32 v7, %d, v7" % L_W)
        self.gemv_chain(14, lambda m: (8 * m, 8 * m + 4), 4096, 2048)
        e("v_mov_b32_dpp v9, v8 quad_perm:[1,0,3,2] row_mask:0xf bank_mask:0xf")
        e("v_cvt_pk_bf16_f32 v9, v8, v9")
        e("v_mov_b32 v14, -2"); e("v_min_u32 v9, v9, v14")
        e("s_lshl_b32 s%d, s%d, 7" % (sT0, sIdx)); e("s_lshl_b32 s%d, s%d, 5" % (sT1, sWave)); e("s_add_u32 s%d, s%d, s%d" % (sT0, sT0, sT1))
        e("v_lshlrev_b32 v14, 1, v%d" % vL); e("v_add_u32 v14, s%d, v14" % sT0)
        e("s_mov_b64 exec, 0x5555")
        e("global_store_dword v14, v9, %s sc1" % sp(sA))
        e("s_mov_b64 exec, -1")

    def p1a(self):
        e = self.e
        e("v_lshrrev_b32 v%d, 5, v%d" % (vPh, vL)); e("v_lshlrev_b32 v%d, 12, v%d" % (vPh, vPh))
        e("v_and_b32 v%d, 31, v%d" % (vAd, vL)); e("v_lshl_add_u32 v%d, v%d, 3, v%d" % (vPh, vAd, vPh))
        R = self.R
        for T in range(NRES_T):
            u0, u1 = 2 * T + R, 2 * T + R + 1
            if T == 12:
                self.gwait(u0)
                lq = self.nl("Lnq")
                e("s_mov_b32 s%d, 0" % sQok)
                e("v_cmp_gt_u32 vcc, 256, v36")
                e("s_cbranch_vccnz %s" % lq)
                e("s_mov_b32 s%d, 1" % sQok)
                e("s_lshl_b32 s%d, s%d, 9" % (sT1, sH))
                self.addr(sA, pWs, M6, [sT1])
                e("v_and_b32 v37, 31, v%d" % vL); e("v_lshlrev_b32 v37, 4, v37")
                e("global_load_dwordx4 v[32:35], v37, %s sc1" % sp(sA))
                self.lab(lq)
                self.issue()
            elif T == 10:
                self.gwait(u0)
                e("v_mov_b32 v37, 0")
                e("global_load_dword v36, v37, %s sc1" % sp(pDbg))
                self.issue()
            else:
                self.group(u0)
            if T == 1:
                self.gwait(u1)
                self.count_cleared()
                self.issue(); self.xop(u1)
            elif T == 9:
                assert u1 - R >= 16
                self.gwait(u1)
                e("s_cmp_eq_u32 s%d, 4" % sRole); e("s_cbranch_scc0 L_noq1")
                e("s_barrier")
                if int(self.o.get("gap2", 1)):
                    e("s_call_b64 %s, L_stageD_prep" % sp(sRet2))
                    e("s_lshl_b32 s%d, s%d, 7" % (sT0, sIdx)); e("s_lshl_b32 s%d, s%d, 5" % (sT1, sWave))
                    self.addr(sB, pWs, M6, [sT0, sT1])
                    e("s_call_b64 %s, L_stageD_rest" % sp(sRet2))
                else:
                    self.addr(sA, pWs, M6)
                    e("s_call_b64 %s, L_stageD" % sp(sRet2))
                self.lab("L_noq1")
                self.issue()
                e("v_lshrrev_b32 v%d, 5, v%d" % (vPh, vL)); e("v_lshlrev_b32 v%d, 12, v%d" % (vPh, vPh))
                e("v_and_b32 v%d, 31, v%d" % (vAd, vL)); e("v_lshl_add_u32 v%d, v%d, 3, v%d" % (vPh, vAd, vPh))
            else:
                self.group(u1)
            e("v_add_u32 v%d, s%d, v%d" % (vAd, sCs, vPh))
            for t in range(16):
                e("ds_read_b64_tr_b16 %s, v%d offset:%d" % (res_reg(T >> 1, t, T & 1), vAd, t * 256))
            self.adv_cs()
            e("s_waitcnt lgkmcnt(0)")

    def gather_q(self):
        e = self.e
        e("s_cmp_eq_u32 s%d, 0" % sPass); e("s_cbranch_scc0 L_gq")
        e("s_cmp_eq_u32 s%d, 1" % sQok); e("s_cbranch_scc0 L_gq_slow")
        e("v_max3_u32 v36, v32, v33, v34"); e("v_max_u32 v36, v36, v35")
        e("v_cmp_eq_u32 vcc, -1, v36")
        e("v_and_b32 v8, 31, v%d" % vL); e("v_lshlrev_b32 v8, 4, v8")
        e("s_cbranch_vccz L_gq_write")
        self.lab("L_gq_slow")
        L = self.nl("Lc"); Dn = self.nl("Lcd")
        e("v_mov_b32 v8, 0"); e("s_mov_b32 s%d, 0" % sSpin)
        self.lab(L)
        e("global_load_dword v9, v8, %s sc1" % sp(pDbg))
        e("s_waitcnt vmcnt(0)")
        e("v_cmp_gt_u32 vcc, 256, v9")
        e("s_cbranch_vccz %s" % Dn)
        e("s_add_u32 s%d, s%d, 1" % (sSpin, sSpin)); e("s_cmp_lt_u32 s%d, %d" % (sSpin, SPIN_LIMIT)); e("s_cbranch_scc1 %s" % L)
        self.lab(Dn)
        self.lab("L_gq")
        e("s_lshl_b32 s%d, s%d, 13" % (sT0, sPass)); e("s_lshl_b32 s%d, s%d, 9" % (sT1, sH))
        self.addr(sA, pWs, M6, [sT0, sT1])
        e("v_and_b32 v8, 31, v%d" % vL); e("v_lshlrev_b32 v8, 4, v8")
        self.poll(["global_load_dwordx4 v[32:35], v8, %s sc1" % sp(sA)], [32, 33, 34, 35], 36, "Pq")
        self.lab("L_gq_write")
        e("s_lshl_b32 s%d, s%d, 9" % (sT0, sWave))
        e("v_add_u32 v8, s%d, v8" % sT0)
        e("ds_write_b128 v8, v[32:35] offset:%d" % L_Q)
        e("s_waitcnt lgkmcnt(0)")

    def kphase(self):
        e = self.e
        vQ, vZ = 16, 17
        e("v_bfe_u32 v%d, v%d, 3, 1" % (vPh, vL)); e("v_lshlrev_b32 v%d, 12, v%d" % (vPh, vPh))
        e("v_lshrrev_b32 v%d, 4, v%d" % (vAd, vL)); e("v_lshl_add_u32 v%d, v%d, 7, v%d" % (vPh, vAd, vPh))
        e("v_lshlrev_b32 v%d, 4, v%d" % (vQ, vAd))
        e("v_and_b32 v%d, 7, v%d" % (vAd, vL)); e("v_lshl_add_u32 v%d, v%d, 4, v%d" % (vPh, vAd, vPh))
        e("s_lshl_b32 s%d, s%d, 9" % (sT0, sWave)); e("s_add_u32 s%d, s%d, %d" % (sT0, sT0, L_Q))
        e("v_add_u32 v%d, s%d, v%d" % (vQ, sT0, vQ))
        e("v_mov_b32 v%d, %d" % (vZ, L_Z))
        for i in range(8):
            e("v_mov_b32 v%d, 0" % (vSC + i))
        first_skip = self.nl("Kskip")
        e("s_mov_b32 s%d, 0" % sT15)
        e("s_cmp_eq_u32 s%d, 0" % sPass)
        e("s_cbranch_scc1 L_k0")
        e("s_waitcnt vmcnt(0)")
        e("s_branch %s" % first_skip)
        for a in range(2):
            self.lab("L_k%d" % a)
            self.step_issue()
            if a == 0:
                self.lab(first_skip)
            e("s_lshl_b64 %s, %s, s%d" % (sp(sMd), sp(sM[0]), sT15))
            e("v_add_u32 v%d, s%d, v%d" % (vAd, sCs, vPh))
            e("v_cndmask_b32 v%d, v%d, v%d, %s" % (vPa, vZ, vQ, sp(sMd)))
            for b in range(2):
                for k in range(4):
                    c8 = 4 * b + k
                    e("ds_read_b128 v[%d:%d], v%d offset:%d" % (32 + 4 * k, 35 + 4 * k, vPa, c8 * 64))
                    e("ds_read_b128 v[%d:%d], v%d offset:%d" % (48 + 4 * k, 51 + 4 * k, vAd, c8 * 512))
                e("s_waitcnt lgkmcnt(0)")
                for k in range(4):
                    e("v_mfma_f32_16x16x32_bf16 %s, %s, %s, %s" % (vr(vSC + 4 * a, 4), vr(32 + 4 * k, 4), vr(48 + 4 * k, 4), vr(vSC + 4 * a, 4)))
            self.adv_cs()
            e("s_add_u32 s%d, s%d, 1" % (sT15, sT15))
            e("s_and_b32 s%d, s%d, 15" % (sT15, sT15))
            e("s_cbranch_scc1 L_k%d" % a)
        self.nop(8)

    def softmax(self):
        e = self.e
        S = vSC
        for i in range(0, 8, 2):
            e("v_cvt_pk_bf16_f32 v32, v%d, v%d" % (S + i, S + i + 1))
            e("v_lshlrev_b32 v%d, 16, v32" % (S + i)); e("v_and_b32 v%d, 0xffff0000, v32" % (S + i + 1))
        e("v_max3_f32 v32, v%d, v%d, v%d" % (S, S + 1, S + 2)); e("v_max3_f32 v32, v32, v%d, v%d" % (S + 3, S + 4))
        e("v_max3_f32 v32, v32, v%d, v%d" % (S + 5, S + 6)); e("v_max_f32 v32, v32, v%d" % (S + 7))
        self.allreduce64(32, 33, "v_max_f32")
        e("s_lshl_b32 s%d, s%d, 2" % (sT0, sWave)); e("s_add_u32 s%d, s%d, %d" % (sT0, sT0, L_SM))
        e("v_mov_b32 v33, s%d" % sT0)
        e("ds_write_b32 v33, v32")
        e("s_waitcnt lgkmcnt(0)")
        e("s_barrier")
        e("v_mov_b32 v33, %d" % L_SM)
        e("ds_read_b128 v[36:39], v33")
        e("s_waitcnt lgkmcnt(0)")
        e("v_max3_f32 v32, v36, v37, v38"); e("v_max_f32 v32, v32, v39")
        e("s_mov_b32 s%d, 0x%x" % (sT0, C_EXP))
        for i in range(8):
            e("v_sub_f32 v%d, v%d, v32" % (S + i, S + i))
        for i in range(8):
            e("v_mul_f32 v%d, s%d, v%d" % (S + i, sT0, S + i))
        for i in range(8):
            e("v_exp_f32 v%d, v%d" % (S + i, S + i))
        self.nop(1)
        e("v_lshrrev_b32 v33, 4, v%d" % vL); e("v_lshlrev_b32 v33, 7, v33")
        e("v_and_b32 v34, 15, v%d" % vL); e("v_lshl_add_u32 v33, v34, 1, v33")
        e("s_lshl_b32 s%d, s%d, 10" % (sT0, sWave)); e("s_add_u32 s%d, s%d, %d" % (sT0, sT0, L_P))
        e("v_add_u32 v33, s%d, v33" % sT0)
        for i in range(0, 8, 2):
            a, r = i >> 2, i & 3
            e("v_cvt_pk_bf16_f32 v%d, v%d, v%d" % (36 + i // 2, S + i, S + i + 1))
            e("ds_write_b16 v33, v%d offset:%d" % (36 + i // 2, a * 512 + r * 32))
            e("ds_write_b16_d16_hi v33, v%d offset:%d" % (36 + i // 2, a * 512 + (r + 1) * 32))
        e("v_add_f32 v34, v%d, v%d" % (S, S + 1)); e("v_add_f32 v35, v%d, v%d" % (S + 2, S + 3))
        e("v_add_f32 v40, v%d, v%d" % (S + 4, S + 5)); e("v_add_f32 v41, v%d, v%d" % (S + 6, S + 7))
        e("v_add_f32 v34, v34, v35"); e("v_add_f32 v40, v40, v41"); e("v_add_f32 v34, v34, v40")
        self.allreduce64(34, 35, "v_add_f32")
        e("v_mov_b32 v%d, v34" % vLsum)
        e("v_mov_b32 v9, v32")
        e("s_waitcnt lgkmcnt(0)")

    def vphase(self):
        e = self.e
        e("v_lshrrev_b32 v%d, 5, v%d" % (vPh, vL)); e("v_lshlrev_b32 v%d, 12, v%d" % (vPh, vPh))
        e("v_and_b32 v%d, 31, v%d" % (vAd, vL)); e("v_lshl_add_u32 v%d, v%d, 3, v%d" % (vPh, vAd, vPh))
        e("v_lshrrev_b32 v%d, 4, v%d" % (vPa, vL)); e("v_lshlrev_b32 v%d, 3, v%d" % (vPa, vPa))
        e("s_lshl_b32 s%d, s%d, 10" % (sT0, sWave)); e("s_add_u32 s%d, s%d, %d" % (sT0, sT0, L_P))
        e("v_add_u32 v%d, s%d, v%d" % (vPa, sT0, vPa))
        for i in range(16):
            e("v_mov_b32 v%d, 0" % (vACC + i))
        acc = lambda T4: vr(vACC + 4 * T4, 4)
        after = {1: 0, 3: 1, 6: 2, 8: 3, 11: 4, 13: 5, 16: 6}
        pf_tiles = tuple(int(x) for x in str(self.o.get("wpft", "14,16")).split(",")) if (self.wpf and self.gapw) else ()
        cpf_tiles = tuple(int(x) for x in str(self.o.get("cpft", "9,11")).split(",")) if int(self.o.get("cpf", 1)) else ()
        if pf_tiles:
            self.wpf_setup()
        if cpf_tiles:
            e("s_getpc_b64 s[18:19]")
            self.lab("L_pcref")
            e("s_add_u32 s18, s18, L_gapcode-L_pcref"); e("s_addc_u32 s19, s19, 0")
            e("v_lshlrev_b32 v46, 7, v%d" % vL)
        any_x = bool(pf_tiles) or bool(cpf_tiles)
        pend = 0
        for i in range(NSTR_T):
            T = NRES_T + i
            if not any_x:
                self.step_issue()
            else:
                w = 4 * (self.R - 1)
                hist = getattr(self, "_h", [])
                for half in range(2):
                    ex = sum(hist[-(self.R - 1):]) if hist else 0
                    e("s_waitcnt vmcnt(%d)" % (w + ex))
                    self.issue()
                    if half == 0 and i in pf_tiles:
                        e("buffer_load_dword v44, v45, %s, s%d offen" % (sp(sWS, 4), sWoff))
                        e("s_add_u32 s%d, s%d, s%d" % (sWoff, sWoff, sWstep))
                        hist.append(1)
                    elif half == 0 and i in cpf_tiles:
                        e("v_min_u32 v47, L_endcode-L_gapcode-4, v46")
                        e("global_load_dword v47, v47, s[18:19]")
                        e("v_add_u32 v46, 8192, v46")
                        hist.append(1)
                    else:
                        hist.append(0)
                self._h = hist
            e("v_add_u32 v%d, s%d, v%d" % (vAd, sCs, vPh))
            e("ds_read_b64 v[32:33], v%d offset:%d" % (vPa, T * 32))
            for b in range(2):
                us = (2 * b, 2 * b + 1)
                k = 0
                for u in us:
                    for T4 in range(4):
                        e("ds_read_b64_tr_b16 v[%d:%d], v%d offset:%d" % (48 + 2 * k, 49 + 2 * k, vAd, (4 * T4 + u) * 256))
                        k += 1
                if b == 0:
                    e("s_waitcnt lgkmcnt(8)")
                for j, u in enumerate(us):
                    e("v_cndmask_b32 v%d, 0, v32, %s" % (36 + 2 * j, sp(sM[u])))
                    e("v_cndmask_b32 v%d, 0, v33, %s" % (37 + 2 * j, sp(sM[u])))
                e("s_waitcnt lgkmcnt(0)")
                k = 0
                for j, u in enumerate(us):
                    for T4 in range(4):
                        e("v_mfma_f32_16x16x16_bf16 %s, %s, %s, %s" % (acc(T4), vr(36 + 2 * j, 2), vr(48 + 2 * k, 2), acc(T4)))
                        k += 1
            self.adv_cs()
            if i in after:
                self.res_pair(after[i])
        self.nop(8)

    def wpf_setup(self):
        e = self.e
        d = self.nl("Lpf"); lb = self.nl("LpfB")
        e("s_mov_b32 s%d, 0x20000" % (sWS + 3)); e("s_mov_b32 s%d, 0" % (sWS + 2))
        e("s_mov_b32 s%d, s%d" % (sWS, pW2)); e("s_and_b32 s%d, s%d, 0xffff" % (sWS + 1, pW2 + 1))
        e("s_mov_b32 s%d, 0" % sWoff); e("s_mov_b32 s%d, 0" % sWstep); e("v_mov_b32 v45, 0")
        e("s_cmp_eq_u32 s%d, 0" % sPass); e("s_cbranch_scc0 %s" % d)
        e("s_cmp_eq_u32 s%d, 2" % sRole); e("s_cbranch_scc1 %s" % lb)
        e("s_cmp_eq_u32 s%d, 3" % sRole); e("s_cbranch_scc0 %s" % d)
        e("s_mov_b32 s%d, %d" % (sWS + 2, 1792 * 896))
        e("v_mul_u32_u24 v45, 896, v%d" % vL)
        e("s_and_b32 s%d, s%d, 3" % (sT0, sIdx)); e("s_mul_i32 s%d, s%d, 448" % (sT0, sT0)); e("s_lshl_b32 s%d, s%d, 7" % (sT1, sWave)); e("s_add_u32 s%d, s%d, s%d" % (sT0, sT0, sT1))
        e("s_mul_i32 s%d, s%d, 896" % (sWoff, sT0)); e("s_lshr_b32 s%d, s%d, 2" % (sT1, sIdx)); e("s_lshl_b32 s%d, s%d, 7" % (sT1, sT1)); e("s_add_u32 s%d, s%d, s%d" % (sWoff, sWoff, sT1))
        e("s_mov_b32 s%d, %d" % (sWstep, 64 * 896))
        e("s_branch %s" % d)
        self.lab(lb)
        e("s_bitcmp1_b32 s%d, 0" % sIdx)
        e("s_cselect_b32 s%d, s%d, s%d" % (sWS, pW3, pW1)); e("s_cselect_b32 s%d, s%d, s%d" % (sWS + 1, pW3 + 1, pW1 + 1))
        e("s_and_b32 s%d, s%d, 0xffff" % (sWS + 1, sWS + 1))
        e("s_mov_b32 s%d, %d" % (sWS + 2, 448 * 3584))
        e("v_mul_u32_u24 v45, 3584, v%d" % vL)
        e("s_lshl_b32 s%d, s%d, 7" % (sT1, sWave)); e("s_mul_i32 s%d, s%d, 3584" % (sWoff, sT1))
        e("s_lshr_b32 s%d, s%d, 1" % (sT1, sIdx)); e("s_lshl_b32 s%d, s%d, 7" % (sT1, sT1)); e("s_add_u32 s%d, s%d, s%d" % (sWoff, sWoff, sT1))
        e("s_mov_b32 s%d, %d" % (sWstep, 64 * 3584))
        self.lab(d)

    def res_pair(self, m):
        e = self.e
        acc = lambda T4: vr(vACC + 4 * T4, 4)
        e("ds_read2_b64 v[32:35], v%d offset0:%d offset1:%d" % (vPa, 8 * m, 8 * m + 4))
        e("s_waitcnt lgkmcnt(0)")
        for u in range(4):
            A = 36 + 4 * (u & 1)
            for d in range(4):
                e("v_cndmask_b32 v%d, 0, v%d, %s" % (A + d, 32 + d, sp(sM[u])))
            self.nop(2)
            for T4 in range(4):
                e("v_mfma_f32_16x16x32_bf16 %s, %s, %s, %s" % (acc(T4), vr(A, 4), res_reg(m, 4 * T4 + u), acc(T4)))

    def combine_publish(self):
        e = self.e
        self.lab("L_gapcode")
        for u in range(4):
            X, Y, Z, W = (vACC + 4 * t + u for t in range(4))
            e("v_permlane16_swap_b32 v%d, v%d" % (X, Y))
            e("v_permlane16_swap_b32 v%d, v%d" % (Z, W))
        self.nop(2)
        for u in range(4):
            e("v_permlane32_swap_b32 v%d, v%d" % (vACC + u, vACC + 8 + u))
        e("v_lshrrev_b32 v32, 4, v%d" % vL); e("v_lshlrev_b32 v32, 8, v32")
        e("v_and_b32 v33, 15, v%d" % vL); e("v_lshl_add_u32 v32, v33, 2, v32")
        e("s_lshl_b32 s%d, s%d, 10" % (sT0, sWave)); e("s_add_u32 s%d, s%d, %d" % (sT0, sT0, L_P))
        e("v_add_u32 v32, s%d, v32" % sT0)
        for u in range(4):
            e("ds_write_b32 v32, v%d offset:%d" % (vACC + u, u * 64))
        e("s_lshl_b32 s%d, s%d, 2" % (sT0, sWave)); e("s_add_u32 s%d, s%d, %d" % (sT0, sT0, L_SM + 16))
        e("v_mov_b32 v33, s%d" % sT0)
        e("ds_write_b32 v33, v%d" % vLsum)
        e("s_waitcnt lgkmcnt(0)")
        e("s_barrier")
        e("s_lshl_b32 s%d, s%d, 8" % (sT0, sWave)); e("s_add_u32 s%d, s%d, %d" % (sT0, sT0, L_P))
        e("v_lshlrev_b32 v40, 2, v%d" % vL); e("v_add_u32 v32, s%d, v40" % sT0)
        for w in range(4):
            e("ds_read_b32 v%d, v32 offset:%d" % (34 + w, w * 1024))
        e("v_mov_b32 v33, %d" % (L_SM + 16))
        e("ds_read_b128 v[44:47], v33")
        e("s_waitcnt lgkmcnt(0)")
        e("v_add_f32 v34, v34, v35"); e("v_add_f32 v36, v36, v37"); e("v_add_f32 v34, v34, v36")
        e("v_add_f32 v44, v44, v45"); e("v_add_f32 v46, v46, v47"); e("v_add_f32 v44, v44, v46")
        e("v_mov_b32 v41, -2")
        e("v_min_u32 v34, v34, v41")
        e("v_and_b32 v42, 1, v%d" % vL); e("v_cmp_eq_u32 vcc, 1, v42"); self.nop(2)
        e("v_cndmask_b32 v43, v9, v44, vcc"); e("v_min_u32 v43, v43, v41")
        e("v_lshlrev_b32 v42, 2, v42"); e("v_add_u32 v42, 256, v42")
        e("s_lshl_b32 s%d, s%d, 2" % (sT0, sH)); e("s_add_u32 s%d, s%d, s%d" % (sT0, sT0, sWave)); e("s_lshl_b32 s%d, s%d, 4" % (sT0, sT0))
        e("s_add_u32 s%d, s%d, s%d" % (sT0, sT0, sC)); e("s_mul_i32 s%d, s%d, %d" % (sT0, sT0, M1_SLOT))
        e("s_mul_i32 s%d, s%d, 0x%x" % (sT1, sPass, M1_R))
        self.addr(sA, pWs, M1, [sT0, sT1])
        e("global_store_dword v40, v34, %s sc1" % sp(sA))
        e("global_store_dword v42, v43, %s sc1" % sp(sA))
        e("s_barrier")

    def topup(self, tp=None):
        e = self.e
        L = self.nl("Tu"); D = self.nl("Tud")
        e("s_cmp_eq_u32 s%d, 0" % sPass); e("s_cbranch_scc0 %s" % D)
        e("s_sub_u32 s%d, s%d, %d" % (sT5, sNS, self.R))
        self.lab(L)
        if tp is None:
            tp = int(self.o.get("tpace", 1))
        if tp:
            e("s_waitcnt vmcnt(%d)" % (4 * (tp - 1)))
        self.issue()
        e("s_sub_u32 s%d, s%d, 1" % (sT5, sT5))
        e("s_cmp_lg_u32 s%d, 0" % sT5); e("s_cbranch_scc1 %s" % L)
        if self.l2pf:
            e("v_and_b32 v5, 31, v%d" % vL); e("v_lshlrev_b32 v5, 7, v5"); e("v_add_u32 v5, 3072, v5")
            e("v_lshrrev_b32 v6, 5, v%d" % vL); e("v_mul_u32_u24 v6, %d, v6" % self.stride); e("v_add_u32 v6, v5, v6")
            e("s_mov_b32 s%d, s%d" % (sT5, sOff))
            for k in range(self.l2pf):
                e("buffer_load_dword v5, v6, %s, s%d offen%s" % (sp(sCUR, 4), sT5, self.l2pol))
                e("s_add_u32 s%d, s%d, %d" % (sT5, sT5, 2 * self.stride))
                if self.stag:
                    e("s_and_b32 s%d, s%d, 0x%x" % (sT5, sT5, 64 * self.stride - 1))
        self.lab(D)

    def stage_S1(self):
        e = self.e
        e("s_mul_i32 s%d, s%d, %d" % (sT0, sIdx, 16 * M1_SLOT)); e("s_mul_i32 s%d, s%d, 0x%x" % (sT1, sPass, M1_R))
        self.addr(sA, pWs, M1 + 2304, [sT0, sT1])
        e("v_lshrrev_b32 v10, 4, v%d" % vL); e("v_mul_u32_u24 v10, %d, v10" % M1_SLOT)
        e("v_and_b32 v11, 15, v%d" % vL); e("v_lshl_add_u32 v11, v11, 4, v10")
        e("v_add_u32 v10, 256, v10")
        loads = []; regs = []
        for j in range(4):
            off = j * 4 * M1_SLOT - 2304
            loads.append("global_load_dwordx4 v[%d:%d], v11, %s offset:%d sc1" % (32 + 4 * j, 35 + 4 * j, sp(sA), off))
            loads.append("global_load_dwordx2 v[%d:%d], v10, %s offset:%d sc1" % (48 + 2 * j, 49 + 2 * j, sp(sA), off))
        self.poll(loads, list(range(32, 56)), 56, "Ps1")
        self.stamp(8)
        e("v_max3_f32 v56, v48, v50, v52"); e("v_max_f32 v56, v56, v54")
        self.xrows(56, 57, "v_max_f32")
        e("s_mov_b32 s%d, 0x%x" % (sT0, C_EXP))
        for j in range(4):
            e("v_sub_f32 v%d, v%d, v56" % (48 + 2 * j, 48 + 2 * j))
        for j in range(4):
            e("v_mul_f32 v%d, s%d, v%d" % (48 + 2 * j, sT0, 48 + 2 * j))
        for j in range(4):
            e("v_exp_f32 v%d, v%d" % (48 + 2 * j, 48 + 2 * j))
        self.nop(1)
        e("v_mul_f32 v56, v48, v49")
        for j in range(1, 4):
            e("v_fmac_f32 v56, v%d, v%d" % (48 + 2 * j, 49 + 2 * j))
        for d in range(4):
            e("v_mul_f32 v%d, v48, v%d" % (32 + d, 32 + d))
        for j in range(1, 4):
            for d in range(4):
                e("v_fmac_f32 v%d, v%d, v%d" % (32 + d, 48 + 2 * j, 32 + 4 * j + d))
        self.xrows(56, 57, "v_add_f32")
        e("v_rcp_f32 v56, v56")
        e("v_permlane32_swap_b32 v32, v34"); e("v_permlane32_swap_b32 v33, v35"); self.nop(1)
        e("v_add_f32 v32, v32, v34"); e("v_add_f32 v33, v33, v35")
        e("v_mov_b32 v34, v32"); e("v_mov_b32 v35, v33"); self.nop(2)
        e("v_permlane16_swap_b32 v32, v34"); e("v_permlane16_swap_b32 v33, v35"); self.nop(1)
        e("v_add_f32 v32, v32, v34"); e("v_add_f32 v33, v33, v35")
        e("v_mul_f32 v32, v32, v56"); e("v_mul_f32 v33, v33, v56")
        e("v_cvt_pk_bf16_f32 v32, v32, v33")
        e("v_mov_b32 v41, -2"); e("v_min_u32 v32, v32, v41")
        e("v_and_b32 v34, 15, v%d" % vL); e("v_lshlrev_b32 v34, 3, v34")
        e("v_lshrrev_b32 v35, 5, v%d" % vL); e("v_lshl_add_u32 v34, v35, 2, v34"); e("v_add_u32 v34, s%d, v34" % sVec)
        e("ds_write_b32 v34, v32")
        if self.o.get("dbg_a"):
            e("s_lshl_b32 s%d, s%d, 13" % (sT0, sPass)); e("s_lshl_b32 s%d, s%d, 7" % (sT1, sIdx))
            self.addr(sA, pWs, 0xC0000, [sT0, sT1])
            e("v_subrev_u32 v35, s%d, v34" % sVec)
            e("global_store_dword v35, v32, %s" % sp(sA))
        self.lane_rc()
        e("v_lshlrev_b32 v6, 3, v10"); e("v_add_u32 v6, s%d, v6" % sVec)
        e("v_lshl_add_u32 v7, v10, 2, v11"); e("v_mul_u32_u24 v7, %d, v7" % O_ROW); e("v_lshl_add_u32 v7, v12, 3, v7")
        e("s_mul_i32 s%d, s%d, 224" % (sT0, sWave)); e("s_add_u32 s%d, s%d, %d" % (sT0, sT0, L_W)); e("v_add_u32 v7, s%d, v7" % sT0)
        e("s_waitcnt lgkmcnt(0)")
        e("ds_read2_b64 v[36:39], v6 offset0:0 offset1:4"); e("ds_read2_b64 v[40:43], v6 offset0:8 offset1:12")
        for c0 in range(0, 7, 2):
            cts = [c for c in (c0, c0 + 1) if c < 7]
            k = 0
            for ct in cts:
                for m in range(2):
                    e("ds_read_b64_tr_b16 v[%d:%d], v7 offset:%d" % (48 + 4 * k, 49 + 4 * k, m * 32 * O_ROW + ct * 32))
                    e("ds_read_b64_tr_b16 v[%d:%d], v7 offset:%d" % (50 + 4 * k, 51 + 4 * k, (m * 32 + 16) * O_ROW + ct * 32))
                    k += 1
            e("s_waitcnt lgkmcnt(0)")
            k = 0
            for ct in cts:
                for m in range(2):
                    c = "0" if m == 0 else vr(8 + 4 * ct, 4)
                    e("v_mfma_f32_16x16x32_bf16 %s, %s, %s, %s" % (vr(8 + 4 * ct, 4), vr(36 + 4 * m, 4), vr(48 + 4 * k, 4), c))
                    k += 1
        self.nop(8)
        for row in range(1, 4):
            e("s_mov_b32 exec_lo, 0x%x" % (0xffff0000 if row == 1 else 0))
            e("s_mov_b32 exec_hi, 0x%x" % (0 if row == 1 else (0xffff << (16 * (row - 2)))))
            e("v_mov_b32 v8, v%d" % (8 + 4 * row))
            if row < 3:
                e("v_mov_b32 v24, v%d" % (24 + 4 * row))
        e("s_mov_b64 exec, -1")
        e("v_mov_b32 v41, -2"); e("v_min_u32 v8, v8, v41"); e("v_min_u32 v24, v24, v41")
        e("s_mul_i32 s%d, s%d, %d" % (sT0, sIdx, M2_SLOT)); e("s_mul_i32 s%d, s%d, 0x%x" % (sT1, sPass, M2_R)); e("s_mul_i32 s%d, s%d, 448" % (sT2, sWave))
        self.addr(sA, pWs, M2, [sT0, sT1, sT2])
        e("v_lshlrev_b32 v40, 2, v%d" % vL)
        e("global_store_dword v40, v8, %s sc1" % sp(sA))
        e("s_mov_b32 exec_hi, 0xffff")
        e("global_store_dword v40, v24, %s offset:256 sc1" % sp(sA))
        e("s_mov_b64 exec, -1")
        self.stamp(9)

    def reduce_waves16(self, src):
        e = self.e
        e("v_and_b32 v14, 15, v%d" % vL); e("v_lshlrev_b32 v14, 2, v14")
        e("s_lshl_b32 s%d, s%d, 6" % (sT0, sWave)); e("s_add_u32 s%d, s%d, %d" % (sT0, sT0, L_RED))
        e("v_add_u32 v15, s%d, v14" % sT0)
        e("ds_write_b32 v15, v%d" % src)
        e("s_waitcnt lgkmcnt(0)")
        e("s_barrier")
        for w in range(4):
            e("ds_read_b32 v%d, v14 offset:%d" % (16 + w, L_RED + w * 64))
        e("s_waitcnt lgkmcnt(0)")
        e("v_add_f32 v16, v16, v17"); e("v_add_f32 v18, v18, v19"); e("v_add_f32 v8, v16, v18")

    def stage_R(self):
        e = self.e
        e("v_lshrrev_b32 v20, 4, v%d" % vL); e("v_lshlrev_b32 v20, 2, v20")
        e("s_cmp_eq_u32 s%d, 0" % sPass); e("s_cbranch_scc0 L_R_r1")
        e("s_lshl_b32 s%d, s%d, 4" % (sT0, sIdx))
        self.addr(sB, pX, 0, [sT0])
        e("s_branch L_R_r2")
        self.lab("L_R_r1")
        e("s_lshr_b32 s%d, s%d, 1" % (sT0, sIdx)); e("s_lshl_b32 s%d, s%d, 7" % (sT0, sT0))
        e("s_and_b32 s%d, s%d, 1" % (sT1, sIdx)); e("s_lshl_b32 s%d, s%d, 4" % (sT1, sT1))
        self.addr(sB, pWs, M5, [sT0, sT1])
        self.lab("L_R_r2")
        e("global_load_dword v21, v20, %s sc1" % sp(sB))
        e("s_lshl_b32 s%d, s%d, 5" % (sT0, sIdx)); e("s_mul_i32 s%d, s%d, 0x%x" % (sT1, sPass, M2_R))
        self.addr(sA, pWs, M2, [sT0, sT1])
        e("v_mul_u32_u24 v8, %d, v%d" % (M2_SLOT, vL))
        self.poll(["global_load_dwordx4 v[32:35], v8, %s sc1" % sp(sA),
                   "global_load_dwordx4 v[36:39], v8, %s offset:16 sc1" % sp(sA)], list(range(32, 40)), 40, "Pa")
        self.stamp(8)
        for d in range(4):
            e("v_permlane32_swap_b32 v%d, v%d" % (32 + d, 36 + d))
        self.nop(1)
        for d in range(4):
            e("v_add_f32 v%d, v%d, v%d" % (32 + d, 32 + d, 36 + d))
        self.nop(2)
        e("v_permlane16_swap_b32 v32, v34"); e("v_permlane16_swap_b32 v33, v35"); self.nop(1)
        e("v_add_f32 v32, v32, v34"); e("v_add_f32 v33, v33, v35")
        for n in (8, 4, 2, 1):
            self.nop(1)
            e("v_add_f32_dpp v32, v32, v32 row_ror:%d row_mask:0xf bank_mask:0xf" % n)
            e("v_add_f32_dpp v33, v33, v33 row_ror:%d row_mask:0xf bank_mask:0xf" % n)
        e("v_cvt_pk_bf16_f32 v34, v32, v33")
        e("v_lshlrev_b32 v32, 16, v34"); e("v_and_b32 v33, 0xffff0000, v34")
        e("v_lshlrev_b32 v35, 16, v21"); e("v_and_b32 v36, 0xffff0000, v21")
        e("v_add_f32 v32, v32, v35"); e("v_add_f32 v33, v33, v36")
        e("v_cvt_pk_bf16_f32 v34, v32, v33")
        e("v_mov_b32 v41, -2"); e("v_min_u32 v34, v34, v41")
        e("s_lshl_b32 s%d, s%d, 13" % (sT0, sPass)); e("s_lshl_b32 s%d, s%d, 7" % (sT1, sIdx))
        self.addr(sA, pWs, M3, [sT0, sT1])
        e("s_mov_b32 exec_lo, 0x00010001"); e("s_mov_b32 exec_hi, 0x00010001")
        e("global_store_dword v20, v34, %s sc1" % sp(sA))
        e("s_mov_b64 exec, -1")
        self.stamp(9)

    def gather_x(self, base_off, slot_shift_mode):
        e = self.e
        e("v_min_u32 v8, 55, v%d" % vL)
        if slot_shift_mode == "M3":
            e("v_lshlrev_b32 v8, 7, v8")
        else:
            e("v_and_b32 v9, 1, v8"); e("v_lshrrev_b32 v8, 1, v8"); e("v_lshlrev_b32 v8, 7, v8"); e("v_lshl_add_u32 v8, v9, 4, v8")
        self.poll(["global_load_dwordx4 v[32:35], v8, %s sc1" % sp(sA)], [32, 33, 34, 35], 36, "Px")

    def stage_B(self):
        e = self.e
        e("s_lshl_b32 s%d, s%d, 13" % (sT0, sPass))
        self.addr(sA, pWs, M3, [sT0])
        self.gather_x(M3, "M3")
        self.stamp(8)
        if self.gapw:
            e("s_barrier")
        self.layernorm_to_vec()
        self.lane_rc()
        e("v_lshlrev_b32 v6, 3, v10"); e("v_add_u32 v6, s%d, v6" % sVec)
        e("v_lshl_add_u32 v7, v10, 2, v11"); e("v_lshlrev_b32 v7, 6, v7")
        e("v_and_b32 v14, 1, v12"); e("v_lshl_add_u32 v7, v14, 3, v7")
        e("v_lshrrev_b32 v14, 1, v12"); e("v_mul_u32_u24 v14, %d, v14" % B_IMG3); e("v_add_u32 v7, v7, v14")
        e("s_lshl_b32 s%d, s%d, 4" % (sT0, sWave)); e("s_add_u32 s%d, s%d, %d" % (sT0, sT0, L_W)); e("v_add_u32 v7, s%d, v7" % sT0)
        self.gemv_chain(14, lambda m: (8 * m, 8 * m + 4), 2048, 1024)
        self.bf16r(8, 8, 9)
        self.nop(1)
        e("v_mov_b32_dpp v10, v8 row_ror:8 row_mask:0xf bank_mask:0xf")
        e("v_mul_f32 v11, 0xbfb8aa3b, v8")
        e("v_exp_f32 v11, v11"); self.nop(1)
        e("v_add_f32 v11, 1.0, v11")
        e("v_rcp_f32 v11, v11"); self.nop(1)
        e("v_mul_f32 v11, v8, v11")
        self.bf16r(11, 11, 12)
        e("v_mul_f32 v11, v11, v10")
        self.nop(1)
        e("v_mov_b32_dpp v12, v11 quad_perm:[1,0,3,2] row_mask:0xf bank_mask:0xf")
        e("v_cvt_pk_bf16_f32 v12, v11, v12")
        e("v_mov_b32 v14, -2"); e("v_min_u32 v12, v12, v14")
        e("s_lshl_b32 s%d, s%d, 13" % (sT0, sPass)); e("s_lshl_b32 s%d, s%d, 7" % (sT1, sIdx)); e("s_lshl_b32 s%d, s%d, 4" % (sT2, sWave))
        self.addr(sA, pWs, M4, [sT0, sT1, sT2])
        e("v_lshlrev_b32 v14, 1, v%d" % vL)
        e("s_mov_b64 exec, 0x55")
        e("global_store_dword v14, v12, %s sc1" % sp(sA))
        e("s_mov_b64 exec, -1")

    def stage_C(self):
        e = self.e
        e("s_lshl_b32 s%d, s%d, 13" % (sT0, sPass)); e("s_lshl_b32 s%d, s%d, 8" % (sT1, sIdx))
        self.addr(sB, pWs, M3, [sT0, sT1])
        e("v_bfe_u32 v20, v%d, 3, 1" % vL); e("v_lshlrev_b32 v20, 7, v20")
        e("v_bfe_u32 v21, v%d, 1, 2" % vL); e("v_lshl_add_u32 v20, v21, 2, v20")
        self.poll(["global_load_dword v22, v20, %s sc1" % sp(sB)], [22], 23, "Pr")
        e("s_lshl_b32 s%d, s%d, 13" % (sT0, sPass)); e("s_mul_i32 s%d, s%d, %d" % (sT1, sWave, 14 * 128))
        self.addr(sA, pWs, M4, [sT0, sT1])
        e("v_min_u32 v8, 55, v%d" % vL)
        e("v_and_b32 v9, 3, v8"); e("v_lshrrev_b32 v8, 2, v8"); e("v_lshlrev_b32 v8, 7, v8"); e("v_lshl_add_u32 v8, v9, 4, v8")
        self.poll(["global_load_dwordx4 v[32:35], v8, %s sc1" % sp(sA)], [32, 33, 34, 35], 36, "Ph")
        self.stamp(8)
        e("v_lshlrev_b32 v8, 4, v%d" % vL); e("v_add_u32 v8, s%d, v8" % sVec)
        e("ds_write_b128 v8, v[32:35]")
        self.lane_rc()
        e("v_lshlrev_b32 v6, 3, v10"); e("v_add_u32 v6, s%d, v6" % sVec)
        e("s_mul_i32 s%d, s%d, %d" % (sT0, sWave, C_WAVE)); e("s_add_u32 s%d, s%d, %d" % (sT0, sT0, L_W))
        e("v_lshl_add_u32 v7, v10, 2, v11"); e("v_lshlrev_b32 v7, 5, v7"); e("v_lshl_add_u32 v7, v12, 3, v7"); e("v_add_u32 v7, s%d, v7" % sT0)
        e("s_waitcnt lgkmcnt(0)")
        self.gemv_chain(14, lambda m: (8 * m, 8 * m + 4), 1024, 512)
        self.reduce_waves16(8)
        e("s_cmp_eq_u32 s%d, 0" % sWave); e("s_cbranch_scc0 L_C_done")
        self.bf16r(8, 8, 9)
        e("v_and_b32 v23, 1, v%d" % vL); e("v_cmp_eq_u32 vcc, 1, v23")
        e("v_lshlrev_b32 v23, 16, v22"); e("v_and_b32 v22, 0xffff0000, v22")
        e("v_cndmask_b32 v22, v23, v22, vcc")
        e("v_add_f32 v8, v8, v22")
        self.nop(1)
        e("v_mov_b32_dpp v9, v8 quad_perm:[1,0,3,2] row_mask:0xf bank_mask:0xf")
        e("v_cvt_pk_bf16_f32 v9, v8, v9")
        e("v_lshlrev_b32 v14, 1, v%d" % vL)
        e("s_cmp_eq_u32 s%d, 0" % sPass); e("s_cbranch_scc0 L_C_out")
        e("v_mov_b32 v15, -2"); e("v_min_u32 v9, v9, v15")
        e("s_lshl_b32 s%d, s%d, 7" % (sT1, sIdx))
        self.addr(sA, pWs, M5, [sT1])
        e("s_mov_b64 exec, 0x5555")
        e("global_store_dword v14, v9, %s sc1" % sp(sA))
        e("s_mov_b64 exec, -1")
        e("s_branch L_C_done")
        self.lab("L_C_out")
        e("s_lshl_b32 s%d, s%d, 5" % (sT1, sIdx))
        self.addr(sA, pOut, 0, [sT1])
        e("s_mov_b64 exec, 0x5555")
        e("global_store_dword v14, v9, %s" % sp(sA))
        e("s_mov_b64 exec, -1")
        self.lab("L_C_done")


    def poll2(self, mk_loads, n, sets, dst, name="Q"):
        e = self.e
        A, B = sets
        nl = len(mk_loads(A))
        L = self.nl(name); DA = self.nl(name + "a"); DB = self.nl(name + "b"); D = self.nl(name + "d")
        def check(base, target):
            rr = list(range(base, base + n))
            t = self.ptmp
            if n == 1:
                t = base
            else:
                if n >= 3:
                    e("v_max3_u32 v%d, v%d, v%d, v%d" % (t, rr[0], rr[1], rr[2])); rr = rr[3:]
                else:
                    e("v_max_u32 v%d, v%d, v%d" % (t, rr[0], rr[1])); rr = rr[2:]
                while rr:
                    if len(rr) >= 2:
                        e("v_max3_u32 v%d, v%d, v%d, v%d" % (t, t, rr[0], rr[1])); rr = rr[2:]
                    else:
                        e("v_max_u32 v%d, v%d, v%d" % (t, t, rr[0])); rr = rr[1:]
            e("v_cmp_eq_u32 vcc, -1, v%d" % t)
            e("s_cbranch_vccz %s" % target)
        e("s_mov_b32 s%d, 0" % sSpin)
        for ld in mk_loads(A): e(ld)
        self.lab(L)
        for ld in mk_loads(B): e(ld)
        e("s_waitcnt vmcnt(%d)" % nl)
        check(A, DA)
        for ld in mk_loads(A): e(ld)
        e("s_waitcnt vmcnt(%d)" % nl)
        check(B, DB)
        e("s_add_u32 s%d, s%d, 1" % (sSpin, sSpin))
        e("s_cmp_lt_u32 s%d, %d" % (sSpin, SPIN_LIMIT))
        e("s_cbranch_scc1 %s" % L)
        e("s_waitcnt vmcnt(0)")
        self.lab(DA)
        for i in range(n): e("v_mov_b32 v%d, v%d" % (dst + i, A + i))
        e("s_branch %s" % D)
        self.lab(DB)
        for i in range(n): e("v_mov_b32 v%d, v%d" % (dst + i, B + i))
        self.lab(D)

    ptmp = 31

    def rc2(self):
        e = self.e
        e("v_lshrrev_b32 v28, 4, v%d" % vL); e("v_bfe_u32 v29, v%d, 2, 2" % vL); e("v_and_b32 v30, 3, v%d" % vL)

    @property
    def NPRE(self):
        return 7 if self.o.get('stamps') else 8

    def breg(self, m):
        return 32 + 4 * (m % self.NPRE)

    def b_issue(self, lq, m, b_step, b_second):
        r = self.breg(m)
        lq.issue("ds_read_b64_tr_b16 v[%d:%d], v7 offset:%d" % (r, r + 1, m * b_step), ("B", m))
        lq.issue("ds_read_b64_tr_b16 v[%d:%d], v7 offset:%d" % (r + 2, r + 3, m * b_step + b_second), ("B", m))

    def chain2(self, lq, n, b_step, b_second, acc=16):
        e = self.e
        Ab = [20, 24, 28]
        def a_issue(m):
            lq.issue("ds_read2_b64 v[%d:%d], v6 offset0:%d offset1:%d" % (Ab[m % 3], Ab[m % 3] + 3, 8 * m, 8 * m + 4), ("A", m))
        for m in range(3):
            a_issue(m)
        for m in range(n):
            lq.wait([("A", m), ("B", m)])
            c = "0" if m == 0 else vr(acc, 4)
            e("v_mfma_f32_16x16x32_bf16 %s, %s, %s, %s" % (vr(acc, 4), vr(Ab[m % 3], 4), vr(self.breg(m), 4), c))
            if m + 3 < n:
                a_issue(m + 3)
            if m + self.NPRE < n:
                self.b_issue(lq, m + self.NPRE, b_step, b_second)
        self.nop(8)

    def ln2(self):
        e = self.e
        F = 20
        e("v_cmp_gt_u32 vcc, 56, v%d" % vL)
        for d in range(4):
            e("v_lshlrev_b32 v%d, 16, v%d" % (F + 2 * d, 16 + d))
            e("v_and_b32 v%d, 0xffff0000, v%d" % (F + 2 * d + 1, 16 + d))
        e("v_pk_add_f32 v[28:29], v[20:21], v[22:23]")
        e("v_pk_mul_f32 v[30:31], v[20:21], v[20:21]")
        e("v_pk_add_f32 v[16:17], v[24:25], v[26:27]")
        e("v_pk_fma_f32 v[30:31], v[22:23], v[22:23], v[30:31]")
        e("v_pk_add_f32 v[28:29], v[28:29], v[16:17]")
        e("v_pk_fma_f32 v[30:31], v[24:25], v[24:25], v[30:31]")
        e("v_add_f32 v28, v28, v29")
        e("v_pk_fma_f32 v[30:31], v[26:27], v[26:27], v[30:31]")
        e("v_cndmask_b32 v28, 0, v28, vcc")
        e("v_add_f32 v30, v30, v31")
        e("v_cndmask_b32 v30, 0, v30, vcc")
        for n in (8, 4, 2, 1):
            self.nop(1)
            e("v_add_f32_dpp v28, v28, v28 row_ror:%d row_mask:0xf bank_mask:0xf" % n)
            e("v_add_f32_dpp v30, v30, v30 row_ror:%d row_mask:0xf bank_mask:0xf" % n)
        for sw in ("v_permlane16_swap_b32", "v_permlane32_swap_b32"):
            e("v_mov_b32 v29, v28"); e("v_mov_b32 v31, v30"); self.nop(1)
            e("%s v28, v29" % sw); e("%s v30, v31" % sw)
            e("v_add_f32 v28, v28, v29"); e("v_add_f32 v30, v30, v31")
        e("v_mul_f32 v28, 0x3b124925, v28")
        e("v_mul_f32 v30, 0x3b124925, v30")
        e("v_cvt_pk_bf16_f32 v29, v28, v28")
        e("v_fma_f32 v30, -v28, v28, v30")
        e("v_and_b32 v28, 0xffff0000, v29")
        e("v_max_f32 v30, 0, v30")
        e("v_cvt_pk_bf16_f32 v31, v30, v30")
        e("v_pk_add_f32 v[20:21], v[20:21], v[28:29] op_sel_hi:[1,0] neg_lo:[0,1] neg_hi:[0,1]")
        e("v_and_b32 v30, 0xffff0000, v31")
        e("v_pk_add_f32 v[22:23], v[22:23], v[28:29] op_sel_hi:[1,0] neg_lo:[0,1] neg_hi:[0,1]")
        e("v_add_f32 v30, 0x3727c5ac, v30")
        e("v_pk_add_f32 v[24:25], v[24:25], v[28:29] op_sel_hi:[1,0] neg_lo:[0,1] neg_hi:[0,1]")
        e("v_cvt_pk_bf16_f32 v31, v30, v30")
        e("v_pk_add_f32 v[26:27], v[26:27], v[28:29] op_sel_hi:[1,0] neg_lo:[0,1] neg_hi:[0,1]")
        e("v_and_b32 v30, 0xffff0000, v31")
        e("v_cvt_pk_bf16_f32 v16, v20, v21")
        e("v_sqrt_f32 v30, v30")
        e("v_cvt_pk_bf16_f32 v17, v22, v23")
        e("v_cvt_pk_bf16_f32 v18, v24, v25")
        e("v_cvt_pk_bf16_f32 v31, v30, v30")
        e("v_cvt_pk_bf16_f32 v19, v26, v27")
        e("v_and_b32 v30, 0xffff0000, v31")
        e("v_lshlrev_b32 v20, 16, v16")
        e("v_rcp_f32 v30, v30")
        e("v_and_b32 v21, 0xffff0000, v16")
        for d in range(1, 4):
            e("v_lshlrev_b32 v%d, 16, v%d" % (F + 2 * d, 16 + d))
            e("v_and_b32 v%d, 0xffff0000, v%d" % (F + 2 * d + 1, 16 + d))
        for d in range(4):
            e("v_pk_mul_f32 v[%d:%d], v[%d:%d], v[30:31] op_sel_hi:[1,0]" % (F + 2 * d, F + 2 * d + 1, F + 2 * d, F + 2 * d + 1))
        for d in range(4):
            e("v_cvt_pk_bf16_f32 v%d, v%d, v%d" % (16 + d, F + 2 * d, F + 2 * d + 1))
        e("ds_write_b128 v5, v[16:19]")
        e("s_waitcnt lgkmcnt(0)")

    def prepBD(self, role):
        e = self.e
        self.rc2()
        e("v_lshlrev_b32 v6, 3, v28"); e("v_add_u32 v6, s%d, v6" % sVec)
        e("v_lshlrev_b32 v5, 4, v%d" % vL); e("v_add_u32 v5, s%d, v5" % sVec)
        e("v_lshl_add_u32 v7, v28, 2, v29")
        if role == "D":
            e("v_bfe_u32 v31, v7, 1, 2"); e("v_xor_b32 v31, s%d, v31" % sWave)
            e("v_lshlrev_b32 v7, 7, v7"); e("v_lshl_add_u32 v7, v31, 5, v7"); e("v_lshl_add_u32 v7, v30, 3, v7"); e("v_add_u32 v7, %d, v7" % L_W)
            st = (4096, 2048)
        elif role == "B":
            e("v_lshlrev_b32 v7, 6, v7")
            e("v_and_b32 v31, 1, v30"); e("v_lshl_add_u32 v7, v31, 3, v7")
            e("v_lshrrev_b32 v31, 1, v30"); e("v_mul_u32_u24 v31, %d, v31" % B_IMG3); e("v_add_u32 v7, v7, v31")
            e("s_lshl_b32 s%d, s%d, 4" % (sT0, sWave)); e("s_add_u32 s%d, s%d, %d" % (sT0, sT0, L_W)); e("v_add_u32 v7, s%d, v7" % sT0)
            st = (2048, 1024)
        else:
            e("s_mul_i32 s%d, s%d, %d" % (sT0, sWave, C_WAVE)); e("s_add_u32 s%d, s%d, %d" % (sT0, sT0, L_W))
            e("v_lshlrev_b32 v7, 5, v7"); e("v_lshl_add_u32 v7, v30, 3, v7"); e("v_add_u32 v7, s%d, v7" % sT0)
            st = (1024, 512)
        lq = LQ(self)
        for m in range(self.NPRE):
            self.b_issue(lq, m, st[0], st[1])
        return lq, st

    def poll_x2(self, mode):
        e = self.e
        e("v_min_u32 v19, 55, v%d" % vL)
        if mode == "M3":
            e("v_lshlrev_b32 v19, 7, v19")
        else:
            e("v_and_b32 v18, 1, v19"); e("v_lshrrev_b32 v19, 1, v19"); e("v_lshlrev_b32 v19, 7, v19"); e("v_lshl_add_u32 v19, v18, 4, v19")
        e("v_mov_b32 v29, v19")
        self.poll2(lambda b: ["global_load_dwordx4 v[%d:%d], v29, %s sc1" % (b, b + 3, sp(sA))], 4, (8, 12), 16, "Qx")

    def publish_pairs(self, val, tmp, base_pair, off_vreg, mask):
        e = self.e
        e("v_mov_b32_dpp v%d, v%d quad_perm:[1,0,3,2] row_mask:0xf bank_mask:0xf" % (tmp, val))
        e("v_cvt_pk_bf16_f32 v%d, v%d, v%d" % (tmp, val, tmp))
        e("v_min_u32 v%d, v%d, v%d" % (tmp, tmp, 27))
        e("s_mov_b64 exec, 0x%x" % mask)
        e("global_store_dword v%d, v%d, %s sc1" % (off_vreg, tmp, sp(base_pair)))
        e("s_mov_b64 exec, -1")

    def stageD2_prep(self):
        self.lqD, self.stD = self.prepBD("D")

    def stageD2_rest(self):
        e = self.e
        lq = LQ(self); lq.q = [("B", m) for m in range(self.NPRE) for _ in range(2)]
        self.ln2(); lq.q = []
        self.chain2(lq, 14, 4096, 2048)
        e("v_mov_b32 v27, -2"); e("v_lshlrev_b32 v26, 1, v%d" % vL)
        self.publish_pairs(16, 25, sB, 26, 0x5555)

    def stage_B2(self):
        e = self.e
        e("s_waitcnt vmcnt(0)"); e("s_barrier")
        self.stamp(11)
        lq, st = self.prepBD("B")
        e("s_lshl_b32 s%d, s%d, 13" % (sT0, sPass)); e("s_lshl_b32 s%d, s%d, 7" % (sT1, sIdx)); e("s_lshl_b32 s%d, s%d, 4" % (sT2, sWave))
        self.addr(sB, pWs, M4, [sT0, sT1, sT2])
        self.addr(sA, pWs, M3, [sT0])
        self.poll_x2("M3")
        self.stamp(8)
        self.ln2(); lq.q = []
        self.chain2(lq, 14, st[0], st[1])
        e("v_cvt_pk_bf16_f32 v17, v16, v16"); e("v_and_b32 v16, 0xffff0000, v17")
        e("v_mul_f32 v19, 0xbfb8aa3b, v16")
        e("v_exp_f32 v19, v19")
        e("v_mov_b32_dpp v18, v16 row_ror:8 row_mask:0xf bank_mask:0xf")
        e("v_add_f32 v19, 1.0, v19")
        e("v_rcp_f32 v19, v19"); e("v_mov_b32 v27, -2")
        e("v_mul_f32 v19, v16, v19")
        e("v_cvt_pk_bf16_f32 v17, v19, v19"); e("v_and_b32 v19, 0xffff0000, v17")
        e("v_mul_f32 v19, v19, v18")
        e("v_lshlrev_b32 v26, 1, v%d" % vL); self.nop(1)
        self.publish_pairs(19, 25, sB, 26, 0x55)
        self.stamp(9)
        e("s_waitcnt vmcnt(1)")

    def stage_C2(self):
        e = self.e
        e("s_waitcnt vmcnt(0)")
        self.stamp(11)
        lq, st = self.prepBD("C")
        e("s_lshl_b32 s%d, s%d, 13" % (sT0, sPass)); e("s_lshl_b32 s%d, s%d, 8" % (sT1, sIdx))
        self.addr(sB, pWs, M3, [sT0, sT1])
        e("v_bfe_u32 v20, v%d, 3, 1" % vL); e("v_lshlrev_b32 v20, 7, v20")
        e("v_bfe_u32 v21, v%d, 1, 2" % vL); e("v_lshl_add_u32 v20, v21, 2, v20")
        self.poll(["global_load_dword v22, v20, %s sc1" % sp(sB)], [22], 23, "Pr")
        self.stamp(12)
        e("v_and_b32 v23, 1, v%d" % vL); e("v_cmp_eq_u32 vcc, 1, v23")
        e("v_lshlrev_b32 v23, 16, v22"); e("v_and_b32 v22, 0xffff0000, v22")
        e("v_cndmask_b32 v22, v23, v22, vcc")
        e("v_and_b32 v23, 15, v%d" % vL); e("v_lshlrev_b32 v23, 2, v23")
        e("ds_write_b32 v23, v22 offset:%d" % (L_RED + 256))
        lq.q.append(("S", 0))
        e("s_lshl_b32 s%d, s%d, 13" % (sT0, sPass)); e("s_mul_i32 s%d, s%d, %d" % (sT1, sWave, 14 * 128))
        self.addr(sA, pWs, M4, [sT0, sT1])
        e("v_min_u32 v29, 55, v%d" % vL)
        e("v_and_b32 v28, 3, v29"); e("v_lshrrev_b32 v29, 2, v29"); e("v_lshlrev_b32 v29, 7, v29"); e("v_lshl_add_u32 v29, v28, 4, v29")
        e("s_cmp_eq_u32 s%d, 0" % sPass)
        e("s_lshl_b32 s%d, s%d, 7" % (sT1, sIdx)); e("s_lshl_b32 s%d, s%d, 5" % (sT2, sIdx))
        lo = self.nl("Lco"); ld = self.nl("Lcod")
        e("s_cmp_eq_u32 s%d, 0" % sPass); e("s_cbranch_scc0 %s" % lo)
        self.addr(sB, pWs, M5, [sT1]); e("s_branch %s" % ld)
        self.lab(lo); self.addr(sB, pOut, 0, [sT2]); self.lab(ld)
        self.poll2(lambda b: ["global_load_dwordx4 v[%d:%d], v29, %s sc1" % (b, b + 3, sp(sA))], 4, (8, 12), 16, "Qh")
        self.stamp(8)
        e("ds_write_b128 v5, v[16:19]")
        e("s_waitcnt lgkmcnt(0)"); lq.q = []
        self.chain2(lq, 14, st[0], st[1])
        e("v_and_b32 v20, 15, v%d" % vL); e("v_lshlrev_b32 v20, 2, v20")
        e("s_lshl_b32 s%d, s%d, 6" % (sT0, sWave)); e("s_add_u32 s%d, s%d, %d" % (sT0, sT0, L_RED))
        e("v_add_u32 v21, s%d, v20" % sT0)
        e("ds_write_b32 v21, v16")
        e("s_waitcnt lgkmcnt(0)")
        e("s_barrier")
        lz = self.nl("Lcz")
        e("s_cmp_eq_u32 s%d, 0" % sWave); e("s_cbranch_scc0 %s" % lz)
        for w in range(4):
            e("ds_read_b32 v%d, v20 offset:%d" % (22 + w, L_RED + w * 64))
        e("ds_read_b32 v21, v20 offset:%d" % (L_RED + 256))
        e("v_mov_b32 v27, -2"); e("v_lshlrev_b32 v26, 1, v%d" % vL)
        e("s_waitcnt lgkmcnt(0)")
        e("v_add_f32 v22, v22, v23"); e("v_add_f32 v24, v24, v25"); e("v_add_f32 v16, v22, v24")
        e("v_cvt_pk_bf16_f32 v17, v16, v16"); e("v_and_b32 v16, 0xffff0000, v17")
        e("v_add_f32 v16, v16, v21")
        self.nop(1)
        self.publish_pairs(16, 25, sB, 26, 0x5555)
        le = self.nl("Lce")
        self.stamp(9)
        e("s_waitcnt vmcnt(1)"); e("s_branch %s" % le)
        self.lab(lz)
        e("s_waitcnt vmcnt(0)")
        self.lab(le)


    def stage_O2(self):
        e = self.e
        self.rc2()
        e("v_lshlrev_b32 v6, 3, v28"); e("v_add_u32 v6, s%d, v6" % sVec)
        e("v_lshl_add_u32 v7, v28, 2, v29"); e("v_mul_u32_u24 v7, %d, v7" % O_ROW); e("v_lshl_add_u32 v7, v30, 3, v7")
        e("s_mul_i32 s%d, s%d, 224" % (sT0, sWave)); e("s_add_u32 s%d, s%d, %d" % (sT0, sT0, L_W)); e("v_add_u32 v7, s%d, v7" % sT0)
        e("v_and_b32 v5, 15, v%d" % vL); e("v_lshlrev_b32 v5, 3, v5")
        e("v_lshrrev_b32 v9, 5, v%d" % vL); e("v_lshl_add_u32 v5, v9, 2, v5"); e("v_add_u32 v5, s%d, v5" % sVec)
        e("s_mul_i32 s%d, s%d, %d" % (sT0, sIdx, M2_SLOT)); e("s_mul_i32 s%d, s%d, 0x%x" % (sT1, sPass, M2_R)); e("s_mul_i32 s%d, s%d, 448" % (sT2, sWave))
        self.addr(sB, pWs, M2, [sT0, sT1, sT2])
        e("s_mul_i32 s%d, s%d, %d" % (sT0, sIdx, 16 * M1_SLOT)); e("s_mul_i32 s%d, s%d, 0x%x" % (sT1, sPass, M1_R))
        self.addr(sA, pWs, M1 + 2304, [sT0, sT1])
        e("v_mul_u32_u24 v10, %d, v28" % M1_SLOT)
        e("v_and_b32 v11, 15, v%d" % vL); e("v_lshl_add_u32 v11, v11, 4, v10")
        e("v_add_u32 v10, 256, v10")
        e("s_mov_b32 s%d, 0x%x" % (sT3, C_EXP))
        loads = []
        for j in range(4):
            off = j * 4 * M1_SLOT - 2304
            loads.append("global_load_dwordx2 v[%d:%d], v10, %s offset:%d sc1" % (48 + 2 * j, 49 + 2 * j, sp(sA), off))
            loads.append("global_load_dwordx4 v[%d:%d], v11, %s offset:%d sc1" % (32 + 4 * j, 35 + 4 * j, sp(sA), off))
        self.poll(loads, list(range(32, 56)), 56, "Ps1")
        self.stamp(8)
        e("v_max3_f32 v56, v48, v50, v52"); e("v_max_f32 v56, v56, v54")
        for sw in ("v_permlane16_swap_b32", "v_permlane32_swap_b32"):
            e("v_mov_b32 v57, v56"); self.nop(2); e("%s v56, v57" % sw); e("v_max_f32 v56, v56, v57")
        for j in range(4):
            e("v_sub_f32 v%d, v%d, v56" % (48 + 2 * j, 48 + 2 * j))
        for j in range(4):
            e("v_mul_f32 v%d, s%d, v%d" % (48 + 2 * j, sT3, 48 + 2 * j))
        for j in range(4):
            e("v_exp_f32 v%d, v%d" % (48 + 2 * j, 48 + 2 * j))
        self.nop(1)
        e("v_mul_f32 v56, v48, v49")
        e("v_pk_mul_f32 v[32:33], v[32:33], v[48:49] op_sel_hi:[1,0]"); e("v_pk_mul_f32 v[34:35], v[34:35], v[48:49] op_sel_hi:[1,0]")
        for j in range(1, 4):
            e("v_fmac_f32 v56, v%d, v%d" % (48 + 2 * j, 49 + 2 * j))
            e("v_pk_fma_f32 v[32:33], v[%d:%d], v[%d:%d], v[32:33] op_sel_hi:[1,0,1]" % (32 + 4 * j, 33 + 4 * j, 48 + 2 * j, 49 + 2 * j))
            e("v_pk_fma_f32 v[34:35], v[%d:%d], v[%d:%d], v[34:35] op_sel_hi:[1,0,1]" % (34 + 4 * j, 35 + 4 * j, 48 + 2 * j, 49 + 2 * j))
        e("v_mov_b32 v57, v56"); self.nop(1)
        e("v_permlane32_swap_b32 v32, v34"); e("v_permlane32_swap_b32 v33, v35"); e("v_permlane32_swap_b32 v56, v57")
        e("v_add_f32 v32, v32, v34"); e("v_add_f32 v33, v33, v35"); e("v_add_f32 v56, v56, v57")
        e("v_mov_b32 v34, v32"); e("v_mov_b32 v35, v33"); e("v_mov_b32 v57, v56"); self.nop(1)
        e("v_permlane16_swap_b32 v32, v34"); e("v_permlane16_swap_b32 v33, v35"); e("v_permlane16_swap_b32 v56, v57")
        e("v_add_f32 v56, v56, v57"); e("v_add_f32 v32, v32, v34"); e("v_rcp_f32 v56, v56"); e("v_add_f32 v33, v33, v35")
        self.nop(1)
        e("v_pk_mul_f32 v[32:33], v[32:33], v[56:57] op_sel_hi:[1,0]")
        e("v_cvt_pk_bf16_f32 v32, v32, v33")
        lq = LQ(self)
        lq.issue("ds_write_b32 v5, v32", "W")
        if self.o.get("dbg_a"):
            e("s_lshl_b32 s%d, s%d, 13" % (sT0, sPass)); e("s_lshl_b32 s%d, s%d, 7" % (sT1, sIdx))
            self.addr(sA, pWs, 0xC0000, [sT0, sT1])
            e("v_subrev_u32 v35, s%d, v5" % sVec)
            e("global_store_dword v35, v32, %s" % sp(sA))
        steps = [(ct, m) for ct in range(7) for m in range(2)]
        def b_iss(k):
            ct, m = steps[k]; r = 44 + 4 * (k % 5)
            lq.issue("ds_read_b64_tr_b16 v[%d:%d], v7 offset:%d" % (r, r + 1, m * 32 * O_ROW + ct * 32), ("B", k))
            lq.issue("ds_read_b64_tr_b16 v[%d:%d], v7 offset:%d" % (r + 2, r + 3, (m * 32 + 16) * O_ROW + ct * 32), ("B", k))
        for k in range(5):
            b_iss(k)
        lq.wait(["W"])
        lq.issue("ds_read2_b64 v[36:39], v6 offset0:0 offset1:4", "A"); lq.issue("ds_read2_b64 v[40:43], v6 offset0:8 offset1:12", "A")
        for k, (ct, m) in enumerate(steps):
            lq.wait([("B", k), "A"])
            acc = [12, 16, 20, 24, 28, 32, 8][ct]
            c = "0" if m == 0 else vr(acc, 4)
            e("v_mfma_f32_16x16x32_bf16 %s, %s, %s, %s" % (vr(acc, 4), vr(36 + 4 * m, 4), vr(44 + 4 * (k % 5), 4), c))
            if k + 5 < len(steps):
                b_iss(k + 5)
        self.nop(8)
        for row in range(1, 4):
            e("s_mov_b32 exec_lo, 0x%x" % (0xffff0000 if row == 1 else 0))
            e("s_mov_b32 exec_hi, 0x%x" % (0 if row == 1 else (0xffff << (16 * (row - 2)))))
            e("v_mov_b32 v12, v%d" % (12 + 4 * row))
            if row < 3:
                e("v_mov_b32 v28, v%d" % (32 if row == 1 else 8))
        e("s_mov_b64 exec, -1")
        e("v_mov_b32 v41, -2"); e("v_lshlrev_b32 v42, 2, v%d" % vL); e("v_min_u32 v12, v12, v41"); e("v_min_u32 v28, v28, v41")
        e("global_store_dword v42, v12, %s sc1" % sp(sB))
        e("s_mov_b32 exec_hi, 0xffff")
        e("global_store_dword v42, v28, %s offset:256 sc1" % sp(sB))
        e("s_mov_b64 exec, -1")
        self.stamp(9)

    def stage_R2(self):
        e = self.e
        e("v_lshrrev_b32 v24, 4, v%d" % vL); e("v_lshlrev_b32 v24, 2, v24")
        e("s_cmp_eq_u32 s%d, 0" % sPass); e("s_cbranch_scc0 L_R_r1")
        e("s_lshl_b32 s%d, s%d, 4" % (sT0, sIdx))
        self.addr(sB, pX, 0, [sT0])
        e("s_branch L_R_r2")
        self.lab("L_R_r1")
        e("s_lshr_b32 s%d, s%d, 1" % (sT0, sIdx)); e("s_lshl_b32 s%d, s%d, 7" % (sT0, sT0))
        e("s_and_b32 s%d, s%d, 1" % (sT1, sIdx)); e("s_lshl_b32 s%d, s%d, 4" % (sT1, sT1))
        self.addr(sB, pWs, M5, [sT0, sT1])
        self.lab("L_R_r2")
        e("global_load_dword v25, v24, %s sc1" % sp(sB))
        e("s_lshl_b32 s%d, s%d, 13" % (sT0, sPass)); e("s_lshl_b32 s%d, s%d, 7" % (sT1, sIdx))
        self.addr(sB, pWs, M3, [sT0, sT1])
        e("s_lshl_b32 s%d, s%d, 5" % (sT0, sIdx)); e("s_mul_i32 s%d, s%d, 0x%x" % (sT1, sPass, M2_R))
        self.addr(sA, pWs, M2, [sT0, sT1])
        e("v_mul_u32_u24 v29, %d, v%d" % (M2_SLOT, vL)); e("v_mov_b32 v41, -2")
        self.poll2(lambda b: ["global_load_dwordx4 v[%d:%d], v29, %s sc1" % (b, b + 3, sp(sA)),
                              "global_load_dwordx4 v[%d:%d], v29, %s offset:16 sc1" % (b + 4, b + 7, sp(sA))], 8, (8, 16), 32, "Qr")
        self.stamp(8)
        self.nop(1)
        for d in range(4):
            e("v_permlane32_swap_b32 v%d, v%d" % (32 + d, 36 + d))
        e("v_pk_add_f32 v[32:33], v[32:33], v[36:37]"); e("v_pk_add_f32 v[34:35], v[34:35], v[38:39]")
        self.nop(2)
        e("v_permlane16_swap_b32 v32, v34"); e("v_permlane16_swap_b32 v33, v35")
        e("v_pk_add_f32 v[32:33], v[32:33], v[34:35]")
        for n in (8, 4, 2, 1):
            self.nop(1 if n == 8 else 1)
            if n == 8: self.nop(1)
            e("v_add_f32_dpp v32, v32, v32 row_ror:%d row_mask:0xf bank_mask:0xf" % n)
            e("v_add_f32_dpp v33, v33, v33 row_ror:%d row_mask:0xf bank_mask:0xf" % n)
        e("v_cvt_pk_bf16_f32 v34, v32, v33")
        e("v_lshlrev_b32 v35, 16, v25"); e("v_and_b32 v36, 0xffff0000, v25")
        e("v_lshlrev_b32 v32, 16, v34"); e("v_and_b32 v33, 0xffff0000, v34")
        e("v_add_f32 v32, v32, v35"); e("v_add_f32 v33, v33, v36")
        e("v_cvt_pk_bf16_f32 v34, v32, v33")
        e("v_min_u32 v34, v34, v41")
        e("s_mov_b32 exec_lo, 0x00010001"); e("s_mov_b32 exec_hi, 0x00010001")
        e("global_store_dword v24, v34, %s sc1" % sp(sB))
        e("s_mov_b64 exec, -1")
        self.stamp(9)

    def build(self):
        e = self.e
        self.prologue()
        self.dbg_span(2)
        self.stamp(0)
        self.weights_setup('start')
        e("v_min_u32 v9, 55, v%d" % vL); e("v_lshlrev_b32 v9, 4, v9")
        xr = 16 if int(self.o.get("gap2", 1)) else 32
        e("global_load_dwordx4 v[%d:%d], v9, %s" % (xr, xr + 3, sp(pX)))
        self.clear_mailboxes()
        for u in range(self.R):
            self.group(u)
        self.stamp(1)
        self.p1a()
        self.stamp(2)
        self.lab("L_pass")
        self.gather_q()
        self.dbg_span_pass(6)
        self.stamp(3)
        self.kphase()
        self.stamp(4)
        self.softmax()
        self.vphase()
        self.stamp(5)
        self.combine_publish()
        self.dbg_span_pass(4)
        self.stamp(6)
        g2 = int(self.o.get("gap2", 1))
        e("s_cmp_eq_u32 s%d, 1" % sRole); e("s_cbranch_scc1 L_roleO")
        e("s_cmp_eq_u32 s%d, 4" % sRole); e("s_cbranch_scc1 L_roleD")
        if self.gapw:
            lw = self.nl("Lgw")
            e("s_cmp_eq_u32 s%d, 0" % sPass); e("s_cbranch_scc0 %s" % lw)
            e("s_cmp_eq_u32 s%d, 0" % sRole); e("s_cbranch_scc1 %s" % lw)
            self.weights_setup('gap')
            for i in range(14):
                self.xop(i)
            self.lab(lw)
        e("s_cmp_eq_u32 s%d, 2" % sRole); e("s_cbranch_scc1 L_roleB")
        e("s_cmp_eq_u32 s%d, 3" % sRole); e("s_cbranch_scc1 L_roleC")
        self.topup()
        e("s_branch L_next")
        self.lab("L_roleO")
        self.stage_O2() if g2 else self.stage_S1()
        self.topup()
        e("s_branch L_next")
        self.lab("L_roleB")
        if g2:
            self.stage_B2(); self.topup()
        else:
            self.topup(); self.stage_B()
        e("s_branch L_next")
        self.lab("L_roleC")
        if g2:
            self.stage_C2(); self.topup(int(self.o.get("tpaceC", 0)))
        else:
            self.topup(); self.stage_C()
        e("s_branch L_next")
        self.lab("L_roleD")
        e("s_cmp_eq_u32 s%d, 0" % sWave); e("s_cbranch_scc0 L_D_rdone")
        e("s_cmp_lt_u32 s%d, 56" % sIdx); e("s_cbranch_scc0 L_D_rdone")
        self.stage_R2() if g2 else self.stage_R()
        self.lab("L_D_rdone")
        self.topup()
        e("s_cmp_eq_u32 s%d, 0" % sPass); e("s_cbranch_scc0 L_next")
        if g2:
            e("s_call_b64 %s, L_stageD_prep" % sp(sRet2))
            self.addr(sA, pWs, M5)
            self.poll_x2("M5")
            self.stamp(10)
            e("s_lshl_b32 s%d, s%d, 7" % (sT0, sIdx)); e("s_lshl_b32 s%d, s%d, 5" % (sT1, sWave))
            self.addr(sB, pWs, M6 + MR, [sT0, sT1])
            e("s_call_b64 %s, L_stageD_rest" % sp(sRet2))
            e("s_waitcnt vmcnt(1)")
        else:
            self.addr(sA, pWs, M5)
            self.gather_x(M5, "M5")
            self.stamp(10)
            self.addr(sA, pWs, M6 + MR)
            e("s_call_b64 %s, L_stageD" % sp(sRet2))
        self.lab("L_next")
        self.stamp(7)
        e("s_add_u32 s%d, s%d, 1" % (sPass, sPass))
        e("s_cmp_lt_u32 s%d, 2" % sPass)
        e("s_cbranch_scc1 L_pass")
        self.dump_stamps()
        self.dbg_span(3)
        e("s_waitcnt vmcnt(0)")
        self.lab("L_end")
        e("s_endpgm")
        if int(self.o.get("gap2", 1)):
            self.lab("L_stageD_prep")
            self.stageD2_prep()
            e("s_setpc_b64 %s" % sp(sRet2))
            self.lab("L_stageD_rest")
            self.stageD2_rest()
            e("s_setpc_b64 %s" % sp(sRet2))
        else:
            self.lab("L_stageD")
            self.stage_D(None)
            e("s_setpc_b64 %s" % sp(sRet2))
        self.emit_switch()
        self.lab("L_endcode")
        e("s_endpgm")
        return self.a.text()


HEADER = """; Persistent fused decode kernel: [attn -> mlp] x2, V tiles kept resident in registers across the two attention passes.
; @launch grid=(256,1,1) block=(256,1,1) lds=%d
.amdgcn_target "amdgcn-amd-amdhsa--gfx950"
.text
.globl %s
.p2align 8
.type %s,@function
%s:
"""
FOOTER = """.section .rodata,"a"
.p2align 6
.amdhsa_kernel %s
  .amdhsa_next_free_vgpr 512
  .amdhsa_next_free_sgpr 102
  .amdhsa_accum_offset 256
  .amdhsa_group_segment_fixed_size 0
  .amdhsa_kernarg_size 96
  .amdhsa_user_sgpr_count 2
  .amdhsa_user_sgpr_kernarg_segment_ptr 1
  .amdhsa_system_sgpr_workgroup_id_x 1
  .amdhsa_float_denorm_mode_32 3
.end_amdhsa_kernel
"""


def generate(opt=None):
    opt = opt or {}
    g = Gen(opt)
    body = g.build()
    return HEADER % (LDS_TOTAL, KNAME, KNAME, KNAME) + body + FOOTER % KNAME


if __name__ == "__main__":
    out = sys.argv[1] if len(sys.argv) > 1 else "gen/kernel.s"
    opt = {}
    for kv in sys.argv[2:]:
        k, v = kv.split("=")
        opt[k] = v
    open(out, "w").write(generate(opt))
    print("wrote", out)
```

```python
import sys, os
sys.path.insert(0, os.path.dirname(os.path.abspath(__file__)))
from asmlib import Asm

KNAME = "interleave_layers__mha_block_cached__glu_gated_swiglu__decode_kernel"

L_Q = 0
L_Z = 2176
L_SM = 2688
L_RED = 2752
L_ST = 2048
L_P = 3072
L_W = 7168
LDS_TOTAL = 163840
RING_NONE = 7168
RING_ROLE = 65536
O_ROW = 912
B_IMG3 = 28704
C_WAVE = 14336

M1 = 0x0; M1_R = 0x60000; M1_SLOT = 384
M2 = 0x100000; M2_R = 0x20000; M2_SLOT = 1792; M3 = 0xC4000; M4 = 0xC8000; M5 = 0xCC000; M6 = 0xCE000; MR = 0x2000
DBG = 0x200000

NRES_PAIRS = 7
NRES_T = 2 * NRES_PAIRS
NSTR_T = 32 - NRES_T
STRIDE = 16384
SPIN_LIMIT = 1 << 18
C_EXP = 0x3DB8AA3B
LOG2E = 0x3FB8AA3B

sW, sWave = 2, 3
pX, pK, pV, pWq, pWo, pW1, pW3, pW2, pOut, pDbg, pWs = 8, 10, 12, 14, 16, 20, 22, 24, 26, 28, 30
sKB, sVB = 32, 34
sCUR = 36
sSlot, sRs, sRe, sOff, sLeft, sSeg, sCs, sPass = 40, 41, 42, 43, 44, 45, 46, 47
sRole, sIdx, sH, sC, sNS, sVec, sWl, sSpin = 48, 49, 50, 51, 52, 53, 54, 55
sM = [56, 58, 60, 62]
sMd, sRet, sEx = 64, 66, 68
sT0, sT1, sT2, sT3, sT4, sT5 = 70, 71, 72, 73, 74, 75
sA = 76
sB = 78
sT15 = 80
sRho = 81
sWS = 84
sRet2 = 88
sWlds, sWlstep, sWoff, sWoff0, sWstep = 94, 95, 96, 97, 98
sAlloc = 99
sQok = 100
sKN, sVN, sRotN, sXch, sTm0, sTm1 = 10, 12, 0, 1, 16, 17
M7 = 0x300000
M8 = 0xD2000
sAc = 93
sRot = 101
sWo2 = 4
sWlds0, sWwrap = 6, 7
sWex = 82

vL = 0
vo = [1, 2, 3, 4]
vPh, vAd, vPa = 5, 6, 7
vSC = 8
vACC = 16
vLsum = 8
vW = 12


def sp(r, n=2):
    return "s[%d:%d]" % (r, r + n - 1)


def vr(r, n):
    return "v[%d:%d]" % (r, r + n - 1) if n > 1 else "v%d" % r


def res_reg(m, t, hh=None):
    base = m * 64 + 4 * t
    if m < 3:
        b = 64 + base; p = "v"
    else:
        b = base - 192; p = "a"
    if hh is None:
        return "%s[%d:%d]" % (p, b, b + 3)
    return "%s[%d:%d]" % (p, b + 2 * hh, b + 2 * hh + 1)


class LQ:
    def __init__(self, g):
        self.g = g; self.q = []
    def issue(self, instr, tag):
        self.g.e(instr); self.q.append(tag)
    def wait(self, tags):
        idx = [i for i, t in enumerate(self.q) if t in tags]
        if not idx:
            return
        last = max(idx)
        n = len(self.q) - 1 - last
        self.g.e("s_waitcnt lgkmcnt(%d)" % min(n, 15))
        self.q = self.q[last + 1:] if n <= 15 else self.q[len(self.q) - 15:]
    def drain(self):
        if self.q:
            self.g.e("s_waitcnt lgkmcnt(0)")
        self.q = []


class Gen:
    def __init__(self, opt):
        self.o = opt
        self.near = int(opt.get("near", 0))
        self.stride = 32768 if self.near else 16384
        self.stag = int(opt.get("stag", 0))
        self.l2pf = int(opt.get("l2pf", 0))
        self.l2pol = opt.get("l2pol", " nt")
        self.wpf = int(opt.get("wpf", 1))
        self.gapw = int(opt.get("gapw", 1))
        self.R = int(opt.get("R", 2))
        self.p2n = int(opt.get("p2n", 0))
        self.alN = int(opt.get("alN", 0))
        self.alM = int(opt.get("alM", 0))
        self.alV = int(opt.get("alV", 1))
        self.kalloc = int(opt.get("kalloc", 0))
        self.a = Asm()
        self.e = self.a.e

    def lab(self, n):
        self.a.label(n)

    def nl(self, b="L"):
        return self.a.newlabel(b)

    def nop(self, n):
        if n > 0:
            self.e("s_nop %d" % (n - 1))

    def bf16r(self, dst, src, tmp):
        self.e("v_cvt_pk_bf16_f32 v%d, v%d, v%d" % (tmp, src, src))
        self.e("v_and_b32 v%d, 0xffff0000, v%d" % (dst, tmp))

    def allreduce16(self, x, op):
        e = self.e
        for n in (8, 4, 2, 1):
            self.nop(2)
            e("%s_dpp v%d, v%d, v%d row_ror:%d row_mask:0xf bank_mask:0xf" % (op, x, x, x, n))

    def xrows(self, x, tmp, op):
        e = self.e
        e("v_mov_b32 v%d, v%d" % (tmp, x)); self.nop(2)
        e("v_permlane16_swap_b32 v%d, v%d" % (x, tmp)); self.nop(1)
        e("%s v%d, v%d, v%d" % (op, x, x, tmp))
        e("v_mov_b32 v%d, v%d" % (tmp, x)); self.nop(2)
        e("v_permlane32_swap_b32 v%d, v%d" % (x, tmp)); self.nop(1)
        e("%s v%d, v%d, v%d" % (op, x, x, tmp))

    def allreduce64(self, x, tmp, op):
        self.allreduce16(x, op)
        self.xrows(x, tmp, op)

    def poll(self, loads, regs, tmp, name="P"):
        e = self.e
        L = self.nl(name); D = self.nl(name + "d")
        e("s_mov_b32 s%d, 0" % sSpin)
        self.lab(L)
        for ld in loads:
            e(ld)
        e("s_waitcnt vmcnt(0)")
        rr = list(regs)
        if len(rr) == 1:
            t = rr[0]
        else:
            first = True
            while rr:
                if first:
                    if len(rr) >= 3:
                        e("v_max3_u32 v%d, v%d, v%d, v%d" % (tmp, rr[0], rr[1], rr[2])); rr = rr[3:]
                    else:
                        e("v_max_u32 v%d, v%d, v%d" % (tmp, rr[0], rr[1])); rr = rr[2:]
                    first = False
                elif len(rr) >= 2:
                    e("v_max3_u32 v%d, v%d, v%d, v%d" % (tmp, tmp, rr[0], rr[1])); rr = rr[2:]
                else:
                    e("v_max_u32 v%d, v%d, v%d" % (tmp, tmp, rr[0])); rr = rr[1:]
            t = tmp
        e("v_cmp_eq_u32 vcc, -1, v%d" % t)
        e("s_cbranch_vccz %s" % D)
        e("s_add_u32 s%d, s%d, 1" % (sSpin, sSpin))
        e("s_cmp_lt_u32 s%d, %d" % (sSpin, SPIN_LIMIT))
        e("s_cbranch_scc1 %s" % L)
        self.lab(D)

    def addr(self, dst, base, off_imm=0, off_sregs=()):
        e = self.e
        if off_imm:
            e("s_add_u32 s%d, s%d, 0x%x" % (dst, base, off_imm))
        else:
            e("s_add_u32 s%d, s%d, 0" % (dst, base))
        e("s_addc_u32 s%d, s%d, 0" % (dst + 1, base + 1))
        for r in off_sregs:
            e("s_add_u32 s%d, s%d, s%d" % (dst, dst, r))
            e("s_addc_u32 s%d, s%d, 0" % (dst + 1, dst + 1))

    def stamp(self, idx):
        if not self.o.get("stamps"):
            return
        e = self.e
        sk = self.nl("St")
        e("s_cmp_eq_u32 s%d, 0" % sWave); e("s_cbranch_scc0 %s" % sk)
        e("s_memrealtime s[90:91]")
        e("s_waitcnt lgkmcnt(0)")
        e("s_lshl_b32 s92, s%d, 6" % sPass); e("s_add_u32 s92, s92, %d" % (L_ST + idx * 4))
        e("v_mov_b32 v62, s92"); e("v_mov_b32 v63, s90")
        e("ds_write_b32 v62, v63")
        e("s_waitcnt lgkmcnt(0)")
        self.lab(sk)

    def dbg_span(self, first):
        if not self.o.get("span"):
            return
        e = self.e
        sk = self.nl("Sp")
        e("s_cmp_eq_u32 s%d, 0" % sWave); e("s_cbranch_scc0 %s" % sk)
        e("s_memrealtime s[90:91]")
        e("s_waitcnt lgkmcnt(0)")
        if first == 2:
            e("s_not_b32 s90, s90")
        e("v_mov_b32 v62, %d" % (4 * first)); e("v_mov_b32 v63, s90")
        e("s_mov_b64 exec, 1")
        e("global_atomic_umax v62, v63, %s" % sp(pDbg))
        e("s_mov_b64 exec, -1")
        self.lab(sk)

    def dbg_span_pass(self, base):
        if not self.o.get("span"):
            return
        e = self.e
        sk = self.nl("Sp")
        e("s_cmp_eq_u32 s%d, 0" % sWave); e("s_cbranch_scc0 %s" % sk)
        e("s_memrealtime s[90:91]")
        e("s_waitcnt lgkmcnt(0)")
        e("s_lshl_b32 s92, s%d, 2" % sPass); e("s_add_u32 s92, s92, %d" % (4 * base))
        e("v_mov_b32 v62, s92"); e("v_mov_b32 v63, s90")
        e("s_mov_b64 exec, 1")
        e("global_atomic_umax v62, v63, %s" % sp(pDbg))
        e("s_mov_b64 exec, -1")
        e("s_waitcnt vmcnt(0)")
        self.lab(sk)

    def dump_stamps(self):
        if not self.o.get("stamps"):
            return
        e = self.e
        sk = self.nl("Sd")
        e("s_waitcnt vmcnt(0)")
        e("s_cmp_eq_u32 s%d, 0" % sWave); e("s_cbranch_scc0 %s" % sk)
        e("v_and_b32 v8, 31, v%d" % vL); e("v_lshlrev_b32 v8, 2, v8")
        e("ds_read_b32 v9, v8 offset:%d" % L_ST)
        e("s_lshl_b32 s%d, s2, 7" % sT0)
        self.addr(sA, pWs, DBG, [sT0])
        e("s_waitcnt lgkmcnt(0)")
        e("global_store_dword v8, v9, %s" % sp(sA))
        self.lab(sk)

    def issue(self):
        e = self.e
        pol = self.o.get("pol", " nt")
        e("s_mov_b32 m0, s%d" % sSlot)
        e("s_add_u32 s%d, s%d, 4096" % (sSlot, sSlot))
        if self.alN:
            la = self.nl("Ia"); ld = self.nl("Id")
            e("s_add_u32 s%d, s%d, 1" % (sAc, sAc)); e("s_and_b32 s%d, s%d, %d" % (sAc, sAc, self.alN - 1))
            e("s_cmp_lt_u32 s%d, s%d" % (sAc, sAlloc))
            e("s_cbranch_scc1 %s" % la)
        if self.kalloc:
            la = self.nl("Ia"); ld = self.nl("Id")
            e("s_cmp_gt_u32 s%d, 0" % sAlloc)
            e("s_cbranch_scc1 %s" % la)
        for s in range(4):
            e("buffer_load_dwordx4 v%d, %s, s%d offen offset:%d%s lds" % (vo[s], sp(sCUR, 4), sOff, s * 1024, pol))
        if self.kalloc or self.alN:
            e("s_branch %s" % ld)
            self.lab(la)
            for s in range(4):
                e("buffer_load_dwordx4 v%d, %s, s%d offen offset:%d lds" % (vo[s], sp(sCUR, 4), sOff, s * 1024))
            if self.kalloc:
                e("s_sub_u32 s%d, s%d, 1" % (sAlloc, sAlloc))
            self.lab(ld)
        e("s_cmp_eq_u32 s%d, s%d" % (sSlot, sRe))
        e("s_cselect_b32 s%d, s%d, s%d" % (sSlot, sRs, sSlot))
        e("s_add_u32 s%d, s%d, %d" % (sOff, sOff, self.stride))
        if self.stag:
            e("s_and_b32 s%d, s%d, 0x%x" % (sOff, sOff, 64 * self.stride - 1))
        e("s_sub_u32 s%d, s%d, 1" % (sLeft, sLeft))
        e("s_cmp_lg_u32 s%d, 0" % sLeft)
        sk = self.nl("Isk")
        e("s_cbranch_scc1 %s" % sk)
        e("s_call_b64 %s, L_switch" % sp(sRet))
        self.lab(sk)

    def kpat(self):
        e = self.e
        e("v_and_b32 v%d, 7, v%d" % (vo[0], vL))
        e("v_lshlrev_b32 v%d, 9, v%d" % (vo[0], vo[0]))
        e("v_lshrrev_b32 v%d, 3, v%d" % (vo[1], vL))
        e("v_lshl_add_u32 v%d, v%d, 4, v%d" % (vo[0], vo[1], vo[0]))
        self.pat_fin()

    def vpat(self):
        e = self.e
        e("v_bfe_u32 v%d, v%d, 1, 3" % (vo[0], vL))
        e("v_lshlrev_b32 v%d, 9, v%d" % (vo[0], vo[0]))
        e("v_lshrrev_b32 v%d, 4, v%d" % (vo[1], vL))
        e("v_lshl_add_u32 v%d, v%d, 5, v%d" % (vo[0], vo[1], vo[0]))
        e("v_and_b32 v%d, 1, v%d" % (vo[1], vL))
        e("v_lshl_add_u32 v%d, v%d, 4, v%d" % (vo[0], vo[1], vo[0]))
        self.pat_fin()

    def pat_fin(self):
        e = self.e
        e("v_add_u32 v%d, 3072, v%d" % (vo[0], vo[0]))
        for s in range(1, 4):
            e("v_subrev_u32 v%d, %d, v%d" % (vo[s], 896 * s, vo[0]))

    def emit_switch(self):
        if self.p2n:
            return self.emit_switch_p2n()
        e = self.e
        self.lab("L_switch")
        e("s_add_u32 s%d, s%d, 1" % (sSeg, sSeg))
        e("s_cmp_eq_u32 s%d, 5" % sSeg)
        e("s_cbranch_scc1 L_sw_end")
        e("s_bitcmp1_b32 s%d, 0" % sSeg)
        e("s_cbranch_scc0 L_sw_v")
        e("s_mov_b32 s%d, s%d" % (sCUR, sKB)); e("s_mov_b32 s%d, s%d" % (sCUR + 1, sKB + 1))
        e("s_mov_b32 s%d, s%d" % (sOff, sRot)); e("s_mov_b32 s%d, 64" % sLeft)
        if self.kalloc:
            e("s_cmp_eq_u32 s%d, 1" % sSeg)
            e("s_cselect_b32 s%d, %d, 0" % (sAlloc, self.kalloc))
        if self.alN:
            e("s_cmp_eq_u32 s%d, 1" % sSeg)
            e("s_cselect_b32 s%d, %d, 0" % (sAlloc, self.alM))
        self.kpat()
        e("s_setpc_b64 %s" % sp(sRet))
        self.lab("L_sw_v")
        e("s_mov_b32 s%d, s%d" % (sCUR, sVB)); e("s_mov_b32 s%d, s%d" % (sCUR + 1, sVB + 1))
        e("s_add_u32 s%d, s%d, %d" % (sOff, sRot, 2 * NRES_T * self.stride)); e("s_and_b32 s%d, s%d, 0x%x" % (sOff, sOff, 64 * self.stride - 1))
        e("s_mov_b32 s%d, %d" % (sLeft, 2 * NSTR_T))
        if self.alN:
            e("s_cmp_eq_u32 s%d, 2" % sSeg)
            e("s_cselect_b32 s%d, %d, 0" % (sAlloc, self.alM if self.alV else 0))
        self.vpat()
        e("s_setpc_b64 %s" % sp(sRet))
        self.lab("L_sw_end")
        e("s_mov_b32 s%d, 0" % (sCUR + 2))
        e("s_mov_b32 s%d, 0" % sOff); e("s_mov_b32 s%d, 0x7fffffff" % sLeft)
        e("s_setpc_b64 %s" % sp(sRet))

    def emit_switch_p2n(self):
        e = self.e
        mask = 64 * self.stride - 1
        self.lab("L_switch")
        e("s_add_u32 s%d, s%d, 1" % (sSeg, sSeg))
        e("s_mov_b32 s%d, 0" % sAlloc)
        e("s_cmp_eq_u32 s%d, 1" % sSeg); e("s_cbranch_scc1 L_sw_1")
        e("s_cmp_eq_u32 s%d, 2" % sSeg); e("s_cbranch_scc1 L_sw_2")
        e("s_cmp_eq_u32 s%d, 3" % sSeg); e("s_cbranch_scc1 L_sw_3")
        e("s_cmp_eq_u32 s%d, 4" % sSeg); e("s_cbranch_scc1 L_sw_4")
        e("s_cmp_eq_u32 s%d, 5" % sSeg); e("s_cbranch_scc1 L_sw_5")
        e("s_mov_b32 s%d, 0" % (sCUR + 2))
        e("s_mov_b32 s%d, 0" % sOff); e("s_mov_b32 s%d, 0x7fffffff" % sLeft)
        e("s_setpc_b64 %s" % sp(sRet))
        self.lab("L_sw_1")
        e("s_mov_b32 s%d, %d" % (sAlloc, self.alM))
        e("s_mov_b32 s%d, 64" % sLeft)
        e("s_branch L_sw_k")
        self.lab("L_sw_3")
        e("s_mov_b32 s%d, %d" % (sLeft, 2 * NRES_T))
        self.lab("L_sw_k")
        e("s_mov_b32 s%d, s%d" % (sCUR, sKB)); e("s_mov_b32 s%d, s%d" % (sCUR + 1, sKB + 1))
        e("s_mov_b32 s%d, s%d" % (sOff, sRot))
        self.kpat()
        e("s_setpc_b64 %s" % sp(sRet))
        self.lab("L_sw_4")
        e("s_mov_b32 s%d, s%d" % (sCUR, sKN)); e("s_mov_b32 s%d, s%d" % (sCUR + 1, sKN + 1))
        e("s_add_u32 s%d, s%d, %d" % (sOff, sRotN, 2 * NRES_T * self.stride)); e("s_and_b32 s%d, s%d, 0x%x" % (sOff, sOff, mask))
        e("s_mov_b32 s%d, %d" % (sLeft, 2 * NSTR_T))
        e("s_setpc_b64 %s" % sp(sRet))
        self.lab("L_sw_2")
        e("s_mov_b32 s%d, %d" % (sAlloc, self.alM if self.alV else 0))
        e("s_mov_b32 s%d, s%d" % (sCUR, sVB)); e("s_mov_b32 s%d, s%d" % (sCUR + 1, sVB + 1))
        e("s_add_u32 s%d, s%d, %d" % (sOff, sRot, 2 * NRES_T * self.stride))
        e("s_branch L_sw_v")
        self.lab("L_sw_5")
        e("s_mov_b32 s%d, s%d" % (sCUR, sVN)); e("s_mov_b32 s%d, s%d" % (sCUR + 1, sVN + 1))
        e("s_add_u32 s%d, s%d, %d" % (sOff, sRotN, 2 * NRES_T * self.stride))
        self.lab("L_sw_v")
        e("s_and_b32 s%d, s%d, 0x%x" % (sOff, sOff, mask))
        e("s_mov_b32 s%d, %d" % (sLeft, 2 * NSTR_T))
        self.vpat()
        e("s_setpc_b64 %s" % sp(sRet))

    def now(self, dst, minus=None):
        e = self.e
        e("s_memrealtime s[90:91]"); e("s_waitcnt lgkmcnt(0)")
        if minus is None:
            e("s_mov_b32 s%d, s90" % dst)
        else:
            e("s_sub_u32 s%d, s90, s%d" % (dst, minus))

    def adv_cs(self):
        e = self.e
        e("s_add_u32 s%d, s%d, 8192" % (sCs, sCs))
        e("s_cmp_eq_u32 s%d, s%d" % (sCs, sRe))
        e("s_cselect_b32 s%d, s%d, s%d" % (sCs, sRs, sCs))

    def step_issue(self):
        w = 4 * (self.R - 1)
        self.e("s_waitcnt vmcnt(%d)" % w)
        self.issue()
        self.e("s_waitcnt vmcnt(%d)" % w)
        self.issue()

    def gwait(self, u):
        lo = max(0, u - self.R + 1)
        cnt = sum(4 + (1 if g < self.NX else 0) for g in range(lo, u))
        self.e("s_waitcnt vmcnt(%d)" % cnt)

    NX = 16

    def xop(self, i):
        e = self.e
        if i == 7:
            e("s_cmp_eq_u32 s%d, 2" % sRole)
            e("s_cselect_b32 s%d, s%d, s%d" % (sWS, sWo2, sWS))
            e("s_cselect_b32 s%d, s%d, s%d" % (sWS + 1, sWo2 + 1, sWS + 1))
            e("s_cselect_b32 s%d, s%d, s%d" % (sWoff, sWoff0, sWoff))
            e("s_cselect_b32 s%d, s%d, s%d" % (sWlds, sWlds0, sWlds))
        if 0 < i < 14:
            e("s_cmp_eq_u32 s%d, %d" % (sWwrap, i))
            e("s_cselect_b32 s%d, s%d, s%d" % (sWoff, sWoff0, sWoff))
            e("s_cselect_b32 s%d, s%d, s%d" % (sWlds, sWlds0, sWlds))
        if i == 14:
            e("s_cmp_eq_u32 s%d, 1" % sRole)
            e("s_cselect_b32 s%d, s%d, 0" % (sWS + 2, sWS + 2))
            e("s_cselect_b32 s%d, s%d, s%d" % (sWlds, sWlds, sVec))
            e("s_cselect_b32 s%d, s%d, 0" % (sWlstep, sWlstep))
        e("s_mov_b32 m0, s%d" % sWlds); e("s_add_u32 s%d, s%d, s%d" % (sWlds, sWlds, sWlstep))
        e("s_mov_b64 exec, %s" % sp(sWex))
        e("buffer_load_dwordx4 v%d, %s, s%d offen lds" % (vW, sp(sWS, 4), sWoff))
        e("s_mov_b64 exec, -1")
        e("s_add_u32 s%d, s%d, s%d" % (sWoff, sWoff, sWstep))

    def group(self, u):
        if u >= self.R:
            self.gwait(u)
        self.issue()
        if u < self.NX:
            self.xop(u)

    def prologue(self):
        e = self.e
        e("s_cmp_ge_u32 s2, 256")
        e("s_cbranch_scc1 L_end")
        e("s_load_dwordx16 s[8:23], s[0:1], 0")
        e("s_load_dwordx8 s[24:31], s[0:1], 64")
        e("v_lshrrev_b32 v1, 6, v0")
        e("v_and_b32 v%d, 63, v0" % vL)
        e("s_nop 0")
        e("v_readfirstlane_b32 s%d, v1" % sWave)
        x, r = sT0, sT1
        e("s_and_b32 s%d, s2, 7" % x)
        e("s_lshr_b32 s%d, s2, 3" % r)
        e("s_mov_b32 s%d, 0" % sRole); e("s_mov_b32 s%d, 0" % sIdx)
        e("s_cmp_lt_u32 s%d, 8" % r); e("s_cbranch_scc0 L_r1")
        e("s_mov_b32 s%d, 1" % sRole); e("s_lshl_b32 s%d, s%d, 3" % (sIdx, r)); e("s_add_u32 s%d, s%d, s%d" % (sIdx, sIdx, x))
        e("s_branch L_rdone")
        self.lab("L_r1")
        e("s_cmp_lt_u32 s%d, 16" % r); e("s_cbranch_scc0 L_r2")
        e("s_sub_u32 s%d, s%d, 8" % (sT2, r))
        e("s_lshr_b32 s%d, s%d, 1" % (sT3, sT2)); e("s_lshl_b32 s%d, s%d, 3" % (sT3, sT3)); e("s_add_u32 s%d, s%d, s%d" % (sT3, sT3, x))
        e("s_cmp_lt_u32 s%d, 28" % sT3); e("s_cbranch_scc0 L_rdone")
        e("s_mov_b32 s%d, 2" % sRole); e("s_and_b32 s%d, s%d, 1" % (sT2, sT2)); e("s_lshl_b32 s%d, s%d, 1" % (sIdx, sT3))
        e("s_add_u32 s%d, s%d, s%d" % (sIdx, sIdx, sT2))
        e("s_branch L_rdone")
        self.lab("L_r2")
        e("s_cmp_lt_u32 s%d, 20" % r); e("s_cbranch_scc0 L_r3")
        e("s_cmp_lt_u32 s%d, 7" % x); e("s_cbranch_scc0 L_rdone")
        e("s_mov_b32 s%d, 3" % sRole); e("s_lshl_b32 s%d, s%d, 2" % (sIdx, x)); e("s_add_u32 s%d, s%d, s%d" % (sIdx, sIdx, r))
        e("s_sub_u32 s%d, s%d, 16" % (sIdx, sIdx))
        e("s_branch L_rdone")
        self.lab("L_r3")
        e("s_cmp_lt_u32 s%d, 28" % r); e("s_cbranch_scc0 L_rdone")
        e("s_mov_b32 s%d, 4" % sRole); e("s_sub_u32 s%d, s%d, 20" % (sIdx, r)); e("s_lshl_b32 s%d, s%d, 3" % (sIdx, sIdx))
        e("s_add_u32 s%d, s%d, s%d" % (sIdx, sIdx, x))
        self.lab("L_rdone")
        e("s_lshr_b32 s%d, s2, 4" % sH); e("s_and_b32 s%d, s2, 15" % sC)
        e("s_mov_b32 s%d, %d" % (sT0, RING_ROLE)); e("s_mov_b32 s%d, 6" % sNS)
        e("s_cmp_eq_u32 s%d, 0" % sRole)
        e("s_cselect_b32 s%d, %d, s%d" % (sT0, RING_NONE, sT0)); e("s_cselect_b32 s%d, 8, s%d" % (sNS, sNS))
        e("s_lshl_b32 s%d, s%d, 12" % (sT1, sNS))
        e("s_mul_i32 s%d, s%d, s%d" % (sT2, sT1, sWave))
        e("s_add_u32 s%d, s%d, s%d" % (sRs, sT0, sT2))
        e("s_add_u32 s%d, s%d, s%d" % (sRe, sRs, sT1))
        e("s_mov_b32 s%d, s%d" % (sSlot, sRs)); e("s_mov_b32 s%d, s%d" % (sCs, sRs))
        e("s_lshl_b32 s%d, s%d, 10" % (sT2, sWave)); e("s_add_u32 s%d, s%d, %d" % (sVec, sT2, L_P))
        e("s_mov_b32 s%d, 0x00010001" % sM[0]); e("s_mov_b32 s%d, 0x00010001" % (sM[0] + 1))
        for u in range(1, 4):
            e("s_lshl_b64 %s, %s, %d" % (sp(sM[u]), sp(sM[0]), u))
        e("s_mov_b32 s%d, 0" % sPass)
        e("s_waitcnt lgkmcnt(0)")
        if not self.near:
            e("s_lshl_b32 s%d, s%d, 4" % (sT0, sH)); e("s_add_u32 s%d, s%d, s%d" % (sT0, sT0, sC))
            e("s_lshl_b32 s%d, s%d, 20" % (sT0, sT0))
            e("s_lshl_b32 s%d, s%d, 12" % (sT1, sWave)); e("s_add_u32 s%d, s%d, s%d" % (sT0, sT0, sT1))
        else:
            e("s_lshl_b32 s%d, s%d, 24" % (sT0, sH))
            e("s_lshr_b32 s%d, s2, 3" % sT1); e("s_and_b32 s%d, s%d, 1" % (sT1, sT1)); e("s_lshl_b32 s%d, s%d, 2" % (sT1, sT1))
            e("s_and_b32 s%d, s2, 3" % sT2); e("s_add_u32 s%d, s%d, s%d" % (sT1, sT1, sT2)); e("s_lshl_b32 s%d, s%d, 21" % (sT1, sT1))
            e("s_add_u32 s%d, s%d, s%d" % (sT0, sT0, sT1))
            e("s_lshr_b32 s%d, s2, 2" % sT1); e("s_xor_b32 s%d, s%d, s2" % (sT1, sT1))
            e("s_xor_b32 s%d, s%d, %d" % (sT1, sT1, int(self.o.get("cpol", 0)))); e("s_and_b32 s%d, s%d, 1" % (sT1, sT1))
            e("s_lshl_b32 s%d, s%d, 13" % (sT1, sT1)); e("s_add_u32 s%d, s%d, s%d" % (sT0, sT0, sT1))
            e("s_and_b32 s%d, s%d, 1" % (sT1, sWave)); e("s_lshl_b32 s%d, s%d, 12" % (sT1, sT1)); e("s_add_u32 s%d, s%d, s%d" % (sT0, sT0, sT1))
            e("s_lshr_b32 s%d, s%d, 1" % (sT1, sWave)); e("s_lshl_b32 s%d, s%d, 14" % (sT1, sT1)); e("s_add_u32 s%d, s%d, s%d" % (sT0, sT0, sT1))
        e("s_mov_b32 s%d, 0" % sAlloc); e("s_lshr_b32 s%d, s2, 3" % sAc); e("s_and_b32 s%d, s%d, 1" % (sT1, sWave)); e("s_add_u32 s%d, s%d, s%d" % (sAc, sAc, sT1))
        for (dst, src) in ((sKB, pK), (sVB, pV)):
            e("s_add_u32 s%d, s%d, s%d" % (dst, src, sT0)); e("s_addc_u32 s%d, s%d, 0" % (dst + 1, src + 1))
            e("s_sub_u32 s%d, s%d, 3072" % (dst, dst)); e("s_subb_u32 s%d, s%d, 0" % (dst + 1, dst + 1))
            e("s_and_b32 s%d, s%d, 0xffff" % (dst + 1, dst + 1))
        e("s_mov_b32 s%d, s%d" % (sCUR, sVB)); e("s_mov_b32 s%d, s%d" % (sCUR + 1, sVB + 1))
        e("s_mov_b32 s%d, %d" % (sCUR + 2, 3072 + 63 * self.stride + 4096)); e("s_mov_b32 s%d, 0x20000" % (sCUR + 3))
        if self.stag:
            e("s_mul_i32 s%d, s2, %d" % (sRot, self.stag)); e("s_and_b32 s%d, s%d, 63" % (sRot, sRot)); e("s_mul_i32 s%d, s%d, %d" % (sRot, sRot, self.stride))
        else:
            e("s_mov_b32 s%d, 0" % sRot)
        e("s_mov_b32 s%d, s%d" % (sOff, sRot)); e("s_mov_b32 s%d, %d" % (sLeft, 2 * NRES_T)); e("s_mov_b32 s%d, 0" % sSeg)
        self.vpat()

    def weights_setup(self, which):
        e0 = self.e
        sfx = "_" + which
        def e(x):
            for lb in ("L_wdone", "L_wO", "L_wB", "L_wC"):
                x = x.replace(lb, lb + sfx)
            e0(x)
        lab0 = self.lab
        self.lab = lambda n: lab0(n + sfx)
        e("s_mov_b32 s%d, 0x20000" % (sWS + 3))
        e("s_mov_b64 %s, -1" % sp(sWex))
        e("s_mov_b32 s%d, s%d" % (sWS, pWq)); e("s_and_b32 s%d, s%d, 0xffff" % (sWS + 1, pWq + 1)); e("s_mov_b32 s%d, 0" % (sWS + 2))
        e("s_mov_b32 s%d, s%d" % (sWlds, sVec))
        e("s_mov_b32 s%d, 0" % sWlstep); e("s_mov_b32 s%d, 0" % sWoff); e("s_mov_b32 s%d, 0" % sWoff0); e("s_mov_b32 s%d, 0" % sWstep)
        e("s_mov_b32 s%d, 99" % sWwrap); e("s_mov_b32 s%d, 0" % sWlds0); e("s_mov_b64 %s, 0" % sp(sWo2))
        e("v_mov_b32 v%d, 0" % vW)
        e("s_cmp_eq_u32 s%d, 0" % sRole); e("s_cbranch_scc1 L_wdone")
        if which == "start" and self.gapw:
            e("s_cmp_eq_u32 s%d, 2" % sRole); e("s_cbranch_scc1 L_wdone")
            e("s_cmp_eq_u32 s%d, 3" % sRole); e("s_cbranch_scc1 L_wdone")
        e("s_mov_b32 s%d, 1024" % sWlstep)
        if which == "start":
            e("s_cmp_eq_u32 s%d, 1" % sRole); e("s_cbranch_scc1 L_wO")
        e("s_cmp_eq_u32 s%d, 2" % sRole); e("s_cbranch_scc1 L_wB")
        if which == "start":
            e("s_cmp_eq_u32 s%d, 3" % sRole); e("s_cbranch_scc1 L_wC")
        else:
            e("s_branch L_wC")
        if which == 'start':
            e("s_mov_b32 s%d, %d" % (sWS + 2, 448 * 8192))
            e("v_lshrrev_b32 v9, 3, v%d" % vL); e("v_lshlrev_b32 v%d, 13, v9" % vW)
            e("v_bfe_u32 v9, v%d, 4, 2" % vL); e("v_lshlrev_b32 v9, 1, v9")
            e("v_and_b32 v10, 7, v%d" % vL); e("v_xor_b32 v9, v9, v10"); e("v_lshl_add_u32 v%d, v9, 4, v%d" % (vW, vW))
            e("s_mul_i32 s%d, s%d, %d" % (sT1, sWave, 14 * 8 * 8192)); e("s_lshl_b32 s%d, s%d, 7" % (sT2, sIdx)); e("s_add_u32 s%d, s%d, s%d" % (sWoff, sT1, sT2))
            e("s_mov_b32 s%d, %d" % (sWstep, 8 * 8192))
            e("s_mul_i32 s%d, s%d, %d" % (sWlds, sWave, 14 * 1024)); e("s_add_u32 s%d, s%d, %d" % (sWlds, sWlds, L_W))
            e("s_branch L_wdone")
        self.lab("L_wC")
        e("s_mov_b32 s%d, s%d" % (sWS, pW2)); e("s_and_b32 s%d, s%d, 0xffff" % (sWS + 1, pW2 + 1)); e("s_mov_b32 s%d, %d" % (sWS + 2, 1792 * 896))
        e("v_lshrrev_b32 v9, 1, v%d" % vL); e("v_mul_u32_u24 v%d, 896, v9" % vW)
        e("v_and_b32 v9, 1, v%d" % vL); e("v_lshl_add_u32 v%d, v9, 4, v%d" % (vW, vW))
        e("s_mul_i32 s%d, s%d, %d" % (sT1, sWave, 448 * 896)); e("s_lshl_b32 s%d, s%d, 5" % (sT2, sIdx)); e("s_add_u32 s%d, s%d, s%d" % (sWoff, sT1, sT2))
        e("s_mov_b32 s%d, %d" % (sWstep, 32 * 896))
        e("s_mul_i32 s%d, s%d, %d" % (sWlds, sWave, C_WAVE)); e("s_add_u32 s%d, s%d, %d" % (sWlds, sWlds, L_W))
        e("s_mov_b32 s%d, s%d" % (sWoff0, sWoff)); e("s_mov_b32 s%d, s%d" % (sWlds0, sWlds))
        e("s_and_b32 s%d, s%d, 3" % (sT0, sIdx)); e("s_mul_i32 s%d, s%d, 7" % (sT0, sT0)); e("s_add_u32 s%d, s%d, 1" % (sT0, sT0)); e("s_lshr_b32 s%d, s%d, 1" % (sT0, sT0))
        e("s_sub_u32 s%d, 14, s%d" % (sWwrap, sT0))
        e("s_mul_i32 s%d, s%d, %d" % (sT1, sT0, 32 * 896)); e("s_add_u32 s%d, s%d, s%d" % (sWoff, sWoff, sT1))
        e("s_lshl_b32 s%d, s%d, 10" % (sT1, sT0)); e("s_add_u32 s%d, s%d, s%d" % (sWlds, sWlds, sT1))
        e("s_branch L_wdone")
        if which == 'start':
            self.lab("L_wO")
            e("s_mov_b32 s%d, s%d" % (sWS, pWo)); e("s_and_b32 s%d, s%d, 0xffff" % (sWS + 1, pWo + 1)); e("s_mov_b32 s%d, %d" % (sWS + 2, 4096 * 896))
            e("v_lshlrev_b32 v%d, 4, v%d" % (vW, vL))
            e("s_lshl_b32 s%d, s%d, 6" % (sT1, sIdx)); e("s_lshl_b32 s%d, s%d, 4" % (sT2, sWave)); e("s_add_u32 s%d, s%d, s%d" % (sT1, sT1, sT2))
            e("s_mul_i32 s%d, s%d, 896" % (sWoff, sT1))
            e("s_mov_b32 s%d, 896" % sWstep); e("s_mov_b32 s%d, %d" % (sWlstep, O_ROW))
            e("s_mul_i32 s%d, s%d, %d" % (sWlds, sWave, 16 * O_ROW)); e("s_add_u32 s%d, s%d, %d" % (sWlds, sWlds, L_W))
            e("s_mov_b32 s%d, -1" % sWex); e("s_mov_b32 s%d, 0x00ffffff" % (sWex + 1))
            e("s_branch L_wdone")
        self.lab("L_wB")
        e("s_bitcmp1_b32 s%d, 0" % sIdx)
        e("s_cselect_b32 s%d, s%d, s%d" % (sWS, pW3, pW1)); e("s_cselect_b32 s%d, s%d, s%d" % (sWS + 1, pW3 + 1, pW1 + 1))
        e("s_cselect_b32 s%d, s%d, s%d" % (sWo2, pW1, pW3)); e("s_cselect_b32 s%d, s%d, s%d" % (sWo2 + 1, pW1 + 1, pW3 + 1))
        e("s_cselect_b32 s%d, %d, 0" % (sT3, B_IMG3)); e("s_cselect_b32 s%d, 0, %d" % (sT4, B_IMG3))
        e("s_and_b32 s%d, s%d, 0xffff" % (sWS + 1, sWS + 1)); e("s_and_b32 s%d, s%d, 0xffff" % (sWo2 + 1, sWo2 + 1))
        e("s_mov_b32 s%d, %d" % (sWS + 2, 448 * 3584))
        e("v_lshrrev_b32 v9, 2, v%d" % vL); e("v_mul_u32_u24 v%d, 3584, v9" % vW)
        e("v_and_b32 v9, 3, v%d" % vL); e("v_lshl_add_u32 v%d, v9, 4, v%d" % (vW, vW))
        e("s_mul_i32 s%d, s%d, %d" % (sT1, sWave, 7 * 16 * 3584)); e("s_lshl_b32 s%d, s%d, 6" % (sT2, sIdx)); e("s_add_u32 s%d, s%d, s%d" % (sWoff, sT1, sT2))
        e("s_mov_b32 s%d, s%d" % (sWoff0, sWoff))
        e("s_mov_b32 s%d, %d" % (sWstep, 16 * 3584))
        e("s_mul_i32 s%d, s%d, %d" % (sWlds, sWave, 7 * 1024)); e("s_add_u32 s%d, s%d, %d" % (sWlds, sWlds, L_W))
        e("s_add_u32 s%d, s%d, s%d" % (sWlds0, sWlds, sT4)); e("s_add_u32 s%d, s%d, s%d" % (sWlds, sWlds, sT3))
        self.lab("L_wdone")
        self.lab = lab0

    def clear_mailboxes(self):
        e = self.e
        e("v_mov_b32 v10, -1")
        e("s_lshl_b32 s%d, s%d, 2" % (sT0, sH)); e("s_add_u32 s%d, s%d, s%d" % (sT0, sT0, sWave)); e("s_lshl_b32 s%d, s%d, 4" % (sT0, sT0))
        e("s_add_u32 s%d, s%d, s%d" % (sT0, sT0, sC)); e("s_mul_i32 s%d, s%d, %d" % (sT0, sT0, M1_SLOT))
        self.addr(sA, pWs, M1, [sT0])
        e("v_lshlrev_b32 v8, 2, v%d" % vL)
        e("v_and_b32 v9, 1, v%d" % vL); e("v_lshlrev_b32 v9, 2, v9"); e("v_add_u32 v9, 256, v9")
        for rho in range(2):
            e("global_store_dword v8, v10, %s sc1" % sp(sA))
            e("global_store_dword v9, v10, %s sc1" % sp(sA))
            if rho == 0:
                e("s_add_u32 s%d, s%d, 0x%x" % (sA, sA, M1_R)); e("s_addc_u32 s%d, s%d, 0" % (sA + 1, sA + 1))
        if self.p2n:
            e("s_lshl_b32 s%d, s2, 12" % sT0); e("s_lshl_b32 s%d, s%d, 10" % (sT1, sWave))
            self.addr(sA, pWs, M7, [sT0, sT1])
            for k in range(4):
                e("global_store_dword v8, v10, %s offset:%d sc1" % (sp(sA), k * 256))
        e("s_cmp_eq_u32 s%d, 0" % sWave); e("s_cbranch_scc0 L_cdone")
        e("s_cmp_eq_u32 s%d, 0" % sRole); e("s_cbranch_scc1 L_cdone")
        e("v_and_b32 v8, 31, v%d" % vL); e("v_lshlrev_b32 v8, 2, v8")
        e("s_lshl_b32 s%d, s%d, 7" % (sT0, sIdx))
        e("v_add_u32 v8, s%d, v8" % sT0)
        e("s_cmp_eq_u32 s%d, 1" % sRole); e("s_cbranch_scc1 L_cA")
        e("s_cmp_eq_u32 s%d, 2" % sRole); e("s_cbranch_scc1 L_cB")
        e("s_cmp_eq_u32 s%d, 3" % sRole); e("s_cbranch_scc1 L_cC")
        for off in (M3, M3 + MR, M6, M6 + MR):
            self.addr(sA, pWs, off); e("global_store_dword v8, v10, %s sc1" % sp(sA))
        e("s_branch L_cdone")
        self.lab("L_cA")
        if self.p2n == 2:
            lq = self.nl("Lc8")
            e("s_and_b32 s%d, s%d, 3" % (sT1, sIdx)); e("s_cmp_lt_u32 s%d, 2" % sT1); e("s_cbranch_scc0 %s" % lq)
            e("s_lshr_b32 s%d, s%d, 2" % (sT0, sIdx)); e("s_lshl_b32 s%d, s%d, 7" % (sT0, sT0)); e("s_lshl_b32 s%d, s%d, 2" % (sT1, sT1))
            self.addr(sA, pWs, M8, [sT0, sT1])
            e("v_mov_b32 v9, 0")
            e("global_store_dword v9, v10, %s sc1" % sp(sA))
            self.lab(lq)
        e("s_mul_i32 s%d, s%d, %d" % (sT0, sIdx, M2_SLOT))
        e("v_lshlrev_b32 v8, 2, v%d" % vL)
        for rho in range(2):
            self.addr(sA, pWs, M2 + rho * M2_R, [sT0])
            for k in range(7):
                e("global_store_dword v8, v10, %s offset:%d sc1" % (sp(sA), k * 256))
        e("s_branch L_cdone")
        self.lab("L_cB")
        for off in (M4, M4 + MR):
            self.addr(sA, pWs, off); e("global_store_dword v8, v10, %s sc1" % sp(sA))
        e("s_branch L_cdone")
        self.lab("L_cC")
        self.addr(sA, pWs, M5); e("global_store_dword v8, v10, %s sc1" % sp(sA))
        self.lab("L_cdone")
        e("v_mov_b32 v11, 0")
        e("v_lshlrev_b32 v8, 2, v%d" % vL); e("v_add_u32 v8, %d, v8" % L_Z)
        e("ds_write_b32 v8, v11"); e("ds_write_b32 v8, v11 offset:256")

    def count_cleared(self):
        e = self.e
        e("s_waitcnt lgkmcnt(0)")
        e("s_barrier")
        e("s_cmp_eq_u32 s%d, 0" % sWave); e("s_cbranch_scc0 L_cnt_done")
        e("v_mov_b32 v10, 0"); e("v_mov_b32 v11, 1")
        e("s_mov_b64 exec, 1")
        e("global_atomic_add v10, v11, %s" % sp(pDbg))
        e("s_mov_b64 exec, -1")
        self.lab("L_cnt_done")

    def layernorm_to_vec(self):
        e = self.e
        X = 40
        for d in range(4):
            e("v_lshlrev_b32 v%d, 16, v%d" % (X + 2 * d, 32 + d))
            e("v_and_b32 v%d, 0xffff0000, v%d" % (X + 2 * d + 1, 32 + d))
        e("v_cmp_gt_u32 vcc, 56, v%d" % vL)
        e("v_add_f32 v48, v40, v41"); e("v_add_f32 v49, v42, v43"); e("v_add_f32 v50, v44, v45"); e("v_add_f32 v51, v46, v47")
        e("v_add_f32 v48, v48, v49"); e("v_add_f32 v50, v50, v51"); e("v_add_f32 v48, v48, v50")
        e("v_cndmask_b32 v48, 0, v48, vcc")
        self.allreduce64(48, 49, "v_add_f32")
        e("v_mul_f32 v48, 0x3b124925, v48")
        for i in range(8):
            e("v_sub_f32 v%d, v%d, v48" % (52 + i, X + i))
        e("v_mul_f32 v49, v52, v52")
        for i in range(1, 8):
            e("v_fmac_f32 v49, v%d, v%d" % (52 + i, 52 + i))
        e("v_cndmask_b32 v49, 0, v49, vcc")
        self.allreduce64(49, 50, "v_add_f32")
        e("v_mul_f32 v49, 0x3b124925, v49")
        self.bf16r(48, 48, 50)
        self.bf16r(49, 49, 50)
        e("v_add_f32 v49, 0x3727c5ac, v49")
        self.bf16r(49, 49, 50)
        e("v_sqrt_f32 v49, v49"); self.nop(1)
        self.bf16r(49, 49, 50)
        e("v_rcp_f32 v49, v49")
        for i in range(8):
            e("v_sub_f32 v%d, v%d, v48" % (52 + i, X + i))
        for i in range(0, 8, 2):
            e("v_cvt_pk_bf16_f32 v%d, v%d, v%d" % (36 + i // 2, 52 + i, 53 + i))
        for d in range(4):
            e("v_lshlrev_b32 v%d, 16, v%d" % (52 + 2 * d, 36 + d))
            e("v_and_b32 v%d, 0xffff0000, v%d" % (53 + 2 * d, 36 + d))
        for i in range(8):
            e("v_mul_f32 v%d, v%d, v49" % (52 + i, 52 + i))
        for i in range(0, 8, 2):
            e("v_cvt_pk_bf16_f32 v%d, v%d, v%d" % (36 + i // 2, 52 + i, 53 + i))
        e("v_lshlrev_b32 v48, 4, v%d" % vL); e("v_add_u32 v48, s%d, v48" % sVec)
        e("ds_write_b128 v48, v[36:39]")
        e("s_waitcnt lgkmcnt(0)")

    def gemv_chain(self, n, a_off, b_step, b_second, acc=8):
        e = self.e
        m = 0
        first = True
        while m < n:
            nb = min(4, n - m)
            for k in range(nb):
                o0, o1 = a_off(m + k)
                e("ds_read2_b64 v[%d:%d], v6 offset0:%d offset1:%d" % (32 + 4 * k, 35 + 4 * k, o0, o1))
                e("ds_read_b64_tr_b16 v[%d:%d], v7 offset:%d" % (48 + 4 * k, 49 + 4 * k, (m + k) * b_step))
                e("ds_read_b64_tr_b16 v[%d:%d], v7 offset:%d" % (50 + 4 * k, 51 + 4 * k, (m + k) * b_step + b_second))
            e("s_waitcnt lgkmcnt(0)")
            for k in range(nb):
                c = "0" if first else vr(acc, 4)
                e("v_mfma_f32_16x16x32_bf16 %s, %s, %s, %s" % (vr(acc, 4), vr(32 + 4 * k, 4), vr(48 + 4 * k, 4), c))
                first = False
            m += nb
        self.nop(8)

    def lane_rc(self):
        e = self.e
        e("v_lshrrev_b32 v10, 4, v%d" % vL); e("v_bfe_u32 v11, v%d, 2, 2" % vL)
        e("v_and_b32 v12, 3, v%d" % vL); e("v_and_b32 v13, 15, v%d" % vL)

    def stage_D(self, rho_reg_is_next):
        e = self.e
        self.layernorm_to_vec()
        self.lane_rc()
        e("v_lshlrev_b32 v6, 3, v10"); e("v_add_u32 v6, s%d, v6" % sVec)
        e("v_lshl_add_u32 v7, v10, 2, v11")
        e("v_bfe_u32 v14, v7, 1, 2"); e("v_xor_b32 v14, s%d, v14" % sWave)
        e("v_lshlrev_b32 v7, 7, v7"); e("v_lshl_add_u32 v7, v14, 5, v7"); e("v_lshl_add_u32 v7, v12, 3, v7"); e("v_add_u32 v7, %d, v7" % L_W)
        self.gemv_chain(14, lambda m: (8 * m, 8 * m + 4), 4096, 2048)
        e("v_mov_b32_dpp v9, v8 quad_perm:[1,0,3,2] row_mask:0xf bank_mask:0xf")
        e("v_cvt_pk_bf16_f32 v9, v8, v9")
        e("v_mov_b32 v14, -2"); e("v_min_u32 v9, v9, v14")
        e("s_lshl_b32 s%d, s%d, 7" % (sT0, sIdx)); e("s_lshl_b32 s%d, s%d, 5" % (sT1, sWave)); e("s_add_u32 s%d, s%d, s%d" % (sT0, sT0, sT1))
        e("v_lshlrev_b32 v14, 1, v%d" % vL); e("v_add_u32 v14, s%d, v14" % sT0)
        e("s_mov_b64 exec, 0x5555")
        e("global_store_dword v14, v9, %s sc1" % sp(sA))
        e("s_mov_b64 exec, -1")

    def p1a(self):
        e = self.e
        e("v_lshrrev_b32 v%d, 5, v%d" % (vPh, vL)); e("v_lshlrev_b32 v%d, 12, v%d" % (vPh, vPh))
        e("v_and_b32 v%d, 31, v%d" % (vAd, vL)); e("v_lshl_add_u32 v%d, v%d, 3, v%d" % (vPh, vAd, vPh))
        R = self.R
        for T in range(NRES_T):
            u0, u1 = 2 * T + R, 2 * T + R + 1
            if self.p2n == 1 and T == 2:
                self.now(sTm0)
            if T == 12:
                self.gwait(u0)
                lq = self.nl("Lnq")
                e("s_mov_b32 s%d, 0" % sQok)
                e("v_cmp_gt_u32 vcc, 256, v36")
                e("s_cbranch_vccnz %s" % lq)
                e("s_mov_b32 s%d, 1" % sQok)
                e("s_lshl_b32 s%d, s%d, 9" % (sT1, sH))
                self.addr(sA, pWs, M6, [sT1])
                e("v_and_b32 v37, 31, v%d" % vL); e("v_lshlrev_b32 v37, 4, v37")
                e("global_load_dwordx4 v[32:35], v37, %s sc1" % sp(sA))
                self.lab(lq)
                self.issue()
            elif T == 10:
                self.gwait(u0)
                e("v_mov_b32 v37, 0")
                e("global_load_dword v36, v37, %s sc1" % sp(pDbg))
                self.issue()
            else:
                self.group(u0)
            if T == 1:
                self.gwait(u1)
                self.count_cleared()
                self.issue(); self.xop(u1)
            elif T == 9:
                assert u1 - R >= 16
                self.gwait(u1)
                e("s_cmp_eq_u32 s%d, 4" % sRole); e("s_cbranch_scc0 L_noq1")
                e("s_barrier")
                if int(self.o.get("gap2", 1)):
                    e("s_call_b64 %s, L_stageD_prep" % sp(sRet2))
                    e("s_lshl_b32 s%d, s%d, 7" % (sT0, sIdx)); e("s_lshl_b32 s%d, s%d, 5" % (sT1, sWave))
                    self.addr(sB, pWs, M6, [sT0, sT1])
                    e("s_call_b64 %s, L_stageD_rest" % sp(sRet2))
                else:
                    self.addr(sA, pWs, M6)
                    e("s_call_b64 %s, L_stageD" % sp(sRet2))
                self.lab("L_noq1")
                self.issue()
                e("v_lshrrev_b32 v%d, 5, v%d" % (vPh, vL)); e("v_lshlrev_b32 v%d, 12, v%d" % (vPh, vPh))
                e("v_and_b32 v%d, 31, v%d" % (vAd, vL)); e("v_lshl_add_u32 v%d, v%d, 3, v%d" % (vPh, vAd, vPh))
            else:
                self.group(u1)
            e("v_add_u32 v%d, s%d, v%d" % (vAd, sCs, vPh))
            for t in range(16):
                e("ds_read_b64_tr_b16 %s, v%d offset:%d" % (res_reg(T >> 1, t, T & 1), vAd, t * 256))
            self.adv_cs()
            e("s_waitcnt lgkmcnt(0)")
        if self.p2n == 1:
            self.now(sTm1, sTm0)

    def gather_q(self):
        e = self.e
        e("s_cmp_eq_u32 s%d, 0" % sPass); e("s_cbranch_scc0 L_gq")
        e("s_cmp_eq_u32 s%d, 1" % sQok); e("s_cbranch_scc0 L_gq_slow")
        e("v_max3_u32 v36, v32, v33, v34"); e("v_max_u32 v36, v36, v35")
        e("v_cmp_eq_u32 vcc, -1, v36")
        e("v_and_b32 v8, 31, v%d" % vL); e("v_lshlrev_b32 v8, 4, v8")
        e("s_cbranch_vccz L_gq_write")
        self.lab("L_gq_slow")
        L = self.nl("Lc"); Dn = self.nl("Lcd")
        e("v_mov_b32 v8, 0"); e("s_mov_b32 s%d, 0" % sSpin)
        self.lab(L)
        e("global_load_dword v9, v8, %s sc1" % sp(pDbg))
        e("s_waitcnt vmcnt(0)")
        e("v_cmp_gt_u32 vcc, 256, v9")
        e("s_cbranch_vccz %s" % Dn)
        e("s_add_u32 s%d, s%d, 1" % (sSpin, sSpin)); e("s_cmp_lt_u32 s%d, %d" % (sSpin, SPIN_LIMIT)); e("s_cbranch_scc1 %s" % L)
        self.lab(Dn)
        self.lab("L_gq")
        e("s_lshl_b32 s%d, s%d, 13" % (sT0, sPass)); e("s_lshl_b32 s%d, s%d, 9" % (sT1, sH))
        self.addr(sA, pWs, M6, [sT0, sT1])
        e("v_and_b32 v8, 31, v%d" % vL); e("v_lshlrev_b32 v8, 4, v8")
        lds_ = ["global_load_dwordx4 v[32:35], v8, %s sc1" % sp(sA)]
        chk = [32, 33, 34, 35]
        if self.p2n == 1:
            e("v_mov_b32 v37, 0")
            lds_.append("global_load_dwordx2 v[38:39], v37, %s offset:16 sc1" % sp(pDbg))
        if self.p2n == 2:
            e("s_lshl_b32 s%d, s%d, 7" % (sT0, sH))
            self.addr(sB, pWs, M8, [sT0])
            e("s_cmp_eq_u32 s%d, 0" % sPass)
            e("s_cselect_b32 s%d, s%d, s%d" % (sB, sA, sB)); e("s_cselect_b32 s%d, s%d, s%d" % (sB + 1, sA + 1, sB + 1))
            e("v_mov_b32 v37, 0")
            lds_.append("global_load_dwordx2 v[38:39], v37, %s sc1" % sp(sB))
            chk += [38, 39]
        self.poll(lds_, chk, 36, "Pq")
        if self.p2n:
            self.near_setup()
        self.lab("L_gq_write")
        e("s_lshl_b32 s%d, s%d, 9" % (sT0, sWave))
        e("v_add_u32 v8, s%d, v8" % sT0)
        e("ds_write_b128 v8, v[32:35] offset:%d" % L_Q)
        e("s_waitcnt lgkmcnt(0)")

    def near_setup(self):
        e = self.e
        d = self.nl("Lns")
        e("s_cmp_eq_u32 s%d, 1" % sPass); e("s_cbranch_scc0 %s" % d)
        if self.p2n == 1:
            e("v_readfirstlane_b32 s%d, v38" % sT0); e("v_readfirstlane_b32 s%d, v39" % sT1)
            e("s_nop 3")
            e("s_cmp_gt_u32 s%d, 128" % sT0); e("s_cselect_b32 s%d, 1, 0" % sT0)
            e("s_cmp_gt_u32 s%d, 128" % sT1); e("s_cselect_b32 s%d, 1, 0" % sT1)
        else:
            e("v_readfirstlane_b32 s%d, v38" % sT0); e("v_readfirstlane_b32 s%d, v39" % sT1)
            e("s_nop 3")
            e("s_and_b32 s%d, s%d, 1" % (sT1, sT1)); e("s_and_b32 s%d, s%d, 1" % (sT0, sT0))
        if "forceK" in self.o:
            e("s_mov_b32 s%d, %d" % (sT0, int(self.o["forceK"]))); e("s_mov_b32 s%d, %d" % (sT1, int(self.o["forceV"])))
        e("s_xor_b32 s%d, s%d, s%d" % (sXch, sT0, sT1))
        e("s_lshr_b32 s%d, s2, 1" % sT2); e("s_lshr_b32 s%d, s2, 2" % sT3); e("s_xor_b32 s%d, s%d, s%d" % (sT2, sT2, sT3)); e("s_and_b32 s%d, s%d, 1" % (sT2, sT2))
        e("s_xor_b32 s%d, s%d, s%d" % (sT0, sT0, sT2)); e("s_xor_b32 s%d, s%d, s%d" % (sT1, sT1, sT2))
        e("s_and_b32 s%d, s%d, 1" % (sT2, sWave))
        e("s_lshl_b32 s%d, s%d, 1" % (sT0, sT0)); e("s_add_u32 s%d, s%d, s%d" % (sT0, sT0, sT2)); e("s_sub_i32 s%d, s%d, s%d" % (sT0, sT0, sWave)); e("s_lshl_b32 s%d, s%d, 12" % (sT0, sT0))
        e("s_lshl_b32 s%d, s%d, 1" % (sT1, sT1)); e("s_add_u32 s%d, s%d, s%d" % (sT1, sT1, sT2)); e("s_sub_i32 s%d, s%d, s%d" % (sT1, sT1, sWave)); e("s_lshl_b32 s%d, s%d, 12" % (sT1, sT1))
        e("s_xor_b32 s%d, s2, 4" % sT3); e("s_cmp_lt_u32 s%d, 2" % sWave); e("s_cselect_b32 s%d, s2, s%d" % (sT3, sT3))
        e("s_mul_i32 s%d, s%d, %d" % (sRotN, sT3, self.stag)); e("s_and_b32 s%d, s%d, 63" % (sRotN, sRotN)); e("s_mul_i32 s%d, s%d, %d" % (sRotN, sRotN, self.stride))
        e("s_sub_i32 s%d, s%d, s2" % (sT3, sT3)); e("s_lshl_b32 s%d, s%d, 20" % (sT3, sT3))
        e("s_add_i32 s%d, s%d, s%d" % (sT0, sT0, sT3)); e("s_add_i32 s%d, s%d, s%d" % (sT1, sT1, sT3))
        for (dst, src, dl) in ((sKN, sKB, sT0), (sVN, sVB, sT1)):
            e("s_ashr_i32 s%d, s%d, 31" % (sT2, dl))
            e("s_add_u32 s%d, s%d, s%d" % (dst, src, dl)); e("s_addc_u32 s%d, s%d, s%d" % (dst + 1, src + 1, sT2))
            e("s_and_b32 s%d, s%d, 0xffff" % (dst + 1, dst + 1))
        self.lab(d)

    def kphase(self):
        e = self.e
        if self.p2n == 1:
            self.now(sTm0)
        vQ, vZ = 16, 17
        e("v_bfe_u32 v%d, v%d, 3, 1" % (vPh, vL)); e("v_lshlrev_b32 v%d, 12, v%d" % (vPh, vPh))
        e("v_lshrrev_b32 v%d, 4, v%d" % (vAd, vL)); e("v_lshl_add_u32 v%d, v%d, 7, v%d" % (vPh, vAd, vPh))
        e("v_lshlrev_b32 v%d, 4, v%d" % (vQ, vAd))
        e("v_and_b32 v%d, 7, v%d" % (vAd, vL)); e("v_lshl_add_u32 v%d, v%d, 4, v%d" % (vPh, vAd, vPh))
        e("s_lshl_b32 s%d, s%d, 9" % (sT0, sWave)); e("s_add_u32 s%d, s%d, %d" % (sT0, sT0, L_Q))
        e("v_add_u32 v%d, s%d, v%d" % (vQ, sT0, vQ))
        e("v_mov_b32 v%d, %d" % (vZ, L_Z))
        for i in range(8):
            e("v_mov_b32 v%d, 0" % (vSC + i))
        first_skip = self.nl("Kskip")
        e("s_mov_b32 s%d, 0" % sT15)
        e("s_cmp_eq_u32 s%d, 0" % sPass)
        e("s_cbranch_scc1 L_k0")
        e("s_waitcnt vmcnt(0)")
        e("s_branch %s" % first_skip)
        for a in range(2):
            self.lab("L_k%d" % a)
            self.step_issue()
            if a == 0:
                self.lab(first_skip)
            e("s_lshl_b64 %s, %s, s%d" % (sp(sMd), sp(sM[0]), sT15))
            e("v_add_u32 v%d, s%d, v%d" % (vAd, sCs, vPh))
            e("v_cndmask_b32 v%d, v%d, v%d, %s" % (vPa, vZ, vQ, sp(sMd)))
            for b in range(2):
                for k in range(4):
                    c8 = 4 * b + k
                    e("ds_read_b128 v[%d:%d], v%d offset:%d" % (32 + 4 * k, 35 + 4 * k, vPa, c8 * 64))
                    e("ds_read_b128 v[%d:%d], v%d offset:%d" % (48 + 4 * k, 51 + 4 * k, vAd, c8 * 512))
                e("s_waitcnt lgkmcnt(0)")
                for k in range(4):
                    e("v_mfma_f32_16x16x32_bf16 %s, %s, %s, %s" % (vr(vSC + 4 * a, 4), vr(32 + 4 * k, 4), vr(48 + 4 * k, 4), vr(vSC + 4 * a, 4)))
            self.adv_cs()
            e("s_add_u32 s%d, s%d, 1" % (sT15, sT15))
            e("s_and_b32 s%d, s%d, 15" % (sT15, sT15))
            e("s_cbranch_scc1 L_k%d" % a)
        self.nop(8)

    def softmax(self):
        e = self.e
        S = vSC
        if self.p2n == 1:
            self.now(sTm0, sTm0)
        for i in range(0, 8, 2):
            e("v_cvt_pk_bf16_f32 v%d, v%d, v%d" % (36 + i // 2, S + i, S + i + 1))
        if self.p2n:
            nx = self.nl("Lnx")
            e("s_cmp_eq_u32 s%d, 1" % sPass); e("s_cbranch_scc0 %s" % nx)
            e("s_cmp_eq_u32 s%d, 1" % sXch); e("s_cbranch_scc0 %s" % nx)
            e("v_mov_b32 v41, -2")
            for d in range(4):
                e("v_min_u32 v%d, v%d, v41" % (44 + d, 36 + d))
            e("v_lshlrev_b32 v40, 4, v%d" % vL)
            e("s_lshl_b32 s%d, s2, 12" % sT0); e("s_lshl_b32 s%d, s%d, 10" % (sT1, sWave))
            self.addr(sA, pWs, M7, [sT0, sT1])
            e("global_store_dwordx4 v40, v[44:47], %s sc1" % sp(sA))
            e("s_xor_b32 s%d, s2, 4" % sT0); e("s_lshl_b32 s%d, s%d, 12" % (sT0, sT0)); e("s_xor_b32 s%d, s%d, 2" % (sT1, sWave)); e("s_lshl_b32 s%d, s%d, 10" % (sT1, sT1))
            self.addr(sA, pWs, M7, [sT0, sT1])
            self.poll(["global_load_dwordx4 v[48:51], v40, %s sc1" % sp(sA)], [48, 49, 50, 51], 52, "Px7")
            e("s_mov_b32 exec_lo, 0"); e("s_mov_b32 exec_hi, 0xffff0000")
            e("v_mov_b32 v37, v49")
            e("s_mov_b64 exec, -1")
            e("v_mov_b32 v38, v50"); e("v_mov_b32 v39, v51")
            self.lab(nx)
        for i in range(0, 8, 2):
            e("v_lshlrev_b32 v%d, 16, v%d" % (S + i, 36 + i // 2)); e("v_and_b32 v%d, 0xffff0000, v%d" % (S + i + 1, 36 + i // 2))
        e("v_max3_f32 v32, v%d, v%d, v%d" % (S, S + 1, S + 2)); e("v_max3_f32 v32, v32, v%d, v%d" % (S + 3, S + 4))
        e("v_max3_f32 v32, v32, v%d, v%d" % (S + 5, S + 6)); e("v_max_f32 v32, v32, v%d" % (S + 7))
        self.allreduce64(32, 33, "v_max_f32")
        e("s_lshl_b32 s%d, s%d, 2" % (sT0, sWave)); e("s_add_u32 s%d, s%d, %d" % (sT0, sT0, L_SM))
        e("v_mov_b32 v33, s%d" % sT0)
        e("ds_write_b32 v33, v32")
        if self.p2n == 1:
            e("s_lshl_b32 s%d, s%d, 3" % (sT0, sWave)); e("s_add_u32 s%d, s%d, %d" % (sT0, sT0, L_SM + 32))
            e("v_mov_b32 v33, s%d" % sT0); e("v_mov_b32 v34, s%d" % sTm1); e("v_mov_b32 v35, s%d" % sTm0)
            e("ds_write_b64 v33, v[34:35]")
        e("s_waitcnt lgkmcnt(0)")
        e("s_barrier")
        e("v_mov_b32 v33, %d" % L_SM)
        e("ds_read_b128 v[36:39], v33")
        if self.p2n == 1:
            nv = self.nl("Lnv")
            e("s_cmp_eq_u32 s%d, 0" % sPass); e("s_cbranch_scc0 %s" % nv)
            e("s_cmp_eq_u32 s%d, 0" % sWave); e("s_cbranch_scc0 %s" % nv)
            e("ds_read_b128 v[40:43], v33 offset:32"); e("ds_read_b128 v[44:47], v33 offset:48")
            e("s_waitcnt lgkmcnt(0)")
            e("v_add_u32 v40, v40, v42"); e("v_add_u32 v41, v41, v43"); e("v_add_u32 v44, v44, v46"); e("v_add_u32 v45, v45, v47")
            e("s_lshr_b32 s%d, s2, 1" % sT0); e("s_lshr_b32 s%d, s2, 2" % sT1); e("s_xor_b32 s%d, s%d, s%d" % (sT0, sT0, sT1)); e("s_and_b32 s%d, s%d, 1" % (sT0, sT0))
            e("v_cmp_ge_u32 vcc, v40, v44"); self.nop(2); e("v_cndmask_b32 v40, 0, 1, vcc")
            e("v_cmp_ge_u32 vcc, v41, v45"); self.nop(2); e("v_cndmask_b32 v41, 0, 1, vcc")
            e("v_xor_b32 v40, s%d, v40" % sT0); e("v_xor_b32 v41, s%d, v41" % sT0)
            e("v_cmp_eq_u32 vcc, 0, v%d" % vL); self.nop(2); e("v_cndmask_b32 v40, v40, v41, vcc")
            e("v_lshlrev_b32 v41, 2, v%d" % vL); e("v_add_u32 v41, 16, v41")
            e("s_mov_b64 exec, 3")
            e("global_atomic_add v41, v40, %s" % sp(pDbg))
            e("s_mov_b64 exec, -1")
            self.lab(nv)
        e("s_waitcnt lgkmcnt(0)")
        e("v_max3_f32 v32, v36, v37, v38"); e("v_max_f32 v32, v32, v39")
        e("s_mov_b32 s%d, 0x%x" % (sT0, C_EXP))
        for i in range(8):
            e("v_sub_f32 v%d, v%d, v32" % (S + i, S + i))
        for i in range(8):
            e("v_mul_f32 v%d, s%d, v%d" % (S + i, sT0, S + i))
        for i in range(8):
            e("v_exp_f32 v%d, v%d" % (S + i, S + i))
        self.nop(1)
        e("v_lshrrev_b32 v33, 4, v%d" % vL); e("v_lshlrev_b32 v33, 7, v33")
        e("v_and_b32 v34, 15, v%d" % vL); e("v_lshl_add_u32 v33, v34, 1, v33")
        e("s_lshl_b32 s%d, s%d, 10" % (sT0, sWave)); e("s_add_u32 s%d, s%d, %d" % (sT0, sT0, L_P))
        e("v_add_u32 v33, s%d, v33" % sT0)
        for i in range(0, 8, 2):
            a, r = i >> 2, i & 3
            e("v_cvt_pk_bf16_f32 v%d, v%d, v%d" % (36 + i // 2, S + i, S + i + 1))
            e("ds_write_b16 v33, v%d offset:%d" % (36 + i // 2, a * 512 + r * 32))
            e("ds_write_b16_d16_hi v33, v%d offset:%d" % (36 + i // 2, a * 512 + (r + 1) * 32))
        e("v_add_f32 v34, v%d, v%d" % (S, S + 1)); e("v_add_f32 v35, v%d, v%d" % (S + 2, S + 3))
        e("v_add_f32 v40, v%d, v%d" % (S + 4, S + 5)); e("v_add_f32 v41, v%d, v%d" % (S + 6, S + 7))
        e("v_add_f32 v34, v34, v35"); e("v_add_f32 v40, v40, v41"); e("v_add_f32 v34, v34, v40")
        self.allreduce64(34, 35, "v_add_f32")
        e("v_mov_b32 v%d, v34" % vLsum)
        e("v_mov_b32 v9, v32")
        e("s_waitcnt lgkmcnt(0)")

    def vphase(self):
        e = self.e
        e("v_lshrrev_b32 v%d, 5, v%d" % (vPh, vL)); e("v_lshlrev_b32 v%d, 12, v%d" % (vPh, vPh))
        e("v_and_b32 v%d, 31, v%d" % (vAd, vL)); e("v_lshl_add_u32 v%d, v%d, 3, v%d" % (vPh, vAd, vPh))
        e("v_lshrrev_b32 v%d, 4, v%d" % (vPa, vL)); e("v_lshlrev_b32 v%d, 3, v%d" % (vPa, vPa))
        e("s_lshl_b32 s%d, s%d, 10" % (sT0, sWave)); e("s_add_u32 s%d, s%d, %d" % (sT0, sT0, L_P))
        e("v_add_u32 v%d, s%d, v%d" % (vPa, sT0, vPa))
        for i in range(16):
            e("v_mov_b32 v%d, 0" % (vACC + i))
        acc = lambda T4: vr(vACC + 4 * T4, 4)
        after = {1: 0, 3: 1, 6: 2, 8: 3, 11: 4, 13: 5, 16: 6}
        pf_tiles = tuple(int(x) for x in str(self.o.get("wpft", "14,16")).split(",")) if (self.wpf and self.gapw) else ()
        cpf_tiles = tuple(int(x) for x in str(self.o.get("cpft", "9,11")).split(",")) if int(self.o.get("cpf", 1)) else ()
        if pf_tiles:
            self.wpf_setup()
        if cpf_tiles:
            e("s_getpc_b64 s[18:19]")
            self.lab("L_pcref")
            e("s_add_u32 s18, s18, L_gapcode-L_pcref"); e("s_addc_u32 s19, s19, 0")
            e("v_lshlrev_b32 v46, 7, v%d" % vL)
        any_x = bool(pf_tiles) or bool(cpf_tiles)
        pend = 0
        for i in range(NSTR_T):
            T = NRES_T + i
            if not any_x:
                self.step_issue()
            else:
                w = 4 * (self.R - 1)
                hist = getattr(self, "_h", [])
                for half in range(2):
                    ex = sum(hist[-(self.R - 1):]) if hist else 0
                    e("s_waitcnt vmcnt(%d)" % (w + ex))
                    self.issue()
                    if half == 0 and i in pf_tiles:
                        e("buffer_load_dword v44, v45, %s, s%d offen" % (sp(sWS, 4), sWoff))
                        e("s_add_u32 s%d, s%d, s%d" % (sWoff, sWoff, sWstep))
                        hist.append(1)
                    elif half == 0 and i in cpf_tiles:
                        e("v_min_u32 v47, L_endcode-L_gapcode-4, v46")
                        e("global_load_dword v47, v47, s[18:19]")
                        e("v_add_u32 v46, 8192, v46")
                        hist.append(1)
                    else:
                        hist.append(0)
                self._h = hist
            e("v_add_u32 v%d, s%d, v%d" % (vAd, sCs, vPh))
            e("ds_read_b64 v[32:33], v%d offset:%d" % (vPa, T * 32))
            for b in range(2):
                us = (2 * b, 2 * b + 1)
                k = 0
                for u in us:
                    for T4 in range(4):
                        e("ds_read_b64_tr_b16 v[%d:%d], v%d offset:%d" % (48 + 2 * k, 49 + 2 * k, vAd, (4 * T4 + u) * 256))
                        k += 1
                if b == 0:
                    e("s_waitcnt lgkmcnt(8)")
                for j, u in enumerate(us):
                    e("v_cndmask_b32 v%d, 0, v32, %s" % (36 + 2 * j, sp(sM[u])))
                    e("v_cndmask_b32 v%d, 0, v33, %s" % (37 + 2 * j, sp(sM[u])))
                e("s_waitcnt lgkmcnt(0)")
                k = 0
                for j, u in enumerate(us):
                    for T4 in range(4):
                        e("v_mfma_f32_16x16x16_bf16 %s, %s, %s, %s" % (acc(T4), vr(36 + 2 * j, 2), vr(48 + 2 * k, 2), acc(T4)))
                        k += 1
            self.adv_cs()
            if i in after:
                self.res_pair(after[i])
        self.nop(8)

    def wpf_setup(self):
        e = self.e
        d = self.nl("Lpf"); lb = self.nl("LpfB")
        e("s_mov_b32 s%d, 0x20000" % (sWS + 3)); e("s_mov_b32 s%d, 0" % (sWS + 2))
        e("s_mov_b32 s%d, s%d" % (sWS, pW2)); e("s_and_b32 s%d, s%d, 0xffff" % (sWS + 1, pW2 + 1))
        e("s_mov_b32 s%d, 0" % sWoff); e("s_mov_b32 s%d, 0" % sWstep); e("v_mov_b32 v45, 0")
        e("s_cmp_eq_u32 s%d, 0" % sPass); e("s_cbranch_scc0 %s" % d)
        e("s_cmp_eq_u32 s%d, 2" % sRole); e("s_cbranch_scc1 %s" % lb)
        e("s_cmp_eq_u32 s%d, 3" % sRole); e("s_cbranch_scc0 %s" % d)
        e("s_mov_b32 s%d, %d" % (sWS + 2, 1792 * 896))
        e("v_mul_u32_u24 v45, 896, v%d" % vL)
        e("s_and_b32 s%d, s%d, 3" % (sT0, sIdx)); e("s_mul_i32 s%d, s%d, 448" % (sT0, sT0)); e("s_lshl_b32 s%d, s%d, 7" % (sT1, sWave)); e("s_add_u32 s%d, s%d, s%d" % (sT0, sT0, sT1))
        e("s_mul_i32 s%d, s%d, 896" % (sWoff, sT0)); e("s_lshr_b32 s%d, s%d, 2" % (sT1, sIdx)); e("s_lshl_b32 s%d, s%d, 7" % (sT1, sT1)); e("s_add_u32 s%d, s%d, s%d" % (sWoff, sWoff, sT1))
        e("s_mov_b32 s%d, %d" % (sWstep, 64 * 896))
        e("s_branch %s" % d)
        self.lab(lb)
        e("s_bitcmp1_b32 s%d, 0" % sIdx)
        e("s_cselect_b32 s%d, s%d, s%d" % (sWS, pW3, pW1)); e("s_cselect_b32 s%d, s%d, s%d" % (sWS + 1, pW3 + 1, pW1 + 1))
        e("s_and_b32 s%d, s%d, 0xffff" % (sWS + 1, sWS + 1))
        e("s_mov_b32 s%d, %d" % (sWS + 2, 448 * 3584))
        e("v_mul_u32_u24 v45, 3584, v%d" % vL)
        e("s_lshl_b32 s%d, s%d, 7" % (sT1, sWave)); e("s_mul_i32 s%d, s%d, 3584" % (sWoff, sT1))
        e("s_lshr_b32 s%d, s%d, 1" % (sT1, sIdx)); e("s_lshl_b32 s%d, s%d, 7" % (sT1, sT1)); e("s_add_u32 s%d, s%d, s%d" % (sWoff, sWoff, sT1))
        e("s_mov_b32 s%d, %d" % (sWstep, 64 * 3584))
        self.lab(d)

    def res_pair(self, m):
        e = self.e
        acc = lambda T4: vr(vACC + 4 * T4, 4)
        e("ds_read2_b64 v[32:35], v%d offset0:%d offset1:%d" % (vPa, 8 * m, 8 * m + 4))
        e("s_waitcnt lgkmcnt(0)")
        for u in range(4):
            A = 36 + 4 * (u & 1)
            for d in range(4):
                e("v_cndmask_b32 v%d, 0, v%d, %s" % (A + d, 32 + d, sp(sM[u])))
            self.nop(2)
            for T4 in range(4):
                e("v_mfma_f32_16x16x32_bf16 %s, %s, %s, %s" % (acc(T4), vr(A, 4), res_reg(m, 4 * T4 + u), acc(T4)))

    def combine_publish(self):
        e = self.e
        self.lab("L_gapcode")
        for u in range(4):
            X, Y, Z, W = (vACC + 4 * t + u for t in range(4))
            e("v_permlane16_swap_b32 v%d, v%d" % (X, Y))
            e("v_permlane16_swap_b32 v%d, v%d" % (Z, W))
        self.nop(2)
        for u in range(4):
            e("v_permlane32_swap_b32 v%d, v%d" % (vACC + u, vACC + 8 + u))
        e("v_lshrrev_b32 v32, 4, v%d" % vL); e("v_lshlrev_b32 v32, 8, v32")
        e("v_and_b32 v33, 15, v%d" % vL); e("v_lshl_add_u32 v32, v33, 2, v32")
        e("s_lshl_b32 s%d, s%d, 10" % (sT0, sWave)); e("s_add_u32 s%d, s%d, %d" % (sT0, sT0, L_P))
        e("v_add_u32 v32, s%d, v32" % sT0)
        for u in range(4):
            e("ds_write_b32 v32, v%d offset:%d" % (vACC + u, u * 64))
        e("s_lshl_b32 s%d, s%d, 2" % (sT0, sWave)); e("s_add_u32 s%d, s%d, %d" % (sT0, sT0, L_SM + 16))
        e("v_mov_b32 v33, s%d" % sT0)
        e("ds_write_b32 v33, v%d" % vLsum)
        e("s_waitcnt lgkmcnt(0)")
        e("s_barrier")
        e("s_lshl_b32 s%d, s%d, 8" % (sT0, sWave)); e("s_add_u32 s%d, s%d, %d" % (sT0, sT0, L_P))
        e("v_lshlrev_b32 v40, 2, v%d" % vL); e("v_add_u32 v32, s%d, v40" % sT0)
        for w in range(4):
            e("ds_read_b32 v%d, v32 offset:%d" % (34 + w, w * 1024))
        e("v_mov_b32 v33, %d" % (L_SM + 16))
        e("ds_read_b128 v[44:47], v33")
        e("s_waitcnt lgkmcnt(0)")
        e("v_add_f32 v34, v34, v35"); e("v_add_f32 v36, v36, v37"); e("v_add_f32 v34, v34, v36")
        e("v_add_f32 v44, v44, v45"); e("v_add_f32 v46, v46, v47"); e("v_add_f32 v44, v44, v46")
        e("v_mov_b32 v41, -2")
        e("v_min_u32 v34, v34, v41")
        e("v_and_b32 v42, 1, v%d" % vL); e("v_cmp_eq_u32 vcc, 1, v42"); self.nop(2)
        e("v_cndmask_b32 v43, v9, v44, vcc"); e("v_min_u32 v43, v43, v41")
        e("v_lshlrev_b32 v42, 2, v42"); e("v_add_u32 v42, 256, v42")
        e("s_lshl_b32 s%d, s%d, 2" % (sT0, sH)); e("s_add_u32 s%d, s%d, s%d" % (sT0, sT0, sWave)); e("s_lshl_b32 s%d, s%d, 4" % (sT0, sT0))
        e("s_add_u32 s%d, s%d, s%d" % (sT0, sT0, sC)); e("s_mul_i32 s%d, s%d, %d" % (sT0, sT0, M1_SLOT))
        e("s_mul_i32 s%d, s%d, 0x%x" % (sT1, sPass, M1_R))
        self.addr(sA, pWs, M1, [sT0, sT1])
        e("global_store_dword v40, v34, %s sc1" % sp(sA))
        e("global_store_dword v42, v43, %s sc1" % sp(sA))
        e("s_barrier")

    def topup(self, tp=None):
        e = self.e
        L = self.nl("Tu"); D = self.nl("Tud")
        e("s_cmp_eq_u32 s%d, 0" % sPass); e("s_cbranch_scc0 %s" % D)
        e("s_sub_u32 s%d, s%d, %d" % (sT5, sNS, self.R))
        self.lab(L)
        if tp is None:
            tp = int(self.o.get("tpace", 1))
        if tp:
            e("s_waitcnt vmcnt(%d)" % (4 * (tp - 1)))
        self.issue()
        e("s_sub_u32 s%d, s%d, 1" % (sT5, sT5))
        e("s_cmp_lg_u32 s%d, 0" % sT5); e("s_cbranch_scc1 %s" % L)
        if self.l2pf:
            e("v_and_b32 v5, 31, v%d" % vL); e("v_lshlrev_b32 v5, 7, v5"); e("v_add_u32 v5, 3072, v5")
            e("v_lshrrev_b32 v6, 5, v%d" % vL); e("v_mul_u32_u24 v6, %d, v6" % self.stride); e("v_add_u32 v6, v5, v6")
            e("s_mov_b32 s%d, s%d" % (sT5, sOff))
            for k in range(self.l2pf):
                e("buffer_load_dword v5, v6, %s, s%d offen%s" % (sp(sCUR, 4), sT5, self.l2pol))
                e("s_add_u32 s%d, s%d, %d" % (sT5, sT5, 2 * self.stride))
                if self.stag:
                    e("s_and_b32 s%d, s%d, 0x%x" % (sT5, sT5, 64 * self.stride - 1))
        self.lab(D)

    def stage_S1(self):
        e = self.e
        e("s_mul_i32 s%d, s%d, %d" % (sT0, sIdx, 16 * M1_SLOT)); e("s_mul_i32 s%d, s%d, 0x%x" % (sT1, sPass, M1_R))
        self.addr(sA, pWs, M1 + 2304, [sT0, sT1])
        e("v_lshrrev_b32 v10, 4, v%d" % vL); e("v_mul_u32_u24 v10, %d, v10" % M1_SLOT)
        e("v_and_b32 v11, 15, v%d" % vL); e("v_lshl_add_u32 v11, v11, 4, v10")
        e("v_add_u32 v10, 256, v10")
        loads = []; regs = []
        for j in range(4):
            off = j * 4 * M1_SLOT - 2304
            loads.append("global_load_dwordx4 v[%d:%d], v11, %s offset:%d sc1" % (32 + 4 * j, 35 + 4 * j, sp(sA), off))
            loads.append("global_load_dwordx2 v[%d:%d], v10, %s offset:%d sc1" % (48 + 2 * j, 49 + 2 * j, sp(sA), off))
        self.poll(loads, list(range(32, 56)), 56, "Ps1")
        self.stamp(8)
        e("v_max3_f32 v56, v48, v50, v52"); e("v_max_f32 v56, v56, v54")
        self.xrows(56, 57, "v_max_f32")
        e("s_mov_b32 s%d, 0x%x" % (sT0, C_EXP))
        for j in range(4):
            e("v_sub_f32 v%d, v%d, v56" % (48 + 2 * j, 48 + 2 * j))
        for j in range(4):
            e("v_mul_f32 v%d, s%d, v%d" % (48 + 2 * j, sT0, 48 + 2 * j))
        for j in range(4):
            e("v_exp_f32 v%d, v%d" % (48 + 2 * j, 48 + 2 * j))
        self.nop(1)
        e("v_mul_f32 v56, v48, v49")
        for j in range(1, 4):
            e("v_fmac_f32 v56, v%d, v%d" % (48 + 2 * j, 49 + 2 * j))
        for d in range(4):
            e("v_mul_f32 v%d, v48, v%d" % (32 + d, 32 + d))
        for j in range(1, 4):
            for d in range(4):
                e("v_fmac_f32 v%d, v%d, v%d" % (32 + d, 48 + 2 * j, 32 + 4 * j + d))
        self.xrows(56, 57, "v_add_f32")
        e("v_rcp_f32 v56, v56")
        e("v_permlane32_swap_b32 v32, v34"); e("v_permlane32_swap_b32 v33, v35"); self.nop(1)
        e("v_add_f32 v32, v32, v34"); e("v_add_f32 v33, v33, v35")
        e("v_mov_b32 v34, v32"); e("v_mov_b32 v35, v33"); self.nop(2)
        e("v_permlane16_swap_b32 v32, v34"); e("v_permlane16_swap_b32 v33, v35"); self.nop(1)
        e("v_add_f32 v32, v32, v34"); e("v_add_f32 v33, v33, v35")
        e("v_mul_f32 v32, v32, v56"); e("v_mul_f32 v33, v33, v56")
        e("v_cvt_pk_bf16_f32 v32, v32, v33")
        e("v_mov_b32 v41, -2"); e("v_min_u32 v32, v32, v41")
        e("v_and_b32 v34, 15, v%d" % vL); e("v_lshlrev_b32 v34, 3, v34")
        e("v_lshrrev_b32 v35, 5, v%d" % vL); e("v_lshl_add_u32 v34, v35, 2, v34"); e("v_add_u32 v34, s%d, v34" % sVec)
        e("ds_write_b32 v34, v32")
        if self.o.get("dbg_a"):
            e("s_lshl_b32 s%d, s%d, 13" % (sT0, sPass)); e("s_lshl_b32 s%d, s%d, 7" % (sT1, sIdx))
            self.addr(sA, pWs, 0xC0000, [sT0, sT1])
            e("v_subrev_u32 v35, s%d, v34" % sVec)
            e("global_store_dword v35, v32, %s" % sp(sA))
        self.lane_rc()
        e("v_lshlrev_b32 v6, 3, v10"); e("v_add_u32 v6, s%d, v6" % sVec)
        e("v_lshl_add_u32 v7, v10, 2, v11"); e("v_mul_u32_u24 v7, %d, v7" % O_ROW); e("v_lshl_add_u32 v7, v12, 3, v7")
        e("s_mul_i32 s%d, s%d, 224" % (sT0, sWave)); e("s_add_u32 s%d, s%d, %d" % (sT0, sT0, L_W)); e("v_add_u32 v7, s%d, v7" % sT0)
        e("s_waitcnt lgkmcnt(0)")
        e("ds_read2_b64 v[36:39], v6 offset0:0 offset1:4"); e("ds_read2_b64 v[40:43], v6 offset0:8 offset1:12")
        for c0 in range(0, 7, 2):
            cts = [c for c in (c0, c0 + 1) if c < 7]
            k = 0
            for ct in cts:
                for m in range(2):
                    e("ds_read_b64_tr_b16 v[%d:%d], v7 offset:%d" % (48 + 4 * k, 49 + 4 * k, m * 32 * O_ROW + ct * 32))
                    e("ds_read_b64_tr_b16 v[%d:%d], v7 offset:%d" % (50 + 4 * k, 51 + 4 * k, (m * 32 + 16) * O_ROW + ct * 32))
                    k += 1
            e("s_waitcnt lgkmcnt(0)")
            k = 0
            for ct in cts:
                for m in range(2):
                    c = "0" if m == 0 else vr(8 + 4 * ct, 4)
                    e("v_mfma_f32_16x16x32_bf16 %s, %s, %s, %s" % (vr(8 + 4 * ct, 4), vr(36 + 4 * m, 4), vr(48 + 4 * k, 4), c))
                    k += 1
        self.nop(8)
        for row in range(1, 4):
            e("s_mov_b32 exec_lo, 0x%x" % (0xffff0000 if row == 1 else 0))
            e("s_mov_b32 exec_hi, 0x%x" % (0 if row == 1 else (0xffff << (16 * (row - 2)))))
            e("v_mov_b32 v8, v%d" % (8 + 4 * row))
            if row < 3:
                e("v_mov_b32 v24, v%d" % (24 + 4 * row))
        e("s_mov_b64 exec, -1")
        e("v_mov_b32 v41, -2"); e("v_min_u32 v8, v8, v41"); e("v_min_u32 v24, v24, v41")
        e("s_mul_i32 s%d, s%d, %d" % (sT0, sIdx, M2_SLOT)); e("s_mul_i32 s%d, s%d, 0x%x" % (sT1, sPass, M2_R)); e("s_mul_i32 s%d, s%d, 448" % (sT2, sWave))
        self.addr(sA, pWs, M2, [sT0, sT1, sT2])
        e("v_lshlrev_b32 v40, 2, v%d" % vL)
        e("global_store_dword v40, v8, %s sc1" % sp(sA))
        e("s_mov_b32 exec_hi, 0xffff")
        e("global_store_dword v40, v24, %s offset:256 sc1" % sp(sA))
        e("s_mov_b64 exec, -1")
        self.stamp(9)

    def reduce_waves16(self, src):
        e = self.e
        e("v_and_b32 v14, 15, v%d" % vL); e("v_lshlrev_b32 v14, 2, v14")
        e("s_lshl_b32 s%d, s%d, 6" % (sT0, sWave)); e("s_add_u32 s%d, s%d, %d" % (sT0, sT0, L_RED))
        e("v_add_u32 v15, s%d, v14" % sT0)
        e("ds_write_b32 v15, v%d" % src)
        e("s_waitcnt lgkmcnt(0)")
        e("s_barrier")
        for w in range(4):
            e("ds_read_b32 v%d, v14 offset:%d" % (16 + w, L_RED + w * 64))
        e("s_waitcnt lgkmcnt(0)")
        e("v_add_f32 v16, v16, v17"); e("v_add_f32 v18, v18, v19"); e("v_add_f32 v8, v16, v18")

    def stage_R(self):
        e = self.e
        e("v_lshrrev_b32 v20, 4, v%d" % vL); e("v_lshlrev_b32 v20, 2, v20")
        e("s_cmp_eq_u32 s%d, 0" % sPass); e("s_cbranch_scc0 L_R_r1")
        e("s_lshl_b32 s%d, s%d, 4" % (sT0, sIdx))
        self.addr(sB, pX, 0, [sT0])
        e("s_branch L_R_r2")
        self.lab("L_R_r1")
        e("s_lshr_b32 s%d, s%d, 1" % (sT0, sIdx)); e("s_lshl_b32 s%d, s%d, 7" % (sT0, sT0))
        e("s_and_b32 s%d, s%d, 1" % (sT1, sIdx)); e("s_lshl_b32 s%d, s%d, 4" % (sT1, sT1))
        self.addr(sB, pWs, M5, [sT0, sT1])
        self.lab("L_R_r2")
        e("global_load_dword v21, v20, %s sc1" % sp(sB))
        e("s_lshl_b32 s%d, s%d, 5" % (sT0, sIdx)); e("s_mul_i32 s%d, s%d, 0x%x" % (sT1, sPass, M2_R))
        self.addr(sA, pWs, M2, [sT0, sT1])
        e("v_mul_u32_u24 v8, %d, v%d" % (M2_SLOT, vL))
        self.poll(["global_load_dwordx4 v[32:35], v8, %s sc1" % sp(sA),
                   "global_load_dwordx4 v[36:39], v8, %s offset:16 sc1" % sp(sA)], list(range(32, 40)), 40, "Pa")
        self.stamp(8)
        for d in range(4):
            e("v_permlane32_swap_b32 v%d, v%d" % (32 + d, 36 + d))
        self.nop(1)
        for d in range(4):
            e("v_add_f32 v%d, v%d, v%d" % (32 + d, 32 + d, 36 + d))
        self.nop(2)
        e("v_permlane16_swap_b32 v32, v34"); e("v_permlane16_swap_b32 v33, v35"); self.nop(1)
        e("v_add_f32 v32, v32, v34"); e("v_add_f32 v33, v33, v35")
        for n in (8, 4, 2, 1):
            self.nop(1)
            e("v_add_f32_dpp v32, v32, v32 row_ror:%d row_mask:0xf bank_mask:0xf" % n)
            e("v_add_f32_dpp v33, v33, v33 row_ror:%d row_mask:0xf bank_mask:0xf" % n)
        e("v_cvt_pk_bf16_f32 v34, v32, v33")
        e("v_lshlrev_b32 v32, 16, v34"); e("v_and_b32 v33, 0xffff0000, v34")
        e("v_lshlrev_b32 v35, 16, v21"); e("v_and_b32 v36, 0xffff0000, v21")
        e("v_add_f32 v32, v32, v35"); e("v_add_f32 v33, v33, v36")
        e("v_cvt_pk_bf16_f32 v34, v32, v33")
        e("v_mov_b32 v41, -2"); e("v_min_u32 v34, v34, v41")
        e("s_lshl_b32 s%d, s%d, 13" % (sT0, sPass)); e("s_lshl_b32 s%d, s%d, 7" % (sT1, sIdx))
        self.addr(sA, pWs, M3, [sT0, sT1])
        e("s_mov_b32 exec_lo, 0x00010001"); e("s_mov_b32 exec_hi, 0x00010001")
        e("global_store_dword v20, v34, %s sc1" % sp(sA))
        e("s_mov_b64 exec, -1")
        self.stamp(9)

    def gather_x(self, base_off, slot_shift_mode):
        e = self.e
        e("v_min_u32 v8, 55, v%d" % vL)
        if slot_shift_mode == "M3":
            e("v_lshlrev_b32 v8, 7, v8")
        else:
            e("v_and_b32 v9, 1, v8"); e("v_lshrrev_b32 v8, 1, v8"); e("v_lshlrev_b32 v8, 7, v8"); e("v_lshl_add_u32 v8, v9, 4, v8")
        self.poll(["global_load_dwordx4 v[32:35], v8, %s sc1" % sp(sA)], [32, 33, 34, 35], 36, "Px")

    def stage_B(self):
        e = self.e
        e("s_lshl_b32 s%d, s%d, 13" % (sT0, sPass))
        self.addr(sA, pWs, M3, [sT0])
        self.gather_x(M3, "M3")
        self.stamp(8)
        if self.gapw:
            e("s_barrier")
        self.layernorm_to_vec()
        self.lane_rc()
        e("v_lshlrev_b32 v6, 3, v10"); e("v_add_u32 v6, s%d, v6" % sVec)
        e("v_lshl_add_u32 v7, v10, 2, v11"); e("v_lshlrev_b32 v7, 6, v7")
        e("v_and_b32 v14, 1, v12"); e("v_lshl_add_u32 v7, v14, 3, v7")
        e("v_lshrrev_b32 v14, 1, v12"); e("v_mul_u32_u24 v14, %d, v14" % B_IMG3); e("v_add_u32 v7, v7, v14")
        e("s_lshl_b32 s%d, s%d, 4" % (sT0, sWave)); e("s_add_u32 s%d, s%d, %d" % (sT0, sT0, L_W)); e("v_add_u32 v7, s%d, v7" % sT0)
        self.gemv_chain(14, lambda m: (8 * m, 8 * m + 4), 2048, 1024)
        self.bf16r(8, 8, 9)
        self.nop(1)
        e("v_mov_b32_dpp v10, v8 row_ror:8 row_mask:0xf bank_mask:0xf")
        e("v_mul_f32 v11, 0xbfb8aa3b, v8")
        e("v_exp_f32 v11, v11"); self.nop(1)
        e("v_add_f32 v11, 1.0, v11")
        e("v_rcp_f32 v11, v11"); self.nop(1)
        e("v_mul_f32 v11, v8, v11")
        self.bf16r(11, 11, 12)
        e("v_mul_f32 v11, v11, v10")
        self.nop(1)
        e("v_mov_b32_dpp v12, v11 quad_perm:[1,0,3,2] row_mask:0xf bank_mask:0xf")
        e("v_cvt_pk_bf16_f32 v12, v11, v12")
        e("v_mov_b32 v14, -2"); e("v_min_u32 v12, v12, v14")
        e("s_lshl_b32 s%d, s%d, 13" % (sT0, sPass)); e("s_lshl_b32 s%d, s%d, 7" % (sT1, sIdx)); e("s_lshl_b32 s%d, s%d, 4" % (sT2, sWave))
        self.addr(sA, pWs, M4, [sT0, sT1, sT2])
        e("v_lshlrev_b32 v14, 1, v%d" % vL)
        e("s_mov_b64 exec, 0x55")
        e("global_store_dword v14, v12, %s sc1" % sp(sA))
        e("s_mov_b64 exec, -1")

    def stage_C(self):
        e = self.e
        e("s_lshl_b32 s%d, s%d, 13" % (sT0, sPass)); e("s_lshl_b32 s%d, s%d, 8" % (sT1, sIdx))
        self.addr(sB, pWs, M3, [sT0, sT1])
        e("v_bfe_u32 v20, v%d, 3, 1" % vL); e("v_lshlrev_b32 v20, 7, v20")
        e("v_bfe_u32 v21, v%d, 1, 2" % vL); e("v_lshl_add_u32 v20, v21, 2, v20")
        self.poll(["global_load_dword v22, v20, %s sc1" % sp(sB)], [22], 23, "Pr")
        e("s_lshl_b32 s%d, s%d, 13" % (sT0, sPass)); e("s_mul_i32 s%d, s%d, %d" % (sT1, sWave, 14 * 128))
        self.addr(sA, pWs, M4, [sT0, sT1])
        e("v_min_u32 v8, 55, v%d" % vL)
        e("v_and_b32 v9, 3, v8"); e("v_lshrrev_b32 v8, 2, v8"); e("v_lshlrev_b32 v8, 7, v8"); e("v_lshl_add_u32 v8, v9, 4, v8")
        self.poll(["global_load_dwordx4 v[32:35], v8, %s sc1" % sp(sA)], [32, 33, 34, 35], 36, "Ph")
        self.stamp(8)
        e("v_lshlrev_b32 v8, 4, v%d" % vL); e("v_add_u32 v8, s%d, v8" % sVec)
        e("ds_write_b128 v8, v[32:35]")
        self.lane_rc()
        e("v_lshlrev_b32 v6, 3, v10"); e("v_add_u32 v6, s%d, v6" % sVec)
        e("s_mul_i32 s%d, s%d, %d" % (sT0, sWave, C_WAVE)); e("s_add_u32 s%d, s%d, %d" % (sT0, sT0, L_W))
        e("v_lshl_add_u32 v7, v10, 2, v11"); e("v_lshlrev_b32 v7, 5, v7"); e("v_lshl_add_u32 v7, v12, 3, v7"); e("v_add_u32 v7, s%d, v7" % sT0)
        e("s_waitcnt lgkmcnt(0)")
        self.gemv_chain(14, lambda m: (8 * m, 8 * m + 4), 1024, 512)
        self.reduce_waves16(8)
        e("s_cmp_eq_u32 s%d, 0" % sWave); e("s_cbranch_scc0 L_C_done")
        self.bf16r(8, 8, 9)
        e("v_and_b32 v23, 1, v%d" % vL); e("v_cmp_eq_u32 vcc, 1, v23")
        e("v_lshlrev_b32 v23, 16, v22"); e("v_and_b32 v22, 0xffff0000, v22")
        e("v_cndmask_b32 v22, v23, v22, vcc")
        e("v_add_f32 v8, v8, v22")
        self.nop(1)
        e("v_mov_b32_dpp v9, v8 quad_perm:[1,0,3,2] row_mask:0xf bank_mask:0xf")
        e("v_cvt_pk_bf16_f32 v9, v8, v9")
        e("v_lshlrev_b32 v14, 1, v%d" % vL)
        e("s_cmp_eq_u32 s%d, 0" % sPass); e("s_cbranch_scc0 L_C_out")
        e("v_mov_b32 v15, -2"); e("v_min_u32 v9, v9, v15")
        e("s_lshl_b32 s%d, s%d, 7" % (sT1, sIdx))
        self.addr(sA, pWs, M5, [sT1])
        e("s_mov_b64 exec, 0x5555")
        e("global_store_dword v14, v9, %s sc1" % sp(sA))
        e("s_mov_b64 exec, -1")
        e("s_branch L_C_done")
        self.lab("L_C_out")
        e("s_lshl_b32 s%d, s%d, 5" % (sT1, sIdx))
        self.addr(sA, pOut, 0, [sT1])
        e("s_mov_b64 exec, 0x5555")
        e("global_store_dword v14, v9, %s" % sp(sA))
        e("s_mov_b64 exec, -1")
        self.lab("L_C_done")


    def poll2(self, mk_loads, n, sets, dst, name="Q"):
        e = self.e
        A, B = sets
        nl = len(mk_loads(A))
        L = self.nl(name); DA = self.nl(name + "a"); DB = self.nl(name + "b"); D = self.nl(name + "d")
        def check(base, target):
            rr = list(range(base, base + n))
            t = self.ptmp
            if n == 1:
                t = base
            else:
                if n >= 3:
                    e("v_max3_u32 v%d, v%d, v%d, v%d" % (t, rr[0], rr[1], rr[2])); rr = rr[3:]
                else:
                    e("v_max_u32 v%d, v%d, v%d" % (t, rr[0], rr[1])); rr = rr[2:]
                while rr:
                    if len(rr) >= 2:
                        e("v_max3_u32 v%d, v%d, v%d, v%d" % (t, t, rr[0], rr[1])); rr = rr[2:]
                    else:
                        e("v_max_u32 v%d, v%d, v%d" % (t, t, rr[0])); rr = rr[1:]
            e("v_cmp_eq_u32 vcc, -1, v%d" % t)
            e("s_cbranch_vccz %s" % target)
        e("s_mov_b32 s%d, 0" % sSpin)
        for ld in mk_loads(A): e(ld)
        self.lab(L)
        for ld in mk_loads(B): e(ld)
        e("s_waitcnt vmcnt(%d)" % nl)
        check(A, DA)
        for ld in mk_loads(A): e(ld)
        e("s_waitcnt vmcnt(%d)" % nl)
        check(B, DB)
        e("s_add_u32 s%d, s%d, 1" % (sSpin, sSpin))
        e("s_cmp_lt_u32 s%d, %d" % (sSpin, SPIN_LIMIT))
        e("s_cbranch_scc1 %s" % L)
        e("s_waitcnt vmcnt(0)")
        self.lab(DA)
        for i in range(n): e("v_mov_b32 v%d, v%d" % (dst + i, A + i))
        e("s_branch %s" % D)
        self.lab(DB)
        for i in range(n): e("v_mov_b32 v%d, v%d" % (dst + i, B + i))
        self.lab(D)

    ptmp = 31

    def rc2(self):
        e = self.e
        e("v_lshrrev_b32 v28, 4, v%d" % vL); e("v_bfe_u32 v29, v%d, 2, 2" % vL); e("v_and_b32 v30, 3, v%d" % vL)

    @property
    def NPRE(self):
        return 7 if self.o.get('stamps') else 8

    def breg(self, m):
        return 32 + 4 * (m % self.NPRE)

    def b_issue(self, lq, m, b_step, b_second):
        r = self.breg(m)
        lq.issue("ds_read_b64_tr_b16 v[%d:%d], v7 offset:%d" % (r, r + 1, m * b_step), ("B", m))
        lq.issue("ds_read_b64_tr_b16 v[%d:%d], v7 offset:%d" % (r + 2, r + 3, m * b_step + b_second), ("B", m))

    def chain2(self, lq, n, b_step, b_second, acc=16):
        e = self.e
        Ab = [20, 24, 28]
        def a_issue(m):
            lq.issue("ds_read2_b64 v[%d:%d], v6 offset0:%d offset1:%d" % (Ab[m % 3], Ab[m % 3] + 3, 8 * m, 8 * m + 4), ("A", m))
        for m in range(3):
            a_issue(m)
        for m in range(n):
            lq.wait([("A", m), ("B", m)])
            c = "0" if m == 0 else vr(acc, 4)
            e("v_mfma_f32_16x16x32_bf16 %s, %s, %s, %s" % (vr(acc, 4), vr(Ab[m % 3], 4), vr(self.breg(m), 4), c))
            if m + 3 < n:
                a_issue(m + 3)
            if m + self.NPRE < n:
                self.b_issue(lq, m + self.NPRE, b_step, b_second)
        self.nop(8)

    def ln2(self):
        e = self.e
        F = 20
        e("v_cmp_gt_u32 vcc, 56, v%d" % vL)
        for d in range(4):
            e("v_lshlrev_b32 v%d, 16, v%d" % (F + 2 * d, 16 + d))
            e("v_and_b32 v%d, 0xffff0000, v%d" % (F + 2 * d + 1, 16 + d))
        e("v_pk_add_f32 v[28:29], v[20:21], v[22:23]")
        e("v_pk_mul_f32 v[30:31], v[20:21], v[20:21]")
        e("v_pk_add_f32 v[16:17], v[24:25], v[26:27]")
        e("v_pk_fma_f32 v[30:31], v[22:23], v[22:23], v[30:31]")
        e("v_pk_add_f32 v[28:29], v[28:29], v[16:17]")
        e("v_pk_fma_f32 v[30:31], v[24:25], v[24:25], v[30:31]")
        e("v_add_f32 v28, v28, v29")
        e("v_pk_fma_f32 v[30:31], v[26:27], v[26:27], v[30:31]")
        e("v_cndmask_b32 v28, 0, v28, vcc")
        e("v_add_f32 v30, v30, v31")
        e("v_cndmask_b32 v30, 0, v30, vcc")
        for n in (8, 4, 2, 1):
            self.nop(1)
            e("v_add_f32_dpp v28, v28, v28 row_ror:%d row_mask:0xf bank_mask:0xf" % n)
            e("v_add_f32_dpp v30, v30, v30 row_ror:%d row_mask:0xf bank_mask:0xf" % n)
        for sw in ("v_permlane16_swap_b32", "v_permlane32_swap_b32"):
            e("v_mov_b32 v29, v28"); e("v_mov_b32 v31, v30"); self.nop(1)
            e("%s v28, v29" % sw); e("%s v30, v31" % sw)
            e("v_add_f32 v28, v28, v29"); e("v_add_f32 v30, v30, v31")
        e("v_mul_f32 v28, 0x3b124925, v28")
        e("v_mul_f32 v30, 0x3b124925, v30")
        e("v_cvt_pk_bf16_f32 v29, v28, v28")
        e("v_fma_f32 v30, -v28, v28, v30")
        e("v_and_b32 v28, 0xffff0000, v29")
        e("v_max_f32 v30, 0, v30")
        e("v_cvt_pk_bf16_f32 v31, v30, v30")
        e("v_pk_add_f32 v[20:21], v[20:21], v[28:29] op_sel_hi:[1,0] neg_lo:[0,1] neg_hi:[0,1]")
        e("v_and_b32 v30, 0xffff0000, v31")
        e("v_pk_add_f32 v[22:23], v[22:23], v[28:29] op_sel_hi:[1,0] neg_lo:[0,1] neg_hi:[0,1]")
        e("v_add_f32 v30, 0x3727c5ac, v30")
        e("v_pk_add_f32 v[24:25], v[24:25], v[28:29] op_sel_hi:[1,0] neg_lo:[0,1] neg_hi:[0,1]")
        e("v_cvt_pk_bf16_f32 v31, v30, v30")
        e("v_pk_add_f32 v[26:27], v[26:27], v[28:29] op_sel_hi:[1,0] neg_lo:[0,1] neg_hi:[0,1]")
        e("v_and_b32 v30, 0xffff0000, v31")
        e("v_cvt_pk_bf16_f32 v16, v20, v21")
        e("v_sqrt_f32 v30, v30")
        e("v_cvt_pk_bf16_f32 v17, v22, v23")
        e("v_cvt_pk_bf16_f32 v18, v24, v25")
        e("v_cvt_pk_bf16_f32 v31, v30, v30")
        e("v_cvt_pk_bf16_f32 v19, v26, v27")
        e("v_and_b32 v30, 0xffff0000, v31")
        e("v_lshlrev_b32 v20, 16, v16")
        e("v_rcp_f32 v30, v30")
        e("v_and_b32 v21, 0xffff0000, v16")
        for d in range(1, 4):
            e("v_lshlrev_b32 v%d, 16, v%d" % (F + 2 * d, 16 + d))
            e("v_and_b32 v%d, 0xffff0000, v%d" % (F + 2 * d + 1, 16 + d))
        for d in range(4):
            e("v_pk_mul_f32 v[%d:%d], v[%d:%d], v[30:31] op_sel_hi:[1,0]" % (F + 2 * d, F + 2 * d + 1, F + 2 * d, F + 2 * d + 1))
        for d in range(4):
            e("v_cvt_pk_bf16_f32 v%d, v%d, v%d" % (16 + d, F + 2 * d, F + 2 * d + 1))
        e("ds_write_b128 v5, v[16:19]")
        e("s_waitcnt lgkmcnt(0)")

    def prepBD(self, role):
        e = self.e
        self.rc2()
        e("v_lshlrev_b32 v6, 3, v28"); e("v_add_u32 v6, s%d, v6" % sVec)
        e("v_lshlrev_b32 v5, 4, v%d" % vL); e("v_add_u32 v5, s%d, v5" % sVec)
        e("v_lshl_add_u32 v7, v28, 2, v29")
        if role == "D":
            e("v_bfe_u32 v31, v7, 1, 2"); e("v_xor_b32 v31, s%d, v31" % sWave)
            e("v_lshlrev_b32 v7, 7, v7"); e("v_lshl_add_u32 v7, v31, 5, v7"); e("v_lshl_add_u32 v7, v30, 3, v7"); e("v_add_u32 v7, %d, v7" % L_W)
            st = (4096, 2048)
        elif role == "B":
            e("v_lshlrev_b32 v7, 6, v7")
            e("v_and_b32 v31, 1, v30"); e("v_lshl_add_u32 v7, v31, 3, v7")
            e("v_lshrrev_b32 v31, 1, v30"); e("v_mul_u32_u24 v31, %d, v31" % B_IMG3); e("v_add_u32 v7, v7, v31")
            e("s_lshl_b32 s%d, s%d, 4" % (sT0, sWave)); e("s_add_u32 s%d, s%d, %d" % (sT0, sT0, L_W)); e("v_add_u32 v7, s%d, v7" % sT0)
            st = (2048, 1024)
        else:
            e("s_mul_i32 s%d, s%d, %d" % (sT0, sWave, C_WAVE)); e("s_add_u32 s%d, s%d, %d" % (sT0, sT0, L_W))
            e("v_lshlrev_b32 v7, 5, v7"); e("v_lshl_add_u32 v7, v30, 3, v7"); e("v_add_u32 v7, s%d, v7" % sT0)
            st = (1024, 512)
        lq = LQ(self)
        for m in range(self.NPRE):
            self.b_issue(lq, m, st[0], st[1])
        return lq, st

    def poll_x2(self, mode):
        e = self.e
        e("v_min_u32 v19, 55, v%d" % vL)
        if mode == "M3":
            e("v_lshlrev_b32 v19, 7, v19")
        else:
            e("v_and_b32 v18, 1, v19"); e("v_lshrrev_b32 v19, 1, v19"); e("v_lshlrev_b32 v19, 7, v19"); e("v_lshl_add_u32 v19, v18, 4, v19")
        e("v_mov_b32 v29, v19")
        self.poll2(lambda b: ["global_load_dwordx4 v[%d:%d], v29, %s sc1" % (b, b + 3, sp(sA))], 4, (8, 12), 16, "Qx")

    def publish_pairs(self, val, tmp, base_pair, off_vreg, mask):
        e = self.e
        e("v_mov_b32_dpp v%d, v%d quad_perm:[1,0,3,2] row_mask:0xf bank_mask:0xf" % (tmp, val))
        e("v_cvt_pk_bf16_f32 v%d, v%d, v%d" % (tmp, val, tmp))
        e("v_min_u32 v%d, v%d, v%d" % (tmp, tmp, 27))
        e("s_mov_b64 exec, 0x%x" % mask)
        e("global_store_dword v%d, v%d, %s sc1" % (off_vreg, tmp, sp(base_pair)))
        e("s_mov_b64 exec, -1")

    def stageD2_prep(self):
        self.lqD, self.stD = self.prepBD("D")

    def stageD2_rest(self):
        e = self.e
        lq = LQ(self); lq.q = [("B", m) for m in range(self.NPRE) for _ in range(2)]
        self.ln2(); lq.q = []
        self.chain2(lq, 14, 4096, 2048)
        e("v_mov_b32 v27, -2"); e("v_lshlrev_b32 v26, 1, v%d" % vL)
        self.publish_pairs(16, 25, sB, 26, 0x5555)

    def stage_B2(self):
        e = self.e
        e("s_waitcnt vmcnt(0)"); e("s_barrier")
        self.stamp(11)
        lq, st = self.prepBD("B")
        e("s_lshl_b32 s%d, s%d, 13" % (sT0, sPass)); e("s_lshl_b32 s%d, s%d, 7" % (sT1, sIdx)); e("s_lshl_b32 s%d, s%d, 4" % (sT2, sWave))
        self.addr(sB, pWs, M4, [sT0, sT1, sT2])
        self.addr(sA, pWs, M3, [sT0])
        self.poll_x2("M3")
        self.stamp(8)
        self.ln2(); lq.q = []
        self.chain2(lq, 14, st[0], st[1])
        e("v_cvt_pk_bf16_f32 v17, v16, v16"); e("v_and_b32 v16, 0xffff0000, v17")
        e("v_mul_f32 v19, 0xbfb8aa3b, v16")
        e("v_exp_f32 v19, v19")
        e("v_mov_b32_dpp v18, v16 row_ror:8 row_mask:0xf bank_mask:0xf")
        e("v_add_f32 v19, 1.0, v19")
        e("v_rcp_f32 v19, v19"); e("v_mov_b32 v27, -2")
        e("v_mul_f32 v19, v16, v19")
        e("v_cvt_pk_bf16_f32 v17, v19, v19"); e("v_and_b32 v19, 0xffff0000, v17")
        e("v_mul_f32 v19, v19, v18")
        e("v_lshlrev_b32 v26, 1, v%d" % vL); self.nop(1)
        self.publish_pairs(19, 25, sB, 26, 0x55)
        self.stamp(9)
        e("s_waitcnt vmcnt(1)")

    def stage_C2(self):
        e = self.e
        e("s_waitcnt vmcnt(0)")
        self.stamp(11)
        lq, st = self.prepBD("C")
        e("s_lshl_b32 s%d, s%d, 13" % (sT0, sPass)); e("s_lshl_b32 s%d, s%d, 8" % (sT1, sIdx))
        self.addr(sB, pWs, M3, [sT0, sT1])
        e("v_bfe_u32 v20, v%d, 3, 1" % vL); e("v_lshlrev_b32 v20, 7, v20")
        e("v_bfe_u32 v21, v%d, 1, 2" % vL); e("v_lshl_add_u32 v20, v21, 2, v20")
        self.poll(["global_load_dword v22, v20, %s sc1" % sp(sB)], [22], 23, "Pr")
        self.stamp(12)
        e("v_and_b32 v23, 1, v%d" % vL); e("v_cmp_eq_u32 vcc, 1, v23")
        e("v_lshlrev_b32 v23, 16, v22"); e("v_and_b32 v22, 0xffff0000, v22")
        e("v_cndmask_b32 v22, v23, v22, vcc")
        e("v_and_b32 v23, 15, v%d" % vL); e("v_lshlrev_b32 v23, 2, v23")
        e("ds_write_b32 v23, v22 offset:%d" % (L_RED + 256))
        lq.q.append(("S", 0))
        e("s_lshl_b32 s%d, s%d, 13" % (sT0, sPass)); e("s_mul_i32 s%d, s%d, %d" % (sT1, sWave, 14 * 128))
        self.addr(sA, pWs, M4, [sT0, sT1])
        e("v_min_u32 v29, 55, v%d" % vL)
        e("v_and_b32 v28, 3, v29"); e("v_lshrrev_b32 v29, 2, v29"); e("v_lshlrev_b32 v29, 7, v29"); e("v_lshl_add_u32 v29, v28, 4, v29")
        e("s_cmp_eq_u32 s%d, 0" % sPass)
        e("s_lshl_b32 s%d, s%d, 7" % (sT1, sIdx)); e("s_lshl_b32 s%d, s%d, 5" % (sT2, sIdx))
        lo = self.nl("Lco"); ld = self.nl("Lcod")
        e("s_cmp_eq_u32 s%d, 0" % sPass); e("s_cbranch_scc0 %s" % lo)
        self.addr(sB, pWs, M5, [sT1]); e("s_branch %s" % ld)
        self.lab(lo); self.addr(sB, pOut, 0, [sT2]); self.lab(ld)
        self.poll2(lambda b: ["global_load_dwordx4 v[%d:%d], v29, %s sc1" % (b, b + 3, sp(sA))], 4, (8, 12), 16, "Qh")
        self.stamp(8)
        e("ds_write_b128 v5, v[16:19]")
        e("s_waitcnt lgkmcnt(0)"); lq.q = []
        self.chain2(lq, 14, st[0], st[1])
        e("v_and_b32 v20, 15, v%d" % vL); e("v_lshlrev_b32 v20, 2, v20")
        e("s_lshl_b32 s%d, s%d, 6" % (sT0, sWave)); e("s_add_u32 s%d, s%d, %d" % (sT0, sT0, L_RED))
        e("v_add_u32 v21, s%d, v20" % sT0)
        e("ds_write_b32 v21, v16")
        e("s_waitcnt lgkmcnt(0)")
        e("s_barrier")
        lz = self.nl("Lcz")
        e("s_cmp_eq_u32 s%d, 0" % sWave); e("s_cbranch_scc0 %s" % lz)
        for w in range(4):
            e("ds_read_b32 v%d, v20 offset:%d" % (22 + w, L_RED + w * 64))
        e("ds_read_b32 v21, v20 offset:%d" % (L_RED + 256))
        e("v_mov_b32 v27, -2"); e("v_lshlrev_b32 v26, 1, v%d" % vL)
        e("s_waitcnt lgkmcnt(0)")
        e("v_add_f32 v22, v22, v23"); e("v_add_f32 v24, v24, v25"); e("v_add_f32 v16, v22, v24")
        e("v_cvt_pk_bf16_f32 v17, v16, v16"); e("v_and_b32 v16, 0xffff0000, v17")
        e("v_add_f32 v16, v16, v21")
        self.nop(1)
        self.publish_pairs(16, 25, sB, 26, 0x5555)
        le = self.nl("Lce")
        self.stamp(9)
        e("s_waitcnt vmcnt(1)"); e("s_branch %s" % le)
        self.lab(lz)
        e("s_waitcnt vmcnt(0)")
        self.lab(le)


    def stage_O2(self):
        e = self.e
        self.rc2()
        e("v_lshlrev_b32 v6, 3, v28"); e("v_add_u32 v6, s%d, v6" % sVec)
        e("v_lshl_add_u32 v7, v28, 2, v29"); e("v_mul_u32_u24 v7, %d, v7" % O_ROW); e("v_lshl_add_u32 v7, v30, 3, v7")
        e("s_mul_i32 s%d, s%d, 224" % (sT0, sWave)); e("s_add_u32 s%d, s%d, %d" % (sT0, sT0, L_W)); e("v_add_u32 v7, s%d, v7" % sT0)
        e("v_and_b32 v5, 15, v%d" % vL); e("v_lshlrev_b32 v5, 3, v5")
        e("v_lshrrev_b32 v9, 5, v%d" % vL); e("v_lshl_add_u32 v5, v9, 2, v5"); e("v_add_u32 v5, s%d, v5" % sVec)
        e("s_mul_i32 s%d, s%d, %d" % (sT0, sIdx, M2_SLOT)); e("s_mul_i32 s%d, s%d, 0x%x" % (sT1, sPass, M2_R)); e("s_mul_i32 s%d, s%d, 448" % (sT2, sWave))
        self.addr(sB, pWs, M2, [sT0, sT1, sT2])
        e("s_mul_i32 s%d, s%d, %d" % (sT0, sIdx, 16 * M1_SLOT)); e("s_mul_i32 s%d, s%d, 0x%x" % (sT1, sPass, M1_R))
        self.addr(sA, pWs, M1 + 2304, [sT0, sT1])
        e("v_mul_u32_u24 v10, %d, v28" % M1_SLOT)
        e("v_and_b32 v11, 15, v%d" % vL); e("v_lshl_add_u32 v11, v11, 4, v10")
        e("v_add_u32 v10, 256, v10")
        e("s_mov_b32 s%d, 0x%x" % (sT3, C_EXP))
        loads = []
        for j in range(4):
            off = j * 4 * M1_SLOT - 2304
            loads.append("global_load_dwordx2 v[%d:%d], v10, %s offset:%d sc1" % (48 + 2 * j, 49 + 2 * j, sp(sA), off))
            loads.append("global_load_dwordx4 v[%d:%d], v11, %s offset:%d sc1" % (32 + 4 * j, 35 + 4 * j, sp(sA), off))
        self.poll(loads, list(range(32, 56)), 56, "Ps1")
        self.stamp(8)
        e("v_max3_f32 v56, v48, v50, v52"); e("v_max_f32 v56, v56, v54")
        for sw in ("v_permlane16_swap_b32", "v_permlane32_swap_b32"):
            e("v_mov_b32 v57, v56"); self.nop(2); e("%s v56, v57" % sw); e("v_max_f32 v56, v56, v57")
        for j in range(4):
            e("v_sub_f32 v%d, v%d, v56" % (48 + 2 * j, 48 + 2 * j))
        for j in range(4):
            e("v_mul_f32 v%d, s%d, v%d" % (48 + 2 * j, sT3, 48 + 2 * j))
        for j in range(4):
            e("v_exp_f32 v%d, v%d" % (48 + 2 * j, 48 + 2 * j))
        self.nop(1)
        e("v_mul_f32 v56, v48, v49")
        e("v_pk_mul_f32 v[32:33], v[32:33], v[48:49] op_sel_hi:[1,0]"); e("v_pk_mul_f32 v[34:35], v[34:35], v[48:49] op_sel_hi:[1,0]")
        for j in range(1, 4):
            e("v_fmac_f32 v56, v%d, v%d" % (48 + 2 * j, 49 + 2 * j))
            e("v_pk_fma_f32 v[32:33], v[%d:%d], v[%d:%d], v[32:33] op_sel_hi:[1,0,1]" % (32 + 4 * j, 33 + 4 * j, 48 + 2 * j, 49 + 2 * j))
            e("v_pk_fma_f32 v[34:35], v[%d:%d], v[%d:%d], v[34:35] op_sel_hi:[1,0,1]" % (34 + 4 * j, 35 + 4 * j, 48 + 2 * j, 49 + 2 * j))
        e("v_mov_b32 v57, v56"); self.nop(1)
        e("v_permlane32_swap_b32 v32, v34"); e("v_permlane32_swap_b32 v33, v35"); e("v_permlane32_swap_b32 v56, v57")
        e("v_add_f32 v32, v32, v34"); e("v_add_f32 v33, v33, v35"); e("v_add_f32 v56, v56, v57")
        e("v_mov_b32 v34, v32"); e("v_mov_b32 v35, v33"); e("v_mov_b32 v57, v56"); self.nop(1)
        e("v_permlane16_swap_b32 v32, v34"); e("v_permlane16_swap_b32 v33, v35"); e("v_permlane16_swap_b32 v56, v57")
        e("v_add_f32 v56, v56, v57"); e("v_add_f32 v32, v32, v34"); e("v_rcp_f32 v56, v56"); e("v_add_f32 v33, v33, v35")
        self.nop(1)
        e("v_pk_mul_f32 v[32:33], v[32:33], v[56:57] op_sel_hi:[1,0]")
        e("v_cvt_pk_bf16_f32 v32, v32, v33")
        lq = LQ(self)
        lq.issue("ds_write_b32 v5, v32", "W")
        if self.o.get("dbg_a"):
            e("s_lshl_b32 s%d, s%d, 13" % (sT0, sPass)); e("s_lshl_b32 s%d, s%d, 7" % (sT1, sIdx))
            self.addr(sA, pWs, 0xC0000, [sT0, sT1])
            e("v_subrev_u32 v35, s%d, v5" % sVec)
            e("global_store_dword v35, v32, %s" % sp(sA))
        steps = [(ct, m) for ct in range(7) for m in range(2)]
        def b_iss(k):
            ct, m = steps[k]; r = 44 + 4 * (k % 5)
            lq.issue("ds_read_b64_tr_b16 v[%d:%d], v7 offset:%d" % (r, r + 1, m * 32 * O_ROW + ct * 32), ("B", k))
            lq.issue("ds_read_b64_tr_b16 v[%d:%d], v7 offset:%d" % (r + 2, r + 3, (m * 32 + 16) * O_ROW + ct * 32), ("B", k))
        for k in range(5):
            b_iss(k)
        lq.wait(["W"])
        lq.issue("ds_read2_b64 v[36:39], v6 offset0:0 offset1:4", "A"); lq.issue("ds_read2_b64 v[40:43], v6 offset0:8 offset1:12", "A")
        for k, (ct, m) in enumerate(steps):
            lq.wait([("B", k), "A"])
            acc = [12, 16, 20, 24, 28, 32, 8][ct]
            c = "0" if m == 0 else vr(acc, 4)
            e("v_mfma_f32_16x16x32_bf16 %s, %s, %s, %s" % (vr(acc, 4), vr(36 + 4 * m, 4), vr(44 + 4 * (k % 5), 4), c))
            if k + 5 < len(steps):
                b_iss(k + 5)
        self.nop(8)
        for row in range(1, 4):
            e("s_mov_b32 exec_lo, 0x%x" % (0xffff0000 if row == 1 else 0))
            e("s_mov_b32 exec_hi, 0x%x" % (0 if row == 1 else (0xffff << (16 * (row - 2)))))
            e("v_mov_b32 v12, v%d" % (12 + 4 * row))
            if row < 3:
                e("v_mov_b32 v28, v%d" % (32 if row == 1 else 8))
        e("s_mov_b64 exec, -1")
        e("v_mov_b32 v41, -2"); e("v_lshlrev_b32 v42, 2, v%d" % vL); e("v_min_u32 v12, v12, v41"); e("v_min_u32 v28, v28, v41")
        e("global_store_dword v42, v12, %s sc1" % sp(sB))
        e("s_mov_b32 exec_hi, 0xffff")
        e("global_store_dword v42, v28, %s offset:256 sc1" % sp(sB))
        e("s_mov_b64 exec, -1")
        self.stamp(9)

    def stage_R2(self):
        e = self.e
        e("v_lshrrev_b32 v24, 4, v%d" % vL); e("v_lshlrev_b32 v24, 2, v24")
        e("s_cmp_eq_u32 s%d, 0" % sPass); e("s_cbranch_scc0 L_R_r1")
        e("s_lshl_b32 s%d, s%d, 4" % (sT0, sIdx))
        self.addr(sB, pX, 0, [sT0])
        e("s_branch L_R_r2")
        self.lab("L_R_r1")
        e("s_lshr_b32 s%d, s%d, 1" % (sT0, sIdx)); e("s_lshl_b32 s%d, s%d, 7" % (sT0, sT0))
        e("s_and_b32 s%d, s%d, 1" % (sT1, sIdx)); e("s_lshl_b32 s%d, s%d, 4" % (sT1, sT1))
        self.addr(sB, pWs, M5, [sT0, sT1])
        self.lab("L_R_r2")
        e("global_load_dword v25, v24, %s sc1" % sp(sB))
        e("s_lshl_b32 s%d, s%d, 13" % (sT0, sPass)); e("s_lshl_b32 s%d, s%d, 7" % (sT1, sIdx))
        self.addr(sB, pWs, M3, [sT0, sT1])
        e("s_lshl_b32 s%d, s%d, 5" % (sT0, sIdx)); e("s_mul_i32 s%d, s%d, 0x%x" % (sT1, sPass, M2_R))
        self.addr(sA, pWs, M2, [sT0, sT1])
        e("v_mul_u32_u24 v29, %d, v%d" % (M2_SLOT, vL)); e("v_mov_b32 v41, -2")
        self.poll2(lambda b: ["global_load_dwordx4 v[%d:%d], v29, %s sc1" % (b, b + 3, sp(sA)),
                              "global_load_dwordx4 v[%d:%d], v29, %s offset:16 sc1" % (b + 4, b + 7, sp(sA))], 8, (8, 16), 32, "Qr")
        self.stamp(8)
        self.nop(1)
        for d in range(4):
            e("v_permlane32_swap_b32 v%d, v%d" % (32 + d, 36 + d))
        e("v_pk_add_f32 v[32:33], v[32:33], v[36:37]"); e("v_pk_add_f32 v[34:35], v[34:35], v[38:39]")
        self.nop(2)
        e("v_permlane16_swap_b32 v32, v34"); e("v_permlane16_swap_b32 v33, v35")
        e("v_pk_add_f32 v[32:33], v[32:33], v[34:35]")
        for n in (8, 4, 2, 1):
            self.nop(1 if n == 8 else 1)
            if n == 8: self.nop(1)
            e("v_add_f32_dpp v32, v32, v32 row_ror:%d row_mask:0xf bank_mask:0xf" % n)
            e("v_add_f32_dpp v33, v33, v33 row_ror:%d row_mask:0xf bank_mask:0xf" % n)
        e("v_cvt_pk_bf16_f32 v34, v32, v33")
        e("v_lshlrev_b32 v35, 16, v25"); e("v_and_b32 v36, 0xffff0000, v25")
        e("v_lshlrev_b32 v32, 16, v34"); e("v_and_b32 v33, 0xffff0000, v34")
        e("v_add_f32 v32, v32, v35"); e("v_add_f32 v33, v33, v36")
        e("v_cvt_pk_bf16_f32 v34, v32, v33")
        e("v_min_u32 v34, v34, v41")
        e("s_mov_b32 exec_lo, 0x00010001"); e("s_mov_b32 exec_hi, 0x00010001")
        e("global_store_dword v24, v34, %s sc1" % sp(sB))
        e("s_mov_b64 exec, -1")
        self.stamp(9)
        e("s_waitcnt vmcnt(1)")


    def probe_near(self):
        e = self.e
        sk = self.nl("Lpr"); lp = self.nl("Lprl"); bar = self.nl("Lprb")
        NP = int(self.o.get("nprobe", 5))
        N = max(self.alN, 1)
        e("s_cmp_eq_u32 s%d, 0" % sPass); e("s_cbranch_scc0 %s" % sk)
        e("s_and_b32 s%d, s%d, 3" % (sT5, sIdx)); e("s_cmp_lt_u32 s%d, 2" % sT5); e("s_cbranch_scc0 %s" % sk)
        e("s_waitcnt vmcnt(0)")
        e("s_cmp_eq_u32 s%d, 0" % sWave); e("s_cbranch_scc0 %s" % bar)
        e("s_cmp_eq_u32 s%d, 1" % sT5)
        e("s_cselect_b32 s%d, s%d, s%d" % (sA, sVB, sKB)); e("s_cselect_b32 s%d, s%d, s%d" % (sA + 1, sVB + 1, sKB + 1))
        e("s_lshr_b32 s%d, s%d, 2" % (sT0, sIdx)); e("s_lshl_b32 s%d, s%d, 4" % (sT0, sT0))
        e("s_and_b32 s%d, s2, 7" % sT1); e("s_xor_b32 s%d, s%d, 4" % (sT1, sT1)); e("s_add_u32 s%d, s%d, s%d" % (sRho, sT0, sT1))
        e("s_mov_b32 s%d, s%d" % (sT0, sRho)); e("s_sub_i32 s%d, s%d, s2" % (sT1, sT0)); e("s_lshl_b32 s%d, s%d, 20" % (sT1, sT1)); e("s_add_i32 s%d, s%d, 3072" % (sT1, sT1))
        e("s_ashr_i32 s%d, s%d, 31" % (sT2, sT1))
        e("s_add_u32 s%d, s%d, s%d" % (sA, sA, sT1)); e("s_addc_u32 s%d, s%d, s%d" % (sA + 1, sA + 1, sT2))
        e("s_mul_i32 s%d, s%d, %d" % (sT4, sT0, self.stag)); e("s_and_b32 s%d, s%d, 63" % (sT4, sT4)); e("s_mul_i32 s%d, s%d, %d" % (sT4, sT4, self.stride))
        e("s_cmp_eq_u32 s%d, 1" % sT5); e("s_cselect_b32 s%d, 65, 29" % sT0)
        e("s_lshr_b32 s%d, s%d, 3" % (sT1, sRho)); e("s_add_u32 s%d, s%d, s%d" % (sT0, sT0, sT1)); e("s_add_u32 s%d, s%d, 32" % (sT0, sT0))
        e("s_sub_u32 s%d, 0, s%d" % (sT0, sT0)); e("s_and_b32 s%d, s%d, %d" % (sT0, sT0, N - 1)); e("s_add_u32 s%d, s%d, 32" % (sT0, sT0))
        e("s_mul_i32 s%d, s%d, %d" % (sT0, sT0, self.stride)); e("s_add_u32 s%d, s%d, s%d" % (sT1, sT4, sT0)); e("s_and_b32 s%d, s%d, 0x%x" % (sT1, sT1, 64 * self.stride - 1))
        e("s_mov_b32 s%d, -1" % sT2); e("s_mov_b32 s%d, -1" % sT3); e("s_mov_b32 s%d, %d" % (sT0, NP))
        self.lab(lp)
        for par, acc in ((0, sT2), (1, sT3)):
            e("s_add_u32 s%d, s%d, %d" % (sT4, sT1, par * 8192 + 1024)); e("v_mov_b32 v8, s%d" % sT4)
            e("s_memtime s[90:91]"); e("s_waitcnt lgkmcnt(0)"); e("s_mov_b32 s%d, s90" % sT4)
            e("global_load_dword v9, v8, %s nt" % sp(sA))
            e("s_waitcnt vmcnt(0)")
            e("s_memtime s[90:91]"); e("s_waitcnt lgkmcnt(0)")
            e("s_sub_u32 s%d, s90, s%d" % (sT4, sT4)); e("s_min_u32 s%d, s%d, s%d" % (acc, acc, sT4))
        e("s_add_u32 s%d, s%d, %d" % (sT1, sT1, N * self.stride)); e("s_and_b32 s%d, s%d, 0x%x" % (sT1, sT1, 64 * self.stride - 1))
        e("s_sub_u32 s%d, s%d, 1" % (sT0, sT0)); e("s_cmp_lg_u32 s%d, 0" % sT0); e("s_cbranch_scc1 %s" % lp)
        e("s_lshr_b32 s%d, s%d, 1" % (sT0, sRho)); e("s_lshr_b32 s%d, s2, 2" % sT1); e("s_xor_b32 s%d, s%d, s%d" % (sT0, sT0, sT1)); e("s_and_b32 s%d, s%d, 1" % (sT0, sT0))
        e("s_cmp_gt_u32 s%d, s%d" % (sT2, sT3)); e("s_cselect_b32 s%d, 1, 0" % sT1); e("s_xor_b32 s%d, s%d, s%d" % (sT1, sT1, sT0))
        if self.o.get("dbg_probe"):
            e("s_lshr_b32 s%d, s%d, 3" % (sT2, sT2)); e("s_min_u32 s%d, s%d, 0x3ff" % (sT2, sT2)); e("s_lshl_b32 s%d, s%d, 2" % (sT2, sT2))
            e("s_lshr_b32 s%d, s%d, 3" % (sT3, sT3)); e("s_min_u32 s%d, s%d, 0x3ff" % (sT3, sT3)); e("s_lshl_b32 s%d, s%d, 12" % (sT3, sT3))
            e("s_or_b32 s%d, s%d, s%d" % (sT1, sT1, sT2)); e("s_or_b32 s%d, s%d, s%d" % (sT1, sT1, sT3))
        e("v_mov_b32 v8, s%d" % sT1)
        e("s_lshr_b32 s%d, s%d, 2" % (sT0, sIdx)); e("s_lshl_b32 s%d, s%d, 7" % (sT0, sT0)); e("s_lshl_b32 s%d, s%d, 2" % (sT1, sT5))
        self.addr(sB, pWs, M8, [sT0, sT1])
        e("v_mov_b32 v9, 0")
        e("s_mov_b64 exec, 1")
        e("global_store_dword v9, v8, %s sc1" % sp(sB))
        e("s_mov_b64 exec, -1")
        self.lab(bar)
        e("s_barrier")
        self.lab(sk)

    def build(self):
        e = self.e
        self.prologue()
        self.dbg_span(2)
        self.stamp(0)
        self.weights_setup('start')
        e("v_min_u32 v9, 55, v%d" % vL); e("v_lshlrev_b32 v9, 4, v9")
        xr = 16 if int(self.o.get("gap2", 1)) else 32
        e("global_load_dwordx4 v[%d:%d], v9, %s" % (xr, xr + 3, sp(pX)))
        self.clear_mailboxes()
        for u in range(self.R):
            self.group(u)
        self.stamp(1)
        self.p1a()
        self.stamp(2)
        self.lab("L_pass")
        self.gather_q()
        self.dbg_span_pass(6)
        self.stamp(3)
        self.kphase()
        self.stamp(4)
        self.softmax()
        self.vphase()
        self.stamp(5)
        self.combine_publish()
        self.dbg_span_pass(4)
        self.stamp(6)
        g2 = int(self.o.get("gap2", 1))
        e("s_cmp_eq_u32 s%d, 1" % sRole); e("s_cbranch_scc1 L_roleO")
        e("s_cmp_eq_u32 s%d, 4" % sRole); e("s_cbranch_scc1 L_roleD")
        if self.gapw:
            lw = self.nl("Lgw")
            e("s_cmp_eq_u32 s%d, 0" % sPass); e("s_cbranch_scc0 %s" % lw)
            e("s_cmp_eq_u32 s%d, 0" % sRole); e("s_cbranch_scc1 %s" % lw)
            self.weights_setup('gap')
            for i in range(14):
                self.xop(i)
            self.lab(lw)
        e("s_cmp_eq_u32 s%d, 2" % sRole); e("s_cbranch_scc1 L_roleB")
        e("s_cmp_eq_u32 s%d, 3" % sRole); e("s_cbranch_scc1 L_roleC")
        self.topup()
        e("s_branch L_next")
        self.lab("L_roleO")
        self.stage_O2() if g2 else self.stage_S1()
        if self.p2n == 2:
            self.probe_near()
            self.topup(2)
        else:
            self.topup()
        e("s_branch L_next")
        self.lab("L_roleB")
        if g2:
            self.stage_B2(); self.topup()
        else:
            self.topup(); self.stage_B()
        e("s_branch L_next")
        self.lab("L_roleC")
        if g2:
            self.stage_C2(); self.topup(int(self.o.get("tpaceC", 0)))
        else:
            self.topup(); self.stage_C()
        e("s_branch L_next")
        self.lab("L_roleD")
        e("s_cmp_eq_u32 s%d, 0" % sWave); e("s_cbranch_scc0 L_D_rdone")
        e("s_cmp_lt_u32 s%d, 56" % sIdx); e("s_cbranch_scc0 L_D_rdone")
        self.stage_R2() if g2 else self.stage_R()
        self.lab("L_D_rdone")
        self.topup()
        e("s_cmp_eq_u32 s%d, 0" % sPass); e("s_cbranch_scc0 L_next")
        if g2:
            e("s_call_b64 %s, L_stageD_prep" % sp(sRet2))
            self.addr(sA, pWs, M5)
            self.poll_x2("M5")
            self.stamp(10)
            e("s_lshl_b32 s%d, s%d, 7" % (sT0, sIdx)); e("s_lshl_b32 s%d, s%d, 5" % (sT1, sWave))
            self.addr(sB, pWs, M6 + MR, [sT0, sT1])
            e("s_call_b64 %s, L_stageD_rest" % sp(sRet2))
            e("s_waitcnt vmcnt(1)")
        else:
            self.addr(sA, pWs, M5)
            self.gather_x(M5, "M5")
            self.stamp(10)
            self.addr(sA, pWs, M6 + MR)
            e("s_call_b64 %s, L_stageD" % sp(sRet2))
        self.lab("L_next")
        self.stamp(7)
        e("s_add_u32 s%d, s%d, 1" % (sPass, sPass))
        e("s_cmp_lt_u32 s%d, 2" % sPass)
        e("s_cbranch_scc1 L_pass")
        self.dump_stamps()
        self.dbg_span(3)
        e("s_waitcnt vmcnt(0)")
        self.lab("L_end")
        e("s_endpgm")
        if int(self.o.get("gap2", 1)):
            self.lab("L_stageD_prep")
            self.stageD2_prep()
            e("s_setpc_b64 %s" % sp(sRet2))
            self.lab("L_stageD_rest")
            self.stageD2_rest()
            e("s_setpc_b64 %s" % sp(sRet2))
        else:
            self.lab("L_stageD")
            self.stage_D(None)
            e("s_setpc_b64 %s" % sp(sRet2))
        self.emit_switch()
        self.lab("L_endcode")
        e("s_endpgm")
        return self.a.text()


HEADER = """; Persistent fused decode kernel: [attn -> mlp] x2, V tiles kept resident in registers across the two attention passes.
; @launch grid=(256,1,1) block=(256,1,1) lds=%d
.amdgcn_target "amdgcn-amd-amdhsa--gfx950"
.text
.globl %s
.p2align 8
.type %s,@function
%s:
"""
FOOTER = """.section .rodata,"a"
.p2align 6
.amdhsa_kernel %s
  .amdhsa_next_free_vgpr 512
  .amdhsa_next_free_sgpr 102
  .amdhsa_accum_offset 256
  .amdhsa_group_segment_fixed_size 0
  .amdhsa_kernarg_size 96
  .amdhsa_user_sgpr_count 2
  .amdhsa_user_sgpr_kernarg_segment_ptr 1
  .amdhsa_system_sgpr_workgroup_id_x 1
  .amdhsa_float_denorm_mode_32 3
.end_amdhsa_kernel
"""


def generate(opt=None):
    opt = opt or {}
    g = Gen(opt)
    body = g.build()
    return HEADER % (LDS_TOTAL, KNAME, KNAME, KNAME) + body + FOOTER % KNAME


if __name__ == "__main__":
    out = sys.argv[1] if len(sys.argv) > 1 else "gen/kernel.s"
    opt = {}
    for kv in sys.argv[2:]:
        k, v = kv.split("=")
        opt[k] = v
    open(out, "w").write(generate(opt))
    print("wrote", out)
```

```python
import sys, os
sys.path.insert(0, os.path.dirname(os.path.abspath(__file__)))
from asmlib import Asm

KNAME = "interleave_layers__mha_block_cached__glu_gated_swiglu__decode_kernel"

L_Q = 0
L_Z = 2176
L_SM = 2688
L_RED = 2752
L_ST = 2048
L_P = 3072
L_W = 7168
LDS_TOTAL = 163840
RING_NONE = 7168
RING_ROLE = 65536
O_ROW = 912
B_IMG3 = 28704
C_WAVE = 14336

M1 = 0x0; M1_R = 0x60000; M1_SLOT = 384
M2 = 0x100000; M2_R = 0x20000; M2_SLOT = 1792; M3 = 0xC4000; M4 = 0xC8000; M5 = 0xCC000; M6 = 0xCE000; MR = 0x2000
DBG = 0x200000

NRES_PAIRS = 7
NRES_T = 2 * NRES_PAIRS
NSTR_T = 32 - NRES_T
STRIDE = 16384
SPIN_LIMIT = 1 << 18
C_EXP = 0x3DB8AA3B
LOG2E = 0x3FB8AA3B

sW, sWave = 2, 3
pX, pK, pV, pWq, pWo, pW1, pW3, pW2, pOut, pDbg, pWs = 8, 10, 12, 14, 16, 20, 22, 24, 26, 28, 30
sKB, sVB = 32, 34
sCUR = 36
sSlot, sRs, sRe, sOff, sLeft, sSeg, sCs, sPass = 40, 41, 42, 43, 44, 45, 46, 47
sRole, sIdx, sH, sC, sNS, sVec, sWl, sSpin = 48, 49, 50, 51, 52, 53, 54, 55
sM = [56, 58, 60, 62]
sMd, sRet, sEx = 64, 66, 68
sT0, sT1, sT2, sT3, sT4, sT5 = 70, 71, 72, 73, 74, 75
sA = 76
sB = 78
sT15 = 80
sRho = 19
sWS = 84
sRet2 = 88
sWlds, sWlstep, sWoff, sWoff0, sWstep = 94, 95, 96, 97, 98
sAlloc = 99
sQok = 100
sJ, sLen, sIsV, sNM, sVadd = 43, 44, 16, 14, 54
sZ = 81
sN, sWb, sSwM, sOf2 = 16, 17, 14, 15
sKN, sVN, sRotN, sXch, sTm0, sTm1 = 10, 12, 0, 1, 16, 17
M7 = 0x300000
M8 = 0xD2000
sAc = 93
sRot = 101
sWo2 = 4
sWlds0, sWwrap = 6, 7
sWex = 82

vL = 0
vo = [1, 2, 3, 4]
vPh, vAd, vPa = 5, 6, 7
vSC = 8
vACC = 16
vLsum = 8
vW = 12


def sp(r, n=2):
    return "s[%d:%d]" % (r, r + n - 1)


def vr(r, n):
    return "v[%d:%d]" % (r, r + n - 1) if n > 1 else "v%d" % r


def res_reg(m, t, hh=None):
    base = m * 64 + 4 * t
    if m < 3:
        b = 64 + base; p = "v"
    else:
        b = base - 192; p = "a"
    if hh is None:
        return "%s[%d:%d]" % (p, b, b + 3)
    return "%s[%d:%d]" % (p, b + 2 * hh, b + 2 * hh + 1)


def res_T(k):
    return k if k < 4 else 2 * k - 4


def str_T(i):
    return 5 + 2 * i if i < 10 else i + 14


class LQ:
    def __init__(self, g):
        self.g = g; self.q = []
    def issue(self, instr, tag):
        self.g.e(instr); self.q.append(tag)
    def wait(self, tags):
        idx = [i for i, t in enumerate(self.q) if t in tags]
        if not idx:
            return
        last = max(idx)
        n = len(self.q) - 1 - last
        self.g.e("s_waitcnt lgkmcnt(%d)" % min(n, 15))
        self.q = self.q[last + 1:] if n <= 15 else self.q[len(self.q) - 15:]
    def drain(self):
        if self.q:
            self.g.e("s_waitcnt lgkmcnt(0)")
        self.q = []


class Gen:
    def __init__(self, opt):
        self.o = opt
        self.near = int(opt.get("near", 0))
        self.stride = 32768 if self.near else 16384
        self.stag = int(opt.get("stag", 0))
        self.l2pf = int(opt.get("l2pf", 0))
        self.l2pol = opt.get("l2pol", " nt")
        self.wpf = int(opt.get("wpf", 1))
        self.gapw = int(opt.get("gapw", 1))
        self.R = int(opt.get("R", 2))
        self.ilv = int(opt.get("ilv", 0))
        self.swz = int(opt.get("swz", 0)) or int(opt.get("ilv", 0))
        self.klin = int(opt.get("klin", 0))
        self.p2n = int(opt.get("p2n", 0))
        self.alN = int(opt.get("alN", 0))
        self.alM = int(opt.get("alM", 0))
        self.alV = int(opt.get("alV", 1))
        self.kalloc = int(opt.get("kalloc", 0))
        self.a = Asm()
        self.e = self.a.e

    def lab(self, n):
        self.a.label(n)

    def nl(self, b="L"):
        return self.a.newlabel(b)

    def nop(self, n):
        if n > 0:
            self.e("s_nop %d" % (n - 1))

    def bf16r(self, dst, src, tmp):
        self.e("v_cvt_pk_bf16_f32 v%d, v%d, v%d" % (tmp, src, src))
        self.e("v_and_b32 v%d, 0xffff0000, v%d" % (dst, tmp))

    def allreduce16(self, x, op):
        e = self.e
        for n in (8, 4, 2, 1):
            self.nop(2)
            e("%s_dpp v%d, v%d, v%d row_ror:%d row_mask:0xf bank_mask:0xf" % (op, x, x, x, n))

    def xrows(self, x, tmp, op):
        e = self.e
        e("v_mov_b32 v%d, v%d" % (tmp, x)); self.nop(2)
        e("v_permlane16_swap_b32 v%d, v%d" % (x, tmp)); self.nop(1)
        e("%s v%d, v%d, v%d" % (op, x, x, tmp))
        e("v_mov_b32 v%d, v%d" % (tmp, x)); self.nop(2)
        e("v_permlane32_swap_b32 v%d, v%d" % (x, tmp)); self.nop(1)
        e("%s v%d, v%d, v%d" % (op, x, x, tmp))

    def allreduce64(self, x, tmp, op):
        self.allreduce16(x, op)
        self.xrows(x, tmp, op)

    def poll(self, loads, regs, tmp, name="P"):
        e = self.e
        L = self.nl(name); D = self.nl(name + "d")
        e("s_mov_b32 s%d, 0" % sSpin)
        self.lab(L)
        for ld in loads:
            e(ld)
        e("s_waitcnt vmcnt(0)")
        rr = list(regs)
        if len(rr) == 1:
            t = rr[0]
        else:
            first = True
            while rr:
                if first:
                    if len(rr) >= 3:
                        e("v_max3_u32 v%d, v%d, v%d, v%d" % (tmp, rr[0], rr[1], rr[2])); rr = rr[3:]
                    else:
                        e("v_max_u32 v%d, v%d, v%d" % (tmp, rr[0], rr[1])); rr = rr[2:]
                    first = False
                elif len(rr) >= 2:
                    e("v_max3_u32 v%d, v%d, v%d, v%d" % (tmp, tmp, rr[0], rr[1])); rr = rr[2:]
                else:
                    e("v_max_u32 v%d, v%d, v%d" % (tmp, tmp, rr[0])); rr = rr[1:]
            t = tmp
        e("v_cmp_eq_u32 vcc, -1, v%d" % t)
        e("s_cbranch_vccz %s" % D)
        e("s_add_u32 s%d, s%d, 1" % (sSpin, sSpin))
        e("s_cmp_lt_u32 s%d, %d" % (sSpin, SPIN_LIMIT))
        e("s_cbranch_scc1 %s" % L)
        self.lab(D)

    def addr(self, dst, base, off_imm=0, off_sregs=()):
        e = self.e
        if off_imm:
            e("s_add_u32 s%d, s%d, 0x%x" % (dst, base, off_imm))
        else:
            e("s_add_u32 s%d, s%d, 0" % (dst, base))
        e("s_addc_u32 s%d, s%d, 0" % (dst + 1, base + 1))
        for r in off_sregs:
            e("s_add_u32 s%d, s%d, s%d" % (dst, dst, r))
            e("s_addc_u32 s%d, s%d, 0" % (dst + 1, dst + 1))

    def stamp(self, idx):
        if not self.o.get("stamps"):
            return
        e = self.e
        sk = self.nl("St")
        e("s_cmp_eq_u32 s%d, 0" % sWave); e("s_cbranch_scc0 %s" % sk)
        e("s_memrealtime s[90:91]")
        e("s_waitcnt lgkmcnt(0)")
        e("s_lshl_b32 s92, s%d, 6" % sPass); e("s_add_u32 s92, s92, %d" % (L_ST + idx * 4))
        e("v_mov_b32 v62, s92"); e("v_mov_b32 v63, s90")
        e("ds_write_b32 v62, v63")
        e("s_waitcnt lgkmcnt(0)")
        self.lab(sk)

    def dbg_span(self, first):
        if not self.o.get("span"):
            return
        e = self.e
        sk = self.nl("Sp")
        e("s_cmp_eq_u32 s%d, 0" % sWave); e("s_cbranch_scc0 %s" % sk)
        e("s_memrealtime s[90:91]")
        e("s_waitcnt lgkmcnt(0)")
        if first == 2:
            e("s_not_b32 s90, s90")
        e("v_mov_b32 v62, %d" % (4 * first)); e("v_mov_b32 v63, s90")
        e("s_mov_b64 exec, 1")
        e("global_atomic_umax v62, v63, %s" % sp(pDbg))
        e("s_mov_b64 exec, -1")
        self.lab(sk)

    def dbg_span_pass(self, base):
        if not self.o.get("span"):
            return
        e = self.e
        sk = self.nl("Sp")
        e("s_cmp_eq_u32 s%d, 0" % sWave); e("s_cbranch_scc0 %s" % sk)
        e("s_memrealtime s[90:91]")
        e("s_waitcnt lgkmcnt(0)")
        e("s_lshl_b32 s92, s%d, 2" % sPass); e("s_add_u32 s92, s92, %d" % (4 * base))
        e("v_mov_b32 v62, s92"); e("v_mov_b32 v63, s90")
        e("s_mov_b64 exec, 1")
        e("global_atomic_umax v62, v63, %s" % sp(pDbg))
        e("s_mov_b64 exec, -1")
        e("s_waitcnt vmcnt(0)")
        self.lab(sk)

    def dump_stamps(self):
        if not self.o.get("stamps"):
            return
        e = self.e
        sk = self.nl("Sd")
        e("s_waitcnt vmcnt(0)")
        e("s_cmp_eq_u32 s%d, 0" % sWave); e("s_cbranch_scc0 %s" % sk)
        e("v_and_b32 v8, 31, v%d" % vL); e("v_lshlrev_b32 v8, 2, v8")
        e("ds_read_b32 v9, v8 offset:%d" % L_ST)
        e("s_lshl_b32 s%d, s2, 7" % sT0)
        self.addr(sA, pWs, DBG, [sT0])
        e("s_waitcnt lgkmcnt(0)")
        e("global_store_dword v8, v9, %s" % sp(sA))
        self.lab(sk)

    def issue(self):
        e = self.e
        if self.ilv:
            e("s_call_b64 %s, L_issue" % sp(sRet))
            return
        pol = self.o.get("pol", " nt")
        e("s_mov_b32 m0, s%d" % sSlot)
        e("s_add_u32 s%d, s%d, 4096" % (sSlot, sSlot))
        so = sOff
        if self.swz:
            so = sOf2
            e("s_lshl_b32 s%d, s%d, 12" % (sOf2, sN)); e("s_xor_b32 s%d, s%d, s%d" % (sOf2, sOf2, sWb)); e("s_and_b32 s%d, s%d, s%d" % (sOf2, sOf2, sSwM))
            e("s_add_u32 s%d, s%d, s%d" % (sOf2, sOf2, sOff)); e("s_add_u32 s%d, s%d, 1" % (sN, sN))
        if self.alN:
            la = self.nl("Ia"); ld = self.nl("Id")
            e("s_add_u32 s%d, s%d, 1" % (sAc, sAc)); e("s_and_b32 s%d, s%d, %d" % (sAc, sAc, self.alN - 1))
            e("s_cmp_lt_u32 s%d, s%d" % (sAc, sAlloc))
            e("s_cbranch_scc1 %s" % la)
        if self.kalloc:
            la = self.nl("Ia"); ld = self.nl("Id")
            e("s_cmp_gt_u32 s%d, 0" % sAlloc)
            e("s_cbranch_scc1 %s" % la)
        for s in range(4):
            e("buffer_load_dwordx4 v%d, %s, s%d offen offset:%d%s lds" % (vo[s], sp(sCUR, 4), so, s * 1024, pol))
        if self.kalloc or self.alN:
            e("s_branch %s" % ld)
            self.lab(la)
            for s in range(4):
                e("buffer_load_dwordx4 v%d, %s, s%d offen offset:%d lds" % (vo[s], sp(sCUR, 4), so, s * 1024))
            if self.kalloc:
                e("s_sub_u32 s%d, s%d, 1" % (sAlloc, sAlloc))
            self.lab(ld)
        e("s_cmp_eq_u32 s%d, s%d" % (sSlot, sRe))
        e("s_cselect_b32 s%d, s%d, s%d" % (sSlot, sRs, sSlot))
        e("s_add_u32 s%d, s%d, %d" % (sOff, sOff, self.stride))
        if self.stag:
            e("s_and_b32 s%d, s%d, 0x%x" % (sOff, sOff, 64 * self.stride - 1))
        e("s_sub_u32 s%d, s%d, 1" % (sLeft, sLeft))
        e("s_cmp_lg_u32 s%d, 0" % sLeft)
        sk = self.nl("Isk")
        e("s_cbranch_scc1 %s" % sk)
        e("s_call_b64 %s, L_switch" % sp(sRet))
        self.lab(sk)

    def kpat(self):
        e = self.e
        if self.klin:
            e("v_lshrrev_b32 v%d, 5, v%d" % (vo[1], vL))
            e("v_and_b32 v%d, 31, v%d" % (vo[0], vL)); e("v_xor_b32 v%d, v%d, v%d" % (vo[0], vo[0], vo[1]))
            e("v_lshlrev_b32 v%d, 4, v%d" % (vo[0], vo[0])); e("v_lshl_add_u32 v%d, v%d, 9, v%d" % (vo[0], vo[1], vo[0]))
            e("v_add_u32 v%d, 3072, v%d" % (vo[0], vo[0]))
            for i in range(1, 4):
                e("v_xor_b32 v%d, %d, v%d" % (vo[i], (2 * i) << 4, vo[0]))
            return
        e("v_and_b32 v%d, 7, v%d" % (vo[0], vL))
        e("v_lshlrev_b32 v%d, 9, v%d" % (vo[0], vo[0]))
        e("v_lshrrev_b32 v%d, 3, v%d" % (vo[1], vL))
        e("v_lshl_add_u32 v%d, v%d, 4, v%d" % (vo[0], vo[1], vo[0]))
        self.pat_fin()

    def vpat(self):
        e = self.e
        e("v_bfe_u32 v%d, v%d, 1, 3" % (vo[0], vL))
        e("v_lshlrev_b32 v%d, 9, v%d" % (vo[0], vo[0]))
        e("v_lshrrev_b32 v%d, 4, v%d" % (vo[1], vL))
        e("v_lshl_add_u32 v%d, v%d, 5, v%d" % (vo[0], vo[1], vo[0]))
        e("v_and_b32 v%d, 1, v%d" % (vo[1], vL))
        e("v_lshl_add_u32 v%d, v%d, 4, v%d" % (vo[0], vo[1], vo[0]))
        self.pat_fin()

    def pat_fin(self):
        e = self.e
        e("v_add_u32 v%d, 3072, v%d" % (vo[0], vo[0]))
        for s in range(1, 4):
            e("v_subrev_u32 v%d, %d, v%d" % (vo[s], 896 * s, vo[0]))

    def emit_switch(self):
        if self.p2n:
            return self.emit_switch_p2n()
        e = self.e
        self.lab("L_switch")
        e("s_add_u32 s%d, s%d, 1" % (sSeg, sSeg))
        e("s_cmp_eq_u32 s%d, 5" % sSeg)
        e("s_cbranch_scc1 L_sw_end")
        e("s_bitcmp1_b32 s%d, 0" % sSeg)
        e("s_cbranch_scc0 L_sw_v")
        e("s_mov_b32 s%d, s%d" % (sCUR, sKB)); e("s_mov_b32 s%d, s%d" % (sCUR + 1, sKB + 1))
        e("s_mov_b32 s%d, s%d" % (sOff, sRot)); e("s_mov_b32 s%d, 64" % sLeft)
        if self.kalloc:
            e("s_cmp_eq_u32 s%d, 1" % sSeg)
            e("s_cselect_b32 s%d, %d, 0" % (sAlloc, self.kalloc))
        if self.alN:
            e("s_cmp_eq_u32 s%d, 1" % sSeg)
            e("s_cselect_b32 s%d, %d, 0" % (sAlloc, self.alM))
        self.kpat()
        e("s_setpc_b64 %s" % sp(sRet))
        self.lab("L_sw_v")
        e("s_mov_b32 s%d, s%d" % (sCUR, sVB)); e("s_mov_b32 s%d, s%d" % (sCUR + 1, sVB + 1))
        e("s_add_u32 s%d, s%d, %d" % (sOff, sRot, 2 * NRES_T * self.stride)); e("s_and_b32 s%d, s%d, 0x%x" % (sOff, sOff, 64 * self.stride - 1))
        e("s_mov_b32 s%d, %d" % (sLeft, 2 * NSTR_T))
        if self.alN:
            e("s_cmp_eq_u32 s%d, 2" % sSeg)
            e("s_cselect_b32 s%d, %d, 0" % (sAlloc, self.alM if self.alV else 0))
        self.vpat()
        e("s_setpc_b64 %s" % sp(sRet))
        self.lab("L_sw_end")
        e("s_mov_b32 s%d, 0" % (sCUR + 2))
        e("s_mov_b32 s%d, 0" % sOff); e("s_mov_b32 s%d, 0x7fffffff" % sLeft)
        e("s_setpc_b64 %s" % sp(sRet))

    def emit_switch_p2n(self):
        e = self.e
        mask = 64 * self.stride - 1
        self.lab("L_switch")
        e("s_add_u32 s%d, s%d, 1" % (sSeg, sSeg))
        e("s_mov_b32 s%d, 0" % sAlloc)
        e("s_cmp_eq_u32 s%d, 1" % sSeg); e("s_cbranch_scc1 L_sw_1")
        e("s_cmp_eq_u32 s%d, 2" % sSeg); e("s_cbranch_scc1 L_sw_2")
        e("s_cmp_eq_u32 s%d, 3" % sSeg); e("s_cbranch_scc1 L_sw_3")
        e("s_cmp_eq_u32 s%d, 4" % sSeg); e("s_cbranch_scc1 L_sw_4")
        e("s_cmp_eq_u32 s%d, 5" % sSeg); e("s_cbranch_scc1 L_sw_5")
        e("s_mov_b32 s%d, 0" % (sCUR + 2))
        e("s_mov_b32 s%d, 0" % sOff); e("s_mov_b32 s%d, 0x7fffffff" % sLeft)
        e("s_setpc_b64 %s" % sp(sRet))
        self.lab("L_sw_1")
        e("s_mov_b32 s%d, %d" % (sAlloc, self.alM))
        e("s_mov_b32 s%d, 64" % sLeft)
        e("s_branch L_sw_k")
        self.lab("L_sw_3")
        if self.o.get("dryK2"):
            e("s_mov_b32 s%d, 0" % (sCUR + 2))
        e("s_mov_b32 s%d, %d" % (sLeft, 2 * NRES_T))
        self.lab("L_sw_k")
        e("s_mov_b32 s%d, s%d" % (sCUR, sKB)); e("s_mov_b32 s%d, s%d" % (sCUR + 1, sKB + 1))
        e("s_mov_b32 s%d, s%d" % (sOff, sRot))
        self.kpat()
        e("s_setpc_b64 %s" % sp(sRet))
        self.lab("L_sw_4")
        if self.swz:
            e("s_mov_b32 s%d, 0" % sSwM)
        e("s_mov_b32 s%d, s%d" % (sCUR, sKN)); e("s_mov_b32 s%d, s%d" % (sCUR + 1, sKN + 1))
        e("s_add_u32 s%d, s%d, %d" % (sOff, sRotN, 2 * NRES_T * self.stride)); e("s_and_b32 s%d, s%d, 0x%x" % (sOff, sOff, mask))
        e("s_mov_b32 s%d, %d" % (sLeft, 2 * NSTR_T))
        e("s_setpc_b64 %s" % sp(sRet))
        self.lab("L_sw_2")
        e("s_mov_b32 s%d, %d" % (sAlloc, self.alM if self.alV else 0))
        e("s_mov_b32 s%d, s%d" % (sCUR, sVB)); e("s_mov_b32 s%d, s%d" % (sCUR + 1, sVB + 1))
        e("s_add_u32 s%d, s%d, %d" % (sOff, sRot, 2 * NRES_T * self.stride))
        e("s_branch L_sw_v")
        self.lab("L_sw_5")
        if self.o.get("dryK2"):
            e("s_mov_b32 s%d, %d" % (sCUR + 2, 0 if self.o.get("dryV2") else 3072 + 63 * self.stride + 4096 + 8192))
        e("s_mov_b32 s%d, s%d" % (sCUR, sVN)); e("s_mov_b32 s%d, s%d" % (sCUR + 1, sVN + 1))
        e("s_add_u32 s%d, s%d, %d" % (sOff, sRotN, 2 * NRES_T * self.stride))
        self.lab("L_sw_v")
        e("s_and_b32 s%d, s%d, 0x%x" % (sOff, sOff, mask))
        e("s_mov_b32 s%d, %d" % (sLeft, 2 * NSTR_T))
        self.vpat()
        e("s_setpc_b64 %s" % sp(sRet))

    def now(self, dst, minus=None):
        e = self.e
        e("s_memrealtime s[90:91]"); e("s_waitcnt lgkmcnt(0)")
        if minus is None:
            e("s_mov_b32 s%d, s90" % dst)
        else:
            e("s_sub_u32 s%d, s90, s%d" % (dst, minus))

    def adv_cs(self):
        e = self.e
        e("s_add_u32 s%d, s%d, 8192" % (sCs, sCs))
        e("s_cmp_eq_u32 s%d, s%d" % (sCs, sRe))
        e("s_cselect_b32 s%d, s%d, s%d" % (sCs, sRs, sCs))

    def step_issue(self):
        w = 4 * (self.R - 1)
        self.e("s_waitcnt vmcnt(%d)" % w)
        self.issue()
        self.e("s_waitcnt vmcnt(%d)" % w)
        self.issue()

    def gwait(self, u):
        lo = max(0, u - self.R + 1)
        cnt = sum(4 + (1 if g < self.NX else 0) for g in range(lo, u))
        self.e("s_waitcnt vmcnt(%d)" % cnt)

    NX = 16

    def xop(self, i):
        e = self.e
        if i == 7:
            e("s_cmp_eq_u32 s%d, 2" % sRole)
            e("s_cselect_b32 s%d, s%d, s%d" % (sWS, sWo2, sWS))
            e("s_cselect_b32 s%d, s%d, s%d" % (sWS + 1, sWo2 + 1, sWS + 1))
            e("s_cselect_b32 s%d, s%d, s%d" % (sWoff, sWoff0, sWoff))
            e("s_cselect_b32 s%d, s%d, s%d" % (sWlds, sWlds0, sWlds))
        if 0 < i < 14:
            e("s_cmp_eq_u32 s%d, %d" % (sWwrap, i))
            e("s_cselect_b32 s%d, s%d, s%d" % (sWoff, sWoff0, sWoff))
            e("s_cselect_b32 s%d, s%d, s%d" % (sWlds, sWlds0, sWlds))
        if i == 14:
            e("s_cmp_eq_u32 s%d, 1" % sRole)
            e("s_cselect_b32 s%d, s%d, 0" % (sWS + 2, sWS + 2))
            e("s_cselect_b32 s%d, s%d, s%d" % (sWlds, sWlds, sVec))
            e("s_cselect_b32 s%d, s%d, 0" % (sWlstep, sWlstep))
        e("s_mov_b32 m0, s%d" % sWlds); e("s_add_u32 s%d, s%d, s%d" % (sWlds, sWlds, sWlstep))
        e("s_mov_b64 exec, %s" % sp(sWex))
        e("buffer_load_dwordx4 v%d, %s, s%d offen lds" % (vW, sp(sWS, 4), sWoff))
        e("s_mov_b64 exec, -1")
        e("s_add_u32 s%d, s%d, s%d" % (sWoff, sWoff, sWstep))

    def group(self, u):
        if u >= self.R:
            self.gwait(u)
        self.issue()
        if u < self.NX:
            self.xop(u)

    def prologue(self):
        e = self.e
        e("s_cmp_ge_u32 s2, 256")
        e("s_cbranch_scc1 L_end")
        e("s_load_dwordx16 s[8:23], s[0:1], 0")
        e("s_load_dwordx8 s[24:31], s[0:1], 64")
        e("v_lshrrev_b32 v1, 6, v0")
        e("v_and_b32 v%d, 63, v0" % vL)
        e("s_nop 0")
        e("v_readfirstlane_b32 s%d, v1" % sWave)
        x, r = sT0, sT1
        e("s_and_b32 s%d, s2, 7" % x)
        e("s_lshr_b32 s%d, s2, 3" % r)
        e("s_mov_b32 s%d, 0" % sRole); e("s_mov_b32 s%d, 0" % sIdx)
        e("s_cmp_lt_u32 s%d, 8" % r); e("s_cbranch_scc0 L_r1")
        e("s_mov_b32 s%d, 1" % sRole); e("s_lshl_b32 s%d, s%d, 3" % (sIdx, r)); e("s_add_u32 s%d, s%d, s%d" % (sIdx, sIdx, x))
        e("s_branch L_rdone")
        self.lab("L_r1")
        e("s_cmp_lt_u32 s%d, 16" % r); e("s_cbranch_scc0 L_r2")
        e("s_sub_u32 s%d, s%d, 8" % (sT2, r))
        e("s_lshr_b32 s%d, s%d, 1" % (sT3, sT2)); e("s_lshl_b32 s%d, s%d, 3" % (sT3, sT3)); e("s_add_u32 s%d, s%d, s%d" % (sT3, sT3, x))
        e("s_cmp_lt_u32 s%d, 28" % sT3); e("s_cbranch_scc0 L_rdone")
        e("s_mov_b32 s%d, 2" % sRole); e("s_and_b32 s%d, s%d, 1" % (sT2, sT2)); e("s_lshl_b32 s%d, s%d, 1" % (sIdx, sT3))
        e("s_add_u32 s%d, s%d, s%d" % (sIdx, sIdx, sT2))
        e("s_branch L_rdone")
        self.lab("L_r2")
        e("s_cmp_lt_u32 s%d, 20" % r); e("s_cbranch_scc0 L_r3")
        e("s_cmp_lt_u32 s%d, 7" % x); e("s_cbranch_scc0 L_rdone")
        e("s_mov_b32 s%d, 3" % sRole); e("s_lshl_b32 s%d, s%d, 2" % (sIdx, x)); e("s_add_u32 s%d, s%d, s%d" % (sIdx, sIdx, r))
        e("s_sub_u32 s%d, s%d, 16" % (sIdx, sIdx))
        e("s_branch L_rdone")
        self.lab("L_r3")
        e("s_cmp_lt_u32 s%d, 28" % r); e("s_cbranch_scc0 L_rdone")
        e("s_mov_b32 s%d, 4" % sRole); e("s_sub_u32 s%d, s%d, 20" % (sIdx, r)); e("s_lshl_b32 s%d, s%d, 3" % (sIdx, sIdx))
        e("s_add_u32 s%d, s%d, s%d" % (sIdx, sIdx, x))
        self.lab("L_rdone")
        e("s_lshr_b32 s%d, s2, 4" % sH); e("s_and_b32 s%d, s2, 15" % sC)
        e("s_mov_b32 s%d, %d" % (sT0, RING_ROLE)); e("s_mov_b32 s%d, 6" % sNS)
        e("s_cmp_eq_u32 s%d, 0" % sRole)
        e("s_cselect_b32 s%d, %d, s%d" % (sT0, RING_NONE, sT0)); e("s_cselect_b32 s%d, 8, s%d" % (sNS, sNS))
        e("s_lshl_b32 s%d, s%d, 12" % (sT1, sNS))
        e("s_mul_i32 s%d, s%d, s%d" % (sT2, sT1, sWave))
        e("s_add_u32 s%d, s%d, s%d" % (sRs, sT0, sT2))
        e("s_add_u32 s%d, s%d, s%d" % (sRe, sRs, sT1))
        e("s_mov_b32 s%d, s%d" % (sSlot, sRs)); e("s_mov_b32 s%d, s%d" % (sCs, sRs))
        e("s_lshl_b32 s%d, s%d, 10" % (sT2, sWave)); e("s_add_u32 s%d, s%d, %d" % (sVec, sT2, L_P))
        e("s_mov_b32 s%d, 0x00010001" % sM[0]); e("s_mov_b32 s%d, 0x00010001" % (sM[0] + 1))
        for u in range(1, 4):
            e("s_lshl_b64 %s, %s, %d" % (sp(sM[u]), sp(sM[0]), u))
        e("s_mov_b32 s%d, 0" % sPass)
        e("s_waitcnt lgkmcnt(0)")
        if not self.near:
            e("s_lshl_b32 s%d, s%d, 4" % (sT0, sH)); e("s_add_u32 s%d, s%d, s%d" % (sT0, sT0, sC))
            e("s_lshl_b32 s%d, s%d, 20" % (sT0, sT0))
            if self.swz:
                e("s_and_b32 s%d, s%d, 1" % (sT1, sWave)); e("s_lshl_b32 s%d, s%d, 12" % (sT1, sT1))
            else:
                e("s_lshl_b32 s%d, s%d, 12" % (sT1, sWave))
            e("s_add_u32 s%d, s%d, s%d" % (sT0, sT0, sT1))
        else:
            e("s_lshl_b32 s%d, s%d, 24" % (sT0, sH))
            e("s_lshr_b32 s%d, s2, 3" % sT1); e("s_and_b32 s%d, s%d, 1" % (sT1, sT1)); e("s_lshl_b32 s%d, s%d, 2" % (sT1, sT1))
            e("s_and_b32 s%d, s2, 3" % sT2); e("s_add_u32 s%d, s%d, s%d" % (sT1, sT1, sT2)); e("s_lshl_b32 s%d, s%d, 21" % (sT1, sT1))
            e("s_add_u32 s%d, s%d, s%d" % (sT0, sT0, sT1))
            e("s_lshr_b32 s%d, s2, 2" % sT1); e("s_xor_b32 s%d, s%d, s2" % (sT1, sT1))
            e("s_xor_b32 s%d, s%d, %d" % (sT1, sT1, int(self.o.get("cpol", 0)))); e("s_and_b32 s%d, s%d, 1" % (sT1, sT1))
            e("s_lshl_b32 s%d, s%d, 13" % (sT1, sT1)); e("s_add_u32 s%d, s%d, s%d" % (sT0, sT0, sT1))
            e("s_and_b32 s%d, s%d, 1" % (sT1, sWave)); e("s_lshl_b32 s%d, s%d, 12" % (sT1, sT1)); e("s_add_u32 s%d, s%d, s%d" % (sT0, sT0, sT1))
            e("s_lshr_b32 s%d, s%d, 1" % (sT1, sWave)); e("s_lshl_b32 s%d, s%d, 14" % (sT1, sT1)); e("s_add_u32 s%d, s%d, s%d" % (sT0, sT0, sT1))
        e("s_mov_b32 s%d, 0" % sAlloc); e("s_lshr_b32 s%d, s2, 3" % sAc); e("s_and_b32 s%d, s%d, 1" % (sT1, sWave)); e("s_add_u32 s%d, s%d, s%d" % (sAc, sAc, sT1))
        for (dst, src) in ((sKB, pK), (sVB, pV)):
            e("s_add_u32 s%d, s%d, s%d" % (dst, src, sT0)); e("s_addc_u32 s%d, s%d, 0" % (dst + 1, src + 1))
            e("s_sub_u32 s%d, s%d, 3072" % (dst, dst)); e("s_subb_u32 s%d, s%d, 0" % (dst + 1, dst + 1))
            e("s_and_b32 s%d, s%d, 0xffff" % (dst + 1, dst + 1))
        e("s_mov_b32 s%d, s%d" % (sCUR, sVB)); e("s_mov_b32 s%d, s%d" % (sCUR + 1, sVB + 1))
        e("s_mov_b32 s%d, %d" % (sCUR + 2, 3072 + 63 * self.stride + 4096 + (8192 if self.swz else 0))); e("s_mov_b32 s%d, 0x20000" % (sCUR + 3))
        if self.stag:
            e("s_mul_i32 s%d, s2, %d" % (sRot, self.stag)); e("s_and_b32 s%d, s%d, 63" % (sRot, sRot)); e("s_mul_i32 s%d, s%d, %d" % (sRot, sRot, self.stride))
        else:
            e("s_mov_b32 s%d, 0" % sRot)
        e("s_mov_b32 s%d, s%d" % (sOff, sRot)); e("s_mov_b32 s%d, %d" % (sLeft, 2 * NRES_T)); e("s_mov_b32 s%d, 0" % sSeg)
        self.vpat()

    def weights_setup(self, which):
        e0 = self.e
        sfx = "_" + which
        def e(x):
            for lb in ("L_wdone", "L_wO", "L_wB", "L_wC"):
                x = x.replace(lb, lb + sfx)
            e0(x)
        lab0 = self.lab
        self.lab = lambda n: lab0(n + sfx)
        e("s_mov_b32 s%d, 0x20000" % (sWS + 3))
        e("s_mov_b64 %s, -1" % sp(sWex))
        pdef = pWq if which == "start" else pW2
        e("s_mov_b32 s%d, s%d" % (sWS, pdef)); e("s_and_b32 s%d, s%d, 0xffff" % (sWS + 1, pdef + 1)); e("s_mov_b32 s%d, 0" % (sWS + 2))
        e("s_mov_b32 s%d, s%d" % (sWlds, sVec))
        e("s_mov_b32 s%d, 0" % sWlstep); e("s_mov_b32 s%d, 0" % sWoff); e("s_mov_b32 s%d, 0" % sWoff0); e("s_mov_b32 s%d, 0" % sWstep)
        e("s_mov_b32 s%d, 99" % sWwrap); e("s_mov_b32 s%d, 0" % sWlds0); e("s_mov_b64 %s, 0" % sp(sWo2))
        e("v_mov_b32 v%d, 0" % vW)
        e("s_cmp_eq_u32 s%d, 0" % sRole); e("s_cbranch_scc1 L_wdone")
        if which == "start" and self.gapw:
            e("s_cmp_eq_u32 s%d, 2" % sRole); e("s_cbranch_scc1 L_wdone")
            e("s_cmp_eq_u32 s%d, 3" % sRole); e("s_cbranch_scc1 L_wdone")
        e("s_mov_b32 s%d, 1024" % sWlstep)
        if which == "start":
            e("s_cmp_eq_u32 s%d, 1" % sRole); e("s_cbranch_scc1 L_wO")
        e("s_cmp_eq_u32 s%d, 2" % sRole); e("s_cbranch_scc1 L_wB")
        if which == "start":
            e("s_cmp_eq_u32 s%d, 3" % sRole); e("s_cbranch_scc1 L_wC")
        else:
            e("s_branch L_wC")
        if which == 'start':
            e("s_mov_b32 s%d, %d" % (sWS + 2, 448 * 8192))
            e("v_lshrrev_b32 v9, 3, v%d" % vL); e("v_lshlrev_b32 v%d, 13, v9" % vW)
            e("v_bfe_u32 v9, v%d, 4, 2" % vL); e("v_lshlrev_b32 v9, 1, v9")
            e("v_and_b32 v10, 7, v%d" % vL); e("v_xor_b32 v9, v9, v10"); e("v_lshl_add_u32 v%d, v9, 4, v%d" % (vW, vW))
            e("s_mul_i32 s%d, s%d, %d" % (sT1, sWave, 14 * 8 * 8192)); e("s_lshl_b32 s%d, s%d, 7" % (sT2, sIdx)); e("s_add_u32 s%d, s%d, s%d" % (sWoff, sT1, sT2))
            e("s_mov_b32 s%d, %d" % (sWstep, 8 * 8192))
            e("s_mul_i32 s%d, s%d, %d" % (sWlds, sWave, 14 * 1024)); e("s_add_u32 s%d, s%d, %d" % (sWlds, sWlds, L_W))
            e("s_branch L_wdone")
        self.lab("L_wC")
        e("s_mov_b32 s%d, s%d" % (sWS, pW2)); e("s_and_b32 s%d, s%d, 0xffff" % (sWS + 1, pW2 + 1)); e("s_mov_b32 s%d, %d" % (sWS + 2, 1792 * 896))
        e("v_lshrrev_b32 v9, 1, v%d" % vL); e("v_mul_u32_u24 v%d, 896, v9" % vW)
        e("v_and_b32 v9, 1, v%d" % vL); e("v_lshl_add_u32 v%d, v9, 4, v%d" % (vW, vW))
        e("s_mul_i32 s%d, s%d, %d" % (sT1, sWave, 448 * 896)); e("s_lshl_b32 s%d, s%d, 5" % (sT2, sIdx)); e("s_add_u32 s%d, s%d, s%d" % (sWoff, sT1, sT2))
        e("s_mov_b32 s%d, %d" % (sWstep, 32 * 896))
        e("s_mul_i32 s%d, s%d, %d" % (sWlds, sWave, C_WAVE)); e("s_add_u32 s%d, s%d, %d" % (sWlds, sWlds, L_W))
        e("s_mov_b32 s%d, s%d" % (sWoff0, sWoff)); e("s_mov_b32 s%d, s%d" % (sWlds0, sWlds))
        e("s_and_b32 s%d, s%d, 3" % (sT0, sIdx)); e("s_mul_i32 s%d, s%d, 7" % (sT0, sT0)); e("s_add_u32 s%d, s%d, 1" % (sT0, sT0)); e("s_lshr_b32 s%d, s%d, 1" % (sT0, sT0))
        e("s_sub_u32 s%d, 14, s%d" % (sWwrap, sT0))
        e("s_mul_i32 s%d, s%d, %d" % (sT1, sT0, 32 * 896)); e("s_add_u32 s%d, s%d, s%d" % (sWoff, sWoff, sT1))
        e("s_lshl_b32 s%d, s%d, 10" % (sT1, sT0)); e("s_add_u32 s%d, s%d, s%d" % (sWlds, sWlds, sT1))
        e("s_branch L_wdone")
        if which == 'start':
            self.lab("L_wO")
            e("s_mov_b32 s%d, s%d" % (sWS, pWo)); e("s_and_b32 s%d, s%d, 0xffff" % (sWS + 1, pWo + 1)); e("s_mov_b32 s%d, %d" % (sWS + 2, 4096 * 896))
            e("v_lshlrev_b32 v%d, 4, v%d" % (vW, vL))
            e("s_lshl_b32 s%d, s%d, 6" % (sT1, sIdx)); e("s_lshl_b32 s%d, s%d, 4" % (sT2, sWave)); e("s_add_u32 s%d, s%d, s%d" % (sT1, sT1, sT2))
            e("s_mul_i32 s%d, s%d, 896" % (sWoff, sT1))
            e("s_mov_b32 s%d, 896" % sWstep); e("s_mov_b32 s%d, %d" % (sWlstep, O_ROW))
            e("s_mul_i32 s%d, s%d, %d" % (sWlds, sWave, 16 * O_ROW)); e("s_add_u32 s%d, s%d, %d" % (sWlds, sWlds, L_W))
            e("s_mov_b32 s%d, -1" % sWex); e("s_mov_b32 s%d, 0x00ffffff" % (sWex + 1))
            e("s_branch L_wdone")
        self.lab("L_wB")
        e("s_bitcmp1_b32 s%d, 0" % sIdx)
        e("s_cselect_b32 s%d, s%d, s%d" % (sWS, pW3, pW1)); e("s_cselect_b32 s%d, s%d, s%d" % (sWS + 1, pW3 + 1, pW1 + 1))
        e("s_cselect_b32 s%d, s%d, s%d" % (sWo2, pW1, pW3)); e("s_cselect_b32 s%d, s%d, s%d" % (sWo2 + 1, pW1 + 1, pW3 + 1))
        e("s_cselect_b32 s%d, %d, 0" % (sT3, B_IMG3)); e("s_cselect_b32 s%d, 0, %d" % (sT4, B_IMG3))
        e("s_and_b32 s%d, s%d, 0xffff" % (sWS + 1, sWS + 1)); e("s_and_b32 s%d, s%d, 0xffff" % (sWo2 + 1, sWo2 + 1))
        e("s_mov_b32 s%d, %d" % (sWS + 2, 448 * 3584))
        e("v_lshrrev_b32 v9, 2, v%d" % vL); e("v_mul_u32_u24 v%d, 3584, v9" % vW)
        e("v_and_b32 v9, 3, v%d" % vL); e("v_lshl_add_u32 v%d, v9, 4, v%d" % (vW, vW))
        e("s_mul_i32 s%d, s%d, %d" % (sT1, sWave, 7 * 16 * 3584)); e("s_lshl_b32 s%d, s%d, 6" % (sT2, sIdx)); e("s_add_u32 s%d, s%d, s%d" % (sWoff, sT1, sT2))
        e("s_mov_b32 s%d, s%d" % (sWoff0, sWoff))
        e("s_mov_b32 s%d, %d" % (sWstep, 16 * 3584))
        e("s_mul_i32 s%d, s%d, %d" % (sWlds, sWave, 7 * 1024)); e("s_add_u32 s%d, s%d, %d" % (sWlds, sWlds, L_W))
        e("s_add_u32 s%d, s%d, s%d" % (sWlds0, sWlds, sT4)); e("s_add_u32 s%d, s%d, s%d" % (sWlds, sWlds, sT3))
        self.lab("L_wdone")
        self.lab = lab0

    def clear_mailboxes(self):
        e = self.e
        e("v_mov_b32 v10, -1")
        e("s_lshl_b32 s%d, s%d, 2" % (sT0, sH)); e("s_add_u32 s%d, s%d, s%d" % (sT0, sT0, sWave)); e("s_lshl_b32 s%d, s%d, 4" % (sT0, sT0))
        e("s_add_u32 s%d, s%d, s%d" % (sT0, sT0, sC)); e("s_mul_i32 s%d, s%d, %d" % (sT0, sT0, M1_SLOT))
        self.addr(sA, pWs, M1, [sT0])
        e("v_lshlrev_b32 v8, 2, v%d" % vL)
        e("v_and_b32 v9, 1, v%d" % vL); e("v_lshlrev_b32 v9, 2, v9"); e("v_add_u32 v9, 256, v9")
        for rho in range(2):
            e("global_store_dword v8, v10, %s sc1" % sp(sA))
            e("global_store_dword v9, v10, %s sc1" % sp(sA))
            if rho == 0:
                e("s_add_u32 s%d, s%d, 0x%x" % (sA, sA, M1_R)); e("s_addc_u32 s%d, s%d, 0" % (sA + 1, sA + 1))
        if self.p2n:
            e("s_lshl_b32 s%d, s2, 12" % sT0); e("s_lshl_b32 s%d, s%d, 10" % (sT1, sWave))
            self.addr(sA, pWs, M7, [sT0, sT1])
            for k in range(4):
                e("global_store_dword v8, v10, %s offset:%d sc1" % (sp(sA), k * 256))
        e("s_cmp_eq_u32 s%d, 0" % sWave); e("s_cbranch_scc0 L_cdone")
        e("s_cmp_eq_u32 s%d, 0" % sRole); e("s_cbranch_scc1 L_cdone")
        e("v_and_b32 v8, 31, v%d" % vL); e("v_lshlrev_b32 v8, 2, v8")
        e("s_lshl_b32 s%d, s%d, 7" % (sT0, sIdx))
        e("v_add_u32 v8, s%d, v8" % sT0)
        e("s_cmp_eq_u32 s%d, 1" % sRole); e("s_cbranch_scc1 L_cA")
        e("s_cmp_eq_u32 s%d, 2" % sRole); e("s_cbranch_scc1 L_cB")
        e("s_cmp_eq_u32 s%d, 3" % sRole); e("s_cbranch_scc1 L_cC")
        for off in (M3, M3 + MR, M6, M6 + MR):
            self.addr(sA, pWs, off); e("global_store_dword v8, v10, %s sc1" % sp(sA))
        e("s_branch L_cdone")
        self.lab("L_cA")
        if self.p2n == 2:
            lq = self.nl("Lc8")
            e("s_and_b32 s%d, s%d, 3" % (sT1, sIdx)); e("s_cmp_lt_u32 s%d, 2" % sT1); e("s_cbranch_scc0 %s" % lq)
            e("s_lshr_b32 s%d, s%d, 2" % (sT0, sIdx)); e("s_lshl_b32 s%d, s%d, 7" % (sT0, sT0)); e("s_lshl_b32 s%d, s%d, 2" % (sT1, sT1))
            self.addr(sA, pWs, M8, [sT0, sT1])
            e("v_mov_b32 v9, 0")
            e("global_store_dword v9, v10, %s sc1" % sp(sA))
            self.lab(lq)
        e("s_mul_i32 s%d, s%d, %d" % (sT0, sIdx, M2_SLOT))
        e("v_lshlrev_b32 v8, 2, v%d" % vL)
        for rho in range(2):
            self.addr(sA, pWs, M2 + rho * M2_R, [sT0])
            for k in range(7):
                e("global_store_dword v8, v10, %s offset:%d sc1" % (sp(sA), k * 256))
        e("s_branch L_cdone")
        self.lab("L_cB")
        for off in (M4, M4 + MR):
            self.addr(sA, pWs, off); e("global_store_dword v8, v10, %s sc1" % sp(sA))
        e("s_branch L_cdone")
        self.lab("L_cC")
        self.addr(sA, pWs, M5); e("global_store_dword v8, v10, %s sc1" % sp(sA))
        self.lab("L_cdone")
        e("v_mov_b32 v11, 0")
        e("v_lshlrev_b32 v8, 2, v%d" % vL); e("v_add_u32 v8, %d, v8" % L_Z)
        e("ds_write_b32 v8, v11"); e("ds_write_b32 v8, v11 offset:256")

    def count_cleared(self):
        e = self.e
        e("s_waitcnt lgkmcnt(0)")
        e("s_barrier")
        e("s_cmp_eq_u32 s%d, 0" % sWave); e("s_cbranch_scc0 L_cnt_done")
        e("v_mov_b32 v10, 0"); e("v_mov_b32 v11, 1")
        e("s_mov_b64 exec, 1")
        e("global_atomic_add v10, v11, %s" % sp(pDbg))
        e("s_mov_b64 exec, -1")
        self.lab("L_cnt_done")

    def layernorm_to_vec(self):
        e = self.e
        X = 40
        for d in range(4):
            e("v_lshlrev_b32 v%d, 16, v%d" % (X + 2 * d, 32 + d))
            e("v_and_b32 v%d, 0xffff0000, v%d" % (X + 2 * d + 1, 32 + d))
        e("v_cmp_gt_u32 vcc, 56, v%d" % vL)
        e("v_add_f32 v48, v40, v41"); e("v_add_f32 v49, v42, v43"); e("v_add_f32 v50, v44, v45"); e("v_add_f32 v51, v46, v47")
        e("v_add_f32 v48, v48, v49"); e("v_add_f32 v50, v50, v51"); e("v_add_f32 v48, v48, v50")
        e("v_cndmask_b32 v48, 0, v48, vcc")
        self.allreduce64(48, 49, "v_add_f32")
        e("v_mul_f32 v48, 0x3b124925, v48")
        for i in range(8):
            e("v_sub_f32 v%d, v%d, v48" % (52 + i, X + i))
        e("v_mul_f32 v49, v52, v52")
        for i in range(1, 8):
            e("v_fmac_f32 v49, v%d, v%d" % (52 + i, 52 + i))
        e("v_cndmask_b32 v49, 0, v49, vcc")
        self.allreduce64(49, 50, "v_add_f32")
        e("v_mul_f32 v49, 0x3b124925, v49")
        self.bf16r(48, 48, 50)
        self.bf16r(49, 49, 50)
        e("v_add_f32 v49, 0x3727c5ac, v49")
        self.bf16r(49, 49, 50)
        e("v_sqrt_f32 v49, v49"); self.nop(1)
        self.bf16r(49, 49, 50)
        e("v_rcp_f32 v49, v49")
        for i in range(8):
            e("v_sub_f32 v%d, v%d, v48" % (52 + i, X + i))
        for i in range(0, 8, 2):
            e("v_cvt_pk_bf16_f32 v%d, v%d, v%d" % (36 + i // 2, 52 + i, 53 + i))
        for d in range(4):
            e("v_lshlrev_b32 v%d, 16, v%d" % (52 + 2 * d, 36 + d))
            e("v_and_b32 v%d, 0xffff0000, v%d" % (53 + 2 * d, 36 + d))
        for i in range(8):
            e("v_mul_f32 v%d, v%d, v49" % (52 + i, 52 + i))
        for i in range(0, 8, 2):
            e("v_cvt_pk_bf16_f32 v%d, v%d, v%d" % (36 + i // 2, 52 + i, 53 + i))
        e("v_lshlrev_b32 v48, 4, v%d" % vL); e("v_add_u32 v48, s%d, v48" % sVec)
        e("ds_write_b128 v48, v[36:39]")
        e("s_waitcnt lgkmcnt(0)")

    def gemv_chain(self, n, a_off, b_step, b_second, acc=8):
        e = self.e
        m = 0
        first = True
        while m < n:
            nb = min(4, n - m)
            for k in range(nb):
                o0, o1 = a_off(m + k)
                e("ds_read2_b64 v[%d:%d], v6 offset0:%d offset1:%d" % (32 + 4 * k, 35 + 4 * k, o0, o1))
                e("ds_read_b64_tr_b16 v[%d:%d], v7 offset:%d" % (48 + 4 * k, 49 + 4 * k, (m + k) * b_step))
                e("ds_read_b64_tr_b16 v[%d:%d], v7 offset:%d" % (50 + 4 * k, 51 + 4 * k, (m + k) * b_step + b_second))
            e("s_waitcnt lgkmcnt(0)")
            for k in range(nb):
                c = "0" if first else vr(acc, 4)
                e("v_mfma_f32_16x16x32_bf16 %s, %s, %s, %s" % (vr(acc, 4), vr(32 + 4 * k, 4), vr(48 + 4 * k, 4), c))
                first = False
            m += nb
        self.nop(8)

    def lane_rc(self):
        e = self.e
        e("v_lshrrev_b32 v10, 4, v%d" % vL); e("v_bfe_u32 v11, v%d, 2, 2" % vL)
        e("v_and_b32 v12, 3, v%d" % vL); e("v_and_b32 v13, 15, v%d" % vL)

    def stage_D(self, rho_reg_is_next):
        e = self.e
        self.layernorm_to_vec()
        self.lane_rc()
        e("v_lshlrev_b32 v6, 3, v10"); e("v_add_u32 v6, s%d, v6" % sVec)
        e("v_lshl_add_u32 v7, v10, 2, v11")
        e("v_bfe_u32 v14, v7, 1, 2"); e("v_xor_b32 v14, s%d, v14" % sWave)
        e("v_lshlrev_b32 v7, 7, v7"); e("v_lshl_add_u32 v7, v14, 5, v7"); e("v_lshl_add_u32 v7, v12, 3, v7"); e("v_add_u32 v7, %d, v7" % L_W)
        self.gemv_chain(14, lambda m: (8 * m, 8 * m + 4), 4096, 2048)
        e("v_mov_b32_dpp v9, v8 quad_perm:[1,0,3,2] row_mask:0xf bank_mask:0xf")
        e("v_cvt_pk_bf16_f32 v9, v8, v9")
        e("v_mov_b32 v14, -2"); e("v_min_u32 v9, v9, v14")
        e("s_lshl_b32 s%d, s%d, 7" % (sT0, sIdx)); e("s_lshl_b32 s%d, s%d, 5" % (sT1, sWave)); e("s_add_u32 s%d, s%d, s%d" % (sT0, sT0, sT1))
        e("v_lshlrev_b32 v14, 1, v%d" % vL); e("v_add_u32 v14, s%d, v14" % sT0)
        e("s_mov_b64 exec, 0x5555")
        e("global_store_dword v14, v9, %s sc1" % sp(sA))
        e("s_mov_b64 exec, -1")

    def p1a(self):
        e = self.e
        e("v_lshrrev_b32 v%d, 5, v%d" % (vPh, vL)); e("v_lshlrev_b32 v%d, 12, v%d" % (vPh, vPh))
        e("v_and_b32 v%d, 31, v%d" % (vAd, vL)); e("v_lshl_add_u32 v%d, v%d, 3, v%d" % (vPh, vAd, vPh))
        R = self.R
        for T in range(NRES_T):
            u0, u1 = 2 * T + R, 2 * T + R + 1
            if self.p2n == 1 and T == 2:
                self.now(sTm0)
            if T == 12:
                self.gwait(u0)
                lq = self.nl("Lnq")
                e("s_mov_b32 s%d, 0" % sQok)
                e("v_cmp_gt_u32 vcc, 256, v36")
                e("s_cbranch_vccnz %s" % lq)
                e("s_mov_b32 s%d, 1" % sQok)
                e("s_lshl_b32 s%d, s%d, 9" % (sT1, sH))
                self.addr(sA, pWs, M6, [sT1])
                e("v_and_b32 v37, 31, v%d" % vL); e("v_lshlrev_b32 v37, 4, v37")
                e("global_load_dwordx4 v[32:35], v37, %s sc1" % sp(sA))
                self.lab(lq)
                self.issue()
            elif T == 10:
                self.gwait(u0)
                e("v_mov_b32 v37, 0")
                e("global_load_dword v36, v37, %s sc1" % sp(pDbg))
                self.issue()
            else:
                self.group(u0)
            if T == 1:
                self.gwait(u1)
                self.count_cleared()
                self.issue(); self.xop(u1)
            elif T == 9:
                assert u1 - R >= 16
                self.gwait(u1)
                e("s_cmp_eq_u32 s%d, 4" % sRole); e("s_cbranch_scc0 L_noq1")
                e("s_barrier")
                if int(self.o.get("gap2", 1)):
                    e("s_call_b64 %s, L_stageD_prep" % sp(sRet2))
                    e("s_lshl_b32 s%d, s%d, 7" % (sT0, sIdx)); e("s_lshl_b32 s%d, s%d, 5" % (sT1, sWave))
                    self.addr(sB, pWs, M6, [sT0, sT1])
                    e("s_call_b64 %s, L_stageD_rest" % sp(sRet2))
                else:
                    self.addr(sA, pWs, M6)
                    e("s_call_b64 %s, L_stageD" % sp(sRet2))
                self.lab("L_noq1")
                self.issue()
                e("v_lshrrev_b32 v%d, 5, v%d" % (vPh, vL)); e("v_lshlrev_b32 v%d, 12, v%d" % (vPh, vPh))
                e("v_and_b32 v%d, 31, v%d" % (vAd, vL)); e("v_lshl_add_u32 v%d, v%d, 3, v%d" % (vPh, vAd, vPh))
            else:
                self.group(u1)
            e("v_add_u32 v%d, s%d, v%d" % (vAd, sCs, vPh))
            for t in range(16):
                e("ds_read_b64_tr_b16 %s, v%d offset:%d" % (res_reg(T >> 1, t, T & 1), vAd, t * 256))
            self.adv_cs()
            e("s_waitcnt lgkmcnt(0)")
        if self.p2n == 1:
            self.now(sTm1, sTm0)

    def gather_q(self):
        e = self.e
        e("s_cmp_eq_u32 s%d, 0" % sPass); e("s_cbranch_scc0 L_gq")
        e("s_cmp_eq_u32 s%d, 1" % sQok); e("s_cbranch_scc0 L_gq_slow")
        e("v_max3_u32 v36, v32, v33, v34"); e("v_max_u32 v36, v36, v35")
        e("v_cmp_eq_u32 vcc, -1, v36")
        e("v_and_b32 v8, 31, v%d" % vL); e("v_lshlrev_b32 v8, 4, v8")
        e("s_cbranch_vccz L_gq_write")
        self.lab("L_gq_slow")
        L = self.nl("Lc"); Dn = self.nl("Lcd")
        e("v_mov_b32 v8, 0"); e("s_mov_b32 s%d, 0" % sSpin)
        self.lab(L)
        e("global_load_dword v9, v8, %s sc1" % sp(pDbg))
        e("s_waitcnt vmcnt(0)")
        e("v_cmp_gt_u32 vcc, 256, v9")
        e("s_cbranch_vccz %s" % Dn)
        e("s_add_u32 s%d, s%d, 1" % (sSpin, sSpin)); e("s_cmp_lt_u32 s%d, %d" % (sSpin, SPIN_LIMIT)); e("s_cbranch_scc1 %s" % L)
        self.lab(Dn)
        self.lab("L_gq")
        e("s_lshl_b32 s%d, s%d, 13" % (sT0, sPass)); e("s_lshl_b32 s%d, s%d, 9" % (sT1, sH))
        self.addr(sA, pWs, M6, [sT0, sT1])
        e("v_and_b32 v8, 31, v%d" % vL); e("v_lshlrev_b32 v8, 4, v8")
        lds_ = ["global_load_dwordx4 v[32:35], v8, %s sc1" % sp(sA)]
        chk = [32, 33, 34, 35]
        if self.p2n == 1:
            e("v_mov_b32 v37, 0")
            lds_.append("global_load_dwordx2 v[38:39], v37, %s offset:16 sc1" % sp(pDbg))
        if self.p2n == 2:
            e("s_lshl_b32 s%d, s%d, 7" % (sT0, sH))
            self.addr(sB, pWs, M8, [sT0])
            e("s_cmp_eq_u32 s%d, 0" % sPass)
            e("s_cselect_b32 s%d, s%d, s%d" % (sB, sA, sB)); e("s_cselect_b32 s%d, s%d, s%d" % (sB + 1, sA + 1, sB + 1))
            e("v_mov_b32 v37, 0")
            lds_.append("global_load_dwordx2 v[38:39], v37, %s sc1" % sp(sB))
            chk += [38, 39]
        self.poll(lds_, chk, 36, "Pq")
        if self.p2n:
            self.near_setup()
        self.lab("L_gq_write")
        e("s_lshl_b32 s%d, s%d, 9" % (sT0, sWave))
        e("v_add_u32 v8, s%d, v8" % sT0)
        e("ds_write_b128 v8, v[32:35] offset:%d" % L_Q)
        e("s_waitcnt lgkmcnt(0)")

    def near_setup(self):
        e = self.e
        d = self.nl("Lns")
        e("s_cmp_eq_u32 s%d, 1" % sPass); e("s_cbranch_scc0 %s" % d)
        if self.p2n == 1:
            e("v_readfirstlane_b32 s%d, v38" % sT0); e("v_readfirstlane_b32 s%d, v39" % sT1)
            e("s_nop 3")
            e("s_cmp_gt_u32 s%d, 128" % sT0); e("s_cselect_b32 s%d, 1, 0" % sT0)
            e("s_cmp_gt_u32 s%d, 128" % sT1); e("s_cselect_b32 s%d, 1, 0" % sT1)
        else:
            e("v_readfirstlane_b32 s%d, v38" % sT0); e("v_readfirstlane_b32 s%d, v39" % sT1)
            e("s_nop 3")
            e("s_and_b32 s%d, s%d, 1" % (sT1, sT1)); e("s_and_b32 s%d, s%d, 1" % (sT0, sT0))
        if "forceK" in self.o:
            e("s_mov_b32 s%d, %d" % (sT0, int(self.o["forceK"]))); e("s_mov_b32 s%d, %d" % (sT1, int(self.o["forceV"])))
        e("s_xor_b32 s%d, s%d, s%d" % (sXch, sT0, sT1))
        e("s_lshr_b32 s%d, s2, 1" % sT2); e("s_lshr_b32 s%d, s2, 2" % sT3); e("s_xor_b32 s%d, s%d, s%d" % (sT2, sT2, sT3)); e("s_and_b32 s%d, s%d, 1" % (sT2, sT2))
        e("s_xor_b32 s%d, s%d, s%d" % (sT0, sT0, sT2)); e("s_xor_b32 s%d, s%d, s%d" % (sT1, sT1, sT2))
        if self.swz:
            e("s_lshl_b32 s%d, s%d, 13" % (sT0, sT0)); e("s_lshl_b32 s%d, s%d, 13" % (sT1, sT1))
        else:
            e("s_and_b32 s%d, s%d, 1" % (sT2, sWave))
            e("s_lshl_b32 s%d, s%d, 1" % (sT0, sT0)); e("s_add_u32 s%d, s%d, s%d" % (sT0, sT0, sT2)); e("s_sub_i32 s%d, s%d, s%d" % (sT0, sT0, sWave)); e("s_lshl_b32 s%d, s%d, 12" % (sT0, sT0))
            e("s_lshl_b32 s%d, s%d, 1" % (sT1, sT1)); e("s_add_u32 s%d, s%d, s%d" % (sT1, sT1, sT2)); e("s_sub_i32 s%d, s%d, s%d" % (sT1, sT1, sWave)); e("s_lshl_b32 s%d, s%d, 12" % (sT1, sT1))
        e("s_xor_b32 s%d, s2, 4" % sT3); e("s_cmp_lt_u32 s%d, 2" % sWave); e("s_cselect_b32 s%d, s2, s%d" % (sT3, sT3))
        e("s_mul_i32 s%d, s%d, %d" % (sRotN, sT3, self.stag)); e("s_and_b32 s%d, s%d, 63" % (sRotN, sRotN)); e("s_mul_i32 s%d, s%d, %d" % (sRotN, sRotN, self.stride))
        e("s_sub_i32 s%d, s%d, s2" % (sT3, sT3)); e("s_lshl_b32 s%d, s%d, 20" % (sT3, sT3))
        e("s_add_i32 s%d, s%d, s%d" % (sT0, sT0, sT3)); e("s_add_i32 s%d, s%d, s%d" % (sT1, sT1, sT3))
        for (dst, src, dl) in ((sKN, sKB, sT0), (sVN, sVB, sT1)):
            e("s_ashr_i32 s%d, s%d, 31" % (sT2, dl))
            e("s_add_u32 s%d, s%d, s%d" % (dst, src, dl)); e("s_addc_u32 s%d, s%d, s%d" % (dst + 1, src + 1, sT2))
            e("s_and_b32 s%d, s%d, 0xffff" % (dst + 1, dst + 1))
        self.lab(d)

    def kphase(self):
        e = self.e
        if self.p2n == 1:
            self.now(sTm0)
        vQ, vZ = 16, 17
        if not self.klin:
            e("v_bfe_u32 v%d, v%d, 3, 1" % (vPh, vL)); e("v_lshlrev_b32 v%d, 12, v%d" % (vPh, vPh))
            e("v_lshrrev_b32 v%d, 4, v%d" % (vAd, vL)); e("v_lshl_add_u32 v%d, v%d, 7, v%d" % (vPh, vAd, vPh))
            e("v_lshlrev_b32 v%d, 4, v%d" % (vQ, vAd))
            e("v_and_b32 v%d, 7, v%d" % (vAd, vL)); e("v_lshl_add_u32 v%d, v%d, 4, v%d" % (vPh, vAd, vPh))
        else:
            e("v_bfe_u32 v%d, v%d, 3, 1" % (vPh, vL)); e("v_lshlrev_b32 v%d, 12, v%d" % (vPh, vPh))
            e("v_and_b32 v%d, 7, v%d" % (vAd, vL)); e("v_lshl_add_u32 v%d, v%d, 9, v%d" % (vPh, vAd, vPh))
            e("v_lshrrev_b32 v%d, 4, v%d" % (vQ, vL)); e("v_and_b32 v18, 3, v%d" % vL); e("v_xor_b32 v18, v18, v%d" % vQ)
            e("v_lshl_add_u32 v%d, v18, 4, v%d" % (vPh, vPh))
            e("v_bfe_u32 v18, v%d, 2, 1" % vL); e("v_lshlrev_b32 v18, 6, v18")
            e("v_sub_u32 v19, v%d, v18" % vPh); e("v_add_u32 v%d, v%d, v18" % (vPh, vPh)); e("v_mov_b32 v18, v19")
            e("v_lshlrev_b32 v%d, 4, v%d" % (vQ, vQ))
        e("s_lshl_b32 s%d, s%d, 9" % (sT0, sWave)); e("s_add_u32 s%d, s%d, %d" % (sT0, sT0, L_Q))
        e("v_add_u32 v%d, s%d, v%d" % (vQ, sT0, vQ))
        e("v_mov_b32 v%d, %d" % (vZ, L_Z))
        for i in range(8):
            e("v_mov_b32 v%d, 0" % (vSC + i))
        first_skip = self.nl("Kskip")
        e("s_mov_b32 s%d, 0" % sT15)
        e("s_cmp_eq_u32 s%d, 0" % sPass)
        e("s_cbranch_scc1 L_k0")
        e("s_waitcnt vmcnt(0)")
        e("s_branch %s" % first_skip)
        for a in range(2):
            self.lab("L_k%d" % a)
            self.step_issue()
            if a == 0:
                self.lab(first_skip)
            e("s_lshl_b64 %s, %s, s%d" % (sp(sMd), sp(sM[0]), sT15))
            e("v_add_u32 v%d, s%d, v%d" % (vAd, sCs, vPh))
            if self.klin:
                e("v_add_u32 v19, s%d, v18" % sCs)
            e("v_cndmask_b32 v%d, v%d, v%d, %s" % (vPa, vZ, vQ, sp(sMd)))
            for b in range(2):
                for k in range(4):
                    c8 = 4 * b + k
                    e("ds_read_b128 v[%d:%d], v%d offset:%d" % (32 + 4 * k, 35 + 4 * k, vPa, c8 * 64))
                    if self.klin:
                        e("ds_read_b128 v[%d:%d], v%d offset:%d" % (48 + 4 * k, 51 + 4 * k, (19 if c8 & 1 else vAd), c8 * 64))
                    else:
                        e("ds_read_b128 v[%d:%d], v%d offset:%d" % (48 + 4 * k, 51 + 4 * k, vAd, c8 * 512))
                e("s_waitcnt lgkmcnt(0)")
                for k in range(4):
                    e("v_mfma_f32_16x16x32_bf16 %s, %s, %s, %s" % (vr(vSC + 4 * a, 4), vr(32 + 4 * k, 4), vr(48 + 4 * k, 4), vr(vSC + 4 * a, 4)))
            self.adv_cs()
            e("s_add_u32 s%d, s%d, 1" % (sT15, sT15))
            e("s_and_b32 s%d, s%d, 15" % (sT15, sT15))
            e("s_cbranch_scc1 L_k%d" % a)
            if a == 0:
                self.stamp(13)
        self.nop(8)

    def softmax(self):
        e = self.e
        S = vSC
        if self.p2n == 1:
            self.now(sTm0, sTm0)
        for i in range(0, 8, 2):
            e("v_cvt_pk_bf16_f32 v%d, v%d, v%d" % (36 + i // 2, S + i, S + i + 1))
        if self.p2n:
            nx = self.nl("Lnx")
            e("s_cmp_eq_u32 s%d, 1" % sPass); e("s_cbranch_scc0 %s" % nx)
            e("s_cmp_eq_u32 s%d, 1" % sXch); e("s_cbranch_scc0 %s" % nx)
            e("v_mov_b32 v41, -2")
            for d in range(4):
                e("v_min_u32 v%d, v%d, v41" % (44 + d, 36 + d))
            e("v_lshlrev_b32 v40, 4, v%d" % vL)
            e("s_lshl_b32 s%d, s2, 12" % sT0); e("s_lshl_b32 s%d, s%d, 10" % (sT1, sWave))
            self.addr(sA, pWs, M7, [sT0, sT1])
            e("global_store_dwordx4 v40, v[44:47], %s sc1" % sp(sA))
            e("s_xor_b32 s%d, s2, 4" % sT0); e("s_lshl_b32 s%d, s%d, 12" % (sT0, sT0)); e("s_xor_b32 s%d, s%d, 2" % (sT1, sWave)); e("s_lshl_b32 s%d, s%d, 10" % (sT1, sT1))
            self.addr(sA, pWs, M7, [sT0, sT1])
            self.poll(["global_load_dwordx4 v[48:51], v40, %s sc1" % sp(sA)], [48, 49, 50, 51], 52, "Px7")
            if self.ilv:
                e("v_mov_b32 v52, 0xffff0000"); e("v_mov_b32 v53, 0xffff0000")
                e("s_mov_b64 exec, 0xffff"); e("v_mov_b32 v52, 0")
                e("s_mov_b32 exec_lo, 0"); e("s_mov_b32 exec_hi, -1"); e("v_mov_b32 v53, -1")
                e("s_mov_b64 exec, -1")
                e("v_bfi_b32 v36, v52, v48, v36"); e("v_bfi_b32 v37, v52, v49, v37")
                e("v_bfi_b32 v38, v53, v50, v38"); e("v_bfi_b32 v39, v53, v51, v39")
            else:
                e("s_mov_b32 exec_lo, 0"); e("s_mov_b32 exec_hi, 0xffff0000")
                e("v_mov_b32 v37, v49")
                e("s_mov_b64 exec, -1")
                e("v_mov_b32 v38, v50"); e("v_mov_b32 v39, v51")
            self.lab(nx)
        for i in range(0, 8, 2):
            e("v_lshlrev_b32 v%d, 16, v%d" % (S + i, 36 + i // 2)); e("v_and_b32 v%d, 0xffff0000, v%d" % (S + i + 1, 36 + i // 2))
        e("v_max3_f32 v32, v%d, v%d, v%d" % (S, S + 1, S + 2)); e("v_max3_f32 v32, v32, v%d, v%d" % (S + 3, S + 4))
        e("v_max3_f32 v32, v32, v%d, v%d" % (S + 5, S + 6)); e("v_max_f32 v32, v32, v%d" % (S + 7))
        self.allreduce64(32, 33, "v_max_f32")
        e("s_lshl_b32 s%d, s%d, 2" % (sT0, sWave)); e("s_add_u32 s%d, s%d, %d" % (sT0, sT0, L_SM))
        e("v_mov_b32 v33, s%d" % sT0)
        e("ds_write_b32 v33, v32")
        if self.p2n == 1:
            e("s_lshl_b32 s%d, s%d, 3" % (sT0, sWave)); e("s_add_u32 s%d, s%d, %d" % (sT0, sT0, L_SM + 32))
            e("v_mov_b32 v33, s%d" % sT0); e("v_mov_b32 v34, s%d" % sTm1); e("v_mov_b32 v35, s%d" % sTm0)
            e("ds_write_b64 v33, v[34:35]")
        e("s_waitcnt lgkmcnt(0)")
        e("s_barrier")
        e("v_mov_b32 v33, %d" % L_SM)
        e("ds_read_b128 v[36:39], v33")
        if self.p2n == 1:
            nv = self.nl("Lnv")
            e("s_cmp_eq_u32 s%d, 0" % sPass); e("s_cbranch_scc0 %s" % nv)
            e("s_cmp_eq_u32 s%d, 0" % sWave); e("s_cbranch_scc0 %s" % nv)
            e("ds_read_b128 v[40:43], v33 offset:32"); e("ds_read_b128 v[44:47], v33 offset:48")
            e("s_waitcnt lgkmcnt(0)")
            e("v_add_u32 v40, v40, v42"); e("v_add_u32 v41, v41, v43"); e("v_add_u32 v44, v44, v46"); e("v_add_u32 v45, v45, v47")
            e("s_lshr_b32 s%d, s2, 1" % sT0); e("s_lshr_b32 s%d, s2, 2" % sT1); e("s_xor_b32 s%d, s%d, s%d" % (sT0, sT0, sT1)); e("s_and_b32 s%d, s%d, 1" % (sT0, sT0))
            e("v_cmp_ge_u32 vcc, v40, v44"); self.nop(2); e("v_cndmask_b32 v40, 0, 1, vcc")
            e("v_cmp_ge_u32 vcc, v41, v45"); self.nop(2); e("v_cndmask_b32 v41, 0, 1, vcc")
            e("v_xor_b32 v40, s%d, v40" % sT0); e("v_xor_b32 v41, s%d, v41" % sT0)
            e("v_cmp_eq_u32 vcc, 0, v%d" % vL); self.nop(2); e("v_cndmask_b32 v40, v40, v41, vcc")
            e("v_lshlrev_b32 v41, 2, v%d" % vL); e("v_add_u32 v41, 16, v41")
            e("s_mov_b64 exec, 3")
            e("global_atomic_add v41, v40, %s" % sp(pDbg))
            e("s_mov_b64 exec, -1")
            self.lab(nv)
        e("s_waitcnt lgkmcnt(0)")
        e("v_max3_f32 v32, v36, v37, v38"); e("v_max_f32 v32, v32, v39")
        e("s_mov_b32 s%d, 0x%x" % (sT0, C_EXP))
        for i in range(8):
            e("v_sub_f32 v%d, v%d, v32" % (S + i, S + i))
        for i in range(8):
            e("v_mul_f32 v%d, s%d, v%d" % (S + i, sT0, S + i))
        for i in range(8):
            e("v_exp_f32 v%d, v%d" % (S + i, S + i))
        self.nop(1)
        e("v_lshrrev_b32 v33, 4, v%d" % vL); e("v_lshlrev_b32 v33, 7, v33")
        e("v_and_b32 v34, 15, v%d" % vL); e("v_lshl_add_u32 v33, v34, 1, v33")
        e("s_lshl_b32 s%d, s%d, 10" % (sT0, sWave)); e("s_add_u32 s%d, s%d, %d" % (sT0, sT0, L_P))
        e("v_add_u32 v33, s%d, v33" % sT0)
        for i in range(0, 8, 2):
            a, r = i >> 2, i & 3
            e("v_cvt_pk_bf16_f32 v%d, v%d, v%d" % (36 + i // 2, S + i, S + i + 1))
            e("ds_write_b16 v33, v%d offset:%d" % (36 + i // 2, a * 512 + r * 32))
            e("ds_write_b16_d16_hi v33, v%d offset:%d" % (36 + i // 2, a * 512 + (r + 1) * 32))
        e("v_add_f32 v34, v%d, v%d" % (S, S + 1)); e("v_add_f32 v35, v%d, v%d" % (S + 2, S + 3))
        e("v_add_f32 v40, v%d, v%d" % (S + 4, S + 5)); e("v_add_f32 v41, v%d, v%d" % (S + 6, S + 7))
        e("v_add_f32 v34, v34, v35"); e("v_add_f32 v40, v40, v41"); e("v_add_f32 v34, v34, v40")
        self.allreduce64(34, 35, "v_add_f32")
        e("v_mov_b32 v%d, v34" % vLsum)
        e("v_mov_b32 v9, v32")
        e("s_waitcnt lgkmcnt(0)")

    def vphase(self):
        e = self.e
        e("v_lshrrev_b32 v%d, 5, v%d" % (vPh, vL)); e("v_lshlrev_b32 v%d, 12, v%d" % (vPh, vPh))
        e("v_and_b32 v%d, 31, v%d" % (vAd, vL)); e("v_lshl_add_u32 v%d, v%d, 3, v%d" % (vPh, vAd, vPh))
        e("v_lshrrev_b32 v%d, 4, v%d" % (vPa, vL)); e("v_lshlrev_b32 v%d, 3, v%d" % (vPa, vPa))
        e("s_lshl_b32 s%d, s%d, 10" % (sT0, sWave)); e("s_add_u32 s%d, s%d, %d" % (sT0, sT0, L_P))
        e("v_add_u32 v%d, s%d, v%d" % (vPa, sT0, vPa))
        for i in range(16):
            e("v_mov_b32 v%d, 0" % (vACC + i))
        acc = lambda T4: vr(vACC + 4 * T4, 4)
        after = {1: 0, 3: 1, 6: 2, 8: 3, 11: 4, 13: 5, 16: 6}
        pf_tiles = tuple(int(x) for x in str(self.o.get("wpft", "14,16")).split(",")) if (self.wpf and self.gapw) else ()
        cpf_tiles = tuple(int(x) for x in str(self.o.get("cpft", "9,11")).split(",")) if int(self.o.get("cpf", 1)) else ()
        if pf_tiles:
            self.wpf_setup()
        if cpf_tiles:
            e("s_getpc_b64 s[18:19]")
            self.lab("L_pcref")
            e("s_add_u32 s18, s18, L_gapcode-L_pcref"); e("s_addc_u32 s19, s19, 0")
            e("v_lshlrev_b32 v46, 7, v%d" % vL)
        any_x = bool(pf_tiles) or bool(cpf_tiles)
        pend = 0
        for i in range(NSTR_T):
            T = NRES_T + i
            if self.ilv:
                T = str_T(i)
            if not any_x:
                self.step_issue()
            else:
                w = 4 * (self.R - 1)
                hist = getattr(self, "_h", [])
                for half in range(2):
                    ex = sum(hist[-(self.R - 1):]) if hist else 0
                    e("s_waitcnt vmcnt(%d)" % (w + ex))
                    self.issue()
                    if half == 0 and i in pf_tiles:
                        e("buffer_load_dword v44, v45, %s, s%d offen" % (sp(sWS, 4), sWoff))
                        e("s_add_u32 s%d, s%d, s%d" % (sWoff, sWoff, sWstep))
                        hist.append(1)
                    elif half == 0 and i in cpf_tiles:
                        e("v_min_u32 v47, L_endcode-L_gapcode-4, v46")
                        e("global_load_dword v47, v47, s[18:19]")
                        e("v_add_u32 v46, 8192, v46")
                        hist.append(1)
                    else:
                        hist.append(0)
                self._h = hist
            e("v_add_u32 v%d, s%d, v%d" % (vAd, sCs, vPh))
            e("ds_read_b64 v[32:33], v%d offset:%d" % (vPa, T * 32))
            for b in range(2):
                us = (2 * b, 2 * b + 1)
                k = 0
                for u in us:
                    for T4 in range(4):
                        e("ds_read_b64_tr_b16 v[%d:%d], v%d offset:%d" % (48 + 2 * k, 49 + 2 * k, vAd, (4 * T4 + u) * 256))
                        k += 1
                if b == 0:
                    e("s_waitcnt lgkmcnt(8)")
                for j, u in enumerate(us):
                    e("v_cndmask_b32 v%d, 0, v32, %s" % (36 + 2 * j, sp(sM[u])))
                    e("v_cndmask_b32 v%d, 0, v33, %s" % (37 + 2 * j, sp(sM[u])))
                e("s_waitcnt lgkmcnt(0)")
                k = 0
                for j, u in enumerate(us):
                    for T4 in range(4):
                        e("v_mfma_f32_16x16x16_bf16 %s, %s, %s, %s" % (acc(T4), vr(36 + 2 * j, 2), vr(48 + 2 * k, 2), acc(T4)))
                        k += 1
            self.adv_cs()
            if i in after:
                self.res_pair(after[i])
        self.nop(8)

    def wpf_setup(self):
        e = self.e
        d = self.nl("Lpf"); lb = self.nl("LpfB")
        e("s_mov_b32 s%d, 0x20000" % (sWS + 3)); e("s_mov_b32 s%d, 0" % (sWS + 2))
        e("s_mov_b32 s%d, s%d" % (sWS, pW2)); e("s_and_b32 s%d, s%d, 0xffff" % (sWS + 1, pW2 + 1))
        e("s_mov_b32 s%d, 0" % sWoff); e("s_mov_b32 s%d, 0" % sWstep); e("v_mov_b32 v45, 0")
        e("s_cmp_eq_u32 s%d, 0" % sPass); e("s_cbranch_scc0 %s" % d)
        e("s_cmp_eq_u32 s%d, 2" % sRole); e("s_cbranch_scc1 %s" % lb)
        e("s_cmp_eq_u32 s%d, 3" % sRole); e("s_cbranch_scc0 %s" % d)
        e("s_mov_b32 s%d, %d" % (sWS + 2, 1792 * 896))
        e("v_mul_u32_u24 v45, 896, v%d" % vL)
        e("s_and_b32 s%d, s%d, 3" % (sT0, sIdx)); e("s_mul_i32 s%d, s%d, 448" % (sT0, sT0)); e("s_lshl_b32 s%d, s%d, 7" % (sT1, sWave)); e("s_add_u32 s%d, s%d, s%d" % (sT0, sT0, sT1))
        e("s_mul_i32 s%d, s%d, 896" % (sWoff, sT0)); e("s_lshr_b32 s%d, s%d, 2" % (sT1, sIdx)); e("s_lshl_b32 s%d, s%d, 7" % (sT1, sT1)); e("s_add_u32 s%d, s%d, s%d" % (sWoff, sWoff, sT1))
        e("s_mov_b32 s%d, %d" % (sWstep, 64 * 896))
        e("s_branch %s" % d)
        self.lab(lb)
        e("s_bitcmp1_b32 s%d, 0" % sIdx)
        e("s_cselect_b32 s%d, s%d, s%d" % (sWS, pW3, pW1)); e("s_cselect_b32 s%d, s%d, s%d" % (sWS + 1, pW3 + 1, pW1 + 1))
        e("s_and_b32 s%d, s%d, 0xffff" % (sWS + 1, sWS + 1))
        e("s_mov_b32 s%d, %d" % (sWS + 2, 448 * 3584))
        e("v_mul_u32_u24 v45, 3584, v%d" % vL)
        e("s_lshl_b32 s%d, s%d, 7" % (sT1, sWave)); e("s_mul_i32 s%d, s%d, 3584" % (sWoff, sT1))
        e("s_lshr_b32 s%d, s%d, 1" % (sT1, sIdx)); e("s_lshl_b32 s%d, s%d, 7" % (sT1, sT1)); e("s_add_u32 s%d, s%d, s%d" % (sWoff, sWoff, sT1))
        e("s_mov_b32 s%d, %d" % (sWstep, 64 * 3584))
        self.lab(d)

    def res_pair(self, m):
        e = self.e
        acc = lambda T4: vr(vACC + 4 * T4, 4)
        if self.ilv:
            e("ds_read2_b64 v[32:35], v%d offset0:%d offset1:%d" % (vPa, 4 * res_T(2 * m), 4 * res_T(2 * m + 1)))
        else:
            e("ds_read2_b64 v[32:35], v%d offset0:%d offset1:%d" % (vPa, 8 * m, 8 * m + 4))
        e("s_waitcnt lgkmcnt(0)")
        for u in range(4):
            A = 36 + 4 * (u & 1)
            for d in range(4):
                e("v_cndmask_b32 v%d, 0, v%d, %s" % (A + d, 32 + d, sp(sM[u])))
            self.nop(2)
            for T4 in range(4):
                e("v_mfma_f32_16x16x32_bf16 %s, %s, %s, %s" % (acc(T4), vr(A, 4), res_reg(m, 4 * T4 + u), acc(T4)))

    def combine_publish(self):
        e = self.e
        self.lab("L_gapcode")
        for u in range(4):
            X, Y, Z, W = (vACC + 4 * t + u for t in range(4))
            e("v_permlane16_swap_b32 v%d, v%d" % (X, Y))
            e("v_permlane16_swap_b32 v%d, v%d" % (Z, W))
        self.nop(2)
        for u in range(4):
            e("v_permlane32_swap_b32 v%d, v%d" % (vACC + u, vACC + 8 + u))
        e("v_lshrrev_b32 v32, 4, v%d" % vL); e("v_lshlrev_b32 v32, 8, v32")
        e("v_and_b32 v33, 15, v%d" % vL); e("v_lshl_add_u32 v32, v33, 2, v32")
        e("s_lshl_b32 s%d, s%d, 10" % (sT0, sWave)); e("s_add_u32 s%d, s%d, %d" % (sT0, sT0, L_P))
        e("v_add_u32 v32, s%d, v32" % sT0)
        for u in range(4):
            e("ds_write_b32 v32, v%d offset:%d" % (vACC + u, u * 64))
        e("s_lshl_b32 s%d, s%d, 2" % (sT0, sWave)); e("s_add_u32 s%d, s%d, %d" % (sT0, sT0, L_SM + 16))
        e("v_mov_b32 v33, s%d" % sT0)
        e("ds_write_b32 v33, v%d" % vLsum)
        e("s_waitcnt lgkmcnt(0)")
        e("s_barrier")
        e("s_lshl_b32 s%d, s%d, 8" % (sT0, sWave)); e("s_add_u32 s%d, s%d, %d" % (sT0, sT0, L_P))
        e("v_lshlrev_b32 v40, 2, v%d" % vL); e("v_add_u32 v32, s%d, v40" % sT0)
        for w in range(4):
            e("ds_read_b32 v%d, v32 offset:%d" % (34 + w, w * 1024))
        e("v_mov_b32 v33, %d" % (L_SM + 16))
        e("ds_read_b128 v[44:47], v33")
        e("s_waitcnt lgkmcnt(0)")
        e("v_add_f32 v34, v34, v35"); e("v_add_f32 v36, v36, v37"); e("v_add_f32 v34, v34, v36")
        e("v_add_f32 v44, v44, v45"); e("v_add_f32 v46, v46, v47"); e("v_add_f32 v44, v44, v46")
        e("v_mov_b32 v41, -2")
        e("v_min_u32 v34, v34, v41")
        e("v_and_b32 v42, 1, v%d" % vL); e("v_cmp_eq_u32 vcc, 1, v42"); self.nop(2)
        e("v_cndmask_b32 v43, v9, v44, vcc"); e("v_min_u32 v43, v43, v41")
        e("v_lshlrev_b32 v42, 2, v42"); e("v_add_u32 v42, 256, v42")
        e("s_lshl_b32 s%d, s%d, 2" % (sT0, sH)); e("s_add_u32 s%d, s%d, s%d" % (sT0, sT0, sWave)); e("s_lshl_b32 s%d, s%d, 4" % (sT0, sT0))
        e("s_add_u32 s%d, s%d, s%d" % (sT0, sT0, sC)); e("s_mul_i32 s%d, s%d, %d" % (sT0, sT0, M1_SLOT))
        e("s_mul_i32 s%d, s%d, 0x%x" % (sT1, sPass, M1_R))
        self.addr(sA, pWs, M1, [sT0, sT1])
        e("global_store_dword v40, v34, %s sc1" % sp(sA))
        e("global_store_dword v42, v43, %s sc1" % sp(sA))
        e("s_barrier")

    def topup(self, tp=None):
        e = self.e
        L = self.nl("Tu"); D = self.nl("Tud")
        e("s_cmp_eq_u32 s%d, 0" % sPass); e("s_cbranch_scc0 %s" % D)
        e("s_sub_u32 s%d, s%d, %d" % (sT5, sNS, self.R))
        self.lab(L)
        if tp is None:
            tp = int(self.o.get("tpace", 1))
        if tp:
            e("s_waitcnt vmcnt(%d)" % (4 * (tp - 1)))
        self.issue()
        e("s_sub_u32 s%d, s%d, 1" % (sT5, sT5))
        e("s_cmp_lg_u32 s%d, 0" % sT5); e("s_cbranch_scc1 %s" % L)
        if self.l2pf:
            e("v_and_b32 v5, 31, v%d" % vL); e("v_lshlrev_b32 v5, 7, v5"); e("v_add_u32 v5, 3072, v5")
            e("v_lshrrev_b32 v6, 5, v%d" % vL); e("v_mul_u32_u24 v6, %d, v6" % self.stride); e("v_add_u32 v6, v5, v6")
            e("s_mov_b32 s%d, s%d" % (sT5, sOff))
            for k in range(self.l2pf):
                e("buffer_load_dword v5, v6, %s, s%d offen%s" % (sp(sCUR, 4), sT5, self.l2pol))
                e("s_add_u32 s%d, s%d, %d" % (sT5, sT5, 2 * self.stride))
                if self.stag:
                    e("s_and_b32 s%d, s%d, 0x%x" % (sT5, sT5, 64 * self.stride - 1))
        self.lab(D)

    def stage_S1(self):
        e = self.e
        e("s_mul_i32 s%d, s%d, %d" % (sT0, sIdx, 16 * M1_SLOT)); e("s_mul_i32 s%d, s%d, 0x%x" % (sT1, sPass, M1_R))
        self.addr(sA, pWs, M1 + 2304, [sT0, sT1])
        e("v_lshrrev_b32 v10, 4, v%d" % vL); e("v_mul_u32_u24 v10, %d, v10" % M1_SLOT)
        e("v_and_b32 v11, 15, v%d" % vL); e("v_lshl_add_u32 v11, v11, 4, v10")
        e("v_add_u32 v10, 256, v10")
        loads = []; regs = []
        for j in range(4):
            off = j * 4 * M1_SLOT - 2304
            loads.append("global_load_dwordx4 v[%d:%d], v11, %s offset:%d sc1" % (32 + 4 * j, 35 + 4 * j, sp(sA), off))
            loads.append("global_load_dwordx2 v[%d:%d], v10, %s offset:%d sc1" % (48 + 2 * j, 49 + 2 * j, sp(sA), off))
        self.poll(loads, list(range(32, 56)), 56, "Ps1")
        self.stamp(8)
        e("v_max3_f32 v56, v48, v50, v52"); e("v_max_f32 v56, v56, v54")
        self.xrows(56, 57, "v_max_f32")
        e("s_mov_b32 s%d, 0x%x" % (sT0, C_EXP))
        for j in range(4):
            e("v_sub_f32 v%d, v%d, v56" % (48 + 2 * j, 48 + 2 * j))
        for j in range(4):
            e("v_mul_f32 v%d, s%d, v%d" % (48 + 2 * j, sT0, 48 + 2 * j))
        for j in range(4):
            e("v_exp_f32 v%d, v%d" % (48 + 2 * j, 48 + 2 * j))
        self.nop(1)
        e("v_mul_f32 v56, v48, v49")
        for j in range(1, 4):
            e("v_fmac_f32 v56, v%d, v%d" % (48 + 2 * j, 49 + 2 * j))
        for d in range(4):
            e("v_mul_f32 v%d, v48, v%d" % (32 + d, 32 + d))
        for j in range(1, 4):
            for d in range(4):
                e("v_fmac_f32 v%d, v%d, v%d" % (32 + d, 48 + 2 * j, 32 + 4 * j + d))
        self.xrows(56, 57, "v_add_f32")
        e("v_rcp_f32 v56, v56")
        e("v_permlane32_swap_b32 v32, v34"); e("v_permlane32_swap_b32 v33, v35"); self.nop(1)
        e("v_add_f32 v32, v32, v34"); e("v_add_f32 v33, v33, v35")
        e("v_mov_b32 v34, v32"); e("v_mov_b32 v35, v33"); self.nop(2)
        e("v_permlane16_swap_b32 v32, v34"); e("v_permlane16_swap_b32 v33, v35"); self.nop(1)
        e("v_add_f32 v32, v32, v34"); e("v_add_f32 v33, v33, v35")
        e("v_mul_f32 v32, v32, v56"); e("v_mul_f32 v33, v33, v56")
        e("v_cvt_pk_bf16_f32 v32, v32, v33")
        e("v_mov_b32 v41, -2"); e("v_min_u32 v32, v32, v41")
        e("v_and_b32 v34, 15, v%d" % vL); e("v_lshlrev_b32 v34, 3, v34")
        e("v_lshrrev_b32 v35, 5, v%d" % vL); e("v_lshl_add_u32 v34, v35, 2, v34"); e("v_add_u32 v34, s%d, v34" % sVec)
        e("ds_write_b32 v34, v32")
        if self.o.get("dbg_a"):
            e("s_lshl_b32 s%d, s%d, 13" % (sT0, sPass)); e("s_lshl_b32 s%d, s%d, 7" % (sT1, sIdx))
            self.addr(sA, pWs, 0xC0000, [sT0, sT1])
            e("v_subrev_u32 v35, s%d, v34" % sVec)
            e("global_store_dword v35, v32, %s" % sp(sA))
        self.lane_rc()
        e("v_lshlrev_b32 v6, 3, v10"); e("v_add_u32 v6, s%d, v6" % sVec)
        e("v_lshl_add_u32 v7, v10, 2, v11"); e("v_mul_u32_u24 v7, %d, v7" % O_ROW); e("v_lshl_add_u32 v7, v12, 3, v7")
        e("s_mul_i32 s%d, s%d, 224" % (sT0, sWave)); e("s_add_u32 s%d, s%d, %d" % (sT0, sT0, L_W)); e("v_add_u32 v7, s%d, v7" % sT0)
        e("s_waitcnt lgkmcnt(0)")
        e("ds_read2_b64 v[36:39], v6 offset0:0 offset1:4"); e("ds_read2_b64 v[40:43], v6 offset0:8 offset1:12")
        for c0 in range(0, 7, 2):
            cts = [c for c in (c0, c0 + 1) if c < 7]
            k = 0
            for ct in cts:
                for m in range(2):
                    e("ds_read_b64_tr_b16 v[%d:%d], v7 offset:%d" % (48 + 4 * k, 49 + 4 * k, m * 32 * O_ROW + ct * 32))
                    e("ds_read_b64_tr_b16 v[%d:%d], v7 offset:%d" % (50 + 4 * k, 51 + 4 * k, (m * 32 + 16) * O_ROW + ct * 32))
                    k += 1
            e("s_waitcnt lgkmcnt(0)")
            k = 0
            for ct in cts:
                for m in range(2):
                    c = "0" if m == 0 else vr(8 + 4 * ct, 4)
                    e("v_mfma_f32_16x16x32_bf16 %s, %s, %s, %s" % (vr(8 + 4 * ct, 4), vr(36 + 4 * m, 4), vr(48 + 4 * k, 4), c))
                    k += 1
        self.nop(8)
        for row in range(1, 4):
            e("s_mov_b32 exec_lo, 0x%x" % (0xffff0000 if row == 1 else 0))
            e("s_mov_b32 exec_hi, 0x%x" % (0 if row == 1 else (0xffff << (16 * (row - 2)))))
            e("v_mov_b32 v8, v%d" % (8 + 4 * row))
            if row < 3:
                e("v_mov_b32 v24, v%d" % (24 + 4 * row))
        e("s_mov_b64 exec, -1")
        e("v_mov_b32 v41, -2"); e("v_min_u32 v8, v8, v41"); e("v_min_u32 v24, v24, v41")
        e("s_mul_i32 s%d, s%d, %d" % (sT0, sIdx, M2_SLOT)); e("s_mul_i32 s%d, s%d, 0x%x" % (sT1, sPass, M2_R)); e("s_mul_i32 s%d, s%d, 448" % (sT2, sWave))
        self.addr(sA, pWs, M2, [sT0, sT1, sT2])
        e("v_lshlrev_b32 v40, 2, v%d" % vL)
        e("global_store_dword v40, v8, %s sc1" % sp(sA))
        e("s_mov_b32 exec_hi, 0xffff")
        e("global_store_dword v40, v24, %s offset:256 sc1" % sp(sA))
        e("s_mov_b64 exec, -1")
        self.stamp(9)

    def reduce_waves16(self, src):
        e = self.e
        e("v_and_b32 v14, 15, v%d" % vL); e("v_lshlrev_b32 v14, 2, v14")
        e("s_lshl_b32 s%d, s%d, 6" % (sT0, sWave)); e("s_add_u32 s%d, s%d, %d" % (sT0, sT0, L_RED))
        e("v_add_u32 v15, s%d, v14" % sT0)
        e("ds_write_b32 v15, v%d" % src)
        e("s_waitcnt lgkmcnt(0)")
        e("s_barrier")
        for w in range(4):
            e("ds_read_b32 v%d, v14 offset:%d" % (16 + w, L_RED + w * 64))
        e("s_waitcnt lgkmcnt(0)")
        e("v_add_f32 v16, v16, v17"); e("v_add_f32 v18, v18, v19"); e("v_add_f32 v8, v16, v18")

    def stage_R(self):
        e = self.e
        e("v_lshrrev_b32 v20, 4, v%d" % vL); e("v_lshlrev_b32 v20, 2, v20")
        e("s_cmp_eq_u32 s%d, 0" % sPass); e("s_cbranch_scc0 L_R_r1")
        e("s_lshl_b32 s%d, s%d, 4" % (sT0, sIdx))
        self.addr(sB, pX, 0, [sT0])
        e("s_branch L_R_r2")
        self.lab("L_R_r1")
        e("s_lshr_b32 s%d, s%d, 1" % (sT0, sIdx)); e("s_lshl_b32 s%d, s%d, 7" % (sT0, sT0))
        e("s_and_b32 s%d, s%d, 1" % (sT1, sIdx)); e("s_lshl_b32 s%d, s%d, 4" % (sT1, sT1))
        self.addr(sB, pWs, M5, [sT0, sT1])
        self.lab("L_R_r2")
        e("global_load_dword v21, v20, %s sc1" % sp(sB))
        e("s_lshl_b32 s%d, s%d, 5" % (sT0, sIdx)); e("s_mul_i32 s%d, s%d, 0x%x" % (sT1, sPass, M2_R))
        self.addr(sA, pWs, M2, [sT0, sT1])
        e("v_mul_u32_u24 v8, %d, v%d" % (M2_SLOT, vL))
        self.poll(["global_load_dwordx4 v[32:35], v8, %s sc1" % sp(sA),
                   "global_load_dwordx4 v[36:39], v8, %s offset:16 sc1" % sp(sA)], list(range(32, 40)), 40, "Pa")
        self.stamp(8)
        for d in range(4):
            e("v_permlane32_swap_b32 v%d, v%d" % (32 + d, 36 + d))
        self.nop(1)
        for d in range(4):
            e("v_add_f32 v%d, v%d, v%d" % (32 + d, 32 + d, 36 + d))
        self.nop(2)
        e("v_permlane16_swap_b32 v32, v34"); e("v_permlane16_swap_b32 v33, v35"); self.nop(1)
        e("v_add_f32 v32, v32, v34"); e("v_add_f32 v33, v33, v35")
        for n in (8, 4, 2, 1):
            self.nop(1)
            e("v_add_f32_dpp v32, v32, v32 row_ror:%d row_mask:0xf bank_mask:0xf" % n)
            e("v_add_f32_dpp v33, v33, v33 row_ror:%d row_mask:0xf bank_mask:0xf" % n)
        e("v_cvt_pk_bf16_f32 v34, v32, v33")
        e("v_lshlrev_b32 v32, 16, v34"); e("v_and_b32 v33, 0xffff0000, v34")
        e("v_lshlrev_b32 v35, 16, v21"); e("v_and_b32 v36, 0xffff0000, v21")
        e("v_add_f32 v32, v32, v35"); e("v_add_f32 v33, v33, v36")
        e("v_cvt_pk_bf16_f32 v34, v32, v33")
        e("v_mov_b32 v41, -2"); e("v_min_u32 v34, v34, v41")
        e("s_lshl_b32 s%d, s%d, 13" % (sT0, sPass)); e("s_lshl_b32 s%d, s%d, 7" % (sT1, sIdx))
        self.addr(sA, pWs, M3, [sT0, sT1])
        e("s_mov_b32 exec_lo, 0x00010001"); e("s_mov_b32 exec_hi, 0x00010001")
        e("global_store_dword v20, v34, %s sc1" % sp(sA))
        e("s_mov_b64 exec, -1")
        self.stamp(9)

    def gather_x(self, base_off, slot_shift_mode):
        e = self.e
        e("v_min_u32 v8, 55, v%d" % vL)
        if slot_shift_mode == "M3":
            e("v_lshlrev_b32 v8, 7, v8")
        else:
            e("v_and_b32 v9, 1, v8"); e("v_lshrrev_b32 v8, 1, v8"); e("v_lshlrev_b32 v8, 7, v8"); e("v_lshl_add_u32 v8, v9, 4, v8")
        self.poll(["global_load_dwordx4 v[32:35], v8, %s sc1" % sp(sA)], [32, 33, 34, 35], 36, "Px")

    def stage_B(self):
        e = self.e
        e("s_lshl_b32 s%d, s%d, 13" % (sT0, sPass))
        self.addr(sA, pWs, M3, [sT0])
        self.gather_x(M3, "M3")
        self.stamp(8)
        if self.gapw:
            e("s_barrier")
        self.layernorm_to_vec()
        self.lane_rc()
        e("v_lshlrev_b32 v6, 3, v10"); e("v_add_u32 v6, s%d, v6" % sVec)
        e("v_lshl_add_u32 v7, v10, 2, v11"); e("v_lshlrev_b32 v7, 6, v7")
        e("v_and_b32 v14, 1, v12"); e("v_lshl_add_u32 v7, v14, 3, v7")
        e("v_lshrrev_b32 v14, 1, v12"); e("v_mul_u32_u24 v14, %d, v14" % B_IMG3); e("v_add_u32 v7, v7, v14")
        e("s_lshl_b32 s%d, s%d, 4" % (sT0, sWave)); e("s_add_u32 s%d, s%d, %d" % (sT0, sT0, L_W)); e("v_add_u32 v7, s%d, v7" % sT0)
        self.gemv_chain(14, lambda m: (8 * m, 8 * m + 4), 2048, 1024)
        self.bf16r(8, 8, 9)
        self.nop(1)
        e("v_mov_b32_dpp v10, v8 row_ror:8 row_mask:0xf bank_mask:0xf")
        e("v_mul_f32 v11, 0xbfb8aa3b, v8")
        e("v_exp_f32 v11, v11"); self.nop(1)
        e("v_add_f32 v11, 1.0, v11")
        e("v_rcp_f32 v11, v11"); self.nop(1)
        e("v_mul_f32 v11, v8, v11")
        self.bf16r(11, 11, 12)
        e("v_mul_f32 v11, v11, v10")
        self.nop(1)
        e("v_mov_b32_dpp v12, v11 quad_perm:[1,0,3,2] row_mask:0xf bank_mask:0xf")
        e("v_cvt_pk_bf16_f32 v12, v11, v12")
        e("v_mov_b32 v14, -2"); e("v_min_u32 v12, v12, v14")
        e("s_lshl_b32 s%d, s%d, 13" % (sT0, sPass)); e("s_lshl_b32 s%d, s%d, 7" % (sT1, sIdx)); e("s_lshl_b32 s%d, s%d, 4" % (sT2, sWave))
        self.addr(sA, pWs, M4, [sT0, sT1, sT2])
        e("v_lshlrev_b32 v14, 1, v%d" % vL)
        e("s_mov_b64 exec, 0x55")
        e("global_store_dword v14, v12, %s sc1" % sp(sA))
        e("s_mov_b64 exec, -1")

    def stage_C(self):
        e = self.e
        e("s_lshl_b32 s%d, s%d, 13" % (sT0, sPass)); e("s_lshl_b32 s%d, s%d, 8" % (sT1, sIdx))
        self.addr(sB, pWs, M3, [sT0, sT1])
        e("v_bfe_u32 v20, v%d, 3, 1" % vL); e("v_lshlrev_b32 v20, 7, v20")
        e("v_bfe_u32 v21, v%d, 1, 2" % vL); e("v_lshl_add_u32 v20, v21, 2, v20")
        self.poll(["global_load_dword v22, v20, %s sc1" % sp(sB)], [22], 23, "Pr")
        e("s_lshl_b32 s%d, s%d, 13" % (sT0, sPass)); e("s_mul_i32 s%d, s%d, %d" % (sT1, sWave, 14 * 128))
        self.addr(sA, pWs, M4, [sT0, sT1])
        e("v_min_u32 v8, 55, v%d" % vL)
        e("v_and_b32 v9, 3, v8"); e("v_lshrrev_b32 v8, 2, v8"); e("v_lshlrev_b32 v8, 7, v8"); e("v_lshl_add_u32 v8, v9, 4, v8")
        self.poll(["global_load_dwordx4 v[32:35], v8, %s sc1" % sp(sA)], [32, 33, 34, 35], 36, "Ph")
        self.stamp(8)
        e("v_lshlrev_b32 v8, 4, v%d" % vL); e("v_add_u32 v8, s%d, v8" % sVec)
        e("ds_write_b128 v8, v[32:35]")
        self.lane_rc()
        e("v_lshlrev_b32 v6, 3, v10"); e("v_add_u32 v6, s%d, v6" % sVec)
        e("s_mul_i32 s%d, s%d, %d" % (sT0, sWave, C_WAVE)); e("s_add_u32 s%d, s%d, %d" % (sT0, sT0, L_W))
        e("v_lshl_add_u32 v7, v10, 2, v11"); e("v_lshlrev_b32 v7, 5, v7"); e("v_lshl_add_u32 v7, v12, 3, v7"); e("v_add_u32 v7, s%d, v7" % sT0)
        e("s_waitcnt lgkmcnt(0)")
        self.gemv_chain(14, lambda m: (8 * m, 8 * m + 4), 1024, 512)
        self.reduce_waves16(8)
        e("s_cmp_eq_u32 s%d, 0" % sWave); e("s_cbranch_scc0 L_C_done")
        self.bf16r(8, 8, 9)
        e("v_and_b32 v23, 1, v%d" % vL); e("v_cmp_eq_u32 vcc, 1, v23")
        e("v_lshlrev_b32 v23, 16, v22"); e("v_and_b32 v22, 0xffff0000, v22")
        e("v_cndmask_b32 v22, v23, v22, vcc")
        e("v_add_f32 v8, v8, v22")
        self.nop(1)
        e("v_mov_b32_dpp v9, v8 quad_perm:[1,0,3,2] row_mask:0xf bank_mask:0xf")
        e("v_cvt_pk_bf16_f32 v9, v8, v9")
        e("v_lshlrev_b32 v14, 1, v%d" % vL)
        e("s_cmp_eq_u32 s%d, 0" % sPass); e("s_cbranch_scc0 L_C_out")
        e("v_mov_b32 v15, -2"); e("v_min_u32 v9, v9, v15")
        e("s_lshl_b32 s%d, s%d, 7" % (sT1, sIdx))
        self.addr(sA, pWs, M5, [sT1])
        e("s_mov_b64 exec, 0x5555")
        e("global_store_dword v14, v9, %s sc1" % sp(sA))
        e("s_mov_b64 exec, -1")
        e("s_branch L_C_done")
        self.lab("L_C_out")
        e("s_lshl_b32 s%d, s%d, 5" % (sT1, sIdx))
        self.addr(sA, pOut, 0, [sT1])
        e("s_mov_b64 exec, 0x5555")
        e("global_store_dword v14, v9, %s" % sp(sA))
        e("s_mov_b64 exec, -1")
        self.lab("L_C_done")


    def poll2(self, mk_loads, n, sets, dst, name="Q"):
        e = self.e
        A, B = sets
        nl = len(mk_loads(A))
        L = self.nl(name); DA = self.nl(name + "a"); DB = self.nl(name + "b"); D = self.nl(name + "d")
        def check(base, target):
            rr = list(range(base, base + n))
            t = self.ptmp
            if n == 1:
                t = base
            else:
                if n >= 3:
                    e("v_max3_u32 v%d, v%d, v%d, v%d" % (t, rr[0], rr[1], rr[2])); rr = rr[3:]
                else:
                    e("v_max_u32 v%d, v%d, v%d" % (t, rr[0], rr[1])); rr = rr[2:]
                while rr:
                    if len(rr) >= 2:
                        e("v_max3_u32 v%d, v%d, v%d, v%d" % (t, t, rr[0], rr[1])); rr = rr[2:]
                    else:
                        e("v_max_u32 v%d, v%d, v%d" % (t, t, rr[0])); rr = rr[1:]
            e("v_cmp_eq_u32 vcc, -1, v%d" % t)
            e("s_cbranch_vccz %s" % target)
        e("s_mov_b32 s%d, 0" % sSpin)
        for ld in mk_loads(A): e(ld)
        self.lab(L)
        for ld in mk_loads(B): e(ld)
        e("s_waitcnt vmcnt(%d)" % nl)
        check(A, DA)
        for ld in mk_loads(A): e(ld)
        e("s_waitcnt vmcnt(%d)" % nl)
        check(B, DB)
        e("s_add_u32 s%d, s%d, 1" % (sSpin, sSpin))
        e("s_cmp_lt_u32 s%d, %d" % (sSpin, SPIN_LIMIT))
        e("s_cbranch_scc1 %s" % L)
        e("s_waitcnt vmcnt(0)")
        self.lab(DA)
        for i in range(n): e("v_mov_b32 v%d, v%d" % (dst + i, A + i))
        e("s_branch %s" % D)
        self.lab(DB)
        for i in range(n): e("v_mov_b32 v%d, v%d" % (dst + i, B + i))
        self.lab(D)

    ptmp = 31

    def rc2(self):
        e = self.e
        e("v_lshrrev_b32 v28, 4, v%d" % vL); e("v_bfe_u32 v29, v%d, 2, 2" % vL); e("v_and_b32 v30, 3, v%d" % vL)

    @property
    def NPRE(self):
        return 7 if self.o.get('stamps') else 8

    def breg(self, m):
        return 32 + 4 * (m % self.NPRE)

    def b_issue(self, lq, m, b_step, b_second):
        r = self.breg(m)
        lq.issue("ds_read_b64_tr_b16 v[%d:%d], v7 offset:%d" % (r, r + 1, m * b_step), ("B", m))
        lq.issue("ds_read_b64_tr_b16 v[%d:%d], v7 offset:%d" % (r + 2, r + 3, m * b_step + b_second), ("B", m))

    def chain2(self, lq, n, b_step, b_second, acc=16):
        e = self.e
        Ab = [20, 24, 28]
        def a_issue(m):
            lq.issue("ds_read2_b64 v[%d:%d], v6 offset0:%d offset1:%d" % (Ab[m % 3], Ab[m % 3] + 3, 8 * m, 8 * m + 4), ("A", m))
        for m in range(3):
            a_issue(m)
        for m in range(n):
            lq.wait([("A", m), ("B", m)])
            c = "0" if m == 0 else vr(acc, 4)
            e("v_mfma_f32_16x16x32_bf16 %s, %s, %s, %s" % (vr(acc, 4), vr(Ab[m % 3], 4), vr(self.breg(m), 4), c))
            if m + 3 < n:
                a_issue(m + 3)
            if m + self.NPRE < n:
                self.b_issue(lq, m + self.NPRE, b_step, b_second)
        self.nop(8)

    def ln2(self):
        e = self.e
        F = 20
        e("v_cmp_gt_u32 vcc, 56, v%d" % vL)
        for d in range(4):
            e("v_lshlrev_b32 v%d, 16, v%d" % (F + 2 * d, 16 + d))
            e("v_and_b32 v%d, 0xffff0000, v%d" % (F + 2 * d + 1, 16 + d))
        e("v_pk_add_f32 v[28:29], v[20:21], v[22:23]")
        e("v_pk_mul_f32 v[30:31], v[20:21], v[20:21]")
        e("v_pk_add_f32 v[16:17], v[24:25], v[26:27]")
        e("v_pk_fma_f32 v[30:31], v[22:23], v[22:23], v[30:31]")
        e("v_pk_add_f32 v[28:29], v[28:29], v[16:17]")
        e("v_pk_fma_f32 v[30:31], v[24:25], v[24:25], v[30:31]")
        e("v_add_f32 v28, v28, v29")
        e("v_pk_fma_f32 v[30:31], v[26:27], v[26:27], v[30:31]")
        e("v_cndmask_b32 v28, 0, v28, vcc")
        e("v_add_f32 v30, v30, v31")
        e("v_cndmask_b32 v30, 0, v30, vcc")
        for n in (8, 4, 2, 1):
            self.nop(1)
            e("v_add_f32_dpp v28, v28, v28 row_ror:%d row_mask:0xf bank_mask:0xf" % n)
            e("v_add_f32_dpp v30, v30, v30 row_ror:%d row_mask:0xf bank_mask:0xf" % n)
        for sw in ("v_permlane16_swap_b32", "v_permlane32_swap_b32"):
            e("v_mov_b32 v29, v28"); e("v_mov_b32 v31, v30"); self.nop(1)
            e("%s v28, v29" % sw); e("%s v30, v31" % sw)
            e("v_add_f32 v28, v28, v29"); e("v_add_f32 v30, v30, v31")
        e("v_mul_f32 v28, 0x3b124925, v28")
        e("v_mul_f32 v30, 0x3b124925, v30")
        e("v_cvt_pk_bf16_f32 v29, v28, v28")
        e("v_fma_f32 v30, -v28, v28, v30")
        e("v_and_b32 v28, 0xffff0000, v29")
        e("v_max_f32 v30, 0, v30")
        e("v_cvt_pk_bf16_f32 v31, v30, v30")
        e("v_pk_add_f32 v[20:21], v[20:21], v[28:29] op_sel_hi:[1,0] neg_lo:[0,1] neg_hi:[0,1]")
        e("v_and_b32 v30, 0xffff0000, v31")
        e("v_pk_add_f32 v[22:23], v[22:23], v[28:29] op_sel_hi:[1,0] neg_lo:[0,1] neg_hi:[0,1]")
        e("v_add_f32 v30, 0x3727c5ac, v30")
        e("v_pk_add_f32 v[24:25], v[24:25], v[28:29] op_sel_hi:[1,0] neg_lo:[0,1] neg_hi:[0,1]")
        e("v_cvt_pk_bf16_f32 v31, v30, v30")
        e("v_pk_add_f32 v[26:27], v[26:27], v[28:29] op_sel_hi:[1,0] neg_lo:[0,1] neg_hi:[0,1]")
        e("v_and_b32 v30, 0xffff0000, v31")
        e("v_cvt_pk_bf16_f32 v16, v20, v21")
        e("v_sqrt_f32 v30, v30")
        e("v_cvt_pk_bf16_f32 v17, v22, v23")
        e("v_cvt_pk_bf16_f32 v18, v24, v25")
        e("v_cvt_pk_bf16_f32 v31, v30, v30")
        e("v_cvt_pk_bf16_f32 v19, v26, v27")
        e("v_and_b32 v30, 0xffff0000, v31")
        e("v_lshlrev_b32 v20, 16, v16")
        e("v_rcp_f32 v30, v30")
        e("v_and_b32 v21, 0xffff0000, v16")
        for d in range(1, 4):
            e("v_lshlrev_b32 v%d, 16, v%d" % (F + 2 * d, 16 + d))
            e("v_and_b32 v%d, 0xffff0000, v%d" % (F + 2 * d + 1, 16 + d))
        for d in range(4):
            e("v_pk_mul_f32 v[%d:%d], v[%d:%d], v[30:31] op_sel_hi:[1,0]" % (F + 2 * d, F + 2 * d + 1, F + 2 * d, F + 2 * d + 1))
        for d in range(4):
            e("v_cvt_pk_bf16_f32 v%d, v%d, v%d" % (16 + d, F + 2 * d, F + 2 * d + 1))
        e("ds_write_b128 v5, v[16:19]")
        e("s_waitcnt lgkmcnt(0)")

    def prepBD(self, role):
        e = self.e
        self.rc2()
        e("v_lshlrev_b32 v6, 3, v28"); e("v_add_u32 v6, s%d, v6" % sVec)
        e("v_lshlrev_b32 v5, 4, v%d" % vL); e("v_add_u32 v5, s%d, v5" % sVec)
        e("v_lshl_add_u32 v7, v28, 2, v29")
        if role == "D":
            e("v_bfe_u32 v31, v7, 1, 2"); e("v_xor_b32 v31, s%d, v31" % sWave)
            e("v_lshlrev_b32 v7, 7, v7"); e("v_lshl_add_u32 v7, v31, 5, v7"); e("v_lshl_add_u32 v7, v30, 3, v7"); e("v_add_u32 v7, %d, v7" % L_W)
            st = (4096, 2048)
        elif role == "B":
            e("v_lshlrev_b32 v7, 6, v7")
            e("v_and_b32 v31, 1, v30"); e("v_lshl_add_u32 v7, v31, 3, v7")
            e("v_lshrrev_b32 v31, 1, v30"); e("v_mul_u32_u24 v31, %d, v31" % B_IMG3); e("v_add_u32 v7, v7, v31")
            e("s_lshl_b32 s%d, s%d, 4" % (sT0, sWave)); e("s_add_u32 s%d, s%d, %d" % (sT0, sT0, L_W)); e("v_add_u32 v7, s%d, v7" % sT0)
            st = (2048, 1024)
        else:
            e("s_mul_i32 s%d, s%d, %d" % (sT0, sWave, C_WAVE)); e("s_add_u32 s%d, s%d, %d" % (sT0, sT0, L_W))
            e("v_lshlrev_b32 v7, 5, v7"); e("v_lshl_add_u32 v7, v30, 3, v7"); e("v_add_u32 v7, s%d, v7" % sT0)
            st = (1024, 512)
        lq = LQ(self)
        for m in range(self.NPRE):
            self.b_issue(lq, m, st[0], st[1])
        return lq, st

    def poll_x2(self, mode):
        e = self.e
        e("v_min_u32 v19, 55, v%d" % vL)
        if mode == "M3":
            e("v_lshlrev_b32 v19, 7, v19")
        else:
            e("v_and_b32 v18, 1, v19"); e("v_lshrrev_b32 v19, 1, v19"); e("v_lshlrev_b32 v19, 7, v19"); e("v_lshl_add_u32 v19, v18, 4, v19")
        e("v_mov_b32 v29, v19")
        self.poll2(lambda b: ["global_load_dwordx4 v[%d:%d], v29, %s sc1" % (b, b + 3, sp(sA))], 4, (8, 12), 16, "Qx")

    def publish_pairs(self, val, tmp, base_pair, off_vreg, mask):
        e = self.e
        e("v_mov_b32_dpp v%d, v%d quad_perm:[1,0,3,2] row_mask:0xf bank_mask:0xf" % (tmp, val))
        e("v_cvt_pk_bf16_f32 v%d, v%d, v%d" % (tmp, val, tmp))
        e("v_min_u32 v%d, v%d, v%d" % (tmp, tmp, 27))
        e("s_mov_b64 exec, 0x%x" % mask)
        e("global_store_dword v%d, v%d, %s sc1" % (off_vreg, tmp, sp(base_pair)))
        e("s_mov_b64 exec, -1")

    def stageD2_prep(self):
        self.lqD, self.stD = self.prepBD("D")

    def stageD2_rest(self):
        e = self.e
        lq = LQ(self); lq.q = [("B", m) for m in range(self.NPRE) for _ in range(2)]
        self.ln2(); lq.q = []
        self.chain2(lq, 14, 4096, 2048)
        e("v_mov_b32 v27, -2"); e("v_lshlrev_b32 v26, 1, v%d" % vL)
        self.publish_pairs(16, 25, sB, 26, 0x5555)

    def stage_B2(self):
        e = self.e
        e("s_waitcnt vmcnt(0)"); e("s_barrier")
        self.stamp(11)
        lq, st = self.prepBD("B")
        e("s_lshl_b32 s%d, s%d, 13" % (sT0, sPass)); e("s_lshl_b32 s%d, s%d, 7" % (sT1, sIdx)); e("s_lshl_b32 s%d, s%d, 4" % (sT2, sWave))
        self.addr(sB, pWs, M4, [sT0, sT1, sT2])
        self.addr(sA, pWs, M3, [sT0])
        self.poll_x2("M3")
        self.stamp(8)
        self.ln2(); lq.q = []
        self.chain2(lq, 14, st[0], st[1])
        e("v_cvt_pk_bf16_f32 v17, v16, v16"); e("v_and_b32 v16, 0xffff0000, v17")
        e("v_mul_f32 v19, 0xbfb8aa3b, v16")
        e("v_exp_f32 v19, v19")
        e("v_mov_b32_dpp v18, v16 row_ror:8 row_mask:0xf bank_mask:0xf")
        e("v_add_f32 v19, 1.0, v19")
        e("v_rcp_f32 v19, v19"); e("v_mov_b32 v27, -2")
        e("v_mul_f32 v19, v16, v19")
        e("v_cvt_pk_bf16_f32 v17, v19, v19"); e("v_and_b32 v19, 0xffff0000, v17")
        e("v_mul_f32 v19, v19, v18")
        e("v_lshlrev_b32 v26, 1, v%d" % vL); self.nop(1)
        self.publish_pairs(19, 25, sB, 26, 0x55)
        self.stamp(9)
        e("s_waitcnt vmcnt(1)")

    def stage_C2(self):
        e = self.e
        e("s_waitcnt vmcnt(0)")
        self.stamp(11)
        lq, st = self.prepBD("C")
        e("s_lshl_b32 s%d, s%d, 13" % (sT0, sPass)); e("s_lshl_b32 s%d, s%d, 8" % (sT1, sIdx))
        self.addr(sB, pWs, M3, [sT0, sT1])
        e("v_bfe_u32 v20, v%d, 3, 1" % vL); e("v_lshlrev_b32 v20, 7, v20")
        e("v_bfe_u32 v21, v%d, 1, 2" % vL); e("v_lshl_add_u32 v20, v21, 2, v20")
        self.poll(["global_load_dword v22, v20, %s sc1" % sp(sB)], [22], 23, "Pr")
        self.stamp(12)
        e("v_and_b32 v23, 1, v%d" % vL); e("v_cmp_eq_u32 vcc, 1, v23")
        e("v_lshlrev_b32 v23, 16, v22"); e("v_and_b32 v22, 0xffff0000, v22")
        e("v_cndmask_b32 v22, v23, v22, vcc")
        e("v_and_b32 v23, 15, v%d" % vL); e("v_lshlrev_b32 v23, 2, v23")
        e("ds_write_b32 v23, v22 offset:%d" % (L_RED + 256))
        lq.q.append(("S", 0))
        e("s_lshl_b32 s%d, s%d, 13" % (sT0, sPass)); e("s_mul_i32 s%d, s%d, %d" % (sT1, sWave, 14 * 128))
        self.addr(sA, pWs, M4, [sT0, sT1])
        e("v_min_u32 v29, 55, v%d" % vL)
        e("v_and_b32 v28, 3, v29"); e("v_lshrrev_b32 v29, 2, v29"); e("v_lshlrev_b32 v29, 7, v29"); e("v_lshl_add_u32 v29, v28, 4, v29")
        e("s_cmp_eq_u32 s%d, 0" % sPass)
        e("s_lshl_b32 s%d, s%d, 7" % (sT1, sIdx)); e("s_lshl_b32 s%d, s%d, 5" % (sT2, sIdx))
        lo = self.nl("Lco"); ld = self.nl("Lcod")
        e("s_cmp_eq_u32 s%d, 0" % sPass); e("s_cbranch_scc0 %s" % lo)
        self.addr(sB, pWs, M5, [sT1]); e("s_branch %s" % ld)
        self.lab(lo); self.addr(sB, pOut, 0, [sT2]); self.lab(ld)
        self.poll2(lambda b: ["global_load_dwordx4 v[%d:%d], v29, %s sc1" % (b, b + 3, sp(sA))], 4, (8, 12), 16, "Qh")
        self.stamp(8)
        e("ds_write_b128 v5, v[16:19]")
        e("s_waitcnt lgkmcnt(0)"); lq.q = []
        self.chain2(lq, 14, st[0], st[1])
        e("v_and_b32 v20, 15, v%d" % vL); e("v_lshlrev_b32 v20, 2, v20")
        e("s_lshl_b32 s%d, s%d, 6" % (sT0, sWave)); e("s_add_u32 s%d, s%d, %d" % (sT0, sT0, L_RED))
        e("v_add_u32 v21, s%d, v20" % sT0)
        e("ds_write_b32 v21, v16")
        e("s_waitcnt lgkmcnt(0)")
        e("s_barrier")
        lz = self.nl("Lcz")
        e("s_cmp_eq_u32 s%d, 0" % sWave); e("s_cbranch_scc0 %s" % lz)
        for w in range(4):
            e("ds_read_b32 v%d, v20 offset:%d" % (22 + w, L_RED + w * 64))
        e("ds_read_b32 v21, v20 offset:%d" % (L_RED + 256))
        e("v_mov_b32 v27, -2"); e("v_lshlrev_b32 v26, 1, v%d" % vL)
        e("s_waitcnt lgkmcnt(0)")
        e("v_add_f32 v22, v22, v23"); e("v_add_f32 v24, v24, v25"); e("v_add_f32 v16, v22, v24")
        e("v_cvt_pk_bf16_f32 v17, v16, v16"); e("v_and_b32 v16, 0xffff0000, v17")
        e("v_add_f32 v16, v16, v21")
        self.nop(1)
        self.publish_pairs(16, 25, sB, 26, 0x5555)
        le = self.nl("Lce")
        self.stamp(9)
        e("s_waitcnt vmcnt(1)"); e("s_branch %s" % le)
        self.lab(lz)
        e("s_waitcnt vmcnt(0)")
        self.lab(le)


    def stage_O2(self):
        e = self.e
        self.rc2()
        e("v_lshlrev_b32 v6, 3, v28"); e("v_add_u32 v6, s%d, v6" % sVec)
        e("v_lshl_add_u32 v7, v28, 2, v29"); e("v_mul_u32_u24 v7, %d, v7" % O_ROW); e("v_lshl_add_u32 v7, v30, 3, v7")
        e("s_mul_i32 s%d, s%d, 224" % (sT0, sWave)); e("s_add_u32 s%d, s%d, %d" % (sT0, sT0, L_W)); e("v_add_u32 v7, s%d, v7" % sT0)
        e("v_and_b32 v5, 15, v%d" % vL); e("v_lshlrev_b32 v5, 3, v5")
        e("v_lshrrev_b32 v9, 5, v%d" % vL); e("v_lshl_add_u32 v5, v9, 2, v5"); e("v_add_u32 v5, s%d, v5" % sVec)
        e("s_mul_i32 s%d, s%d, %d" % (sT0, sIdx, M2_SLOT)); e("s_mul_i32 s%d, s%d, 0x%x" % (sT1, sPass, M2_R)); e("s_mul_i32 s%d, s%d, 448" % (sT2, sWave))
        self.addr(sB, pWs, M2, [sT0, sT1, sT2])
        e("s_mul_i32 s%d, s%d, %d" % (sT0, sIdx, 16 * M1_SLOT)); e("s_mul_i32 s%d, s%d, 0x%x" % (sT1, sPass, M1_R))
        self.addr(sA, pWs, M1 + 2304, [sT0, sT1])
        e("v_mul_u32_u24 v10, %d, v28" % M1_SLOT)
        e("v_and_b32 v11, 15, v%d" % vL); e("v_lshl_add_u32 v11, v11, 4, v10")
        e("v_add_u32 v10, 256, v10")
        e("s_mov_b32 s%d, 0x%x" % (sT3, C_EXP))
        loads = []
        for j in range(4):
            off = j * 4 * M1_SLOT - 2304
            loads.append("global_load_dwordx2 v[%d:%d], v10, %s offset:%d sc1" % (48 + 2 * j, 49 + 2 * j, sp(sA), off))
            loads.append("global_load_dwordx4 v[%d:%d], v11, %s offset:%d sc1" % (32 + 4 * j, 35 + 4 * j, sp(sA), off))
        self.poll(loads, list(range(32, 56)), 56, "Ps1")
        self.stamp(8)
        e("v_max3_f32 v56, v48, v50, v52"); e("v_max_f32 v56, v56, v54")
        for sw in ("v_permlane16_swap_b32", "v_permlane32_swap_b32"):
            e("v_mov_b32 v57, v56"); self.nop(2); e("%s v56, v57" % sw); e("v_max_f32 v56, v56, v57")
        for j in range(4):
            e("v_sub_f32 v%d, v%d, v56" % (48 + 2 * j, 48 + 2 * j))
        for j in range(4):
            e("v_mul_f32 v%d, s%d, v%d" % (48 + 2 * j, sT3, 48 + 2 * j))
        for j in range(4):
            e("v_exp_f32 v%d, v%d" % (48 + 2 * j, 48 + 2 * j))
        self.nop(1)
        e("v_mul_f32 v56, v48, v49")
        e("v_pk_mul_f32 v[32:33], v[32:33], v[48:49] op_sel_hi:[1,0]"); e("v_pk_mul_f32 v[34:35], v[34:35], v[48:49] op_sel_hi:[1,0]")
        for j in range(1, 4):
            e("v_fmac_f32 v56, v%d, v%d" % (48 + 2 * j, 49 + 2 * j))
            e("v_pk_fma_f32 v[32:33], v[%d:%d], v[%d:%d], v[32:33] op_sel_hi:[1,0,1]" % (32 + 4 * j, 33 + 4 * j, 48 + 2 * j, 49 + 2 * j))
            e("v_pk_fma_f32 v[34:35], v[%d:%d], v[%d:%d], v[34:35] op_sel_hi:[1,0,1]" % (34 + 4 * j, 35 + 4 * j, 48 + 2 * j, 49 + 2 * j))
        e("v_mov_b32 v57, v56"); self.nop(1)
        e("v_permlane32_swap_b32 v32, v34"); e("v_permlane32_swap_b32 v33, v35"); e("v_permlane32_swap_b32 v56, v57")
        e("v_add_f32 v32, v32, v34"); e("v_add_f32 v33, v33, v35"); e("v_add_f32 v56, v56, v57")
        e("v_mov_b32 v34, v32"); e("v_mov_b32 v35, v33"); e("v_mov_b32 v57, v56"); self.nop(1)
        e("v_permlane16_swap_b32 v32, v34"); e("v_permlane16_swap_b32 v33, v35"); e("v_permlane16_swap_b32 v56, v57")
        e("v_add_f32 v56, v56, v57"); e("v_add_f32 v32, v32, v34"); e("v_rcp_f32 v56, v56"); e("v_add_f32 v33, v33, v35")
        self.nop(1)
        e("v_pk_mul_f32 v[32:33], v[32:33], v[56:57] op_sel_hi:[1,0]")
        e("v_cvt_pk_bf16_f32 v32, v32, v33")
        lq = LQ(self)
        lq.issue("ds_write_b32 v5, v32", "W")
        if self.o.get("dbg_a"):
            e("s_lshl_b32 s%d, s%d, 13" % (sT0, sPass)); e("s_lshl_b32 s%d, s%d, 7" % (sT1, sIdx))
            self.addr(sA, pWs, 0xC0000, [sT0, sT1])
            e("v_subrev_u32 v35, s%d, v5" % sVec)
            e("global_store_dword v35, v32, %s" % sp(sA))
        steps = [(ct, m) for ct in range(7) for m in range(2)]
        def b_iss(k):
            ct, m = steps[k]; r = 44 + 4 * (k % 5)
            lq.issue("ds_read_b64_tr_b16 v[%d:%d], v7 offset:%d" % (r, r + 1, m * 32 * O_ROW + ct * 32), ("B", k))
            lq.issue("ds_read_b64_tr_b16 v[%d:%d], v7 offset:%d" % (r + 2, r + 3, (m * 32 + 16) * O_ROW + ct * 32), ("B", k))
        for k in range(5):
            b_iss(k)
        lq.wait(["W"])
        lq.issue("ds_read2_b64 v[36:39], v6 offset0:0 offset1:4", "A"); lq.issue("ds_read2_b64 v[40:43], v6 offset0:8 offset1:12", "A")
        for k, (ct, m) in enumerate(steps):
            lq.wait([("B", k), "A"])
            acc = [12, 16, 20, 24, 28, 32, 8][ct]
            c = "0" if m == 0 else vr(acc, 4)
            e("v_mfma_f32_16x16x32_bf16 %s, %s, %s, %s" % (vr(acc, 4), vr(36 + 4 * m, 4), vr(44 + 4 * (k % 5), 4), c))
            if k + 5 < len(steps):
                b_iss(k + 5)
        self.nop(8)
        for row in range(1, 4):
            e("s_mov_b32 exec_lo, 0x%x" % (0xffff0000 if row == 1 else 0))
            e("s_mov_b32 exec_hi, 0x%x" % (0 if row == 1 else (0xffff << (16 * (row - 2)))))
            e("v_mov_b32 v12, v%d" % (12 + 4 * row))
            if row < 3:
                e("v_mov_b32 v28, v%d" % (32 if row == 1 else 8))
        e("s_mov_b64 exec, -1")
        e("v_mov_b32 v41, -2"); e("v_lshlrev_b32 v42, 2, v%d" % vL); e("v_min_u32 v12, v12, v41"); e("v_min_u32 v28, v28, v41")
        e("global_store_dword v42, v12, %s sc1" % sp(sB))
        e("s_mov_b32 exec_hi, 0xffff")
        e("global_store_dword v42, v28, %s offset:256 sc1" % sp(sB))
        e("s_mov_b64 exec, -1")
        self.stamp(9)

    def stage_R2(self):
        e = self.e
        e("v_lshrrev_b32 v24, 4, v%d" % vL); e("v_lshlrev_b32 v24, 2, v24")
        e("s_cmp_eq_u32 s%d, 0" % sPass); e("s_cbranch_scc0 L_R_r1")
        e("s_lshl_b32 s%d, s%d, 4" % (sT0, sIdx))
        self.addr(sB, pX, 0, [sT0])
        e("s_branch L_R_r2")
        self.lab("L_R_r1")
        e("s_lshr_b32 s%d, s%d, 1" % (sT0, sIdx)); e("s_lshl_b32 s%d, s%d, 7" % (sT0, sT0))
        e("s_and_b32 s%d, s%d, 1" % (sT1, sIdx)); e("s_lshl_b32 s%d, s%d, 4" % (sT1, sT1))
        self.addr(sB, pWs, M5, [sT0, sT1])
        self.lab("L_R_r2")
        e("global_load_dword v25, v24, %s sc1" % sp(sB))
        e("s_lshl_b32 s%d, s%d, 13" % (sT0, sPass)); e("s_lshl_b32 s%d, s%d, 7" % (sT1, sIdx))
        self.addr(sB, pWs, M3, [sT0, sT1])
        e("s_lshl_b32 s%d, s%d, 5" % (sT0, sIdx)); e("s_mul_i32 s%d, s%d, 0x%x" % (sT1, sPass, M2_R))
        self.addr(sA, pWs, M2, [sT0, sT1])
        e("v_mul_u32_u24 v29, %d, v%d" % (M2_SLOT, vL)); e("v_mov_b32 v41, -2")
        self.poll2(lambda b: ["global_load_dwordx4 v[%d:%d], v29, %s sc1" % (b, b + 3, sp(sA)),
                              "global_load_dwordx4 v[%d:%d], v29, %s offset:16 sc1" % (b + 4, b + 7, sp(sA))], 8, (8, 16), 32, "Qr")
        self.stamp(8)
        self.nop(1)
        for d in range(4):
            e("v_permlane32_swap_b32 v%d, v%d" % (32 + d, 36 + d))
        e("v_pk_add_f32 v[32:33], v[32:33], v[36:37]"); e("v_pk_add_f32 v[34:35], v[34:35], v[38:39]")
        self.nop(2)
        e("v_permlane16_swap_b32 v32, v34"); e("v_permlane16_swap_b32 v33, v35")
        e("v_pk_add_f32 v[32:33], v[32:33], v[34:35]")
        for n in (8, 4, 2, 1):
            self.nop(1 if n == 8 else 1)
            if n == 8: self.nop(1)
            e("v_add_f32_dpp v32, v32, v32 row_ror:%d row_mask:0xf bank_mask:0xf" % n)
            e("v_add_f32_dpp v33, v33, v33 row_ror:%d row_mask:0xf bank_mask:0xf" % n)
        e("v_cvt_pk_bf16_f32 v34, v32, v33")
        e("v_lshlrev_b32 v35, 16, v25"); e("v_and_b32 v36, 0xffff0000, v25")
        e("v_lshlrev_b32 v32, 16, v34"); e("v_and_b32 v33, 0xffff0000, v34")
        e("v_add_f32 v32, v32, v35"); e("v_add_f32 v33, v33, v36")
        e("v_cvt_pk_bf16_f32 v34, v32, v33")
        e("v_min_u32 v34, v34, v41")
        e("s_mov_b32 exec_lo, 0x00010001"); e("s_mov_b32 exec_hi, 0x00010001")
        e("global_store_dword v24, v34, %s sc1" % sp(sB))
        e("s_mov_b64 exec, -1")
        self.stamp(9)
        e("s_waitcnt vmcnt(1)")


    def probe_near(self):
        e = self.e
        sk = self.nl("Lpr"); lp = self.nl("Lprl"); bar = self.nl("Lprb")
        N = max(self.alN, 1)
        NP = int(self.o.get("nprobe", 5 if N <= 2 else 4))
        e("s_cmp_eq_u32 s%d, 0" % sPass); e("s_cbranch_scc0 %s" % sk)
        e("s_and_b32 s%d, s%d, 3" % (sT5, sIdx)); e("s_cmp_lt_u32 s%d, 2" % sT5); e("s_cbranch_scc0 %s" % sk)
        e("s_waitcnt vmcnt(0)")
        e("s_cmp_eq_u32 s%d, 0" % sWave); e("s_cbranch_scc0 %s" % bar)
        e("s_cmp_eq_u32 s%d, 1" % sT5)
        e("s_cselect_b32 s%d, s%d, s%d" % (sA, sVB, sKB)); e("s_cselect_b32 s%d, s%d, s%d" % (sA + 1, sVB + 1, sKB + 1))
        e("s_lshr_b32 s%d, s%d, 2" % (sT0, sIdx)); e("s_lshl_b32 s%d, s%d, 4" % (sT0, sT0))
        e("s_and_b32 s%d, s2, 7" % sT1); e("s_xor_b32 s%d, s%d, 4" % (sT1, sT1)); e("s_add_u32 s%d, s%d, s%d" % (sRho, sT0, sT1))
        e("s_mov_b32 s%d, s%d" % (sT0, sRho)); e("s_sub_i32 s%d, s%d, s2" % (sT1, sT0)); e("s_lshl_b32 s%d, s%d, 20" % (sT1, sT1)); e("s_add_i32 s%d, s%d, 3072" % (sT1, sT1))
        e("s_ashr_i32 s%d, s%d, 31" % (sT2, sT1))
        e("s_add_u32 s%d, s%d, s%d" % (sA, sA, sT1)); e("s_addc_u32 s%d, s%d, s%d" % (sA + 1, sA + 1, sT2))
        e("s_mul_i32 s%d, s%d, %d" % (sT4, sT0, self.stag)); e("s_and_b32 s%d, s%d, 63" % (sT4, sT4)); e("s_mul_i32 s%d, s%d, %d" % (sT4, sT4, self.stride))
        e("s_cmp_eq_u32 s%d, 1" % sT5); e("s_cselect_b32 s%d, 65, 29" % sT0)
        e("s_lshr_b32 s%d, s%d, 3" % (sT1, sRho)); e("s_add_u32 s%d, s%d, s%d" % (sT0, sT0, sT1)); e("s_add_u32 s%d, s%d, 32" % (sT0, sT0))
        e("s_sub_u32 s%d, 0, s%d" % (sT0, sT0)); e("s_and_b32 s%d, s%d, %d" % (sT0, sT0, N - 1)); e("s_add_u32 s%d, s%d, 32" % (sT0, sT0))
        e("s_mul_i32 s%d, s%d, %d" % (sT0, sT0, self.stride)); e("s_add_u32 s%d, s%d, s%d" % (sT1, sT4, sT0)); e("s_and_b32 s%d, s%d, 0x%x" % (sT1, sT1, 64 * self.stride - 1))
        if self.ilv:
            lk = self.nl("Lprk")
            e("s_mov_b32 s%d, %d" % (sEx, N * self.stride))
            e("s_cmp_eq_u32 s%d, 1" % sT5); e("s_cbranch_scc0 %s" % lk)
            e("s_lshr_b32 s%d, s%d, 3" % (sT1, sRho)); e("s_add_u32 s%d, s%d, %d" % (sT1, sT1, 93 + 2))
            e("s_sub_u32 s%d, 0, s%d" % (sT1, sT1)); e("s_and_b32 s%d, s%d, %d" % (sT1, sT1, N - 1)); e("s_add_u32 s%d, s%d, 2" % (sT1, sT1))
            e("s_and_b32 s%d, s%d, 1" % (sT0, sT1)); e("s_lshl_b32 s%d, s%d, 1" % (sT1, sT1)); e("s_sub_u32 s%d, s%d, s%d" % (sT1, sT1, sT0)); e("s_add_u32 s%d, s%d, 10" % (sT1, sT1))
            e("s_mul_i32 s%d, s%d, %d" % (sT1, sT1, self.stride)); e("s_add_u32 s%d, s%d, s%d" % (sT1, sT1, sT4)); e("s_and_b32 s%d, s%d, 0x%x" % (sT1, sT1, 64 * self.stride - 1))
            e("s_mov_b32 s%d, %d" % (sEx, 2 * N * self.stride))
            self.lab(lk)
        e("s_mov_b32 s%d, -1" % sT2); e("s_mov_b32 s%d, -1" % sT3); e("s_mov_b32 s%d, %d" % (sT0, NP))
        self.lab(lp)
        for par, acc in ((0, sT2), (1, sT3)):
            e("s_add_u32 s%d, s%d, %d" % (sT4, sT1, par * 8192 + 1024)); e("v_mov_b32 v8, s%d" % sT4)
            e("s_memtime s[90:91]"); e("s_waitcnt lgkmcnt(0)"); e("s_mov_b32 s%d, s90" % sT4)
            e("global_load_dword v9, v8, %s nt" % sp(sA))
            e("s_waitcnt vmcnt(0)")
            e("s_memtime s[90:91]"); e("s_waitcnt lgkmcnt(0)")
            e("s_sub_u32 s%d, s90, s%d" % (sT4, sT4)); e("s_min_u32 s%d, s%d, s%d" % (acc, acc, sT4))
        if self.ilv:
            e("s_add_u32 s%d, s%d, s%d" % (sT1, sT1, sEx))
        else:
            e("s_add_u32 s%d, s%d, %d" % (sT1, sT1, N * self.stride))
        e("s_and_b32 s%d, s%d, 0x%x" % (sT1, sT1, 64 * self.stride - 1))
        e("s_sub_u32 s%d, s%d, 1" % (sT0, sT0)); e("s_cmp_lg_u32 s%d, 0" % sT0); e("s_cbranch_scc1 %s" % lp)
        e("s_lshr_b32 s%d, s%d, 1" % (sT0, sRho)); e("s_lshr_b32 s%d, s2, 2" % sT1); e("s_xor_b32 s%d, s%d, s%d" % (sT0, sT0, sT1)); e("s_and_b32 s%d, s%d, 1" % (sT0, sT0))
        e("s_cmp_gt_u32 s%d, s%d" % (sT2, sT3)); e("s_cselect_b32 s%d, 1, 0" % sT1); e("s_xor_b32 s%d, s%d, s%d" % (sT1, sT1, sT0))
        if self.o.get("dbg_probe"):
            e("s_lshr_b32 s%d, s%d, 3" % (sT2, sT2)); e("s_min_u32 s%d, s%d, 0x3ff" % (sT2, sT2)); e("s_lshl_b32 s%d, s%d, 2" % (sT2, sT2))
            e("s_lshr_b32 s%d, s%d, 3" % (sT3, sT3)); e("s_min_u32 s%d, s%d, 0x3ff" % (sT3, sT3)); e("s_lshl_b32 s%d, s%d, 12" % (sT3, sT3))
            e("s_or_b32 s%d, s%d, s%d" % (sT1, sT1, sT2)); e("s_or_b32 s%d, s%d, s%d" % (sT1, sT1, sT3))
        e("v_mov_b32 v8, s%d" % sT1)
        e("s_lshr_b32 s%d, s%d, 2" % (sT0, sIdx)); e("s_lshl_b32 s%d, s%d, 7" % (sT0, sT0)); e("s_lshl_b32 s%d, s%d, 2" % (sT1, sT5))
        self.addr(sB, pWs, M8, [sT0, sT1])
        e("v_mov_b32 v9, 0")
        e("s_mov_b64 exec, 1")
        e("global_store_dword v9, v8, %s sc1" % sp(sB))
        e("s_mov_b64 exec, -1")
        self.lab(bar)
        e("s_barrier")
        self.lab(sk)


    def emit_issue_sub(self):
        e = self.e
        mask = 64 * self.stride - 1
        t0, t1, t2 = sOf2, sT0 + 0, sT0 + 0
        self.lab("L_issue")
        e("s_mov_b32 m0, s%d" % sSlot)
        e("s_add_u32 s%d, s%d, 4096" % (sSlot, sSlot))
        e("s_cmp_eq_u32 s%d, s%d" % (sSlot, sRe))
        e("s_cselect_b32 s%d, s%d, s%d" % (sSlot, sRs, sSlot))
        X, Y = 90, 91
        e("s_mov_b32 s%d, s%d" % (X, sJ))
        e("s_cmp_eq_u32 s%d, 0" % sIsV); e("s_cbranch_scc1 L_is_k")
        e("s_and_b32 s%d, s%d, 1" % (Y, sJ)); e("s_lshl_b32 s%d, s%d, 1" % (X, sJ)); e("s_sub_u32 s%d, s%d, s%d" % (X, X, Y)); e("s_add_u32 s%d, s%d, s%d" % (X, X, sVadd))
        e("s_bitcmp1_b32 s%d, 31" % sVadd); e("s_cbranch_scc1 L_is_vres")
        e("s_add_u32 s%d, s%d, 28" % (Y, sJ)); e("s_cmp_ge_u32 s%d, 20" % sJ); e("s_cselect_b32 s%d, s%d, s%d" % (X, Y, X))
        e("s_branch L_is_v2")
        self.lab("L_is_vres")
        e("s_cmp_lt_u32 s%d, 8" % sJ); e("s_cselect_b32 s%d, s%d, s%d" % (X, sJ, X))
        self.lab("L_is_v2")
        e("s_cmp_eq_u32 s%d, 2" % sNM); e("s_cbranch_scc1 L_is_near")
        e("s_branch L_is_own")
        self.lab("L_is_k")
        e("s_cmp_eq_u32 s%d, 1" % sNM); e("s_cbranch_scc0 L_is_own")
        e("s_cmp_ge_u32 s%d, 48" % sJ); e("s_cbranch_scc1 L_is_knear")
        e("s_cmp_lt_u32 s%d, 10" % sJ); e("s_cbranch_scc1 L_is_kown")
        e("s_bitcmp1_b32 s%d, 1" % sJ); e("s_cbranch_scc1 L_is_knear")
        self.lab("L_is_kown")
        e("s_mov_b32 s%d, s%d" % (sCUR, sKB)); e("s_mov_b32 s%d, s%d" % (sCUR + 1, sKB + 1))
        self.lab("L_is_own")
        e("s_lshl_b32 s%d, s%d, 11" % (Y, X)); e("s_xor_b32 s%d, s%d, s%d" % (Y, Y, sWb)); e("s_and_b32 s%d, s%d, 8192" % (Y, Y))
        e("s_lshl_b32 s%d, s%d, 14" % (X, X)); e("s_add_u32 s%d, s%d, s%d" % (X, X, sRot)); e("s_and_b32 s%d, s%d, 0x%x" % (X, X, mask)); e("s_add_u32 s%d, s%d, s%d" % (sOf2, X, Y))
        e("s_branch L_is_go")
        self.lab("L_is_knear")
        e("s_mov_b32 s%d, s%d" % (sCUR, sKN)); e("s_mov_b32 s%d, s%d" % (sCUR + 1, sKN + 1))
        self.lab("L_is_near")
        e("s_lshl_b32 s%d, s%d, 14" % (X, X)); e("s_add_u32 s%d, s%d, s%d" % (X, X, sRotN)); e("s_and_b32 s%d, s%d, 0x%x" % (sOf2, X, mask))
        self.lab("L_is_go")
        e("s_add_u32 s%d, s%d, 1" % (sAc, sAc)); e("s_and_b32 s%d, s%d, %d" % (sAc, sAc, self.alN - 1))
        e("s_cmp_lt_u32 s%d, s%d" % (sAc, sAlloc))
        e("s_cbranch_scc1 L_is_alloc")
        for k in range(4):
            e("buffer_load_dwordx4 v%d, %s, s%d offen offset:%d nt lds" % (vo[k], sp(sCUR, 4), sOf2, k * 1024))
        e("s_branch L_is_done")
        self.lab("L_is_alloc")
        for k in range(4):
            e("buffer_load_dwordx4 v%d, %s, s%d offen offset:%d lds" % (vo[k], sp(sCUR, 4), sOf2, k * 1024))
        self.lab("L_is_done")
        e("s_add_u32 s%d, s%d, 1" % (sJ, sJ))
        e("s_cmp_lg_u32 s%d, s%d" % (sJ, sLen)); e("s_cbranch_scc0 L_is_next")
        e("s_setpc_b64 %s" % sp(sRet))
        self.lab("L_is_next")
        e("s_add_u32 s%d, s%d, 1" % (sSeg, sSeg))
        e("s_mov_b32 s%d, s%d" % (sJ, sZ)); e("s_mov_b32 s%d, s%d" % (sAlloc, sZ)); e("s_mov_b32 s%d, s%d" % (sNM, sZ))
        e("s_cmp_eq_u32 s%d, 5" % sSeg); e("s_cbranch_scc1 L_is_end")
        e("s_bitcmp1_b32 s%d, 0" % sSeg); e("s_cbranch_scc0 L_is_v")
        e("s_mov_b32 s%d, s%d" % (sIsV, sZ)); e("s_add_u32 s%d, s%d, 64" % (sLen, sZ))
        e("s_mov_b32 s%d, s%d" % (sCUR, sKB)); e("s_mov_b32 s%d, s%d" % (sCUR + 1, sKB + 1))
        e("s_cmp_eq_u32 s%d, 1" % sSeg)
        e("s_cselect_b32 s%d, %d, 0" % (sAlloc, self.alM)); e("s_cselect_b32 s%d, 0, 1" % sNM)
        e("s_add_u32 s%d, s%d, s%d" % (sAlloc, sAlloc, sZ)); e("s_add_u32 s%d, s%d, s%d" % (sNM, sNM, sZ))
        self.kpat()
        e("s_setpc_b64 %s" % sp(sRet))
        self.lab("L_is_v")
        e("s_add_u32 s%d, s%d, 1" % (sIsV, sZ)); e("s_add_u32 s%d, s%d, %d" % (sLen, sZ, 2 * NSTR_T)); e("s_add_u32 s%d, s%d, 10" % (sVadd, sZ))
        e("s_cmp_eq_u32 s%d, 2" % sSeg)
        e("s_cselect_b32 s%d, %d, 0" % (sAlloc, self.alM if self.alV else 0)); e("s_cselect_b32 s%d, 0, 2" % sNM)
        e("s_cselect_b32 s%d, s%d, s%d" % (sCUR, sVB, sVN)); e("s_cselect_b32 s%d, s%d, s%d" % (sCUR + 1, sVB + 1, sVN + 1))
        e("s_add_u32 s%d, s%d, s%d" % (sAlloc, sAlloc, sZ)); e("s_add_u32 s%d, s%d, s%d" % (sNM, sNM, sZ))
        self.vpat()
        e("s_setpc_b64 %s" % sp(sRet))
        self.lab("L_is_end")
        e("s_mov_b32 s%d, 0" % (sCUR + 2)); e("s_mov_b32 s%d, s%d" % (sIsV, sZ)); e("s_sub_u32 s%d, s%d, 1" % (sLen, sZ))
        e("s_setpc_b64 %s" % sp(sRet))

    def build(self):
        e = self.e
        self.prologue()
        self.dbg_span(2)
        self.stamp(0)
        self.weights_setup('start')
        if self.ilv:
            e("s_lshr_b32 s%d, s%d, 1" % (sWb, sWave)); e("s_lshl_b32 s%d, s%d, 13" % (sWb, sWb))
            e("v_mov_b32 v9, 0"); e("s_nop 0"); e("v_readfirstlane_b32 s%d, v9" % sZ); e("s_nop 3")
            e("s_mov_b32 s%d, s%d" % (sJ, sZ)); e("s_add_u32 s%d, s%d, %d" % (sLen, sZ, 2 * NRES_T)); e("s_add_u32 s%d, s%d, 1" % (sIsV, sZ))
            e("s_mov_b32 s%d, s%d" % (sNM, sZ)); e("s_sub_u32 s%d, s%d, 8" % (sVadd, sZ)); e("s_mov_b32 s%d, s%d" % (sSeg, sZ)); e("s_mov_b32 s%d, s%d" % (sAlloc, sZ))
            e("s_add_u32 s%d, s%d, s%d" % (sSlot, sSlot, sZ))
        elif self.swz:
            e("s_mov_b32 s%d, 0" % sN); e("s_lshr_b32 s%d, s%d, 1" % (sWb, sWave)); e("s_lshl_b32 s%d, s%d, 13" % (sWb, sWb)); e("s_mov_b32 s%d, 8192" % sSwM)
        e("v_min_u32 v9, 55, v%d" % vL); e("v_lshlrev_b32 v9, 4, v9")
        xr = 16 if int(self.o.get("gap2", 1)) else 32
        e("global_load_dwordx4 v[%d:%d], v9, %s" % (xr, xr + 3, sp(pX)))
        self.clear_mailboxes()
        for u in range(self.R):
            self.group(u)
        self.stamp(1)
        self.p1a()
        self.stamp(2)
        self.lab("L_pass")
        self.gather_q()
        self.dbg_span_pass(6)
        self.stamp(3)
        self.kphase()
        self.stamp(4)
        self.softmax()
        self.vphase()
        self.stamp(5)
        self.combine_publish()
        self.dbg_span_pass(4)
        self.stamp(6)
        g2 = int(self.o.get("gap2", 1))
        e("s_cmp_eq_u32 s%d, 1" % sRole); e("s_cbranch_scc1 L_roleO")
        e("s_cmp_eq_u32 s%d, 4" % sRole); e("s_cbranch_scc1 L_roleD")
        if self.gapw:
            lw = self.nl("Lgw")
            e("s_cmp_eq_u32 s%d, 0" % sPass); e("s_cbranch_scc0 %s" % lw)
            e("s_cmp_eq_u32 s%d, 0" % sRole); e("s_cbranch_scc1 %s" % lw)
            self.weights_setup('gap')
            for i in range(14):
                self.xop(i)
            self.lab(lw)
        e("s_cmp_eq_u32 s%d, 2" % sRole); e("s_cbranch_scc1 L_roleB")
        e("s_cmp_eq_u32 s%d, 3" % sRole); e("s_cbranch_scc1 L_roleC")
        self.topup()
        e("s_branch L_next")
        self.lab("L_roleO")
        self.stage_O2() if g2 else self.stage_S1()
        if self.p2n == 2:
            self.probe_near()
            self.topup(2)
        else:
            self.topup()
        e("s_branch L_next")
        self.lab("L_roleB")
        if g2:
            self.stage_B2(); self.topup()
        else:
            self.topup(); self.stage_B()
        e("s_branch L_next")
        self.lab("L_roleC")
        if g2:
            self.stage_C2(); self.topup(int(self.o.get("tpaceC", 0)))
        else:
            self.topup(); self.stage_C()
        e("s_branch L_next")
        self.lab("L_roleD")
        e("s_cmp_eq_u32 s%d, 0" % sWave); e("s_cbranch_scc0 L_D_rdone")
        e("s_cmp_lt_u32 s%d, 56" % sIdx); e("s_cbranch_scc0 L_D_rdone")
        self.stage_R2() if g2 else self.stage_R()
        self.lab("L_D_rdone")
        self.topup()
        e("s_cmp_eq_u32 s%d, 0" % sPass); e("s_cbranch_scc0 L_next")
        if g2:
            e("s_call_b64 %s, L_stageD_prep" % sp(sRet2))
            self.addr(sA, pWs, M5)
            self.poll_x2("M5")
            self.stamp(10)
            e("s_lshl_b32 s%d, s%d, 7" % (sT0, sIdx)); e("s_lshl_b32 s%d, s%d, 5" % (sT1, sWave))
            self.addr(sB, pWs, M6 + MR, [sT0, sT1])
            e("s_call_b64 %s, L_stageD_rest" % sp(sRet2))
            e("s_waitcnt vmcnt(1)")
        else:
            self.addr(sA, pWs, M5)
            self.gather_x(M5, "M5")
            self.stamp(10)
            self.addr(sA, pWs, M6 + MR)
            e("s_call_b64 %s, L_stageD" % sp(sRet2))
        self.lab("L_next")
        self.stamp(7)
        e("s_add_u32 s%d, s%d, 1" % (sPass, sPass))
        e("s_cmp_lt_u32 s%d, 2" % sPass)
        e("s_cbranch_scc1 L_pass")
        self.dump_stamps()
        self.dbg_span(3)
        e("s_waitcnt vmcnt(0)")
        self.lab("L_end")
        e("s_endpgm")
        if int(self.o.get("gap2", 1)):
            self.lab("L_stageD_prep")
            self.stageD2_prep()
            e("s_setpc_b64 %s" % sp(sRet2))
            self.lab("L_stageD_rest")
            self.stageD2_rest()
            e("s_setpc_b64 %s" % sp(sRet2))
        else:
            self.lab("L_stageD")
            self.stage_D(None)
            e("s_setpc_b64 %s" % sp(sRet2))
        if self.ilv:
            self.emit_issue_sub()
        else:
            self.emit_switch()
        self.lab("L_endcode")
        e("s_endpgm")
        return self.a.text()


HEADER = """; Persistent fused decode kernel: [attn -> mlp] x2, V tiles kept resident in registers across the two attention passes.
; @launch grid=(256,1,1) block=(256,1,1) lds=%d
.amdgcn_target "amdgcn-amd-amdhsa--gfx950"
.text
.globl %s
.p2align 8
.type %s,@function
%s:
"""
FOOTER = """.section .rodata,"a"
.p2align 6
.amdhsa_kernel %s
  .amdhsa_next_free_vgpr 512
  .amdhsa_next_free_sgpr 102
  .amdhsa_accum_offset 256
  .amdhsa_group_segment_fixed_size 0
  .amdhsa_kernarg_size 96
  .amdhsa_user_sgpr_count 2
  .amdhsa_user_sgpr_kernarg_segment_ptr 1
  .amdhsa_system_sgpr_workgroup_id_x 1
  .amdhsa_float_denorm_mode_32 3
.end_amdhsa_kernel
"""


def generate(opt=None):
    opt = opt or {}
    g = Gen(opt)
    body = g.build()
    return HEADER % (LDS_TOTAL, KNAME, KNAME, KNAME) + body + FOOTER % KNAME


if __name__ == "__main__":
    out = sys.argv[1] if len(sys.argv) > 1 else "gen/kernel.s"
    opt = {}
    for kv in sys.argv[2:]:
        k, v = kv.split("=")
        opt[k] = v
    open(out, "w").write(generate(opt))
    print("wrote", out)
```

```python
import sys, os
sys.path.insert(0, os.path.dirname(os.path.abspath(__file__)))
from asmlib import Asm

KNAME = "interleave_layers__mha_block_cached__glu_gated_swiglu__decode_kernel"

L_Q = 0
L_Z = 2176
L_SM = 2688
L_RED = 2752
L_ST = 2048
L_P = 3072
L_W = 7168
LDS_TOTAL = 163840
RING_NONE = 7168
RING_ROLE = 65536
O_ROW = 912
B_IMG3 = 28704
C_WAVE = 14336

M1 = 0x0; M1_R = 0x60000; M1_SLOT = 384
M2 = 0x100000; M2_R = 0x20000; M2_SLOT = 2048; M3 = 0xC4000; M4 = 0xC8000; M5 = 0xCC000; M6 = 0xCE000; MR = 0x2000
DBG = 0x200000

NRES_PAIRS = 7
NRES_T = 2 * NRES_PAIRS
NSTR_T = 32 - NRES_T
STRIDE = 16384
SPIN_LIMIT = 1 << 18
C_EXP = 0x3DB8AA3B
LOG2E = 0x3FB8AA3B

sW, sWave = 2, 3
pX, pK, pV, pWq, pWo, pW1, pW3, pW2, pOut, pDbg, pWs = 8, 10, 12, 14, 16, 20, 22, 24, 26, 28, 30
sKB, sVB = 32, 34
sCUR = 36
sSlot, sRs, sRe, sOff, sLeft, sSeg, sCs, sPass = 40, 41, 42, 43, 44, 45, 46, 47
sRole, sIdx, sH, sC, sNS, sVec, sWl, sSpin = 48, 49, 50, 51, 52, 53, 54, 55
sM = [56, 58, 60, 62]
sMd, sRet, sEx = 64, 66, 68
sT0, sT1, sT2, sT3, sT4, sT5 = 70, 71, 72, 73, 74, 75
sA = 76
sB = 78
sT15 = 80
sRho = 19
sWS = 84
sRet2 = 88
sWlds, sWlstep, sWoff, sWoff0, sWstep = 94, 95, 96, 97, 98
sAlloc = 99
sQok = 100
sJ, sLen, sIsV, sNM, sVadd = 43, 44, 16, 14, 54
sZ = 81
sN, sWb, sSwM, sOf2 = 16, 17, 14, 15
sKN, sVN, sRotN, sXch, sTm0, sTm1 = 10, 12, 0, 1, 16, 17
M7 = 0x300000
M8 = 0xD2000
sAc = 93
sRot = 101
sWo2 = 4
sWlds0, sWwrap = 6, 7
sWex = 82

vL = 0
vo = [1, 2, 3, 4]
vPh, vAd, vPa = 5, 6, 7
vSC = 8
vACC = 16
vLsum = 8
vW = 12


def sp(r, n=2):
    return "s[%d:%d]" % (r, r + n - 1)


def vr(r, n):
    return "v[%d:%d]" % (r, r + n - 1) if n > 1 else "v%d" % r


def res_reg(m, t, hh=None):
    base = m * 64 + 4 * t
    if m < 3:
        b = 64 + base; p = "v"
    else:
        b = base - 192; p = "a"
    if hh is None:
        return "%s[%d:%d]" % (p, b, b + 3)
    return "%s[%d:%d]" % (p, b + 2 * hh, b + 2 * hh + 1)


def res_T(k):
    return k if k < 4 else 2 * k - 4


def str_T(i):
    return 5 + 2 * i if i < 10 else i + 14


class LQ:
    def __init__(self, g):
        self.g = g; self.q = []
    def issue(self, instr, tag):
        self.g.e(instr); self.q.append(tag)
    def wait(self, tags):
        idx = [i for i, t in enumerate(self.q) if t in tags]
        if not idx:
            return
        last = max(idx)
        n = len(self.q) - 1 - last
        self.g.e("s_waitcnt lgkmcnt(%d)" % min(n, 15))
        self.q = self.q[last + 1:] if n <= 15 else self.q[len(self.q) - 15:]
    def drain(self):
        if self.q:
            self.g.e("s_waitcnt lgkmcnt(0)")
        self.q = []


class Gen:
    def __init__(self, opt):
        self.o = opt
        self.near = int(opt.get("near", 0))
        self.stride = 32768 if self.near else 16384
        self.stag = int(opt.get("stag", 0))
        self.l2pf = int(opt.get("l2pf", 0))
        self.l2pol = opt.get("l2pol", " nt")
        self.wpf = int(opt.get("wpf", 1))
        self.gapw = int(opt.get("gapw", 1))
        self.R = int(opt.get("R", 2))
        self.onest = int(opt.get("onest", 1))
        self.q1w = int(opt.get("q1w", 0))
        self.ilv = int(opt.get("ilv", 0))
        self.swz = int(opt.get("swz", 0)) or int(opt.get("ilv", 0))
        self.klin = int(opt.get("klin", 0))
        self.p2n = int(opt.get("p2n", 0))
        self.alN = int(opt.get("alN", 0))
        self.alM = int(opt.get("alM", 0))
        self.alV = int(opt.get("alV", 1))
        self.kalloc = int(opt.get("kalloc", 0))
        self.a = Asm()
        self.e = self.a.e

    def lab(self, n):
        self.a.label(n)

    def nl(self, b="L"):
        return self.a.newlabel(b)

    def nop(self, n):
        if n > 0:
            self.e("s_nop %d" % (n - 1))

    def bf16r(self, dst, src, tmp):
        self.e("v_cvt_pk_bf16_f32 v%d, v%d, v%d" % (tmp, src, src))
        self.e("v_and_b32 v%d, 0xffff0000, v%d" % (dst, tmp))

    def allreduce16(self, x, op):
        e = self.e
        for n in (8, 4, 2, 1):
            self.nop(2)
            e("%s_dpp v%d, v%d, v%d row_ror:%d row_mask:0xf bank_mask:0xf" % (op, x, x, x, n))

    def xrows(self, x, tmp, op):
        e = self.e
        e("v_mov_b32 v%d, v%d" % (tmp, x)); self.nop(2)
        e("v_permlane16_swap_b32 v%d, v%d" % (x, tmp)); self.nop(1)
        e("%s v%d, v%d, v%d" % (op, x, x, tmp))
        e("v_mov_b32 v%d, v%d" % (tmp, x)); self.nop(2)
        e("v_permlane32_swap_b32 v%d, v%d" % (x, tmp)); self.nop(1)
        e("%s v%d, v%d, v%d" % (op, x, x, tmp))

    def allreduce64(self, x, tmp, op):
        self.allreduce16(x, op)
        self.xrows(x, tmp, op)

    def poll(self, loads, regs, tmp, name="P"):
        e = self.e
        L = self.nl(name); D = self.nl(name + "d")
        e("s_mov_b32 s%d, 0" % sSpin)
        self.lab(L)
        for ld in loads:
            e(ld)
        e("s_waitcnt vmcnt(0)")
        rr = list(regs)
        if len(rr) == 1:
            t = rr[0]
        else:
            first = True
            while rr:
                if first:
                    if len(rr) >= 3:
                        e("v_max3_u32 v%d, v%d, v%d, v%d" % (tmp, rr[0], rr[1], rr[2])); rr = rr[3:]
                    else:
                        e("v_max_u32 v%d, v%d, v%d" % (tmp, rr[0], rr[1])); rr = rr[2:]
                    first = False
                elif len(rr) >= 2:
                    e("v_max3_u32 v%d, v%d, v%d, v%d" % (tmp, tmp, rr[0], rr[1])); rr = rr[2:]
                else:
                    e("v_max_u32 v%d, v%d, v%d" % (tmp, tmp, rr[0])); rr = rr[1:]
            t = tmp
        e("v_cmp_eq_u32 vcc, -1, v%d" % t)
        e("s_cbranch_vccz %s" % D)
        e("s_add_u32 s%d, s%d, 1" % (sSpin, sSpin))
        e("s_cmp_lt_u32 s%d, %d" % (sSpin, SPIN_LIMIT))
        e("s_cbranch_scc1 %s" % L)
        self.lab(D)

    def addr(self, dst, base, off_imm=0, off_sregs=()):
        e = self.e
        if off_imm:
            e("s_add_u32 s%d, s%d, 0x%x" % (dst, base, off_imm))
        else:
            e("s_add_u32 s%d, s%d, 0" % (dst, base))
        e("s_addc_u32 s%d, s%d, 0" % (dst + 1, base + 1))
        for r in off_sregs:
            e("s_add_u32 s%d, s%d, s%d" % (dst, dst, r))
            e("s_addc_u32 s%d, s%d, 0" % (dst + 1, dst + 1))

    def stamp(self, idx):
        if not self.o.get("stamps"):
            return
        e = self.e
        sk = self.nl("St")
        e("s_cmp_eq_u32 s%d, 0" % sWave); e("s_cbranch_scc0 %s" % sk)
        e("s_memrealtime s[90:91]")
        e("s_waitcnt lgkmcnt(0)")
        e("s_lshl_b32 s92, s%d, 6" % sPass); e("s_add_u32 s92, s92, %d" % (L_ST + idx * 4))
        e("v_mov_b32 v62, s92"); e("v_mov_b32 v63, s90")
        e("ds_write_b32 v62, v63")
        e("s_waitcnt lgkmcnt(0)")
        self.lab(sk)

    def dbg_span(self, first):
        if not self.o.get("span"):
            return
        e = self.e
        sk = self.nl("Sp")
        e("s_cmp_eq_u32 s%d, 0" % sWave); e("s_cbranch_scc0 %s" % sk)
        e("s_memrealtime s[90:91]")
        e("s_waitcnt lgkmcnt(0)")
        if first == 2:
            e("s_not_b32 s90, s90")
        e("v_mov_b32 v62, %d" % (4 * first)); e("v_mov_b32 v63, s90")
        e("s_mov_b64 exec, 1")
        e("global_atomic_umax v62, v63, %s" % sp(pDbg))
        e("s_mov_b64 exec, -1")
        self.lab(sk)

    def dbg_span_pass(self, base):
        if not self.o.get("span"):
            return
        e = self.e
        sk = self.nl("Sp")
        e("s_cmp_eq_u32 s%d, 0" % sWave); e("s_cbranch_scc0 %s" % sk)
        e("s_memrealtime s[90:91]")
        e("s_waitcnt lgkmcnt(0)")
        e("s_lshl_b32 s92, s%d, 2" % sPass); e("s_add_u32 s92, s92, %d" % (4 * base))
        e("v_mov_b32 v62, s92"); e("v_mov_b32 v63, s90")
        e("s_mov_b64 exec, 1")
        e("global_atomic_umax v62, v63, %s" % sp(pDbg))
        e("s_mov_b64 exec, -1")
        e("s_waitcnt vmcnt(0)")
        self.lab(sk)

    def dump_stamps(self):
        if not self.o.get("stamps"):
            return
        e = self.e
        sk = self.nl("Sd")
        e("s_waitcnt vmcnt(0)")
        e("s_cmp_eq_u32 s%d, 0" % sWave); e("s_cbranch_scc0 %s" % sk)
        e("v_and_b32 v8, 31, v%d" % vL); e("v_lshlrev_b32 v8, 2, v8")
        e("ds_read_b32 v9, v8 offset:%d" % L_ST)
        e("s_lshl_b32 s%d, s2, 7" % sT0)
        self.addr(sA, pWs, DBG, [sT0])
        e("s_waitcnt lgkmcnt(0)")
        e("global_store_dword v8, v9, %s" % sp(sA))
        self.lab(sk)

    def issue(self):
        e = self.e
        if self.ilv:
            e("s_call_b64 %s, L_issue" % sp(sRet))
            return
        pol = self.o.get("pol", " nt")
        e("s_mov_b32 m0, s%d" % sSlot)
        e("s_add_u32 s%d, s%d, 4096" % (sSlot, sSlot))
        so = sOff
        if self.swz:
            so = sOf2
            e("s_lshl_b32 s%d, s%d, 12" % (sOf2, sN)); e("s_xor_b32 s%d, s%d, s%d" % (sOf2, sOf2, sWb)); e("s_and_b32 s%d, s%d, s%d" % (sOf2, sOf2, sSwM))
            e("s_add_u32 s%d, s%d, s%d" % (sOf2, sOf2, sOff)); e("s_add_u32 s%d, s%d, 1" % (sN, sN))
        if self.alN:
            la = self.nl("Ia"); ld = self.nl("Id")
            e("s_add_u32 s%d, s%d, 1" % (sAc, sAc)); e("s_and_b32 s%d, s%d, %d" % (sAc, sAc, self.alN - 1))
            e("s_cmp_lt_u32 s%d, s%d" % (sAc, sAlloc))
            e("s_cbranch_scc1 %s" % la)
        if self.kalloc:
            la = self.nl("Ia"); ld = self.nl("Id")
            e("s_cmp_gt_u32 s%d, 0" % sAlloc)
            e("s_cbranch_scc1 %s" % la)
        for s in range(4):
            e("buffer_load_dwordx4 v%d, %s, s%d offen offset:%d%s lds" % (vo[s], sp(sCUR, 4), so, s * 1024, pol))
        if self.kalloc or self.alN:
            e("s_branch %s" % ld)
            self.lab(la)
            for s in range(4):
                e("buffer_load_dwordx4 v%d, %s, s%d offen offset:%d lds" % (vo[s], sp(sCUR, 4), so, s * 1024))
            if self.kalloc:
                e("s_sub_u32 s%d, s%d, 1" % (sAlloc, sAlloc))
            self.lab(ld)
        e("s_cmp_eq_u32 s%d, s%d" % (sSlot, sRe))
        e("s_cselect_b32 s%d, s%d, s%d" % (sSlot, sRs, sSlot))
        e("s_add_u32 s%d, s%d, %d" % (sOff, sOff, self.stride))
        if self.stag:
            e("s_and_b32 s%d, s%d, 0x%x" % (sOff, sOff, 64 * self.stride - 1))
        e("s_sub_u32 s%d, s%d, 1" % (sLeft, sLeft))
        e("s_cmp_lg_u32 s%d, 0" % sLeft)
        sk = self.nl("Isk")
        e("s_cbranch_scc1 %s" % sk)
        e("s_call_b64 %s, L_switch" % sp(sRet))
        self.lab(sk)

    def kpat(self):
        e = self.e
        if self.klin:
            e("v_lshrrev_b32 v%d, 5, v%d" % (vo[1], vL))
            e("v_and_b32 v%d, 31, v%d" % (vo[0], vL)); e("v_xor_b32 v%d, v%d, v%d" % (vo[0], vo[0], vo[1]))
            e("v_lshlrev_b32 v%d, 4, v%d" % (vo[0], vo[0])); e("v_lshl_add_u32 v%d, v%d, 9, v%d" % (vo[0], vo[1], vo[0]))
            e("v_add_u32 v%d, 3072, v%d" % (vo[0], vo[0]))
            for i in range(1, 4):
                e("v_xor_b32 v%d, %d, v%d" % (vo[i], (2 * i) << 4, vo[0]))
            return
        e("v_and_b32 v%d, 7, v%d" % (vo[0], vL))
        e("v_lshlrev_b32 v%d, 9, v%d" % (vo[0], vo[0]))
        e("v_lshrrev_b32 v%d, 3, v%d" % (vo[1], vL))
        e("v_lshl_add_u32 v%d, v%d, 4, v%d" % (vo[0], vo[1], vo[0]))
        self.pat_fin()

    def vpat(self):
        e = self.e
        e("v_bfe_u32 v%d, v%d, 1, 3" % (vo[0], vL))
        e("v_lshlrev_b32 v%d, 9, v%d" % (vo[0], vo[0]))
        e("v_lshrrev_b32 v%d, 4, v%d" % (vo[1], vL))
        e("v_lshl_add_u32 v%d, v%d, 5, v%d" % (vo[0], vo[1], vo[0]))
        e("v_and_b32 v%d, 1, v%d" % (vo[1], vL))
        e("v_lshl_add_u32 v%d, v%d, 4, v%d" % (vo[0], vo[1], vo[0]))
        self.pat_fin()

    def pat_fin(self):
        e = self.e
        e("v_add_u32 v%d, 3072, v%d" % (vo[0], vo[0]))
        for s in range(1, 4):
            e("v_subrev_u32 v%d, %d, v%d" % (vo[s], 896 * s, vo[0]))

    def emit_switch(self):
        if self.p2n:
            return self.emit_switch_p2n()
        e = self.e
        self.lab("L_switch")
        e("s_add_u32 s%d, s%d, 1" % (sSeg, sSeg))
        e("s_cmp_eq_u32 s%d, 5" % sSeg)
        e("s_cbranch_scc1 L_sw_end")
        e("s_bitcmp1_b32 s%d, 0" % sSeg)
        e("s_cbranch_scc0 L_sw_v")
        e("s_mov_b32 s%d, s%d" % (sCUR, sKB)); e("s_mov_b32 s%d, s%d" % (sCUR + 1, sKB + 1))
        e("s_mov_b32 s%d, s%d" % (sOff, sRot)); e("s_mov_b32 s%d, 64" % sLeft)
        if self.kalloc:
            e("s_cmp_eq_u32 s%d, 1" % sSeg)
            e("s_cselect_b32 s%d, %d, 0" % (sAlloc, self.kalloc))
        if self.alN:
            e("s_cmp_eq_u32 s%d, 1" % sSeg)
            e("s_cselect_b32 s%d, %d, 0" % (sAlloc, self.alM))
        self.kpat()
        e("s_setpc_b64 %s" % sp(sRet))
        self.lab("L_sw_v")
        e("s_mov_b32 s%d, s%d" % (sCUR, sVB)); e("s_mov_b32 s%d, s%d" % (sCUR + 1, sVB + 1))
        e("s_add_u32 s%d, s%d, %d" % (sOff, sRot, 2 * NRES_T * self.stride)); e("s_and_b32 s%d, s%d, 0x%x" % (sOff, sOff, 64 * self.stride - 1))
        e("s_mov_b32 s%d, %d" % (sLeft, 2 * NSTR_T))
        if self.alN:
            e("s_cmp_eq_u32 s%d, 2" % sSeg)
            e("s_cselect_b32 s%d, %d, 0" % (sAlloc, self.alM if self.alV else 0))
        self.vpat()
        e("s_setpc_b64 %s" % sp(sRet))
        self.lab("L_sw_end")
        e("s_mov_b32 s%d, 0" % (sCUR + 2))
        e("s_mov_b32 s%d, 0" % sOff); e("s_mov_b32 s%d, 0x7fffffff" % sLeft)
        e("s_setpc_b64 %s" % sp(sRet))

    def emit_switch_p2n(self):
        e = self.e
        mask = 64 * self.stride - 1
        self.lab("L_switch")
        e("s_add_u32 s%d, s%d, 1" % (sSeg, sSeg))
        e("s_mov_b32 s%d, 0" % sAlloc)
        e("s_cmp_eq_u32 s%d, 1" % sSeg); e("s_cbranch_scc1 L_sw_1")
        e("s_cmp_eq_u32 s%d, 2" % sSeg); e("s_cbranch_scc1 L_sw_2")
        e("s_cmp_eq_u32 s%d, 3" % sSeg); e("s_cbranch_scc1 L_sw_3")
        e("s_cmp_eq_u32 s%d, 4" % sSeg); e("s_cbranch_scc1 L_sw_4")
        e("s_cmp_eq_u32 s%d, 5" % sSeg); e("s_cbranch_scc1 L_sw_5")
        e("s_mov_b32 s%d, 0" % (sCUR + 2))
        e("s_mov_b32 s%d, 0" % sOff); e("s_mov_b32 s%d, 0x7fffffff" % sLeft)
        e("s_setpc_b64 %s" % sp(sRet))
        self.lab("L_sw_1")
        e("s_mov_b32 s%d, %d" % (sAlloc, self.alM))
        e("s_mov_b32 s%d, 64" % sLeft)
        e("s_branch L_sw_k")
        self.lab("L_sw_3")
        if self.o.get("dryK2"):
            e("s_mov_b32 s%d, 0" % (sCUR + 2))
        e("s_mov_b32 s%d, %d" % (sLeft, 2 * NRES_T))
        self.lab("L_sw_k")
        e("s_mov_b32 s%d, s%d" % (sCUR, sKB)); e("s_mov_b32 s%d, s%d" % (sCUR + 1, sKB + 1))
        e("s_mov_b32 s%d, s%d" % (sOff, sRot))
        self.kpat()
        e("s_setpc_b64 %s" % sp(sRet))
        self.lab("L_sw_4")
        if self.swz:
            e("s_mov_b32 s%d, 0" % sSwM)
        e("s_mov_b32 s%d, s%d" % (sCUR, sKN)); e("s_mov_b32 s%d, s%d" % (sCUR + 1, sKN + 1))
        e("s_add_u32 s%d, s%d, %d" % (sOff, sRotN, 2 * NRES_T * self.stride)); e("s_and_b32 s%d, s%d, 0x%x" % (sOff, sOff, mask))
        e("s_mov_b32 s%d, %d" % (sLeft, 2 * NSTR_T))
        e("s_setpc_b64 %s" % sp(sRet))
        self.lab("L_sw_2")
        e("s_mov_b32 s%d, %d" % (sAlloc, self.alM if self.alV else 0))
        e("s_mov_b32 s%d, s%d" % (sCUR, sVB)); e("s_mov_b32 s%d, s%d" % (sCUR + 1, sVB + 1))
        e("s_add_u32 s%d, s%d, %d" % (sOff, sRot, 2 * NRES_T * self.stride))
        e("s_branch L_sw_v")
        self.lab("L_sw_5")
        if self.o.get("dryK2"):
            e("s_mov_b32 s%d, %d" % (sCUR + 2, 0 if self.o.get("dryV2") else 3072 + 63 * self.stride + 4096 + 8192))
        e("s_mov_b32 s%d, s%d" % (sCUR, sVN)); e("s_mov_b32 s%d, s%d" % (sCUR + 1, sVN + 1))
        e("s_add_u32 s%d, s%d, %d" % (sOff, sRotN, 2 * NRES_T * self.stride))
        self.lab("L_sw_v")
        e("s_and_b32 s%d, s%d, 0x%x" % (sOff, sOff, mask))
        e("s_mov_b32 s%d, %d" % (sLeft, 2 * NSTR_T))
        self.vpat()
        e("s_setpc_b64 %s" % sp(sRet))

    def now(self, dst, minus=None):
        e = self.e
        e("s_memrealtime s[90:91]"); e("s_waitcnt lgkmcnt(0)")
        if minus is None:
            e("s_mov_b32 s%d, s90" % dst)
        else:
            e("s_sub_u32 s%d, s90, s%d" % (dst, minus))

    def adv_cs(self):
        e = self.e
        e("s_add_u32 s%d, s%d, 8192" % (sCs, sCs))
        e("s_cmp_eq_u32 s%d, s%d" % (sCs, sRe))
        e("s_cselect_b32 s%d, s%d, s%d" % (sCs, sRs, sCs))

    def step_issue(self):
        w = 4 * (self.R - 1)
        self.e("s_waitcnt vmcnt(%d)" % w)
        self.issue()
        self.e("s_waitcnt vmcnt(%d)" % w)
        self.issue()

    def gwait(self, u):
        lo = max(0, u - self.R + 1)
        cnt = sum(4 + (1 if g < self.NX else 0) for g in range(lo, u))
        self.e("s_waitcnt vmcnt(%d)" % cnt)

    NX = 16

    def xop(self, i):
        e = self.e
        if i == 7:
            e("s_cmp_eq_u32 s%d, 2" % sRole)
            e("s_cselect_b32 s%d, s%d, s%d" % (sWS, sWo2, sWS))
            e("s_cselect_b32 s%d, s%d, s%d" % (sWS + 1, sWo2 + 1, sWS + 1))
            e("s_cselect_b32 s%d, s%d, s%d" % (sWoff, sWoff0, sWoff))
            e("s_cselect_b32 s%d, s%d, s%d" % (sWlds, sWlds0, sWlds))
        if 0 < i < 14:
            e("s_cmp_eq_u32 s%d, %d" % (sWwrap, i))
            e("s_cselect_b32 s%d, s%d, s%d" % (sWoff, sWoff0, sWoff))
            e("s_cselect_b32 s%d, s%d, s%d" % (sWlds, sWlds0, sWlds))
        if i == 14:
            e("s_cmp_eq_u32 s%d, 1" % sRole)
            e("s_cselect_b32 s%d, s%d, 0" % (sWS + 2, sWS + 2))
            e("s_cselect_b32 s%d, s%d, s%d" % (sWlds, sWlds, sVec))
            e("s_cselect_b32 s%d, s%d, 0" % (sWlstep, sWlstep))
        e("s_mov_b32 m0, s%d" % sWlds); e("s_add_u32 s%d, s%d, s%d" % (sWlds, sWlds, sWlstep))
        e("s_mov_b64 exec, %s" % sp(sWex))
        e("buffer_load_dwordx4 v%d, %s, s%d offen lds" % (vW, sp(sWS, 4), sWoff))
        e("s_mov_b64 exec, -1")
        e("s_add_u32 s%d, s%d, s%d" % (sWoff, sWoff, sWstep))

    def group(self, u):
        if u >= self.R:
            self.gwait(u)
        self.issue()
        if u < self.NX:
            self.xop(u)

    def prologue(self):
        e = self.e
        e("s_cmp_ge_u32 s2, 256")
        e("s_cbranch_scc1 L_end")
        e("s_load_dwordx16 s[8:23], s[0:1], 0")
        e("s_load_dwordx8 s[24:31], s[0:1], 64")
        e("v_lshrrev_b32 v1, 6, v0")
        e("v_and_b32 v%d, 63, v0" % vL)
        e("s_nop 0")
        e("v_readfirstlane_b32 s%d, v1" % sWave)
        x, r = sT0, sT1
        e("s_and_b32 s%d, s2, 7" % x)
        e("s_lshr_b32 s%d, s2, 3" % r)
        if int(self.o.get("rmap", 0)):
            e("s_mov_b32 s%d, 0" % sRole); e("s_mov_b32 s%d, 0" % sIdx)
            e("s_lshr_b32 s%d, s%d, 1" % (sT2, x))
            e("s_bitcmp1_b32 s%d, 0" % x); e("s_cbranch_scc1 L_rodd")
            e("s_and_b32 s%d, s%d, 15" % (sIdx, r)); e("s_lshl_b32 s%d, s%d, 2" % (sIdx, sIdx)); e("s_add_u32 s%d, s%d, s%d" % (sIdx, sIdx, sT2))
            e("s_cmp_lt_u32 s%d, 16" % r); e("s_cselect_b32 s%d, 1, 4" % sRole)
            e("s_branch L_rdone")
            self.lab("L_rodd")
            e("s_cmp_lt_u32 s%d, 14" % r); e("s_cbranch_scc0 L_rodd2")
            e("s_mov_b32 s%d, 2" % sRole); e("s_mul_i32 s%d, s%d, 14" % (sIdx, sT2)); e("s_add_u32 s%d, s%d, s%d" % (sIdx, sIdx, r))
            e("s_branch L_rdone")
            self.lab("L_rodd2")
            e("s_cmp_lt_u32 s%d, 22" % r); e("s_cbranch_scc0 L_rdone")
            e("s_sub_u32 s%d, s%d, 14" % (sT3, r)); e("s_lshr_b32 s%d, s%d, 2" % (sT4, sT3)); e("s_lshl_b32 s%d, s%d, 2" % (sT4, sT4)); e("s_add_u32 s%d, s%d, s%d" % (sT4, sT4, sT2))
            e("s_cmp_lt_u32 s%d, 7" % sT4); e("s_cbranch_scc0 L_rdone")
            e("s_mov_b32 s%d, 3" % sRole); e("s_and_b32 s%d, s%d, 3" % (sT3, sT3)); e("s_lshl_b32 s%d, s%d, 2" % (sIdx, sT4)); e("s_add_u32 s%d, s%d, s%d" % (sIdx, sIdx, sT3))
        else:
            e("s_mov_b32 s%d, 0" % sRole); e("s_mov_b32 s%d, 0" % sIdx)
            e("s_cmp_lt_u32 s%d, 8" % r); e("s_cbranch_scc0 L_r1")
            e("s_mov_b32 s%d, 1" % sRole); e("s_lshl_b32 s%d, s%d, 3" % (sIdx, r)); e("s_add_u32 s%d, s%d, s%d" % (sIdx, sIdx, x))
            e("s_branch L_rdone")
            self.lab("L_r1")
            e("s_cmp_lt_u32 s%d, 16" % r); e("s_cbranch_scc0 L_r2")
            e("s_sub_u32 s%d, s%d, 8" % (sT2, r))
            e("s_lshr_b32 s%d, s%d, 1" % (sT3, sT2)); e("s_lshl_b32 s%d, s%d, 3" % (sT3, sT3)); e("s_add_u32 s%d, s%d, s%d" % (sT3, sT3, x))
            e("s_cmp_lt_u32 s%d, 28" % sT3); e("s_cbranch_scc0 L_rdone")
            e("s_mov_b32 s%d, 2" % sRole); e("s_and_b32 s%d, s%d, 1" % (sT2, sT2)); e("s_lshl_b32 s%d, s%d, 1" % (sIdx, sT3))
            e("s_add_u32 s%d, s%d, s%d" % (sIdx, sIdx, sT2))
            e("s_branch L_rdone")
            self.lab("L_r2")
            e("s_cmp_lt_u32 s%d, 20" % r); e("s_cbranch_scc0 L_r3")
            e("s_cmp_lt_u32 s%d, 7" % x); e("s_cbranch_scc0 L_rdone")
            e("s_mov_b32 s%d, 3" % sRole); e("s_lshl_b32 s%d, s%d, 2" % (sIdx, x)); e("s_add_u32 s%d, s%d, s%d" % (sIdx, sIdx, r))
            e("s_sub_u32 s%d, s%d, 16" % (sIdx, sIdx))
            e("s_branch L_rdone")
            self.lab("L_r3")
            e("s_cmp_lt_u32 s%d, 28" % r); e("s_cbranch_scc0 L_rdone")
            e("s_mov_b32 s%d, 4" % sRole); e("s_sub_u32 s%d, s%d, 20" % (sIdx, r)); e("s_lshl_b32 s%d, s%d, 3" % (sIdx, sIdx))
            e("s_add_u32 s%d, s%d, s%d" % (sIdx, sIdx, x))
        self.lab("L_rdone")
        e("s_lshr_b32 s%d, s2, 4" % sH); e("s_and_b32 s%d, s2, 15" % sC)
        e("s_mov_b32 s%d, %d" % (sT0, RING_ROLE)); e("s_mov_b32 s%d, 6" % sNS)
        e("s_cmp_eq_u32 s%d, 0" % sRole)
        e("s_cselect_b32 s%d, %d, s%d" % (sT0, RING_NONE, sT0)); e("s_cselect_b32 s%d, 8, s%d" % (sNS, sNS))
        e("s_lshl_b32 s%d, s%d, 12" % (sT1, sNS))
        e("s_mul_i32 s%d, s%d, s%d" % (sT2, sT1, sWave))
        e("s_add_u32 s%d, s%d, s%d" % (sRs, sT0, sT2))
        e("s_add_u32 s%d, s%d, s%d" % (sRe, sRs, sT1))
        e("s_mov_b32 s%d, s%d" % (sSlot, sRs)); e("s_mov_b32 s%d, s%d" % (sCs, sRs))
        e("s_lshl_b32 s%d, s%d, 10" % (sT2, sWave)); e("s_add_u32 s%d, s%d, %d" % (sVec, sT2, L_P))
        e("s_mov_b32 s%d, 0x00010001" % sM[0]); e("s_mov_b32 s%d, 0x00010001" % (sM[0] + 1))
        for u in range(1, 4):
            e("s_lshl_b64 %s, %s, %d" % (sp(sM[u]), sp(sM[0]), u))
        e("s_mov_b32 s%d, 0" % sPass)
        e("s_waitcnt lgkmcnt(0)")
        if not self.near:
            e("s_lshl_b32 s%d, s%d, 4" % (sT0, sH)); e("s_add_u32 s%d, s%d, s%d" % (sT0, sT0, sC))
            e("s_lshl_b32 s%d, s%d, 20" % (sT0, sT0))
            if self.swz:
                e("s_and_b32 s%d, s%d, 1" % (sT1, sWave)); e("s_lshl_b32 s%d, s%d, 12" % (sT1, sT1))
            else:
                e("s_lshl_b32 s%d, s%d, 12" % (sT1, sWave))
            e("s_add_u32 s%d, s%d, s%d" % (sT0, sT0, sT1))
        else:
            e("s_lshl_b32 s%d, s%d, 24" % (sT0, sH))
            e("s_lshr_b32 s%d, s2, 3" % sT1); e("s_and_b32 s%d, s%d, 1" % (sT1, sT1)); e("s_lshl_b32 s%d, s%d, 2" % (sT1, sT1))
            e("s_and_b32 s%d, s2, 3" % sT2); e("s_add_u32 s%d, s%d, s%d" % (sT1, sT1, sT2)); e("s_lshl_b32 s%d, s%d, 21" % (sT1, sT1))
            e("s_add_u32 s%d, s%d, s%d" % (sT0, sT0, sT1))
            e("s_lshr_b32 s%d, s2, 2" % sT1); e("s_xor_b32 s%d, s%d, s2" % (sT1, sT1))
            e("s_xor_b32 s%d, s%d, %d" % (sT1, sT1, int(self.o.get("cpol", 0)))); e("s_and_b32 s%d, s%d, 1" % (sT1, sT1))
            e("s_lshl_b32 s%d, s%d, 13" % (sT1, sT1)); e("s_add_u32 s%d, s%d, s%d" % (sT0, sT0, sT1))
            e("s_and_b32 s%d, s%d, 1" % (sT1, sWave)); e("s_lshl_b32 s%d, s%d, 12" % (sT1, sT1)); e("s_add_u32 s%d, s%d, s%d" % (sT0, sT0, sT1))
            e("s_lshr_b32 s%d, s%d, 1" % (sT1, sWave)); e("s_lshl_b32 s%d, s%d, 14" % (sT1, sT1)); e("s_add_u32 s%d, s%d, s%d" % (sT0, sT0, sT1))
        e("s_mov_b32 s%d, 0" % sAlloc); e("s_lshr_b32 s%d, s2, 3" % sAc); e("s_and_b32 s%d, s%d, 1" % (sT1, sWave)); e("s_add_u32 s%d, s%d, s%d" % (sAc, sAc, sT1))
        for (dst, src) in ((sKB, pK), (sVB, pV)):
            e("s_add_u32 s%d, s%d, s%d" % (dst, src, sT0)); e("s_addc_u32 s%d, s%d, 0" % (dst + 1, src + 1))
            e("s_sub_u32 s%d, s%d, 3072" % (dst, dst)); e("s_subb_u32 s%d, s%d, 0" % (dst + 1, dst + 1))
            e("s_and_b32 s%d, s%d, 0xffff" % (dst + 1, dst + 1))
        e("s_mov_b32 s%d, s%d" % (sCUR, sVB)); e("s_mov_b32 s%d, s%d" % (sCUR + 1, sVB + 1))
        e("s_mov_b32 s%d, %d" % (sCUR + 2, 3072 + 63 * self.stride + 4096 + (8192 if self.swz else 0))); e("s_mov_b32 s%d, 0x20000" % (sCUR + 3))
        if self.stag:
            e("s_mul_i32 s%d, s2, %d" % (sRot, self.stag)); e("s_and_b32 s%d, s%d, 63" % (sRot, sRot)); e("s_mul_i32 s%d, s%d, %d" % (sRot, sRot, self.stride))
        else:
            e("s_mov_b32 s%d, 0" % sRot)
        e("s_mov_b32 s%d, s%d" % (sOff, sRot)); e("s_mov_b32 s%d, %d" % (sLeft, 2 * NRES_T)); e("s_mov_b32 s%d, 0" % sSeg)
        self.vpat()

    def weights_setup(self, which):
        e0 = self.e
        sfx = "_" + which
        def e(x):
            for lb in ("L_wdone", "L_wO", "L_wB", "L_wC"):
                x = x.replace(lb, lb + sfx)
            e0(x)
        lab0 = self.lab
        self.lab = lambda n: lab0(n + sfx)
        e("s_mov_b32 s%d, 0x20000" % (sWS + 3))
        e("s_mov_b64 %s, -1" % sp(sWex))
        pdef = pWq if which == "start" else pW2
        e("s_mov_b32 s%d, s%d" % (sWS, pdef)); e("s_and_b32 s%d, s%d, 0xffff" % (sWS + 1, pdef + 1)); e("s_mov_b32 s%d, 0" % (sWS + 2))
        e("s_mov_b32 s%d, s%d" % (sWlds, sVec))
        e("s_mov_b32 s%d, 0" % sWlstep); e("s_mov_b32 s%d, 0" % sWoff); e("s_mov_b32 s%d, 0" % sWoff0); e("s_mov_b32 s%d, 0" % sWstep)
        e("s_mov_b32 s%d, 99" % sWwrap); e("s_mov_b32 s%d, 0" % sWlds0); e("s_mov_b64 %s, 0" % sp(sWo2))
        e("v_mov_b32 v%d, 0" % vW)
        e("s_cmp_eq_u32 s%d, 0" % sRole); e("s_cbranch_scc1 L_wdone")
        if which == "start" and self.gapw:
            e("s_cmp_eq_u32 s%d, 2" % sRole); e("s_cbranch_scc1 L_wdone")
            e("s_cmp_eq_u32 s%d, 3" % sRole); e("s_cbranch_scc1 L_wdone")
        e("s_mov_b32 s%d, 1024" % sWlstep)
        if which == "start":
            e("s_cmp_eq_u32 s%d, 1" % sRole); e("s_cbranch_scc1 L_wO")
        e("s_cmp_eq_u32 s%d, 2" % sRole); e("s_cbranch_scc1 L_wB")
        if which == "start":
            e("s_cmp_eq_u32 s%d, 3" % sRole); e("s_cbranch_scc1 L_wC")
        else:
            e("s_branch L_wC")
        if which == 'start':
            e("s_mov_b32 s%d, %d" % (sWS + 2, 448 * 8192))
            e("v_lshrrev_b32 v9, 3, v%d" % vL); e("v_lshlrev_b32 v%d, 13, v9" % vW)
            e("v_bfe_u32 v9, v%d, 4, 2" % vL); e("v_lshlrev_b32 v9, 1, v9")
            e("v_and_b32 v10, 7, v%d" % vL); e("v_xor_b32 v9, v9, v10"); e("v_lshl_add_u32 v%d, v9, 4, v%d" % (vW, vW))
            e("s_mul_i32 s%d, s%d, %d" % (sT1, sWave, 14 * 8 * 8192)); e("s_lshl_b32 s%d, s%d, 7" % (sT2, sIdx)); e("s_add_u32 s%d, s%d, s%d" % (sWoff, sT1, sT2))
            e("s_mov_b32 s%d, %d" % (sWstep, 8 * 8192))
            e("s_mul_i32 s%d, s%d, %d" % (sWlds, sWave, 14 * 1024)); e("s_add_u32 s%d, s%d, %d" % (sWlds, sWlds, L_W))
            e("s_branch L_wdone")
        self.lab("L_wC")
        e("s_mov_b32 s%d, s%d" % (sWS, pW2)); e("s_and_b32 s%d, s%d, 0xffff" % (sWS + 1, pW2 + 1)); e("s_mov_b32 s%d, %d" % (sWS + 2, 1792 * 896))
        e("v_lshrrev_b32 v9, 1, v%d" % vL); e("v_mul_u32_u24 v%d, 896, v9" % vW)
        e("v_and_b32 v9, 1, v%d" % vL); e("v_lshl_add_u32 v%d, v9, 4, v%d" % (vW, vW))
        e("s_mul_i32 s%d, s%d, %d" % (sT1, sWave, 448 * 896)); e("s_lshl_b32 s%d, s%d, 5" % (sT2, sIdx)); e("s_add_u32 s%d, s%d, s%d" % (sWoff, sT1, sT2))
        e("s_mov_b32 s%d, %d" % (sWstep, 32 * 896))
        e("s_mul_i32 s%d, s%d, %d" % (sWlds, sWave, C_WAVE)); e("s_add_u32 s%d, s%d, %d" % (sWlds, sWlds, L_W))
        e("s_mov_b32 s%d, s%d" % (sWoff0, sWoff)); e("s_mov_b32 s%d, s%d" % (sWlds0, sWlds))
        e("s_and_b32 s%d, s%d, 3" % (sT0, sIdx)); e("s_mul_i32 s%d, s%d, 7" % (sT0, sT0)); e("s_add_u32 s%d, s%d, 1" % (sT0, sT0)); e("s_lshr_b32 s%d, s%d, 1" % (sT0, sT0))
        e("s_sub_u32 s%d, 14, s%d" % (sWwrap, sT0))
        e("s_mul_i32 s%d, s%d, %d" % (sT1, sT0, 32 * 896)); e("s_add_u32 s%d, s%d, s%d" % (sWoff, sWoff, sT1))
        e("s_lshl_b32 s%d, s%d, 10" % (sT1, sT0)); e("s_add_u32 s%d, s%d, s%d" % (sWlds, sWlds, sT1))
        e("s_branch L_wdone")
        if which == 'start':
            self.lab("L_wO")
            e("s_mov_b32 s%d, s%d" % (sWS, pWo)); e("s_and_b32 s%d, s%d, 0xffff" % (sWS + 1, pWo + 1)); e("s_mov_b32 s%d, %d" % (sWS + 2, 4096 * 896))
            e("v_lshlrev_b32 v%d, 4, v%d" % (vW, vL))
            e("s_lshl_b32 s%d, s%d, 6" % (sT1, sIdx)); e("s_lshl_b32 s%d, s%d, 4" % (sT2, sWave)); e("s_add_u32 s%d, s%d, s%d" % (sT1, sT1, sT2))
            e("s_mul_i32 s%d, s%d, 896" % (sWoff, sT1))
            e("s_mov_b32 s%d, 896" % sWstep); e("s_mov_b32 s%d, %d" % (sWlstep, O_ROW))
            e("s_mul_i32 s%d, s%d, %d" % (sWlds, sWave, 16 * O_ROW)); e("s_add_u32 s%d, s%d, %d" % (sWlds, sWlds, L_W))
            e("s_mov_b32 s%d, -1" % sWex); e("s_mov_b32 s%d, 0x00ffffff" % (sWex + 1))
            e("s_branch L_wdone")
        self.lab("L_wB")
        e("s_bitcmp1_b32 s%d, 0" % sIdx)
        e("s_cselect_b32 s%d, s%d, s%d" % (sWS, pW3, pW1)); e("s_cselect_b32 s%d, s%d, s%d" % (sWS + 1, pW3 + 1, pW1 + 1))
        e("s_cselect_b32 s%d, s%d, s%d" % (sWo2, pW1, pW3)); e("s_cselect_b32 s%d, s%d, s%d" % (sWo2 + 1, pW1 + 1, pW3 + 1))
        e("s_cselect_b32 s%d, %d, 0" % (sT3, B_IMG3)); e("s_cselect_b32 s%d, 0, %d" % (sT4, B_IMG3))
        e("s_and_b32 s%d, s%d, 0xffff" % (sWS + 1, sWS + 1)); e("s_and_b32 s%d, s%d, 0xffff" % (sWo2 + 1, sWo2 + 1))
        e("s_mov_b32 s%d, %d" % (sWS + 2, 448 * 3584))
        e("v_lshrrev_b32 v9, 2, v%d" % vL); e("v_mul_u32_u24 v%d, 3584, v9" % vW)
        e("v_and_b32 v9, 3, v%d" % vL); e("v_lshl_add_u32 v%d, v9, 4, v%d" % (vW, vW))
        e("s_mul_i32 s%d, s%d, %d" % (sT1, sWave, 7 * 16 * 3584)); e("s_lshl_b32 s%d, s%d, 6" % (sT2, sIdx)); e("s_add_u32 s%d, s%d, s%d" % (sWoff, sT1, sT2))
        e("s_mov_b32 s%d, s%d" % (sWoff0, sWoff))
        e("s_mov_b32 s%d, %d" % (sWstep, 16 * 3584))
        e("s_mul_i32 s%d, s%d, %d" % (sWlds, sWave, 7 * 1024)); e("s_add_u32 s%d, s%d, %d" % (sWlds, sWlds, L_W))
        e("s_add_u32 s%d, s%d, s%d" % (sWlds0, sWlds, sT4)); e("s_add_u32 s%d, s%d, s%d" % (sWlds, sWlds, sT3))
        self.lab("L_wdone")
        self.lab = lab0

    def clear_mailboxes(self):
        e = self.e
        e("v_mov_b32 v10, -1")
        e("s_lshl_b32 s%d, s%d, 2" % (sT0, sH)); e("s_add_u32 s%d, s%d, s%d" % (sT0, sT0, sWave)); e("s_lshl_b32 s%d, s%d, 4" % (sT0, sT0))
        e("s_add_u32 s%d, s%d, s%d" % (sT0, sT0, sC)); e("s_mul_i32 s%d, s%d, %d" % (sT0, sT0, M1_SLOT))
        self.addr(sA, pWs, M1, [sT0])
        e("v_lshlrev_b32 v8, 2, v%d" % vL)
        e("v_and_b32 v9, 1, v%d" % vL); e("v_lshlrev_b32 v9, 2, v9"); e("v_add_u32 v9, 256, v9")
        for rho in range(2):
            e("global_store_dword v8, v10, %s sc1" % sp(sA))
            e("global_store_dword v9, v10, %s sc1" % sp(sA))
            if rho == 0:
                e("s_add_u32 s%d, s%d, 0x%x" % (sA, sA, M1_R)); e("s_addc_u32 s%d, s%d, 0" % (sA + 1, sA + 1))
        if self.p2n:
            e("s_lshl_b32 s%d, s2, 12" % sT0); e("s_lshl_b32 s%d, s%d, 10" % (sT1, sWave))
            self.addr(sA, pWs, M7, [sT0, sT1])
            for k in range(4):
                e("global_store_dword v8, v10, %s offset:%d sc1" % (sp(sA), k * 256))
        e("s_cmp_eq_u32 s%d, 0" % sWave); e("s_cbranch_scc0 L_cdone")
        e("s_cmp_eq_u32 s%d, 0" % sRole); e("s_cbranch_scc1 L_cdone")
        e("v_and_b32 v8, 31, v%d" % vL); e("v_lshlrev_b32 v8, 2, v8")
        e("s_lshl_b32 s%d, s%d, 7" % (sT0, sIdx))
        e("v_add_u32 v8, s%d, v8" % sT0)
        e("s_cmp_eq_u32 s%d, 1" % sRole); e("s_cbranch_scc1 L_cA")
        e("s_cmp_eq_u32 s%d, 2" % sRole); e("s_cbranch_scc1 L_cB")
        e("s_cmp_eq_u32 s%d, 3" % sRole); e("s_cbranch_scc1 L_cC")
        for off in (M3, M3 + MR, M6, M6 + MR):
            self.addr(sA, pWs, off); e("global_store_dword v8, v10, %s sc1" % sp(sA))
        e("s_branch L_cdone")
        self.lab("L_cA")
        if self.p2n == 2:
            lq = self.nl("Lc8")
            e("s_and_b32 s%d, s%d, 3" % (sT1, sIdx)); e("s_cmp_lt_u32 s%d, 2" % sT1); e("s_cbranch_scc0 %s" % lq)
            e("s_lshr_b32 s%d, s%d, 2" % (sT0, sIdx)); e("s_lshl_b32 s%d, s%d, 7" % (sT0, sT0)); e("s_lshl_b32 s%d, s%d, 2" % (sT1, sT1))
            self.addr(sA, pWs, M8, [sT0, sT1])
            e("v_mov_b32 v9, 0")
            e("global_store_dword v9, v10, %s sc1" % sp(sA))
            self.lab(lq)
        e("s_mul_i32 s%d, s%d, %d" % (sT0, sIdx, M2_SLOT))
        e("v_lshlrev_b32 v8, 2, v%d" % vL)
        for rho in range(2):
            self.addr(sA, pWs, M2 + rho * M2_R, [sT0])
            for k in range(M2_SLOT // 256):
                e("global_store_dword v8, v10, %s offset:%d sc1" % (sp(sA), k * 256))
        e("s_branch L_cdone")
        self.lab("L_cB")
        for off in (M4, M4 + MR):
            self.addr(sA, pWs, off); e("global_store_dword v8, v10, %s sc1" % sp(sA))
        e("s_branch L_cdone")
        self.lab("L_cC")
        self.addr(sA, pWs, M5); e("global_store_dword v8, v10, %s sc1" % sp(sA))
        self.lab("L_cdone")
        e("v_mov_b32 v11, 0")
        e("v_lshlrev_b32 v8, 2, v%d" % vL); e("v_add_u32 v8, %d, v8" % L_Z)
        e("ds_write_b32 v8, v11"); e("ds_write_b32 v8, v11 offset:256")

    def count_cleared(self):
        e = self.e
        e("s_waitcnt lgkmcnt(0)")
        e("s_barrier")
        e("s_cmp_eq_u32 s%d, 0" % sWave); e("s_cbranch_scc0 L_cnt_done")
        e("v_mov_b32 v10, 0"); e("v_mov_b32 v11, 1")
        e("s_mov_b64 exec, 1")
        e("global_atomic_add v10, v11, %s" % sp(pDbg))
        e("s_mov_b64 exec, -1")
        self.lab("L_cnt_done")

    def layernorm_to_vec(self):
        e = self.e
        X = 40
        for d in range(4):
            e("v_lshlrev_b32 v%d, 16, v%d" % (X + 2 * d, 32 + d))
            e("v_and_b32 v%d, 0xffff0000, v%d" % (X + 2 * d + 1, 32 + d))
        e("v_cmp_gt_u32 vcc, 56, v%d" % vL)
        e("v_add_f32 v48, v40, v41"); e("v_add_f32 v49, v42, v43"); e("v_add_f32 v50, v44, v45"); e("v_add_f32 v51, v46, v47")
        e("v_add_f32 v48, v48, v49"); e("v_add_f32 v50, v50, v51"); e("v_add_f32 v48, v48, v50")
        e("v_cndmask_b32 v48, 0, v48, vcc")
        self.allreduce64(48, 49, "v_add_f32")
        e("v_mul_f32 v48, 0x3b124925, v48")
        for i in range(8):
            e("v_sub_f32 v%d, v%d, v48" % (52 + i, X + i))
        e("v_mul_f32 v49, v52, v52")
        for i in range(1, 8):
            e("v_fmac_f32 v49, v%d, v%d" % (52 + i, 52 + i))
        e("v_cndmask_b32 v49, 0, v49, vcc")
        self.allreduce64(49, 50, "v_add_f32")
        e("v_mul_f32 v49, 0x3b124925, v49")
        self.bf16r(48, 48, 50)
        self.bf16r(49, 49, 50)
        e("v_add_f32 v49, 0x3727c5ac, v49")
        self.bf16r(49, 49, 50)
        e("v_sqrt_f32 v49, v49"); self.nop(1)
        self.bf16r(49, 49, 50)
        e("v_rcp_f32 v49, v49")
        for i in range(8):
            e("v_sub_f32 v%d, v%d, v48" % (52 + i, X + i))
        for i in range(0, 8, 2):
            e("v_cvt_pk_bf16_f32 v%d, v%d, v%d" % (36 + i // 2, 52 + i, 53 + i))
        for d in range(4):
            e("v_lshlrev_b32 v%d, 16, v%d" % (52 + 2 * d, 36 + d))
            e("v_and_b32 v%d, 0xffff0000, v%d" % (53 + 2 * d, 36 + d))
        for i in range(8):
            e("v_mul_f32 v%d, v%d, v49" % (52 + i, 52 + i))
        for i in range(0, 8, 2):
            e("v_cvt_pk_bf16_f32 v%d, v%d, v%d" % (36 + i // 2, 52 + i, 53 + i))
        e("v_lshlrev_b32 v48, 4, v%d" % vL); e("v_add_u32 v48, s%d, v48" % sVec)
        e("ds_write_b128 v48, v[36:39]")
        e("s_waitcnt lgkmcnt(0)")

    def gemv_chain(self, n, a_off, b_step, b_second, acc=8):
        e = self.e
        m = 0
        first = True
        while m < n:
            nb = min(4, n - m)
            for k in range(nb):
                o0, o1 = a_off(m + k)
                e("ds_read2_b64 v[%d:%d], v6 offset0:%d offset1:%d" % (32 + 4 * k, 35 + 4 * k, o0, o1))
                e("ds_read_b64_tr_b16 v[%d:%d], v7 offset:%d" % (48 + 4 * k, 49 + 4 * k, (m + k) * b_step))
                e("ds_read_b64_tr_b16 v[%d:%d], v7 offset:%d" % (50 + 4 * k, 51 + 4 * k, (m + k) * b_step + b_second))
            e("s_waitcnt lgkmcnt(0)")
            for k in range(nb):
                c = "0" if first else vr(acc, 4)
                e("v_mfma_f32_16x16x32_bf16 %s, %s, %s, %s" % (vr(acc, 4), vr(32 + 4 * k, 4), vr(48 + 4 * k, 4), c))
                first = False
            m += nb
        self.nop(8)

    def lane_rc(self):
        e = self.e
        e("v_lshrrev_b32 v10, 4, v%d" % vL); e("v_bfe_u32 v11, v%d, 2, 2" % vL)
        e("v_and_b32 v12, 3, v%d" % vL); e("v_and_b32 v13, 15, v%d" % vL)

    def stage_D(self, rho_reg_is_next):
        e = self.e
        self.layernorm_to_vec()
        self.lane_rc()
        e("v_lshlrev_b32 v6, 3, v10"); e("v_add_u32 v6, s%d, v6" % sVec)
        e("v_lshl_add_u32 v7, v10, 2, v11")
        e("v_bfe_u32 v14, v7, 1, 2"); e("v_xor_b32 v14, s%d, v14" % sWave)
        e("v_lshlrev_b32 v7, 7, v7"); e("v_lshl_add_u32 v7, v14, 5, v7"); e("v_lshl_add_u32 v7, v12, 3, v7"); e("v_add_u32 v7, %d, v7" % L_W)
        self.gemv_chain(14, lambda m: (8 * m, 8 * m + 4), 4096, 2048)
        e("v_mov_b32_dpp v9, v8 quad_perm:[1,0,3,2] row_mask:0xf bank_mask:0xf")
        e("v_cvt_pk_bf16_f32 v9, v8, v9")
        e("v_mov_b32 v14, -2"); e("v_min_u32 v9, v9, v14")
        e("s_lshl_b32 s%d, s%d, 7" % (sT0, sIdx)); e("s_lshl_b32 s%d, s%d, 5" % (sT1, sWave)); e("s_add_u32 s%d, s%d, s%d" % (sT0, sT0, sT1))
        e("v_lshlrev_b32 v14, 1, v%d" % vL); e("v_add_u32 v14, s%d, v14" % sT0)
        e("s_mov_b64 exec, 0x5555")
        e("global_store_dword v14, v9, %s sc1" % sp(sA))
        e("s_mov_b64 exec, -1")

    def p1a(self):
        e = self.e
        e("v_lshrrev_b32 v%d, 5, v%d" % (vPh, vL)); e("v_lshlrev_b32 v%d, 12, v%d" % (vPh, vPh))
        e("v_and_b32 v%d, 31, v%d" % (vAd, vL)); e("v_lshl_add_u32 v%d, v%d, 3, v%d" % (vPh, vAd, vPh))
        R = self.R
        for T in range(NRES_T):
            u0, u1 = 2 * T + R, 2 * T + R + 1
            if self.p2n == 1 and T == 2:
                self.now(sTm0)
            if T == 12:
                self.gwait(u0)
                lq = self.nl("Lnq")
                e("s_mov_b32 s%d, 0" % sQok)
                e("v_cmp_gt_u32 vcc, 256, v36")
                e("s_cbranch_vccnz %s" % lq)
                e("s_mov_b32 s%d, 1" % sQok)
                e("s_lshl_b32 s%d, s%d, 9" % (sT1, sH))
                self.addr(sA, pWs, M6, [sT1])
                e("v_and_b32 v37, 31, v%d" % vL); e("v_lshlrev_b32 v37, 4, v37")
                e("global_load_dwordx4 v[32:35], v37, %s sc1" % sp(sA))
                self.lab(lq)
                self.issue()
            elif T == 10:
                self.gwait(u0)
                e("v_mov_b32 v37, 0")
                e("global_load_dword v36, v37, %s sc1" % sp(pDbg))
                self.issue()
            else:
                self.group(u0)
            if T == 1:
                self.gwait(u1)
                self.count_cleared()
                self.issue(); self.xop(u1)
            elif T == 9:
                assert u1 - R >= 16
                self.gwait(u1)
                e("s_cmp_eq_u32 s%d, 4" % sRole); e("s_cbranch_scc0 L_noq1")
                e("s_barrier")
                if int(self.o.get("gap2", 1)):
                    e("s_call_b64 %s, L_stageD_prep" % sp(sRet2))
                    e("s_lshl_b32 s%d, s%d, 7" % (sT0, sIdx)); e("s_lshl_b32 s%d, s%d, 5" % (sT1, sWave))
                    self.addr(sB, pWs, M6, [sT0] if self.onest else [sT0, sT1])
                    e("s_call_b64 %s, L_stageD_rest" % sp(sRet2))
                else:
                    self.addr(sA, pWs, M6)
                    e("s_call_b64 %s, L_stageD" % sp(sRet2))
                self.lab("L_noq1")
                self.issue()
                e("v_lshrrev_b32 v%d, 5, v%d" % (vPh, vL)); e("v_lshlrev_b32 v%d, 12, v%d" % (vPh, vPh))
                e("v_and_b32 v%d, 31, v%d" % (vAd, vL)); e("v_lshl_add_u32 v%d, v%d, 3, v%d" % (vPh, vAd, vPh))
            else:
                self.group(u1)
            e("v_add_u32 v%d, s%d, v%d" % (vAd, sCs, vPh))
            for t in range(16):
                e("ds_read_b64_tr_b16 %s, v%d offset:%d" % (res_reg(T >> 1, t, T & 1), vAd, t * 256))
            self.adv_cs()
            e("s_waitcnt lgkmcnt(0)")
        if self.p2n == 1:
            self.now(sTm1, sTm0)

    def gather_q(self):
        e = self.e
        e("s_cmp_eq_u32 s%d, 0" % sPass); e("s_cbranch_scc0 L_gq")
        e("s_cmp_eq_u32 s%d, 1" % sQok); e("s_cbranch_scc0 L_gq_slow")
        e("v_max3_u32 v36, v32, v33, v34"); e("v_max_u32 v36, v36, v35")
        e("v_cmp_eq_u32 vcc, -1, v36")
        e("v_and_b32 v8, 31, v%d" % vL); e("v_lshlrev_b32 v8, 4, v8")
        e("s_cbranch_vccz L_gq_write")
        self.lab("L_gq_slow")
        L = self.nl("Lc"); Dn = self.nl("Lcd")
        e("v_mov_b32 v8, 0"); e("s_mov_b32 s%d, 0" % sSpin)
        self.lab(L)
        e("global_load_dword v9, v8, %s sc1" % sp(pDbg))
        e("s_waitcnt vmcnt(0)")
        e("v_cmp_gt_u32 vcc, 256, v9")
        e("s_cbranch_vccz %s" % Dn)
        e("s_add_u32 s%d, s%d, 1" % (sSpin, sSpin)); e("s_cmp_lt_u32 s%d, %d" % (sSpin, SPIN_LIMIT)); e("s_cbranch_scc1 %s" % L)
        self.lab(Dn)
        self.lab("L_gq")
        if self.q1w:
            e("s_cmp_eq_u32 s%d, 1" % sPass); e("s_cbranch_scc0 L_gq_p0")
            e("s_cmp_eq_u32 s%d, 0" % sWave); e("s_cbranch_scc0 L_gq_bar")
            e("s_lshl_b32 s%d, s%d, 9" % (sT1, sH))
            self.addr(sA, pWs, M6 + MR, [sT1])
            e("s_lshl_b32 s%d, s%d, 7" % (sT0, sH))
            self.addr(sB, pWs, M8, [sT0])
            e("v_and_b32 v8, 31, v%d" % vL); e("v_lshlrev_b32 v8, 4, v8"); e("v_mov_b32 v9, 0")
            self.ptmp = 10
            self.poll2(lambda b: ["global_load_dwordx4 v[%d:%d], v8, %s sc1" % (b, b + 3, sp(sA)),
                                  "global_load_dwordx2 v[%d:%d], v9, %s sc1" % (b + 4, b + 5, sp(sB))], 6, (20, 26), 32, "Qq", sleep=int(self.o.get("qsleep", 0)))
            self.ptmp = 31
            for k in range(4):
                e("ds_write_b128 v8, v[32:35] offset:%d" % (L_Q + 512 * k))
            e("v_mov_b32 v9, %d" % (L_SM + 32))
            e("ds_write_b64 v9, v[36:37]")
            e("s_waitcnt lgkmcnt(0)")
            self.lab("L_gq_bar")
            e("s_barrier")
            e("v_mov_b32 v9, %d" % (L_SM + 32))
            e("ds_read_b64 v[38:39], v9")
            e("s_waitcnt lgkmcnt(0)")
            self.near_setup()
            e("s_branch L_gq_end")
            self.lab("L_gq_p0")
        e("s_lshl_b32 s%d, s%d, 13" % (sT0, sPass)); e("s_lshl_b32 s%d, s%d, 9" % (sT1, sH))
        self.addr(sA, pWs, M6, [sT0, sT1])
        e("v_and_b32 v8, 31, v%d" % vL); e("v_lshlrev_b32 v8, 4, v8")
        lds_ = ["global_load_dwordx4 v[32:35], v8, %s sc1" % sp(sA)]
        chk = [32, 33, 34, 35]
        if self.p2n == 1:
            e("v_mov_b32 v37, 0")
            lds_.append("global_load_dwordx2 v[38:39], v37, %s offset:16 sc1" % sp(pDbg))
        if self.p2n == 2:
            e("s_lshl_b32 s%d, s%d, 7" % (sT0, sH))
            self.addr(sB, pWs, M8, [sT0])
            e("s_cmp_eq_u32 s%d, 0" % sPass)
            e("s_cselect_b32 s%d, s%d, s%d" % (sB, sA, sB)); e("s_cselect_b32 s%d, s%d, s%d" % (sB + 1, sA + 1, sB + 1))
            e("v_mov_b32 v37, 0")
            lds_.append("global_load_dwordx2 v[38:39], v37, %s sc1" % sp(sB))
            chk += [38, 39]
        self.poll(lds_, chk, 36, "Pq")
        if self.p2n and not self.q1w:
            self.near_setup()
        self.lab("L_gq_write")
        e("s_lshl_b32 s%d, s%d, 9" % (sT0, sWave))
        e("v_add_u32 v8, s%d, v8" % sT0)
        e("ds_write_b128 v8, v[32:35] offset:%d" % L_Q)
        e("s_waitcnt lgkmcnt(0)")
        if self.q1w:
            self.lab("L_gq_end")

    def near_setup(self):
        e = self.e
        d = self.nl("Lns")
        e("s_cmp_eq_u32 s%d, 1" % sPass); e("s_cbranch_scc0 %s" % d)
        if self.p2n == 1:
            e("v_readfirstlane_b32 s%d, v38" % sT0); e("v_readfirstlane_b32 s%d, v39" % sT1)
            e("s_nop 3")
            e("s_cmp_gt_u32 s%d, 128" % sT0); e("s_cselect_b32 s%d, 1, 0" % sT0)
            e("s_cmp_gt_u32 s%d, 128" % sT1); e("s_cselect_b32 s%d, 1, 0" % sT1)
        else:
            e("v_readfirstlane_b32 s%d, v38" % sT0); e("v_readfirstlane_b32 s%d, v39" % sT1)
            e("s_nop 3")
            e("s_and_b32 s%d, s%d, 1" % (sT1, sT1)); e("s_and_b32 s%d, s%d, 1" % (sT0, sT0))
        if "forceK" in self.o:
            e("s_mov_b32 s%d, %d" % (sT0, int(self.o["forceK"]))); e("s_mov_b32 s%d, %d" % (sT1, int(self.o["forceV"])))
        e("s_xor_b32 s%d, s%d, s%d" % (sXch, sT0, sT1))
        e("s_lshr_b32 s%d, s2, 1" % sT2); e("s_lshr_b32 s%d, s2, 2" % sT3); e("s_xor_b32 s%d, s%d, s%d" % (sT2, sT2, sT3)); e("s_and_b32 s%d, s%d, 1" % (sT2, sT2))
        e("s_xor_b32 s%d, s%d, s%d" % (sT0, sT0, sT2)); e("s_xor_b32 s%d, s%d, s%d" % (sT1, sT1, sT2))
        if self.swz:
            e("s_lshl_b32 s%d, s%d, 13" % (sT0, sT0)); e("s_lshl_b32 s%d, s%d, 13" % (sT1, sT1))
        else:
            e("s_and_b32 s%d, s%d, 1" % (sT2, sWave))
            e("s_lshl_b32 s%d, s%d, 1" % (sT0, sT0)); e("s_add_u32 s%d, s%d, s%d" % (sT0, sT0, sT2)); e("s_sub_i32 s%d, s%d, s%d" % (sT0, sT0, sWave)); e("s_lshl_b32 s%d, s%d, 12" % (sT0, sT0))
            e("s_lshl_b32 s%d, s%d, 1" % (sT1, sT1)); e("s_add_u32 s%d, s%d, s%d" % (sT1, sT1, sT2)); e("s_sub_i32 s%d, s%d, s%d" % (sT1, sT1, sWave)); e("s_lshl_b32 s%d, s%d, 12" % (sT1, sT1))
        e("s_xor_b32 s%d, s2, 4" % sT3); e("s_cmp_lt_u32 s%d, 2" % sWave); e("s_cselect_b32 s%d, s2, s%d" % (sT3, sT3))
        e("s_mul_i32 s%d, s%d, %d" % (sRotN, sT3, self.stag)); e("s_and_b32 s%d, s%d, 63" % (sRotN, sRotN)); e("s_mul_i32 s%d, s%d, %d" % (sRotN, sRotN, self.stride))
        e("s_sub_i32 s%d, s%d, s2" % (sT3, sT3)); e("s_lshl_b32 s%d, s%d, 20" % (sT3, sT3))
        e("s_add_i32 s%d, s%d, s%d" % (sT0, sT0, sT3)); e("s_add_i32 s%d, s%d, s%d" % (sT1, sT1, sT3))
        for (dst, src, dl) in ((sKN, sKB, sT0), (sVN, sVB, sT1)):
            e("s_ashr_i32 s%d, s%d, 31" % (sT2, dl))
            e("s_add_u32 s%d, s%d, s%d" % (dst, src, dl)); e("s_addc_u32 s%d, s%d, s%d" % (dst + 1, src + 1, sT2))
            e("s_and_b32 s%d, s%d, 0xffff" % (dst + 1, dst + 1))
        self.lab(d)

    def kphase(self):
        e = self.e
        if self.p2n == 1:
            self.now(sTm0)
        vQ, vZ = 16, 17
        if not self.klin:
            e("v_bfe_u32 v%d, v%d, 3, 1" % (vPh, vL)); e("v_lshlrev_b32 v%d, 12, v%d" % (vPh, vPh))
            e("v_lshrrev_b32 v%d, 4, v%d" % (vAd, vL)); e("v_lshl_add_u32 v%d, v%d, 7, v%d" % (vPh, vAd, vPh))
            e("v_lshlrev_b32 v%d, 4, v%d" % (vQ, vAd))
            e("v_and_b32 v%d, 7, v%d" % (vAd, vL)); e("v_lshl_add_u32 v%d, v%d, 4, v%d" % (vPh, vAd, vPh))
        else:
            e("v_bfe_u32 v%d, v%d, 3, 1" % (vPh, vL)); e("v_lshlrev_b32 v%d, 12, v%d" % (vPh, vPh))
            e("v_and_b32 v%d, 7, v%d" % (vAd, vL)); e("v_lshl_add_u32 v%d, v%d, 9, v%d" % (vPh, vAd, vPh))
            e("v_lshrrev_b32 v%d, 4, v%d" % (vQ, vL)); e("v_and_b32 v18, 3, v%d" % vL); e("v_xor_b32 v18, v18, v%d" % vQ)
            e("v_lshl_add_u32 v%d, v18, 4, v%d" % (vPh, vPh))
            e("v_bfe_u32 v18, v%d, 2, 1" % vL); e("v_lshlrev_b32 v18, 6, v18")
            e("v_sub_u32 v19, v%d, v18" % vPh); e("v_add_u32 v%d, v%d, v18" % (vPh, vPh)); e("v_mov_b32 v18, v19")
            e("v_lshlrev_b32 v%d, 4, v%d" % (vQ, vQ))
        e("s_lshl_b32 s%d, s%d, 9" % (sT0, sWave)); e("s_add_u32 s%d, s%d, %d" % (sT0, sT0, L_Q))
        e("v_add_u32 v%d, s%d, v%d" % (vQ, sT0, vQ))
        e("v_mov_b32 v%d, %d" % (vZ, L_Z))
        for i in range(8):
            e("v_mov_b32 v%d, 0" % (vSC + i))
        first_skip = self.nl("Kskip")
        e("s_mov_b32 s%d, 0" % sT15)
        e("s_cmp_eq_u32 s%d, 0" % sPass)
        e("s_cbranch_scc1 L_k0")
        if self.q1w:
            e("s_cmp_eq_u32 s%d, 0" % sWave); e("s_cbranch_scc1 %s" % first_skip)
        e("s_waitcnt vmcnt(0)")
        e("s_branch %s" % first_skip)
        for a in range(2):
            self.lab("L_k%d" % a)
            self.step_issue()
            if a == 0:
                self.lab(first_skip)
            e("s_lshl_b64 %s, %s, s%d" % (sp(sMd), sp(sM[0]), sT15))
            e("v_add_u32 v%d, s%d, v%d" % (vAd, sCs, vPh))
            if self.klin:
                e("v_add_u32 v19, s%d, v18" % sCs)
            e("v_cndmask_b32 v%d, v%d, v%d, %s" % (vPa, vZ, vQ, sp(sMd)))
            for b in range(2):
                for k in range(4):
                    c8 = 4 * b + k
                    e("ds_read_b128 v[%d:%d], v%d offset:%d" % (32 + 4 * k, 35 + 4 * k, vPa, c8 * 64))
                    if self.klin:
                        e("ds_read_b128 v[%d:%d], v%d offset:%d" % (48 + 4 * k, 51 + 4 * k, (19 if c8 & 1 else vAd), c8 * 64))
                    else:
                        e("ds_read_b128 v[%d:%d], v%d offset:%d" % (48 + 4 * k, 51 + 4 * k, vAd, c8 * 512))
                e("s_waitcnt lgkmcnt(0)")
                for k in range(4):
                    e("v_mfma_f32_16x16x32_bf16 %s, %s, %s, %s" % (vr(vSC + 4 * a, 4), vr(32 + 4 * k, 4), vr(48 + 4 * k, 4), vr(vSC + 4 * a, 4)))
            self.adv_cs()
            e("s_add_u32 s%d, s%d, 1" % (sT15, sT15))
            e("s_and_b32 s%d, s%d, 15" % (sT15, sT15))
            e("s_cbranch_scc1 L_k%d" % a)
            if a == 0:
                self.stamp(13)
        self.nop(8)

    def softmax(self):
        e = self.e
        S = vSC
        if self.p2n == 1:
            self.now(sTm0, sTm0)
        for i in range(0, 8, 2):
            e("v_cvt_pk_bf16_f32 v%d, v%d, v%d" % (36 + i // 2, S + i, S + i + 1))
        if self.p2n:
            nx = self.nl("Lnx")
            e("s_cmp_eq_u32 s%d, 1" % sPass); e("s_cbranch_scc0 %s" % nx)
            e("s_cmp_eq_u32 s%d, 1" % sXch); e("s_cbranch_scc0 %s" % nx)
            e("v_mov_b32 v41, -2")
            for d in range(4):
                e("v_min_u32 v%d, v%d, v41" % (44 + d, 36 + d))
            e("v_lshlrev_b32 v40, 4, v%d" % vL)
            e("s_lshl_b32 s%d, s2, 12" % sT0); e("s_lshl_b32 s%d, s%d, 10" % (sT1, sWave))
            self.addr(sA, pWs, M7, [sT0, sT1])
            e("global_store_dwordx4 v40, v[44:47], %s sc1" % sp(sA))
            e("s_xor_b32 s%d, s2, 4" % sT0); e("s_lshl_b32 s%d, s%d, 12" % (sT0, sT0)); e("s_xor_b32 s%d, s%d, 2" % (sT1, sWave)); e("s_lshl_b32 s%d, s%d, 10" % (sT1, sT1))
            self.addr(sA, pWs, M7, [sT0, sT1])
            self.poll(["global_load_dwordx4 v[48:51], v40, %s sc1" % sp(sA)], [48, 49, 50, 51], 52, "Px7")
            if self.ilv:
                e("v_mov_b32 v52, 0xffff0000"); e("v_mov_b32 v53, 0xffff0000")
                e("s_mov_b64 exec, 0xffff"); e("v_mov_b32 v52, 0")
                e("s_mov_b32 exec_lo, 0"); e("s_mov_b32 exec_hi, -1"); e("v_mov_b32 v53, -1")
                e("s_mov_b64 exec, -1")
                e("v_bfi_b32 v36, v52, v48, v36"); e("v_bfi_b32 v37, v52, v49, v37")
                e("v_bfi_b32 v38, v53, v50, v38"); e("v_bfi_b32 v39, v53, v51, v39")
            else:
                e("s_mov_b32 exec_lo, 0"); e("s_mov_b32 exec_hi, 0xffff0000")
                e("v_mov_b32 v37, v49")
                e("s_mov_b64 exec, -1")
                e("v_mov_b32 v38, v50"); e("v_mov_b32 v39, v51")
            self.lab(nx)
        for i in range(0, 8, 2):
            e("v_lshlrev_b32 v%d, 16, v%d" % (S + i, 36 + i // 2)); e("v_and_b32 v%d, 0xffff0000, v%d" % (S + i + 1, 36 + i // 2))
        e("v_max3_f32 v32, v%d, v%d, v%d" % (S, S + 1, S + 2)); e("v_max3_f32 v32, v32, v%d, v%d" % (S + 3, S + 4))
        e("v_max3_f32 v32, v32, v%d, v%d" % (S + 5, S + 6)); e("v_max_f32 v32, v32, v%d" % (S + 7))
        self.allreduce64(32, 33, "v_max_f32")
        e("s_lshl_b32 s%d, s%d, 2" % (sT0, sWave)); e("s_add_u32 s%d, s%d, %d" % (sT0, sT0, L_SM))
        e("v_mov_b32 v33, s%d" % sT0)
        e("ds_write_b32 v33, v32")
        if self.p2n == 1:
            e("s_lshl_b32 s%d, s%d, 3" % (sT0, sWave)); e("s_add_u32 s%d, s%d, %d" % (sT0, sT0, L_SM + 32))
            e("v_mov_b32 v33, s%d" % sT0); e("v_mov_b32 v34, s%d" % sTm1); e("v_mov_b32 v35, s%d" % sTm0)
            e("ds_write_b64 v33, v[34:35]")
        e("s_waitcnt lgkmcnt(0)")
        e("s_barrier")
        e("v_mov_b32 v33, %d" % L_SM)
        e("ds_read_b128 v[36:39], v33")
        if self.p2n == 1:
            nv = self.nl("Lnv")
            e("s_cmp_eq_u32 s%d, 0" % sPass); e("s_cbranch_scc0 %s" % nv)
            e("s_cmp_eq_u32 s%d, 0" % sWave); e("s_cbranch_scc0 %s" % nv)
            e("ds_read_b128 v[40:43], v33 offset:32"); e("ds_read_b128 v[44:47], v33 offset:48")
            e("s_waitcnt lgkmcnt(0)")
            e("v_add_u32 v40, v40, v42"); e("v_add_u32 v41, v41, v43"); e("v_add_u32 v44, v44, v46"); e("v_add_u32 v45, v45, v47")
            e("s_lshr_b32 s%d, s2, 1" % sT0); e("s_lshr_b32 s%d, s2, 2" % sT1); e("s_xor_b32 s%d, s%d, s%d" % (sT0, sT0, sT1)); e("s_and_b32 s%d, s%d, 1" % (sT0, sT0))
            e("v_cmp_ge_u32 vcc, v40, v44"); self.nop(2); e("v_cndmask_b32 v40, 0, 1, vcc")
            e("v_cmp_ge_u32 vcc, v41, v45"); self.nop(2); e("v_cndmask_b32 v41, 0, 1, vcc")
            e("v_xor_b32 v40, s%d, v40" % sT0); e("v_xor_b32 v41, s%d, v41" % sT0)
            e("v_cmp_eq_u32 vcc, 0, v%d" % vL); self.nop(2); e("v_cndmask_b32 v40, v40, v41, vcc")
            e("v_lshlrev_b32 v41, 2, v%d" % vL); e("v_add_u32 v41, 16, v41")
            e("s_mov_b64 exec, 3")
            e("global_atomic_add v41, v40, %s" % sp(pDbg))
            e("s_mov_b64 exec, -1")
            self.lab(nv)
        e("s_waitcnt lgkmcnt(0)")
        e("v_max3_f32 v32, v36, v37, v38"); e("v_max_f32 v32, v32, v39")
        e("s_mov_b32 s%d, 0x%x" % (sT0, C_EXP))
        for i in range(8):
            e("v_sub_f32 v%d, v%d, v32" % (S + i, S + i))
        for i in range(8):
            e("v_mul_f32 v%d, s%d, v%d" % (S + i, sT0, S + i))
        for i in range(8):
            e("v_exp_f32 v%d, v%d" % (S + i, S + i))
        self.nop(1)
        e("v_lshrrev_b32 v33, 4, v%d" % vL); e("v_lshlrev_b32 v33, 7, v33")
        e("v_and_b32 v34, 15, v%d" % vL); e("v_lshl_add_u32 v33, v34, 1, v33")
        e("s_lshl_b32 s%d, s%d, 10" % (sT0, sWave)); e("s_add_u32 s%d, s%d, %d" % (sT0, sT0, L_P))
        e("v_add_u32 v33, s%d, v33" % sT0)
        for i in range(0, 8, 2):
            a, r = i >> 2, i & 3
            e("v_cvt_pk_bf16_f32 v%d, v%d, v%d" % (36 + i // 2, S + i, S + i + 1))
            e("ds_write_b16 v33, v%d offset:%d" % (36 + i // 2, a * 512 + r * 32))
            e("ds_write_b16_d16_hi v33, v%d offset:%d" % (36 + i // 2, a * 512 + (r + 1) * 32))
        e("v_add_f32 v34, v%d, v%d" % (S, S + 1)); e("v_add_f32 v35, v%d, v%d" % (S + 2, S + 3))
        e("v_add_f32 v40, v%d, v%d" % (S + 4, S + 5)); e("v_add_f32 v41, v%d, v%d" % (S + 6, S + 7))
        e("v_add_f32 v34, v34, v35"); e("v_add_f32 v40, v40, v41"); e("v_add_f32 v34, v34, v40")
        self.allreduce64(34, 35, "v_add_f32")
        e("v_mov_b32 v%d, v34" % vLsum)
        e("v_mov_b32 v9, v32")
        e("s_waitcnt lgkmcnt(0)")

    def vphase(self):
        e = self.e
        e("v_lshrrev_b32 v%d, 5, v%d" % (vPh, vL)); e("v_lshlrev_b32 v%d, 12, v%d" % (vPh, vPh))
        e("v_and_b32 v%d, 31, v%d" % (vAd, vL)); e("v_lshl_add_u32 v%d, v%d, 3, v%d" % (vPh, vAd, vPh))
        e("v_lshrrev_b32 v%d, 4, v%d" % (vPa, vL)); e("v_lshlrev_b32 v%d, 3, v%d" % (vPa, vPa))
        e("s_lshl_b32 s%d, s%d, 10" % (sT0, sWave)); e("s_add_u32 s%d, s%d, %d" % (sT0, sT0, L_P))
        e("v_add_u32 v%d, s%d, v%d" % (vPa, sT0, vPa))
        for i in range(16):
            e("v_mov_b32 v%d, 0" % (vACC + i))
        acc = lambda T4: vr(vACC + 4 * T4, 4)
        after = {1: 0, 3: 1, 6: 2, 8: 3, 11: 4, 13: 5, 16: 6}
        pf_tiles = tuple(int(x) for x in str(self.o.get("wpft", "14,16")).split(",")) if (self.wpf and self.gapw) else ()
        cpf_tiles = tuple(int(x) for x in str(self.o.get("cpft", "9,11")).split(",")) if int(self.o.get("cpf", 1)) else ()
        if pf_tiles:
            self.wpf_setup()
        if cpf_tiles:
            e("s_getpc_b64 s[18:19]")
            self.lab("L_pcref")
            e("s_add_u32 s18, s18, L_gapcode-L_pcref"); e("s_addc_u32 s19, s19, 0")
            e("v_lshlrev_b32 v46, 7, v%d" % vL)
        any_x = bool(pf_tiles) or bool(cpf_tiles)
        pend = 0
        for i in range(NSTR_T):
            T = NRES_T + i
            if self.ilv:
                T = str_T(i)
            if not any_x:
                self.step_issue()
            else:
                deep = int(self.o.get("deepV", 99))
                Rv = 4 if i >= deep else self.R
                hist = getattr(self, "_h", [])
                if i == deep:
                    lsk = self.nl("Ldp")
                    e("s_cmp_eq_u32 s%d, 0" % sPass); e("s_cbranch_scc0 %s" % lsk)
                    self.issue(); self.issue()
                    self.lab(lsk)
                    hist += [0, 0]
                w = 4 * (Rv - 1)
                for half in range(2):
                    ex = sum(hist[-(Rv - 1):]) if hist else 0
                    e("s_waitcnt vmcnt(%d)" % (w + ex))
                    self.issue()
                    if half == 0 and i in pf_tiles:
                        e("buffer_load_dword v44, v45, %s, s%d offen" % (sp(sWS, 4), sWoff))
                        e("s_add_u32 s%d, s%d, s%d" % (sWoff, sWoff, sWstep))
                        hist.append(1)
                    elif half == 0 and i in cpf_tiles:
                        e("v_min_u32 v47, L_endcode-L_gapcode-4, v46")
                        e("global_load_dword v47, v47, s[18:19]")
                        e("v_add_u32 v46, 8192, v46")
                        hist.append(1)
                    else:
                        hist.append(0)
                self._h = hist
            e("v_add_u32 v%d, s%d, v%d" % (vAd, sCs, vPh))
            e("ds_read_b64 v[32:33], v%d offset:%d" % (vPa, T * 32))
            for b in range(2):
                us = (2 * b, 2 * b + 1)
                k = 0
                for u in us:
                    for T4 in range(4):
                        e("ds_read_b64_tr_b16 v[%d:%d], v%d offset:%d" % (48 + 2 * k, 49 + 2 * k, vAd, (4 * T4 + u) * 256))
                        k += 1
                if b == 0:
                    e("s_waitcnt lgkmcnt(8)")
                for j, u in enumerate(us):
                    e("v_cndmask_b32 v%d, 0, v32, %s" % (36 + 2 * j, sp(sM[u])))
                    e("v_cndmask_b32 v%d, 0, v33, %s" % (37 + 2 * j, sp(sM[u])))
                e("s_waitcnt lgkmcnt(0)")
                k = 0
                for j, u in enumerate(us):
                    for T4 in range(4):
                        e("v_mfma_f32_16x16x16_bf16 %s, %s, %s, %s" % (acc(T4), vr(36 + 2 * j, 2), vr(48 + 2 * k, 2), acc(T4)))
                        k += 1
            self.adv_cs()
            if self.o.get("vstamps") and i in (5, 11, 14):
                self.stamp({5: 14, 11: 15, 14: 12}[i])
            if i in after:
                self.res_pair(after[i])
        self.nop(8)

    def wpf_setup(self):
        e = self.e
        d = self.nl("Lpf"); lb = self.nl("LpfB")
        e("s_mov_b32 s%d, 0x20000" % (sWS + 3)); e("s_mov_b32 s%d, 0" % (sWS + 2))
        e("s_mov_b32 s%d, s%d" % (sWS, pW2)); e("s_and_b32 s%d, s%d, 0xffff" % (sWS + 1, pW2 + 1))
        e("s_mov_b32 s%d, 0" % sWoff); e("s_mov_b32 s%d, 0" % sWstep); e("v_mov_b32 v45, 0")
        e("s_cmp_eq_u32 s%d, 0" % sPass); e("s_cbranch_scc0 %s" % d)
        e("s_cmp_eq_u32 s%d, 2" % sRole); e("s_cbranch_scc1 %s" % lb)
        e("s_cmp_eq_u32 s%d, 3" % sRole); e("s_cbranch_scc0 %s" % d)
        e("s_mov_b32 s%d, %d" % (sWS + 2, 1792 * 896))
        e("v_mul_u32_u24 v45, 896, v%d" % vL)
        e("s_and_b32 s%d, s%d, 3" % (sT0, sIdx)); e("s_mul_i32 s%d, s%d, 448" % (sT0, sT0)); e("s_lshl_b32 s%d, s%d, 7" % (sT1, sWave)); e("s_add_u32 s%d, s%d, s%d" % (sT0, sT0, sT1))
        e("s_mul_i32 s%d, s%d, 896" % (sWoff, sT0)); e("s_lshr_b32 s%d, s%d, 2" % (sT1, sIdx)); e("s_lshl_b32 s%d, s%d, 7" % (sT1, sT1)); e("s_add_u32 s%d, s%d, s%d" % (sWoff, sWoff, sT1))
        e("s_mov_b32 s%d, %d" % (sWstep, 64 * 896))
        e("s_branch %s" % d)
        self.lab(lb)
        e("s_bitcmp1_b32 s%d, 0" % sIdx)
        e("s_cselect_b32 s%d, s%d, s%d" % (sWS, pW3, pW1)); e("s_cselect_b32 s%d, s%d, s%d" % (sWS + 1, pW3 + 1, pW1 + 1))
        e("s_and_b32 s%d, s%d, 0xffff" % (sWS + 1, sWS + 1))
        e("s_mov_b32 s%d, %d" % (sWS + 2, 448 * 3584))
        e("v_mul_u32_u24 v45, 3584, v%d" % vL)
        e("s_lshl_b32 s%d, s%d, 7" % (sT1, sWave)); e("s_mul_i32 s%d, s%d, 3584" % (sWoff, sT1))
        e("s_lshr_b32 s%d, s%d, 1" % (sT1, sIdx)); e("s_lshl_b32 s%d, s%d, 7" % (sT1, sT1)); e("s_add_u32 s%d, s%d, s%d" % (sWoff, sWoff, sT1))
        e("s_mov_b32 s%d, %d" % (sWstep, 64 * 3584))
        self.lab(d)

    def res_pair(self, m):
        e = self.e
        acc = lambda T4: vr(vACC + 4 * T4, 4)
        if self.ilv:
            e("ds_read2_b64 v[32:35], v%d offset0:%d offset1:%d" % (vPa, 4 * res_T(2 * m), 4 * res_T(2 * m + 1)))
        else:
            e("ds_read2_b64 v[32:35], v%d offset0:%d offset1:%d" % (vPa, 8 * m, 8 * m + 4))
        e("s_waitcnt lgkmcnt(0)")
        for u in range(4):
            A = 36 + 4 * (u & 1)
            for d in range(4):
                e("v_cndmask_b32 v%d, 0, v%d, %s" % (A + d, 32 + d, sp(sM[u])))
            self.nop(2)
            for T4 in range(4):
                e("v_mfma_f32_16x16x32_bf16 %s, %s, %s, %s" % (acc(T4), vr(A, 4), res_reg(m, 4 * T4 + u), acc(T4)))

    def combine_publish(self):
        e = self.e
        self.lab("L_gapcode")
        for u in range(4):
            X, Y, Z, W = (vACC + 4 * t + u for t in range(4))
            e("v_permlane16_swap_b32 v%d, v%d" % (X, Y))
            e("v_permlane16_swap_b32 v%d, v%d" % (Z, W))
        self.nop(2)
        for u in range(4):
            e("v_permlane32_swap_b32 v%d, v%d" % (vACC + u, vACC + 8 + u))
        e("v_lshrrev_b32 v32, 4, v%d" % vL); e("v_lshlrev_b32 v32, 8, v32")
        e("v_and_b32 v33, 15, v%d" % vL); e("v_lshl_add_u32 v32, v33, 2, v32")
        e("s_lshl_b32 s%d, s%d, 10" % (sT0, sWave)); e("s_add_u32 s%d, s%d, %d" % (sT0, sT0, L_P))
        e("v_add_u32 v32, s%d, v32" % sT0)
        for u in range(4):
            e("ds_write_b32 v32, v%d offset:%d" % (vACC + u, u * 64))
        e("s_lshl_b32 s%d, s%d, 2" % (sT0, sWave)); e("s_add_u32 s%d, s%d, %d" % (sT0, sT0, L_SM + 16))
        e("v_mov_b32 v33, s%d" % sT0)
        e("ds_write_b32 v33, v%d" % vLsum)
        e("s_waitcnt lgkmcnt(0)")
        e("s_barrier")
        e("s_lshl_b32 s%d, s%d, 8" % (sT0, sWave)); e("s_add_u32 s%d, s%d, %d" % (sT0, sT0, L_P))
        e("v_lshlrev_b32 v40, 2, v%d" % vL); e("v_add_u32 v32, s%d, v40" % sT0)
        for w in range(4):
            e("ds_read_b32 v%d, v32 offset:%d" % (34 + w, w * 1024))
        e("v_mov_b32 v33, %d" % (L_SM + 16))
        e("ds_read_b128 v[44:47], v33")
        e("s_waitcnt lgkmcnt(0)")
        e("v_add_f32 v34, v34, v35"); e("v_add_f32 v36, v36, v37"); e("v_add_f32 v34, v34, v36")
        e("v_add_f32 v44, v44, v45"); e("v_add_f32 v46, v46, v47"); e("v_add_f32 v44, v44, v46")
        e("v_mov_b32 v41, -2")
        e("v_min_u32 v34, v34, v41")
        e("v_and_b32 v42, 1, v%d" % vL); e("v_cmp_eq_u32 vcc, 1, v42"); self.nop(2)
        e("v_cndmask_b32 v43, v9, v44, vcc"); e("v_min_u32 v43, v43, v41")
        e("v_lshlrev_b32 v42, 2, v42"); e("v_add_u32 v42, 256, v42")
        e("s_lshl_b32 s%d, s%d, 2" % (sT0, sH)); e("s_add_u32 s%d, s%d, s%d" % (sT0, sT0, sWave)); e("s_lshl_b32 s%d, s%d, 4" % (sT0, sT0))
        e("s_add_u32 s%d, s%d, s%d" % (sT0, sT0, sC)); e("s_mul_i32 s%d, s%d, %d" % (sT0, sT0, M1_SLOT))
        e("s_mul_i32 s%d, s%d, 0x%x" % (sT1, sPass, M1_R))
        self.addr(sA, pWs, M1, [sT0, sT1])
        e("global_store_dword v40, v34, %s sc1" % sp(sA))
        e("global_store_dword v42, v43, %s sc1" % sp(sA))
        e("s_barrier")

    def l2pf_ilv(self, ntiles):
        if not ntiles or not self.ilv:
            return
        e = self.e
        D = self.nl("Lpfd")
        e("s_cmp_eq_u32 s%d, 0" % sPass); e("s_cbranch_scc0 %s" % D)
        tiles = [t for t in (3, 4, 6, 8, 10, 12)][:ntiles + 1]
        e("v_lshrrev_b32 v6, 5, v%d" % vL); e("v_lshlrev_b32 v6, 14, v6")
        e("v_and_b32 v5, 31, v%d" % vL); e("v_lshlrev_b32 v5, 7, v5"); e("v_add_u32 v5, 3072, v5")
        first = True
        for k in range(ntiles):
            e("s_cmp_eq_u32 s%d, 8" % sNS); e("s_cselect_b32 s%d, %d, %d" % (sT0, 2 * tiles[k + 1], 2 * tiles[k]))
            e("s_lshl_b32 s%d, s%d, 11" % (sT1, sT0)); e("s_xor_b32 s%d, s%d, s%d" % (sT1, sT1, sWb)); e("s_and_b32 s%d, s%d, 8192" % (sT1, sT1))
            e("s_lshl_b32 s%d, s%d, 14" % (sT0, sT0)); e("s_add_u32 s%d, s%d, s%d" % (sT0, sT0, sRot))
            e("v_add_u32 v7, s%d, v6" % sT0); e("v_and_b32 v7, 0x%x, v7" % (64 * self.stride - 1)); e("v_add_u32 v7, v7, v5")
            e("s_waitcnt vmcnt(0)")
            e("buffer_load_dword v8, v7, %s, s%d offen" % (sp(sCUR, 4), sT1))
        e("s_waitcnt vmcnt(0)")
        self.lab(D)

    def topup(self, tp=None):
        e = self.e
        L = self.nl("Tu"); D = self.nl("Tud")
        e("s_cmp_eq_u32 s%d, 0" % sPass); e("s_cbranch_scc0 %s" % D)
        e("s_sub_u32 s%d, s%d, %d" % (sT5, sNS, 4 if int(self.o.get("deepV", 99)) < NSTR_T else self.R))
        self.lab(L)
        if tp is None:
            tp = int(self.o.get("tpace", 1))
        if tp:
            e("s_waitcnt vmcnt(%d)" % (4 * (tp - 1)))
        self.issue()
        e("s_sub_u32 s%d, s%d, 1" % (sT5, sT5))
        e("s_cmp_lg_u32 s%d, 0" % sT5); e("s_cbranch_scc1 %s" % L)
        if self.l2pf:
            e("v_and_b32 v5, 31, v%d" % vL); e("v_lshlrev_b32 v5, 7, v5"); e("v_add_u32 v5, 3072, v5")
            e("v_lshrrev_b32 v6, 5, v%d" % vL); e("v_mul_u32_u24 v6, %d, v6" % self.stride); e("v_add_u32 v6, v5, v6")
            e("s_mov_b32 s%d, s%d" % (sT5, sOff))
            for k in range(self.l2pf):
                e("buffer_load_dword v5, v6, %s, s%d offen%s" % (sp(sCUR, 4), sT5, self.l2pol))
                e("s_add_u32 s%d, s%d, %d" % (sT5, sT5, 2 * self.stride))
                if self.stag:
                    e("s_and_b32 s%d, s%d, 0x%x" % (sT5, sT5, 64 * self.stride - 1))
        self.lab(D)

    def stage_S1(self):
        e = self.e
        e("s_mul_i32 s%d, s%d, %d" % (sT0, sIdx, 16 * M1_SLOT)); e("s_mul_i32 s%d, s%d, 0x%x" % (sT1, sPass, M1_R))
        self.addr(sA, pWs, M1 + 2304, [sT0, sT1])
        e("v_lshrrev_b32 v10, 4, v%d" % vL); e("v_mul_u32_u24 v10, %d, v10" % M1_SLOT)
        e("v_and_b32 v11, 15, v%d" % vL); e("v_lshl_add_u32 v11, v11, 4, v10")
        e("v_add_u32 v10, 256, v10")
        loads = []; regs = []
        for j in range(4):
            off = j * 4 * M1_SLOT - 2304
            loads.append("global_load_dwordx4 v[%d:%d], v11, %s offset:%d sc1" % (32 + 4 * j, 35 + 4 * j, sp(sA), off))
            loads.append("global_load_dwordx2 v[%d:%d], v10, %s offset:%d sc1" % (48 + 2 * j, 49 + 2 * j, sp(sA), off))
        self.poll(loads, list(range(32, 56)), 56, "Ps1")
        self.stamp(8)
        e("v_max3_f32 v56, v48, v50, v52"); e("v_max_f32 v56, v56, v54")
        self.xrows(56, 57, "v_max_f32")
        e("s_mov_b32 s%d, 0x%x" % (sT0, C_EXP))
        for j in range(4):
            e("v_sub_f32 v%d, v%d, v56" % (48 + 2 * j, 48 + 2 * j))
        for j in range(4):
            e("v_mul_f32 v%d, s%d, v%d" % (48 + 2 * j, sT0, 48 + 2 * j))
        for j in range(4):
            e("v_exp_f32 v%d, v%d" % (48 + 2 * j, 48 + 2 * j))
        self.nop(1)
        e("v_mul_f32 v56, v48, v49")
        for j in range(1, 4):
            e("v_fmac_f32 v56, v%d, v%d" % (48 + 2 * j, 49 + 2 * j))
        for d in range(4):
            e("v_mul_f32 v%d, v48, v%d" % (32 + d, 32 + d))
        for j in range(1, 4):
            for d in range(4):
                e("v_fmac_f32 v%d, v%d, v%d" % (32 + d, 48 + 2 * j, 32 + 4 * j + d))
        self.xrows(56, 57, "v_add_f32")
        e("v_rcp_f32 v56, v56")
        e("v_permlane32_swap_b32 v32, v34"); e("v_permlane32_swap_b32 v33, v35"); self.nop(1)
        e("v_add_f32 v32, v32, v34"); e("v_add_f32 v33, v33, v35")
        e("v_mov_b32 v34, v32"); e("v_mov_b32 v35, v33"); self.nop(2)
        e("v_permlane16_swap_b32 v32, v34"); e("v_permlane16_swap_b32 v33, v35"); self.nop(1)
        e("v_add_f32 v32, v32, v34"); e("v_add_f32 v33, v33, v35")
        e("v_mul_f32 v32, v32, v56"); e("v_mul_f32 v33, v33, v56")
        e("v_cvt_pk_bf16_f32 v32, v32, v33")
        e("v_mov_b32 v41, -2"); e("v_min_u32 v32, v32, v41")
        e("v_and_b32 v34, 15, v%d" % vL); e("v_lshlrev_b32 v34, 3, v34")
        e("v_lshrrev_b32 v35, 5, v%d" % vL); e("v_lshl_add_u32 v34, v35, 2, v34"); e("v_add_u32 v34, s%d, v34" % sVec)
        e("ds_write_b32 v34, v32")
        if self.o.get("dbg_a"):
            e("s_lshl_b32 s%d, s%d, 13" % (sT0, sPass)); e("s_lshl_b32 s%d, s%d, 7" % (sT1, sIdx))
            self.addr(sA, pWs, 0xC0000, [sT0, sT1])
            e("v_subrev_u32 v35, s%d, v34" % sVec)
            e("global_store_dword v35, v32, %s" % sp(sA))
        self.lane_rc()
        e("v_lshlrev_b32 v6, 3, v10"); e("v_add_u32 v6, s%d, v6" % sVec)
        e("v_lshl_add_u32 v7, v10, 2, v11"); e("v_mul_u32_u24 v7, %d, v7" % O_ROW); e("v_lshl_add_u32 v7, v12, 3, v7")
        e("s_mul_i32 s%d, s%d, 224" % (sT0, sWave)); e("s_add_u32 s%d, s%d, %d" % (sT0, sT0, L_W)); e("v_add_u32 v7, s%d, v7" % sT0)
        e("s_waitcnt lgkmcnt(0)")
        e("ds_read2_b64 v[36:39], v6 offset0:0 offset1:4"); e("ds_read2_b64 v[40:43], v6 offset0:8 offset1:12")
        for c0 in range(0, 7, 2):
            cts = [c for c in (c0, c0 + 1) if c < 7]
            k = 0
            for ct in cts:
                for m in range(2):
                    e("ds_read_b64_tr_b16 v[%d:%d], v7 offset:%d" % (48 + 4 * k, 49 + 4 * k, m * 32 * O_ROW + ct * 32))
                    e("ds_read_b64_tr_b16 v[%d:%d], v7 offset:%d" % (50 + 4 * k, 51 + 4 * k, (m * 32 + 16) * O_ROW + ct * 32))
                    k += 1
            e("s_waitcnt lgkmcnt(0)")
            k = 0
            for ct in cts:
                for m in range(2):
                    c = "0" if m == 0 else vr(8 + 4 * ct, 4)
                    e("v_mfma_f32_16x16x32_bf16 %s, %s, %s, %s" % (vr(8 + 4 * ct, 4), vr(36 + 4 * m, 4), vr(48 + 4 * k, 4), c))
                    k += 1
        self.nop(8)
        for row in range(1, 4):
            e("s_mov_b32 exec_lo, 0x%x" % (0xffff0000 if row == 1 else 0))
            e("s_mov_b32 exec_hi, 0x%x" % (0 if row == 1 else (0xffff << (16 * (row - 2)))))
            e("v_mov_b32 v8, v%d" % (8 + 4 * row))
            if row < 3:
                e("v_mov_b32 v24, v%d" % (24 + 4 * row))
        e("s_mov_b64 exec, -1")
        e("v_mov_b32 v41, -2"); e("v_min_u32 v8, v8, v41"); e("v_min_u32 v24, v24, v41")
        e("s_mul_i32 s%d, s%d, %d" % (sT0, sIdx, M2_SLOT)); e("s_mul_i32 s%d, s%d, 0x%x" % (sT1, sPass, M2_R)); e("s_mul_i32 s%d, s%d, 448" % (sT2, sWave))
        self.addr(sA, pWs, M2, [sT0, sT1, sT2])
        e("v_lshlrev_b32 v40, 2, v%d" % vL)
        e("global_store_dword v40, v8, %s sc1" % sp(sA))
        e("s_mov_b32 exec_hi, 0xffff")
        e("global_store_dword v40, v24, %s offset:256 sc1" % sp(sA))
        e("s_mov_b64 exec, -1")
        self.stamp(9)

    def reduce_waves16(self, src):
        e = self.e
        e("v_and_b32 v14, 15, v%d" % vL); e("v_lshlrev_b32 v14, 2, v14")
        e("s_lshl_b32 s%d, s%d, 6" % (sT0, sWave)); e("s_add_u32 s%d, s%d, %d" % (sT0, sT0, L_RED))
        e("v_add_u32 v15, s%d, v14" % sT0)
        e("ds_write_b32 v15, v%d" % src)
        e("s_waitcnt lgkmcnt(0)")
        e("s_barrier")
        for w in range(4):
            e("ds_read_b32 v%d, v14 offset:%d" % (16 + w, L_RED + w * 64))
        e("s_waitcnt lgkmcnt(0)")
        e("v_add_f32 v16, v16, v17"); e("v_add_f32 v18, v18, v19"); e("v_add_f32 v8, v16, v18")

    def stage_R(self):
        e = self.e
        e("v_lshrrev_b32 v20, 4, v%d" % vL); e("v_lshlrev_b32 v20, 2, v20")
        e("s_cmp_eq_u32 s%d, 0" % sPass); e("s_cbranch_scc0 L_R_r1")
        e("s_lshl_b32 s%d, s%d, 4" % (sT0, sIdx))
        self.addr(sB, pX, 0, [sT0])
        e("s_branch L_R_r2")
        self.lab("L_R_r1")
        e("s_lshr_b32 s%d, s%d, 1" % (sT0, sIdx)); e("s_lshl_b32 s%d, s%d, 7" % (sT0, sT0))
        e("s_and_b32 s%d, s%d, 1" % (sT1, sIdx)); e("s_lshl_b32 s%d, s%d, 4" % (sT1, sT1))
        self.addr(sB, pWs, M5, [sT0, sT1])
        self.lab("L_R_r2")
        e("global_load_dword v21, v20, %s sc1" % sp(sB))
        e("s_lshl_b32 s%d, s%d, 5" % (sT0, sIdx)); e("s_mul_i32 s%d, s%d, 0x%x" % (sT1, sPass, M2_R))
        self.addr(sA, pWs, M2, [sT0, sT1])
        e("v_mul_u32_u24 v8, %d, v%d" % (M2_SLOT, vL))
        self.poll(["global_load_dwordx4 v[32:35], v8, %s sc1" % sp(sA),
                   "global_load_dwordx4 v[36:39], v8, %s offset:16 sc1" % sp(sA)], list(range(32, 40)), 40, "Pa")
        self.stamp(8)
        for d in range(4):
            e("v_permlane32_swap_b32 v%d, v%d" % (32 + d, 36 + d))
        self.nop(1)
        for d in range(4):
            e("v_add_f32 v%d, v%d, v%d" % (32 + d, 32 + d, 36 + d))
        self.nop(2)
        e("v_permlane16_swap_b32 v32, v34"); e("v_permlane16_swap_b32 v33, v35"); self.nop(1)
        e("v_add_f32 v32, v32, v34"); e("v_add_f32 v33, v33, v35")
        for n in (8, 4, 2, 1):
            self.nop(1)
            e("v_add_f32_dpp v32, v32, v32 row_ror:%d row_mask:0xf bank_mask:0xf" % n)
            e("v_add_f32_dpp v33, v33, v33 row_ror:%d row_mask:0xf bank_mask:0xf" % n)
        e("v_cvt_pk_bf16_f32 v34, v32, v33")
        e("v_lshlrev_b32 v32, 16, v34"); e("v_and_b32 v33, 0xffff0000, v34")
        e("v_lshlrev_b32 v35, 16, v21"); e("v_and_b32 v36, 0xffff0000, v21")
        e("v_add_f32 v32, v32, v35"); e("v_add_f32 v33, v33, v36")
        e("v_cvt_pk_bf16_f32 v34, v32, v33")
        e("v_mov_b32 v41, -2"); e("v_min_u32 v34, v34, v41")
        e("s_lshl_b32 s%d, s%d, 13" % (sT0, sPass)); e("s_lshl_b32 s%d, s%d, 7" % (sT1, sIdx))
        self.addr(sA, pWs, M3, [sT0, sT1])
        e("s_mov_b32 exec_lo, 0x00010001"); e("s_mov_b32 exec_hi, 0x00010001")
        e("global_store_dword v20, v34, %s sc1" % sp(sA))
        e("s_mov_b64 exec, -1")
        self.stamp(9)

    def gather_x(self, base_off, slot_shift_mode):
        e = self.e
        e("v_min_u32 v8, 55, v%d" % vL)
        if slot_shift_mode == "M3":
            e("v_lshlrev_b32 v8, 7, v8")
        else:
            e("v_and_b32 v9, 1, v8"); e("v_lshrrev_b32 v8, 1, v8"); e("v_lshlrev_b32 v8, 7, v8"); e("v_lshl_add_u32 v8, v9, 4, v8")
        self.poll(["global_load_dwordx4 v[32:35], v8, %s sc1" % sp(sA)], [32, 33, 34, 35], 36, "Px")

    def stage_B(self):
        e = self.e
        e("s_lshl_b32 s%d, s%d, 13" % (sT0, sPass))
        self.addr(sA, pWs, M3, [sT0])
        self.gather_x(M3, "M3")
        self.stamp(8)
        if self.gapw:
            e("s_barrier")
        self.layernorm_to_vec()
        self.lane_rc()
        e("v_lshlrev_b32 v6, 3, v10"); e("v_add_u32 v6, s%d, v6" % sVec)
        e("v_lshl_add_u32 v7, v10, 2, v11"); e("v_lshlrev_b32 v7, 6, v7")
        e("v_and_b32 v14, 1, v12"); e("v_lshl_add_u32 v7, v14, 3, v7")
        e("v_lshrrev_b32 v14, 1, v12"); e("v_mul_u32_u24 v14, %d, v14" % B_IMG3); e("v_add_u32 v7, v7, v14")
        e("s_lshl_b32 s%d, s%d, 4" % (sT0, sWave)); e("s_add_u32 s%d, s%d, %d" % (sT0, sT0, L_W)); e("v_add_u32 v7, s%d, v7" % sT0)
        self.gemv_chain(14, lambda m: (8 * m, 8 * m + 4), 2048, 1024)
        self.bf16r(8, 8, 9)
        self.nop(1)
        e("v_mov_b32_dpp v10, v8 row_ror:8 row_mask:0xf bank_mask:0xf")
        e("v_mul_f32 v11, 0xbfb8aa3b, v8")
        e("v_exp_f32 v11, v11"); self.nop(1)
        e("v_add_f32 v11, 1.0, v11")
        e("v_rcp_f32 v11, v11"); self.nop(1)
        e("v_mul_f32 v11, v8, v11")
        self.bf16r(11, 11, 12)
        e("v_mul_f32 v11, v11, v10")
        self.nop(1)
        e("v_mov_b32_dpp v12, v11 quad_perm:[1,0,3,2] row_mask:0xf bank_mask:0xf")
        e("v_cvt_pk_bf16_f32 v12, v11, v12")
        e("v_mov_b32 v14, -2"); e("v_min_u32 v12, v12, v14")
        e("s_lshl_b32 s%d, s%d, 13" % (sT0, sPass)); e("s_lshl_b32 s%d, s%d, 7" % (sT1, sIdx)); e("s_lshl_b32 s%d, s%d, 4" % (sT2, sWave))
        self.addr(sA, pWs, M4, [sT0, sT1, sT2])
        e("v_lshlrev_b32 v14, 1, v%d" % vL)
        e("s_mov_b64 exec, 0x55")
        e("global_store_dword v14, v12, %s sc1" % sp(sA))
        e("s_mov_b64 exec, -1")

    def stage_C(self):
        e = self.e
        e("s_lshl_b32 s%d, s%d, 13" % (sT0, sPass)); e("s_lshl_b32 s%d, s%d, 8" % (sT1, sIdx))
        self.addr(sB, pWs, M3, [sT0, sT1])
        e("v_bfe_u32 v20, v%d, 3, 1" % vL); e("v_lshlrev_b32 v20, 7, v20")
        e("v_bfe_u32 v21, v%d, 1, 2" % vL); e("v_lshl_add_u32 v20, v21, 2, v20")
        self.poll(["global_load_dword v22, v20, %s sc1" % sp(sB)], [22], 23, "Pr")
        e("s_lshl_b32 s%d, s%d, 13" % (sT0, sPass)); e("s_mul_i32 s%d, s%d, %d" % (sT1, sWave, 14 * 128))
        self.addr(sA, pWs, M4, [sT0, sT1])
        e("v_min_u32 v8, 55, v%d" % vL)
        e("v_and_b32 v9, 3, v8"); e("v_lshrrev_b32 v8, 2, v8"); e("v_lshlrev_b32 v8, 7, v8"); e("v_lshl_add_u32 v8, v9, 4, v8")
        self.poll(["global_load_dwordx4 v[32:35], v8, %s sc1" % sp(sA)], [32, 33, 34, 35], 36, "Ph")
        self.stamp(8)
        e("v_lshlrev_b32 v8, 4, v%d" % vL); e("v_add_u32 v8, s%d, v8" % sVec)
        e("ds_write_b128 v8, v[32:35]")
        self.lane_rc()
        e("v_lshlrev_b32 v6, 3, v10"); e("v_add_u32 v6, s%d, v6" % sVec)
        e("s_mul_i32 s%d, s%d, %d" % (sT0, sWave, C_WAVE)); e("s_add_u32 s%d, s%d, %d" % (sT0, sT0, L_W))
        e("v_lshl_add_u32 v7, v10, 2, v11"); e("v_lshlrev_b32 v7, 5, v7"); e("v_lshl_add_u32 v7, v12, 3, v7"); e("v_add_u32 v7, s%d, v7" % sT0)
        e("s_waitcnt lgkmcnt(0)")
        self.gemv_chain(14, lambda m: (8 * m, 8 * m + 4), 1024, 512)
        self.reduce_waves16(8)
        e("s_cmp_eq_u32 s%d, 0" % sWave); e("s_cbranch_scc0 L_C_done")
        self.bf16r(8, 8, 9)
        e("v_and_b32 v23, 1, v%d" % vL); e("v_cmp_eq_u32 vcc, 1, v23")
        e("v_lshlrev_b32 v23, 16, v22"); e("v_and_b32 v22, 0xffff0000, v22")
        e("v_cndmask_b32 v22, v23, v22, vcc")
        e("v_add_f32 v8, v8, v22")
        self.nop(1)
        e("v_mov_b32_dpp v9, v8 quad_perm:[1,0,3,2] row_mask:0xf bank_mask:0xf")
        e("v_cvt_pk_bf16_f32 v9, v8, v9")
        e("v_lshlrev_b32 v14, 1, v%d" % vL)
        e("s_cmp_eq_u32 s%d, 0" % sPass); e("s_cbranch_scc0 L_C_out")
        e("v_mov_b32 v15, -2"); e("v_min_u32 v9, v9, v15")
        e("s_lshl_b32 s%d, s%d, 7" % (sT1, sIdx))
        self.addr(sA, pWs, M5, [sT1])
        e("s_mov_b64 exec, 0x5555")
        e("global_store_dword v14, v9, %s sc1" % sp(sA))
        e("s_mov_b64 exec, -1")
        e("s_branch L_C_done")
        self.lab("L_C_out")
        e("s_lshl_b32 s%d, s%d, 5" % (sT1, sIdx))
        self.addr(sA, pOut, 0, [sT1])
        e("s_mov_b64 exec, 0x5555")
        e("global_store_dword v14, v9, %s" % sp(sA))
        e("s_mov_b64 exec, -1")
        self.lab("L_C_done")


    def poll2(self, mk_loads, n, sets, dst, name="Q", sleep=0):
        e = self.e
        A, B = sets
        nl = len(mk_loads(A))
        L = self.nl(name); DA = self.nl(name + "a"); DB = self.nl(name + "b"); D = self.nl(name + "d")
        def check(base, target):
            rr = list(range(base, base + n))
            t = self.ptmp
            if n == 1:
                t = base
            else:
                if n >= 3:
                    e("v_max3_u32 v%d, v%d, v%d, v%d" % (t, rr[0], rr[1], rr[2])); rr = rr[3:]
                else:
                    e("v_max_u32 v%d, v%d, v%d" % (t, rr[0], rr[1])); rr = rr[2:]
                while rr:
                    if len(rr) >= 2:
                        e("v_max3_u32 v%d, v%d, v%d, v%d" % (t, t, rr[0], rr[1])); rr = rr[2:]
                    else:
                        e("v_max_u32 v%d, v%d, v%d" % (t, t, rr[0])); rr = rr[1:]
            e("v_cmp_eq_u32 vcc, -1, v%d" % t)
            e("s_cbranch_vccz %s" % target)
        e("s_mov_b32 s%d, 0" % sSpin)
        for ld in mk_loads(A): e(ld)
        self.lab(L)
        for ld in mk_loads(B): e(ld)
        e("s_waitcnt vmcnt(%d)" % nl)
        check(A, DA)
        for ld in mk_loads(A): e(ld)
        e("s_waitcnt vmcnt(%d)" % nl)
        check(B, DB)
        if sleep:
            e("s_sleep %d" % sleep)
        e("s_add_u32 s%d, s%d, 1" % (sSpin, sSpin))
        e("s_cmp_lt_u32 s%d, %d" % (sSpin, SPIN_LIMIT))
        e("s_cbranch_scc1 %s" % L)
        e("s_waitcnt vmcnt(0)")
        self.lab(DA)
        for i in range(n): e("v_mov_b32 v%d, v%d" % (dst + i, A + i))
        e("s_branch %s" % D)
        self.lab(DB)
        for i in range(n): e("v_mov_b32 v%d, v%d" % (dst + i, B + i))
        self.lab(D)

    ptmp = 31

    def rc2(self):
        e = self.e
        e("v_lshrrev_b32 v28, 4, v%d" % vL); e("v_bfe_u32 v29, v%d, 2, 2" % vL); e("v_and_b32 v30, 3, v%d" % vL)

    @property
    def NPRE(self):
        return 7 if self.o.get('stamps') else 8

    def breg(self, m):
        return 32 + 4 * (m % self.NPRE)

    def b_issue(self, lq, m, b_step, b_second):
        r = self.breg(m)
        lq.issue("ds_read_b64_tr_b16 v[%d:%d], v7 offset:%d" % (r, r + 1, m * b_step), ("B", m))
        lq.issue("ds_read_b64_tr_b16 v[%d:%d], v7 offset:%d" % (r + 2, r + 3, m * b_step + b_second), ("B", m))

    def chain2(self, lq, n, b_step, b_second, acc=16):
        e = self.e
        Ab = [20, 24, 28]
        def a_issue(m):
            lq.issue("ds_read2_b64 v[%d:%d], v6 offset0:%d offset1:%d" % (Ab[m % 3], Ab[m % 3] + 3, 8 * m, 8 * m + 4), ("A", m))
        for m in range(3):
            a_issue(m)
        for m in range(n):
            lq.wait([("A", m), ("B", m)])
            c = "0" if m == 0 else vr(acc, 4)
            e("v_mfma_f32_16x16x32_bf16 %s, %s, %s, %s" % (vr(acc, 4), vr(Ab[m % 3], 4), vr(self.breg(m), 4), c))
            if m + 3 < n:
                a_issue(m + 3)
            if m + self.NPRE < n:
                self.b_issue(lq, m + self.NPRE, b_step, b_second)
        self.nop(8)

    def ln2(self):
        e = self.e
        F = 20
        e("v_cmp_gt_u32 vcc, 56, v%d" % vL)
        for d in range(4):
            e("v_lshlrev_b32 v%d, 16, v%d" % (F + 2 * d, 16 + d))
            e("v_and_b32 v%d, 0xffff0000, v%d" % (F + 2 * d + 1, 16 + d))
        e("v_pk_add_f32 v[28:29], v[20:21], v[22:23]")
        e("v_pk_mul_f32 v[30:31], v[20:21], v[20:21]")
        e("v_pk_add_f32 v[16:17], v[24:25], v[26:27]")
        e("v_pk_fma_f32 v[30:31], v[22:23], v[22:23], v[30:31]")
        e("v_pk_add_f32 v[28:29], v[28:29], v[16:17]")
        e("v_pk_fma_f32 v[30:31], v[24:25], v[24:25], v[30:31]")
        e("v_add_f32 v28, v28, v29")
        e("v_pk_fma_f32 v[30:31], v[26:27], v[26:27], v[30:31]")
        e("v_cndmask_b32 v28, 0, v28, vcc")
        e("v_add_f32 v30, v30, v31")
        e("v_cndmask_b32 v30, 0, v30, vcc")
        for n in (8, 4, 2, 1):
            self.nop(1)
            e("v_add_f32_dpp v28, v28, v28 row_ror:%d row_mask:0xf bank_mask:0xf" % n)
            e("v_add_f32_dpp v30, v30, v30 row_ror:%d row_mask:0xf bank_mask:0xf" % n)
        for sw in ("v_permlane16_swap_b32", "v_permlane32_swap_b32"):
            e("v_mov_b32 v29, v28"); e("v_mov_b32 v31, v30"); self.nop(1)
            e("%s v28, v29" % sw); e("%s v30, v31" % sw)
            e("v_add_f32 v28, v28, v29"); e("v_add_f32 v30, v30, v31")
        e("v_mul_f32 v28, 0x3b124925, v28")
        e("v_mul_f32 v30, 0x3b124925, v30")
        e("v_cvt_pk_bf16_f32 v29, v28, v28")
        e("v_fma_f32 v30, -v28, v28, v30")
        e("v_and_b32 v28, 0xffff0000, v29")
        e("v_max_f32 v30, 0, v30")
        e("v_cvt_pk_bf16_f32 v31, v30, v30")
        e("v_pk_add_f32 v[20:21], v[20:21], v[28:29] op_sel_hi:[1,0] neg_lo:[0,1] neg_hi:[0,1]")
        e("v_and_b32 v30, 0xffff0000, v31")
        e("v_pk_add_f32 v[22:23], v[22:23], v[28:29] op_sel_hi:[1,0] neg_lo:[0,1] neg_hi:[0,1]")
        e("v_add_f32 v30, 0x3727c5ac, v30")
        e("v_pk_add_f32 v[24:25], v[24:25], v[28:29] op_sel_hi:[1,0] neg_lo:[0,1] neg_hi:[0,1]")
        e("v_cvt_pk_bf16_f32 v31, v30, v30")
        e("v_pk_add_f32 v[26:27], v[26:27], v[28:29] op_sel_hi:[1,0] neg_lo:[0,1] neg_hi:[0,1]")
        e("v_and_b32 v30, 0xffff0000, v31")
        e("v_cvt_pk_bf16_f32 v16, v20, v21")
        e("v_sqrt_f32 v30, v30")
        e("v_cvt_pk_bf16_f32 v17, v22, v23")
        e("v_cvt_pk_bf16_f32 v18, v24, v25")
        e("v_cvt_pk_bf16_f32 v31, v30, v30")
        e("v_cvt_pk_bf16_f32 v19, v26, v27")
        e("v_and_b32 v30, 0xffff0000, v31")
        e("v_lshlrev_b32 v20, 16, v16")
        e("v_rcp_f32 v30, v30")
        e("v_and_b32 v21, 0xffff0000, v16")
        for d in range(1, 4):
            e("v_lshlrev_b32 v%d, 16, v%d" % (F + 2 * d, 16 + d))
            e("v_and_b32 v%d, 0xffff0000, v%d" % (F + 2 * d + 1, 16 + d))
        for d in range(4):
            e("v_pk_mul_f32 v[%d:%d], v[%d:%d], v[30:31] op_sel_hi:[1,0]" % (F + 2 * d, F + 2 * d + 1, F + 2 * d, F + 2 * d + 1))
        for d in range(4):
            e("v_cvt_pk_bf16_f32 v%d, v%d, v%d" % (16 + d, F + 2 * d, F + 2 * d + 1))
        e("ds_write_b128 v5, v[16:19]")
        e("s_waitcnt lgkmcnt(0)")

    def prepBD(self, role):
        e = self.e
        self.rc2()
        e("v_lshlrev_b32 v6, 3, v28"); e("v_add_u32 v6, s%d, v6" % sVec)
        e("v_lshlrev_b32 v5, 4, v%d" % vL); e("v_add_u32 v5, s%d, v5" % sVec)
        e("v_lshl_add_u32 v7, v28, 2, v29")
        if role == "D":
            e("v_bfe_u32 v31, v7, 1, 2"); e("v_xor_b32 v31, s%d, v31" % sWave)
            e("v_lshlrev_b32 v7, 7, v7"); e("v_lshl_add_u32 v7, v31, 5, v7"); e("v_lshl_add_u32 v7, v30, 3, v7"); e("v_add_u32 v7, %d, v7" % L_W)
            st = (4096, 2048)
        elif role == "B":
            e("v_lshlrev_b32 v7, 6, v7")
            e("v_and_b32 v31, 1, v30"); e("v_lshl_add_u32 v7, v31, 3, v7")
            e("v_lshrrev_b32 v31, 1, v30"); e("v_mul_u32_u24 v31, %d, v31" % B_IMG3); e("v_add_u32 v7, v7, v31")
            e("s_lshl_b32 s%d, s%d, 4" % (sT0, sWave)); e("s_add_u32 s%d, s%d, %d" % (sT0, sT0, L_W)); e("v_add_u32 v7, s%d, v7" % sT0)
            st = (2048, 1024)
        else:
            e("s_mul_i32 s%d, s%d, %d" % (sT0, sWave, C_WAVE)); e("s_add_u32 s%d, s%d, %d" % (sT0, sT0, L_W))
            e("v_lshlrev_b32 v7, 5, v7"); e("v_lshl_add_u32 v7, v30, 3, v7"); e("v_add_u32 v7, s%d, v7" % sT0)
            st = (1024, 512)
        lq = LQ(self)
        for m in range(self.NPRE):
            self.b_issue(lq, m, st[0], st[1])
        return lq, st

    def poll_x2(self, mode):
        e = self.e
        e("v_min_u32 v19, 55, v%d" % vL)
        if mode == "M3":
            e("v_lshlrev_b32 v19, 7, v19")
        else:
            e("v_and_b32 v18, 1, v19"); e("v_lshrrev_b32 v19, 1, v19"); e("v_lshlrev_b32 v19, 7, v19"); e("v_lshl_add_u32 v19, v18, 4, v19")
        e("v_mov_b32 v29, v19")
        self.poll2(lambda b: ["global_load_dwordx4 v[%d:%d], v29, %s sc1" % (b, b + 3, sp(sA))], 4, (8, 12), 16, "Qx")

    def publish_pairs(self, val, tmp, base_pair, off_vreg, mask):
        e = self.e
        e("v_mov_b32_dpp v%d, v%d quad_perm:[1,0,3,2] row_mask:0xf bank_mask:0xf" % (tmp, val))
        e("v_cvt_pk_bf16_f32 v%d, v%d, v%d" % (tmp, val, tmp))
        e("v_min_u32 v%d, v%d, v%d" % (tmp, tmp, 27))
        e("s_mov_b64 exec, 0x%x" % mask)
        e("global_store_dword v%d, v%d, %s sc1" % (off_vreg, tmp, sp(base_pair)))
        e("s_mov_b64 exec, -1")

    def wait_leftover(self):
        e = self.e
        a = self.nl("Lwl"); b = self.nl("Lwl")
        e("s_cmp_eq_u32 s%d, 0" % sWave); e("s_cbranch_scc1 %s" % a)
        e("s_waitcnt vmcnt(0)"); e("s_branch %s" % b)
        self.lab(a); e("s_waitcnt vmcnt(1)"); self.lab(b)

    def publish_wg(self, val, tmp, base_pair, nper, mask):
        e = self.e
        sk = self.nl("Lpw")
        e("v_mov_b32_dpp v%d, v%d quad_perm:[1,0,3,2] row_mask:0xf bank_mask:0xf" % (tmp, val))
        e("s_mul_i32 s%d, s%d, %d" % (sT0, sWave, nper * 4)); e("s_add_u32 s%d, s%d, %d" % (sT0, sT0, L_RED))
        e("v_cvt_pk_bf16_f32 v%d, v%d, v%d" % (tmp, val, tmp))
        e("v_lshlrev_b32 v26, 1, v%d" % vL); e("v_add_u32 v26, s%d, v26" % sT0)
        e("v_min_u32 v%d, v%d, v%d" % (tmp, tmp, 27))
        e("s_mov_b64 exec, 0x%x" % mask)
        e("ds_write_b32 v26, v%d" % tmp)
        e("s_mov_b64 exec, -1")
        e("v_lshlrev_b32 v26, 2, v%d" % vL)
        e("s_waitcnt lgkmcnt(0)")
        e("s_barrier")
        e("s_cmp_eq_u32 s%d, 0" % sWave); e("s_cbranch_scc0 %s" % sk)
        e("ds_read_b32 v%d, v26 offset:%d" % (tmp, L_RED))
        e("s_mov_b64 exec, 0x%x" % ((1 << (4 * nper)) - 1) if 4 * nper < 32 else "s_mov_b32 exec_hi, 0")
        e("s_waitcnt lgkmcnt(0)")
        e("global_store_dword v26, v%d, %s sc1" % (tmp, sp(base_pair)))
        e("s_mov_b64 exec, -1")
        self.lab(sk)

    def stageD2_prep(self):
        self.lqD, self.stD = self.prepBD("D")

    def stageD2_rest(self):
        e = self.e
        lq = LQ(self); lq.q = [("B", m) for m in range(self.NPRE) for _ in range(2)]
        self.ln2(); lq.q = []
        self.chain2(lq, 14, 4096, 2048)
        e("v_mov_b32 v27, -2")
        if self.onest:
            self.publish_wg(16, 25, sB, 8, 0x5555)
        else:
            e("v_lshlrev_b32 v26, 1, v%d" % vL)
            self.publish_pairs(16, 25, sB, 26, 0x5555)

    def stage_B2(self):
        e = self.e
        e("s_waitcnt vmcnt(0)"); e("s_barrier")
        self.stamp(11)
        lq, st = self.prepBD("B")
        e("s_lshl_b32 s%d, s%d, 13" % (sT0, sPass)); e("s_lshl_b32 s%d, s%d, 7" % (sT1, sIdx)); e("s_lshl_b32 s%d, s%d, 4" % (sT2, sWave))
        self.addr(sB, pWs, M4, [sT0, sT1] if self.onest else [sT0, sT1, sT2])
        self.addr(sA, pWs, M3, [sT0])
        self.poll_x2("M3")
        self.stamp(8)
        self.ln2(); lq.q = []
        self.chain2(lq, 14, st[0], st[1])
        e("v_cvt_pk_bf16_f32 v17, v16, v16"); e("v_and_b32 v16, 0xffff0000, v17")
        e("v_mul_f32 v19, 0xbfb8aa3b, v16")
        e("v_exp_f32 v19, v19")
        e("v_mov_b32_dpp v18, v16 row_ror:8 row_mask:0xf bank_mask:0xf")
        e("v_add_f32 v19, 1.0, v19")
        e("v_rcp_f32 v19, v19"); e("v_mov_b32 v27, -2")
        e("v_mul_f32 v19, v16, v19")
        e("v_cvt_pk_bf16_f32 v17, v19, v19"); e("v_and_b32 v19, 0xffff0000, v17")
        e("v_mul_f32 v19, v19, v18")
        if self.onest:
            self.nop(2)
            self.publish_wg(19, 25, sB, 4, 0x55)
            self.stamp(9)
            self.wait_leftover()
        else:
            e("v_lshlrev_b32 v26, 1, v%d" % vL); self.nop(1)
            self.publish_pairs(19, 25, sB, 26, 0x55)
            self.stamp(9)
            e("s_waitcnt vmcnt(1)")

    def stage_C2(self):
        e = self.e
        e("s_waitcnt vmcnt(0)")
        self.stamp(11)
        lq, st = self.prepBD("C")
        e("s_lshl_b32 s%d, s%d, 13" % (sT0, sPass)); e("s_lshl_b32 s%d, s%d, 8" % (sT1, sIdx))
        self.addr(sB, pWs, M3, [sT0, sT1])
        e("v_bfe_u32 v20, v%d, 3, 1" % vL); e("v_lshlrev_b32 v20, 7, v20")
        e("v_bfe_u32 v21, v%d, 1, 2" % vL); e("v_lshl_add_u32 v20, v21, 2, v20")
        self.poll(["global_load_dword v22, v20, %s sc1" % sp(sB)], [22], 23, "Pr")
        self.stamp(12)
        e("v_and_b32 v23, 1, v%d" % vL); e("v_cmp_eq_u32 vcc, 1, v23")
        e("v_lshlrev_b32 v23, 16, v22"); e("v_and_b32 v22, 0xffff0000, v22")
        e("v_cndmask_b32 v22, v23, v22, vcc")
        e("v_and_b32 v23, 15, v%d" % vL); e("v_lshlrev_b32 v23, 2, v23")
        e("ds_write_b32 v23, v22 offset:%d" % (L_RED + 256))
        lq.q.append(("S", 0))
        e("s_lshl_b32 s%d, s%d, 13" % (sT0, sPass)); e("s_mul_i32 s%d, s%d, %d" % (sT1, sWave, 14 * 128))
        self.addr(sA, pWs, M4, [sT0, sT1])
        e("v_min_u32 v29, 55, v%d" % vL)
        e("v_and_b32 v28, 3, v29"); e("v_lshrrev_b32 v29, 2, v29"); e("v_lshlrev_b32 v29, 7, v29"); e("v_lshl_add_u32 v29, v28, 4, v29")
        e("s_cmp_eq_u32 s%d, 0" % sPass)
        e("s_lshl_b32 s%d, s%d, 7" % (sT1, sIdx)); e("s_lshl_b32 s%d, s%d, 5" % (sT2, sIdx))
        lo = self.nl("Lco"); ld = self.nl("Lcod")
        e("s_cmp_eq_u32 s%d, 0" % sPass); e("s_cbranch_scc0 %s" % lo)
        self.addr(sB, pWs, M5, [sT1]); e("s_branch %s" % ld)
        self.lab(lo); self.addr(sB, pOut, 0, [sT2]); self.lab(ld)
        self.poll2(lambda b: ["global_load_dwordx4 v[%d:%d], v29, %s sc1" % (b, b + 3, sp(sA))], 4, (8, 12), 16, "Qh")
        self.stamp(8)
        e("ds_write_b128 v5, v[16:19]")
        e("s_waitcnt lgkmcnt(0)"); lq.q = []
        self.chain2(lq, 14, st[0], st[1])
        e("v_and_b32 v20, 15, v%d" % vL); e("v_lshlrev_b32 v20, 2, v20")
        e("s_lshl_b32 s%d, s%d, 6" % (sT0, sWave)); e("s_add_u32 s%d, s%d, %d" % (sT0, sT0, L_RED))
        e("v_add_u32 v21, s%d, v20" % sT0)
        e("ds_write_b32 v21, v16")
        e("s_waitcnt lgkmcnt(0)")
        e("s_barrier")
        lz = self.nl("Lcz")
        e("s_cmp_eq_u32 s%d, 0" % sWave); e("s_cbranch_scc0 %s" % lz)
        for w in range(4):
            e("ds_read_b32 v%d, v20 offset:%d" % (22 + w, L_RED + w * 64))
        e("ds_read_b32 v21, v20 offset:%d" % (L_RED + 256))
        e("v_mov_b32 v27, -2"); e("v_lshlrev_b32 v26, 1, v%d" % vL)
        e("s_waitcnt lgkmcnt(0)")
        e("v_add_f32 v22, v22, v23"); e("v_add_f32 v24, v24, v25"); e("v_add_f32 v16, v22, v24")
        e("v_cvt_pk_bf16_f32 v17, v16, v16"); e("v_and_b32 v16, 0xffff0000, v17")
        e("v_add_f32 v16, v16, v21")
        self.nop(1)
        self.publish_pairs(16, 25, sB, 26, 0x5555)
        le = self.nl("Lce")
        self.stamp(9)
        e("s_waitcnt vmcnt(1)"); e("s_branch %s" % le)
        self.lab(lz)
        e("s_waitcnt vmcnt(0)")
        self.lab(le)


    def stage_O2(self):
        e = self.e
        self.rc2()
        e("v_lshlrev_b32 v6, 3, v28"); e("v_add_u32 v6, s%d, v6" % sVec)
        e("v_lshl_add_u32 v7, v28, 2, v29"); e("v_mul_u32_u24 v7, %d, v7" % O_ROW); e("v_lshl_add_u32 v7, v30, 3, v7")
        e("s_mul_i32 s%d, s%d, 224" % (sT0, sWave)); e("s_add_u32 s%d, s%d, %d" % (sT0, sT0, L_W)); e("v_add_u32 v7, s%d, v7" % sT0)
        e("v_and_b32 v5, 15, v%d" % vL); e("v_lshlrev_b32 v5, 3, v5")
        e("v_lshrrev_b32 v9, 5, v%d" % vL); e("v_lshl_add_u32 v5, v9, 2, v5"); e("v_add_u32 v5, s%d, v5" % sVec)
        e("s_mul_i32 s%d, s%d, %d" % (sT0, sIdx, M2_SLOT)); e("s_mul_i32 s%d, s%d, 0x%x" % (sT1, sPass, M2_R)); e("s_lshl_b32 s%d, s%d, 9" % (sT2, sWave))
        self.addr(sB, pWs, M2, [sT0, sT1, sT2])
        e("s_mul_i32 s%d, s%d, %d" % (sT0, sIdx, 16 * M1_SLOT)); e("s_mul_i32 s%d, s%d, 0x%x" % (sT1, sPass, M1_R))
        self.addr(sA, pWs, M1 + 2304, [sT0, sT1])
        e("v_mul_u32_u24 v10, %d, v28" % M1_SLOT)
        e("v_and_b32 v11, 15, v%d" % vL); e("v_lshl_add_u32 v11, v11, 4, v10")
        e("v_add_u32 v10, 256, v10")
        e("s_mov_b32 s%d, 0x%x" % (sT3, C_EXP))
        loads = []
        for j in range(4):
            off = j * 4 * M1_SLOT - 2304
            loads.append("global_load_dwordx2 v[%d:%d], v10, %s offset:%d sc1" % (48 + 2 * j, 49 + 2 * j, sp(sA), off))
            loads.append("global_load_dwordx4 v[%d:%d], v11, %s offset:%d sc1" % (32 + 4 * j, 35 + 4 * j, sp(sA), off))
        self.poll(loads, list(range(32, 56)), 56, "Ps1")
        self.stamp(8)
        e("v_max3_f32 v56, v48, v50, v52"); e("v_max_f32 v56, v56, v54")
        for sw in ("v_permlane16_swap_b32", "v_permlane32_swap_b32"):
            e("v_mov_b32 v57, v56"); self.nop(2); e("%s v56, v57" % sw); e("v_max_f32 v56, v56, v57")
        for j in range(4):
            e("v_sub_f32 v%d, v%d, v56" % (48 + 2 * j, 48 + 2 * j))
        for j in range(4):
            e("v_mul_f32 v%d, s%d, v%d" % (48 + 2 * j, sT3, 48 + 2 * j))
        for j in range(4):
            e("v_exp_f32 v%d, v%d" % (48 + 2 * j, 48 + 2 * j))
        self.nop(1)
        e("v_mul_f32 v56, v48, v49")
        e("v_pk_mul_f32 v[32:33], v[32:33], v[48:49] op_sel_hi:[1,0]"); e("v_pk_mul_f32 v[34:35], v[34:35], v[48:49] op_sel_hi:[1,0]")
        for j in range(1, 4):
            e("v_fmac_f32 v56, v%d, v%d" % (48 + 2 * j, 49 + 2 * j))
            e("v_pk_fma_f32 v[32:33], v[%d:%d], v[%d:%d], v[32:33] op_sel_hi:[1,0,1]" % (32 + 4 * j, 33 + 4 * j, 48 + 2 * j, 49 + 2 * j))
            e("v_pk_fma_f32 v[34:35], v[%d:%d], v[%d:%d], v[34:35] op_sel_hi:[1,0,1]" % (34 + 4 * j, 35 + 4 * j, 48 + 2 * j, 49 + 2 * j))
        e("v_mov_b32 v57, v56"); self.nop(1)
        e("v_permlane32_swap_b32 v32, v34"); e("v_permlane32_swap_b32 v33, v35"); e("v_permlane32_swap_b32 v56, v57")
        e("v_add_f32 v32, v32, v34"); e("v_add_f32 v33, v33, v35"); e("v_add_f32 v56, v56, v57")
        e("v_mov_b32 v34, v32"); e("v_mov_b32 v35, v33"); e("v_mov_b32 v57, v56"); self.nop(1)
        e("v_permlane16_swap_b32 v32, v34"); e("v_permlane16_swap_b32 v33, v35"); e("v_permlane16_swap_b32 v56, v57")
        e("v_add_f32 v56, v56, v57"); e("v_add_f32 v32, v32, v34"); e("v_rcp_f32 v56, v56"); e("v_add_f32 v33, v33, v35")
        self.nop(1)
        e("v_pk_mul_f32 v[32:33], v[32:33], v[56:57] op_sel_hi:[1,0]")
        e("v_cvt_pk_bf16_f32 v32, v32, v33")
        lq = LQ(self)
        lq.issue("ds_write_b32 v5, v32", "W")
        if self.o.get("dbg_a"):
            e("s_lshl_b32 s%d, s%d, 13" % (sT0, sPass)); e("s_lshl_b32 s%d, s%d, 7" % (sT1, sIdx))
            self.addr(sA, pWs, 0xC0000, [sT0, sT1])
            e("v_subrev_u32 v35, s%d, v5" % sVec)
            e("global_store_dword v35, v32, %s" % sp(sA))
        steps = [(ct, m) for ct in range(7) for m in range(2)]
        def b_iss(k):
            ct, m = steps[k]; r = 44 + 4 * (k % 5)
            lq.issue("ds_read_b64_tr_b16 v[%d:%d], v7 offset:%d" % (r, r + 1, m * 32 * O_ROW + ct * 32), ("B", k))
            lq.issue("ds_read_b64_tr_b16 v[%d:%d], v7 offset:%d" % (r + 2, r + 3, (m * 32 + 16) * O_ROW + ct * 32), ("B", k))
        for k in range(5):
            b_iss(k)
        lq.wait(["W"])
        lq.issue("ds_read2_b64 v[36:39], v6 offset0:0 offset1:4", "A"); lq.issue("ds_read2_b64 v[40:43], v6 offset0:8 offset1:12", "A")
        for k, (ct, m) in enumerate(steps):
            lq.wait([("B", k), "A"])
            acc = [12, 16, 20, 24, 28, 32, 8][ct]
            c = "0" if m == 0 else vr(acc, 4)
            e("v_mfma_f32_16x16x32_bf16 %s, %s, %s, %s" % (vr(acc, 4), vr(36 + 4 * m, 4), vr(44 + 4 * (k % 5), 4), c))
            if k + 5 < len(steps):
                b_iss(k + 5)
        self.nop(8)
        for row in range(1, 4):
            e("s_mov_b32 exec_lo, 0x%x" % (0xffff0000 if row == 1 else 0))
            e("s_mov_b32 exec_hi, 0x%x" % (0 if row == 1 else (0xffff << (16 * (row - 2)))))
            e("v_mov_b32 v12, v%d" % (12 + 4 * row))
            if row < 3:
                e("v_mov_b32 v28, v%d" % (32 if row == 1 else 8))
        e("s_mov_b64 exec, -1")
        e("v_mov_b32 v41, -2"); e("v_lshlrev_b32 v42, 2, v%d" % vL); e("v_min_u32 v12, v12, v41"); e("v_min_u32 v28, v28, v41")
        e("global_store_dword v42, v12, %s sc1" % sp(sB))
        e("s_mov_b32 exec_hi, 0xffff")
        e("global_store_dword v42, v28, %s offset:256 sc1" % sp(sB))
        e("s_mov_b64 exec, -1")
        self.stamp(9)

    def stage_R2(self):
        e = self.e
        e("v_lshrrev_b32 v24, 4, v%d" % vL); e("v_lshlrev_b32 v24, 2, v24")
        e("s_cmp_eq_u32 s%d, 0" % sPass); e("s_cbranch_scc0 L_R_r1")
        e("s_lshl_b32 s%d, s%d, 4" % (sT0, sIdx))
        self.addr(sB, pX, 0, [sT0])
        e("s_branch L_R_r2")
        self.lab("L_R_r1")
        e("s_lshr_b32 s%d, s%d, 1" % (sT0, sIdx)); e("s_lshl_b32 s%d, s%d, 7" % (sT0, sT0))
        e("s_and_b32 s%d, s%d, 1" % (sT1, sIdx)); e("s_lshl_b32 s%d, s%d, 4" % (sT1, sT1))
        self.addr(sB, pWs, M5, [sT0, sT1])
        self.lab("L_R_r2")
        e("global_load_dword v25, v24, %s sc1" % sp(sB))
        e("s_lshl_b32 s%d, s%d, 13" % (sT0, sPass)); e("s_lshl_b32 s%d, s%d, 7" % (sT1, sIdx))
        self.addr(sB, pWs, M3, [sT0, sT1])
        e("s_mul_i32 s%d, s%d, 4682" % (sT2, sIdx)); e("s_lshr_b32 s%d, s%d, 16" % (sT2, sT2))
        e("s_mul_i32 s%d, s%d, 14" % (sT3, sT2)); e("s_sub_u32 s%d, s%d, s%d" % (sT3, sIdx, sT3))
        e("s_lshl_b32 s%d, s%d, 9" % (sT2, sT2)); e("s_lshl_b32 s%d, s%d, 5" % (sT3, sT3)); e("s_add_u32 s%d, s%d, s%d" % (sT0, sT2, sT3))
        e("s_mul_i32 s%d, s%d, 0x%x" % (sT1, sPass, M2_R))
        self.addr(sA, pWs, M2, [sT0, sT1])
        e("v_mul_u32_u24 v29, %d, v%d" % (M2_SLOT, vL)); e("v_mov_b32 v41, -2")
        self.poll2(lambda b: ["global_load_dwordx4 v[%d:%d], v29, %s sc1" % (b, b + 3, sp(sA)),
                              "global_load_dwordx4 v[%d:%d], v29, %s offset:16 sc1" % (b + 4, b + 7, sp(sA))], 8, (8, 16), 32, "Qr")
        self.stamp(8)
        self.nop(1)
        for d in range(4):
            e("v_permlane32_swap_b32 v%d, v%d" % (32 + d, 36 + d))
        e("v_pk_add_f32 v[32:33], v[32:33], v[36:37]"); e("v_pk_add_f32 v[34:35], v[34:35], v[38:39]")
        self.nop(2)
        e("v_permlane16_swap_b32 v32, v34"); e("v_permlane16_swap_b32 v33, v35")
        e("v_pk_add_f32 v[32:33], v[32:33], v[34:35]")
        for n in (8, 4, 2, 1):
            self.nop(1 if n == 8 else 1)
            if n == 8: self.nop(1)
            e("v_add_f32_dpp v32, v32, v32 row_ror:%d row_mask:0xf bank_mask:0xf" % n)
            e("v_add_f32_dpp v33, v33, v33 row_ror:%d row_mask:0xf bank_mask:0xf" % n)
        e("v_cvt_pk_bf16_f32 v34, v32, v33")
        e("v_lshlrev_b32 v35, 16, v25"); e("v_and_b32 v36, 0xffff0000, v25")
        e("v_lshlrev_b32 v32, 16, v34"); e("v_and_b32 v33, 0xffff0000, v34")
        e("v_add_f32 v32, v32, v35"); e("v_add_f32 v33, v33, v36")
        e("v_cvt_pk_bf16_f32 v34, v32, v33")
        e("v_min_u32 v34, v34, v41")
        e("s_mov_b32 exec_lo, 0x00010001"); e("s_mov_b32 exec_hi, 0x00010001")
        e("global_store_dword v24, v34, %s sc1" % sp(sB))
        e("s_mov_b64 exec, -1")
        self.stamp(9)
        e("s_waitcnt vmcnt(1)")


    def probe_near(self):
        e = self.e
        sk = self.nl("Lpr"); lp = self.nl("Lprl"); bar = self.nl("Lprb")
        N = max(self.alN, 1)
        NP = int(self.o.get("nprobe", 5 if N <= 2 else 4))
        e("s_cmp_eq_u32 s%d, 0" % sPass); e("s_cbranch_scc0 %s" % sk)
        e("s_and_b32 s%d, s%d, 3" % (sT5, sIdx)); e("s_cmp_lt_u32 s%d, 2" % sT5); e("s_cbranch_scc0 %s" % sk)
        e("s_waitcnt vmcnt(0)")
        e("s_cmp_eq_u32 s%d, 0" % sWave); e("s_cbranch_scc0 %s" % bar)
        e("s_cmp_eq_u32 s%d, 1" % sT5)
        e("s_cselect_b32 s%d, s%d, s%d" % (sA, sVB, sKB)); e("s_cselect_b32 s%d, s%d, s%d" % (sA + 1, sVB + 1, sKB + 1))
        e("s_lshr_b32 s%d, s%d, 2" % (sT0, sIdx)); e("s_lshl_b32 s%d, s%d, 4" % (sT0, sT0))
        e("s_and_b32 s%d, s2, 7" % sT1); e("s_xor_b32 s%d, s%d, 4" % (sT1, sT1)); e("s_add_u32 s%d, s%d, s%d" % (sRho, sT0, sT1))
        e("s_mov_b32 s%d, s%d" % (sT0, sRho)); e("s_sub_i32 s%d, s%d, s2" % (sT1, sT0)); e("s_lshl_b32 s%d, s%d, 20" % (sT1, sT1)); e("s_add_i32 s%d, s%d, 3072" % (sT1, sT1))
        e("s_ashr_i32 s%d, s%d, 31" % (sT2, sT1))
        e("s_add_u32 s%d, s%d, s%d" % (sA, sA, sT1)); e("s_addc_u32 s%d, s%d, s%d" % (sA + 1, sA + 1, sT2))
        e("s_mul_i32 s%d, s%d, %d" % (sT4, sT0, self.stag)); e("s_and_b32 s%d, s%d, 63" % (sT4, sT4)); e("s_mul_i32 s%d, s%d, %d" % (sT4, sT4, self.stride))
        e("s_cmp_eq_u32 s%d, 1" % sT5); e("s_cselect_b32 s%d, 65, 29" % sT0)
        e("s_lshr_b32 s%d, s%d, 3" % (sT1, sRho)); e("s_add_u32 s%d, s%d, s%d" % (sT0, sT0, sT1)); e("s_add_u32 s%d, s%d, 32" % (sT0, sT0))
        e("s_sub_u32 s%d, 0, s%d" % (sT0, sT0)); e("s_and_b32 s%d, s%d, %d" % (sT0, sT0, N - 1)); e("s_add_u32 s%d, s%d, 32" % (sT0, sT0))
        e("s_mul_i32 s%d, s%d, %d" % (sT0, sT0, self.stride)); e("s_add_u32 s%d, s%d, s%d" % (sT1, sT4, sT0)); e("s_and_b32 s%d, s%d, 0x%x" % (sT1, sT1, 64 * self.stride - 1))
        if self.ilv:
            lk = self.nl("Lprk")
            e("s_mov_b32 s%d, %d" % (sEx, N * self.stride))
            e("s_cmp_eq_u32 s%d, 1" % sT5); e("s_cbranch_scc0 %s" % lk)
            e("s_lshr_b32 s%d, s%d, 3" % (sT1, sRho)); e("s_add_u32 s%d, s%d, %d" % (sT1, sT1, 93 + 2))
            e("s_sub_u32 s%d, 0, s%d" % (sT1, sT1)); e("s_and_b32 s%d, s%d, %d" % (sT1, sT1, N - 1)); e("s_add_u32 s%d, s%d, 2" % (sT1, sT1))
            e("s_and_b32 s%d, s%d, 1" % (sT0, sT1)); e("s_lshl_b32 s%d, s%d, 1" % (sT1, sT1)); e("s_sub_u32 s%d, s%d, s%d" % (sT1, sT1, sT0)); e("s_add_u32 s%d, s%d, 10" % (sT1, sT1))
            e("s_mul_i32 s%d, s%d, %d" % (sT1, sT1, self.stride)); e("s_add_u32 s%d, s%d, s%d" % (sT1, sT1, sT4)); e("s_and_b32 s%d, s%d, 0x%x" % (sT1, sT1, 64 * self.stride - 1))
            e("s_mov_b32 s%d, %d" % (sEx, 2 * N * self.stride))
            self.lab(lk)
        e("s_mov_b32 s%d, -1" % sT2); e("s_mov_b32 s%d, -1" % sT3); e("s_mov_b32 s%d, %d" % (sT0, NP))
        self.lab(lp)
        for par, acc in ((0, sT2), (1, sT3)):
            e("s_add_u32 s%d, s%d, %d" % (sT4, sT1, par * 8192 + 1024)); e("v_mov_b32 v8, s%d" % sT4)
            e("s_memtime s[90:91]"); e("s_waitcnt lgkmcnt(0)"); e("s_mov_b32 s%d, s90" % sT4)
            e("global_load_dword v9, v8, %s nt" % sp(sA))
            e("s_waitcnt vmcnt(0)")
            e("s_memtime s[90:91]"); e("s_waitcnt lgkmcnt(0)")
            e("s_sub_u32 s%d, s90, s%d" % (sT4, sT4)); e("s_min_u32 s%d, s%d, s%d" % (acc, acc, sT4))
        if self.ilv:
            e("s_add_u32 s%d, s%d, s%d" % (sT1, sT1, sEx))
        else:
            e("s_add_u32 s%d, s%d, %d" % (sT1, sT1, N * self.stride))
        e("s_and_b32 s%d, s%d, 0x%x" % (sT1, sT1, 64 * self.stride - 1))
        e("s_sub_u32 s%d, s%d, 1" % (sT0, sT0)); e("s_cmp_lg_u32 s%d, 0" % sT0); e("s_cbranch_scc1 %s" % lp)
        e("s_lshr_b32 s%d, s%d, 1" % (sT0, sRho)); e("s_lshr_b32 s%d, s2, 2" % sT1); e("s_xor_b32 s%d, s%d, s%d" % (sT0, sT0, sT1)); e("s_and_b32 s%d, s%d, 1" % (sT0, sT0))
        e("s_cmp_gt_u32 s%d, s%d" % (sT2, sT3)); e("s_cselect_b32 s%d, 1, 0" % sT1); e("s_xor_b32 s%d, s%d, s%d" % (sT1, sT1, sT0))
        if self.o.get("dbg_probe"):
            e("s_lshr_b32 s%d, s%d, 3" % (sT2, sT2)); e("s_min_u32 s%d, s%d, 0x3ff" % (sT2, sT2)); e("s_lshl_b32 s%d, s%d, 2" % (sT2, sT2))
            e("s_lshr_b32 s%d, s%d, 3" % (sT3, sT3)); e("s_min_u32 s%d, s%d, 0x3ff" % (sT3, sT3)); e("s_lshl_b32 s%d, s%d, 12" % (sT3, sT3))
            e("s_or_b32 s%d, s%d, s%d" % (sT1, sT1, sT2)); e("s_or_b32 s%d, s%d, s%d" % (sT1, sT1, sT3))
        e("v_mov_b32 v8, s%d" % sT1)
        e("s_lshr_b32 s%d, s%d, 2" % (sT0, sIdx)); e("s_lshl_b32 s%d, s%d, 7" % (sT0, sT0)); e("s_lshl_b32 s%d, s%d, 2" % (sT1, sT5))
        self.addr(sB, pWs, M8, [sT0, sT1])
        e("v_mov_b32 v9, 0")
        e("s_mov_b64 exec, 1")
        e("global_store_dword v9, v8, %s sc1" % sp(sB))
        e("s_mov_b64 exec, -1")
        self.lab(bar)
        e("s_barrier")
        self.lab(sk)


    def emit_issue_sub(self):
        e = self.e
        mask = 64 * self.stride - 1
        t0, t1, t2 = sOf2, sT0 + 0, sT0 + 0
        self.lab("L_issue")
        e("s_mov_b32 m0, s%d" % sSlot)
        e("s_add_u32 s%d, s%d, 4096" % (sSlot, sSlot))
        e("s_cmp_eq_u32 s%d, s%d" % (sSlot, sRe))
        e("s_cselect_b32 s%d, s%d, s%d" % (sSlot, sRs, sSlot))
        X, Y = 90, 91
        e("s_mov_b32 s%d, s%d" % (X, sJ))
        e("s_cmp_eq_u32 s%d, 0" % sIsV); e("s_cbranch_scc1 L_is_k")
        e("s_and_b32 s%d, s%d, 1" % (Y, sJ)); e("s_lshl_b32 s%d, s%d, 1" % (X, sJ)); e("s_sub_u32 s%d, s%d, s%d" % (X, X, Y)); e("s_add_u32 s%d, s%d, s%d" % (X, X, sVadd))
        e("s_bitcmp1_b32 s%d, 31" % sVadd); e("s_cbranch_scc1 L_is_vres")
        e("s_add_u32 s%d, s%d, 28" % (Y, sJ)); e("s_cmp_ge_u32 s%d, 20" % sJ); e("s_cselect_b32 s%d, s%d, s%d" % (X, Y, X))
        e("s_branch L_is_v2")
        self.lab("L_is_vres")
        e("s_cmp_lt_u32 s%d, 8" % sJ); e("s_cselect_b32 s%d, s%d, s%d" % (X, sJ, X))
        self.lab("L_is_v2")
        e("s_cmp_eq_u32 s%d, 2" % sNM); e("s_cbranch_scc1 L_is_near")
        e("s_branch L_is_own")
        self.lab("L_is_k")
        e("s_cmp_eq_u32 s%d, 1" % sNM); e("s_cbranch_scc0 L_is_own")
        e("s_cmp_ge_u32 s%d, 48" % sJ); e("s_cbranch_scc1 L_is_knear")
        e("s_cmp_lt_u32 s%d, 10" % sJ); e("s_cbranch_scc1 L_is_kown")
        e("s_bitcmp1_b32 s%d, 1" % sJ); e("s_cbranch_scc1 L_is_knear")
        self.lab("L_is_kown")
        e("s_mov_b32 s%d, s%d" % (sCUR, sKB)); e("s_mov_b32 s%d, s%d" % (sCUR + 1, sKB + 1))
        self.lab("L_is_own")
        e("s_lshl_b32 s%d, s%d, 11" % (Y, X)); e("s_xor_b32 s%d, s%d, s%d" % (Y, Y, sWb)); e("s_and_b32 s%d, s%d, 8192" % (Y, Y))
        e("s_lshl_b32 s%d, s%d, 14" % (X, X)); e("s_add_u32 s%d, s%d, s%d" % (X, X, sRot)); e("s_and_b32 s%d, s%d, 0x%x" % (X, X, mask)); e("s_add_u32 s%d, s%d, s%d" % (sOf2, X, Y))
        e("s_branch L_is_go")
        self.lab("L_is_knear")
        e("s_mov_b32 s%d, s%d" % (sCUR, sKN)); e("s_mov_b32 s%d, s%d" % (sCUR + 1, sKN + 1))
        self.lab("L_is_near")
        e("s_lshl_b32 s%d, s%d, 14" % (X, X)); e("s_add_u32 s%d, s%d, s%d" % (X, X, sRotN)); e("s_and_b32 s%d, s%d, 0x%x" % (sOf2, X, mask))
        self.lab("L_is_go")
        e("s_add_u32 s%d, s%d, 1" % (sAc, sAc)); e("s_and_b32 s%d, s%d, %d" % (sAc, sAc, self.alN - 1))
        e("s_cmp_lt_u32 s%d, s%d" % (sAc, sAlloc))
        e("s_cbranch_scc1 L_is_alloc")
        for k in range(4):
            e("buffer_load_dwordx4 v%d, %s, s%d offen offset:%d nt lds" % (vo[k], sp(sCUR, 4), sOf2, k * 1024))
        e("s_branch L_is_done")
        self.lab("L_is_alloc")
        for k in range(4):
            e("buffer_load_dwordx4 v%d, %s, s%d offen offset:%d lds" % (vo[k], sp(sCUR, 4), sOf2, k * 1024))
        self.lab("L_is_done")
        e("s_add_u32 s%d, s%d, 1" % (sJ, sJ))
        e("s_cmp_lg_u32 s%d, s%d" % (sJ, sLen)); e("s_cbranch_scc0 L_is_next")
        e("s_setpc_b64 %s" % sp(sRet))
        self.lab("L_is_next")
        e("s_add_u32 s%d, s%d, 1" % (sSeg, sSeg))
        e("s_mov_b32 s%d, s%d" % (sJ, sZ)); e("s_mov_b32 s%d, s%d" % (sAlloc, sZ)); e("s_mov_b32 s%d, s%d" % (sNM, sZ))
        e("s_cmp_eq_u32 s%d, 5" % sSeg); e("s_cbranch_scc1 L_is_end")
        e("s_bitcmp1_b32 s%d, 0" % sSeg); e("s_cbranch_scc0 L_is_v")
        e("s_mov_b32 s%d, s%d" % (sIsV, sZ)); e("s_add_u32 s%d, s%d, 64" % (sLen, sZ))
        e("s_mov_b32 s%d, s%d" % (sCUR, sKB)); e("s_mov_b32 s%d, s%d" % (sCUR + 1, sKB + 1))
        e("s_cmp_eq_u32 s%d, 1" % sSeg)
        e("s_cselect_b32 s%d, %d, 0" % (sAlloc, self.alM)); e("s_cselect_b32 s%d, 0, 1" % sNM)
        e("s_add_u32 s%d, s%d, s%d" % (sAlloc, sAlloc, sZ)); e("s_add_u32 s%d, s%d, s%d" % (sNM, sNM, sZ))
        self.kpat()
        e("s_setpc_b64 %s" % sp(sRet))
        self.lab("L_is_v")
        e("s_add_u32 s%d, s%d, 1" % (sIsV, sZ)); e("s_add_u32 s%d, s%d, %d" % (sLen, sZ, 2 * NSTR_T)); e("s_add_u32 s%d, s%d, 10" % (sVadd, sZ))
        e("s_cmp_eq_u32 s%d, 2" % sSeg)
        e("s_cselect_b32 s%d, %d, 0" % (sAlloc, self.alM if self.alV else 0)); e("s_cselect_b32 s%d, 0, 2" % sNM)
        e("s_cselect_b32 s%d, s%d, s%d" % (sCUR, sVB, sVN)); e("s_cselect_b32 s%d, s%d, s%d" % (sCUR + 1, sVB + 1, sVN + 1))
        e("s_add_u32 s%d, s%d, s%d" % (sAlloc, sAlloc, sZ)); e("s_add_u32 s%d, s%d, s%d" % (sNM, sNM, sZ))
        self.vpat()
        e("s_setpc_b64 %s" % sp(sRet))
        self.lab("L_is_end")
        e("s_mov_b32 s%d, 0" % (sCUR + 2)); e("s_mov_b32 s%d, s%d" % (sIsV, sZ)); e("s_sub_u32 s%d, s%d, 1" % (sLen, sZ))
        e("s_setpc_b64 %s" % sp(sRet))

    def build(self):
        e = self.e
        self.prologue()
        self.dbg_span(2)
        self.stamp(0)
        self.weights_setup('start')
        if self.ilv:
            e("s_lshr_b32 s%d, s%d, 1" % (sWb, sWave)); e("s_lshl_b32 s%d, s%d, 13" % (sWb, sWb))
            e("v_mov_b32 v9, 0"); e("s_nop 0"); e("v_readfirstlane_b32 s%d, v9" % sZ); e("s_nop 3")
            e("s_mov_b32 s%d, s%d" % (sJ, sZ)); e("s_add_u32 s%d, s%d, %d" % (sLen, sZ, 2 * NRES_T)); e("s_add_u32 s%d, s%d, 1" % (sIsV, sZ))
            e("s_mov_b32 s%d, s%d" % (sNM, sZ)); e("s_sub_u32 s%d, s%d, 8" % (sVadd, sZ)); e("s_mov_b32 s%d, s%d" % (sSeg, sZ)); e("s_mov_b32 s%d, s%d" % (sAlloc, sZ))
            e("s_add_u32 s%d, s%d, s%d" % (sSlot, sSlot, sZ))
        elif self.swz:
            e("s_mov_b32 s%d, 0" % sN); e("s_lshr_b32 s%d, s%d, 1" % (sWb, sWave)); e("s_lshl_b32 s%d, s%d, 13" % (sWb, sWb)); e("s_mov_b32 s%d, 8192" % sSwM)
        e("v_min_u32 v9, 55, v%d" % vL); e("v_lshlrev_b32 v9, 4, v9")
        xr = 16 if int(self.o.get("gap2", 1)) else 32
        e("global_load_dwordx4 v[%d:%d], v9, %s" % (xr, xr + 3, sp(pX)))
        self.clear_mailboxes()
        for u in range(self.R):
            self.group(u)
        self.stamp(1)
        self.p1a()
        self.stamp(2)
        self.lab("L_pass")
        self.gather_q()
        self.dbg_span_pass(6)
        self.stamp(3)
        self.kphase()
        self.stamp(4)
        self.softmax()
        self.vphase()
        self.stamp(5)
        self.combine_publish()
        self.dbg_span_pass(4)
        self.stamp(6)
        g2 = int(self.o.get("gap2", 1))
        e("s_cmp_eq_u32 s%d, 1" % sRole); e("s_cbranch_scc1 L_roleO")
        e("s_cmp_eq_u32 s%d, 4" % sRole); e("s_cbranch_scc1 L_roleD")
        if self.gapw:
            lw = self.nl("Lgw")
            e("s_cmp_eq_u32 s%d, 0" % sPass); e("s_cbranch_scc0 %s" % lw)
            e("s_cmp_eq_u32 s%d, 0" % sRole); e("s_cbranch_scc1 %s" % lw)
            self.weights_setup('gap')
            for i in range(14):
                self.xop(i)
            self.lab(lw)
        e("s_cmp_eq_u32 s%d, 2" % sRole); e("s_cbranch_scc1 L_roleB")
        e("s_cmp_eq_u32 s%d, 3" % sRole); e("s_cbranch_scc1 L_roleC")
        self.topup()
        self.l2pf_ilv(int(self.o.get("pfN", 0)))
        e("s_branch L_next")
        self.lab("L_roleO")
        self.stage_O2() if g2 else self.stage_S1()
        if self.p2n == 2:
            self.probe_near()
            self.topup(2)
            self.l2pf_ilv(int(self.o.get("pfO", 0)))
        else:
            self.topup()
        e("s_branch L_next")
        self.lab("L_roleB")
        if g2:
            self.stage_B2(); self.topup(); self.l2pf_ilv(int(self.o.get("pfB", 0)))
        else:
            self.topup(); self.stage_B()
        e("s_branch L_next")
        self.lab("L_roleC")
        if g2:
            self.stage_C2(); self.topup(int(self.o.get("tpaceC", 0)))
        else:
            self.topup(); self.stage_C()
        e("s_branch L_next")
        self.lab("L_roleD")
        e("s_cmp_eq_u32 s%d, 0" % sWave); e("s_cbranch_scc0 L_D_rdone")
        e("s_cmp_lt_u32 s%d, 56" % sIdx); e("s_cbranch_scc0 L_D_rdone")
        self.stage_R2() if g2 else self.stage_R()
        self.lab("L_D_rdone")
        self.topup()
        self.l2pf_ilv(int(self.o.get("pfD", 0)))
        e("s_cmp_eq_u32 s%d, 0" % sPass); e("s_cbranch_scc0 L_next")
        if g2:
            e("s_call_b64 %s, L_stageD_prep" % sp(sRet2))
            self.addr(sA, pWs, M5)
            self.poll_x2("M5")
            self.stamp(10)
            e("s_lshl_b32 s%d, s%d, 7" % (sT0, sIdx)); e("s_lshl_b32 s%d, s%d, 5" % (sT1, sWave))
            self.addr(sB, pWs, M6 + MR, [sT0] if self.onest else [sT0, sT1])
            e("s_call_b64 %s, L_stageD_rest" % sp(sRet2))
            if self.onest:
                self.wait_leftover()
            else:
                e("s_waitcnt vmcnt(1)")
        else:
            self.addr(sA, pWs, M5)
            self.gather_x(M5, "M5")
            self.stamp(10)
            self.addr(sA, pWs, M6 + MR)
            e("s_call_b64 %s, L_stageD" % sp(sRet2))
        self.lab("L_next")
        self.stamp(7)
        e("s_add_u32 s%d, s%d, 1" % (sPass, sPass))
        e("s_cmp_lt_u32 s%d, 2" % sPass)
        e("s_cbranch_scc1 L_pass")
        self.dump_stamps()
        self.dbg_span(3)
        e("s_waitcnt vmcnt(0)")
        self.lab("L_end")
        e("s_endpgm")
        if int(self.o.get("gap2", 1)):
            self.lab("L_stageD_prep")
            self.stageD2_prep()
            e("s_setpc_b64 %s" % sp(sRet2))
            self.lab("L_stageD_rest")
            self.stageD2_rest()
            e("s_setpc_b64 %s" % sp(sRet2))
        else:
            self.lab("L_stageD")
            self.stage_D(None)
            e("s_setpc_b64 %s" % sp(sRet2))
        if self.ilv:
            self.emit_issue_sub()
        else:
            self.emit_switch()
        self.lab("L_endcode")
        e("s_endpgm")
        return self.a.text()


HEADER = """; Persistent fused decode kernel: [attn -> mlp] x2, V tiles kept resident in registers across the two attention passes.
; @launch grid=(256,1,1) block=(256,1,1) lds=%d
.amdgcn_target "amdgcn-amd-amdhsa--gfx950"
.text
.globl %s
.p2align 8
.type %s,@function
%s:
"""
FOOTER = """.section .rodata,"a"
.p2align 6
.amdhsa_kernel %s
  .amdhsa_next_free_vgpr 512
  .amdhsa_next_free_sgpr 102
  .amdhsa_accum_offset 256
  .amdhsa_group_segment_fixed_size 0
  .amdhsa_kernarg_size 96
  .amdhsa_user_sgpr_count 2
  .amdhsa_user_sgpr_kernarg_segment_ptr 1
  .amdhsa_system_sgpr_workgroup_id_x 1
  .amdhsa_float_denorm_mode_32 3
.end_amdhsa_kernel
"""


def generate(opt=None):
    opt = opt or {}
    g = Gen(opt)
    body = g.build()
    return HEADER % (LDS_TOTAL, KNAME, KNAME, KNAME) + body + FOOTER % KNAME


if __name__ == "__main__":
    out = sys.argv[1] if len(sys.argv) > 1 else "gen/kernel.s"
    opt = {}
    for kv in sys.argv[2:]:
        k, v = kv.split("=")
        opt[k] = v
    open(out, "w").write(generate(opt))
    print("wrote", out)
```

```python
import sys, os
sys.path.insert(0, os.path.dirname(os.path.abspath(__file__)))
from asmlib import Asm

KNAME = "interleave_layers__mha_block_cached__glu_gated_swiglu__decode_kernel"

L_Q = 0
L_Z = 2176
L_SM = 2688
L_RED = 2752
L_ST = 2048
L_P = 3072
L_W = 7168
LDS_TOTAL = 163840
RING_NONE = 7168
RING_ROLE = 65536
O_ROW = 912
B_IMG3 = 28704
C_WAVE = 14336

M1 = 0x0; M1_R = 0x60000; M1_SLOT = 384
M2 = 0x100000; M2_R = 0x20000; M2_SLOT = 2048; M3 = 0xC4000; M4 = 0xC8000; M5 = 0xCC000; M6 = 0xCE000; MR = 0x2000
DBG = 0x200000

NRES_PAIRS = 7
NRES_T = 2 * NRES_PAIRS
NSTR_T = 32 - NRES_T
STRIDE = 16384
SPIN_LIMIT = 1 << 18
C_EXP = 0x3DB8AA3B
LOG2E = 0x3FB8AA3B

sW, sWave = 2, 3
pX, pK, pV, pWq, pWo, pW1, pW3, pW2, pOut, pDbg, pWs = 8, 10, 12, 14, 16, 20, 22, 24, 26, 28, 30
sKB, sVB = 32, 34
sCUR = 36
sSlot, sRs, sRe, sOff, sLeft, sSeg, sCs, sPass = 40, 41, 42, 43, 44, 45, 46, 47
sRole, sIdx, sH, sC, sNS, sVec, sWl, sSpin = 48, 49, 50, 51, 52, 53, 54, 55
sM = [56, 58, 60, 62]
sMd, sRet, sEx = 64, 66, 68
sT0, sT1, sT2, sT3, sT4, sT5 = 70, 71, 72, 73, 74, 75
sA = 76
sB = 78
sT15 = 80
sRho = 19
sWS = 84
sRet2 = 88
sWlds, sWlstep, sWoff, sWoff0, sWstep = 94, 95, 96, 97, 98
sAlloc = 99
sQok = 100
sJ, sLen, sIsV, sNM, sVadd = 43, 44, 16, 14, 54
sZ = 81
sN, sWb, sSwM, sOf2 = 16, 17, 14, 15
sKN, sVN, sRotN, sXch, sTm0, sTm1 = 10, 12, 0, 1, 16, 17
M7 = 0x300000
M8 = 0xD2000
sAc = 93
sRot = 101
sWo2 = 4
sWlds0, sWwrap = 6, 7
sWex = 82

vL = 0
vo = [1, 2, 3, 4]
vPh, vAd, vPa = 5, 6, 7
vSC = 8
vACC = 16
vLsum = 8
vW = 12


def sp(r, n=2):
    return "s[%d:%d]" % (r, r + n - 1)


def vr(r, n):
    return "v[%d:%d]" % (r, r + n - 1) if n > 1 else "v%d" % r


def res_reg(m, t, hh=None):
    base = m * 64 + 4 * t
    if m < 3:
        b = 64 + base; p = "v"
    else:
        b = base - 192; p = "a"
    if hh is None:
        return "%s[%d:%d]" % (p, b, b + 3)
    return "%s[%d:%d]" % (p, b + 2 * hh, b + 2 * hh + 1)


def res_T(k):
    return k if k < 4 else 2 * k - 4


def str_T(i):
    return 5 + 2 * i if i < 10 else i + 14


class LQ:
    def __init__(self, g):
        self.g = g; self.q = []
    def issue(self, instr, tag):
        self.g.e(instr); self.q.append(tag)
    def wait(self, tags):
        idx = [i for i, t in enumerate(self.q) if t in tags]
        if not idx:
            return
        last = max(idx)
        n = len(self.q) - 1 - last
        self.g.e("s_waitcnt lgkmcnt(%d)" % min(n, 15))
        self.q = self.q[last + 1:] if n <= 15 else self.q[len(self.q) - 15:]
    def drain(self):
        if self.q:
            self.g.e("s_waitcnt lgkmcnt(0)")
        self.q = []


class Gen:
    def __init__(self, opt):
        self.o = opt
        self.near = int(opt.get("near", 0))
        self.stride = 32768 if self.near else 16384
        self.stag = int(opt.get("stag", 0))
        self.l2pf = int(opt.get("l2pf", 0))
        self.l2pol = opt.get("l2pol", " nt")
        self.wpf = int(opt.get("wpf", 1))
        self.gapw = int(opt.get("gapw", 1))
        self.R = int(opt.get("R", 2))
        self.onest = int(opt.get("onest", 1))
        self.q1w = int(opt.get("q1w", 0))
        self.ilv = int(opt.get("ilv", 0))
        self.swz = int(opt.get("swz", 0)) or int(opt.get("ilv", 0))
        self.klin = int(opt.get("klin", 0))
        self.p2n = int(opt.get("p2n", 0))
        self.alN = int(opt.get("alN", 0))
        self.alM = int(opt.get("alM", 0))
        self.alV = int(opt.get("alV", 1))
        self.kalloc = int(opt.get("kalloc", 0))
        self.a = Asm()
        self.e = self.a.e

    def lab(self, n):
        self.a.label(n)

    def nl(self, b="L"):
        return self.a.newlabel(b)

    def nop(self, n):
        if n > 0:
            self.e("s_nop %d" % (n - 1))

    def bf16r(self, dst, src, tmp):
        self.e("v_cvt_pk_bf16_f32 v%d, v%d, v%d" % (tmp, src, src))
        self.e("v_and_b32 v%d, 0xffff0000, v%d" % (dst, tmp))

    def allreduce16(self, x, op):
        e = self.e
        for n in (8, 4, 2, 1):
            self.nop(2)
            e("%s_dpp v%d, v%d, v%d row_ror:%d row_mask:0xf bank_mask:0xf" % (op, x, x, x, n))

    def xrows(self, x, tmp, op):
        e = self.e
        e("v_mov_b32 v%d, v%d" % (tmp, x)); self.nop(2)
        e("v_permlane16_swap_b32 v%d, v%d" % (x, tmp)); self.nop(1)
        e("%s v%d, v%d, v%d" % (op, x, x, tmp))
        e("v_mov_b32 v%d, v%d" % (tmp, x)); self.nop(2)
        e("v_permlane32_swap_b32 v%d, v%d" % (x, tmp)); self.nop(1)
        e("%s v%d, v%d, v%d" % (op, x, x, tmp))

    def allreduce64(self, x, tmp, op):
        self.allreduce16(x, op)
        self.xrows(x, tmp, op)

    def poll(self, loads, regs, tmp, name="P"):
        e = self.e
        L = self.nl(name); D = self.nl(name + "d")
        e("s_mov_b32 s%d, 0" % sSpin)
        self.lab(L)
        for ld in loads:
            e(ld)
        e("s_waitcnt vmcnt(0)")
        rr = list(regs)
        if len(rr) == 1:
            t = rr[0]
        else:
            first = True
            while rr:
                if first:
                    if len(rr) >= 3:
                        e("v_max3_u32 v%d, v%d, v%d, v%d" % (tmp, rr[0], rr[1], rr[2])); rr = rr[3:]
                    else:
                        e("v_max_u32 v%d, v%d, v%d" % (tmp, rr[0], rr[1])); rr = rr[2:]
                    first = False
                elif len(rr) >= 2:
                    e("v_max3_u32 v%d, v%d, v%d, v%d" % (tmp, tmp, rr[0], rr[1])); rr = rr[2:]
                else:
                    e("v_max_u32 v%d, v%d, v%d" % (tmp, tmp, rr[0])); rr = rr[1:]
            t = tmp
        e("v_cmp_eq_u32 vcc, -1, v%d" % t)
        e("s_cbranch_vccz %s" % D)
        e("s_add_u32 s%d, s%d, 1" % (sSpin, sSpin))
        e("s_cmp_lt_u32 s%d, %d" % (sSpin, SPIN_LIMIT))
        e("s_cbranch_scc1 %s" % L)
        self.lab(D)

    def addr(self, dst, base, off_imm=0, off_sregs=()):
        e = self.e
        if off_imm:
            e("s_add_u32 s%d, s%d, 0x%x" % (dst, base, off_imm))
        else:
            e("s_add_u32 s%d, s%d, 0" % (dst, base))
        e("s_addc_u32 s%d, s%d, 0" % (dst + 1, base + 1))
        for r in off_sregs:
            e("s_add_u32 s%d, s%d, s%d" % (dst, dst, r))
            e("s_addc_u32 s%d, s%d, 0" % (dst + 1, dst + 1))

    def stamp(self, idx):
        if not self.o.get("stamps"):
            return
        e = self.e
        sk = self.nl("St")
        e("s_cmp_eq_u32 s%d, 0" % sWave); e("s_cbranch_scc0 %s" % sk)
        e("s_memrealtime s[90:91]")
        e("s_waitcnt lgkmcnt(0)")
        e("s_lshl_b32 s92, s%d, 6" % sPass); e("s_add_u32 s92, s92, %d" % (L_ST + idx * 4))
        e("v_mov_b32 v62, s92"); e("v_mov_b32 v63, s90")
        e("ds_write_b32 v62, v63")
        e("s_waitcnt lgkmcnt(0)")
        self.lab(sk)

    def dbg_span(self, first):
        if not self.o.get("span"):
            return
        e = self.e
        sk = self.nl("Sp")
        e("s_cmp_eq_u32 s%d, 0" % sWave); e("s_cbranch_scc0 %s" % sk)
        e("s_memrealtime s[90:91]")
        e("s_waitcnt lgkmcnt(0)")
        if first == 2:
            e("s_not_b32 s90, s90")
        e("v_mov_b32 v62, %d" % (4 * first)); e("v_mov_b32 v63, s90")
        e("s_mov_b64 exec, 1")
        e("global_atomic_umax v62, v63, %s" % sp(pDbg))
        e("s_mov_b64 exec, -1")
        self.lab(sk)

    def dbg_span_pass(self, base):
        if not self.o.get("span"):
            return
        e = self.e
        sk = self.nl("Sp")
        e("s_cmp_eq_u32 s%d, 0" % sWave); e("s_cbranch_scc0 %s" % sk)
        e("s_memrealtime s[90:91]")
        e("s_waitcnt lgkmcnt(0)")
        e("s_lshl_b32 s92, s%d, 2" % sPass); e("s_add_u32 s92, s92, %d" % (4 * base))
        e("v_mov_b32 v62, s92"); e("v_mov_b32 v63, s90")
        e("s_mov_b64 exec, 1")
        e("global_atomic_umax v62, v63, %s" % sp(pDbg))
        e("s_mov_b64 exec, -1")
        e("s_waitcnt vmcnt(0)")
        self.lab(sk)

    def dump_stamps(self):
        if not self.o.get("stamps"):
            return
        e = self.e
        sk = self.nl("Sd")
        e("s_waitcnt vmcnt(0)")
        e("s_cmp_eq_u32 s%d, 0" % sWave); e("s_cbranch_scc0 %s" % sk)
        e("v_and_b32 v8, 31, v%d" % vL); e("v_lshlrev_b32 v8, 2, v8")
        e("ds_read_b32 v9, v8 offset:%d" % L_ST)
        e("s_lshl_b32 s%d, s2, 7" % sT0)
        self.addr(sA, pWs, DBG, [sT0])
        e("s_waitcnt lgkmcnt(0)")
        e("global_store_dword v8, v9, %s" % sp(sA))
        self.lab(sk)

    def issue(self):
        e = self.e
        if self.ilv:
            e("s_call_b64 %s, L_issue" % sp(sRet))
            return
        pol = self.o.get("pol", " nt")
        e("s_mov_b32 m0, s%d" % sSlot)
        e("s_add_u32 s%d, s%d, 4096" % (sSlot, sSlot))
        so = sOff
        if self.swz:
            so = sOf2
            e("s_lshl_b32 s%d, s%d, 12" % (sOf2, sN)); e("s_xor_b32 s%d, s%d, s%d" % (sOf2, sOf2, sWb)); e("s_and_b32 s%d, s%d, s%d" % (sOf2, sOf2, sSwM))
            e("s_add_u32 s%d, s%d, s%d" % (sOf2, sOf2, sOff)); e("s_add_u32 s%d, s%d, 1" % (sN, sN))
        if self.alN:
            la = self.nl("Ia"); ld = self.nl("Id")
            e("s_add_u32 s%d, s%d, 1" % (sAc, sAc)); e("s_and_b32 s%d, s%d, %d" % (sAc, sAc, self.alN - 1))
            e("s_cmp_lt_u32 s%d, s%d" % (sAc, sAlloc))
            e("s_cbranch_scc1 %s" % la)
        if self.kalloc:
            la = self.nl("Ia"); ld = self.nl("Id")
            e("s_cmp_gt_u32 s%d, 0" % sAlloc)
            e("s_cbranch_scc1 %s" % la)
        for s in range(4):
            e("buffer_load_dwordx4 v%d, %s, s%d offen offset:%d%s lds" % (vo[s], sp(sCUR, 4), so, s * 1024, pol))
        if self.kalloc or self.alN:
            e("s_branch %s" % ld)
            self.lab(la)
            for s in range(4):
                e("buffer_load_dwordx4 v%d, %s, s%d offen offset:%d lds" % (vo[s], sp(sCUR, 4), so, s * 1024))
            if self.kalloc:
                e("s_sub_u32 s%d, s%d, 1" % (sAlloc, sAlloc))
            self.lab(ld)
        e("s_cmp_eq_u32 s%d, s%d" % (sSlot, sRe))
        e("s_cselect_b32 s%d, s%d, s%d" % (sSlot, sRs, sSlot))
        e("s_add_u32 s%d, s%d, %d" % (sOff, sOff, self.stride))
        if self.stag:
            e("s_and_b32 s%d, s%d, 0x%x" % (sOff, sOff, 64 * self.stride - 1))
        e("s_sub_u32 s%d, s%d, 1" % (sLeft, sLeft))
        e("s_cmp_lg_u32 s%d, 0" % sLeft)
        sk = self.nl("Isk")
        e("s_cbranch_scc1 %s" % sk)
        e("s_call_b64 %s, L_switch" % sp(sRet))
        self.lab(sk)

    def kpat(self):
        e = self.e
        if self.klin:
            e("v_lshrrev_b32 v%d, 5, v%d" % (vo[1], vL))
            e("v_and_b32 v%d, 31, v%d" % (vo[0], vL)); e("v_xor_b32 v%d, v%d, v%d" % (vo[0], vo[0], vo[1]))
            e("v_lshlrev_b32 v%d, 4, v%d" % (vo[0], vo[0])); e("v_lshl_add_u32 v%d, v%d, 9, v%d" % (vo[0], vo[1], vo[0]))
            e("v_add_u32 v%d, 3072, v%d" % (vo[0], vo[0]))
            for i in range(1, 4):
                e("v_xor_b32 v%d, %d, v%d" % (vo[i], (2 * i) << 4, vo[0]))
            return
        e("v_and_b32 v%d, 7, v%d" % (vo[0], vL))
        e("v_lshlrev_b32 v%d, 9, v%d" % (vo[0], vo[0]))
        e("v_lshrrev_b32 v%d, 3, v%d" % (vo[1], vL))
        e("v_lshl_add_u32 v%d, v%d, 4, v%d" % (vo[0], vo[1], vo[0]))
        self.pat_fin()

    def vpat(self):
        e = self.e
        e("v_bfe_u32 v%d, v%d, 1, 3" % (vo[0], vL))
        e("v_lshlrev_b32 v%d, 9, v%d" % (vo[0], vo[0]))
        e("v_lshrrev_b32 v%d, 4, v%d" % (vo[1], vL))
        e("v_lshl_add_u32 v%d, v%d, 5, v%d" % (vo[0], vo[1], vo[0]))
        e("v_and_b32 v%d, 1, v%d" % (vo[1], vL))
        e("v_lshl_add_u32 v%d, v%d, 4, v%d" % (vo[0], vo[1], vo[0]))
        self.pat_fin()

    def pat_fin(self):
        e = self.e
        e("v_add_u32 v%d, 3072, v%d" % (vo[0], vo[0]))
        for s in range(1, 4):
            e("v_subrev_u32 v%d, %d, v%d" % (vo[s], 896 * s, vo[0]))

    def emit_switch(self):
        if self.p2n:
            return self.emit_switch_p2n()
        e = self.e
        self.lab("L_switch")
        e("s_add_u32 s%d, s%d, 1" % (sSeg, sSeg))
        e("s_cmp_eq_u32 s%d, 5" % sSeg)
        e("s_cbranch_scc1 L_sw_end")
        e("s_bitcmp1_b32 s%d, 0" % sSeg)
        e("s_cbranch_scc0 L_sw_v")
        e("s_mov_b32 s%d, s%d" % (sCUR, sKB)); e("s_mov_b32 s%d, s%d" % (sCUR + 1, sKB + 1))
        e("s_mov_b32 s%d, s%d" % (sOff, sRot)); e("s_mov_b32 s%d, 64" % sLeft)
        if self.kalloc:
            e("s_cmp_eq_u32 s%d, 1" % sSeg)
            e("s_cselect_b32 s%d, %d, 0" % (sAlloc, self.kalloc))
        if self.alN:
            e("s_cmp_eq_u32 s%d, 1" % sSeg)
            e("s_cselect_b32 s%d, %d, 0" % (sAlloc, self.alM))
        self.kpat()
        e("s_setpc_b64 %s" % sp(sRet))
        self.lab("L_sw_v")
        e("s_mov_b32 s%d, s%d" % (sCUR, sVB)); e("s_mov_b32 s%d, s%d" % (sCUR + 1, sVB + 1))
        e("s_add_u32 s%d, s%d, %d" % (sOff, sRot, 2 * NRES_T * self.stride)); e("s_and_b32 s%d, s%d, 0x%x" % (sOff, sOff, 64 * self.stride - 1))
        e("s_mov_b32 s%d, %d" % (sLeft, 2 * NSTR_T))
        if self.alN:
            e("s_cmp_eq_u32 s%d, 2" % sSeg)
            e("s_cselect_b32 s%d, %d, 0" % (sAlloc, self.alM if self.alV else 0))
        self.vpat()
        e("s_setpc_b64 %s" % sp(sRet))
        self.lab("L_sw_end")
        e("s_mov_b32 s%d, 0" % (sCUR + 2))
        e("s_mov_b32 s%d, 0" % sOff); e("s_mov_b32 s%d, 0x7fffffff" % sLeft)
        e("s_setpc_b64 %s" % sp(sRet))

    def emit_switch_p2n(self):
        e = self.e
        mask = 64 * self.stride - 1
        self.lab("L_switch")
        e("s_add_u32 s%d, s%d, 1" % (sSeg, sSeg))
        e("s_mov_b32 s%d, 0" % sAlloc)
        e("s_cmp_eq_u32 s%d, 1" % sSeg); e("s_cbranch_scc1 L_sw_1")
        e("s_cmp_eq_u32 s%d, 2" % sSeg); e("s_cbranch_scc1 L_sw_2")
        e("s_cmp_eq_u32 s%d, 3" % sSeg); e("s_cbranch_scc1 L_sw_3")
        e("s_cmp_eq_u32 s%d, 4" % sSeg); e("s_cbranch_scc1 L_sw_4")
        e("s_cmp_eq_u32 s%d, 5" % sSeg); e("s_cbranch_scc1 L_sw_5")
        e("s_mov_b32 s%d, 0" % (sCUR + 2))
        e("s_mov_b32 s%d, 0" % sOff); e("s_mov_b32 s%d, 0x7fffffff" % sLeft)
        e("s_setpc_b64 %s" % sp(sRet))
        self.lab("L_sw_1")
        e("s_mov_b32 s%d, %d" % (sAlloc, self.alM))
        e("s_mov_b32 s%d, 64" % sLeft)
        e("s_branch L_sw_k")
        self.lab("L_sw_3")
        if self.o.get("dryK2"):
            e("s_mov_b32 s%d, 0" % (sCUR + 2))
        e("s_mov_b32 s%d, %d" % (sLeft, 2 * NRES_T))
        self.lab("L_sw_k")
        e("s_mov_b32 s%d, s%d" % (sCUR, sKB)); e("s_mov_b32 s%d, s%d" % (sCUR + 1, sKB + 1))
        e("s_mov_b32 s%d, s%d" % (sOff, sRot))
        self.kpat()
        e("s_setpc_b64 %s" % sp(sRet))
        self.lab("L_sw_4")
        if self.swz:
            e("s_mov_b32 s%d, 0" % sSwM)
        e("s_mov_b32 s%d, s%d" % (sCUR, sKN)); e("s_mov_b32 s%d, s%d" % (sCUR + 1, sKN + 1))
        e("s_add_u32 s%d, s%d, %d" % (sOff, sRotN, 2 * NRES_T * self.stride)); e("s_and_b32 s%d, s%d, 0x%x" % (sOff, sOff, mask))
        e("s_mov_b32 s%d, %d" % (sLeft, 2 * NSTR_T))
        e("s_setpc_b64 %s" % sp(sRet))
        self.lab("L_sw_2")
        e("s_mov_b32 s%d, %d" % (sAlloc, self.alM if self.alV else 0))
        e("s_mov_b32 s%d, s%d" % (sCUR, sVB)); e("s_mov_b32 s%d, s%d" % (sCUR + 1, sVB + 1))
        e("s_add_u32 s%d, s%d, %d" % (sOff, sRot, 2 * NRES_T * self.stride))
        e("s_branch L_sw_v")
        self.lab("L_sw_5")
        if self.o.get("dryK2"):
            e("s_mov_b32 s%d, %d" % (sCUR + 2, 0 if self.o.get("dryV2") else 3072 + 63 * self.stride + 4096 + 8192))
        e("s_mov_b32 s%d, s%d" % (sCUR, sVN)); e("s_mov_b32 s%d, s%d" % (sCUR + 1, sVN + 1))
        e("s_add_u32 s%d, s%d, %d" % (sOff, sRotN, 2 * NRES_T * self.stride))
        self.lab("L_sw_v")
        e("s_and_b32 s%d, s%d, 0x%x" % (sOff, sOff, mask))
        e("s_mov_b32 s%d, %d" % (sLeft, 2 * NSTR_T))
        self.vpat()
        e("s_setpc_b64 %s" % sp(sRet))

    def now(self, dst, minus=None):
        e = self.e
        e("s_memrealtime s[90:91]"); e("s_waitcnt lgkmcnt(0)")
        if minus is None:
            e("s_mov_b32 s%d, s90" % dst)
        else:
            e("s_sub_u32 s%d, s90, s%d" % (dst, minus))

    def adv_cs(self):
        e = self.e
        e("s_add_u32 s%d, s%d, 8192" % (sCs, sCs))
        e("s_cmp_eq_u32 s%d, s%d" % (sCs, sRe))
        e("s_cselect_b32 s%d, s%d, s%d" % (sCs, sRs, sCs))

    def step_issue(self):
        w = 4 * (self.R - 1)
        self.e("s_waitcnt vmcnt(%d)" % w)
        self.issue()
        self.e("s_waitcnt vmcnt(%d)" % w)
        self.issue()

    def gwait(self, u):
        lo = max(0, u - self.R + 1)
        cnt = sum(4 + (1 if g < self.NX else 0) for g in range(lo, u))
        self.e("s_waitcnt vmcnt(%d)" % cnt)

    NX = 16

    def xop(self, i):
        e = self.e
        if i == 7:
            e("s_cmp_eq_u32 s%d, 2" % sRole)
            e("s_cselect_b32 s%d, s%d, s%d" % (sWS, sWo2, sWS))
            e("s_cselect_b32 s%d, s%d, s%d" % (sWS + 1, sWo2 + 1, sWS + 1))
            e("s_cselect_b32 s%d, s%d, s%d" % (sWoff, sWoff0, sWoff))
            e("s_cselect_b32 s%d, s%d, s%d" % (sWlds, sWlds0, sWlds))
        if 0 < i < 14:
            e("s_cmp_eq_u32 s%d, %d" % (sWwrap, i))
            e("s_cselect_b32 s%d, s%d, s%d" % (sWoff, sWoff0, sWoff))
            e("s_cselect_b32 s%d, s%d, s%d" % (sWlds, sWlds0, sWlds))
        if i == 14:
            e("s_cmp_eq_u32 s%d, 1" % sRole)
            e("s_cselect_b32 s%d, s%d, 0" % (sWS + 2, sWS + 2))
            e("s_cselect_b32 s%d, s%d, s%d" % (sWlds, sWlds, sVec))
            e("s_cselect_b32 s%d, s%d, 0" % (sWlstep, sWlstep))
        e("s_mov_b32 m0, s%d" % sWlds); e("s_add_u32 s%d, s%d, s%d" % (sWlds, sWlds, sWlstep))
        e("s_mov_b64 exec, %s" % sp(sWex))
        e("buffer_load_dwordx4 v%d, %s, s%d offen lds" % (vW, sp(sWS, 4), sWoff))
        e("s_mov_b64 exec, -1")
        e("s_add_u32 s%d, s%d, s%d" % (sWoff, sWoff, sWstep))

    def group(self, u):
        if u >= self.R:
            self.gwait(u)
        self.issue()
        if u < self.NX:
            self.xop(u)

    def prologue(self):
        e = self.e
        e("s_cmp_ge_u32 s2, 256")
        e("s_cbranch_scc1 L_end")
        e("s_load_dwordx16 s[8:23], s[0:1], 0")
        e("s_load_dwordx8 s[24:31], s[0:1], 64")
        e("v_lshrrev_b32 v1, 6, v0")
        e("v_and_b32 v%d, 63, v0" % vL)
        e("s_nop 0")
        e("v_readfirstlane_b32 s%d, v1" % sWave)
        x, r = sT0, sT1
        e("s_and_b32 s%d, s2, 7" % x)
        e("s_lshr_b32 s%d, s2, 3" % r)
        if int(self.o.get("rmap", 0)):
            e("s_mov_b32 s%d, 0" % sRole); e("s_mov_b32 s%d, 0" % sIdx)
            e("s_lshr_b32 s%d, s%d, 1" % (sT2, x))
            e("s_bitcmp1_b32 s%d, 0" % x); e("s_cbranch_scc1 L_rodd")
            e("s_and_b32 s%d, s%d, 15" % (sIdx, r)); e("s_lshl_b32 s%d, s%d, 2" % (sIdx, sIdx)); e("s_add_u32 s%d, s%d, s%d" % (sIdx, sIdx, sT2))
            e("s_cmp_lt_u32 s%d, 16" % r); e("s_cselect_b32 s%d, 1, 4" % sRole)
            e("s_branch L_rdone")
            self.lab("L_rodd")
            e("s_cmp_lt_u32 s%d, 14" % r); e("s_cbranch_scc0 L_rodd2")
            e("s_mov_b32 s%d, 2" % sRole); e("s_mul_i32 s%d, s%d, 14" % (sIdx, sT2)); e("s_add_u32 s%d, s%d, s%d" % (sIdx, sIdx, r))
            e("s_branch L_rdone")
            self.lab("L_rodd2")
            e("s_cmp_lt_u32 s%d, 22" % r); e("s_cbranch_scc0 L_rdone")
            e("s_sub_u32 s%d, s%d, 14" % (sT3, r)); e("s_lshr_b32 s%d, s%d, 2" % (sT4, sT3)); e("s_lshl_b32 s%d, s%d, 2" % (sT4, sT4)); e("s_add_u32 s%d, s%d, s%d" % (sT4, sT4, sT2))
            e("s_cmp_lt_u32 s%d, 7" % sT4); e("s_cbranch_scc0 L_rdone")
            e("s_mov_b32 s%d, 3" % sRole); e("s_and_b32 s%d, s%d, 3" % (sT3, sT3)); e("s_lshl_b32 s%d, s%d, 2" % (sIdx, sT4)); e("s_add_u32 s%d, s%d, s%d" % (sIdx, sIdx, sT3))
        else:
            e("s_mov_b32 s%d, 0" % sRole); e("s_mov_b32 s%d, 0" % sIdx)
            e("s_cmp_lt_u32 s%d, 8" % r); e("s_cbranch_scc0 L_r1")
            e("s_mov_b32 s%d, 1" % sRole); e("s_lshl_b32 s%d, s%d, 3" % (sIdx, r)); e("s_add_u32 s%d, s%d, s%d" % (sIdx, sIdx, x))
            e("s_branch L_rdone")
            self.lab("L_r1")
            e("s_cmp_lt_u32 s%d, 16" % r); e("s_cbranch_scc0 L_r2")
            e("s_sub_u32 s%d, s%d, 8" % (sT2, r))
            e("s_lshr_b32 s%d, s%d, 1" % (sT3, sT2)); e("s_lshl_b32 s%d, s%d, 3" % (sT3, sT3)); e("s_add_u32 s%d, s%d, s%d" % (sT3, sT3, x))
            e("s_cmp_lt_u32 s%d, 28" % sT3); e("s_cbranch_scc0 L_rdone")
            e("s_mov_b32 s%d, 2" % sRole); e("s_and_b32 s%d, s%d, 1" % (sT2, sT2)); e("s_lshl_b32 s%d, s%d, 1" % (sIdx, sT3))
            e("s_add_u32 s%d, s%d, s%d" % (sIdx, sIdx, sT2))
            e("s_branch L_rdone")
            self.lab("L_r2")
            e("s_cmp_lt_u32 s%d, 20" % r); e("s_cbranch_scc0 L_r3")
            e("s_cmp_lt_u32 s%d, 7" % x); e("s_cbranch_scc0 L_rdone")
            e("s_mov_b32 s%d, 3" % sRole); e("s_lshl_b32 s%d, s%d, 2" % (sIdx, x)); e("s_add_u32 s%d, s%d, s%d" % (sIdx, sIdx, r))
            e("s_sub_u32 s%d, s%d, 16" % (sIdx, sIdx))
            e("s_branch L_rdone")
            self.lab("L_r3")
            e("s_cmp_lt_u32 s%d, 28" % r); e("s_cbranch_scc0 L_rdone")
            e("s_mov_b32 s%d, 4" % sRole); e("s_sub_u32 s%d, s%d, 20" % (sIdx, r)); e("s_lshl_b32 s%d, s%d, 3" % (sIdx, sIdx))
            e("s_add_u32 s%d, s%d, s%d" % (sIdx, sIdx, x))
        self.lab("L_rdone")
        e("s_lshr_b32 s%d, s2, 4" % sH); e("s_and_b32 s%d, s2, 15" % sC)
        e("s_mov_b32 s%d, %d" % (sT0, RING_ROLE)); e("s_mov_b32 s%d, 6" % sNS)
        e("s_cmp_eq_u32 s%d, 0" % sRole)
        e("s_cselect_b32 s%d, %d, s%d" % (sT0, RING_NONE, sT0)); e("s_cselect_b32 s%d, 8, s%d" % (sNS, sNS))
        e("s_lshl_b32 s%d, s%d, 12" % (sT1, sNS))
        e("s_mul_i32 s%d, s%d, s%d" % (sT2, sT1, sWave))
        e("s_add_u32 s%d, s%d, s%d" % (sRs, sT0, sT2))
        e("s_add_u32 s%d, s%d, s%d" % (sRe, sRs, sT1))
        e("s_mov_b32 s%d, s%d" % (sSlot, sRs)); e("s_mov_b32 s%d, s%d" % (sCs, sRs))
        e("s_lshl_b32 s%d, s%d, 10" % (sT2, sWave)); e("s_add_u32 s%d, s%d, %d" % (sVec, sT2, L_P))
        e("s_mov_b32 s%d, 0x00010001" % sM[0]); e("s_mov_b32 s%d, 0x00010001" % (sM[0] + 1))
        for u in range(1, 4):
            e("s_lshl_b64 %s, %s, %d" % (sp(sM[u]), sp(sM[0]), u))
        e("s_mov_b32 s%d, 0" % sPass)
        e("s_waitcnt lgkmcnt(0)")
        if not self.near:
            e("s_lshl_b32 s%d, s%d, 4" % (sT0, sH)); e("s_add_u32 s%d, s%d, s%d" % (sT0, sT0, sC))
            e("s_lshl_b32 s%d, s%d, 20" % (sT0, sT0))
            if self.swz:
                e("s_and_b32 s%d, s%d, 1" % (sT1, sWave)); e("s_lshl_b32 s%d, s%d, 12" % (sT1, sT1))
            else:
                e("s_lshl_b32 s%d, s%d, 12" % (sT1, sWave))
            e("s_add_u32 s%d, s%d, s%d" % (sT0, sT0, sT1))
        else:
            e("s_lshl_b32 s%d, s%d, 24" % (sT0, sH))
            e("s_lshr_b32 s%d, s2, 3" % sT1); e("s_and_b32 s%d, s%d, 1" % (sT1, sT1)); e("s_lshl_b32 s%d, s%d, 2" % (sT1, sT1))
            e("s_and_b32 s%d, s2, 3" % sT2); e("s_add_u32 s%d, s%d, s%d" % (sT1, sT1, sT2)); e("s_lshl_b32 s%d, s%d, 21" % (sT1, sT1))
            e("s_add_u32 s%d, s%d, s%d" % (sT0, sT0, sT1))
            e("s_lshr_b32 s%d, s2, 2" % sT1); e("s_xor_b32 s%d, s%d, s2" % (sT1, sT1))
            e("s_xor_b32 s%d, s%d, %d" % (sT1, sT1, int(self.o.get("cpol", 0)))); e("s_and_b32 s%d, s%d, 1" % (sT1, sT1))
            e("s_lshl_b32 s%d, s%d, 13" % (sT1, sT1)); e("s_add_u32 s%d, s%d, s%d" % (sT0, sT0, sT1))
            e("s_and_b32 s%d, s%d, 1" % (sT1, sWave)); e("s_lshl_b32 s%d, s%d, 12" % (sT1, sT1)); e("s_add_u32 s%d, s%d, s%d" % (sT0, sT0, sT1))
            e("s_lshr_b32 s%d, s%d, 1" % (sT1, sWave)); e("s_lshl_b32 s%d, s%d, 14" % (sT1, sT1)); e("s_add_u32 s%d, s%d, s%d" % (sT0, sT0, sT1))
        e("s_mov_b32 s%d, 0" % sAlloc); e("s_lshr_b32 s%d, s2, 3" % sAc); e("s_and_b32 s%d, s%d, 1" % (sT1, sWave)); e("s_add_u32 s%d, s%d, s%d" % (sAc, sAc, sT1))
        for (dst, src) in ((sKB, pK), (sVB, pV)):
            e("s_add_u32 s%d, s%d, s%d" % (dst, src, sT0)); e("s_addc_u32 s%d, s%d, 0" % (dst + 1, src + 1))
            e("s_sub_u32 s%d, s%d, 3072" % (dst, dst)); e("s_subb_u32 s%d, s%d, 0" % (dst + 1, dst + 1))
            e("s_and_b32 s%d, s%d, 0xffff" % (dst + 1, dst + 1))
        e("s_mov_b32 s%d, s%d" % (sCUR, sVB)); e("s_mov_b32 s%d, s%d" % (sCUR + 1, sVB + 1))
        e("s_mov_b32 s%d, %d" % (sCUR + 2, 3072 + 63 * self.stride + 4096 + (8192 if self.swz else 0))); e("s_mov_b32 s%d, 0x20000" % (sCUR + 3))
        if self.stag:
            e("s_mul_i32 s%d, s2, %d" % (sRot, self.stag)); e("s_and_b32 s%d, s%d, 63" % (sRot, sRot)); e("s_mul_i32 s%d, s%d, %d" % (sRot, sRot, self.stride))
        else:
            e("s_mov_b32 s%d, 0" % sRot)
        e("s_mov_b32 s%d, s%d" % (sOff, sRot)); e("s_mov_b32 s%d, %d" % (sLeft, 2 * NRES_T)); e("s_mov_b32 s%d, 0" % sSeg)
        self.vpat()

    def weights_setup(self, which):
        e0 = self.e
        sfx = "_" + which
        def e(x):
            for lb in ("L_wdone", "L_wO", "L_wB", "L_wC"):
                x = x.replace(lb, lb + sfx)
            e0(x)
        lab0 = self.lab
        self.lab = lambda n: lab0(n + sfx)
        e("s_mov_b32 s%d, 0x20000" % (sWS + 3))
        e("s_mov_b64 %s, -1" % sp(sWex))
        pdef = pWq if which == "start" else pW2
        e("s_mov_b32 s%d, s%d" % (sWS, pdef)); e("s_and_b32 s%d, s%d, 0xffff" % (sWS + 1, pdef + 1)); e("s_mov_b32 s%d, 0" % (sWS + 2))
        e("s_mov_b32 s%d, s%d" % (sWlds, sVec))
        e("s_mov_b32 s%d, 0" % sWlstep); e("s_mov_b32 s%d, 0" % sWoff); e("s_mov_b32 s%d, 0" % sWoff0); e("s_mov_b32 s%d, 0" % sWstep)
        e("s_mov_b32 s%d, 99" % sWwrap); e("s_mov_b32 s%d, 0" % sWlds0); e("s_mov_b64 %s, 0" % sp(sWo2))
        e("v_mov_b32 v%d, 0" % vW)
        e("s_cmp_eq_u32 s%d, 0" % sRole); e("s_cbranch_scc1 L_wdone")
        if which == "start" and self.gapw:
            e("s_cmp_eq_u32 s%d, 2" % sRole); e("s_cbranch_scc1 L_wdone")
            e("s_cmp_eq_u32 s%d, 3" % sRole); e("s_cbranch_scc1 L_wdone")
        e("s_mov_b32 s%d, 1024" % sWlstep)
        if which == "start":
            e("s_cmp_eq_u32 s%d, 1" % sRole); e("s_cbranch_scc1 L_wO")
        e("s_cmp_eq_u32 s%d, 2" % sRole); e("s_cbranch_scc1 L_wB")
        if which == "start":
            e("s_cmp_eq_u32 s%d, 3" % sRole); e("s_cbranch_scc1 L_wC")
        else:
            e("s_branch L_wC")
        if which == 'start':
            e("s_mov_b32 s%d, %d" % (sWS + 2, 448 * 8192))
            e("v_lshrrev_b32 v9, 3, v%d" % vL); e("v_lshlrev_b32 v%d, 13, v9" % vW)
            e("v_bfe_u32 v9, v%d, 4, 2" % vL); e("v_lshlrev_b32 v9, 1, v9")
            e("v_and_b32 v10, 7, v%d" % vL); e("v_xor_b32 v9, v9, v10"); e("v_lshl_add_u32 v%d, v9, 4, v%d" % (vW, vW))
            e("s_mul_i32 s%d, s%d, %d" % (sT1, sWave, 14 * 8 * 8192)); e("s_lshl_b32 s%d, s%d, 7" % (sT2, sIdx)); e("s_add_u32 s%d, s%d, s%d" % (sWoff, sT1, sT2))
            e("s_mov_b32 s%d, %d" % (sWstep, 8 * 8192))
            e("s_mul_i32 s%d, s%d, %d" % (sWlds, sWave, 14 * 1024)); e("s_add_u32 s%d, s%d, %d" % (sWlds, sWlds, L_W))
            e("s_branch L_wdone")
        self.lab("L_wC")
        e("s_mov_b32 s%d, s%d" % (sWS, pW2)); e("s_and_b32 s%d, s%d, 0xffff" % (sWS + 1, pW2 + 1)); e("s_mov_b32 s%d, %d" % (sWS + 2, 1792 * 896))
        e("v_lshrrev_b32 v9, 1, v%d" % vL); e("v_mul_u32_u24 v%d, 896, v9" % vW)
        e("v_and_b32 v9, 1, v%d" % vL); e("v_lshl_add_u32 v%d, v9, 4, v%d" % (vW, vW))
        e("s_mul_i32 s%d, s%d, %d" % (sT1, sWave, 448 * 896)); e("s_lshl_b32 s%d, s%d, 5" % (sT2, sIdx)); e("s_add_u32 s%d, s%d, s%d" % (sWoff, sT1, sT2))
        e("s_mov_b32 s%d, %d" % (sWstep, 32 * 896))
        e("s_mul_i32 s%d, s%d, %d" % (sWlds, sWave, C_WAVE)); e("s_add_u32 s%d, s%d, %d" % (sWlds, sWlds, L_W))
        e("s_mov_b32 s%d, s%d" % (sWoff0, sWoff)); e("s_mov_b32 s%d, s%d" % (sWlds0, sWlds))
        e("s_and_b32 s%d, s%d, 3" % (sT0, sIdx)); e("s_mul_i32 s%d, s%d, 7" % (sT0, sT0)); e("s_add_u32 s%d, s%d, 1" % (sT0, sT0)); e("s_lshr_b32 s%d, s%d, 1" % (sT0, sT0))
        e("s_sub_u32 s%d, 14, s%d" % (sWwrap, sT0))
        e("s_mul_i32 s%d, s%d, %d" % (sT1, sT0, 32 * 896)); e("s_add_u32 s%d, s%d, s%d" % (sWoff, sWoff, sT1))
        e("s_lshl_b32 s%d, s%d, 10" % (sT1, sT0)); e("s_add_u32 s%d, s%d, s%d" % (sWlds, sWlds, sT1))
        e("s_branch L_wdone")
        if which == 'start':
            self.lab("L_wO")
            e("s_mov_b32 s%d, s%d" % (sWS, pWo)); e("s_and_b32 s%d, s%d, 0xffff" % (sWS + 1, pWo + 1)); e("s_mov_b32 s%d, %d" % (sWS + 2, 4096 * 896))
            e("v_lshlrev_b32 v%d, 4, v%d" % (vW, vL))
            e("s_lshl_b32 s%d, s%d, 6" % (sT1, sIdx)); e("s_lshl_b32 s%d, s%d, 4" % (sT2, sWave)); e("s_add_u32 s%d, s%d, s%d" % (sT1, sT1, sT2))
            e("s_mul_i32 s%d, s%d, 896" % (sWoff, sT1))
            e("s_mov_b32 s%d, 896" % sWstep); e("s_mov_b32 s%d, %d" % (sWlstep, O_ROW))
            e("s_mul_i32 s%d, s%d, %d" % (sWlds, sWave, 16 * O_ROW)); e("s_add_u32 s%d, s%d, %d" % (sWlds, sWlds, L_W))
            e("s_mov_b32 s%d, -1" % sWex); e("s_mov_b32 s%d, 0x00ffffff" % (sWex + 1))
            e("s_branch L_wdone")
        self.lab("L_wB")
        e("s_bitcmp1_b32 s%d, 0" % sIdx)
        e("s_cselect_b32 s%d, s%d, s%d" % (sWS, pW3, pW1)); e("s_cselect_b32 s%d, s%d, s%d" % (sWS + 1, pW3 + 1, pW1 + 1))
        e("s_cselect_b32 s%d, s%d, s%d" % (sWo2, pW1, pW3)); e("s_cselect_b32 s%d, s%d, s%d" % (sWo2 + 1, pW1 + 1, pW3 + 1))
        e("s_cselect_b32 s%d, %d, 0" % (sT3, B_IMG3)); e("s_cselect_b32 s%d, 0, %d" % (sT4, B_IMG3))
        e("s_and_b32 s%d, s%d, 0xffff" % (sWS + 1, sWS + 1)); e("s_and_b32 s%d, s%d, 0xffff" % (sWo2 + 1, sWo2 + 1))
        e("s_mov_b32 s%d, %d" % (sWS + 2, 448 * 3584))
        e("v_lshrrev_b32 v9, 2, v%d" % vL); e("v_mul_u32_u24 v%d, 3584, v9" % vW)
        e("v_and_b32 v9, 3, v%d" % vL); e("v_lshl_add_u32 v%d, v9, 4, v%d" % (vW, vW))
        e("s_mul_i32 s%d, s%d, %d" % (sT1, sWave, 7 * 16 * 3584)); e("s_lshl_b32 s%d, s%d, 6" % (sT2, sIdx)); e("s_add_u32 s%d, s%d, s%d" % (sWoff, sT1, sT2))
        e("s_mov_b32 s%d, s%d" % (sWoff0, sWoff))
        e("s_mov_b32 s%d, %d" % (sWstep, 16 * 3584))
        e("s_mul_i32 s%d, s%d, %d" % (sWlds, sWave, 7 * 1024)); e("s_add_u32 s%d, s%d, %d" % (sWlds, sWlds, L_W))
        e("s_add_u32 s%d, s%d, s%d" % (sWlds0, sWlds, sT4)); e("s_add_u32 s%d, s%d, s%d" % (sWlds, sWlds, sT3))
        self.lab("L_wdone")
        self.lab = lab0

    def clear_mailboxes(self):
        e = self.e
        e("v_mov_b32 v10, -1")
        e("s_lshl_b32 s%d, s%d, 2" % (sT0, sH)); e("s_add_u32 s%d, s%d, s%d" % (sT0, sT0, sWave)); e("s_lshl_b32 s%d, s%d, 4" % (sT0, sT0))
        e("s_add_u32 s%d, s%d, s%d" % (sT0, sT0, sC)); e("s_mul_i32 s%d, s%d, %d" % (sT0, sT0, M1_SLOT))
        self.addr(sA, pWs, M1, [sT0])
        e("v_lshlrev_b32 v8, 2, v%d" % vL)
        e("v_and_b32 v9, 1, v%d" % vL); e("v_lshlrev_b32 v9, 2, v9"); e("v_add_u32 v9, 256, v9")
        for rho in range(2):
            e("global_store_dword v8, v10, %s sc1" % sp(sA))
            e("global_store_dword v9, v10, %s sc1" % sp(sA))
            if rho == 0:
                e("s_add_u32 s%d, s%d, 0x%x" % (sA, sA, M1_R)); e("s_addc_u32 s%d, s%d, 0" % (sA + 1, sA + 1))
        if self.p2n:
            e("s_lshl_b32 s%d, s2, 12" % sT0); e("s_lshl_b32 s%d, s%d, 10" % (sT1, sWave))
            self.addr(sA, pWs, M7, [sT0, sT1])
            for k in range(4):
                e("global_store_dword v8, v10, %s offset:%d sc1" % (sp(sA), k * 256))
        e("s_cmp_eq_u32 s%d, 0" % sWave); e("s_cbranch_scc0 L_cdone")
        e("s_cmp_eq_u32 s%d, 0" % sRole); e("s_cbranch_scc1 L_cdone")
        e("v_and_b32 v8, 31, v%d" % vL); e("v_lshlrev_b32 v8, 2, v8")
        e("s_lshl_b32 s%d, s%d, 7" % (sT0, sIdx))
        e("v_add_u32 v8, s%d, v8" % sT0)
        e("s_cmp_eq_u32 s%d, 1" % sRole); e("s_cbranch_scc1 L_cA")
        e("s_cmp_eq_u32 s%d, 2" % sRole); e("s_cbranch_scc1 L_cB")
        e("s_cmp_eq_u32 s%d, 3" % sRole); e("s_cbranch_scc1 L_cC")
        for off in (M3, M3 + MR, M6, M6 + MR):
            self.addr(sA, pWs, off); e("global_store_dword v8, v10, %s sc1" % sp(sA))
        e("s_branch L_cdone")
        self.lab("L_cA")
        if self.p2n == 2:
            lq = self.nl("Lc8")
            e("s_and_b32 s%d, s%d, 3" % (sT1, sIdx)); e("s_cmp_lt_u32 s%d, 2" % sT1); e("s_cbranch_scc0 %s" % lq)
            e("s_lshr_b32 s%d, s%d, 2" % (sT0, sIdx)); e("s_lshl_b32 s%d, s%d, 7" % (sT0, sT0)); e("s_lshl_b32 s%d, s%d, 2" % (sT1, sT1))
            self.addr(sA, pWs, M8, [sT0, sT1])
            e("v_mov_b32 v9, 0")
            e("global_store_dword v9, v10, %s sc1" % sp(sA))
            self.lab(lq)
        e("s_mul_i32 s%d, s%d, %d" % (sT0, sIdx, M2_SLOT))
        e("v_lshlrev_b32 v8, 2, v%d" % vL)
        for rho in range(2):
            self.addr(sA, pWs, M2 + rho * M2_R, [sT0])
            for k in range(M2_SLOT // 256):
                e("global_store_dword v8, v10, %s offset:%d sc1" % (sp(sA), k * 256))
        e("s_branch L_cdone")
        self.lab("L_cB")
        for off in (M4, M4 + MR):
            self.addr(sA, pWs, off); e("global_store_dword v8, v10, %s sc1" % sp(sA))
        e("s_branch L_cdone")
        self.lab("L_cC")
        self.addr(sA, pWs, M5); e("global_store_dword v8, v10, %s sc1" % sp(sA))
        self.lab("L_cdone")
        e("v_mov_b32 v11, 0")
        e("v_lshlrev_b32 v8, 2, v%d" % vL); e("v_add_u32 v8, %d, v8" % L_Z)
        e("ds_write_b32 v8, v11"); e("ds_write_b32 v8, v11 offset:256")

    def count_cleared(self):
        e = self.e
        e("s_waitcnt lgkmcnt(0)")
        e("s_barrier")
        e("s_cmp_eq_u32 s%d, 0" % sWave); e("s_cbranch_scc0 L_cnt_done")
        e("v_mov_b32 v10, 0"); e("v_mov_b32 v11, 1")
        e("s_mov_b64 exec, 1")
        e("global_atomic_add v10, v11, %s" % sp(pDbg))
        e("s_mov_b64 exec, -1")
        self.lab("L_cnt_done")

    def layernorm_to_vec(self):
        e = self.e
        X = 40
        for d in range(4):
            e("v_lshlrev_b32 v%d, 16, v%d" % (X + 2 * d, 32 + d))
            e("v_and_b32 v%d, 0xffff0000, v%d" % (X + 2 * d + 1, 32 + d))
        e("v_cmp_gt_u32 vcc, 56, v%d" % vL)
        e("v_add_f32 v48, v40, v41"); e("v_add_f32 v49, v42, v43"); e("v_add_f32 v50, v44, v45"); e("v_add_f32 v51, v46, v47")
        e("v_add_f32 v48, v48, v49"); e("v_add_f32 v50, v50, v51"); e("v_add_f32 v48, v48, v50")
        e("v_cndmask_b32 v48, 0, v48, vcc")
        self.allreduce64(48, 49, "v_add_f32")
        e("v_mul_f32 v48, 0x3b124925, v48")
        for i in range(8):
            e("v_sub_f32 v%d, v%d, v48" % (52 + i, X + i))
        e("v_mul_f32 v49, v52, v52")
        for i in range(1, 8):
            e("v_fmac_f32 v49, v%d, v%d" % (52 + i, 52 + i))
        e("v_cndmask_b32 v49, 0, v49, vcc")
        self.allreduce64(49, 50, "v_add_f32")
        e("v_mul_f32 v49, 0x3b124925, v49")
        self.bf16r(48, 48, 50)
        self.bf16r(49, 49, 50)
        e("v_add_f32 v49, 0x3727c5ac, v49")
        self.bf16r(49, 49, 50)
        e("v_sqrt_f32 v49, v49"); self.nop(1)
        self.bf16r(49, 49, 50)
        e("v_rcp_f32 v49, v49")
        for i in range(8):
            e("v_sub_f32 v%d, v%d, v48" % (52 + i, X + i))
        for i in range(0, 8, 2):
            e("v_cvt_pk_bf16_f32 v%d, v%d, v%d" % (36 + i // 2, 52 + i, 53 + i))
        for d in range(4):
            e("v_lshlrev_b32 v%d, 16, v%d" % (52 + 2 * d, 36 + d))
            e("v_and_b32 v%d, 0xffff0000, v%d" % (53 + 2 * d, 36 + d))
        for i in range(8):
            e("v_mul_f32 v%d, v%d, v49" % (52 + i, 52 + i))
        for i in range(0, 8, 2):
            e("v_cvt_pk_bf16_f32 v%d, v%d, v%d" % (36 + i // 2, 52 + i, 53 + i))
        e("v_lshlrev_b32 v48, 4, v%d" % vL); e("v_add_u32 v48, s%d, v48" % sVec)
        e("ds_write_b128 v48, v[36:39]")
        e("s_waitcnt lgkmcnt(0)")

    def gemv_chain(self, n, a_off, b_step, b_second, acc=8):
        e = self.e
        m = 0
        first = True
        while m < n:
            nb = min(4, n - m)
            for k in range(nb):
                o0, o1 = a_off(m + k)
                e("ds_read2_b64 v[%d:%d], v6 offset0:%d offset1:%d" % (32 + 4 * k, 35 + 4 * k, o0, o1))
                e("ds_read_b64_tr_b16 v[%d:%d], v7 offset:%d" % (48 + 4 * k, 49 + 4 * k, (m + k) * b_step))
                e("ds_read_b64_tr_b16 v[%d:%d], v7 offset:%d" % (50 + 4 * k, 51 + 4 * k, (m + k) * b_step + b_second))
            e("s_waitcnt lgkmcnt(0)")
            for k in range(nb):
                c = "0" if first else vr(acc, 4)
                e("v_mfma_f32_16x16x32_bf16 %s, %s, %s, %s" % (vr(acc, 4), vr(32 + 4 * k, 4), vr(48 + 4 * k, 4), c))
                first = False
            m += nb
        self.nop(8)

    def lane_rc(self):
        e = self.e
        e("v_lshrrev_b32 v10, 4, v%d" % vL); e("v_bfe_u32 v11, v%d, 2, 2" % vL)
        e("v_and_b32 v12, 3, v%d" % vL); e("v_and_b32 v13, 15, v%d" % vL)

    def stage_D(self, rho_reg_is_next):
        e = self.e
        self.layernorm_to_vec()
        self.lane_rc()
        e("v_lshlrev_b32 v6, 3, v10"); e("v_add_u32 v6, s%d, v6" % sVec)
        e("v_lshl_add_u32 v7, v10, 2, v11")
        e("v_bfe_u32 v14, v7, 1, 2"); e("v_xor_b32 v14, s%d, v14" % sWave)
        e("v_lshlrev_b32 v7, 7, v7"); e("v_lshl_add_u32 v7, v14, 5, v7"); e("v_lshl_add_u32 v7, v12, 3, v7"); e("v_add_u32 v7, %d, v7" % L_W)
        self.gemv_chain(14, lambda m: (8 * m, 8 * m + 4), 4096, 2048)
        e("v_mov_b32_dpp v9, v8 quad_perm:[1,0,3,2] row_mask:0xf bank_mask:0xf")
        e("v_cvt_pk_bf16_f32 v9, v8, v9")
        e("v_mov_b32 v14, -2"); e("v_min_u32 v9, v9, v14")
        e("s_lshl_b32 s%d, s%d, 7" % (sT0, sIdx)); e("s_lshl_b32 s%d, s%d, 5" % (sT1, sWave)); e("s_add_u32 s%d, s%d, s%d" % (sT0, sT0, sT1))
        e("v_lshlrev_b32 v14, 1, v%d" % vL); e("v_add_u32 v14, s%d, v14" % sT0)
        e("s_mov_b64 exec, 0x5555")
        e("global_store_dword v14, v9, %s sc1" % sp(sA))
        e("s_mov_b64 exec, -1")

    def p1a(self):
        e = self.e
        self.lab("L_p1a_code")
        e("v_lshrrev_b32 v%d, 5, v%d" % (vPh, vL)); e("v_lshlrev_b32 v%d, 12, v%d" % (vPh, vPh))
        e("v_and_b32 v%d, 31, v%d" % (vAd, vL)); e("v_lshl_add_u32 v%d, v%d, 3, v%d" % (vPh, vAd, vPh))
        R = self.R
        for T in range(NRES_T):
            u0, u1 = 2 * T + R, 2 * T + R + 1
            if self.p2n == 1 and T == 2:
                self.now(sTm0)
            if T == 12:
                self.gwait(u0)
                lq = self.nl("Lnq")
                e("s_mov_b32 s%d, 0" % sQok)
                e("v_cmp_gt_u32 vcc, 256, v36")
                e("s_cbranch_vccnz %s" % lq)
                e("s_mov_b32 s%d, 1" % sQok)
                e("s_lshl_b32 s%d, s%d, 9" % (sT1, sH))
                self.addr(sA, pWs, M6, [sT1])
                e("v_and_b32 v37, 31, v%d" % vL); e("v_lshlrev_b32 v37, 4, v37")
                e("global_load_dwordx4 v[32:35], v37, %s sc1" % sp(sA))
                self.lab(lq)
                self.issue()
            elif T == 10:
                self.gwait(u0)
                e("v_mov_b32 v37, 0")
                e("global_load_dword v36, v37, %s sc1" % sp(pDbg))
                self.issue()
            else:
                self.group(u0)
            if T == 1:
                self.gwait(u1)
                self.count_cleared()
                self.issue(); self.xop(u1)
            elif T == 9:
                assert u1 - R >= 16
                self.gwait(u1)
                e("s_cmp_eq_u32 s%d, 4" % sRole); e("s_cbranch_scc0 L_noq1")
                e("s_barrier")
                if int(self.o.get("gap2", 1)):
                    e("s_call_b64 %s, L_stageD_prep" % sp(sRet2))
                    e("s_lshl_b32 s%d, s%d, 7" % (sT0, sIdx)); e("s_lshl_b32 s%d, s%d, 5" % (sT1, sWave))
                    self.addr(sB, pWs, M6, [sT0] if self.onest else [sT0, sT1])
                    e("s_call_b64 %s, L_stageD_rest" % sp(sRet2))
                else:
                    self.addr(sA, pWs, M6)
                    e("s_call_b64 %s, L_stageD" % sp(sRet2))
                self.lab("L_noq1")
                self.issue()
                e("v_lshrrev_b32 v%d, 5, v%d" % (vPh, vL)); e("v_lshlrev_b32 v%d, 12, v%d" % (vPh, vPh))
                e("v_and_b32 v%d, 31, v%d" % (vAd, vL)); e("v_lshl_add_u32 v%d, v%d, 3, v%d" % (vPh, vAd, vPh))
            else:
                self.group(u1)
            e("v_add_u32 v%d, s%d, v%d" % (vAd, sCs, vPh))
            for t in range(16):
                e("ds_read_b64_tr_b16 %s, v%d offset:%d" % (res_reg(T >> 1, t, T & 1), vAd, t * 256))
            self.adv_cs()
            e("s_waitcnt lgkmcnt(0)")
        if self.p2n == 1:
            self.now(sTm1, sTm0)

    def gather_q(self):
        e = self.e
        e("s_cmp_eq_u32 s%d, 0" % sPass); e("s_cbranch_scc0 L_gq")
        e("s_cmp_eq_u32 s%d, 1" % sQok); e("s_cbranch_scc0 L_gq_slow")
        e("v_max3_u32 v36, v32, v33, v34"); e("v_max_u32 v36, v36, v35")
        e("v_cmp_eq_u32 vcc, -1, v36")
        e("v_and_b32 v8, 31, v%d" % vL); e("v_lshlrev_b32 v8, 4, v8")
        e("s_cbranch_vccz L_gq_write")
        self.lab("L_gq_slow")
        L = self.nl("Lc"); Dn = self.nl("Lcd")
        e("v_mov_b32 v8, 0"); e("s_mov_b32 s%d, 0" % sSpin)
        self.lab(L)
        e("global_load_dword v9, v8, %s sc1" % sp(pDbg))
        e("s_waitcnt vmcnt(0)")
        e("v_cmp_gt_u32 vcc, 256, v9")
        e("s_cbranch_vccz %s" % Dn)
        e("s_add_u32 s%d, s%d, 1" % (sSpin, sSpin)); e("s_cmp_lt_u32 s%d, %d" % (sSpin, SPIN_LIMIT)); e("s_cbranch_scc1 %s" % L)
        self.lab(Dn)
        self.lab("L_gq")
        if self.q1w:
            e("s_cmp_eq_u32 s%d, 1" % sPass); e("s_cbranch_scc0 L_gq_p0")
            e("s_cmp_eq_u32 s%d, 0" % sWave); e("s_cbranch_scc0 L_gq_bar")
            e("s_lshl_b32 s%d, s%d, 9" % (sT1, sH))
            self.addr(sA, pWs, M6 + MR, [sT1])
            e("s_lshl_b32 s%d, s%d, 7" % (sT0, sH))
            self.addr(sB, pWs, M8, [sT0])
            e("v_and_b32 v8, 31, v%d" % vL); e("v_lshlrev_b32 v8, 4, v8"); e("v_mov_b32 v9, 0")
            self.ptmp = 10
            self.poll2(lambda b: ["global_load_dwordx4 v[%d:%d], v8, %s sc1" % (b, b + 3, sp(sA)),
                                  "global_load_dwordx2 v[%d:%d], v9, %s sc1" % (b + 4, b + 5, sp(sB))], 6, (20, 26), 32, "Qq", sleep=int(self.o.get("qsleep", 0)))
            self.ptmp = 31
            for k in range(4):
                e("ds_write_b128 v8, v[32:35] offset:%d" % (L_Q + 512 * k))
            e("v_mov_b32 v9, %d" % (L_SM + 32))
            e("ds_write_b64 v9, v[36:37]")
            e("s_waitcnt lgkmcnt(0)")
            self.lab("L_gq_bar")
            e("s_barrier")
            e("v_mov_b32 v9, %d" % (L_SM + 32))
            e("ds_read_b64 v[38:39], v9")
            e("s_waitcnt lgkmcnt(0)")
            self.near_setup()
            e("s_branch L_gq_end")
            self.lab("L_gq_p0")
        e("s_lshl_b32 s%d, s%d, 13" % (sT0, sPass)); e("s_lshl_b32 s%d, s%d, 9" % (sT1, sH))
        self.addr(sA, pWs, M6, [sT0, sT1])
        e("v_and_b32 v8, 31, v%d" % vL); e("v_lshlrev_b32 v8, 4, v8")
        lds_ = ["global_load_dwordx4 v[32:35], v8, %s sc1" % sp(sA)]
        chk = [32, 33, 34, 35]
        if self.p2n == 1:
            e("v_mov_b32 v37, 0")
            lds_.append("global_load_dwordx2 v[38:39], v37, %s offset:16 sc1" % sp(pDbg))
        if self.p2n == 2:
            e("s_lshl_b32 s%d, s%d, 7" % (sT0, sH))
            self.addr(sB, pWs, M8, [sT0])
            e("s_cmp_eq_u32 s%d, 0" % sPass)
            e("s_cselect_b32 s%d, s%d, s%d" % (sB, sA, sB)); e("s_cselect_b32 s%d, s%d, s%d" % (sB + 1, sA + 1, sB + 1))
            e("v_mov_b32 v37, 0")
            lds_.append("global_load_dwordx2 v[38:39], v37, %s sc1" % sp(sB))
            chk += [38, 39]
        self.poll(lds_, chk, 36, "Pq")
        if self.p2n and not self.q1w:
            self.near_setup()
        self.lab("L_gq_write")
        e("s_lshl_b32 s%d, s%d, 9" % (sT0, sWave))
        e("v_add_u32 v8, s%d, v8" % sT0)
        e("ds_write_b128 v8, v[32:35] offset:%d" % L_Q)
        e("s_waitcnt lgkmcnt(0)")
        if self.q1w:
            self.lab("L_gq_end")

    def near_setup(self):
        e = self.e
        d = self.nl("Lns")
        e("s_cmp_eq_u32 s%d, 1" % sPass); e("s_cbranch_scc0 %s" % d)
        if self.p2n == 1:
            e("v_readfirstlane_b32 s%d, v38" % sT0); e("v_readfirstlane_b32 s%d, v39" % sT1)
            e("s_nop 3")
            e("s_cmp_gt_u32 s%d, 128" % sT0); e("s_cselect_b32 s%d, 1, 0" % sT0)
            e("s_cmp_gt_u32 s%d, 128" % sT1); e("s_cselect_b32 s%d, 1, 0" % sT1)
        else:
            e("v_readfirstlane_b32 s%d, v38" % sT0); e("v_readfirstlane_b32 s%d, v39" % sT1)
            e("s_nop 3")
            e("s_and_b32 s%d, s%d, 1" % (sT1, sT1)); e("s_and_b32 s%d, s%d, 1" % (sT0, sT0))
        if "forceK" in self.o:
            e("s_mov_b32 s%d, %d" % (sT0, int(self.o["forceK"]))); e("s_mov_b32 s%d, %d" % (sT1, int(self.o["forceV"])))
        e("s_xor_b32 s%d, s%d, s%d" % (sXch, sT0, sT1))
        e("s_lshr_b32 s%d, s2, 1" % sT2); e("s_lshr_b32 s%d, s2, 2" % sT3); e("s_xor_b32 s%d, s%d, s%d" % (sT2, sT2, sT3)); e("s_and_b32 s%d, s%d, 1" % (sT2, sT2))
        e("s_xor_b32 s%d, s%d, s%d" % (sT0, sT0, sT2)); e("s_xor_b32 s%d, s%d, s%d" % (sT1, sT1, sT2))
        if self.swz:
            e("s_lshl_b32 s%d, s%d, 13" % (sT0, sT0)); e("s_lshl_b32 s%d, s%d, 13" % (sT1, sT1))
        else:
            e("s_and_b32 s%d, s%d, 1" % (sT2, sWave))
            e("s_lshl_b32 s%d, s%d, 1" % (sT0, sT0)); e("s_add_u32 s%d, s%d, s%d" % (sT0, sT0, sT2)); e("s_sub_i32 s%d, s%d, s%d" % (sT0, sT0, sWave)); e("s_lshl_b32 s%d, s%d, 12" % (sT0, sT0))
            e("s_lshl_b32 s%d, s%d, 1" % (sT1, sT1)); e("s_add_u32 s%d, s%d, s%d" % (sT1, sT1, sT2)); e("s_sub_i32 s%d, s%d, s%d" % (sT1, sT1, sWave)); e("s_lshl_b32 s%d, s%d, 12" % (sT1, sT1))
        e("s_xor_b32 s%d, s2, 4" % sT3); e("s_cmp_lt_u32 s%d, 2" % sWave); e("s_cselect_b32 s%d, s2, s%d" % (sT3, sT3))
        e("s_mul_i32 s%d, s%d, %d" % (sRotN, sT3, self.stag)); e("s_and_b32 s%d, s%d, 63" % (sRotN, sRotN)); e("s_mul_i32 s%d, s%d, %d" % (sRotN, sRotN, self.stride))
        e("s_sub_i32 s%d, s%d, s2" % (sT3, sT3)); e("s_lshl_b32 s%d, s%d, 20" % (sT3, sT3))
        e("s_add_i32 s%d, s%d, s%d" % (sT0, sT0, sT3)); e("s_add_i32 s%d, s%d, s%d" % (sT1, sT1, sT3))
        for (dst, src, dl) in ((sKN, sKB, sT0), (sVN, sVB, sT1)):
            e("s_ashr_i32 s%d, s%d, 31" % (sT2, dl))
            e("s_add_u32 s%d, s%d, s%d" % (dst, src, dl)); e("s_addc_u32 s%d, s%d, s%d" % (dst + 1, src + 1, sT2))
            e("s_and_b32 s%d, s%d, 0xffff" % (dst + 1, dst + 1))
        self.lab(d)

    def kphase(self):
        e = self.e
        if self.p2n == 1:
            self.now(sTm0)
        vQ, vZ = 16, 17
        if not self.klin:
            e("v_bfe_u32 v%d, v%d, 3, 1" % (vPh, vL)); e("v_lshlrev_b32 v%d, 12, v%d" % (vPh, vPh))
            e("v_lshrrev_b32 v%d, 4, v%d" % (vAd, vL)); e("v_lshl_add_u32 v%d, v%d, 7, v%d" % (vPh, vAd, vPh))
            e("v_lshlrev_b32 v%d, 4, v%d" % (vQ, vAd))
            e("v_and_b32 v%d, 7, v%d" % (vAd, vL)); e("v_lshl_add_u32 v%d, v%d, 4, v%d" % (vPh, vAd, vPh))
        else:
            e("v_bfe_u32 v%d, v%d, 3, 1" % (vPh, vL)); e("v_lshlrev_b32 v%d, 12, v%d" % (vPh, vPh))
            e("v_and_b32 v%d, 7, v%d" % (vAd, vL)); e("v_lshl_add_u32 v%d, v%d, 9, v%d" % (vPh, vAd, vPh))
            e("v_lshrrev_b32 v%d, 4, v%d" % (vQ, vL)); e("v_and_b32 v18, 3, v%d" % vL); e("v_xor_b32 v18, v18, v%d" % vQ)
            e("v_lshl_add_u32 v%d, v18, 4, v%d" % (vPh, vPh))
            e("v_bfe_u32 v18, v%d, 2, 1" % vL); e("v_lshlrev_b32 v18, 6, v18")
            e("v_sub_u32 v19, v%d, v18" % vPh); e("v_add_u32 v%d, v%d, v18" % (vPh, vPh)); e("v_mov_b32 v18, v19")
            e("v_lshlrev_b32 v%d, 4, v%d" % (vQ, vQ))
        e("s_lshl_b32 s%d, s%d, 9" % (sT0, sWave)); e("s_add_u32 s%d, s%d, %d" % (sT0, sT0, L_Q))
        e("v_add_u32 v%d, s%d, v%d" % (vQ, sT0, vQ))
        e("v_mov_b32 v%d, %d" % (vZ, L_Z))
        for i in range(8):
            e("v_mov_b32 v%d, 0" % (vSC + i))
        first_skip = self.nl("Kskip")
        e("s_mov_b32 s%d, 0" % sT15)
        e("s_cmp_eq_u32 s%d, 0" % sPass)
        e("s_cbranch_scc1 L_k0")
        if self.q1w:
            e("s_cmp_eq_u32 s%d, 0" % sWave); e("s_cbranch_scc1 %s" % first_skip)
        e("s_waitcnt vmcnt(0)")
        e("s_branch %s" % first_skip)
        for a in range(2):
            self.lab("L_k%d" % a)
            self.step_issue()
            if a == 0:
                self.lab(first_skip)
            e("s_lshl_b64 %s, %s, s%d" % (sp(sMd), sp(sM[0]), sT15))
            e("v_add_u32 v%d, s%d, v%d" % (vAd, sCs, vPh))
            if self.klin:
                e("v_add_u32 v19, s%d, v18" % sCs)
            e("v_cndmask_b32 v%d, v%d, v%d, %s" % (vPa, vZ, vQ, sp(sMd)))
            for b in range(2):
                for k in range(4):
                    c8 = 4 * b + k
                    e("ds_read_b128 v[%d:%d], v%d offset:%d" % (32 + 4 * k, 35 + 4 * k, vPa, c8 * 64))
                    if self.klin:
                        e("ds_read_b128 v[%d:%d], v%d offset:%d" % (48 + 4 * k, 51 + 4 * k, (19 if c8 & 1 else vAd), c8 * 64))
                    else:
                        e("ds_read_b128 v[%d:%d], v%d offset:%d" % (48 + 4 * k, 51 + 4 * k, vAd, c8 * 512))
                e("s_waitcnt lgkmcnt(0)")
                for k in range(4):
                    e("v_mfma_f32_16x16x32_bf16 %s, %s, %s, %s" % (vr(vSC + 4 * a, 4), vr(32 + 4 * k, 4), vr(48 + 4 * k, 4), vr(vSC + 4 * a, 4)))
            self.adv_cs()
            e("s_add_u32 s%d, s%d, 1" % (sT15, sT15))
            e("s_and_b32 s%d, s%d, 15" % (sT15, sT15))
            e("s_cbranch_scc1 L_k%d" % a)
            if a == 0:
                self.stamp(13)
        self.nop(8)

    def softmax(self):
        e = self.e
        S = vSC
        if self.p2n == 1:
            self.now(sTm0, sTm0)
        for i in range(0, 8, 2):
            e("v_cvt_pk_bf16_f32 v%d, v%d, v%d" % (36 + i // 2, S + i, S + i + 1))
        if self.p2n:
            nx = self.nl("Lnx")
            e("s_cmp_eq_u32 s%d, 1" % sPass); e("s_cbranch_scc0 %s" % nx)
            e("s_cmp_eq_u32 s%d, 1" % sXch); e("s_cbranch_scc0 %s" % nx)
            e("v_mov_b32 v41, -2")
            for d in range(4):
                e("v_min_u32 v%d, v%d, v41" % (44 + d, 36 + d))
            e("v_lshlrev_b32 v40, 4, v%d" % vL)
            e("s_lshl_b32 s%d, s2, 12" % sT0); e("s_lshl_b32 s%d, s%d, 10" % (sT1, sWave))
            self.addr(sA, pWs, M7, [sT0, sT1])
            e("global_store_dwordx4 v40, v[44:47], %s sc1" % sp(sA))
            e("s_xor_b32 s%d, s2, 4" % sT0); e("s_lshl_b32 s%d, s%d, 12" % (sT0, sT0)); e("s_xor_b32 s%d, s%d, 2" % (sT1, sWave)); e("s_lshl_b32 s%d, s%d, 10" % (sT1, sT1))
            self.addr(sA, pWs, M7, [sT0, sT1])
            self.poll(["global_load_dwordx4 v[48:51], v40, %s sc1" % sp(sA)], [48, 49, 50, 51], 52, "Px7")
            if self.ilv:
                e("v_mov_b32 v52, 0xffff0000"); e("v_mov_b32 v53, 0xffff0000")
                e("s_mov_b64 exec, 0xffff"); e("v_mov_b32 v52, 0")
                e("s_mov_b32 exec_lo, 0"); e("s_mov_b32 exec_hi, -1"); e("v_mov_b32 v53, -1")
                e("s_mov_b64 exec, -1")
                e("v_bfi_b32 v36, v52, v48, v36"); e("v_bfi_b32 v37, v52, v49, v37")
                e("v_bfi_b32 v38, v53, v50, v38"); e("v_bfi_b32 v39, v53, v51, v39")
            else:
                e("s_mov_b32 exec_lo, 0"); e("s_mov_b32 exec_hi, 0xffff0000")
                e("v_mov_b32 v37, v49")
                e("s_mov_b64 exec, -1")
                e("v_mov_b32 v38, v50"); e("v_mov_b32 v39, v51")
            self.lab(nx)
        for i in range(0, 8, 2):
            e("v_lshlrev_b32 v%d, 16, v%d" % (S + i, 36 + i // 2)); e("v_and_b32 v%d, 0xffff0000, v%d" % (S + i + 1, 36 + i // 2))
        e("v_max3_f32 v32, v%d, v%d, v%d" % (S, S + 1, S + 2)); e("v_max3_f32 v32, v32, v%d, v%d" % (S + 3, S + 4))
        e("v_max3_f32 v32, v32, v%d, v%d" % (S + 5, S + 6)); e("v_max_f32 v32, v32, v%d" % (S + 7))
        self.allreduce64(32, 33, "v_max_f32")
        e("s_lshl_b32 s%d, s%d, 2" % (sT0, sWave)); e("s_add_u32 s%d, s%d, %d" % (sT0, sT0, L_SM))
        e("v_mov_b32 v33, s%d" % sT0)
        e("ds_write_b32 v33, v32")
        if self.p2n == 1:
            e("s_lshl_b32 s%d, s%d, 3" % (sT0, sWave)); e("s_add_u32 s%d, s%d, %d" % (sT0, sT0, L_SM + 32))
            e("v_mov_b32 v33, s%d" % sT0); e("v_mov_b32 v34, s%d" % sTm1); e("v_mov_b32 v35, s%d" % sTm0)
            e("ds_write_b64 v33, v[34:35]")
        e("s_waitcnt lgkmcnt(0)")
        e("s_barrier")
        e("v_mov_b32 v33, %d" % L_SM)
        e("ds_read_b128 v[36:39], v33")
        if self.p2n == 1:
            nv = self.nl("Lnv")
            e("s_cmp_eq_u32 s%d, 0" % sPass); e("s_cbranch_scc0 %s" % nv)
            e("s_cmp_eq_u32 s%d, 0" % sWave); e("s_cbranch_scc0 %s" % nv)
            e("ds_read_b128 v[40:43], v33 offset:32"); e("ds_read_b128 v[44:47], v33 offset:48")
            e("s_waitcnt lgkmcnt(0)")
            e("v_add_u32 v40, v40, v42"); e("v_add_u32 v41, v41, v43"); e("v_add_u32 v44, v44, v46"); e("v_add_u32 v45, v45, v47")
            e("s_lshr_b32 s%d, s2, 1" % sT0); e("s_lshr_b32 s%d, s2, 2" % sT1); e("s_xor_b32 s%d, s%d, s%d" % (sT0, sT0, sT1)); e("s_and_b32 s%d, s%d, 1" % (sT0, sT0))
            e("v_cmp_ge_u32 vcc, v40, v44"); self.nop(2); e("v_cndmask_b32 v40, 0, 1, vcc")
            e("v_cmp_ge_u32 vcc, v41, v45"); self.nop(2); e("v_cndmask_b32 v41, 0, 1, vcc")
            e("v_xor_b32 v40, s%d, v40" % sT0); e("v_xor_b32 v41, s%d, v41" % sT0)
            e("v_cmp_eq_u32 vcc, 0, v%d" % vL); self.nop(2); e("v_cndmask_b32 v40, v40, v41, vcc")
            e("v_lshlrev_b32 v41, 2, v%d" % vL); e("v_add_u32 v41, 16, v41")
            e("s_mov_b64 exec, 3")
            e("global_atomic_add v41, v40, %s" % sp(pDbg))
            e("s_mov_b64 exec, -1")
            self.lab(nv)
        e("s_waitcnt lgkmcnt(0)")
        e("v_max3_f32 v32, v36, v37, v38"); e("v_max_f32 v32, v32, v39")
        e("s_mov_b32 s%d, 0x%x" % (sT0, C_EXP))
        for i in range(8):
            e("v_sub_f32 v%d, v%d, v32" % (S + i, S + i))
        for i in range(8):
            e("v_mul_f32 v%d, s%d, v%d" % (S + i, sT0, S + i))
        for i in range(8):
            e("v_exp_f32 v%d, v%d" % (S + i, S + i))
        self.nop(1)
        e("v_lshrrev_b32 v33, 4, v%d" % vL); e("v_lshlrev_b32 v33, 7, v33")
        e("v_and_b32 v34, 15, v%d" % vL); e("v_lshl_add_u32 v33, v34, 1, v33")
        e("s_lshl_b32 s%d, s%d, 10" % (sT0, sWave)); e("s_add_u32 s%d, s%d, %d" % (sT0, sT0, L_P))
        e("v_add_u32 v33, s%d, v33" % sT0)
        for i in range(0, 8, 2):
            a, r = i >> 2, i & 3
            e("v_cvt_pk_bf16_f32 v%d, v%d, v%d" % (36 + i // 2, S + i, S + i + 1))
            e("ds_write_b16 v33, v%d offset:%d" % (36 + i // 2, a * 512 + r * 32))
            e("ds_write_b16_d16_hi v33, v%d offset:%d" % (36 + i // 2, a * 512 + (r + 1) * 32))
        e("v_add_f32 v34, v%d, v%d" % (S, S + 1)); e("v_add_f32 v35, v%d, v%d" % (S + 2, S + 3))
        e("v_add_f32 v40, v%d, v%d" % (S + 4, S + 5)); e("v_add_f32 v41, v%d, v%d" % (S + 6, S + 7))
        e("v_add_f32 v34, v34, v35"); e("v_add_f32 v40, v40, v41"); e("v_add_f32 v34, v34, v40")
        self.allreduce64(34, 35, "v_add_f32")
        e("v_mov_b32 v%d, v34" % vLsum)
        e("v_mov_b32 v9, v32")
        e("s_waitcnt lgkmcnt(0)")

    def vphase(self):
        e = self.e
        e("v_lshrrev_b32 v%d, 5, v%d" % (vPh, vL)); e("v_lshlrev_b32 v%d, 12, v%d" % (vPh, vPh))
        e("v_and_b32 v%d, 31, v%d" % (vAd, vL)); e("v_lshl_add_u32 v%d, v%d, 3, v%d" % (vPh, vAd, vPh))
        e("v_lshrrev_b32 v%d, 4, v%d" % (vPa, vL)); e("v_lshlrev_b32 v%d, 3, v%d" % (vPa, vPa))
        e("s_lshl_b32 s%d, s%d, 10" % (sT0, sWave)); e("s_add_u32 s%d, s%d, %d" % (sT0, sT0, L_P))
        e("v_add_u32 v%d, s%d, v%d" % (vPa, sT0, vPa))
        for i in range(16):
            e("v_mov_b32 v%d, 0" % (vACC + i))
        acc = lambda T4: vr(vACC + 4 * T4, 4)
        after = {1: 0, 3: 1, 6: 2, 8: 3, 11: 4, 13: 5, 16: 6}
        pf_tiles = tuple(int(x) for x in str(self.o.get("wpft", "14,16")).split(",")) if (self.wpf and self.gapw) else ()
        cpf_tiles = tuple(int(x) for x in str(self.o.get("cpft", "9,11")).split(",")) if int(self.o.get("cpf", 1)) else ()
        if pf_tiles:
            self.wpf_setup()
        if cpf_tiles:
            e("s_getpc_b64 s[18:19]")
            self.lab("L_pcref")
            e("s_add_u32 s18, s18, L_gapcode-L_pcref"); e("s_addc_u32 s19, s19, 0")
            e("v_lshlrev_b32 v46, 7, v%d" % vL)
        any_x = bool(pf_tiles) or bool(cpf_tiles)
        pend = 0
        for i in range(NSTR_T):
            T = NRES_T + i
            if self.ilv:
                T = str_T(i)
            if not any_x:
                self.step_issue()
            else:
                deep = int(self.o.get("deepV", 99))
                Rv = 4 if i >= deep else self.R
                hist = getattr(self, "_h", [])
                if i == deep:
                    lsk = self.nl("Ldp")
                    e("s_cmp_eq_u32 s%d, 0" % sPass); e("s_cbranch_scc0 %s" % lsk)
                    self.issue(); self.issue()
                    self.lab(lsk)
                    hist += [0, 0]
                w = 4 * (Rv - 1)
                for half in range(2):
                    ex = sum(hist[-(Rv - 1):]) if hist else 0
                    e("s_waitcnt vmcnt(%d)" % (w + ex))
                    self.issue()
                    if half == 0 and i in pf_tiles:
                        e("buffer_load_dword v44, v45, %s, s%d offen" % (sp(sWS, 4), sWoff))
                        e("s_add_u32 s%d, s%d, s%d" % (sWoff, sWoff, sWstep))
                        hist.append(1)
                    elif half == 0 and i in cpf_tiles:
                        e("v_min_u32 v47, L_endcode-L_gapcode-4, v46")
                        e("global_load_dword v47, v47, s[18:19]")
                        e("v_add_u32 v46, 8192, v46")
                        hist.append(1)
                    else:
                        hist.append(0)
                self._h = hist
            e("v_add_u32 v%d, s%d, v%d" % (vAd, sCs, vPh))
            e("ds_read_b64 v[32:33], v%d offset:%d" % (vPa, T * 32))
            for b in range(2):
                us = (2 * b, 2 * b + 1)
                k = 0
                for u in us:
                    for T4 in range(4):
                        e("ds_read_b64_tr_b16 v[%d:%d], v%d offset:%d" % (48 + 2 * k, 49 + 2 * k, vAd, (4 * T4 + u) * 256))
                        k += 1
                if b == 0:
                    e("s_waitcnt lgkmcnt(8)")
                for j, u in enumerate(us):
                    e("v_cndmask_b32 v%d, 0, v32, %s" % (36 + 2 * j, sp(sM[u])))
                    e("v_cndmask_b32 v%d, 0, v33, %s" % (37 + 2 * j, sp(sM[u])))
                e("s_waitcnt lgkmcnt(0)")
                k = 0
                for j, u in enumerate(us):
                    for T4 in range(4):
                        e("v_mfma_f32_16x16x16_bf16 %s, %s, %s, %s" % (acc(T4), vr(36 + 2 * j, 2), vr(48 + 2 * k, 2), acc(T4)))
                        k += 1
            self.adv_cs()
            if self.o.get("vstamps") and i in (5, 11, 14):
                self.stamp({5: 14, 11: 15, 14: 12}[i])
            if i in after:
                self.res_pair(after[i])
        self.nop(8)

    def wpf_setup(self):
        e = self.e
        d = self.nl("Lpf"); lb = self.nl("LpfB")
        e("s_mov_b32 s%d, 0x20000" % (sWS + 3)); e("s_mov_b32 s%d, 0" % (sWS + 2))
        e("s_mov_b32 s%d, s%d" % (sWS, pW2)); e("s_and_b32 s%d, s%d, 0xffff" % (sWS + 1, pW2 + 1))
        e("s_mov_b32 s%d, 0" % sWoff); e("s_mov_b32 s%d, 0" % sWstep); e("v_mov_b32 v45, 0")
        e("s_cmp_eq_u32 s%d, 0" % sPass); e("s_cbranch_scc0 %s" % d)
        e("s_cmp_eq_u32 s%d, 2" % sRole); e("s_cbranch_scc1 %s" % lb)
        e("s_cmp_eq_u32 s%d, 3" % sRole); e("s_cbranch_scc0 %s" % d)
        e("s_mov_b32 s%d, %d" % (sWS + 2, 1792 * 896))
        e("v_mul_u32_u24 v45, 896, v%d" % vL)
        e("s_and_b32 s%d, s%d, 3" % (sT0, sIdx)); e("s_mul_i32 s%d, s%d, 448" % (sT0, sT0)); e("s_lshl_b32 s%d, s%d, 7" % (sT1, sWave)); e("s_add_u32 s%d, s%d, s%d" % (sT0, sT0, sT1))
        e("s_mul_i32 s%d, s%d, 896" % (sWoff, sT0)); e("s_lshr_b32 s%d, s%d, 2" % (sT1, sIdx)); e("s_lshl_b32 s%d, s%d, 7" % (sT1, sT1)); e("s_add_u32 s%d, s%d, s%d" % (sWoff, sWoff, sT1))
        e("s_mov_b32 s%d, %d" % (sWstep, 64 * 896))
        e("s_branch %s" % d)
        self.lab(lb)
        e("s_bitcmp1_b32 s%d, 0" % sIdx)
        e("s_cselect_b32 s%d, s%d, s%d" % (sWS, pW3, pW1)); e("s_cselect_b32 s%d, s%d, s%d" % (sWS + 1, pW3 + 1, pW1 + 1))
        e("s_and_b32 s%d, s%d, 0xffff" % (sWS + 1, sWS + 1))
        e("s_mov_b32 s%d, %d" % (sWS + 2, 448 * 3584))
        e("v_mul_u32_u24 v45, 3584, v%d" % vL)
        e("s_lshl_b32 s%d, s%d, 7" % (sT1, sWave)); e("s_mul_i32 s%d, s%d, 3584" % (sWoff, sT1))
        e("s_lshr_b32 s%d, s%d, 1" % (sT1, sIdx)); e("s_lshl_b32 s%d, s%d, 7" % (sT1, sT1)); e("s_add_u32 s%d, s%d, s%d" % (sWoff, sWoff, sT1))
        e("s_mov_b32 s%d, %d" % (sWstep, 64 * 3584))
        self.lab(d)

    def res_pair(self, m):
        e = self.e
        acc = lambda T4: vr(vACC + 4 * T4, 4)
        if self.ilv:
            e("ds_read2_b64 v[32:35], v%d offset0:%d offset1:%d" % (vPa, 4 * res_T(2 * m), 4 * res_T(2 * m + 1)))
        else:
            e("ds_read2_b64 v[32:35], v%d offset0:%d offset1:%d" % (vPa, 8 * m, 8 * m + 4))
        e("s_waitcnt lgkmcnt(0)")
        for u in range(4):
            A = 36 + 4 * (u & 1)
            for d in range(4):
                e("v_cndmask_b32 v%d, 0, v%d, %s" % (A + d, 32 + d, sp(sM[u])))
            self.nop(2)
            for T4 in range(4):
                e("v_mfma_f32_16x16x32_bf16 %s, %s, %s, %s" % (acc(T4), vr(A, 4), res_reg(m, 4 * T4 + u), acc(T4)))

    def combine_publish(self):
        e = self.e
        self.lab("L_gapcode")
        for u in range(4):
            X, Y, Z, W = (vACC + 4 * t + u for t in range(4))
            e("v_permlane16_swap_b32 v%d, v%d" % (X, Y))
            e("v_permlane16_swap_b32 v%d, v%d" % (Z, W))
        self.nop(2)
        for u in range(4):
            e("v_permlane32_swap_b32 v%d, v%d" % (vACC + u, vACC + 8 + u))
        e("v_lshrrev_b32 v32, 4, v%d" % vL); e("v_lshlrev_b32 v32, 8, v32")
        e("v_and_b32 v33, 15, v%d" % vL); e("v_lshl_add_u32 v32, v33, 2, v32")
        e("s_lshl_b32 s%d, s%d, 10" % (sT0, sWave)); e("s_add_u32 s%d, s%d, %d" % (sT0, sT0, L_P))
        e("v_add_u32 v32, s%d, v32" % sT0)
        for u in range(4):
            e("ds_write_b32 v32, v%d offset:%d" % (vACC + u, u * 64))
        e("s_lshl_b32 s%d, s%d, 2" % (sT0, sWave)); e("s_add_u32 s%d, s%d, %d" % (sT0, sT0, L_SM + 16))
        e("v_mov_b32 v33, s%d" % sT0)
        e("ds_write_b32 v33, v%d" % vLsum)
        e("s_waitcnt lgkmcnt(0)")
        e("s_barrier")
        e("s_lshl_b32 s%d, s%d, 8" % (sT0, sWave)); e("s_add_u32 s%d, s%d, %d" % (sT0, sT0, L_P))
        e("v_lshlrev_b32 v40, 2, v%d" % vL); e("v_add_u32 v32, s%d, v40" % sT0)
        for w in range(4):
            e("ds_read_b32 v%d, v32 offset:%d" % (34 + w, w * 1024))
        e("v_mov_b32 v33, %d" % (L_SM + 16))
        e("ds_read_b128 v[44:47], v33")
        e("s_waitcnt lgkmcnt(0)")
        e("v_add_f32 v34, v34, v35"); e("v_add_f32 v36, v36, v37"); e("v_add_f32 v34, v34, v36")
        e("v_add_f32 v44, v44, v45"); e("v_add_f32 v46, v46, v47"); e("v_add_f32 v44, v44, v46")
        e("v_mov_b32 v41, -2")
        e("v_min_u32 v34, v34, v41")
        e("v_and_b32 v42, 1, v%d" % vL); e("v_cmp_eq_u32 vcc, 1, v42"); self.nop(2)
        e("v_cndmask_b32 v43, v9, v44, vcc"); e("v_min_u32 v43, v43, v41")
        e("v_lshlrev_b32 v42, 2, v42"); e("v_add_u32 v42, 256, v42")
        e("s_lshl_b32 s%d, s%d, 2" % (sT0, sH)); e("s_add_u32 s%d, s%d, s%d" % (sT0, sT0, sWave)); e("s_lshl_b32 s%d, s%d, 4" % (sT0, sT0))
        e("s_add_u32 s%d, s%d, s%d" % (sT0, sT0, sC)); e("s_mul_i32 s%d, s%d, %d" % (sT0, sT0, M1_SLOT))
        e("s_mul_i32 s%d, s%d, 0x%x" % (sT1, sPass, M1_R))
        self.addr(sA, pWs, M1, [sT0, sT1])
        e("global_store_dword v40, v34, %s sc1" % sp(sA))
        e("global_store_dword v42, v43, %s sc1" % sp(sA))
        e("s_barrier")

    def l2pf_ilv(self, ntiles):
        if not ntiles or not self.ilv:
            return
        e = self.e
        D = self.nl("Lpfd")
        e("s_cmp_eq_u32 s%d, 0" % sPass); e("s_cbranch_scc0 %s" % D)
        tiles = [t for t in (3, 4, 6, 8, 10, 12)][:ntiles + 1]
        e("v_lshrrev_b32 v6, 5, v%d" % vL); e("v_lshlrev_b32 v6, 14, v6")
        e("v_and_b32 v5, 31, v%d" % vL); e("v_lshlrev_b32 v5, 7, v5"); e("v_add_u32 v5, 3072, v5")
        first = True
        for k in range(ntiles):
            e("s_cmp_eq_u32 s%d, 8" % sNS); e("s_cselect_b32 s%d, %d, %d" % (sT0, 2 * tiles[k + 1], 2 * tiles[k]))
            e("s_lshl_b32 s%d, s%d, 11" % (sT1, sT0)); e("s_xor_b32 s%d, s%d, s%d" % (sT1, sT1, sWb)); e("s_and_b32 s%d, s%d, 8192" % (sT1, sT1))
            e("s_lshl_b32 s%d, s%d, 14" % (sT0, sT0)); e("s_add_u32 s%d, s%d, s%d" % (sT0, sT0, sRot))
            e("v_add_u32 v7, s%d, v6" % sT0); e("v_and_b32 v7, 0x%x, v7" % (64 * self.stride - 1)); e("v_add_u32 v7, v7, v5")
            e("s_waitcnt vmcnt(0)")
            e("buffer_load_dword v8, v7, %s, s%d offen" % (sp(sCUR, 4), sT1))
        e("s_waitcnt vmcnt(0)")
        self.lab(D)

    def topup(self, tp=None):
        e = self.e
        L = self.nl("Tu"); D = self.nl("Tud")
        e("s_cmp_eq_u32 s%d, 0" % sPass); e("s_cbranch_scc0 %s" % D)
        e("s_sub_u32 s%d, s%d, %d" % (sT5, sNS, 4 if int(self.o.get("deepV", 99)) < NSTR_T else self.R))
        self.lab(L)
        if tp is None:
            tp = int(self.o.get("tpace", 1))
        if tp:
            e("s_waitcnt vmcnt(%d)" % (4 * (tp - 1)))
        self.issue()
        e("s_sub_u32 s%d, s%d, 1" % (sT5, sT5))
        e("s_cmp_lg_u32 s%d, 0" % sT5); e("s_cbranch_scc1 %s" % L)
        if self.l2pf:
            e("v_and_b32 v5, 31, v%d" % vL); e("v_lshlrev_b32 v5, 7, v5"); e("v_add_u32 v5, 3072, v5")
            e("v_lshrrev_b32 v6, 5, v%d" % vL); e("v_mul_u32_u24 v6, %d, v6" % self.stride); e("v_add_u32 v6, v5, v6")
            e("s_mov_b32 s%d, s%d" % (sT5, sOff))
            for k in range(self.l2pf):
                e("buffer_load_dword v5, v6, %s, s%d offen%s" % (sp(sCUR, 4), sT5, self.l2pol))
                e("s_add_u32 s%d, s%d, %d" % (sT5, sT5, 2 * self.stride))
                if self.stag:
                    e("s_and_b32 s%d, s%d, 0x%x" % (sT5, sT5, 64 * self.stride - 1))
        self.lab(D)

    def stage_S1(self):
        e = self.e
        e("s_mul_i32 s%d, s%d, %d" % (sT0, sIdx, 16 * M1_SLOT)); e("s_mul_i32 s%d, s%d, 0x%x" % (sT1, sPass, M1_R))
        self.addr(sA, pWs, M1 + 2304, [sT0, sT1])
        e("v_lshrrev_b32 v10, 4, v%d" % vL); e("v_mul_u32_u24 v10, %d, v10" % M1_SLOT)
        e("v_and_b32 v11, 15, v%d" % vL); e("v_lshl_add_u32 v11, v11, 4, v10")
        e("v_add_u32 v10, 256, v10")
        loads = []; regs = []
        for j in range(4):
            off = j * 4 * M1_SLOT - 2304
            loads.append("global_load_dwordx4 v[%d:%d], v11, %s offset:%d sc1" % (32 + 4 * j, 35 + 4 * j, sp(sA), off))
            loads.append("global_load_dwordx2 v[%d:%d], v10, %s offset:%d sc1" % (48 + 2 * j, 49 + 2 * j, sp(sA), off))
        self.poll(loads, list(range(32, 56)), 56, "Ps1")
        self.stamp(8)
        e("v_max3_f32 v56, v48, v50, v52"); e("v_max_f32 v56, v56, v54")
        self.xrows(56, 57, "v_max_f32")
        e("s_mov_b32 s%d, 0x%x" % (sT0, C_EXP))
        for j in range(4):
            e("v_sub_f32 v%d, v%d, v56" % (48 + 2 * j, 48 + 2 * j))
        for j in range(4):
            e("v_mul_f32 v%d, s%d, v%d" % (48 + 2 * j, sT0, 48 + 2 * j))
        for j in range(4):
            e("v_exp_f32 v%d, v%d" % (48 + 2 * j, 48 + 2 * j))
        self.nop(1)
        e("v_mul_f32 v56, v48, v49")
        for j in range(1, 4):
            e("v_fmac_f32 v56, v%d, v%d" % (48 + 2 * j, 49 + 2 * j))
        for d in range(4):
            e("v_mul_f32 v%d, v48, v%d" % (32 + d, 32 + d))
        for j in range(1, 4):
            for d in range(4):
                e("v_fmac_f32 v%d, v%d, v%d" % (32 + d, 48 + 2 * j, 32 + 4 * j + d))
        self.xrows(56, 57, "v_add_f32")
        e("v_rcp_f32 v56, v56")
        e("v_permlane32_swap_b32 v32, v34"); e("v_permlane32_swap_b32 v33, v35"); self.nop(1)
        e("v_add_f32 v32, v32, v34"); e("v_add_f32 v33, v33, v35")
        e("v_mov_b32 v34, v32"); e("v_mov_b32 v35, v33"); self.nop(2)
        e("v_permlane16_swap_b32 v32, v34"); e("v_permlane16_swap_b32 v33, v35"); self.nop(1)
        e("v_add_f32 v32, v32, v34"); e("v_add_f32 v33, v33, v35")
        e("v_mul_f32 v32, v32, v56"); e("v_mul_f32 v33, v33, v56")
        e("v_cvt_pk_bf16_f32 v32, v32, v33")
        e("v_mov_b32 v41, -2"); e("v_min_u32 v32, v32, v41")
        e("v_and_b32 v34, 15, v%d" % vL); e("v_lshlrev_b32 v34, 3, v34")
        e("v_lshrrev_b32 v35, 5, v%d" % vL); e("v_lshl_add_u32 v34, v35, 2, v34"); e("v_add_u32 v34, s%d, v34" % sVec)
        e("ds_write_b32 v34, v32")
        if self.o.get("dbg_a"):
            e("s_lshl_b32 s%d, s%d, 13" % (sT0, sPass)); e("s_lshl_b32 s%d, s%d, 7" % (sT1, sIdx))
            self.addr(sA, pWs, 0xC0000, [sT0, sT1])
            e("v_subrev_u32 v35, s%d, v34" % sVec)
            e("global_store_dword v35, v32, %s" % sp(sA))
        self.lane_rc()
        e("v_lshlrev_b32 v6, 3, v10"); e("v_add_u32 v6, s%d, v6" % sVec)
        e("v_lshl_add_u32 v7, v10, 2, v11"); e("v_mul_u32_u24 v7, %d, v7" % O_ROW); e("v_lshl_add_u32 v7, v12, 3, v7")
        e("s_mul_i32 s%d, s%d, 224" % (sT0, sWave)); e("s_add_u32 s%d, s%d, %d" % (sT0, sT0, L_W)); e("v_add_u32 v7, s%d, v7" % sT0)
        e("s_waitcnt lgkmcnt(0)")
        e("ds_read2_b64 v[36:39], v6 offset0:0 offset1:4"); e("ds_read2_b64 v[40:43], v6 offset0:8 offset1:12")
        for c0 in range(0, 7, 2):
            cts = [c for c in (c0, c0 + 1) if c < 7]
            k = 0
            for ct in cts:
                for m in range(2):
                    e("ds_read_b64_tr_b16 v[%d:%d], v7 offset:%d" % (48 + 4 * k, 49 + 4 * k, m * 32 * O_ROW + ct * 32))
                    e("ds_read_b64_tr_b16 v[%d:%d], v7 offset:%d" % (50 + 4 * k, 51 + 4 * k, (m * 32 + 16) * O_ROW + ct * 32))
                    k += 1
            e("s_waitcnt lgkmcnt(0)")
            k = 0
            for ct in cts:
                for m in range(2):
                    c = "0" if m == 0 else vr(8 + 4 * ct, 4)
                    e("v_mfma_f32_16x16x32_bf16 %s, %s, %s, %s" % (vr(8 + 4 * ct, 4), vr(36 + 4 * m, 4), vr(48 + 4 * k, 4), c))
                    k += 1
        self.nop(8)
        for row in range(1, 4):
            e("s_mov_b32 exec_lo, 0x%x" % (0xffff0000 if row == 1 else 0))
            e("s_mov_b32 exec_hi, 0x%x" % (0 if row == 1 else (0xffff << (16 * (row - 2)))))
            e("v_mov_b32 v8, v%d" % (8 + 4 * row))
            if row < 3:
                e("v_mov_b32 v24, v%d" % (24 + 4 * row))
        e("s_mov_b64 exec, -1")
        e("v_mov_b32 v41, -2"); e("v_min_u32 v8, v8, v41"); e("v_min_u32 v24, v24, v41")
        e("s_mul_i32 s%d, s%d, %d" % (sT0, sIdx, M2_SLOT)); e("s_mul_i32 s%d, s%d, 0x%x" % (sT1, sPass, M2_R)); e("s_mul_i32 s%d, s%d, 448" % (sT2, sWave))
        self.addr(sA, pWs, M2, [sT0, sT1, sT2])
        e("v_lshlrev_b32 v40, 2, v%d" % vL)
        e("global_store_dword v40, v8, %s sc1" % sp(sA))
        e("s_mov_b32 exec_hi, 0xffff")
        e("global_store_dword v40, v24, %s offset:256 sc1" % sp(sA))
        e("s_mov_b64 exec, -1")
        self.stamp(9)

    def reduce_waves16(self, src):
        e = self.e
        e("v_and_b32 v14, 15, v%d" % vL); e("v_lshlrev_b32 v14, 2, v14")
        e("s_lshl_b32 s%d, s%d, 6" % (sT0, sWave)); e("s_add_u32 s%d, s%d, %d" % (sT0, sT0, L_RED))
        e("v_add_u32 v15, s%d, v14" % sT0)
        e("ds_write_b32 v15, v%d" % src)
        e("s_waitcnt lgkmcnt(0)")
        e("s_barrier")
        for w in range(4):
            e("ds_read_b32 v%d, v14 offset:%d" % (16 + w, L_RED + w * 64))
        e("s_waitcnt lgkmcnt(0)")
        e("v_add_f32 v16, v16, v17"); e("v_add_f32 v18, v18, v19"); e("v_add_f32 v8, v16, v18")

    def stage_R(self):
        e = self.e
        e("v_lshrrev_b32 v20, 4, v%d" % vL); e("v_lshlrev_b32 v20, 2, v20")
        e("s_cmp_eq_u32 s%d, 0" % sPass); e("s_cbranch_scc0 L_R_r1")
        e("s_lshl_b32 s%d, s%d, 4" % (sT0, sIdx))
        self.addr(sB, pX, 0, [sT0])
        e("s_branch L_R_r2")
        self.lab("L_R_r1")
        e("s_lshr_b32 s%d, s%d, 1" % (sT0, sIdx)); e("s_lshl_b32 s%d, s%d, 7" % (sT0, sT0))
        e("s_and_b32 s%d, s%d, 1" % (sT1, sIdx)); e("s_lshl_b32 s%d, s%d, 4" % (sT1, sT1))
        self.addr(sB, pWs, M5, [sT0, sT1])
        self.lab("L_R_r2")
        e("global_load_dword v21, v20, %s sc1" % sp(sB))
        e("s_lshl_b32 s%d, s%d, 5" % (sT0, sIdx)); e("s_mul_i32 s%d, s%d, 0x%x" % (sT1, sPass, M2_R))
        self.addr(sA, pWs, M2, [sT0, sT1])
        e("v_mul_u32_u24 v8, %d, v%d" % (M2_SLOT, vL))
        self.poll(["global_load_dwordx4 v[32:35], v8, %s sc1" % sp(sA),
                   "global_load_dwordx4 v[36:39], v8, %s offset:16 sc1" % sp(sA)], list(range(32, 40)), 40, "Pa")
        self.stamp(8)
        for d in range(4):
            e("v_permlane32_swap_b32 v%d, v%d" % (32 + d, 36 + d))
        self.nop(1)
        for d in range(4):
            e("v_add_f32 v%d, v%d, v%d" % (32 + d, 32 + d, 36 + d))
        self.nop(2)
        e("v_permlane16_swap_b32 v32, v34"); e("v_permlane16_swap_b32 v33, v35"); self.nop(1)
        e("v_add_f32 v32, v32, v34"); e("v_add_f32 v33, v33, v35")
        for n in (8, 4, 2, 1):
            self.nop(1)
            e("v_add_f32_dpp v32, v32, v32 row_ror:%d row_mask:0xf bank_mask:0xf" % n)
            e("v_add_f32_dpp v33, v33, v33 row_ror:%d row_mask:0xf bank_mask:0xf" % n)
        e("v_cvt_pk_bf16_f32 v34, v32, v33")
        e("v_lshlrev_b32 v32, 16, v34"); e("v_and_b32 v33, 0xffff0000, v34")
        e("v_lshlrev_b32 v35, 16, v21"); e("v_and_b32 v36, 0xffff0000, v21")
        e("v_add_f32 v32, v32, v35"); e("v_add_f32 v33, v33, v36")
        e("v_cvt_pk_bf16_f32 v34, v32, v33")
        e("v_mov_b32 v41, -2"); e("v_min_u32 v34, v34, v41")
        e("s_lshl_b32 s%d, s%d, 13" % (sT0, sPass)); e("s_lshl_b32 s%d, s%d, 7" % (sT1, sIdx))
        self.addr(sA, pWs, M3, [sT0, sT1])
        e("s_mov_b32 exec_lo, 0x00010001"); e("s_mov_b32 exec_hi, 0x00010001")
        e("global_store_dword v20, v34, %s sc1" % sp(sA))
        e("s_mov_b64 exec, -1")
        self.stamp(9)

    def gather_x(self, base_off, slot_shift_mode):
        e = self.e
        e("v_min_u32 v8, 55, v%d" % vL)
        if slot_shift_mode == "M3":
            e("v_lshlrev_b32 v8, 7, v8")
        else:
            e("v_and_b32 v9, 1, v8"); e("v_lshrrev_b32 v8, 1, v8"); e("v_lshlrev_b32 v8, 7, v8"); e("v_lshl_add_u32 v8, v9, 4, v8")
        self.poll(["global_load_dwordx4 v[32:35], v8, %s sc1" % sp(sA)], [32, 33, 34, 35], 36, "Px")

    def stage_B(self):
        e = self.e
        e("s_lshl_b32 s%d, s%d, 13" % (sT0, sPass))
        self.addr(sA, pWs, M3, [sT0])
        self.gather_x(M3, "M3")
        self.stamp(8)
        if self.gapw:
            e("s_barrier")
        self.layernorm_to_vec()
        self.lane_rc()
        e("v_lshlrev_b32 v6, 3, v10"); e("v_add_u32 v6, s%d, v6" % sVec)
        e("v_lshl_add_u32 v7, v10, 2, v11"); e("v_lshlrev_b32 v7, 6, v7")
        e("v_and_b32 v14, 1, v12"); e("v_lshl_add_u32 v7, v14, 3, v7")
        e("v_lshrrev_b32 v14, 1, v12"); e("v_mul_u32_u24 v14, %d, v14" % B_IMG3); e("v_add_u32 v7, v7, v14")
        e("s_lshl_b32 s%d, s%d, 4" % (sT0, sWave)); e("s_add_u32 s%d, s%d, %d" % (sT0, sT0, L_W)); e("v_add_u32 v7, s%d, v7" % sT0)
        self.gemv_chain(14, lambda m: (8 * m, 8 * m + 4), 2048, 1024)
        self.bf16r(8, 8, 9)
        self.nop(1)
        e("v_mov_b32_dpp v10, v8 row_ror:8 row_mask:0xf bank_mask:0xf")
        e("v_mul_f32 v11, 0xbfb8aa3b, v8")
        e("v_exp_f32 v11, v11"); self.nop(1)
        e("v_add_f32 v11, 1.0, v11")
        e("v_rcp_f32 v11, v11"); self.nop(1)
        e("v_mul_f32 v11, v8, v11")
        self.bf16r(11, 11, 12)
        e("v_mul_f32 v11, v11, v10")
        self.nop(1)
        e("v_mov_b32_dpp v12, v11 quad_perm:[1,0,3,2] row_mask:0xf bank_mask:0xf")
        e("v_cvt_pk_bf16_f32 v12, v11, v12")
        e("v_mov_b32 v14, -2"); e("v_min_u32 v12, v12, v14")
        e("s_lshl_b32 s%d, s%d, 13" % (sT0, sPass)); e("s_lshl_b32 s%d, s%d, 7" % (sT1, sIdx)); e("s_lshl_b32 s%d, s%d, 4" % (sT2, sWave))
        self.addr(sA, pWs, M4, [sT0, sT1, sT2])
        e("v_lshlrev_b32 v14, 1, v%d" % vL)
        e("s_mov_b64 exec, 0x55")
        e("global_store_dword v14, v12, %s sc1" % sp(sA))
        e("s_mov_b64 exec, -1")

    def stage_C(self):
        e = self.e
        e("s_lshl_b32 s%d, s%d, 13" % (sT0, sPass)); e("s_lshl_b32 s%d, s%d, 8" % (sT1, sIdx))
        self.addr(sB, pWs, M3, [sT0, sT1])
        e("v_bfe_u32 v20, v%d, 3, 1" % vL); e("v_lshlrev_b32 v20, 7, v20")
        e("v_bfe_u32 v21, v%d, 1, 2" % vL); e("v_lshl_add_u32 v20, v21, 2, v20")
        self.poll(["global_load_dword v22, v20, %s sc1" % sp(sB)], [22], 23, "Pr")
        e("s_lshl_b32 s%d, s%d, 13" % (sT0, sPass)); e("s_mul_i32 s%d, s%d, %d" % (sT1, sWave, 14 * 128))
        self.addr(sA, pWs, M4, [sT0, sT1])
        e("v_min_u32 v8, 55, v%d" % vL)
        e("v_and_b32 v9, 3, v8"); e("v_lshrrev_b32 v8, 2, v8"); e("v_lshlrev_b32 v8, 7, v8"); e("v_lshl_add_u32 v8, v9, 4, v8")
        self.poll(["global_load_dwordx4 v[32:35], v8, %s sc1" % sp(sA)], [32, 33, 34, 35], 36, "Ph")
        self.stamp(8)
        e("v_lshlrev_b32 v8, 4, v%d" % vL); e("v_add_u32 v8, s%d, v8" % sVec)
        e("ds_write_b128 v8, v[32:35]")
        self.lane_rc()
        e("v_lshlrev_b32 v6, 3, v10"); e("v_add_u32 v6, s%d, v6" % sVec)
        e("s_mul_i32 s%d, s%d, %d" % (sT0, sWave, C_WAVE)); e("s_add_u32 s%d, s%d, %d" % (sT0, sT0, L_W))
        e("v_lshl_add_u32 v7, v10, 2, v11"); e("v_lshlrev_b32 v7, 5, v7"); e("v_lshl_add_u32 v7, v12, 3, v7"); e("v_add_u32 v7, s%d, v7" % sT0)
        e("s_waitcnt lgkmcnt(0)")
        self.gemv_chain(14, lambda m: (8 * m, 8 * m + 4), 1024, 512)
        self.reduce_waves16(8)
        e("s_cmp_eq_u32 s%d, 0" % sWave); e("s_cbranch_scc0 L_C_done")
        self.bf16r(8, 8, 9)
        e("v_and_b32 v23, 1, v%d" % vL); e("v_cmp_eq_u32 vcc, 1, v23")
        e("v_lshlrev_b32 v23, 16, v22"); e("v_and_b32 v22, 0xffff0000, v22")
        e("v_cndmask_b32 v22, v23, v22, vcc")
        e("v_add_f32 v8, v8, v22")
        self.nop(1)
        e("v_mov_b32_dpp v9, v8 quad_perm:[1,0,3,2] row_mask:0xf bank_mask:0xf")
        e("v_cvt_pk_bf16_f32 v9, v8, v9")
        e("v_lshlrev_b32 v14, 1, v%d" % vL)
        e("s_cmp_eq_u32 s%d, 0" % sPass); e("s_cbranch_scc0 L_C_out")
        e("v_mov_b32 v15, -2"); e("v_min_u32 v9, v9, v15")
        e("s_lshl_b32 s%d, s%d, 7" % (sT1, sIdx))
        self.addr(sA, pWs, M5, [sT1])
        e("s_mov_b64 exec, 0x5555")
        e("global_store_dword v14, v9, %s sc1" % sp(sA))
        e("s_mov_b64 exec, -1")
        e("s_branch L_C_done")
        self.lab("L_C_out")
        e("s_lshl_b32 s%d, s%d, 5" % (sT1, sIdx))
        self.addr(sA, pOut, 0, [sT1])
        e("s_mov_b64 exec, 0x5555")
        e("global_store_dword v14, v9, %s" % sp(sA))
        e("s_mov_b64 exec, -1")
        self.lab("L_C_done")


    def poll2(self, mk_loads, n, sets, dst, name="Q", sleep=0):
        e = self.e
        A, B = sets
        nl = len(mk_loads(A))
        L = self.nl(name); DA = self.nl(name + "a"); DB = self.nl(name + "b"); D = self.nl(name + "d")
        def check(base, target):
            rr = list(range(base, base + n))
            t = self.ptmp
            if n == 1:
                t = base
            else:
                if n >= 3:
                    e("v_max3_u32 v%d, v%d, v%d, v%d" % (t, rr[0], rr[1], rr[2])); rr = rr[3:]
                else:
                    e("v_max_u32 v%d, v%d, v%d" % (t, rr[0], rr[1])); rr = rr[2:]
                while rr:
                    if len(rr) >= 2:
                        e("v_max3_u32 v%d, v%d, v%d, v%d" % (t, t, rr[0], rr[1])); rr = rr[2:]
                    else:
                        e("v_max_u32 v%d, v%d, v%d" % (t, t, rr[0])); rr = rr[1:]
            e("v_cmp_eq_u32 vcc, -1, v%d" % t)
            e("s_cbranch_vccz %s" % target)
        e("s_mov_b32 s%d, 0" % sSpin)
        for ld in mk_loads(A): e(ld)
        self.lab(L)
        for ld in mk_loads(B): e(ld)
        e("s_waitcnt vmcnt(%d)" % nl)
        check(A, DA)
        for ld in mk_loads(A): e(ld)
        e("s_waitcnt vmcnt(%d)" % nl)
        check(B, DB)
        if sleep:
            e("s_sleep %d" % sleep)
        e("s_add_u32 s%d, s%d, 1" % (sSpin, sSpin))
        e("s_cmp_lt_u32 s%d, %d" % (sSpin, SPIN_LIMIT))
        e("s_cbranch_scc1 %s" % L)
        e("s_waitcnt vmcnt(0)")
        self.lab(DA)
        for i in range(n): e("v_mov_b32 v%d, v%d" % (dst + i, A + i))
        e("s_branch %s" % D)
        self.lab(DB)
        for i in range(n): e("v_mov_b32 v%d, v%d" % (dst + i, B + i))
        self.lab(D)

    ptmp = 31

    def rc2(self):
        e = self.e
        e("v_lshrrev_b32 v28, 4, v%d" % vL); e("v_bfe_u32 v29, v%d, 2, 2" % vL); e("v_and_b32 v30, 3, v%d" % vL)

    @property
    def NPRE(self):
        return 7 if self.o.get('stamps') else 8

    def breg(self, m):
        return 32 + 4 * (m % self.NPRE)

    def b_issue(self, lq, m, b_step, b_second):
        r = self.breg(m)
        lq.issue("ds_read_b64_tr_b16 v[%d:%d], v7 offset:%d" % (r, r + 1, m * b_step), ("B", m))
        lq.issue("ds_read_b64_tr_b16 v[%d:%d], v7 offset:%d" % (r + 2, r + 3, m * b_step + b_second), ("B", m))

    def chain2(self, lq, n, b_step, b_second, acc=16):
        e = self.e
        Ab = [20, 24, 28]
        def a_issue(m):
            lq.issue("ds_read2_b64 v[%d:%d], v6 offset0:%d offset1:%d" % (Ab[m % 3], Ab[m % 3] + 3, 8 * m, 8 * m + 4), ("A", m))
        for m in range(3):
            a_issue(m)
        for m in range(n):
            lq.wait([("A", m), ("B", m)])
            c = "0" if m == 0 else vr(acc, 4)
            e("v_mfma_f32_16x16x32_bf16 %s, %s, %s, %s" % (vr(acc, 4), vr(Ab[m % 3], 4), vr(self.breg(m), 4), c))
            if m + 3 < n:
                a_issue(m + 3)
            if m + self.NPRE < n:
                self.b_issue(lq, m + self.NPRE, b_step, b_second)
        self.nop(8)

    def ln2(self):
        e = self.e
        F = 20
        e("v_cmp_gt_u32 vcc, 56, v%d" % vL)
        for d in range(4):
            e("v_lshlrev_b32 v%d, 16, v%d" % (F + 2 * d, 16 + d))
            e("v_and_b32 v%d, 0xffff0000, v%d" % (F + 2 * d + 1, 16 + d))
        e("v_pk_add_f32 v[28:29], v[20:21], v[22:23]")
        e("v_pk_mul_f32 v[30:31], v[20:21], v[20:21]")
        e("v_pk_add_f32 v[16:17], v[24:25], v[26:27]")
        e("v_pk_fma_f32 v[30:31], v[22:23], v[22:23], v[30:31]")
        e("v_pk_add_f32 v[28:29], v[28:29], v[16:17]")
        e("v_pk_fma_f32 v[30:31], v[24:25], v[24:25], v[30:31]")
        e("v_add_f32 v28, v28, v29")
        e("v_pk_fma_f32 v[30:31], v[26:27], v[26:27], v[30:31]")
        e("v_cndmask_b32 v28, 0, v28, vcc")
        e("v_add_f32 v30, v30, v31")
        e("v_cndmask_b32 v30, 0, v30, vcc")
        for n in (8, 4, 2, 1):
            self.nop(1)
            e("v_add_f32_dpp v28, v28, v28 row_ror:%d row_mask:0xf bank_mask:0xf" % n)
            e("v_add_f32_dpp v30, v30, v30 row_ror:%d row_mask:0xf bank_mask:0xf" % n)
        for sw in ("v_permlane16_swap_b32", "v_permlane32_swap_b32"):
            e("v_mov_b32 v29, v28"); e("v_mov_b32 v31, v30"); self.nop(1)
            e("%s v28, v29" % sw); e("%s v30, v31" % sw)
            e("v_add_f32 v28, v28, v29"); e("v_add_f32 v30, v30, v31")
        e("v_mul_f32 v28, 0x3b124925, v28")
        e("v_mul_f32 v30, 0x3b124925, v30")
        e("v_cvt_pk_bf16_f32 v29, v28, v28")
        e("v_fma_f32 v30, -v28, v28, v30")
        e("v_and_b32 v28, 0xffff0000, v29")
        e("v_max_f32 v30, 0, v30")
        e("v_cvt_pk_bf16_f32 v31, v30, v30")
        e("v_pk_add_f32 v[20:21], v[20:21], v[28:29] op_sel_hi:[1,0] neg_lo:[0,1] neg_hi:[0,1]")
        e("v_and_b32 v30, 0xffff0000, v31")
        e("v_pk_add_f32 v[22:23], v[22:23], v[28:29] op_sel_hi:[1,0] neg_lo:[0,1] neg_hi:[0,1]")
        e("v_add_f32 v30, 0x3727c5ac, v30")
        e("v_pk_add_f32 v[24:25], v[24:25], v[28:29] op_sel_hi:[1,0] neg_lo:[0,1] neg_hi:[0,1]")
        e("v_cvt_pk_bf16_f32 v31, v30, v30")
        e("v_pk_add_f32 v[26:27], v[26:27], v[28:29] op_sel_hi:[1,0] neg_lo:[0,1] neg_hi:[0,1]")
        e("v_and_b32 v30, 0xffff0000, v31")
        e("v_cvt_pk_bf16_f32 v16, v20, v21")
        e("v_sqrt_f32 v30, v30")
        e("v_cvt_pk_bf16_f32 v17, v22, v23")
        e("v_cvt_pk_bf16_f32 v18, v24, v25")
        e("v_cvt_pk_bf16_f32 v31, v30, v30")
        e("v_cvt_pk_bf16_f32 v19, v26, v27")
        e("v_and_b32 v30, 0xffff0000, v31")
        e("v_lshlrev_b32 v20, 16, v16")
        e("v_rcp_f32 v30, v30")
        e("v_and_b32 v21, 0xffff0000, v16")
        for d in range(1, 4):
            e("v_lshlrev_b32 v%d, 16, v%d" % (F + 2 * d, 16 + d))
            e("v_and_b32 v%d, 0xffff0000, v%d" % (F + 2 * d + 1, 16 + d))
        for d in range(4):
            e("v_pk_mul_f32 v[%d:%d], v[%d:%d], v[30:31] op_sel_hi:[1,0]" % (F + 2 * d, F + 2 * d + 1, F + 2 * d, F + 2 * d + 1))
        for d in range(4):
            e("v_cvt_pk_bf16_f32 v%d, v%d, v%d" % (16 + d, F + 2 * d, F + 2 * d + 1))
        e("ds_write_b128 v5, v[16:19]")
        e("s_waitcnt lgkmcnt(0)")

    def prepBD(self, role):
        e = self.e
        self.rc2()
        e("v_lshlrev_b32 v6, 3, v28"); e("v_add_u32 v6, s%d, v6" % sVec)
        e("v_lshlrev_b32 v5, 4, v%d" % vL); e("v_add_u32 v5, s%d, v5" % sVec)
        e("v_lshl_add_u32 v7, v28, 2, v29")
        if role == "D":
            e("v_bfe_u32 v31, v7, 1, 2"); e("v_xor_b32 v31, s%d, v31" % sWave)
            e("v_lshlrev_b32 v7, 7, v7"); e("v_lshl_add_u32 v7, v31, 5, v7"); e("v_lshl_add_u32 v7, v30, 3, v7"); e("v_add_u32 v7, %d, v7" % L_W)
            st = (4096, 2048)
        elif role == "B":
            e("v_lshlrev_b32 v7, 6, v7")
            e("v_and_b32 v31, 1, v30"); e("v_lshl_add_u32 v7, v31, 3, v7")
            e("v_lshrrev_b32 v31, 1, v30"); e("v_mul_u32_u24 v31, %d, v31" % B_IMG3); e("v_add_u32 v7, v7, v31")
            e("s_lshl_b32 s%d, s%d, 4" % (sT0, sWave)); e("s_add_u32 s%d, s%d, %d" % (sT0, sT0, L_W)); e("v_add_u32 v7, s%d, v7" % sT0)
            st = (2048, 1024)
        else:
            e("s_mul_i32 s%d, s%d, %d" % (sT0, sWave, C_WAVE)); e("s_add_u32 s%d, s%d, %d" % (sT0, sT0, L_W))
            e("v_lshlrev_b32 v7, 5, v7"); e("v_lshl_add_u32 v7, v30, 3, v7"); e("v_add_u32 v7, s%d, v7" % sT0)
            st = (1024, 512)
        lq = LQ(self)
        for m in range(self.NPRE):
            self.b_issue(lq, m, st[0], st[1])
        return lq, st

    def poll_x2(self, mode):
        e = self.e
        e("v_min_u32 v19, 55, v%d" % vL)
        if mode == "M3":
            e("v_lshlrev_b32 v19, 7, v19")
        else:
            e("v_and_b32 v18, 1, v19"); e("v_lshrrev_b32 v19, 1, v19"); e("v_lshlrev_b32 v19, 7, v19"); e("v_lshl_add_u32 v19, v18, 4, v19")
        e("v_mov_b32 v29, v19")
        self.poll2(lambda b: ["global_load_dwordx4 v[%d:%d], v29, %s sc1" % (b, b + 3, sp(sA))], 4, (8, 12), 16, "Qx")

    def publish_pairs(self, val, tmp, base_pair, off_vreg, mask):
        e = self.e
        e("v_mov_b32_dpp v%d, v%d quad_perm:[1,0,3,2] row_mask:0xf bank_mask:0xf" % (tmp, val))
        e("v_cvt_pk_bf16_f32 v%d, v%d, v%d" % (tmp, val, tmp))
        e("v_min_u32 v%d, v%d, v%d" % (tmp, tmp, 27))
        e("s_mov_b64 exec, 0x%x" % mask)
        e("global_store_dword v%d, v%d, %s sc1" % (off_vreg, tmp, sp(base_pair)))
        e("s_mov_b64 exec, -1")

    def wait_leftover(self):
        e = self.e
        a = self.nl("Lwl"); b = self.nl("Lwl")
        e("s_cmp_eq_u32 s%d, 0" % sWave); e("s_cbranch_scc1 %s" % a)
        e("s_waitcnt vmcnt(0)"); e("s_branch %s" % b)
        self.lab(a); e("s_waitcnt vmcnt(1)"); self.lab(b)

    def publish_wg(self, val, tmp, base_pair, nper, mask):
        e = self.e
        sk = self.nl("Lpw")
        e("v_mov_b32_dpp v%d, v%d quad_perm:[1,0,3,2] row_mask:0xf bank_mask:0xf" % (tmp, val))
        e("s_mul_i32 s%d, s%d, %d" % (sT0, sWave, nper * 4)); e("s_add_u32 s%d, s%d, %d" % (sT0, sT0, L_RED))
        e("v_cvt_pk_bf16_f32 v%d, v%d, v%d" % (tmp, val, tmp))
        e("v_lshlrev_b32 v26, 1, v%d" % vL); e("v_add_u32 v26, s%d, v26" % sT0)
        e("v_min_u32 v%d, v%d, v%d" % (tmp, tmp, 27))
        e("s_mov_b64 exec, 0x%x" % mask)
        e("ds_write_b32 v26, v%d" % tmp)
        e("s_mov_b64 exec, -1")
        e("v_lshlrev_b32 v26, 2, v%d" % vL)
        e("s_waitcnt lgkmcnt(0)")
        e("s_barrier")
        e("s_cmp_eq_u32 s%d, 0" % sWave); e("s_cbranch_scc0 %s" % sk)
        e("ds_read_b32 v%d, v26 offset:%d" % (tmp, L_RED))
        e("s_mov_b64 exec, 0x%x" % ((1 << (4 * nper)) - 1) if 4 * nper < 32 else "s_mov_b32 exec_hi, 0")
        e("s_waitcnt lgkmcnt(0)")
        e("global_store_dword v26, v%d, %s sc1" % (tmp, sp(base_pair)))
        e("s_mov_b64 exec, -1")
        self.lab(sk)

    def stageD2_prep(self):
        self.lqD, self.stD = self.prepBD("D")

    def stageD2_rest(self):
        e = self.e
        lq = LQ(self); lq.q = [("B", m) for m in range(self.NPRE) for _ in range(2)]
        self.ln2(); lq.q = []
        self.chain2(lq, 14, 4096, 2048)
        e("v_mov_b32 v27, -2")
        if self.onest:
            self.publish_wg(16, 25, sB, 8, 0x5555)
        else:
            e("v_lshlrev_b32 v26, 1, v%d" % vL)
            self.publish_pairs(16, 25, sB, 26, 0x5555)

    def stage_B2(self):
        e = self.e
        e("s_waitcnt vmcnt(0)"); e("s_barrier")
        self.stamp(11)
        lq, st = self.prepBD("B")
        e("s_lshl_b32 s%d, s%d, 13" % (sT0, sPass)); e("s_lshl_b32 s%d, s%d, 7" % (sT1, sIdx)); e("s_lshl_b32 s%d, s%d, 4" % (sT2, sWave))
        self.addr(sB, pWs, M4, [sT0, sT1] if self.onest else [sT0, sT1, sT2])
        self.addr(sA, pWs, M3, [sT0])
        self.poll_x2("M3")
        self.stamp(8)
        self.ln2(); lq.q = []
        self.chain2(lq, 14, st[0], st[1])
        e("v_cvt_pk_bf16_f32 v17, v16, v16"); e("v_and_b32 v16, 0xffff0000, v17")
        e("v_mul_f32 v19, 0xbfb8aa3b, v16")
        e("v_exp_f32 v19, v19")
        e("v_mov_b32_dpp v18, v16 row_ror:8 row_mask:0xf bank_mask:0xf")
        e("v_add_f32 v19, 1.0, v19")
        e("v_rcp_f32 v19, v19"); e("v_mov_b32 v27, -2")
        e("v_mul_f32 v19, v16, v19")
        e("v_cvt_pk_bf16_f32 v17, v19, v19"); e("v_and_b32 v19, 0xffff0000, v17")
        e("v_mul_f32 v19, v19, v18")
        if self.onest:
            self.nop(2)
            self.publish_wg(19, 25, sB, 4, 0x55)
            self.stamp(9)
            self.wait_leftover()
        else:
            e("v_lshlrev_b32 v26, 1, v%d" % vL); self.nop(1)
            self.publish_pairs(19, 25, sB, 26, 0x55)
            self.stamp(9)
            e("s_waitcnt vmcnt(1)")

    def stage_C2(self):
        e = self.e
        e("s_waitcnt vmcnt(0)")
        self.stamp(11)
        lq, st = self.prepBD("C")
        e("s_lshl_b32 s%d, s%d, 13" % (sT0, sPass)); e("s_lshl_b32 s%d, s%d, 8" % (sT1, sIdx))
        self.addr(sB, pWs, M3, [sT0, sT1])
        e("v_bfe_u32 v20, v%d, 3, 1" % vL); e("v_lshlrev_b32 v20, 7, v20")
        e("v_bfe_u32 v21, v%d, 1, 2" % vL); e("v_lshl_add_u32 v20, v21, 2, v20")
        self.poll(["global_load_dword v22, v20, %s sc1" % sp(sB)], [22], 23, "Pr")
        self.stamp(12)
        e("v_and_b32 v23, 1, v%d" % vL); e("v_cmp_eq_u32 vcc, 1, v23")
        e("v_lshlrev_b32 v23, 16, v22"); e("v_and_b32 v22, 0xffff0000, v22")
        e("v_cndmask_b32 v22, v23, v22, vcc")
        e("v_and_b32 v23, 15, v%d" % vL); e("v_lshlrev_b32 v23, 2, v23")
        e("ds_write_b32 v23, v22 offset:%d" % (L_RED + 256))
        lq.q.append(("S", 0))
        e("s_lshl_b32 s%d, s%d, 13" % (sT0, sPass)); e("s_mul_i32 s%d, s%d, %d" % (sT1, sWave, 14 * 128))
        self.addr(sA, pWs, M4, [sT0, sT1])
        e("v_min_u32 v29, 55, v%d" % vL)
        e("v_and_b32 v28, 3, v29"); e("v_lshrrev_b32 v29, 2, v29"); e("v_lshlrev_b32 v29, 7, v29"); e("v_lshl_add_u32 v29, v28, 4, v29")
        e("s_cmp_eq_u32 s%d, 0" % sPass)
        e("s_lshl_b32 s%d, s%d, 7" % (sT1, sIdx)); e("s_lshl_b32 s%d, s%d, 5" % (sT2, sIdx))
        lo = self.nl("Lco"); ld = self.nl("Lcod")
        e("s_cmp_eq_u32 s%d, 0" % sPass); e("s_cbranch_scc0 %s" % lo)
        self.addr(sB, pWs, M5, [sT1]); e("s_branch %s" % ld)
        self.lab(lo); self.addr(sB, pOut, 0, [sT2]); self.lab(ld)
        self.poll2(lambda b: ["global_load_dwordx4 v[%d:%d], v29, %s sc1" % (b, b + 3, sp(sA))], 4, (8, 12), 16, "Qh")
        self.stamp(8)
        e("ds_write_b128 v5, v[16:19]")
        e("s_waitcnt lgkmcnt(0)"); lq.q = []
        self.chain2(lq, 14, st[0], st[1])
        e("v_and_b32 v20, 15, v%d" % vL); e("v_lshlrev_b32 v20, 2, v20")
        e("s_lshl_b32 s%d, s%d, 6" % (sT0, sWave)); e("s_add_u32 s%d, s%d, %d" % (sT0, sT0, L_RED))
        e("v_add_u32 v21, s%d, v20" % sT0)
        e("ds_write_b32 v21, v16")
        e("s_waitcnt lgkmcnt(0)")
        e("s_barrier")
        lz = self.nl("Lcz")
        e("s_cmp_eq_u32 s%d, 0" % sWave); e("s_cbranch_scc0 %s" % lz)
        for w in range(4):
            e("ds_read_b32 v%d, v20 offset:%d" % (22 + w, L_RED + w * 64))
        e("ds_read_b32 v21, v20 offset:%d" % (L_RED + 256))
        e("v_mov_b32 v27, -2"); e("v_lshlrev_b32 v26, 1, v%d" % vL)
        e("s_waitcnt lgkmcnt(0)")
        e("v_add_f32 v22, v22, v23"); e("v_add_f32 v24, v24, v25"); e("v_add_f32 v16, v22, v24")
        e("v_cvt_pk_bf16_f32 v17, v16, v16"); e("v_and_b32 v16, 0xffff0000, v17")
        e("v_add_f32 v16, v16, v21")
        self.nop(1)
        self.publish_pairs(16, 25, sB, 26, 0x5555)
        le = self.nl("Lce")
        self.stamp(9)
        e("s_waitcnt vmcnt(1)"); e("s_branch %s" % le)
        self.lab(lz)
        e("s_waitcnt vmcnt(0)")
        self.lab(le)


    def stage_O2(self):
        e = self.e
        self.rc2()
        e("v_lshlrev_b32 v6, 3, v28"); e("v_add_u32 v6, s%d, v6" % sVec)
        e("v_lshl_add_u32 v7, v28, 2, v29"); e("v_mul_u32_u24 v7, %d, v7" % O_ROW); e("v_lshl_add_u32 v7, v30, 3, v7")
        e("s_mul_i32 s%d, s%d, 224" % (sT0, sWave)); e("s_add_u32 s%d, s%d, %d" % (sT0, sT0, L_W)); e("v_add_u32 v7, s%d, v7" % sT0)
        e("v_and_b32 v5, 15, v%d" % vL); e("v_lshlrev_b32 v5, 3, v5")
        e("v_lshrrev_b32 v9, 5, v%d" % vL); e("v_lshl_add_u32 v5, v9, 2, v5"); e("v_add_u32 v5, s%d, v5" % sVec)
        e("s_mul_i32 s%d, s%d, %d" % (sT0, sIdx, M2_SLOT)); e("s_mul_i32 s%d, s%d, 0x%x" % (sT1, sPass, M2_R)); e("s_lshl_b32 s%d, s%d, 9" % (sT2, sWave))
        self.addr(sB, pWs, M2, [sT0, sT1, sT2])
        e("s_mul_i32 s%d, s%d, %d" % (sT0, sIdx, 16 * M1_SLOT)); e("s_mul_i32 s%d, s%d, 0x%x" % (sT1, sPass, M1_R))
        self.addr(sA, pWs, M1 + 2304, [sT0, sT1])
        e("v_mul_u32_u24 v10, %d, v28" % M1_SLOT)
        e("v_and_b32 v11, 15, v%d" % vL); e("v_lshl_add_u32 v11, v11, 4, v10")
        e("v_add_u32 v10, 256, v10")
        e("s_mov_b32 s%d, 0x%x" % (sT3, C_EXP))
        loads = []
        for j in range(4):
            off = j * 4 * M1_SLOT - 2304
            loads.append("global_load_dwordx2 v[%d:%d], v10, %s offset:%d sc1" % (48 + 2 * j, 49 + 2 * j, sp(sA), off))
            loads.append("global_load_dwordx4 v[%d:%d], v11, %s offset:%d sc1" % (32 + 4 * j, 35 + 4 * j, sp(sA), off))
        self.poll(loads, list(range(32, 56)), 56, "Ps1")
        self.stamp(8)
        e("v_max3_f32 v56, v48, v50, v52"); e("v_max_f32 v56, v56, v54")
        for sw in ("v_permlane16_swap_b32", "v_permlane32_swap_b32"):
            e("v_mov_b32 v57, v56"); self.nop(2); e("%s v56, v57" % sw); e("v_max_f32 v56, v56, v57")
        for j in range(4):
            e("v_sub_f32 v%d, v%d, v56" % (48 + 2 * j, 48 + 2 * j))
        for j in range(4):
            e("v_mul_f32 v%d, s%d, v%d" % (48 + 2 * j, sT3, 48 + 2 * j))
        for j in range(4):
            e("v_exp_f32 v%d, v%d" % (48 + 2 * j, 48 + 2 * j))
        self.nop(1)
        e("v_mul_f32 v56, v48, v49")
        e("v_pk_mul_f32 v[32:33], v[32:33], v[48:49] op_sel_hi:[1,0]"); e("v_pk_mul_f32 v[34:35], v[34:35], v[48:49] op_sel_hi:[1,0]")
        for j in range(1, 4):
            e("v_fmac_f32 v56, v%d, v%d" % (48 + 2 * j, 49 + 2 * j))
            e("v_pk_fma_f32 v[32:33], v[%d:%d], v[%d:%d], v[32:33] op_sel_hi:[1,0,1]" % (32 + 4 * j, 33 + 4 * j, 48 + 2 * j, 49 + 2 * j))
            e("v_pk_fma_f32 v[34:35], v[%d:%d], v[%d:%d], v[34:35] op_sel_hi:[1,0,1]" % (34 + 4 * j, 35 + 4 * j, 48 + 2 * j, 49 + 2 * j))
        e("v_mov_b32 v57, v56"); self.nop(1)
        e("v_permlane32_swap_b32 v32, v34"); e("v_permlane32_swap_b32 v33, v35"); e("v_permlane32_swap_b32 v56, v57")
        e("v_add_f32 v32, v32, v34"); e("v_add_f32 v33, v33, v35"); e("v_add_f32 v56, v56, v57")
        e("v_mov_b32 v34, v32"); e("v_mov_b32 v35, v33"); e("v_mov_b32 v57, v56"); self.nop(1)
        e("v_permlane16_swap_b32 v32, v34"); e("v_permlane16_swap_b32 v33, v35"); e("v_permlane16_swap_b32 v56, v57")
        e("v_add_f32 v56, v56, v57"); e("v_add_f32 v32, v32, v34"); e("v_rcp_f32 v56, v56"); e("v_add_f32 v33, v33, v35")
        self.nop(1)
        e("v_pk_mul_f32 v[32:33], v[32:33], v[56:57] op_sel_hi:[1,0]")
        e("v_cvt_pk_bf16_f32 v32, v32, v33")
        lq = LQ(self)
        lq.issue("ds_write_b32 v5, v32", "W")
        if self.o.get("dbg_a"):
            e("s_lshl_b32 s%d, s%d, 13" % (sT0, sPass)); e("s_lshl_b32 s%d, s%d, 7" % (sT1, sIdx))
            self.addr(sA, pWs, 0xC0000, [sT0, sT1])
            e("v_subrev_u32 v35, s%d, v5" % sVec)
            e("global_store_dword v35, v32, %s" % sp(sA))
        steps = [(ct, m) for ct in range(7) for m in range(2)]
        def b_iss(k):
            ct, m = steps[k]; r = 44 + 4 * (k % 5)
            lq.issue("ds_read_b64_tr_b16 v[%d:%d], v7 offset:%d" % (r, r + 1, m * 32 * O_ROW + ct * 32), ("B", k))
            lq.issue("ds_read_b64_tr_b16 v[%d:%d], v7 offset:%d" % (r + 2, r + 3, (m * 32 + 16) * O_ROW + ct * 32), ("B", k))
        for k in range(5):
            b_iss(k)
        lq.wait(["W"])
        lq.issue("ds_read2_b64 v[36:39], v6 offset0:0 offset1:4", "A"); lq.issue("ds_read2_b64 v[40:43], v6 offset0:8 offset1:12", "A")
        for k, (ct, m) in enumerate(steps):
            lq.wait([("B", k), "A"])
            acc = [12, 16, 20, 24, 28, 32, 8][ct]
            c = "0" if m == 0 else vr(acc, 4)
            e("v_mfma_f32_16x16x32_bf16 %s, %s, %s, %s" % (vr(acc, 4), vr(36 + 4 * m, 4), vr(44 + 4 * (k % 5), 4), c))
            if k + 5 < len(steps):
                b_iss(k + 5)
        self.nop(8)
        for row in range(1, 4):
            e("s_mov_b32 exec_lo, 0x%x" % (0xffff0000 if row == 1 else 0))
            e("s_mov_b32 exec_hi, 0x%x" % (0 if row == 1 else (0xffff << (16 * (row - 2)))))
            e("v_mov_b32 v12, v%d" % (12 + 4 * row))
            if row < 3:
                e("v_mov_b32 v28, v%d" % (32 if row == 1 else 8))
        e("s_mov_b64 exec, -1")
        e("v_mov_b32 v41, -2"); e("v_lshlrev_b32 v42, 2, v%d" % vL); e("v_min_u32 v12, v12, v41"); e("v_min_u32 v28, v28, v41")
        e("global_store_dword v42, v12, %s sc1" % sp(sB))
        e("s_mov_b32 exec_hi, 0xffff")
        e("global_store_dword v42, v28, %s offset:256 sc1" % sp(sB))
        e("s_mov_b64 exec, -1")
        self.stamp(9)

    def stage_R2(self):
        e = self.e
        e("v_lshrrev_b32 v24, 4, v%d" % vL); e("v_lshlrev_b32 v24, 2, v24")
        e("s_cmp_eq_u32 s%d, 0" % sPass); e("s_cbranch_scc0 L_R_r1")
        e("s_lshl_b32 s%d, s%d, 4" % (sT0, sIdx))
        self.addr(sB, pX, 0, [sT0])
        e("s_branch L_R_r2")
        self.lab("L_R_r1")
        e("s_lshr_b32 s%d, s%d, 1" % (sT0, sIdx)); e("s_lshl_b32 s%d, s%d, 7" % (sT0, sT0))
        e("s_and_b32 s%d, s%d, 1" % (sT1, sIdx)); e("s_lshl_b32 s%d, s%d, 4" % (sT1, sT1))
        self.addr(sB, pWs, M5, [sT0, sT1])
        self.lab("L_R_r2")
        e("global_load_dword v25, v24, %s sc1" % sp(sB))
        e("s_lshl_b32 s%d, s%d, 13" % (sT0, sPass)); e("s_lshl_b32 s%d, s%d, 7" % (sT1, sIdx))
        self.addr(sB, pWs, M3, [sT0, sT1])
        e("s_mul_i32 s%d, s%d, 4682" % (sT2, sIdx)); e("s_lshr_b32 s%d, s%d, 16" % (sT2, sT2))
        e("s_mul_i32 s%d, s%d, 14" % (sT3, sT2)); e("s_sub_u32 s%d, s%d, s%d" % (sT3, sIdx, sT3))
        e("s_lshl_b32 s%d, s%d, 9" % (sT2, sT2)); e("s_lshl_b32 s%d, s%d, 5" % (sT3, sT3)); e("s_add_u32 s%d, s%d, s%d" % (sT0, sT2, sT3))
        e("s_mul_i32 s%d, s%d, 0x%x" % (sT1, sPass, M2_R))
        self.addr(sA, pWs, M2, [sT0, sT1])
        e("v_mul_u32_u24 v29, %d, v%d" % (M2_SLOT, vL)); e("v_mov_b32 v41, -2")
        self.poll2(lambda b: ["global_load_dwordx4 v[%d:%d], v29, %s sc1" % (b, b + 3, sp(sA)),
                              "global_load_dwordx4 v[%d:%d], v29, %s offset:16 sc1" % (b + 4, b + 7, sp(sA))], 8, (8, 16), 32, "Qr")
        self.stamp(8)
        self.nop(1)
        for d in range(4):
            e("v_permlane32_swap_b32 v%d, v%d" % (32 + d, 36 + d))
        e("v_pk_add_f32 v[32:33], v[32:33], v[36:37]"); e("v_pk_add_f32 v[34:35], v[34:35], v[38:39]")
        self.nop(2)
        e("v_permlane16_swap_b32 v32, v34"); e("v_permlane16_swap_b32 v33, v35")
        e("v_pk_add_f32 v[32:33], v[32:33], v[34:35]")
        for n in (8, 4, 2, 1):
            self.nop(1 if n == 8 else 1)
            if n == 8: self.nop(1)
            e("v_add_f32_dpp v32, v32, v32 row_ror:%d row_mask:0xf bank_mask:0xf" % n)
            e("v_add_f32_dpp v33, v33, v33 row_ror:%d row_mask:0xf bank_mask:0xf" % n)
        e("v_cvt_pk_bf16_f32 v34, v32, v33")
        e("v_lshlrev_b32 v35, 16, v25"); e("v_and_b32 v36, 0xffff0000, v25")
        e("v_lshlrev_b32 v32, 16, v34"); e("v_and_b32 v33, 0xffff0000, v34")
        e("v_add_f32 v32, v32, v35"); e("v_add_f32 v33, v33, v36")
        e("v_cvt_pk_bf16_f32 v34, v32, v33")
        e("v_min_u32 v34, v34, v41")
        e("s_mov_b32 exec_lo, 0x00010001"); e("s_mov_b32 exec_hi, 0x00010001")
        e("global_store_dword v24, v34, %s sc1" % sp(sB))
        e("s_mov_b64 exec, -1")
        self.stamp(9)
        e("s_waitcnt vmcnt(1)")


    def probe_near(self):
        e = self.e
        sk = self.nl("Lpr"); lp = self.nl("Lprl"); bar = self.nl("Lprb")
        N = max(self.alN, 1)
        NP = int(self.o.get("nprobe", 5 if N <= 2 else 4))
        e("s_cmp_eq_u32 s%d, 0" % sPass); e("s_cbranch_scc0 %s" % sk)
        e("s_and_b32 s%d, s%d, 3" % (sT5, sIdx)); e("s_cmp_lt_u32 s%d, 2" % sT5); e("s_cbranch_scc0 %s" % sk)
        e("s_waitcnt vmcnt(0)")
        e("s_cmp_eq_u32 s%d, 0" % sWave); e("s_cbranch_scc0 %s" % bar)
        e("s_cmp_eq_u32 s%d, 1" % sT5)
        e("s_cselect_b32 s%d, s%d, s%d" % (sA, sVB, sKB)); e("s_cselect_b32 s%d, s%d, s%d" % (sA + 1, sVB + 1, sKB + 1))
        e("s_lshr_b32 s%d, s%d, 2" % (sT0, sIdx)); e("s_lshl_b32 s%d, s%d, 4" % (sT0, sT0))
        e("s_and_b32 s%d, s2, 7" % sT1); e("s_xor_b32 s%d, s%d, 4" % (sT1, sT1)); e("s_add_u32 s%d, s%d, s%d" % (sRho, sT0, sT1))
        e("s_mov_b32 s%d, s%d" % (sT0, sRho)); e("s_sub_i32 s%d, s%d, s2" % (sT1, sT0)); e("s_lshl_b32 s%d, s%d, 20" % (sT1, sT1)); e("s_add_i32 s%d, s%d, 3072" % (sT1, sT1))
        e("s_ashr_i32 s%d, s%d, 31" % (sT2, sT1))
        e("s_add_u32 s%d, s%d, s%d" % (sA, sA, sT1)); e("s_addc_u32 s%d, s%d, s%d" % (sA + 1, sA + 1, sT2))
        e("s_mul_i32 s%d, s%d, %d" % (sT4, sT0, self.stag)); e("s_and_b32 s%d, s%d, 63" % (sT4, sT4)); e("s_mul_i32 s%d, s%d, %d" % (sT4, sT4, self.stride))
        e("s_cmp_eq_u32 s%d, 1" % sT5); e("s_cselect_b32 s%d, 65, 29" % sT0)
        e("s_lshr_b32 s%d, s%d, 3" % (sT1, sRho)); e("s_add_u32 s%d, s%d, s%d" % (sT0, sT0, sT1)); e("s_add_u32 s%d, s%d, 32" % (sT0, sT0))
        e("s_sub_u32 s%d, 0, s%d" % (sT0, sT0)); e("s_and_b32 s%d, s%d, %d" % (sT0, sT0, N - 1)); e("s_add_u32 s%d, s%d, 32" % (sT0, sT0))
        e("s_mul_i32 s%d, s%d, %d" % (sT0, sT0, self.stride)); e("s_add_u32 s%d, s%d, s%d" % (sT1, sT4, sT0)); e("s_and_b32 s%d, s%d, 0x%x" % (sT1, sT1, 64 * self.stride - 1))
        if self.ilv:
            lk = self.nl("Lprk")
            e("s_mov_b32 s%d, %d" % (sEx, N * self.stride))
            e("s_cmp_eq_u32 s%d, 1" % sT5); e("s_cbranch_scc0 %s" % lk)
            e("s_lshr_b32 s%d, s%d, 3" % (sT1, sRho)); e("s_add_u32 s%d, s%d, %d" % (sT1, sT1, 93 + 2))
            e("s_sub_u32 s%d, 0, s%d" % (sT1, sT1)); e("s_and_b32 s%d, s%d, %d" % (sT1, sT1, N - 1)); e("s_add_u32 s%d, s%d, 2" % (sT1, sT1))
            e("s_and_b32 s%d, s%d, 1" % (sT0, sT1)); e("s_lshl_b32 s%d, s%d, 1" % (sT1, sT1)); e("s_sub_u32 s%d, s%d, s%d" % (sT1, sT1, sT0)); e("s_add_u32 s%d, s%d, 10" % (sT1, sT1))
            e("s_mul_i32 s%d, s%d, %d" % (sT1, sT1, self.stride)); e("s_add_u32 s%d, s%d, s%d" % (sT1, sT1, sT4)); e("s_and_b32 s%d, s%d, 0x%x" % (sT1, sT1, 64 * self.stride - 1))
            e("s_mov_b32 s%d, %d" % (sEx, 2 * N * self.stride))
            self.lab(lk)
        e("s_mov_b32 s%d, -1" % sT2); e("s_mov_b32 s%d, -1" % sT3); e("s_mov_b32 s%d, %d" % (sT0, NP))
        self.lab(lp)
        for par, acc in ((0, sT2), (1, sT3)):
            e("s_add_u32 s%d, s%d, %d" % (sT4, sT1, par * 8192 + 1024)); e("v_mov_b32 v8, s%d" % sT4)
            e("s_memtime s[90:91]"); e("s_waitcnt lgkmcnt(0)"); e("s_mov_b32 s%d, s90" % sT4)
            e("global_load_dword v9, v8, %s nt" % sp(sA))
            e("s_waitcnt vmcnt(0)")
            e("s_memtime s[90:91]"); e("s_waitcnt lgkmcnt(0)")
            e("s_sub_u32 s%d, s90, s%d" % (sT4, sT4)); e("s_min_u32 s%d, s%d, s%d" % (acc, acc, sT4))
        if self.ilv:
            e("s_add_u32 s%d, s%d, s%d" % (sT1, sT1, sEx))
        else:
            e("s_add_u32 s%d, s%d, %d" % (sT1, sT1, N * self.stride))
        e("s_and_b32 s%d, s%d, 0x%x" % (sT1, sT1, 64 * self.stride - 1))
        e("s_sub_u32 s%d, s%d, 1" % (sT0, sT0)); e("s_cmp_lg_u32 s%d, 0" % sT0); e("s_cbranch_scc1 %s" % lp)
        e("s_lshr_b32 s%d, s%d, 1" % (sT0, sRho)); e("s_lshr_b32 s%d, s2, 2" % sT1); e("s_xor_b32 s%d, s%d, s%d" % (sT0, sT0, sT1)); e("s_and_b32 s%d, s%d, 1" % (sT0, sT0))
        e("s_cmp_gt_u32 s%d, s%d" % (sT2, sT3)); e("s_cselect_b32 s%d, 1, 0" % sT1); e("s_xor_b32 s%d, s%d, s%d" % (sT1, sT1, sT0))
        if self.o.get("dbg_probe"):
            e("s_lshr_b32 s%d, s%d, 3" % (sT2, sT2)); e("s_min_u32 s%d, s%d, 0x3ff" % (sT2, sT2)); e("s_lshl_b32 s%d, s%d, 2" % (sT2, sT2))
            e("s_lshr_b32 s%d, s%d, 3" % (sT3, sT3)); e("s_min_u32 s%d, s%d, 0x3ff" % (sT3, sT3)); e("s_lshl_b32 s%d, s%d, 12" % (sT3, sT3))
            e("s_or_b32 s%d, s%d, s%d" % (sT1, sT1, sT2)); e("s_or_b32 s%d, s%d, s%d" % (sT1, sT1, sT3))
        e("v_mov_b32 v8, s%d" % sT1)
        e("s_lshr_b32 s%d, s%d, 2" % (sT0, sIdx)); e("s_lshl_b32 s%d, s%d, 7" % (sT0, sT0)); e("s_lshl_b32 s%d, s%d, 2" % (sT1, sT5))
        self.addr(sB, pWs, M8, [sT0, sT1])
        e("v_mov_b32 v9, 0")
        e("s_mov_b64 exec, 1")
        e("global_store_dword v9, v8, %s sc1" % sp(sB))
        e("s_mov_b64 exec, -1")
        self.lab(bar)
        e("s_barrier")
        self.lab(sk)


    def emit_issue_sub(self):
        e = self.e
        mask = 64 * self.stride - 1
        t0, t1, t2 = sOf2, sT0 + 0, sT0 + 0
        self.lab("L_issue")
        e("s_mov_b32 m0, s%d" % sSlot)
        e("s_add_u32 s%d, s%d, 4096" % (sSlot, sSlot))
        e("s_cmp_eq_u32 s%d, s%d" % (sSlot, sRe))
        e("s_cselect_b32 s%d, s%d, s%d" % (sSlot, sRs, sSlot))
        X, Y = 90, 91
        e("s_mov_b32 s%d, s%d" % (X, sJ))
        e("s_cmp_eq_u32 s%d, 0" % sIsV); e("s_cbranch_scc1 L_is_k")
        e("s_and_b32 s%d, s%d, 1" % (Y, sJ)); e("s_lshl_b32 s%d, s%d, 1" % (X, sJ)); e("s_sub_u32 s%d, s%d, s%d" % (X, X, Y)); e("s_add_u32 s%d, s%d, s%d" % (X, X, sVadd))
        e("s_bitcmp1_b32 s%d, 31" % sVadd); e("s_cbranch_scc1 L_is_vres")
        e("s_add_u32 s%d, s%d, 28" % (Y, sJ)); e("s_cmp_ge_u32 s%d, 20" % sJ); e("s_cselect_b32 s%d, s%d, s%d" % (X, Y, X))
        e("s_branch L_is_v2")
        self.lab("L_is_vres")
        e("s_cmp_lt_u32 s%d, 8" % sJ); e("s_cselect_b32 s%d, s%d, s%d" % (X, sJ, X))
        self.lab("L_is_v2")
        e("s_cmp_eq_u32 s%d, 2" % sNM); e("s_cbranch_scc1 L_is_near")
        e("s_branch L_is_own")
        self.lab("L_is_k")
        e("s_cmp_eq_u32 s%d, 1" % sNM); e("s_cbranch_scc0 L_is_own")
        e("s_cmp_ge_u32 s%d, 48" % sJ); e("s_cbranch_scc1 L_is_knear")
        e("s_cmp_lt_u32 s%d, 10" % sJ); e("s_cbranch_scc1 L_is_kown")
        e("s_bitcmp1_b32 s%d, 1" % sJ); e("s_cbranch_scc1 L_is_knear")
        self.lab("L_is_kown")
        e("s_mov_b32 s%d, s%d" % (sCUR, sKB)); e("s_mov_b32 s%d, s%d" % (sCUR + 1, sKB + 1))
        self.lab("L_is_own")
        e("s_lshl_b32 s%d, s%d, 11" % (Y, X)); e("s_xor_b32 s%d, s%d, s%d" % (Y, Y, sWb)); e("s_and_b32 s%d, s%d, 8192" % (Y, Y))
        e("s_lshl_b32 s%d, s%d, 14" % (X, X)); e("s_add_u32 s%d, s%d, s%d" % (X, X, sRot)); e("s_and_b32 s%d, s%d, 0x%x" % (X, X, mask)); e("s_add_u32 s%d, s%d, s%d" % (sOf2, X, Y))
        e("s_branch L_is_go")
        self.lab("L_is_knear")
        e("s_mov_b32 s%d, s%d" % (sCUR, sKN)); e("s_mov_b32 s%d, s%d" % (sCUR + 1, sKN + 1))
        self.lab("L_is_near")
        e("s_lshl_b32 s%d, s%d, 14" % (X, X)); e("s_add_u32 s%d, s%d, s%d" % (X, X, sRotN)); e("s_and_b32 s%d, s%d, 0x%x" % (sOf2, X, mask))
        self.lab("L_is_go")
        e("s_add_u32 s%d, s%d, 1" % (sAc, sAc)); e("s_and_b32 s%d, s%d, %d" % (sAc, sAc, self.alN - 1))
        e("s_cmp_lt_u32 s%d, s%d" % (sAc, sAlloc))
        e("s_cbranch_scc1 L_is_alloc")
        for k in range(4):
            e("buffer_load_dwordx4 v%d, %s, s%d offen offset:%d nt lds" % (vo[k], sp(sCUR, 4), sOf2, k * 1024))
        e("s_branch L_is_done")
        self.lab("L_is_alloc")
        for k in range(4):
            e("buffer_load_dwordx4 v%d, %s, s%d offen offset:%d lds" % (vo[k], sp(sCUR, 4), sOf2, k * 1024))
        self.lab("L_is_done")
        e("s_add_u32 s%d, s%d, 1" % (sJ, sJ))
        e("s_cmp_lg_u32 s%d, s%d" % (sJ, sLen)); e("s_cbranch_scc0 L_is_next")
        e("s_setpc_b64 %s" % sp(sRet))
        self.lab("L_is_next")
        e("s_add_u32 s%d, s%d, 1" % (sSeg, sSeg))
        e("s_mov_b32 s%d, s%d" % (sJ, sZ)); e("s_mov_b32 s%d, s%d" % (sAlloc, sZ)); e("s_mov_b32 s%d, s%d" % (sNM, sZ))
        e("s_cmp_eq_u32 s%d, 5" % sSeg); e("s_cbranch_scc1 L_is_end")
        e("s_bitcmp1_b32 s%d, 0" % sSeg); e("s_cbranch_scc0 L_is_v")
        e("s_mov_b32 s%d, s%d" % (sIsV, sZ)); e("s_add_u32 s%d, s%d, 64" % (sLen, sZ))
        e("s_mov_b32 s%d, s%d" % (sCUR, sKB)); e("s_mov_b32 s%d, s%d" % (sCUR + 1, sKB + 1))
        e("s_cmp_eq_u32 s%d, 1" % sSeg)
        e("s_cselect_b32 s%d, %d, 0" % (sAlloc, self.alM)); e("s_cselect_b32 s%d, 0, 1" % sNM)
        e("s_add_u32 s%d, s%d, s%d" % (sAlloc, sAlloc, sZ)); e("s_add_u32 s%d, s%d, s%d" % (sNM, sNM, sZ))
        self.kpat()
        e("s_setpc_b64 %s" % sp(sRet))
        self.lab("L_is_v")
        e("s_add_u32 s%d, s%d, 1" % (sIsV, sZ)); e("s_add_u32 s%d, s%d, %d" % (sLen, sZ, 2 * NSTR_T)); e("s_add_u32 s%d, s%d, 10" % (sVadd, sZ))
        e("s_cmp_eq_u32 s%d, 2" % sSeg)
        e("s_cselect_b32 s%d, %d, 0" % (sAlloc, self.alM if self.alV else 0)); e("s_cselect_b32 s%d, 0, 2" % sNM)
        e("s_cselect_b32 s%d, s%d, s%d" % (sCUR, sVB, sVN)); e("s_cselect_b32 s%d, s%d, s%d" % (sCUR + 1, sVB + 1, sVN + 1))
        e("s_add_u32 s%d, s%d, s%d" % (sAlloc, sAlloc, sZ)); e("s_add_u32 s%d, s%d, s%d" % (sNM, sNM, sZ))
        self.vpat()
        e("s_setpc_b64 %s" % sp(sRet))
        self.lab("L_is_end")
        e("s_mov_b32 s%d, 0" % (sCUR + 2)); e("s_mov_b32 s%d, s%d" % (sIsV, sZ)); e("s_sub_u32 s%d, s%d, 1" % (sLen, sZ))
        e("s_setpc_b64 %s" % sp(sRet))

    def build(self):
        e = self.e
        self.prologue()
        early = int(self.o.get("early", 0)) and self.ilv
        if early:
            e("s_lshr_b32 s%d, s%d, 1" % (sT1, sWave)); e("s_lshl_b32 s%d, s%d, 13" % (sT1, sT1))
            for u in range(2):
                e("s_mov_b32 m0, s%d" % sSlot); e("s_add_u32 s%d, s%d, 4096" % (sSlot, sSlot))
                e("s_add_u32 s%d, s%d, %d" % (sT0, sRot, u * self.stride)); e("s_and_b32 s%d, s%d, 0x%x" % (sT0, sT0, 64 * self.stride - 1)); e("s_add_u32 s%d, s%d, s%d" % (sT0, sT0, sT1))
                for k in range(4):
                    e("buffer_load_dwordx4 v%d, %s, s%d offen offset:%d nt lds" % (vo[k], sp(sCUR, 4), sT0, k * 1024))
            e("s_add_u32 s%d, s%d, 2" % (sAc, sAc)); e("s_and_b32 s%d, s%d, %d" % (sAc, sAc, self.alN - 1))
        self.dbg_span(2)
        self.stamp(0)
        self.weights_setup('start')
        if self.ilv:
            e("s_lshr_b32 s%d, s%d, 1" % (sWb, sWave)); e("s_lshl_b32 s%d, s%d, 13" % (sWb, sWb))
            e("v_mov_b32 v9, 0"); e("s_nop 0"); e("v_readfirstlane_b32 s%d, v9" % sZ); e("s_nop 3")
            e("s_add_u32 s%d, s%d, %d" % (sJ, sZ, 2 if early else 0)); e("s_add_u32 s%d, s%d, %d" % (sLen, sZ, 2 * NRES_T)); e("s_add_u32 s%d, s%d, 1" % (sIsV, sZ))
            e("s_mov_b32 s%d, s%d" % (sNM, sZ)); e("s_sub_u32 s%d, s%d, 8" % (sVadd, sZ)); e("s_mov_b32 s%d, s%d" % (sSeg, sZ)); e("s_mov_b32 s%d, s%d" % (sAlloc, sZ))
            e("s_add_u32 s%d, s%d, s%d" % (sSlot, sSlot, sZ))
        elif self.swz:
            e("s_mov_b32 s%d, 0" % sN); e("s_lshr_b32 s%d, s%d, 1" % (sWb, sWave)); e("s_lshl_b32 s%d, s%d, 13" % (sWb, sWb)); e("s_mov_b32 s%d, 8192" % sSwM)
        e("v_min_u32 v9, 55, v%d" % vL); e("v_lshlrev_b32 v9, 4, v9")
        xr = 16 if int(self.o.get("gap2", 1)) else 32
        e("global_load_dwordx4 v[%d:%d], v9, %s" % (xr, xr + 3, sp(pX)))
        if early:
            self.xop(0); self.xop(1)
        self.clear_mailboxes()
        if int(self.o.get("cpf0", 0)):
            sk = self.nl("Lcp")
            e("s_cmp_eq_u32 s%d, 1" % sWave); e("s_cbranch_scc0 %s" % sk)
            e("s_getpc_b64 s[18:19]")
            self.lab("L_pcref0")
            e("s_add_u32 s18, s18, L_p1a_code-L_pcref0"); e("s_addc_u32 s19, s19, 0")
            e("v_lshlrev_b32 v8, 7, v%d" % vL)
            for k in range(4):
                e("v_min_u32 v9, L_endcode-L_p1a_code-4, v8"); e("global_load_dword v20, v9, s[18:19]"); e("v_add_u32 v8, 8192, v8")
            self.lab(sk)
        if not early:
            for u in range(self.R):
                self.group(u)
        self.stamp(1)
        self.p1a()
        self.stamp(2)
        self.lab("L_pass")
        self.gather_q()
        self.dbg_span_pass(6)
        self.stamp(3)
        self.kphase()
        self.stamp(4)
        self.softmax()
        self.vphase()
        self.stamp(5)
        self.combine_publish()
        self.dbg_span_pass(4)
        self.stamp(6)
        g2 = int(self.o.get("gap2", 1))
        e("s_cmp_eq_u32 s%d, 1" % sRole); e("s_cbranch_scc1 L_roleO")
        e("s_cmp_eq_u32 s%d, 4" % sRole); e("s_cbranch_scc1 L_roleD")
        if self.gapw:
            lw = self.nl("Lgw")
            e("s_cmp_eq_u32 s%d, 0" % sPass); e("s_cbranch_scc0 %s" % lw)
            e("s_cmp_eq_u32 s%d, 0" % sRole); e("s_cbranch_scc1 %s" % lw)
            self.weights_setup('gap')
            for i in range(14):
                self.xop(i)
            self.lab(lw)
        e("s_cmp_eq_u32 s%d, 2" % sRole); e("s_cbranch_scc1 L_roleB")
        e("s_cmp_eq_u32 s%d, 3" % sRole); e("s_cbranch_scc1 L_roleC")
        self.topup()
        self.l2pf_ilv(int(self.o.get("pfN", 0)))
        e("s_branch L_next")
        self.lab("L_roleO")
        self.stage_O2() if g2 else self.stage_S1()
        if self.p2n == 2:
            self.probe_near()
            self.topup(2)
            self.l2pf_ilv(int(self.o.get("pfO", 0)))
        else:
            self.topup()
        e("s_branch L_next")
        self.lab("L_roleB")
        if g2:
            self.stage_B2(); self.topup(); self.l2pf_ilv(int(self.o.get("pfB", 0)))
        else:
            self.topup(); self.stage_B()
        e("s_branch L_next")
        self.lab("L_roleC")
        if g2:
            self.stage_C2(); self.topup(int(self.o.get("tpaceC", 0)))
        else:
            self.topup(); self.stage_C()
        e("s_branch L_next")
        self.lab("L_roleD")
        e("s_cmp_eq_u32 s%d, 0" % sWave); e("s_cbranch_scc0 L_D_rdone")
        e("s_cmp_lt_u32 s%d, 56" % sIdx); e("s_cbranch_scc0 L_D_rdone")
        self.stage_R2() if g2 else self.stage_R()
        self.lab("L_D_rdone")
        self.topup()
        self.l2pf_ilv(int(self.o.get("pfD", 0)))
        e("s_cmp_eq_u32 s%d, 0" % sPass); e("s_cbranch_scc0 L_next")
        if g2:
            e("s_call_b64 %s, L_stageD_prep" % sp(sRet2))
            self.addr(sA, pWs, M5)
            self.poll_x2("M5")
            self.stamp(10)
            e("s_lshl_b32 s%d, s%d, 7" % (sT0, sIdx)); e("s_lshl_b32 s%d, s%d, 5" % (sT1, sWave))
            self.addr(sB, pWs, M6 + MR, [sT0] if self.onest else [sT0, sT1])
            e("s_call_b64 %s, L_stageD_rest" % sp(sRet2))
            if self.onest:
                self.wait_leftover()
            else:
                e("s_waitcnt vmcnt(1)")
        else:
            self.addr(sA, pWs, M5)
            self.gather_x(M5, "M5")
            self.stamp(10)
            self.addr(sA, pWs, M6 + MR)
            e("s_call_b64 %s, L_stageD" % sp(sRet2))
        self.lab("L_next")
        self.stamp(7)
        e("s_add_u32 s%d, s%d, 1" % (sPass, sPass))
        e("s_cmp_lt_u32 s%d, 2" % sPass)
        e("s_cbranch_scc1 L_pass")
        self.dump_stamps()
        self.dbg_span(3)
        e("s_waitcnt vmcnt(0)")
        self.lab("L_end")
        e("s_endpgm")
        if int(self.o.get("gap2", 1)):
            self.lab("L_stageD_prep")
            self.stageD2_prep()
            e("s_setpc_b64 %s" % sp(sRet2))
            self.lab("L_stageD_rest")
            self.stageD2_rest()
            e("s_setpc_b64 %s" % sp(sRet2))
        else:
            self.lab("L_stageD")
            self.stage_D(None)
            e("s_setpc_b64 %s" % sp(sRet2))
        if self.ilv:
            self.emit_issue_sub()
        else:
            self.emit_switch()
        self.lab("L_endcode")
        e("s_endpgm")
        return self.a.text()


HEADER = """; Persistent fused decode kernel: [attn -> mlp] x2, V tiles kept resident in registers across the two attention passes.
; @launch grid=(256,1,1) block=(256,1,1) lds=%d
.amdgcn_target "amdgcn-amd-amdhsa--gfx950"
.text
.globl %s
.p2align 8
.type %s,@function
%s:
"""
FOOTER = """.section .rodata,"a"
.p2align 6
.amdhsa_kernel %s
  .amdhsa_next_free_vgpr 512
  .amdhsa_next_free_sgpr 102
  .amdhsa_accum_offset 256
  .amdhsa_group_segment_fixed_size 0
  .amdhsa_kernarg_size 96
  .amdhsa_user_sgpr_count 2
  .amdhsa_user_sgpr_kernarg_segment_ptr 1
  .amdhsa_system_sgpr_workgroup_id_x 1
  .amdhsa_float_denorm_mode_32 3
.end_amdhsa_kernel
"""


def generate(opt=None):
    opt = opt or {}
    g = Gen(opt)
    body = g.build()
    return HEADER % (LDS_TOTAL, KNAME, KNAME, KNAME) + body + FOOTER % KNAME


if __name__ == "__main__":
    out = sys.argv[1] if len(sys.argv) > 1 else "gen/kernel.s"
    opt = {}
    for kv in sys.argv[2:]:
        k, v = kv.split("=")
        opt[k] = v
    open(out, "w").write(generate(opt))
    print("wrote", out)
```

```python
import sys, os
sys.path.insert(0, os.path.dirname(os.path.abspath(__file__)))
from asmlib import Asm

KNAME = "interleave_layers__mha_block_cached__glu_gated_swiglu__decode_kernel"

L_Q = 0
L_Z = 2176
L_SM = 2688
L_RED = 2752
L_ST = 2048
L_P = 3072
L_W = 7168
LDS_TOTAL = 163840
RING_NONE = 7168
RING_ROLE = 65536
O_ROW = 912
B_IMG3 = 28704
C_WAVE = 14336

M1 = 0x0; M1_R = 0x60000; M1_SLOT = 384
M2 = 0x100000; M2_R = 0x20000; M2_SLOT = 2048; M3 = 0xC4000; M4 = 0xC8000; M5 = 0xCC000; M6 = 0xCE000; MR = 0x2000
DBG = 0x200000

NRES_PAIRS = 7
NRES_T = 2 * NRES_PAIRS
NSTR_T = 32 - NRES_T
STRIDE = 16384
SPIN_LIMIT = 1 << 18
C_EXP = 0x3DB8AA3B
LOG2E = 0x3FB8AA3B

sW, sWave = 2, 3
pX, pK, pV, pWq, pWo, pW1, pW3, pW2, pOut, pDbg, pWs = 8, 10, 12, 14, 16, 20, 22, 24, 26, 28, 30
sKB, sVB = 32, 34
sCUR = 36
sSlot, sRs, sRe, sOff, sLeft, sSeg, sCs, sPass = 40, 41, 42, 43, 44, 45, 46, 47
sRole, sIdx, sH, sC, sNS, sVec, sWl, sSpin = 48, 49, 50, 51, 52, 53, 54, 55
sM = [56, 58, 60, 62]
sMd, sRet, sEx = 64, 66, 68
sT0, sT1, sT2, sT3, sT4, sT5 = 70, 71, 72, 73, 74, 75
sA = 76
sB = 78
sT15 = 80
sRho = 19
sWS = 84
sRet2 = 88
sWlds, sWlstep, sWoff, sWoff0, sWstep = 94, 95, 96, 97, 98
sAlloc = 99
sQok = 100
sJ, sLen, sIsV, sNM, sVadd = 43, 44, 16, 14, 54
sZ = 81
sN, sWb, sSwM, sOf2 = 16, 17, 14, 15
sKN, sVN, sRotN, sXch, sTm0, sTm1 = 10, 12, 0, 1, 16, 17
M7 = 0x300000
M8 = 0xD2000
sAc = 93
sRot = 101
sWo2 = 4
sWlds0, sWwrap = 6, 7
sWex = 82

vL = 0
vo = [1, 2, 3, 4]
vPh, vAd, vPa = 5, 6, 7
vSC = 8
vACC = 16
vLsum = 8
vW = 12


def sp(r, n=2):
    return "s[%d:%d]" % (r, r + n - 1)


def vr(r, n):
    return "v[%d:%d]" % (r, r + n - 1) if n > 1 else "v%d" % r


def res_reg(m, t, hh=None):
    base = m * 64 + 4 * t
    if m < 3:
        b = 64 + base; p = "v"
    else:
        b = base - 192; p = "a"
    if hh is None:
        return "%s[%d:%d]" % (p, b, b + 3)
    return "%s[%d:%d]" % (p, b + 2 * hh, b + 2 * hh + 1)


def res_T(k):
    return k if k < 4 else 2 * k - 4


def str_T(i):
    return 5 + 2 * i if i < 10 else i + 14


class LQ:
    def __init__(self, g):
        self.g = g; self.q = []
    def issue(self, instr, tag):
        self.g.e(instr); self.q.append(tag)
    def wait(self, tags):
        idx = [i for i, t in enumerate(self.q) if t in tags]
        if not idx:
            return
        last = max(idx)
        n = len(self.q) - 1 - last
        self.g.e("s_waitcnt lgkmcnt(%d)" % min(n, 15))
        self.q = self.q[last + 1:] if n <= 15 else self.q[len(self.q) - 15:]
    def drain(self):
        if self.q:
            self.g.e("s_waitcnt lgkmcnt(0)")
        self.q = []


class Gen:
    def __init__(self, opt):
        self.o = opt
        self.near = int(opt.get("near", 0))
        self.stride = 32768 if self.near else 16384
        self.stag = int(opt.get("stag", 0))
        self.l2pf = int(opt.get("l2pf", 0))
        self.l2pol = opt.get("l2pol", " nt")
        self.wpf = int(opt.get("wpf", 1))
        self.gapw = int(opt.get("gapw", 1))
        self.R = int(opt.get("R", 2))
        self.onest = int(opt.get("onest", 1))
        self.q1w = int(opt.get("q1w", 0))
        self.ilv = int(opt.get("ilv", 0))
        self.swz = int(opt.get("swz", 0)) or int(opt.get("ilv", 0))
        self.klin = int(opt.get("klin", 0))
        self.p2n = int(opt.get("p2n", 0))
        self.alN = int(opt.get("alN", 0))
        self.alM = int(opt.get("alM", 0))
        self.alV = int(opt.get("alV", 1))
        self.kalloc = int(opt.get("kalloc", 0))
        self.a = Asm()
        self.e = self.a.e

    def resT(self, k):
        if self.ilv == 3:
            return k if k < 4 else (2 * k - 4 if k < 12 else k + 18)
        if self.ilv == 2:
            return k if k < 4 else (4 * k - 9 if k < 10 else k + 18)
        return res_T(k)

    def strT(self, i):
        if self.ilv == 3:
            return 5 + 2 * i if i < 8 else i + 12
        if self.ilv == 2:
            return 4 + i + i // 3
        return str_T(i)

    def lab(self, n):
        self.a.label(n)

    def nl(self, b="L"):
        return self.a.newlabel(b)

    def nop(self, n):
        if n > 0:
            self.e("s_nop %d" % (n - 1))

    def bf16r(self, dst, src, tmp):
        self.e("v_cvt_pk_bf16_f32 v%d, v%d, v%d" % (tmp, src, src))
        self.e("v_and_b32 v%d, 0xffff0000, v%d" % (dst, tmp))

    def allreduce16(self, x, op):
        e = self.e
        for n in (8, 4, 2, 1):
            self.nop(2)
            e("%s_dpp v%d, v%d, v%d row_ror:%d row_mask:0xf bank_mask:0xf" % (op, x, x, x, n))

    def xrows(self, x, tmp, op):
        e = self.e
        e("v_mov_b32 v%d, v%d" % (tmp, x)); self.nop(2)
        e("v_permlane16_swap_b32 v%d, v%d" % (x, tmp)); self.nop(1)
        e("%s v%d, v%d, v%d" % (op, x, x, tmp))
        e("v_mov_b32 v%d, v%d" % (tmp, x)); self.nop(2)
        e("v_permlane32_swap_b32 v%d, v%d" % (x, tmp)); self.nop(1)
        e("%s v%d, v%d, v%d" % (op, x, x, tmp))

    def allreduce64(self, x, tmp, op):
        self.allreduce16(x, op)
        self.xrows(x, tmp, op)

    def poll(self, loads, regs, tmp, name="P"):
        e = self.e
        L = self.nl(name); D = self.nl(name + "d")
        e("s_mov_b32 s%d, 0" % sSpin)
        self.lab(L)
        for ld in loads:
            e(ld)
        e("s_waitcnt vmcnt(0)")
        rr = list(regs)
        if len(rr) == 1:
            t = rr[0]
        else:
            first = True
            while rr:
                if first:
                    if len(rr) >= 3:
                        e("v_max3_u32 v%d, v%d, v%d, v%d" % (tmp, rr[0], rr[1], rr[2])); rr = rr[3:]
                    else:
                        e("v_max_u32 v%d, v%d, v%d" % (tmp, rr[0], rr[1])); rr = rr[2:]
                    first = False
                elif len(rr) >= 2:
                    e("v_max3_u32 v%d, v%d, v%d, v%d" % (tmp, tmp, rr[0], rr[1])); rr = rr[2:]
                else:
                    e("v_max_u32 v%d, v%d, v%d" % (tmp, tmp, rr[0])); rr = rr[1:]
            t = tmp
        e("v_cmp_eq_u32 vcc, -1, v%d" % t)
        e("s_cbranch_vccz %s" % D)
        e("s_add_u32 s%d, s%d, 1" % (sSpin, sSpin))
        e("s_cmp_lt_u32 s%d, %d" % (sSpin, SPIN_LIMIT))
        e("s_cbranch_scc1 %s" % L)
        self.lab(D)

    def addr(self, dst, base, off_imm=0, off_sregs=()):
        e = self.e
        if off_imm:
            e("s_add_u32 s%d, s%d, 0x%x" % (dst, base, off_imm))
        else:
            e("s_add_u32 s%d, s%d, 0" % (dst, base))
        e("s_addc_u32 s%d, s%d, 0" % (dst + 1, base + 1))
        for r in off_sregs:
            e("s_add_u32 s%d, s%d, s%d" % (dst, dst, r))
            e("s_addc_u32 s%d, s%d, 0" % (dst + 1, dst + 1))

    def stamp(self, idx):
        if not self.o.get("stamps"):
            return
        e = self.e
        sk = self.nl("St")
        e("s_cmp_eq_u32 s%d, 0" % sWave); e("s_cbranch_scc0 %s" % sk)
        e("s_memrealtime s[90:91]")
        e("s_waitcnt lgkmcnt(0)")
        e("s_lshl_b32 s92, s%d, 6" % sPass); e("s_add_u32 s92, s92, %d" % (L_ST + idx * 4))
        e("v_mov_b32 v62, s92"); e("v_mov_b32 v63, s90")
        e("ds_write_b32 v62, v63")
        e("s_waitcnt lgkmcnt(0)")
        self.lab(sk)

    def dbg_span(self, first):
        if not self.o.get("span"):
            return
        e = self.e
        sk = self.nl("Sp")
        e("s_cmp_eq_u32 s%d, 0" % sWave); e("s_cbranch_scc0 %s" % sk)
        e("s_memrealtime s[90:91]")
        e("s_waitcnt lgkmcnt(0)")
        if first == 2:
            e("s_not_b32 s90, s90")
        e("v_mov_b32 v62, %d" % (4 * first)); e("v_mov_b32 v63, s90")
        e("s_mov_b64 exec, 1")
        e("global_atomic_umax v62, v63, %s" % sp(pDbg))
        e("s_mov_b64 exec, -1")
        self.lab(sk)

    def dbg_span_pass(self, base):
        if not self.o.get("span"):
            return
        e = self.e
        sk = self.nl("Sp")
        e("s_cmp_eq_u32 s%d, 0" % sWave); e("s_cbranch_scc0 %s" % sk)
        e("s_memrealtime s[90:91]")
        e("s_waitcnt lgkmcnt(0)")
        e("s_lshl_b32 s92, s%d, 2" % sPass); e("s_add_u32 s92, s92, %d" % (4 * base))
        e("v_mov_b32 v62, s92"); e("v_mov_b32 v63, s90")
        e("s_mov_b64 exec, 1")
        e("global_atomic_umax v62, v63, %s" % sp(pDbg))
        e("s_mov_b64 exec, -1")
        e("s_waitcnt vmcnt(0)")
        self.lab(sk)

    def dump_stamps(self):
        if not self.o.get("stamps"):
            return
        e = self.e
        sk = self.nl("Sd")
        e("s_waitcnt vmcnt(0)")
        e("s_cmp_eq_u32 s%d, 0" % sWave); e("s_cbranch_scc0 %s" % sk)
        e("v_and_b32 v8, 31, v%d" % vL); e("v_lshlrev_b32 v8, 2, v8")
        e("ds_read_b32 v9, v8 offset:%d" % L_ST)
        e("s_lshl_b32 s%d, s2, 7" % sT0)
        self.addr(sA, pWs, DBG, [sT0])
        e("s_waitcnt lgkmcnt(0)")
        e("global_store_dword v8, v9, %s" % sp(sA))
        self.lab(sk)

    def issue(self):
        e = self.e
        if self.ilv:
            e("s_call_b64 %s, L_issue" % sp(sRet))
            return
        pol = self.o.get("pol", " nt")
        e("s_mov_b32 m0, s%d" % sSlot)
        e("s_add_u32 s%d, s%d, 4096" % (sSlot, sSlot))
        so = sOff
        if self.swz:
            so = sOf2
            e("s_lshl_b32 s%d, s%d, 12" % (sOf2, sN)); e("s_xor_b32 s%d, s%d, s%d" % (sOf2, sOf2, sWb)); e("s_and_b32 s%d, s%d, s%d" % (sOf2, sOf2, sSwM))
            e("s_add_u32 s%d, s%d, s%d" % (sOf2, sOf2, sOff)); e("s_add_u32 s%d, s%d, 1" % (sN, sN))
        if self.alN:
            la = self.nl("Ia"); ld = self.nl("Id")
            e("s_add_u32 s%d, s%d, 1" % (sAc, sAc)); e("s_and_b32 s%d, s%d, %d" % (sAc, sAc, self.alN - 1))
            e("s_cmp_lt_u32 s%d, s%d" % (sAc, sAlloc))
            e("s_cbranch_scc1 %s" % la)
        if self.kalloc:
            la = self.nl("Ia"); ld = self.nl("Id")
            e("s_cmp_gt_u32 s%d, 0" % sAlloc)
            e("s_cbranch_scc1 %s" % la)
        for s in range(4):
            e("buffer_load_dwordx4 v%d, %s, s%d offen offset:%d%s lds" % (vo[s], sp(sCUR, 4), so, s * 1024, pol))
        if self.kalloc or self.alN:
            e("s_branch %s" % ld)
            self.lab(la)
            for s in range(4):
                e("buffer_load_dwordx4 v%d, %s, s%d offen offset:%d lds" % (vo[s], sp(sCUR, 4), so, s * 1024))
            if self.kalloc:
                e("s_sub_u32 s%d, s%d, 1" % (sAlloc, sAlloc))
            self.lab(ld)
        e("s_cmp_eq_u32 s%d, s%d" % (sSlot, sRe))
        e("s_cselect_b32 s%d, s%d, s%d" % (sSlot, sRs, sSlot))
        e("s_add_u32 s%d, s%d, %d" % (sOff, sOff, self.stride))
        if self.stag:
            e("s_and_b32 s%d, s%d, 0x%x" % (sOff, sOff, 64 * self.stride - 1))
        e("s_sub_u32 s%d, s%d, 1" % (sLeft, sLeft))
        e("s_cmp_lg_u32 s%d, 0" % sLeft)
        sk = self.nl("Isk")
        e("s_cbranch_scc1 %s" % sk)
        e("s_call_b64 %s, L_switch" % sp(sRet))
        self.lab(sk)

    def kpat(self):
        e = self.e
        if self.klin:
            e("v_lshrrev_b32 v%d, 5, v%d" % (vo[1], vL))
            e("v_and_b32 v%d, 31, v%d" % (vo[0], vL)); e("v_xor_b32 v%d, v%d, v%d" % (vo[0], vo[0], vo[1]))
            e("v_lshlrev_b32 v%d, 4, v%d" % (vo[0], vo[0])); e("v_lshl_add_u32 v%d, v%d, 9, v%d" % (vo[0], vo[1], vo[0]))
            e("v_add_u32 v%d, 3072, v%d" % (vo[0], vo[0]))
            for i in range(1, 4):
                e("v_xor_b32 v%d, %d, v%d" % (vo[i], (2 * i) << 4, vo[0]))
            return
        e("v_and_b32 v%d, 7, v%d" % (vo[0], vL))
        e("v_lshlrev_b32 v%d, 9, v%d" % (vo[0], vo[0]))
        e("v_lshrrev_b32 v%d, 3, v%d" % (vo[1], vL))
        e("v_lshl_add_u32 v%d, v%d, 4, v%d" % (vo[0], vo[1], vo[0]))
        self.pat_fin()

    def vpat(self):
        e = self.e
        e("v_bfe_u32 v%d, v%d, 1, 3" % (vo[0], vL))
        e("v_lshlrev_b32 v%d, 9, v%d" % (vo[0], vo[0]))
        e("v_lshrrev_b32 v%d, 4, v%d" % (vo[1], vL))
        e("v_lshl_add_u32 v%d, v%d, 5, v%d" % (vo[0], vo[1], vo[0]))
        e("v_and_b32 v%d, 1, v%d" % (vo[1], vL))
        e("v_lshl_add_u32 v%d, v%d, 4, v%d" % (vo[0], vo[1], vo[0]))
        self.pat_fin()

    def pat_fin(self):
        e = self.e
        e("v_add_u32 v%d, 3072, v%d" % (vo[0], vo[0]))
        for s in range(1, 4):
            e("v_subrev_u32 v%d, %d, v%d" % (vo[s], 896 * s, vo[0]))

    def emit_switch(self):
        if self.p2n:
            return self.emit_switch_p2n()
        e = self.e
        self.lab("L_switch")
        e("s_add_u32 s%d, s%d, 1" % (sSeg, sSeg))
        e("s_cmp_eq_u32 s%d, 5" % sSeg)
        e("s_cbranch_scc1 L_sw_end")
        e("s_bitcmp1_b32 s%d, 0" % sSeg)
        e("s_cbranch_scc0 L_sw_v")
        e("s_mov_b32 s%d, s%d" % (sCUR, sKB)); e("s_mov_b32 s%d, s%d" % (sCUR + 1, sKB + 1))
        e("s_mov_b32 s%d, s%d" % (sOff, sRot)); e("s_mov_b32 s%d, 64" % sLeft)
        if self.kalloc:
            e("s_cmp_eq_u32 s%d, 1" % sSeg)
            e("s_cselect_b32 s%d, %d, 0" % (sAlloc, self.kalloc))
        if self.alN:
            e("s_cmp_eq_u32 s%d, 1" % sSeg)
            e("s_cselect_b32 s%d, %d, 0" % (sAlloc, self.alM))
        self.kpat()
        e("s_setpc_b64 %s" % sp(sRet))
        self.lab("L_sw_v")
        e("s_mov_b32 s%d, s%d" % (sCUR, sVB)); e("s_mov_b32 s%d, s%d" % (sCUR + 1, sVB + 1))
        e("s_add_u32 s%d, s%d, %d" % (sOff, sRot, 2 * NRES_T * self.stride)); e("s_and_b32 s%d, s%d, 0x%x" % (sOff, sOff, 64 * self.stride - 1))
        e("s_mov_b32 s%d, %d" % (sLeft, 2 * NSTR_T))
        if self.alN:
            e("s_cmp_eq_u32 s%d, 2" % sSeg)
            e("s_cselect_b32 s%d, %d, 0" % (sAlloc, self.alM if self.alV else 0))
        self.vpat()
        e("s_setpc_b64 %s" % sp(sRet))
        self.lab("L_sw_end")
        e("s_mov_b32 s%d, 0" % (sCUR + 2))
        e("s_mov_b32 s%d, 0" % sOff); e("s_mov_b32 s%d, 0x7fffffff" % sLeft)
        e("s_setpc_b64 %s" % sp(sRet))

    def emit_switch_p2n(self):
        e = self.e
        mask = 64 * self.stride - 1
        self.lab("L_switch")
        e("s_add_u32 s%d, s%d, 1" % (sSeg, sSeg))
        e("s_mov_b32 s%d, 0" % sAlloc)
        e("s_cmp_eq_u32 s%d, 1" % sSeg); e("s_cbranch_scc1 L_sw_1")
        e("s_cmp_eq_u32 s%d, 2" % sSeg); e("s_cbranch_scc1 L_sw_2")
        e("s_cmp_eq_u32 s%d, 3" % sSeg); e("s_cbranch_scc1 L_sw_3")
        e("s_cmp_eq_u32 s%d, 4" % sSeg); e("s_cbranch_scc1 L_sw_4")
        e("s_cmp_eq_u32 s%d, 5" % sSeg); e("s_cbranch_scc1 L_sw_5")
        e("s_mov_b32 s%d, 0" % (sCUR + 2))
        e("s_mov_b32 s%d, 0" % sOff); e("s_mov_b32 s%d, 0x7fffffff" % sLeft)
        e("s_setpc_b64 %s" % sp(sRet))
        self.lab("L_sw_1")
        e("s_mov_b32 s%d, %d" % (sAlloc, self.alM))
        e("s_mov_b32 s%d, 64" % sLeft)
        e("s_branch L_sw_k")
        self.lab("L_sw_3")
        if self.o.get("dryK2"):
            e("s_mov_b32 s%d, 0" % (sCUR + 2))
        e("s_mov_b32 s%d, %d" % (sLeft, 2 * NRES_T))
        self.lab("L_sw_k")
        e("s_mov_b32 s%d, s%d" % (sCUR, sKB)); e("s_mov_b32 s%d, s%d" % (sCUR + 1, sKB + 1))
        e("s_mov_b32 s%d, s%d" % (sOff, sRot))
        self.kpat()
        e("s_setpc_b64 %s" % sp(sRet))
        self.lab("L_sw_4")
        if self.swz:
            e("s_mov_b32 s%d, 0" % sSwM)
        e("s_mov_b32 s%d, s%d" % (sCUR, sKN)); e("s_mov_b32 s%d, s%d" % (sCUR + 1, sKN + 1))
        e("s_add_u32 s%d, s%d, %d" % (sOff, sRotN, 2 * NRES_T * self.stride)); e("s_and_b32 s%d, s%d, 0x%x" % (sOff, sOff, mask))
        e("s_mov_b32 s%d, %d" % (sLeft, 2 * NSTR_T))
        e("s_setpc_b64 %s" % sp(sRet))
        self.lab("L_sw_2")
        e("s_mov_b32 s%d, %d" % (sAlloc, self.alM if self.alV else 0))
        e("s_mov_b32 s%d, s%d" % (sCUR, sVB)); e("s_mov_b32 s%d, s%d" % (sCUR + 1, sVB + 1))
        e("s_add_u32 s%d, s%d, %d" % (sOff, sRot, 2 * NRES_T * self.stride))
        e("s_branch L_sw_v")
        self.lab("L_sw_5")
        if self.o.get("dryK2"):
            e("s_mov_b32 s%d, %d" % (sCUR + 2, 0 if self.o.get("dryV2") else 3072 + 63 * self.stride + 4096 + 8192))
        e("s_mov_b32 s%d, s%d" % (sCUR, sVN)); e("s_mov_b32 s%d, s%d" % (sCUR + 1, sVN + 1))
        e("s_add_u32 s%d, s%d, %d" % (sOff, sRotN, 2 * NRES_T * self.stride))
        self.lab("L_sw_v")
        e("s_and_b32 s%d, s%d, 0x%x" % (sOff, sOff, mask))
        e("s_mov_b32 s%d, %d" % (sLeft, 2 * NSTR_T))
        self.vpat()
        e("s_setpc_b64 %s" % sp(sRet))

    def now(self, dst, minus=None):
        e = self.e
        e("s_memrealtime s[90:91]"); e("s_waitcnt lgkmcnt(0)")
        if minus is None:
            e("s_mov_b32 s%d, s90" % dst)
        else:
            e("s_sub_u32 s%d, s90, s%d" % (dst, minus))

    def adv_cs(self):
        e = self.e
        e("s_add_u32 s%d, s%d, 8192" % (sCs, sCs))
        e("s_cmp_eq_u32 s%d, s%d" % (sCs, sRe))
        e("s_cselect_b32 s%d, s%d, s%d" % (sCs, sRs, sCs))

    def step_issue(self):
        w = 4 * (self.R - 1)
        self.e("s_waitcnt vmcnt(%d)" % w)
        self.issue()
        self.e("s_waitcnt vmcnt(%d)" % w)
        self.issue()

    def gwait(self, u):
        lo = max(0, u - self.R + 1)
        cnt = sum(4 + (1 if g < self.NX else 0) for g in range(lo, u))
        self.e("s_waitcnt vmcnt(%d)" % cnt)

    NX = 16

    def xop(self, i):
        e = self.e
        if i == 7:
            e("s_cmp_eq_u32 s%d, 2" % sRole)
            e("s_cselect_b32 s%d, s%d, s%d" % (sWS, sWo2, sWS))
            e("s_cselect_b32 s%d, s%d, s%d" % (sWS + 1, sWo2 + 1, sWS + 1))
            e("s_cselect_b32 s%d, s%d, s%d" % (sWoff, sWoff0, sWoff))
            e("s_cselect_b32 s%d, s%d, s%d" % (sWlds, sWlds0, sWlds))
        if 0 < i < 14:
            e("s_cmp_eq_u32 s%d, %d" % (sWwrap, i))
            e("s_cselect_b32 s%d, s%d, s%d" % (sWoff, sWoff0, sWoff))
            e("s_cselect_b32 s%d, s%d, s%d" % (sWlds, sWlds0, sWlds))
        if i == 14:
            e("s_cmp_eq_u32 s%d, 1" % sRole)
            e("s_cselect_b32 s%d, s%d, 0" % (sWS + 2, sWS + 2))
            e("s_cselect_b32 s%d, s%d, s%d" % (sWlds, sWlds, sVec))
            e("s_cselect_b32 s%d, s%d, 0" % (sWlstep, sWlstep))
        e("s_mov_b32 m0, s%d" % sWlds); e("s_add_u32 s%d, s%d, s%d" % (sWlds, sWlds, sWlstep))
        e("s_mov_b64 exec, %s" % sp(sWex))
        e("buffer_load_dwordx4 v%d, %s, s%d offen lds" % (vW, sp(sWS, 4), sWoff))
        e("s_mov_b64 exec, -1")
        e("s_add_u32 s%d, s%d, s%d" % (sWoff, sWoff, sWstep))

    def group(self, u):
        if u >= self.R:
            self.gwait(u)
        self.issue()
        if u < self.NX:
            self.xop(u)

    def prologue(self):
        e = self.e
        e("s_cmp_ge_u32 s2, 256")
        e("s_cbranch_scc1 L_end")
        e("s_load_dwordx16 s[8:23], s[0:1], 0")
        e("s_load_dwordx8 s[24:31], s[0:1], 64")
        e("v_lshrrev_b32 v1, 6, v0")
        e("v_and_b32 v%d, 63, v0" % vL)
        e("s_nop 0")
        e("v_readfirstlane_b32 s%d, v1" % sWave)
        e("v_mov_b32 v9, 0"); e("s_nop 0"); e("v_readfirstlane_b32 s%d, v9" % sZ)
        x, r = sT0, sT1
        e("s_and_b32 s%d, s2, 7" % x)
        e("s_lshr_b32 s%d, s2, 3" % r)
        if int(self.o.get("rmap", 0)):
            e("s_mov_b32 s%d, 0" % sRole); e("s_mov_b32 s%d, 0" % sIdx)
            e("s_lshr_b32 s%d, s%d, 1" % (sT2, x))
            e("s_bitcmp1_b32 s%d, 0" % x); e("s_cbranch_scc1 L_rodd")
            e("s_and_b32 s%d, s%d, 15" % (sIdx, r)); e("s_lshl_b32 s%d, s%d, 2" % (sIdx, sIdx)); e("s_add_u32 s%d, s%d, s%d" % (sIdx, sIdx, sT2))
            e("s_cmp_lt_u32 s%d, 16" % r); e("s_cselect_b32 s%d, 1, 4" % sRole)
            e("s_branch L_rdone")
            self.lab("L_rodd")
            e("s_cmp_lt_u32 s%d, 14" % r); e("s_cbranch_scc0 L_rodd2")
            e("s_mov_b32 s%d, 2" % sRole); e("s_mul_i32 s%d, s%d, 14" % (sIdx, sT2)); e("s_add_u32 s%d, s%d, s%d" % (sIdx, sIdx, r))
            e("s_branch L_rdone")
            self.lab("L_rodd2")
            e("s_cmp_lt_u32 s%d, 22" % r); e("s_cbranch_scc0 L_rdone")
            e("s_sub_u32 s%d, s%d, 14" % (sT3, r)); e("s_lshr_b32 s%d, s%d, 2" % (sT4, sT3)); e("s_lshl_b32 s%d, s%d, 2" % (sT4, sT4)); e("s_add_u32 s%d, s%d, s%d" % (sT4, sT4, sT2))
            e("s_cmp_lt_u32 s%d, 7" % sT4); e("s_cbranch_scc0 L_rdone")
            e("s_mov_b32 s%d, 3" % sRole); e("s_and_b32 s%d, s%d, 3" % (sT3, sT3)); e("s_lshl_b32 s%d, s%d, 2" % (sIdx, sT4)); e("s_add_u32 s%d, s%d, s%d" % (sIdx, sIdx, sT3))
        else:
            e("s_mov_b32 s%d, 0" % sRole); e("s_mov_b32 s%d, 0" % sIdx)
            e("s_cmp_lt_u32 s%d, 8" % r); e("s_cbranch_scc0 L_r1")
            e("s_mov_b32 s%d, 1" % sRole); e("s_lshl_b32 s%d, s%d, 3" % (sIdx, r)); e("s_add_u32 s%d, s%d, s%d" % (sIdx, sIdx, x))
            e("s_branch L_rdone")
            self.lab("L_r1")
            e("s_cmp_lt_u32 s%d, 16" % r); e("s_cbranch_scc0 L_r2")
            e("s_sub_u32 s%d, s%d, 8" % (sT2, r))
            e("s_lshr_b32 s%d, s%d, 1" % (sT3, sT2)); e("s_lshl_b32 s%d, s%d, 3" % (sT3, sT3)); e("s_add_u32 s%d, s%d, s%d" % (sT3, sT3, x))
            e("s_cmp_lt_u32 s%d, 28" % sT3); e("s_cbranch_scc0 L_rdone")
            e("s_mov_b32 s%d, 2" % sRole); e("s_and_b32 s%d, s%d, 1" % (sT2, sT2)); e("s_lshl_b32 s%d, s%d, 1" % (sIdx, sT3))
            e("s_add_u32 s%d, s%d, s%d" % (sIdx, sIdx, sT2))
            e("s_branch L_rdone")
            self.lab("L_r2")
            e("s_cmp_lt_u32 s%d, 20" % r); e("s_cbranch_scc0 L_r3")
            e("s_cmp_lt_u32 s%d, 7" % x); e("s_cbranch_scc0 L_rdone")
            e("s_mov_b32 s%d, 3" % sRole); e("s_lshl_b32 s%d, s%d, 2" % (sIdx, x)); e("s_add_u32 s%d, s%d, s%d" % (sIdx, sIdx, r))
            e("s_sub_u32 s%d, s%d, 16" % (sIdx, sIdx))
            e("s_branch L_rdone")
            self.lab("L_r3")
            e("s_cmp_lt_u32 s%d, 28" % r); e("s_cbranch_scc0 L_rdone")
            e("s_mov_b32 s%d, 4" % sRole); e("s_sub_u32 s%d, s%d, 20" % (sIdx, r)); e("s_lshl_b32 s%d, s%d, 3" % (sIdx, sIdx))
            e("s_add_u32 s%d, s%d, s%d" % (sIdx, sIdx, x))
        self.lab("L_rdone")
        e("s_add_u32 s%d, s%d, s%d" % (sRole, sRole, sZ))
        e("s_lshr_b32 s%d, s2, 4" % sH); e("s_and_b32 s%d, s2, 15" % sC)
        e("s_mov_b32 s%d, %d" % (sT0, RING_ROLE)); e("s_mov_b32 s%d, 6" % sNS)
        e("s_cmp_eq_u32 s%d, 0" % sRole)
        e("s_cselect_b32 s%d, %d, s%d" % (sT0, RING_NONE, sT0)); e("s_cselect_b32 s%d, 8, s%d" % (sNS, sNS))
        e("s_lshl_b32 s%d, s%d, 12" % (sT1, sNS))
        e("s_mul_i32 s%d, s%d, s%d" % (sT2, sT1, sWave))
        e("s_add_u32 s%d, s%d, s%d" % (sRs, sT0, sT2))
        e("s_add_u32 s%d, s%d, s%d" % (sRe, sRs, sT1))
        e("s_mov_b32 s%d, s%d" % (sSlot, sRs)); e("s_mov_b32 s%d, s%d" % (sCs, sRs))
        e("s_lshl_b32 s%d, s%d, 10" % (sT2, sWave)); e("s_add_u32 s%d, s%d, %d" % (sVec, sT2, L_P))
        e("s_mov_b32 s%d, 0x00010001" % sM[0]); e("s_mov_b32 s%d, 0x00010001" % (sM[0] + 1))
        for u in range(1, 4):
            e("s_lshl_b64 %s, %s, %d" % (sp(sM[u]), sp(sM[0]), u))
        e("s_mov_b32 s%d, s%d" % (sPass, sZ))
        e("s_waitcnt lgkmcnt(0)")
        if not self.near:
            e("s_lshl_b32 s%d, s%d, 4" % (sT0, sH)); e("s_add_u32 s%d, s%d, s%d" % (sT0, sT0, sC))
            e("s_lshl_b32 s%d, s%d, 20" % (sT0, sT0))
            if self.swz:
                e("s_and_b32 s%d, s%d, 1" % (sT1, sWave)); e("s_lshl_b32 s%d, s%d, 12" % (sT1, sT1))
            else:
                e("s_lshl_b32 s%d, s%d, 12" % (sT1, sWave))
            e("s_add_u32 s%d, s%d, s%d" % (sT0, sT0, sT1))
        else:
            e("s_lshl_b32 s%d, s%d, 24" % (sT0, sH))
            e("s_lshr_b32 s%d, s2, 3" % sT1); e("s_and_b32 s%d, s%d, 1" % (sT1, sT1)); e("s_lshl_b32 s%d, s%d, 2" % (sT1, sT1))
            e("s_and_b32 s%d, s2, 3" % sT2); e("s_add_u32 s%d, s%d, s%d" % (sT1, sT1, sT2)); e("s_lshl_b32 s%d, s%d, 21" % (sT1, sT1))
            e("s_add_u32 s%d, s%d, s%d" % (sT0, sT0, sT1))
            e("s_lshr_b32 s%d, s2, 2" % sT1); e("s_xor_b32 s%d, s%d, s2" % (sT1, sT1))
            e("s_xor_b32 s%d, s%d, %d" % (sT1, sT1, int(self.o.get("cpol", 0)))); e("s_and_b32 s%d, s%d, 1" % (sT1, sT1))
            e("s_lshl_b32 s%d, s%d, 13" % (sT1, sT1)); e("s_add_u32 s%d, s%d, s%d" % (sT0, sT0, sT1))
            e("s_and_b32 s%d, s%d, 1" % (sT1, sWave)); e("s_lshl_b32 s%d, s%d, 12" % (sT1, sT1)); e("s_add_u32 s%d, s%d, s%d" % (sT0, sT0, sT1))
            e("s_lshr_b32 s%d, s%d, 1" % (sT1, sWave)); e("s_lshl_b32 s%d, s%d, 14" % (sT1, sT1)); e("s_add_u32 s%d, s%d, s%d" % (sT0, sT0, sT1))
        e("s_mov_b32 s%d, 0" % sAlloc); e("s_lshr_b32 s%d, s2, 3" % sAc); e("s_and_b32 s%d, s%d, 1" % (sT1, sWave)); e("s_add_u32 s%d, s%d, s%d" % (sAc, sAc, sT1))
        for (dst, src) in ((sKB, pK), (sVB, pV)):
            e("s_add_u32 s%d, s%d, s%d" % (dst, src, sT0)); e("s_addc_u32 s%d, s%d, 0" % (dst + 1, src + 1))
            e("s_sub_u32 s%d, s%d, 3072" % (dst, dst)); e("s_subb_u32 s%d, s%d, 0" % (dst + 1, dst + 1))
            e("s_and_b32 s%d, s%d, 0xffff" % (dst + 1, dst + 1))
        e("s_mov_b32 s%d, s%d" % (sCUR, sVB)); e("s_mov_b32 s%d, s%d" % (sCUR + 1, sVB + 1))
        e("s_mov_b32 s%d, %d" % (sCUR + 2, 3072 + 63 * self.stride + 4096 + (8192 if self.swz else 0))); e("s_mov_b32 s%d, 0x20000" % (sCUR + 3))
        if self.stag:
            e("s_mul_i32 s%d, s2, %d" % (sRot, self.stag)); e("s_and_b32 s%d, s%d, 63" % (sRot, sRot)); e("s_mul_i32 s%d, s%d, %d" % (sRot, sRot, self.stride))
        else:
            e("s_mov_b32 s%d, 0" % sRot)
        e("s_mov_b32 s%d, s%d" % (sOff, sRot)); e("s_mov_b32 s%d, %d" % (sLeft, 2 * NRES_T)); e("s_mov_b32 s%d, 0" % sSeg)
        self.vpat()

    def weights_setup(self, which):
        e0 = self.e
        sfx = "_" + which
        def e(x):
            for lb in ("L_wdone", "L_wO", "L_wB", "L_wC"):
                x = x.replace(lb, lb + sfx)
            e0(x)
        lab0 = self.lab
        self.lab = lambda n: lab0(n + sfx)
        e("s_mov_b32 s%d, 0x20000" % (sWS + 3))
        e("s_mov_b64 %s, -1" % sp(sWex))
        pdef = pWq if which == "start" else pW2
        e("s_mov_b32 s%d, s%d" % (sWS, pdef)); e("s_and_b32 s%d, s%d, 0xffff" % (sWS + 1, pdef + 1)); e("s_mov_b32 s%d, 0" % (sWS + 2))
        e("s_mov_b32 s%d, s%d" % (sWlds, sVec))
        e("s_mov_b32 s%d, 0" % sWlstep); e("s_mov_b32 s%d, 0" % sWoff); e("s_mov_b32 s%d, 0" % sWoff0); e("s_mov_b32 s%d, 0" % sWstep)
        e("s_mov_b32 s%d, 99" % sWwrap); e("s_mov_b32 s%d, 0" % sWlds0); e("s_mov_b64 %s, 0" % sp(sWo2))
        e("v_mov_b32 v%d, 0" % vW)
        e("s_cmp_eq_u32 s%d, 0" % sRole); e("s_cbranch_scc1 L_wdone")
        if which == "start" and self.gapw:
            e("s_cmp_eq_u32 s%d, 2" % sRole); e("s_cbranch_scc1 L_wdone")
            e("s_cmp_eq_u32 s%d, 3" % sRole); e("s_cbranch_scc1 L_wdone")
        e("s_mov_b32 s%d, 1024" % sWlstep)
        if which == "start":
            e("s_cmp_eq_u32 s%d, 1" % sRole); e("s_cbranch_scc1 L_wO")
        e("s_cmp_eq_u32 s%d, 2" % sRole); e("s_cbranch_scc1 L_wB")
        if which == "start":
            e("s_cmp_eq_u32 s%d, 3" % sRole); e("s_cbranch_scc1 L_wC")
        else:
            e("s_branch L_wC")
        if which == 'start':
            e("s_mov_b32 s%d, %d" % (sWS + 2, 448 * 8192))
            e("v_lshrrev_b32 v9, 3, v%d" % vL); e("v_lshlrev_b32 v%d, 13, v9" % vW)
            e("v_bfe_u32 v9, v%d, 4, 2" % vL); e("v_lshlrev_b32 v9, 1, v9")
            e("v_and_b32 v10, 7, v%d" % vL); e("v_xor_b32 v9, v9, v10"); e("v_lshl_add_u32 v%d, v9, 4, v%d" % (vW, vW))
            e("s_mul_i32 s%d, s%d, %d" % (sT1, sWave, 14 * 8 * 8192)); e("s_lshl_b32 s%d, s%d, 7" % (sT2, sIdx)); e("s_add_u32 s%d, s%d, s%d" % (sWoff, sT1, sT2))
            e("s_mov_b32 s%d, %d" % (sWstep, 8 * 8192))
            e("s_mul_i32 s%d, s%d, %d" % (sWlds, sWave, 14 * 1024)); e("s_add_u32 s%d, s%d, %d" % (sWlds, sWlds, L_W))
            e("s_branch L_wdone")
        self.lab("L_wC")
        e("s_mov_b32 s%d, s%d" % (sWS, pW2)); e("s_and_b32 s%d, s%d, 0xffff" % (sWS + 1, pW2 + 1)); e("s_mov_b32 s%d, %d" % (sWS + 2, 1792 * 896))
        e("v_lshrrev_b32 v9, 1, v%d" % vL); e("v_mul_u32_u24 v%d, 896, v9" % vW)
        e("v_and_b32 v9, 1, v%d" % vL); e("v_lshl_add_u32 v%d, v9, 4, v%d" % (vW, vW))
        e("s_mul_i32 s%d, s%d, %d" % (sT1, sWave, 448 * 896)); e("s_lshl_b32 s%d, s%d, 5" % (sT2, sIdx)); e("s_add_u32 s%d, s%d, s%d" % (sWoff, sT1, sT2))
        e("s_mov_b32 s%d, %d" % (sWstep, 32 * 896))
        e("s_mul_i32 s%d, s%d, %d" % (sWlds, sWave, C_WAVE)); e("s_add_u32 s%d, s%d, %d" % (sWlds, sWlds, L_W))
        e("s_mov_b32 s%d, s%d" % (sWoff0, sWoff)); e("s_mov_b32 s%d, s%d" % (sWlds0, sWlds))
        e("s_and_b32 s%d, s%d, 3" % (sT0, sIdx)); e("s_mul_i32 s%d, s%d, 7" % (sT0, sT0)); e("s_add_u32 s%d, s%d, 1" % (sT0, sT0)); e("s_lshr_b32 s%d, s%d, 1" % (sT0, sT0))
        e("s_sub_u32 s%d, 14, s%d" % (sWwrap, sT0))
        e("s_mul_i32 s%d, s%d, %d" % (sT1, sT0, 32 * 896)); e("s_add_u32 s%d, s%d, s%d" % (sWoff, sWoff, sT1))
        e("s_lshl_b32 s%d, s%d, 10" % (sT1, sT0)); e("s_add_u32 s%d, s%d, s%d" % (sWlds, sWlds, sT1))
        e("s_branch L_wdone")
        if which == 'start':
            self.lab("L_wO")
            e("s_mov_b32 s%d, s%d" % (sWS, pWo)); e("s_and_b32 s%d, s%d, 0xffff" % (sWS + 1, pWo + 1)); e("s_mov_b32 s%d, %d" % (sWS + 2, 4096 * 896))
            e("v_lshlrev_b32 v%d, 4, v%d" % (vW, vL))
            e("s_lshl_b32 s%d, s%d, 6" % (sT1, sIdx)); e("s_lshl_b32 s%d, s%d, 4" % (sT2, sWave)); e("s_add_u32 s%d, s%d, s%d" % (sT1, sT1, sT2))
            e("s_mul_i32 s%d, s%d, 896" % (sWoff, sT1))
            e("s_mov_b32 s%d, 896" % sWstep); e("s_mov_b32 s%d, %d" % (sWlstep, O_ROW))
            e("s_mul_i32 s%d, s%d, %d" % (sWlds, sWave, 16 * O_ROW)); e("s_add_u32 s%d, s%d, %d" % (sWlds, sWlds, L_W))
            e("s_mov_b32 s%d, -1" % sWex); e("s_mov_b32 s%d, 0x00ffffff" % (sWex + 1))
            e("s_branch L_wdone")
        self.lab("L_wB")
        e("s_bitcmp1_b32 s%d, 0" % sIdx)
        e("s_cselect_b32 s%d, s%d, s%d" % (sWS, pW3, pW1)); e("s_cselect_b32 s%d, s%d, s%d" % (sWS + 1, pW3 + 1, pW1 + 1))
        e("s_cselect_b32 s%d, s%d, s%d" % (sWo2, pW1, pW3)); e("s_cselect_b32 s%d, s%d, s%d" % (sWo2 + 1, pW1 + 1, pW3 + 1))
        e("s_cselect_b32 s%d, %d, 0" % (sT3, B_IMG3)); e("s_cselect_b32 s%d, 0, %d" % (sT4, B_IMG3))
        e("s_and_b32 s%d, s%d, 0xffff" % (sWS + 1, sWS + 1)); e("s_and_b32 s%d, s%d, 0xffff" % (sWo2 + 1, sWo2 + 1))
        e("s_mov_b32 s%d, %d" % (sWS + 2, 448 * 3584))
        e("v_lshrrev_b32 v9, 2, v%d" % vL); e("v_mul_u32_u24 v%d, 3584, v9" % vW)
        e("v_and_b32 v9, 3, v%d" % vL); e("v_lshl_add_u32 v%d, v9, 4, v%d" % (vW, vW))
        e("s_mul_i32 s%d, s%d, %d" % (sT1, sWave, 7 * 16 * 3584)); e("s_lshl_b32 s%d, s%d, 6" % (sT2, sIdx)); e("s_add_u32 s%d, s%d, s%d" % (sWoff, sT1, sT2))
        e("s_mov_b32 s%d, s%d" % (sWoff0, sWoff))
        e("s_mov_b32 s%d, %d" % (sWstep, 16 * 3584))
        e("s_mul_i32 s%d, s%d, %d" % (sWlds, sWave, 7 * 1024)); e("s_add_u32 s%d, s%d, %d" % (sWlds, sWlds, L_W))
        e("s_add_u32 s%d, s%d, s%d" % (sWlds0, sWlds, sT4)); e("s_add_u32 s%d, s%d, s%d" % (sWlds, sWlds, sT3))
        self.lab("L_wdone")
        self.lab = lab0

    def clear_mailboxes(self):
        e = self.e
        e("v_mov_b32 v10, -1")
        e("s_lshl_b32 s%d, s%d, 2" % (sT0, sH)); e("s_add_u32 s%d, s%d, s%d" % (sT0, sT0, sWave)); e("s_lshl_b32 s%d, s%d, 4" % (sT0, sT0))
        e("s_add_u32 s%d, s%d, s%d" % (sT0, sT0, sC)); e("s_mul_i32 s%d, s%d, %d" % (sT0, sT0, M1_SLOT))
        self.addr(sA, pWs, M1, [sT0])
        e("v_lshlrev_b32 v8, 2, v%d" % vL)
        e("v_and_b32 v9, 1, v%d" % vL); e("v_lshlrev_b32 v9, 2, v9"); e("v_add_u32 v9, 256, v9")
        for rho in range(2):
            e("global_store_dword v8, v10, %s sc1" % sp(sA))
            e("global_store_dword v9, v10, %s sc1" % sp(sA))
            if rho == 0:
                e("s_add_u32 s%d, s%d, 0x%x" % (sA, sA, M1_R)); e("s_addc_u32 s%d, s%d, 0" % (sA + 1, sA + 1))
        if self.p2n:
            e("s_lshl_b32 s%d, s2, 12" % sT0); e("s_lshl_b32 s%d, s%d, 10" % (sT1, sWave))
            self.addr(sA, pWs, M7, [sT0, sT1])
            for k in range(4):
                e("global_store_dword v8, v10, %s offset:%d sc1" % (sp(sA), k * 256))
        e("s_cmp_eq_u32 s%d, 0" % sWave); e("s_cbranch_scc0 L_cdone")
        e("s_cmp_eq_u32 s%d, 0" % sRole); e("s_cbranch_scc1 L_cdone")
        e("v_and_b32 v8, 31, v%d" % vL); e("v_lshlrev_b32 v8, 2, v8")
        e("s_lshl_b32 s%d, s%d, 7" % (sT0, sIdx))
        e("v_add_u32 v8, s%d, v8" % sT0)
        e("s_cmp_eq_u32 s%d, 1" % sRole); e("s_cbranch_scc1 L_cA")
        e("s_cmp_eq_u32 s%d, 2" % sRole); e("s_cbranch_scc1 L_cB")
        e("s_cmp_eq_u32 s%d, 3" % sRole); e("s_cbranch_scc1 L_cC")
        for off in (M3, M3 + MR, M6, M6 + MR):
            self.addr(sA, pWs, off); e("global_store_dword v8, v10, %s sc1" % sp(sA))
        e("s_branch L_cdone")
        self.lab("L_cA")
        if self.p2n == 2:
            lq = self.nl("Lc8")
            e("s_and_b32 s%d, s%d, 3" % (sT1, sIdx)); e("s_cmp_lt_u32 s%d, 2" % sT1); e("s_cbranch_scc0 %s" % lq)
            e("s_lshr_b32 s%d, s%d, 2" % (sT0, sIdx)); e("s_lshl_b32 s%d, s%d, 7" % (sT0, sT0)); e("s_lshl_b32 s%d, s%d, 2" % (sT1, sT1))
            self.addr(sA, pWs, M8, [sT0, sT1])
            e("v_mov_b32 v9, 0")
            e("global_store_dword v9, v10, %s sc1" % sp(sA))
            self.lab(lq)
        e("s_mul_i32 s%d, s%d, %d" % (sT0, sIdx, M2_SLOT))
        e("v_lshlrev_b32 v8, 2, v%d" % vL)
        for rho in range(2):
            self.addr(sA, pWs, M2 + rho * M2_R, [sT0])
            for k in range(M2_SLOT // 256):
                e("global_store_dword v8, v10, %s offset:%d sc1" % (sp(sA), k * 256))
        e("s_branch L_cdone")
        self.lab("L_cB")
        for off in (M4, M4 + MR):
            self.addr(sA, pWs, off); e("global_store_dword v8, v10, %s sc1" % sp(sA))
        e("s_branch L_cdone")
        self.lab("L_cC")
        self.addr(sA, pWs, M5); e("global_store_dword v8, v10, %s sc1" % sp(sA))
        self.lab("L_cdone")
        e("v_mov_b32 v11, 0")
        e("v_lshlrev_b32 v8, 2, v%d" % vL); e("v_add_u32 v8, %d, v8" % L_Z)
        e("ds_write_b32 v8, v11"); e("ds_write_b32 v8, v11 offset:256")

    def count_cleared(self):
        e = self.e
        e("s_waitcnt lgkmcnt(0)")
        e("s_barrier")
        e("s_cmp_eq_u32 s%d, 0" % sWave); e("s_cbranch_scc0 L_cnt_done")
        e("v_mov_b32 v10, 0"); e("v_mov_b32 v11, 1")
        e("s_mov_b64 exec, 1")
        e("global_atomic_add v10, v11, %s" % sp(pDbg))
        e("s_mov_b64 exec, -1")
        self.lab("L_cnt_done")

    def layernorm_to_vec(self):
        e = self.e
        X = 40
        for d in range(4):
            e("v_lshlrev_b32 v%d, 16, v%d" % (X + 2 * d, 32 + d))
            e("v_and_b32 v%d, 0xffff0000, v%d" % (X + 2 * d + 1, 32 + d))
        e("v_cmp_gt_u32 vcc, 56, v%d" % vL)
        e("v_add_f32 v48, v40, v41"); e("v_add_f32 v49, v42, v43"); e("v_add_f32 v50, v44, v45"); e("v_add_f32 v51, v46, v47")
        e("v_add_f32 v48, v48, v49"); e("v_add_f32 v50, v50, v51"); e("v_add_f32 v48, v48, v50")
        e("v_cndmask_b32 v48, 0, v48, vcc")
        self.allreduce64(48, 49, "v_add_f32")
        e("v_mul_f32 v48, 0x3b124925, v48")
        for i in range(8):
            e("v_sub_f32 v%d, v%d, v48" % (52 + i, X + i))
        e("v_mul_f32 v49, v52, v52")
        for i in range(1, 8):
            e("v_fmac_f32 v49, v%d, v%d" % (52 + i, 52 + i))
        e("v_cndmask_b32 v49, 0, v49, vcc")
        self.allreduce64(49, 50, "v_add_f32")
        e("v_mul_f32 v49, 0x3b124925, v49")
        self.bf16r(48, 48, 50)
        self.bf16r(49, 49, 50)
        e("v_add_f32 v49, 0x3727c5ac, v49")
        self.bf16r(49, 49, 50)
        e("v_sqrt_f32 v49, v49"); self.nop(1)
        self.bf16r(49, 49, 50)
        e("v_rcp_f32 v49, v49")
        for i in range(8):
            e("v_sub_f32 v%d, v%d, v48" % (52 + i, X + i))
        for i in range(0, 8, 2):
            e("v_cvt_pk_bf16_f32 v%d, v%d, v%d" % (36 + i // 2, 52 + i, 53 + i))
        for d in range(4):
            e("v_lshlrev_b32 v%d, 16, v%d" % (52 + 2 * d, 36 + d))
            e("v_and_b32 v%d, 0xffff0000, v%d" % (53 + 2 * d, 36 + d))
        for i in range(8):
            e("v_mul_f32 v%d, v%d, v49" % (52 + i, 52 + i))
        for i in range(0, 8, 2):
            e("v_cvt_pk_bf16_f32 v%d, v%d, v%d" % (36 + i // 2, 52 + i, 53 + i))
        e("v_lshlrev_b32 v48, 4, v%d" % vL); e("v_add_u32 v48, s%d, v48" % sVec)
        e("ds_write_b128 v48, v[36:39]")
        e("s_waitcnt lgkmcnt(0)")

    def gemv_chain(self, n, a_off, b_step, b_second, acc=8):
        e = self.e
        m = 0
        first = True
        while m < n:
            nb = min(4, n - m)
            for k in range(nb):
                o0, o1 = a_off(m + k)
                e("ds_read2_b64 v[%d:%d], v6 offset0:%d offset1:%d" % (32 + 4 * k, 35 + 4 * k, o0, o1))
                e("ds_read_b64_tr_b16 v[%d:%d], v7 offset:%d" % (48 + 4 * k, 49 + 4 * k, (m + k) * b_step))
                e("ds_read_b64_tr_b16 v[%d:%d], v7 offset:%d" % (50 + 4 * k, 51 + 4 * k, (m + k) * b_step + b_second))
            e("s_waitcnt lgkmcnt(0)")
            for k in range(nb):
                c = "0" if first else vr(acc, 4)
                e("v_mfma_f32_16x16x32_bf16 %s, %s, %s, %s" % (vr(acc, 4), vr(32 + 4 * k, 4), vr(48 + 4 * k, 4), c))
                first = False
            m += nb
        self.nop(8)

    def lane_rc(self):
        e = self.e
        e("v_lshrrev_b32 v10, 4, v%d" % vL); e("v_bfe_u32 v11, v%d, 2, 2" % vL)
        e("v_and_b32 v12, 3, v%d" % vL); e("v_and_b32 v13, 15, v%d" % vL)

    def stage_D(self, rho_reg_is_next):
        e = self.e
        self.layernorm_to_vec()
        self.lane_rc()
        e("v_lshlrev_b32 v6, 3, v10"); e("v_add_u32 v6, s%d, v6" % sVec)
        e("v_lshl_add_u32 v7, v10, 2, v11")
        e("v_bfe_u32 v14, v7, 1, 2"); e("v_xor_b32 v14, s%d, v14" % sWave)
        e("v_lshlrev_b32 v7, 7, v7"); e("v_lshl_add_u32 v7, v14, 5, v7"); e("v_lshl_add_u32 v7, v12, 3, v7"); e("v_add_u32 v7, %d, v7" % L_W)
        self.gemv_chain(14, lambda m: (8 * m, 8 * m + 4), 4096, 2048)
        e("v_mov_b32_dpp v9, v8 quad_perm:[1,0,3,2] row_mask:0xf bank_mask:0xf")
        e("v_cvt_pk_bf16_f32 v9, v8, v9")
        e("v_mov_b32 v14, -2"); e("v_min_u32 v9, v9, v14")
        e("s_lshl_b32 s%d, s%d, 7" % (sT0, sIdx)); e("s_lshl_b32 s%d, s%d, 5" % (sT1, sWave)); e("s_add_u32 s%d, s%d, s%d" % (sT0, sT0, sT1))
        e("v_lshlrev_b32 v14, 1, v%d" % vL); e("v_add_u32 v14, s%d, v14" % sT0)
        e("s_mov_b64 exec, 0x5555")
        e("global_store_dword v14, v9, %s sc1" % sp(sA))
        e("s_mov_b64 exec, -1")

    def p1a(self):
        e = self.e
        self.lab("L_p1a_code")
        e("v_lshrrev_b32 v%d, 5, v%d" % (vPh, vL)); e("v_lshlrev_b32 v%d, 12, v%d" % (vPh, vPh))
        e("v_and_b32 v%d, 31, v%d" % (vAd, vL)); e("v_lshl_add_u32 v%d, v%d, 3, v%d" % (vPh, vAd, vPh))
        R = self.R
        for T in range(NRES_T):
            u0, u1 = 2 * T + R, 2 * T + R + 1
            if self.p2n == 1 and T == 2:
                self.now(sTm0)
            if T == 12:
                self.gwait(u0)
                lq = self.nl("Lnq")
                e("s_mov_b32 s%d, s%d" % (sQok, sZ))
                e("v_cmp_gt_u32 vcc, 256, v36")
                e("s_cbranch_vccnz %s" % lq)
                e("s_add_u32 s%d, s%d, 1" % (sQok, sZ))
                e("s_lshl_b32 s%d, s%d, 9" % (sT1, sH))
                self.addr(sA, pWs, M6, [sT1])
                e("v_and_b32 v37, 31, v%d" % vL); e("v_lshlrev_b32 v37, 4, v37")
                e("global_load_dwordx4 v[32:35], v37, %s sc1" % sp(sA))
                self.lab(lq)
                self.issue()
            elif T == 10:
                self.gwait(u0)
                e("v_mov_b32 v37, 0")
                e("global_load_dword v36, v37, %s sc1" % sp(pDbg))
                self.issue()
            else:
                self.group(u0)
            if T == 1:
                self.gwait(u1)
                self.count_cleared()
                self.issue(); self.xop(u1)
            elif T == 9:
                assert u1 - R >= 16
                self.gwait(u1)
                e("s_cmp_eq_u32 s%d, 4" % sRole); e("s_cbranch_scc0 L_noq1")
                e("s_barrier")
                if int(self.o.get("gap2", 1)):
                    e("s_call_b64 %s, L_stageD_prep" % sp(sRet2))
                    e("s_lshl_b32 s%d, s%d, 7" % (sT0, sIdx)); e("s_lshl_b32 s%d, s%d, 5" % (sT1, sWave))
                    self.addr(sB, pWs, M6, [sT0] if self.onest else [sT0, sT1])
                    e("s_call_b64 %s, L_stageD_rest" % sp(sRet2))
                else:
                    self.addr(sA, pWs, M6)
                    e("s_call_b64 %s, L_stageD" % sp(sRet2))
                self.lab("L_noq1")
                self.issue()
                e("v_lshrrev_b32 v%d, 5, v%d" % (vPh, vL)); e("v_lshlrev_b32 v%d, 12, v%d" % (vPh, vPh))
                e("v_and_b32 v%d, 31, v%d" % (vAd, vL)); e("v_lshl_add_u32 v%d, v%d, 3, v%d" % (vPh, vAd, vPh))
            else:
                self.group(u1)
            e("v_add_u32 v%d, s%d, v%d" % (vAd, sCs, vPh))
            for t in range(16):
                e("ds_read_b64_tr_b16 %s, v%d offset:%d" % (res_reg(T >> 1, t, T & 1), vAd, t * 256))
            self.adv_cs()
            e("s_waitcnt lgkmcnt(0)")
        if self.p2n == 1:
            self.now(sTm1, sTm0)

    def gather_q(self):
        e = self.e
        e("s_cmp_eq_u32 s%d, 0" % sPass); e("s_cbranch_scc0 L_gq")
        e("s_cmp_eq_u32 s%d, 1" % sQok); e("s_cbranch_scc0 L_gq_slow")
        e("v_max3_u32 v36, v32, v33, v34"); e("v_max_u32 v36, v36, v35")
        e("v_cmp_eq_u32 vcc, -1, v36")
        e("v_and_b32 v8, 31, v%d" % vL); e("v_lshlrev_b32 v8, 4, v8")
        e("s_cbranch_vccz L_gq_write")
        self.lab("L_gq_slow")
        L = self.nl("Lc"); Dn = self.nl("Lcd")
        e("v_mov_b32 v8, 0"); e("s_mov_b32 s%d, 0" % sSpin)
        self.lab(L)
        e("global_load_dword v9, v8, %s sc1" % sp(pDbg))
        e("s_waitcnt vmcnt(0)")
        e("v_cmp_gt_u32 vcc, 256, v9")
        e("s_cbranch_vccz %s" % Dn)
        e("s_add_u32 s%d, s%d, 1" % (sSpin, sSpin)); e("s_cmp_lt_u32 s%d, %d" % (sSpin, SPIN_LIMIT)); e("s_cbranch_scc1 %s" % L)
        self.lab(Dn)
        self.lab("L_gq")
        if self.q1w:
            e("s_cmp_eq_u32 s%d, 1" % sPass); e("s_cbranch_scc0 L_gq_p0")
            e("s_cmp_eq_u32 s%d, 0" % sWave); e("s_cbranch_scc0 L_gq_bar")
            e("s_lshl_b32 s%d, s%d, 9" % (sT1, sH))
            self.addr(sA, pWs, M6 + MR, [sT1])
            e("s_lshl_b32 s%d, s%d, 7" % (sT0, sH))
            self.addr(sB, pWs, M8, [sT0])
            e("v_and_b32 v8, 31, v%d" % vL); e("v_lshlrev_b32 v8, 4, v8"); e("v_mov_b32 v9, 0")
            self.ptmp = 10
            self.poll2(lambda b: ["global_load_dwordx4 v[%d:%d], v8, %s sc1" % (b, b + 3, sp(sA)),
                                  "global_load_dwordx2 v[%d:%d], v9, %s sc1" % (b + 4, b + 5, sp(sB))], 6, (20, 26), 32, "Qq", sleep=int(self.o.get("qsleep", 0)))
            self.ptmp = 31
            for k in range(4):
                e("ds_write_b128 v8, v[32:35] offset:%d" % (L_Q + 512 * k))
            e("v_mov_b32 v9, %d" % (L_SM + 32))
            e("ds_write_b64 v9, v[36:37]")
            e("s_waitcnt lgkmcnt(0)")
            self.lab("L_gq_bar")
            e("s_barrier")
            e("v_mov_b32 v9, %d" % (L_SM + 32))
            e("ds_read_b64 v[38:39], v9")
            e("s_waitcnt lgkmcnt(0)")
            self.near_setup()
            e("s_branch L_gq_end")
            self.lab("L_gq_p0")
        e("s_lshl_b32 s%d, s%d, 13" % (sT0, sPass)); e("s_lshl_b32 s%d, s%d, 9" % (sT1, sH))
        self.addr(sA, pWs, M6, [sT0, sT1])
        e("v_and_b32 v8, 31, v%d" % vL); e("v_lshlrev_b32 v8, 4, v8")
        lds_ = ["global_load_dwordx4 v[32:35], v8, %s sc1" % sp(sA)]
        chk = [32, 33, 34, 35]
        if self.p2n == 1:
            e("v_mov_b32 v37, 0")
            lds_.append("global_load_dwordx2 v[38:39], v37, %s offset:16 sc1" % sp(pDbg))
        if self.p2n == 2:
            e("s_lshl_b32 s%d, s%d, 7" % (sT0, sH))
            self.addr(sB, pWs, M8, [sT0])
            e("s_cmp_eq_u32 s%d, 0" % sPass)
            e("s_cselect_b32 s%d, s%d, s%d" % (sB, sA, sB)); e("s_cselect_b32 s%d, s%d, s%d" % (sB + 1, sA + 1, sB + 1))
            e("v_mov_b32 v37, 0")
            lds_.append("global_load_dwordx2 v[38:39], v37, %s sc1" % sp(sB))
            chk += [38, 39]
        self.poll(lds_, chk, 36, "Pq")
        if self.p2n and not self.q1w:
            self.near_setup()
        self.lab("L_gq_write")
        e("s_lshl_b32 s%d, s%d, 9" % (sT0, sWave))
        e("v_add_u32 v8, s%d, v8" % sT0)
        e("ds_write_b128 v8, v[32:35] offset:%d" % L_Q)
        e("s_waitcnt lgkmcnt(0)")
        if self.q1w:
            self.lab("L_gq_end")

    def near_setup(self):
        e = self.e
        d = self.nl("Lns")
        e("s_cmp_eq_u32 s%d, 1" % sPass); e("s_cbranch_scc0 %s" % d)
        if self.p2n == 1:
            e("v_readfirstlane_b32 s%d, v38" % sT0); e("v_readfirstlane_b32 s%d, v39" % sT1)
            e("s_nop 3")
            e("s_cmp_gt_u32 s%d, 128" % sT0); e("s_cselect_b32 s%d, 1, 0" % sT0)
            e("s_cmp_gt_u32 s%d, 128" % sT1); e("s_cselect_b32 s%d, 1, 0" % sT1)
        else:
            e("v_readfirstlane_b32 s%d, v38" % sT0); e("v_readfirstlane_b32 s%d, v39" % sT1)
            e("s_nop 3")
            e("s_and_b32 s%d, s%d, 1" % (sT1, sT1)); e("s_and_b32 s%d, s%d, 1" % (sT0, sT0))
        if "forceK" in self.o:
            e("s_mov_b32 s%d, %d" % (sT0, int(self.o["forceK"]))); e("s_mov_b32 s%d, %d" % (sT1, int(self.o["forceV"])))
        e("s_xor_b32 s%d, s%d, s%d" % (sXch, sT0, sT1))
        e("s_lshr_b32 s%d, s2, 1" % sT2); e("s_lshr_b32 s%d, s2, 2" % sT3); e("s_xor_b32 s%d, s%d, s%d" % (sT2, sT2, sT3)); e("s_and_b32 s%d, s%d, 1" % (sT2, sT2))
        e("s_xor_b32 s%d, s%d, s%d" % (sT0, sT0, sT2)); e("s_xor_b32 s%d, s%d, s%d" % (sT1, sT1, sT2))
        if self.swz:
            e("s_lshl_b32 s%d, s%d, 13" % (sT0, sT0)); e("s_lshl_b32 s%d, s%d, 13" % (sT1, sT1))
        else:
            e("s_and_b32 s%d, s%d, 1" % (sT2, sWave))
            e("s_lshl_b32 s%d, s%d, 1" % (sT0, sT0)); e("s_add_u32 s%d, s%d, s%d" % (sT0, sT0, sT2)); e("s_sub_i32 s%d, s%d, s%d" % (sT0, sT0, sWave)); e("s_lshl_b32 s%d, s%d, 12" % (sT0, sT0))
            e("s_lshl_b32 s%d, s%d, 1" % (sT1, sT1)); e("s_add_u32 s%d, s%d, s%d" % (sT1, sT1, sT2)); e("s_sub_i32 s%d, s%d, s%d" % (sT1, sT1, sWave)); e("s_lshl_b32 s%d, s%d, 12" % (sT1, sT1))
        e("s_xor_b32 s%d, s2, 4" % sT3); e("s_cmp_lt_u32 s%d, 2" % sWave); e("s_cselect_b32 s%d, s2, s%d" % (sT3, sT3))
        e("s_mul_i32 s%d, s%d, %d" % (sRotN, sT3, self.stag)); e("s_and_b32 s%d, s%d, 63" % (sRotN, sRotN)); e("s_mul_i32 s%d, s%d, %d" % (sRotN, sRotN, self.stride))
        e("s_sub_i32 s%d, s%d, s2" % (sT3, sT3)); e("s_lshl_b32 s%d, s%d, 20" % (sT3, sT3))
        e("s_add_i32 s%d, s%d, s%d" % (sT0, sT0, sT3)); e("s_add_i32 s%d, s%d, s%d" % (sT1, sT1, sT3))
        for (dst, src, dl) in ((sKN, sKB, sT0), (sVN, sVB, sT1)):
            e("s_ashr_i32 s%d, s%d, 31" % (sT2, dl))
            e("s_add_u32 s%d, s%d, s%d" % (dst, src, dl)); e("s_addc_u32 s%d, s%d, s%d" % (dst + 1, src + 1, sT2))
            e("s_and_b32 s%d, s%d, 0xffff" % (dst + 1, dst + 1))
        self.lab(d)

    def kphase(self):
        e = self.e
        if self.p2n == 1:
            self.now(sTm0)
        vQ, vZ = 16, 17
        if not self.klin:
            e("v_bfe_u32 v%d, v%d, 3, 1" % (vPh, vL)); e("v_lshlrev_b32 v%d, 12, v%d" % (vPh, vPh))
            e("v_lshrrev_b32 v%d, 4, v%d" % (vAd, vL)); e("v_lshl_add_u32 v%d, v%d, 7, v%d" % (vPh, vAd, vPh))
            e("v_lshlrev_b32 v%d, 4, v%d" % (vQ, vAd))
            e("v_and_b32 v%d, 7, v%d" % (vAd, vL)); e("v_lshl_add_u32 v%d, v%d, 4, v%d" % (vPh, vAd, vPh))
        else:
            e("v_bfe_u32 v%d, v%d, 3, 1" % (vPh, vL)); e("v_lshlrev_b32 v%d, 12, v%d" % (vPh, vPh))
            e("v_and_b32 v%d, 7, v%d" % (vAd, vL)); e("v_lshl_add_u32 v%d, v%d, 9, v%d" % (vPh, vAd, vPh))
            e("v_lshrrev_b32 v%d, 4, v%d" % (vQ, vL)); e("v_and_b32 v18, 3, v%d" % vL); e("v_xor_b32 v18, v18, v%d" % vQ)
            e("v_lshl_add_u32 v%d, v18, 4, v%d" % (vPh, vPh))
            e("v_bfe_u32 v18, v%d, 2, 1" % vL); e("v_lshlrev_b32 v18, 6, v18")
            e("v_sub_u32 v19, v%d, v18" % vPh); e("v_add_u32 v%d, v%d, v18" % (vPh, vPh)); e("v_mov_b32 v18, v19")
            e("v_lshlrev_b32 v%d, 4, v%d" % (vQ, vQ))
        e("s_lshl_b32 s%d, s%d, 9" % (sT0, sWave)); e("s_add_u32 s%d, s%d, %d" % (sT0, sT0, L_Q))
        e("v_add_u32 v%d, s%d, v%d" % (vQ, sT0, vQ))
        e("v_mov_b32 v%d, %d" % (vZ, L_Z))
        for i in range(8):
            e("v_mov_b32 v%d, 0" % (vSC + i))
        first_skip = self.nl("Kskip")
        e("s_mov_b32 s%d, 0" % sT15)
        e("s_cmp_eq_u32 s%d, 0" % sPass)
        e("s_cbranch_scc1 L_k0")
        if self.q1w:
            e("s_cmp_eq_u32 s%d, 0" % sWave); e("s_cbranch_scc1 %s" % first_skip)
        e("s_waitcnt vmcnt(0)")
        e("s_branch %s" % first_skip)
        parts = {2: [(0, 0, 0), (1, 1, 12), (2, 1, 0)], 3: [(0, 0, 0), (1, 1, 14), (2, 1, 0)]}.get(self.ilv, [(0, 0, 0), (1, 1, 0)])
        for (pi, a, stop) in parts:
            if pi == 2:
                self.xch_publish()
            self.lab("L_k%d" % pi)
            self.step_issue()
            if pi == 0:
                self.lab(first_skip)
            e("s_lshl_b64 %s, %s, s%d" % (sp(sMd), sp(sM[0]), sT15))
            e("v_add_u32 v%d, s%d, v%d" % (vAd, sCs, vPh))
            if self.klin:
                e("v_add_u32 v19, s%d, v18" % sCs)
            e("v_cndmask_b32 v%d, v%d, v%d, %s" % (vPa, vZ, vQ, sp(sMd)))
            for b in range(2):
                for k in range(4):
                    c8 = 4 * b + k
                    e("ds_read_b128 v[%d:%d], v%d offset:%d" % (32 + 4 * k, 35 + 4 * k, vPa, c8 * 64))
                    if self.klin:
                        e("ds_read_b128 v[%d:%d], v%d offset:%d" % (48 + 4 * k, 51 + 4 * k, (19 if c8 & 1 else vAd), c8 * 64))
                    else:
                        e("ds_read_b128 v[%d:%d], v%d offset:%d" % (48 + 4 * k, 51 + 4 * k, vAd, c8 * 512))
                e("s_waitcnt lgkmcnt(0)")
                for k in range(4):
                    e("v_mfma_f32_16x16x32_bf16 %s, %s, %s, %s" % (vr(vSC + 4 * a, 4), vr(32 + 4 * k, 4), vr(48 + 4 * k, 4), vr(vSC + 4 * a, 4)))
            self.adv_cs()
            e("s_add_u32 s%d, s%d, 1" % (sT15, sT15))
            if stop:
                e("s_cmp_lg_u32 s%d, %d" % (sT15, stop))
            else:
                e("s_and_b32 s%d, s%d, 15" % (sT15, sT15))
            e("s_cbranch_scc1 L_k%d" % pi)
            if pi == 0:
                self.stamp(13)
        self.nop(8)

    def xch_publish(self):
        e = self.e
        S = vSC
        nx = self.nl("Lxp")
        e("s_cmp_eq_u32 s%d, 1" % sPass); e("s_cbranch_scc0 %s" % nx)
        e("s_cmp_eq_u32 s%d, 1" % sXch); e("s_cbranch_scc0 %s" % nx)
        self.nop(8)
        for i in range(0, 8, 2):
            e("v_cvt_pk_bf16_f32 v%d, v%d, v%d" % (20 + i // 2, S + i, S + i + 1))
        e("v_mov_b32 v25, -2"); e("v_lshlrev_b32 v24, 4, v%d" % vL)
        for d in range(4):
            e("v_min_u32 v%d, v%d, v25" % (20 + d, 20 + d))
        e("s_lshl_b32 s%d, s2, 12" % sT0); e("s_lshl_b32 s%d, s%d, 10" % (sT1, sWave))
        self.addr(sA, pWs, M7, [sT0, sT1])
        e("global_store_dwordx4 v24, v[20:23], %s sc1" % sp(sA))
        self.lab(nx)

    def softmax(self):
        e = self.e
        S = vSC
        if self.p2n == 1:
            self.now(sTm0, sTm0)
        for i in range(0, 8, 2):
            e("v_cvt_pk_bf16_f32 v%d, v%d, v%d" % (36 + i // 2, S + i, S + i + 1))
        if self.p2n:
            nx = self.nl("Lnx")
            e("s_cmp_eq_u32 s%d, 1" % sPass); e("s_cbranch_scc0 %s" % nx)
            e("s_cmp_eq_u32 s%d, 1" % sXch); e("s_cbranch_scc0 %s" % nx)
            e("v_lshlrev_b32 v40, 4, v%d" % vL)
            if self.ilv < 2:
                e("v_mov_b32 v41, -2")
                for d in range(4):
                    e("v_min_u32 v%d, v%d, v41" % (44 + d, 36 + d))
                e("s_lshl_b32 s%d, s2, 12" % sT0); e("s_lshl_b32 s%d, s%d, 10" % (sT1, sWave))
                self.addr(sA, pWs, M7, [sT0, sT1])
                e("global_store_dwordx4 v40, v[44:47], %s sc1" % sp(sA))
            e("s_xor_b32 s%d, s2, 4" % sT0); e("s_lshl_b32 s%d, s%d, 12" % (sT0, sT0)); e("s_xor_b32 s%d, s%d, 2" % (sT1, sWave)); e("s_lshl_b32 s%d, s%d, 10" % (sT1, sT1))
            self.addr(sA, pWs, M7, [sT0, sT1])
            self.poll(["global_load_dwordx4 v[48:51], v40, %s sc1" % sp(sA)], [48, 49, 50, 51], 52, "Px7")
            if self.ilv == 3:
                H = "0xffff0000"
                e("v_mov_b32 v52, %s" % H); e("v_mov_b32 v54, -1"); e("v_mov_b32 v55, -1")
                e("s_mov_b64 exec, 0xffff"); e("v_mov_b32 v52, 0"); e("v_mov_b32 v54, %s" % H); e("v_mov_b32 v55, %s" % H)
                e("s_mov_b32 exec_lo, 0"); e("s_mov_b32 exec_hi, 0xffff0000"); e("v_mov_b32 v55, 0")
                e("s_mov_b64 exec, -1")
                e("v_bfi_b32 v36, v52, v48, v36"); e("v_bfi_b32 v37, v52, v49, v37")
                e("v_bfi_b32 v38, v54, v50, v38"); e("v_bfi_b32 v39, v55, v51, v39")
            elif self.ilv == 2:
                e("v_mov_b32 v52, -1"); e("v_mov_b32 v53, 0xffff"); e("v_mov_b32 v54, -1"); e("v_mov_b32 v55, 0xffff")
                e("s_mov_b64 exec, 0xffff"); e("v_mov_b32 v52, 0"); e("v_mov_b32 v53, 0")
                e("s_mov_b32 exec_lo, 0"); e("s_mov_b32 exec_hi, 0xffff0000"); e("v_mov_b32 v54, 0"); e("v_mov_b32 v55, 0")
                e("s_mov_b64 exec, -1")
                e("v_bfi_b32 v36, v52, v48, v36"); e("v_bfi_b32 v37, v53, v49, v37")
                e("v_bfi_b32 v38, v54, v50, v38"); e("v_bfi_b32 v39, v55, v51, v39")
            elif self.ilv:
                e("v_mov_b32 v52, 0xffff0000"); e("v_mov_b32 v53, 0xffff0000")
                e("s_mov_b64 exec, 0xffff"); e("v_mov_b32 v52, 0")
                e("s_mov_b32 exec_lo, 0"); e("s_mov_b32 exec_hi, -1"); e("v_mov_b32 v53, -1")
                e("s_mov_b64 exec, -1")
                e("v_bfi_b32 v36, v52, v48, v36"); e("v_bfi_b32 v37, v52, v49, v37")
                e("v_bfi_b32 v38, v53, v50, v38"); e("v_bfi_b32 v39, v53, v51, v39")
            else:
                e("s_mov_b32 exec_lo, 0"); e("s_mov_b32 exec_hi, 0xffff0000")
                e("v_mov_b32 v37, v49")
                e("s_mov_b64 exec, -1")
                e("v_mov_b32 v38, v50"); e("v_mov_b32 v39, v51")
            self.lab(nx)
        for i in range(0, 8, 2):
            e("v_lshlrev_b32 v%d, 16, v%d" % (S + i, 36 + i // 2)); e("v_and_b32 v%d, 0xffff0000, v%d" % (S + i + 1, 36 + i // 2))
        e("v_max3_f32 v32, v%d, v%d, v%d" % (S, S + 1, S + 2)); e("v_max3_f32 v32, v32, v%d, v%d" % (S + 3, S + 4))
        e("v_max3_f32 v32, v32, v%d, v%d" % (S + 5, S + 6)); e("v_max_f32 v32, v32, v%d" % (S + 7))
        self.allreduce64(32, 33, "v_max_f32")
        e("s_lshl_b32 s%d, s%d, 2" % (sT0, sWave)); e("s_add_u32 s%d, s%d, %d" % (sT0, sT0, L_SM))
        e("v_mov_b32 v33, s%d" % sT0)
        e("ds_write_b32 v33, v32")
        if self.p2n == 1:
            e("s_lshl_b32 s%d, s%d, 3" % (sT0, sWave)); e("s_add_u32 s%d, s%d, %d" % (sT0, sT0, L_SM + 32))
            e("v_mov_b32 v33, s%d" % sT0); e("v_mov_b32 v34, s%d" % sTm1); e("v_mov_b32 v35, s%d" % sTm0)
            e("ds_write_b64 v33, v[34:35]")
        e("s_waitcnt lgkmcnt(0)")
        e("s_barrier")
        e("v_mov_b32 v33, %d" % L_SM)
        e("ds_read_b128 v[36:39], v33")
        if self.p2n == 1:
            nv = self.nl("Lnv")
            e("s_cmp_eq_u32 s%d, 0" % sPass); e("s_cbranch_scc0 %s" % nv)
            e("s_cmp_eq_u32 s%d, 0" % sWave); e("s_cbranch_scc0 %s" % nv)
            e("ds_read_b128 v[40:43], v33 offset:32"); e("ds_read_b128 v[44:47], v33 offset:48")
            e("s_waitcnt lgkmcnt(0)")
            e("v_add_u32 v40, v40, v42"); e("v_add_u32 v41, v41, v43"); e("v_add_u32 v44, v44, v46"); e("v_add_u32 v45, v45, v47")
            e("s_lshr_b32 s%d, s2, 1" % sT0); e("s_lshr_b32 s%d, s2, 2" % sT1); e("s_xor_b32 s%d, s%d, s%d" % (sT0, sT0, sT1)); e("s_and_b32 s%d, s%d, 1" % (sT0, sT0))
            e("v_cmp_ge_u32 vcc, v40, v44"); self.nop(2); e("v_cndmask_b32 v40, 0, 1, vcc")
            e("v_cmp_ge_u32 vcc, v41, v45"); self.nop(2); e("v_cndmask_b32 v41, 0, 1, vcc")
            e("v_xor_b32 v40, s%d, v40" % sT0); e("v_xor_b32 v41, s%d, v41" % sT0)
            e("v_cmp_eq_u32 vcc, 0, v%d" % vL); self.nop(2); e("v_cndmask_b32 v40, v40, v41, vcc")
            e("v_lshlrev_b32 v41, 2, v%d" % vL); e("v_add_u32 v41, 16, v41")
            e("s_mov_b64 exec, 3")
            e("global_atomic_add v41, v40, %s" % sp(pDbg))
            e("s_mov_b64 exec, -1")
            self.lab(nv)
        e("s_waitcnt lgkmcnt(0)")
        e("v_max3_f32 v32, v36, v37, v38"); e("v_max_f32 v32, v32, v39")
        e("s_mov_b32 s%d, 0x%x" % (sT0, C_EXP))
        for i in range(8):
            e("v_sub_f32 v%d, v%d, v32" % (S + i, S + i))
        for i in range(8):
            e("v_mul_f32 v%d, s%d, v%d" % (S + i, sT0, S + i))
        for i in range(8):
            e("v_exp_f32 v%d, v%d" % (S + i, S + i))
        self.nop(1)
        e("v_lshrrev_b32 v33, 4, v%d" % vL); e("v_lshlrev_b32 v33, 7, v33")
        e("v_and_b32 v34, 15, v%d" % vL); e("v_lshl_add_u32 v33, v34, 1, v33")
        e("s_lshl_b32 s%d, s%d, 10" % (sT0, sWave)); e("s_add_u32 s%d, s%d, %d" % (sT0, sT0, L_P))
        e("v_add_u32 v33, s%d, v33" % sT0)
        for i in range(0, 8, 2):
            a, r = i >> 2, i & 3
            e("v_cvt_pk_bf16_f32 v%d, v%d, v%d" % (36 + i // 2, S + i, S + i + 1))
            e("ds_write_b16 v33, v%d offset:%d" % (36 + i // 2, a * 512 + r * 32))
            e("ds_write_b16_d16_hi v33, v%d offset:%d" % (36 + i // 2, a * 512 + (r + 1) * 32))
        e("v_add_f32 v34, v%d, v%d" % (S, S + 1)); e("v_add_f32 v35, v%d, v%d" % (S + 2, S + 3))
        e("v_add_f32 v40, v%d, v%d" % (S + 4, S + 5)); e("v_add_f32 v41, v%d, v%d" % (S + 6, S + 7))
        e("v_add_f32 v34, v34, v35"); e("v_add_f32 v40, v40, v41"); e("v_add_f32 v34, v34, v40")
        self.allreduce64(34, 35, "v_add_f32")
        e("v_mov_b32 v%d, v34" % vLsum)
        e("v_mov_b32 v9, v32")
        e("s_waitcnt lgkmcnt(0)")

    def vphase(self):
        e = self.e
        e("v_lshrrev_b32 v%d, 5, v%d" % (vPh, vL)); e("v_lshlrev_b32 v%d, 12, v%d" % (vPh, vPh))
        e("v_and_b32 v%d, 31, v%d" % (vAd, vL)); e("v_lshl_add_u32 v%d, v%d, 3, v%d" % (vPh, vAd, vPh))
        e("v_lshrrev_b32 v%d, 4, v%d" % (vPa, vL)); e("v_lshlrev_b32 v%d, 3, v%d" % (vPa, vPa))
        e("s_lshl_b32 s%d, s%d, 10" % (sT0, sWave)); e("s_add_u32 s%d, s%d, %d" % (sT0, sT0, L_P))
        e("v_add_u32 v%d, s%d, v%d" % (vPa, sT0, vPa))
        for i in range(16):
            e("v_mov_b32 v%d, 0" % (vACC + i))
        acc = lambda T4: vr(vACC + 4 * T4, 4)
        after = {1: 0, 3: 1, 6: 2, 8: 3, 11: 4, 13: 5, 16: 6}
        pf_tiles = tuple(int(x) for x in str(self.o.get("wpft", "14,16")).split(",")) if (self.wpf and self.gapw) else ()
        cpf_tiles = tuple(int(x) for x in str(self.o.get("cpft", "9,11")).split(",")) if int(self.o.get("cpf", 1)) else ()
        if pf_tiles:
            self.wpf_setup()
        if cpf_tiles:
            e("s_getpc_b64 s[18:19]")
            self.lab("L_pcref")
            e("s_add_u32 s18, s18, L_gapcode-L_pcref"); e("s_addc_u32 s19, s19, 0")
            e("v_lshlrev_b32 v46, 7, v%d" % vL)
        any_x = bool(pf_tiles) or bool(cpf_tiles)
        pend = 0
        for i in range(NSTR_T):
            T = NRES_T + i
            if self.ilv:
                T = self.strT(i)
            if not any_x:
                self.step_issue()
            else:
                deep = int(self.o.get("deepV", 99))
                Rv = 4 if i >= deep else self.R
                hist = getattr(self, "_h", [])
                if i == deep:
                    lsk = self.nl("Ldp")
                    e("s_cmp_eq_u32 s%d, 0" % sPass); e("s_cbranch_scc0 %s" % lsk)
                    self.issue(); self.issue()
                    self.lab(lsk)
                    hist += [0, 0]
                w = 4 * (Rv - 1)
                for half in range(2):
                    ex = sum(hist[-(Rv - 1):]) if hist else 0
                    e("s_waitcnt vmcnt(%d)" % (w + ex))
                    self.issue()
                    if half == 0 and i in pf_tiles:
                        e("buffer_load_dword v44, v45, %s, s%d offen" % (sp(sWS, 4), sWoff))
                        e("s_add_u32 s%d, s%d, s%d" % (sWoff, sWoff, sWstep))
                        hist.append(1)
                    elif half == 0 and i in cpf_tiles:
                        e("v_min_u32 v47, L_endcode-L_gapcode-4, v46")
                        e("global_load_dword v47, v47, s[18:19]")
                        e("v_add_u32 v46, 8192, v46")
                        hist.append(1)
                    else:
                        hist.append(0)
                self._h = hist
            e("v_add_u32 v%d, s%d, v%d" % (vAd, sCs, vPh))
            e("ds_read_b64 v[32:33], v%d offset:%d" % (vPa, T * 32))
            for b in range(2):
                us = (2 * b, 2 * b + 1)
                k = 0
                for u in us:
                    for T4 in range(4):
                        e("ds_read_b64_tr_b16 v[%d:%d], v%d offset:%d" % (48 + 2 * k, 49 + 2 * k, vAd, (4 * T4 + u) * 256))
                        k += 1
                if b == 0:
                    e("s_waitcnt lgkmcnt(8)")
                for j, u in enumerate(us):
                    e("v_cndmask_b32 v%d, 0, v32, %s" % (36 + 2 * j, sp(sM[u])))
                    e("v_cndmask_b32 v%d, 0, v33, %s" % (37 + 2 * j, sp(sM[u])))
                e("s_waitcnt lgkmcnt(0)")
                k = 0
                for j, u in enumerate(us):
                    for T4 in range(4):
                        e("v_mfma_f32_16x16x16_bf16 %s, %s, %s, %s" % (acc(T4), vr(36 + 2 * j, 2), vr(48 + 2 * k, 2), acc(T4)))
                        k += 1
            self.adv_cs()
            if self.o.get("vstamps") and i in (5, 11, 14):
                self.stamp({5: 14, 11: 15, 14: 12}[i])
            if i in after:
                self.res_pair(after[i])
        self.nop(8)

    def wpf_setup(self):
        e = self.e
        d = self.nl("Lpf"); lb = self.nl("LpfB")
        e("s_mov_b32 s%d, 0x20000" % (sWS + 3)); e("s_mov_b32 s%d, 0" % (sWS + 2))
        e("s_mov_b32 s%d, s%d" % (sWS, pW2)); e("s_and_b32 s%d, s%d, 0xffff" % (sWS + 1, pW2 + 1))
        e("s_mov_b32 s%d, 0" % sWoff); e("s_mov_b32 s%d, 0" % sWstep); e("v_mov_b32 v45, 0")
        e("s_cmp_eq_u32 s%d, 0" % sPass); e("s_cbranch_scc0 %s" % d)
        e("s_cmp_eq_u32 s%d, 2" % sRole); e("s_cbranch_scc1 %s" % lb)
        e("s_cmp_eq_u32 s%d, 3" % sRole); e("s_cbranch_scc0 %s" % d)
        e("s_mov_b32 s%d, %d" % (sWS + 2, 1792 * 896))
        e("v_mul_u32_u24 v45, 896, v%d" % vL)
        e("s_and_b32 s%d, s%d, 3" % (sT0, sIdx)); e("s_mul_i32 s%d, s%d, 448" % (sT0, sT0)); e("s_lshl_b32 s%d, s%d, 7" % (sT1, sWave)); e("s_add_u32 s%d, s%d, s%d" % (sT0, sT0, sT1))
        e("s_mul_i32 s%d, s%d, 896" % (sWoff, sT0)); e("s_lshr_b32 s%d, s%d, 2" % (sT1, sIdx)); e("s_lshl_b32 s%d, s%d, 7" % (sT1, sT1)); e("s_add_u32 s%d, s%d, s%d" % (sWoff, sWoff, sT1))
        e("s_mov_b32 s%d, %d" % (sWstep, 64 * 896))
        e("s_branch %s" % d)
        self.lab(lb)
        e("s_bitcmp1_b32 s%d, 0" % sIdx)
        e("s_cselect_b32 s%d, s%d, s%d" % (sWS, pW3, pW1)); e("s_cselect_b32 s%d, s%d, s%d" % (sWS + 1, pW3 + 1, pW1 + 1))
        e("s_and_b32 s%d, s%d, 0xffff" % (sWS + 1, sWS + 1))
        e("s_mov_b32 s%d, %d" % (sWS + 2, 448 * 3584))
        e("v_mul_u32_u24 v45, 3584, v%d" % vL)
        e("s_lshl_b32 s%d, s%d, 7" % (sT1, sWave)); e("s_mul_i32 s%d, s%d, 3584" % (sWoff, sT1))
        e("s_lshr_b32 s%d, s%d, 1" % (sT1, sIdx)); e("s_lshl_b32 s%d, s%d, 7" % (sT1, sT1)); e("s_add_u32 s%d, s%d, s%d" % (sWoff, sWoff, sT1))
        e("s_mov_b32 s%d, %d" % (sWstep, 64 * 3584))
        self.lab(d)

    def res_pair(self, m):
        e = self.e
        acc = lambda T4: vr(vACC + 4 * T4, 4)
        if self.ilv:
            e("ds_read2_b64 v[32:35], v%d offset0:%d offset1:%d" % (vPa, 4 * self.resT(2 * m), 4 * self.resT(2 * m + 1)))
        else:
            e("ds_read2_b64 v[32:35], v%d offset0:%d offset1:%d" % (vPa, 8 * m, 8 * m + 4))
        e("s_waitcnt lgkmcnt(0)")
        for u in range(4):
            A = 36 + 4 * (u & 1)
            for d in range(4):
                e("v_cndmask_b32 v%d, 0, v%d, %s" % (A + d, 32 + d, sp(sM[u])))
            self.nop(2)
            for T4 in range(4):
                e("v_mfma_f32_16x16x32_bf16 %s, %s, %s, %s" % (acc(T4), vr(A, 4), res_reg(m, 4 * T4 + u), acc(T4)))

    def combine_publish(self):
        e = self.e
        self.lab("L_gapcode")
        for u in range(4):
            X, Y, Z, W = (vACC + 4 * t + u for t in range(4))
            e("v_permlane16_swap_b32 v%d, v%d" % (X, Y))
            e("v_permlane16_swap_b32 v%d, v%d" % (Z, W))
        self.nop(2)
        for u in range(4):
            e("v_permlane32_swap_b32 v%d, v%d" % (vACC + u, vACC + 8 + u))
        e("v_lshrrev_b32 v32, 4, v%d" % vL); e("v_lshlrev_b32 v32, 8, v32")
        e("v_and_b32 v33, 15, v%d" % vL); e("v_lshl_add_u32 v32, v33, 2, v32")
        e("s_lshl_b32 s%d, s%d, 10" % (sT0, sWave)); e("s_add_u32 s%d, s%d, %d" % (sT0, sT0, L_P))
        e("v_add_u32 v32, s%d, v32" % sT0)
        for u in range(4):
            e("ds_write_b32 v32, v%d offset:%d" % (vACC + u, u * 64))
        e("s_lshl_b32 s%d, s%d, 2" % (sT0, sWave)); e("s_add_u32 s%d, s%d, %d" % (sT0, sT0, L_SM + 16))
        e("v_mov_b32 v33, s%d" % sT0)
        e("ds_write_b32 v33, v%d" % vLsum)
        e("s_waitcnt lgkmcnt(0)")
        e("s_barrier")
        e("s_lshl_b32 s%d, s%d, 8" % (sT0, sWave)); e("s_add_u32 s%d, s%d, %d" % (sT0, sT0, L_P))
        e("v_lshlrev_b32 v40, 2, v%d" % vL); e("v_add_u32 v32, s%d, v40" % sT0)
        for w in range(4):
            e("ds_read_b32 v%d, v32 offset:%d" % (34 + w, w * 1024))
        e("v_mov_b32 v33, %d" % (L_SM + 16))
        e("ds_read_b128 v[44:47], v33")
        e("s_waitcnt lgkmcnt(0)")
        e("v_add_f32 v34, v34, v35"); e("v_add_f32 v36, v36, v37"); e("v_add_f32 v34, v34, v36")
        e("v_add_f32 v44, v44, v45"); e("v_add_f32 v46, v46, v47"); e("v_add_f32 v44, v44, v46")
        e("v_mov_b32 v41, -2")
        e("v_min_u32 v34, v34, v41")
        e("v_and_b32 v42, 1, v%d" % vL); e("v_cmp_eq_u32 vcc, 1, v42"); self.nop(2)
        e("v_cndmask_b32 v43, v9, v44, vcc"); e("v_min_u32 v43, v43, v41")
        e("v_lshlrev_b32 v42, 2, v42"); e("v_add_u32 v42, 256, v42")
        e("s_lshl_b32 s%d, s%d, 2" % (sT0, sH)); e("s_add_u32 s%d, s%d, s%d" % (sT0, sT0, sWave)); e("s_lshl_b32 s%d, s%d, 4" % (sT0, sT0))
        e("s_add_u32 s%d, s%d, s%d" % (sT0, sT0, sC)); e("s_mul_i32 s%d, s%d, %d" % (sT0, sT0, M1_SLOT))
        e("s_mul_i32 s%d, s%d, 0x%x" % (sT1, sPass, M1_R))
        self.addr(sA, pWs, M1, [sT0, sT1])
        e("global_store_dword v40, v34, %s sc1" % sp(sA))
        e("global_store_dword v42, v43, %s sc1" % sp(sA))
        e("s_barrier")

    def l2pf_ilv(self, ntiles):
        if not ntiles or not self.ilv:
            return
        e = self.e
        D = self.nl("Lpfd")
        e("s_cmp_eq_u32 s%d, 0" % sPass); e("s_cbranch_scc0 %s" % D)
        tiles = [t for t in (3, 4, 6, 8, 10, 12)][:ntiles + 1]
        e("v_lshrrev_b32 v6, 5, v%d" % vL); e("v_lshlrev_b32 v6, 14, v6")
        e("v_and_b32 v5, 31, v%d" % vL); e("v_lshlrev_b32 v5, 7, v5"); e("v_add_u32 v5, 3072, v5")
        first = True
        for k in range(ntiles):
            e("s_cmp_eq_u32 s%d, 8" % sNS); e("s_cselect_b32 s%d, %d, %d" % (sT0, 2 * tiles[k + 1], 2 * tiles[k]))
            e("s_lshl_b32 s%d, s%d, 11" % (sT1, sT0)); e("s_xor_b32 s%d, s%d, s%d" % (sT1, sT1, sWb)); e("s_and_b32 s%d, s%d, 8192" % (sT1, sT1))
            e("s_lshl_b32 s%d, s%d, 14" % (sT0, sT0)); e("s_add_u32 s%d, s%d, s%d" % (sT0, sT0, sRot))
            e("v_add_u32 v7, s%d, v6" % sT0); e("v_and_b32 v7, 0x%x, v7" % (64 * self.stride - 1)); e("v_add_u32 v7, v7, v5")
            e("s_waitcnt vmcnt(0)")
            e("buffer_load_dword v8, v7, %s, s%d offen" % (sp(sCUR, 4), sT1))
        e("s_waitcnt vmcnt(0)")
        self.lab(D)

    def topup(self, tp=None):
        e = self.e
        L = self.nl("Tu"); D = self.nl("Tud")
        e("s_cmp_eq_u32 s%d, 0" % sPass); e("s_cbranch_scc0 %s" % D)
        e("s_sub_u32 s%d, s%d, %d" % (sT5, sNS, 4 if int(self.o.get("deepV", 99)) < NSTR_T else self.R))
        self.lab(L)
        if tp is None:
            tp = int(self.o.get("tpace", 1))
        if tp:
            e("s_waitcnt vmcnt(%d)" % (4 * (tp - 1)))
        self.issue()
        e("s_sub_u32 s%d, s%d, 1" % (sT5, sT5))
        e("s_cmp_lg_u32 s%d, 0" % sT5); e("s_cbranch_scc1 %s" % L)
        if self.l2pf:
            e("v_and_b32 v5, 31, v%d" % vL); e("v_lshlrev_b32 v5, 7, v5"); e("v_add_u32 v5, 3072, v5")
            e("v_lshrrev_b32 v6, 5, v%d" % vL); e("v_mul_u32_u24 v6, %d, v6" % self.stride); e("v_add_u32 v6, v5, v6")
            e("s_mov_b32 s%d, s%d" % (sT5, sOff))
            for k in range(self.l2pf):
                e("buffer_load_dword v5, v6, %s, s%d offen%s" % (sp(sCUR, 4), sT5, self.l2pol))
                e("s_add_u32 s%d, s%d, %d" % (sT5, sT5, 2 * self.stride))
                if self.stag:
                    e("s_and_b32 s%d, s%d, 0x%x" % (sT5, sT5, 64 * self.stride - 1))
        self.lab(D)

    def stage_S1(self):
        e = self.e
        e("s_mul_i32 s%d, s%d, %d" % (sT0, sIdx, 16 * M1_SLOT)); e("s_mul_i32 s%d, s%d, 0x%x" % (sT1, sPass, M1_R))
        self.addr(sA, pWs, M1 + 2304, [sT0, sT1])
        e("v_lshrrev_b32 v10, 4, v%d" % vL); e("v_mul_u32_u24 v10, %d, v10" % M1_SLOT)
        e("v_and_b32 v11, 15, v%d" % vL); e("v_lshl_add_u32 v11, v11, 4, v10")
        e("v_add_u32 v10, 256, v10")
        loads = []; regs = []
        for j in range(4):
            off = j * 4 * M1_SLOT - 2304
            loads.append("global_load_dwordx4 v[%d:%d], v11, %s offset:%d sc1" % (32 + 4 * j, 35 + 4 * j, sp(sA), off))
            loads.append("global_load_dwordx2 v[%d:%d], v10, %s offset:%d sc1" % (48 + 2 * j, 49 + 2 * j, sp(sA), off))
        self.poll(loads, list(range(32, 56)), 56, "Ps1")
        self.stamp(8)
        e("v_max3_f32 v56, v48, v50, v52"); e("v_max_f32 v56, v56, v54")
        self.xrows(56, 57, "v_max_f32")
        e("s_mov_b32 s%d, 0x%x" % (sT0, C_EXP))
        for j in range(4):
            e("v_sub_f32 v%d, v%d, v56" % (48 + 2 * j, 48 + 2 * j))
        for j in range(4):
            e("v_mul_f32 v%d, s%d, v%d" % (48 + 2 * j, sT0, 48 + 2 * j))
        for j in range(4):
            e("v_exp_f32 v%d, v%d" % (48 + 2 * j, 48 + 2 * j))
        self.nop(1)
        e("v_mul_f32 v56, v48, v49")
        for j in range(1, 4):
            e("v_fmac_f32 v56, v%d, v%d" % (48 + 2 * j, 49 + 2 * j))
        for d in range(4):
            e("v_mul_f32 v%d, v48, v%d" % (32 + d, 32 + d))
        for j in range(1, 4):
            for d in range(4):
                e("v_fmac_f32 v%d, v%d, v%d" % (32 + d, 48 + 2 * j, 32 + 4 * j + d))
        self.xrows(56, 57, "v_add_f32")
        e("v_rcp_f32 v56, v56")
        e("v_permlane32_swap_b32 v32, v34"); e("v_permlane32_swap_b32 v33, v35"); self.nop(1)
        e("v_add_f32 v32, v32, v34"); e("v_add_f32 v33, v33, v35")
        e("v_mov_b32 v34, v32"); e("v_mov_b32 v35, v33"); self.nop(2)
        e("v_permlane16_swap_b32 v32, v34"); e("v_permlane16_swap_b32 v33, v35"); self.nop(1)
        e("v_add_f32 v32, v32, v34"); e("v_add_f32 v33, v33, v35")
        e("v_mul_f32 v32, v32, v56"); e("v_mul_f32 v33, v33, v56")
        e("v_cvt_pk_bf16_f32 v32, v32, v33")
        e("v_mov_b32 v41, -2"); e("v_min_u32 v32, v32, v41")
        e("v_and_b32 v34, 15, v%d" % vL); e("v_lshlrev_b32 v34, 3, v34")
        e("v_lshrrev_b32 v35, 5, v%d" % vL); e("v_lshl_add_u32 v34, v35, 2, v34"); e("v_add_u32 v34, s%d, v34" % sVec)
        e("ds_write_b32 v34, v32")
        if self.o.get("dbg_a"):
            e("s_lshl_b32 s%d, s%d, 13" % (sT0, sPass)); e("s_lshl_b32 s%d, s%d, 7" % (sT1, sIdx))
            self.addr(sA, pWs, 0xC0000, [sT0, sT1])
            e("v_subrev_u32 v35, s%d, v34" % sVec)
            e("global_store_dword v35, v32, %s" % sp(sA))
        self.lane_rc()
        e("v_lshlrev_b32 v6, 3, v10"); e("v_add_u32 v6, s%d, v6" % sVec)
        e("v_lshl_add_u32 v7, v10, 2, v11"); e("v_mul_u32_u24 v7, %d, v7" % O_ROW); e("v_lshl_add_u32 v7, v12, 3, v7")
        e("s_mul_i32 s%d, s%d, 224" % (sT0, sWave)); e("s_add_u32 s%d, s%d, %d" % (sT0, sT0, L_W)); e("v_add_u32 v7, s%d, v7" % sT0)
        e("s_waitcnt lgkmcnt(0)")
        e("ds_read2_b64 v[36:39], v6 offset0:0 offset1:4"); e("ds_read2_b64 v[40:43], v6 offset0:8 offset1:12")
        for c0 in range(0, 7, 2):
            cts = [c for c in (c0, c0 + 1) if c < 7]
            k = 0
            for ct in cts:
                for m in range(2):
                    e("ds_read_b64_tr_b16 v[%d:%d], v7 offset:%d" % (48 + 4 * k, 49 + 4 * k, m * 32 * O_ROW + ct * 32))
                    e("ds_read_b64_tr_b16 v[%d:%d], v7 offset:%d" % (50 + 4 * k, 51 + 4 * k, (m * 32 + 16) * O_ROW + ct * 32))
                    k += 1
            e("s_waitcnt lgkmcnt(0)")
            k = 0
            for ct in cts:
                for m in range(2):
                    c = "0" if m == 0 else vr(8 + 4 * ct, 4)
                    e("v_mfma_f32_16x16x32_bf16 %s, %s, %s, %s" % (vr(8 + 4 * ct, 4), vr(36 + 4 * m, 4), vr(48 + 4 * k, 4), c))
                    k += 1
        self.nop(8)
        for row in range(1, 4):
            e("s_mov_b32 exec_lo, 0x%x" % (0xffff0000 if row == 1 else 0))
            e("s_mov_b32 exec_hi, 0x%x" % (0 if row == 1 else (0xffff << (16 * (row - 2)))))
            e("v_mov_b32 v8, v%d" % (8 + 4 * row))
            if row < 3:
                e("v_mov_b32 v24, v%d" % (24 + 4 * row))
        e("s_mov_b64 exec, -1")
        e("v_mov_b32 v41, -2"); e("v_min_u32 v8, v8, v41"); e("v_min_u32 v24, v24, v41")
        e("s_mul_i32 s%d, s%d, %d" % (sT0, sIdx, M2_SLOT)); e("s_mul_i32 s%d, s%d, 0x%x" % (sT1, sPass, M2_R)); e("s_mul_i32 s%d, s%d, 448" % (sT2, sWave))
        self.addr(sA, pWs, M2, [sT0, sT1, sT2])
        e("v_lshlrev_b32 v40, 2, v%d" % vL)
        e("global_store_dword v40, v8, %s sc1" % sp(sA))
        e("s_mov_b32 exec_hi, 0xffff")
        e("global_store_dword v40, v24, %s offset:256 sc1" % sp(sA))
        e("s_mov_b64 exec, -1")
        self.stamp(9)

    def reduce_waves16(self, src):
        e = self.e
        e("v_and_b32 v14, 15, v%d" % vL); e("v_lshlrev_b32 v14, 2, v14")
        e("s_lshl_b32 s%d, s%d, 6" % (sT0, sWave)); e("s_add_u32 s%d, s%d, %d" % (sT0, sT0, L_RED))
        e("v_add_u32 v15, s%d, v14" % sT0)
        e("ds_write_b32 v15, v%d" % src)
        e("s_waitcnt lgkmcnt(0)")
        e("s_barrier")
        for w in range(4):
            e("ds_read_b32 v%d, v14 offset:%d" % (16 + w, L_RED + w * 64))
        e("s_waitcnt lgkmcnt(0)")
        e("v_add_f32 v16, v16, v17"); e("v_add_f32 v18, v18, v19"); e("v_add_f32 v8, v16, v18")

    def stage_R(self):
        e = self.e
        e("v_lshrrev_b32 v20, 4, v%d" % vL); e("v_lshlrev_b32 v20, 2, v20")
        e("s_cmp_eq_u32 s%d, 0" % sPass); e("s_cbranch_scc0 L_R_r1")
        e("s_lshl_b32 s%d, s%d, 4" % (sT0, sIdx))
        self.addr(sB, pX, 0, [sT0])
        e("s_branch L_R_r2")
        self.lab("L_R_r1")
        e("s_lshr_b32 s%d, s%d, 1" % (sT0, sIdx)); e("s_lshl_b32 s%d, s%d, 7" % (sT0, sT0))
        e("s_and_b32 s%d, s%d, 1" % (sT1, sIdx)); e("s_lshl_b32 s%d, s%d, 4" % (sT1, sT1))
        self.addr(sB, pWs, M5, [sT0, sT1])
        self.lab("L_R_r2")
        e("global_load_dword v21, v20, %s sc1" % sp(sB))
        e("s_lshl_b32 s%d, s%d, 5" % (sT0, sIdx)); e("s_mul_i32 s%d, s%d, 0x%x" % (sT1, sPass, M2_R))
        self.addr(sA, pWs, M2, [sT0, sT1])
        e("v_mul_u32_u24 v8, %d, v%d" % (M2_SLOT, vL))
        self.poll(["global_load_dwordx4 v[32:35], v8, %s sc1" % sp(sA),
                   "global_load_dwordx4 v[36:39], v8, %s offset:16 sc1" % sp(sA)], list(range(32, 40)), 40, "Pa")
        self.stamp(8)
        for d in range(4):
            e("v_permlane32_swap_b32 v%d, v%d" % (32 + d, 36 + d))
        self.nop(1)
        for d in range(4):
            e("v_add_f32 v%d, v%d, v%d" % (32 + d, 32 + d, 36 + d))
        self.nop(2)
        e("v_permlane16_swap_b32 v32, v34"); e("v_permlane16_swap_b32 v33, v35"); self.nop(1)
        e("v_add_f32 v32, v32, v34"); e("v_add_f32 v33, v33, v35")
        for n in (8, 4, 2, 1):
            self.nop(1)
            e("v_add_f32_dpp v32, v32, v32 row_ror:%d row_mask:0xf bank_mask:0xf" % n)
            e("v_add_f32_dpp v33, v33, v33 row_ror:%d row_mask:0xf bank_mask:0xf" % n)
        e("v_cvt_pk_bf16_f32 v34, v32, v33")
        e("v_lshlrev_b32 v32, 16, v34"); e("v_and_b32 v33, 0xffff0000, v34")
        e("v_lshlrev_b32 v35, 16, v21"); e("v_and_b32 v36, 0xffff0000, v21")
        e("v_add_f32 v32, v32, v35"); e("v_add_f32 v33, v33, v36")
        e("v_cvt_pk_bf16_f32 v34, v32, v33")
        e("v_mov_b32 v41, -2"); e("v_min_u32 v34, v34, v41")
        e("s_lshl_b32 s%d, s%d, 13" % (sT0, sPass)); e("s_lshl_b32 s%d, s%d, 7" % (sT1, sIdx))
        self.addr(sA, pWs, M3, [sT0, sT1])
        e("s_mov_b32 exec_lo, 0x00010001"); e("s_mov_b32 exec_hi, 0x00010001")
        e("global_store_dword v20, v34, %s sc1" % sp(sA))
        e("s_mov_b64 exec, -1")
        self.stamp(9)

    def gather_x(self, base_off, slot_shift_mode):
        e = self.e
        e("v_min_u32 v8, 55, v%d" % vL)
        if slot_shift_mode == "M3":
            e("v_lshlrev_b32 v8, 7, v8")
        else:
            e("v_and_b32 v9, 1, v8"); e("v_lshrrev_b32 v8, 1, v8"); e("v_lshlrev_b32 v8, 7, v8"); e("v_lshl_add_u32 v8, v9, 4, v8")
        self.poll(["global_load_dwordx4 v[32:35], v8, %s sc1" % sp(sA)], [32, 33, 34, 35], 36, "Px")

    def stage_B(self):
        e = self.e
        e("s_lshl_b32 s%d, s%d, 13" % (sT0, sPass))
        self.addr(sA, pWs, M3, [sT0])
        self.gather_x(M3, "M3")
        self.stamp(8)
        if self.gapw:
            e("s_barrier")
        self.layernorm_to_vec()
        self.lane_rc()
        e("v_lshlrev_b32 v6, 3, v10"); e("v_add_u32 v6, s%d, v6" % sVec)
        e("v_lshl_add_u32 v7, v10, 2, v11"); e("v_lshlrev_b32 v7, 6, v7")
        e("v_and_b32 v14, 1, v12"); e("v_lshl_add_u32 v7, v14, 3, v7")
        e("v_lshrrev_b32 v14, 1, v12"); e("v_mul_u32_u24 v14, %d, v14" % B_IMG3); e("v_add_u32 v7, v7, v14")
        e("s_lshl_b32 s%d, s%d, 4" % (sT0, sWave)); e("s_add_u32 s%d, s%d, %d" % (sT0, sT0, L_W)); e("v_add_u32 v7, s%d, v7" % sT0)
        self.gemv_chain(14, lambda m: (8 * m, 8 * m + 4), 2048, 1024)
        self.bf16r(8, 8, 9)
        self.nop(1)
        e("v_mov_b32_dpp v10, v8 row_ror:8 row_mask:0xf bank_mask:0xf")
        e("v_mul_f32 v11, 0xbfb8aa3b, v8")
        e("v_exp_f32 v11, v11"); self.nop(1)
        e("v_add_f32 v11, 1.0, v11")
        e("v_rcp_f32 v11, v11"); self.nop(1)
        e("v_mul_f32 v11, v8, v11")
        self.bf16r(11, 11, 12)
        e("v_mul_f32 v11, v11, v10")
        self.nop(1)
        e("v_mov_b32_dpp v12, v11 quad_perm:[1,0,3,2] row_mask:0xf bank_mask:0xf")
        e("v_cvt_pk_bf16_f32 v12, v11, v12")
        e("v_mov_b32 v14, -2"); e("v_min_u32 v12, v12, v14")
        e("s_lshl_b32 s%d, s%d, 13" % (sT0, sPass)); e("s_lshl_b32 s%d, s%d, 7" % (sT1, sIdx)); e("s_lshl_b32 s%d, s%d, 4" % (sT2, sWave))
        self.addr(sA, pWs, M4, [sT0, sT1, sT2])
        e("v_lshlrev_b32 v14, 1, v%d" % vL)
        e("s_mov_b64 exec, 0x55")
        e("global_store_dword v14, v12, %s sc1" % sp(sA))
        e("s_mov_b64 exec, -1")

    def stage_C(self):
        e = self.e
        e("s_lshl_b32 s%d, s%d, 13" % (sT0, sPass)); e("s_lshl_b32 s%d, s%d, 8" % (sT1, sIdx))
        self.addr(sB, pWs, M3, [sT0, sT1])
        e("v_bfe_u32 v20, v%d, 3, 1" % vL); e("v_lshlrev_b32 v20, 7, v20")
        e("v_bfe_u32 v21, v%d, 1, 2" % vL); e("v_lshl_add_u32 v20, v21, 2, v20")
        self.poll(["global_load_dword v22, v20, %s sc1" % sp(sB)], [22], 23, "Pr")
        e("s_lshl_b32 s%d, s%d, 13" % (sT0, sPass)); e("s_mul_i32 s%d, s%d, %d" % (sT1, sWave, 14 * 128))
        self.addr(sA, pWs, M4, [sT0, sT1])
        e("v_min_u32 v8, 55, v%d" % vL)
        e("v_and_b32 v9, 3, v8"); e("v_lshrrev_b32 v8, 2, v8"); e("v_lshlrev_b32 v8, 7, v8"); e("v_lshl_add_u32 v8, v9, 4, v8")
        self.poll(["global_load_dwordx4 v[32:35], v8, %s sc1" % sp(sA)], [32, 33, 34, 35], 36, "Ph")
        self.stamp(8)
        e("v_lshlrev_b32 v8, 4, v%d" % vL); e("v_add_u32 v8, s%d, v8" % sVec)
        e("ds_write_b128 v8, v[32:35]")
        self.lane_rc()
        e("v_lshlrev_b32 v6, 3, v10"); e("v_add_u32 v6, s%d, v6" % sVec)
        e("s_mul_i32 s%d, s%d, %d" % (sT0, sWave, C_WAVE)); e("s_add_u32 s%d, s%d, %d" % (sT0, sT0, L_W))
        e("v_lshl_add_u32 v7, v10, 2, v11"); e("v_lshlrev_b32 v7, 5, v7"); e("v_lshl_add_u32 v7, v12, 3, v7"); e("v_add_u32 v7, s%d, v7" % sT0)
        e("s_waitcnt lgkmcnt(0)")
        self.gemv_chain(14, lambda m: (8 * m, 8 * m + 4), 1024, 512)
        self.reduce_waves16(8)
        e("s_cmp_eq_u32 s%d, 0" % sWave); e("s_cbranch_scc0 L_C_done")
        self.bf16r(8, 8, 9)
        e("v_and_b32 v23, 1, v%d" % vL); e("v_cmp_eq_u32 vcc, 1, v23")
        e("v_lshlrev_b32 v23, 16, v22"); e("v_and_b32 v22, 0xffff0000, v22")
        e("v_cndmask_b32 v22, v23, v22, vcc")
        e("v_add_f32 v8, v8, v22")
        self.nop(1)
        e("v_mov_b32_dpp v9, v8 quad_perm:[1,0,3,2] row_mask:0xf bank_mask:0xf")
        e("v_cvt_pk_bf16_f32 v9, v8, v9")
        e("v_lshlrev_b32 v14, 1, v%d" % vL)
        e("s_cmp_eq_u32 s%d, 0" % sPass); e("s_cbranch_scc0 L_C_out")
        e("v_mov_b32 v15, -2"); e("v_min_u32 v9, v9, v15")
        e("s_lshl_b32 s%d, s%d, 7" % (sT1, sIdx))
        self.addr(sA, pWs, M5, [sT1])
        e("s_mov_b64 exec, 0x5555")
        e("global_store_dword v14, v9, %s sc1" % sp(sA))
        e("s_mov_b64 exec, -1")
        e("s_branch L_C_done")
        self.lab("L_C_out")
        e("s_lshl_b32 s%d, s%d, 5" % (sT1, sIdx))
        self.addr(sA, pOut, 0, [sT1])
        e("s_mov_b64 exec, 0x5555")
        e("global_store_dword v14, v9, %s" % sp(sA))
        e("s_mov_b64 exec, -1")
        self.lab("L_C_done")


    def poll2(self, mk_loads, n, sets, dst, name="Q", sleep=0):
        e = self.e
        A, B = sets
        nl = len(mk_loads(A))
        L = self.nl(name); DA = self.nl(name + "a"); DB = self.nl(name + "b"); D = self.nl(name + "d")
        def check(base, target):
            rr = list(range(base, base + n))
            t = self.ptmp
            if n == 1:
                t = base
            else:
                if n >= 3:
                    e("v_max3_u32 v%d, v%d, v%d, v%d" % (t, rr[0], rr[1], rr[2])); rr = rr[3:]
                else:
                    e("v_max_u32 v%d, v%d, v%d" % (t, rr[0], rr[1])); rr = rr[2:]
                while rr:
                    if len(rr) >= 2:
                        e("v_max3_u32 v%d, v%d, v%d, v%d" % (t, t, rr[0], rr[1])); rr = rr[2:]
                    else:
                        e("v_max_u32 v%d, v%d, v%d" % (t, t, rr[0])); rr = rr[1:]
            e("v_cmp_eq_u32 vcc, -1, v%d" % t)
            e("s_cbranch_vccz %s" % target)
        e("s_mov_b32 s%d, 0" % sSpin)
        for ld in mk_loads(A): e(ld)
        self.lab(L)
        for ld in mk_loads(B): e(ld)
        e("s_waitcnt vmcnt(%d)" % nl)
        check(A, DA)
        for ld in mk_loads(A): e(ld)
        e("s_waitcnt vmcnt(%d)" % nl)
        check(B, DB)
        if sleep:
            e("s_sleep %d" % sleep)
        e("s_add_u32 s%d, s%d, 1" % (sSpin, sSpin))
        e("s_cmp_lt_u32 s%d, %d" % (sSpin, SPIN_LIMIT))
        e("s_cbranch_scc1 %s" % L)
        e("s_waitcnt vmcnt(0)")
        self.lab(DA)
        for i in range(n): e("v_mov_b32 v%d, v%d" % (dst + i, A + i))
        e("s_branch %s" % D)
        self.lab(DB)
        for i in range(n): e("v_mov_b32 v%d, v%d" % (dst + i, B + i))
        self.lab(D)

    ptmp = 31

    def rc2(self):
        e = self.e
        e("v_lshrrev_b32 v28, 4, v%d" % vL); e("v_bfe_u32 v29, v%d, 2, 2" % vL); e("v_and_b32 v30, 3, v%d" % vL)

    @property
    def NPRE(self):
        return 7 if self.o.get('stamps') else 8

    def breg(self, m):
        return 32 + 4 * (m % self.NPRE)

    def b_issue(self, lq, m, b_step, b_second):
        r = self.breg(m)
        lq.issue("ds_read_b64_tr_b16 v[%d:%d], v7 offset:%d" % (r, r + 1, m * b_step), ("B", m))
        lq.issue("ds_read_b64_tr_b16 v[%d:%d], v7 offset:%d" % (r + 2, r + 3, m * b_step + b_second), ("B", m))

    def chain2(self, lq, n, b_step, b_second, acc=16):
        e = self.e
        Ab = [20, 24, 28]
        def a_issue(m):
            lq.issue("ds_read2_b64 v[%d:%d], v6 offset0:%d offset1:%d" % (Ab[m % 3], Ab[m % 3] + 3, 8 * m, 8 * m + 4), ("A", m))
        for m in range(3):
            a_issue(m)
        for m in range(n):
            lq.wait([("A", m), ("B", m)])
            c = "0" if m == 0 else vr(acc, 4)
            e("v_mfma_f32_16x16x32_bf16 %s, %s, %s, %s" % (vr(acc, 4), vr(Ab[m % 3], 4), vr(self.breg(m), 4), c))
            if m + 3 < n:
                a_issue(m + 3)
            if m + self.NPRE < n:
                self.b_issue(lq, m + self.NPRE, b_step, b_second)
        self.nop(8)

    def ln2(self):
        e = self.e
        F = 20
        e("v_cmp_gt_u32 vcc, 56, v%d" % vL)
        for d in range(4):
            e("v_lshlrev_b32 v%d, 16, v%d" % (F + 2 * d, 16 + d))
            e("v_and_b32 v%d, 0xffff0000, v%d" % (F + 2 * d + 1, 16 + d))
        e("v_pk_add_f32 v[28:29], v[20:21], v[22:23]")
        e("v_pk_mul_f32 v[30:31], v[20:21], v[20:21]")
        e("v_pk_add_f32 v[16:17], v[24:25], v[26:27]")
        e("v_pk_fma_f32 v[30:31], v[22:23], v[22:23], v[30:31]")
        e("v_pk_add_f32 v[28:29], v[28:29], v[16:17]")
        e("v_pk_fma_f32 v[30:31], v[24:25], v[24:25], v[30:31]")
        e("v_add_f32 v28, v28, v29")
        e("v_pk_fma_f32 v[30:31], v[26:27], v[26:27], v[30:31]")
        e("v_cndmask_b32 v28, 0, v28, vcc")
        e("v_add_f32 v30, v30, v31")
        e("v_cndmask_b32 v30, 0, v30, vcc")
        for n in (8, 4, 2, 1):
            self.nop(1)
            e("v_add_f32_dpp v28, v28, v28 row_ror:%d row_mask:0xf bank_mask:0xf" % n)
            e("v_add_f32_dpp v30, v30, v30 row_ror:%d row_mask:0xf bank_mask:0xf" % n)
        for sw in ("v_permlane16_swap_b32", "v_permlane32_swap_b32"):
            e("v_mov_b32 v29, v28"); e("v_mov_b32 v31, v30"); self.nop(1)
            e("%s v28, v29" % sw); e("%s v30, v31" % sw)
            e("v_add_f32 v28, v28, v29"); e("v_add_f32 v30, v30, v31")
        e("v_mul_f32 v28, 0x3b124925, v28")
        e("v_mul_f32 v30, 0x3b124925, v30")
        e("v_cvt_pk_bf16_f32 v29, v28, v28")
        e("v_fma_f32 v30, -v28, v28, v30")
        e("v_and_b32 v28, 0xffff0000, v29")
        e("v_max_f32 v30, 0, v30")
        e("v_cvt_pk_bf16_f32 v31, v30, v30")
        e("v_pk_add_f32 v[20:21], v[20:21], v[28:29] op_sel_hi:[1,0] neg_lo:[0,1] neg_hi:[0,1]")
        e("v_and_b32 v30, 0xffff0000, v31")
        e("v_pk_add_f32 v[22:23], v[22:23], v[28:29] op_sel_hi:[1,0] neg_lo:[0,1] neg_hi:[0,1]")
        e("v_add_f32 v30, 0x3727c5ac, v30")
        e("v_pk_add_f32 v[24:25], v[24:25], v[28:29] op_sel_hi:[1,0] neg_lo:[0,1] neg_hi:[0,1]")
        e("v_cvt_pk_bf16_f32 v31, v30, v30")
        e("v_pk_add_f32 v[26:27], v[26:27], v[28:29] op_sel_hi:[1,0] neg_lo:[0,1] neg_hi:[0,1]")
        e("v_and_b32 v30, 0xffff0000, v31")
        e("v_cvt_pk_bf16_f32 v16, v20, v21")
        e("v_sqrt_f32 v30, v30")
        e("v_cvt_pk_bf16_f32 v17, v22, v23")
        e("v_cvt_pk_bf16_f32 v18, v24, v25")
        e("v_cvt_pk_bf16_f32 v31, v30, v30")
        e("v_cvt_pk_bf16_f32 v19, v26, v27")
        e("v_and_b32 v30, 0xffff0000, v31")
        e("v_lshlrev_b32 v20, 16, v16")
        e("v_rcp_f32 v30, v30")
        e("v_and_b32 v21, 0xffff0000, v16")
        for d in range(1, 4):
            e("v_lshlrev_b32 v%d, 16, v%d" % (F + 2 * d, 16 + d))
            e("v_and_b32 v%d, 0xffff0000, v%d" % (F + 2 * d + 1, 16 + d))
        for d in range(4):
            e("v_pk_mul_f32 v[%d:%d], v[%d:%d], v[30:31] op_sel_hi:[1,0]" % (F + 2 * d, F + 2 * d + 1, F + 2 * d, F + 2 * d + 1))
        for d in range(4):
            e("v_cvt_pk_bf16_f32 v%d, v%d, v%d" % (16 + d, F + 2 * d, F + 2 * d + 1))
        e("ds_write_b128 v5, v[16:19]")
        e("s_waitcnt lgkmcnt(0)")

    def prepBD(self, role):
        e = self.e
        self.rc2()
        e("v_lshlrev_b32 v6, 3, v28"); e("v_add_u32 v6, s%d, v6" % sVec)
        e("v_lshlrev_b32 v5, 4, v%d" % vL); e("v_add_u32 v5, s%d, v5" % sVec)
        e("v_lshl_add_u32 v7, v28, 2, v29")
        if role == "D":
            e("v_bfe_u32 v31, v7, 1, 2"); e("v_xor_b32 v31, s%d, v31" % sWave)
            e("v_lshlrev_b32 v7, 7, v7"); e("v_lshl_add_u32 v7, v31, 5, v7"); e("v_lshl_add_u32 v7, v30, 3, v7"); e("v_add_u32 v7, %d, v7" % L_W)
            st = (4096, 2048)
        elif role == "B":
            e("v_lshlrev_b32 v7, 6, v7")
            e("v_and_b32 v31, 1, v30"); e("v_lshl_add_u32 v7, v31, 3, v7")
            e("v_lshrrev_b32 v31, 1, v30"); e("v_mul_u32_u24 v31, %d, v31" % B_IMG3); e("v_add_u32 v7, v7, v31")
            e("s_lshl_b32 s%d, s%d, 4" % (sT0, sWave)); e("s_add_u32 s%d, s%d, %d" % (sT0, sT0, L_W)); e("v_add_u32 v7, s%d, v7" % sT0)
            st = (2048, 1024)
        else:
            e("s_mul_i32 s%d, s%d, %d" % (sT0, sWave, C_WAVE)); e("s_add_u32 s%d, s%d, %d" % (sT0, sT0, L_W))
            e("v_lshlrev_b32 v7, 5, v7"); e("v_lshl_add_u32 v7, v30, 3, v7"); e("v_add_u32 v7, s%d, v7" % sT0)
            st = (1024, 512)
        lq = LQ(self)
        for m in range(self.NPRE):
            self.b_issue(lq, m, st[0], st[1])
        return lq, st

    def poll_x2(self, mode):
        e = self.e
        e("v_min_u32 v19, 55, v%d" % vL)
        if mode == "M3":
            e("v_lshlrev_b32 v19, 7, v19")
        else:
            e("v_and_b32 v18, 1, v19"); e("v_lshrrev_b32 v19, 1, v19"); e("v_lshlrev_b32 v19, 7, v19"); e("v_lshl_add_u32 v19, v18, 4, v19")
        e("v_mov_b32 v29, v19")
        self.poll2(lambda b: ["global_load_dwordx4 v[%d:%d], v29, %s sc1" % (b, b + 3, sp(sA))], 4, (8, 12), 16, "Qx")

    def publish_pairs(self, val, tmp, base_pair, off_vreg, mask):
        e = self.e
        e("v_mov_b32_dpp v%d, v%d quad_perm:[1,0,3,2] row_mask:0xf bank_mask:0xf" % (tmp, val))
        e("v_cvt_pk_bf16_f32 v%d, v%d, v%d" % (tmp, val, tmp))
        e("v_min_u32 v%d, v%d, v%d" % (tmp, tmp, 27))
        e("s_mov_b64 exec, 0x%x" % mask)
        e("global_store_dword v%d, v%d, %s sc1" % (off_vreg, tmp, sp(base_pair)))
        e("s_mov_b64 exec, -1")

    def wait_leftover(self):
        e = self.e
        a = self.nl("Lwl"); b = self.nl("Lwl")
        e("s_cmp_eq_u32 s%d, 0" % sWave); e("s_cbranch_scc1 %s" % a)
        e("s_waitcnt vmcnt(0)"); e("s_branch %s" % b)
        self.lab(a); e("s_waitcnt vmcnt(1)"); self.lab(b)

    def publish_wg(self, val, tmp, base_pair, nper, mask):
        e = self.e
        sk = self.nl("Lpw")
        e("v_mov_b32_dpp v%d, v%d quad_perm:[1,0,3,2] row_mask:0xf bank_mask:0xf" % (tmp, val))
        e("s_mul_i32 s%d, s%d, %d" % (sT0, sWave, nper * 4)); e("s_add_u32 s%d, s%d, %d" % (sT0, sT0, L_RED))
        e("v_cvt_pk_bf16_f32 v%d, v%d, v%d" % (tmp, val, tmp))
        e("v_lshlrev_b32 v26, 1, v%d" % vL); e("v_add_u32 v26, s%d, v26" % sT0)
        e("v_min_u32 v%d, v%d, v%d" % (tmp, tmp, 27))
        e("s_mov_b64 exec, 0x%x" % mask)
        e("ds_write_b32 v26, v%d" % tmp)
        e("s_mov_b64 exec, -1")
        e("v_lshlrev_b32 v26, 2, v%d" % vL)
        e("s_waitcnt lgkmcnt(0)")
        e("s_barrier")
        e("s_cmp_eq_u32 s%d, 0" % sWave); e("s_cbranch_scc0 %s" % sk)
        e("ds_read_b32 v%d, v26 offset:%d" % (tmp, L_RED))
        e("s_mov_b64 exec, 0x%x" % ((1 << (4 * nper)) - 1) if 4 * nper < 32 else "s_mov_b32 exec_hi, 0")
        e("s_waitcnt lgkmcnt(0)")
        e("global_store_dword v26, v%d, %s sc1" % (tmp, sp(base_pair)))
        e("s_mov_b64 exec, -1")
        self.lab(sk)

    def stageD2_prep(self):
        self.lqD, self.stD = self.prepBD("D")

    def stageD2_rest(self):
        e = self.e
        lq = LQ(self); lq.q = [("B", m) for m in range(self.NPRE) for _ in range(2)]
        self.ln2(); lq.q = []
        self.chain2(lq, 14, 4096, 2048)
        e("v_mov_b32 v27, -2")
        if self.onest:
            self.publish_wg(16, 25, sB, 8, 0x5555)
        else:
            e("v_lshlrev_b32 v26, 1, v%d" % vL)
            self.publish_pairs(16, 25, sB, 26, 0x5555)

    def stage_B2(self):
        e = self.e
        e("s_waitcnt vmcnt(0)"); e("s_barrier")
        self.stamp(11)
        lq, st = self.prepBD("B")
        e("s_lshl_b32 s%d, s%d, 13" % (sT0, sPass)); e("s_lshl_b32 s%d, s%d, 7" % (sT1, sIdx)); e("s_lshl_b32 s%d, s%d, 4" % (sT2, sWave))
        self.addr(sB, pWs, M4, [sT0, sT1] if self.onest else [sT0, sT1, sT2])
        self.addr(sA, pWs, M3, [sT0])
        self.poll_x2("M3")
        self.stamp(8)
        self.ln2(); lq.q = []
        self.chain2(lq, 14, st[0], st[1])
        e("v_cvt_pk_bf16_f32 v17, v16, v16"); e("v_and_b32 v16, 0xffff0000, v17")
        e("v_mul_f32 v19, 0xbfb8aa3b, v16")
        e("v_exp_f32 v19, v19")
        e("v_mov_b32_dpp v18, v16 row_ror:8 row_mask:0xf bank_mask:0xf")
        e("v_add_f32 v19, 1.0, v19")
        e("v_rcp_f32 v19, v19"); e("v_mov_b32 v27, -2")
        e("v_mul_f32 v19, v16, v19")
        e("v_cvt_pk_bf16_f32 v17, v19, v19"); e("v_and_b32 v19, 0xffff0000, v17")
        e("v_mul_f32 v19, v19, v18")
        if self.onest:
            self.nop(2)
            self.publish_wg(19, 25, sB, 4, 0x55)
            self.stamp(9)
            self.wait_leftover()
        else:
            e("v_lshlrev_b32 v26, 1, v%d" % vL); self.nop(1)
            self.publish_pairs(19, 25, sB, 26, 0x55)
            self.stamp(9)
            e("s_waitcnt vmcnt(1)")

    def stage_C2(self):
        e = self.e
        e("s_waitcnt vmcnt(0)")
        self.stamp(11)
        lq, st = self.prepBD("C")
        e("s_lshl_b32 s%d, s%d, 13" % (sT0, sPass)); e("s_lshl_b32 s%d, s%d, 8" % (sT1, sIdx))
        self.addr(sB, pWs, M3, [sT0, sT1])
        e("v_bfe_u32 v20, v%d, 3, 1" % vL); e("v_lshlrev_b32 v20, 7, v20")
        e("v_bfe_u32 v21, v%d, 1, 2" % vL); e("v_lshl_add_u32 v20, v21, 2, v20")
        self.poll(["global_load_dword v22, v20, %s sc1" % sp(sB)], [22], 23, "Pr")
        self.stamp(12)
        e("v_and_b32 v23, 1, v%d" % vL); e("v_cmp_eq_u32 vcc, 1, v23")
        e("v_lshlrev_b32 v23, 16, v22"); e("v_and_b32 v22, 0xffff0000, v22")
        e("v_cndmask_b32 v22, v23, v22, vcc")
        e("v_and_b32 v23, 15, v%d" % vL); e("v_lshlrev_b32 v23, 2, v23")
        e("ds_write_b32 v23, v22 offset:%d" % (L_RED + 256))
        lq.q.append(("S", 0))
        e("s_lshl_b32 s%d, s%d, 13" % (sT0, sPass)); e("s_mul_i32 s%d, s%d, %d" % (sT1, sWave, 14 * 128))
        self.addr(sA, pWs, M4, [sT0, sT1])
        e("v_min_u32 v29, 55, v%d" % vL)
        e("v_and_b32 v28, 3, v29"); e("v_lshrrev_b32 v29, 2, v29"); e("v_lshlrev_b32 v29, 7, v29"); e("v_lshl_add_u32 v29, v28, 4, v29")
        e("s_cmp_eq_u32 s%d, 0" % sPass)
        e("s_lshl_b32 s%d, s%d, 7" % (sT1, sIdx)); e("s_lshl_b32 s%d, s%d, 5" % (sT2, sIdx))
        lo = self.nl("Lco"); ld = self.nl("Lcod")
        e("s_cmp_eq_u32 s%d, 0" % sPass); e("s_cbranch_scc0 %s" % lo)
        self.addr(sB, pWs, M5, [sT1]); e("s_branch %s" % ld)
        self.lab(lo); self.addr(sB, pOut, 0, [sT2]); self.lab(ld)
        self.poll2(lambda b: ["global_load_dwordx4 v[%d:%d], v29, %s sc1" % (b, b + 3, sp(sA))], 4, (8, 12), 16, "Qh")
        self.stamp(8)
        e("ds_write_b128 v5, v[16:19]")
        e("s_waitcnt lgkmcnt(0)"); lq.q = []
        self.chain2(lq, 14, st[0], st[1])
        e("v_and_b32 v20, 15, v%d" % vL); e("v_lshlrev_b32 v20, 2, v20")
        e("s_lshl_b32 s%d, s%d, 6" % (sT0, sWave)); e("s_add_u32 s%d, s%d, %d" % (sT0, sT0, L_RED))
        e("v_add_u32 v21, s%d, v20" % sT0)
        e("ds_write_b32 v21, v16")
        e("s_waitcnt lgkmcnt(0)")
        e("s_barrier")
        lz = self.nl("Lcz")
        e("s_cmp_eq_u32 s%d, 0" % sWave); e("s_cbranch_scc0 %s" % lz)
        for w in range(4):
            e("ds_read_b32 v%d, v20 offset:%d" % (22 + w, L_RED + w * 64))
        e("ds_read_b32 v21, v20 offset:%d" % (L_RED + 256))
        e("v_mov_b32 v27, -2"); e("v_lshlrev_b32 v26, 1, v%d" % vL)
        e("s_waitcnt lgkmcnt(0)")
        e("v_add_f32 v22, v22, v23"); e("v_add_f32 v24, v24, v25"); e("v_add_f32 v16, v22, v24")
        e("v_cvt_pk_bf16_f32 v17, v16, v16"); e("v_and_b32 v16, 0xffff0000, v17")
        e("v_add_f32 v16, v16, v21")
        self.nop(1)
        self.publish_pairs(16, 25, sB, 26, 0x5555)
        le = self.nl("Lce")
        self.stamp(9)
        e("s_waitcnt vmcnt(1)"); e("s_branch %s" % le)
        self.lab(lz)
        e("s_waitcnt vmcnt(0)")
        self.lab(le)


    def stage_O2(self):
        e = self.e
        self.rc2()
        e("v_lshlrev_b32 v6, 3, v28"); e("v_add_u32 v6, s%d, v6" % sVec)
        e("v_lshl_add_u32 v7, v28, 2, v29"); e("v_mul_u32_u24 v7, %d, v7" % O_ROW); e("v_lshl_add_u32 v7, v30, 3, v7")
        e("s_mul_i32 s%d, s%d, 224" % (sT0, sWave)); e("s_add_u32 s%d, s%d, %d" % (sT0, sT0, L_W)); e("v_add_u32 v7, s%d, v7" % sT0)
        e("v_and_b32 v5, 15, v%d" % vL); e("v_lshlrev_b32 v5, 3, v5")
        e("v_lshrrev_b32 v9, 5, v%d" % vL); e("v_lshl_add_u32 v5, v9, 2, v5"); e("v_add_u32 v5, s%d, v5" % sVec)
        e("s_mul_i32 s%d, s%d, %d" % (sT0, sIdx, M2_SLOT)); e("s_mul_i32 s%d, s%d, 0x%x" % (sT1, sPass, M2_R)); e("s_lshl_b32 s%d, s%d, 9" % (sT2, sWave))
        self.addr(sB, pWs, M2, [sT0, sT1, sT2])
        e("s_mul_i32 s%d, s%d, %d" % (sT0, sIdx, 16 * M1_SLOT)); e("s_mul_i32 s%d, s%d, 0x%x" % (sT1, sPass, M1_R))
        self.addr(sA, pWs, M1 + 2304, [sT0, sT1])
        e("v_mul_u32_u24 v10, %d, v28" % M1_SLOT)
        e("v_and_b32 v11, 15, v%d" % vL); e("v_lshl_add_u32 v11, v11, 4, v10")
        e("v_add_u32 v10, 256, v10")
        e("s_mov_b32 s%d, 0x%x" % (sT3, C_EXP))
        loads = []
        for j in range(4):
            off = j * 4 * M1_SLOT - 2304
            loads.append("global_load_dwordx2 v[%d:%d], v10, %s offset:%d sc1" % (48 + 2 * j, 49 + 2 * j, sp(sA), off))
            loads.append("global_load_dwordx4 v[%d:%d], v11, %s offset:%d sc1" % (32 + 4 * j, 35 + 4 * j, sp(sA), off))
        self.poll(loads, list(range(32, 56)), 56, "Ps1")
        self.stamp(8)
        e("v_max3_f32 v56, v48, v50, v52"); e("v_max_f32 v56, v56, v54")
        for sw in ("v_permlane16_swap_b32", "v_permlane32_swap_b32"):
            e("v_mov_b32 v57, v56"); self.nop(2); e("%s v56, v57" % sw); e("v_max_f32 v56, v56, v57")
        for j in range(4):
            e("v_sub_f32 v%d, v%d, v56" % (48 + 2 * j, 48 + 2 * j))
        for j in range(4):
            e("v_mul_f32 v%d, s%d, v%d" % (48 + 2 * j, sT3, 48 + 2 * j))
        for j in range(4):
            e("v_exp_f32 v%d, v%d" % (48 + 2 * j, 48 + 2 * j))
        self.nop(1)
        e("v_mul_f32 v56, v48, v49")
        e("v_pk_mul_f32 v[32:33], v[32:33], v[48:49] op_sel_hi:[1,0]"); e("v_pk_mul_f32 v[34:35], v[34:35], v[48:49] op_sel_hi:[1,0]")
        for j in range(1, 4):
            e("v_fmac_f32 v56, v%d, v%d" % (48 + 2 * j, 49 + 2 * j))
            e("v_pk_fma_f32 v[32:33], v[%d:%d], v[%d:%d], v[32:33] op_sel_hi:[1,0,1]" % (32 + 4 * j, 33 + 4 * j, 48 + 2 * j, 49 + 2 * j))
            e("v_pk_fma_f32 v[34:35], v[%d:%d], v[%d:%d], v[34:35] op_sel_hi:[1,0,1]" % (34 + 4 * j, 35 + 4 * j, 48 + 2 * j, 49 + 2 * j))
        e("v_mov_b32 v57, v56"); self.nop(1)
        e("v_permlane32_swap_b32 v32, v34"); e("v_permlane32_swap_b32 v33, v35"); e("v_permlane32_swap_b32 v56, v57")
        e("v_add_f32 v32, v32, v34"); e("v_add_f32 v33, v33, v35"); e("v_add_f32 v56, v56, v57")
        e("v_mov_b32 v34, v32"); e("v_mov_b32 v35, v33"); e("v_mov_b32 v57, v56"); self.nop(1)
        e("v_permlane16_swap_b32 v32, v34"); e("v_permlane16_swap_b32 v33, v35"); e("v_permlane16_swap_b32 v56, v57")
        e("v_add_f32 v56, v56, v57"); e("v_add_f32 v32, v32, v34"); e("v_rcp_f32 v56, v56"); e("v_add_f32 v33, v33, v35")
        self.nop(1)
        e("v_pk_mul_f32 v[32:33], v[32:33], v[56:57] op_sel_hi:[1,0]")
        e("v_cvt_pk_bf16_f32 v32, v32, v33")
        lq = LQ(self)
        lq.issue("ds_write_b32 v5, v32", "W")
        if self.o.get("dbg_a"):
            e("s_lshl_b32 s%d, s%d, 13" % (sT0, sPass)); e("s_lshl_b32 s%d, s%d, 7" % (sT1, sIdx))
            self.addr(sA, pWs, 0xC0000, [sT0, sT1])
            e("v_subrev_u32 v35, s%d, v5" % sVec)
            e("global_store_dword v35, v32, %s" % sp(sA))
        steps = [(ct, m) for ct in range(7) for m in range(2)]
        def b_iss(k):
            ct, m = steps[k]; r = 44 + 4 * (k % 5)
            lq.issue("ds_read_b64_tr_b16 v[%d:%d], v7 offset:%d" % (r, r + 1, m * 32 * O_ROW + ct * 32), ("B", k))
            lq.issue("ds_read_b64_tr_b16 v[%d:%d], v7 offset:%d" % (r + 2, r + 3, (m * 32 + 16) * O_ROW + ct * 32), ("B", k))
        for k in range(5):
            b_iss(k)
        lq.wait(["W"])
        lq.issue("ds_read2_b64 v[36:39], v6 offset0:0 offset1:4", "A"); lq.issue("ds_read2_b64 v[40:43], v6 offset0:8 offset1:12", "A")
        for k, (ct, m) in enumerate(steps):
            lq.wait([("B", k), "A"])
            acc = [12, 16, 20, 24, 28, 32, 8][ct]
            c = "0" if m == 0 else vr(acc, 4)
            e("v_mfma_f32_16x16x32_bf16 %s, %s, %s, %s" % (vr(acc, 4), vr(36 + 4 * m, 4), vr(44 + 4 * (k % 5), 4), c))
            if k + 5 < len(steps):
                b_iss(k + 5)
        self.nop(8)
        for row in range(1, 4):
            e("s_mov_b32 exec_lo, 0x%x" % (0xffff0000 if row == 1 else 0))
            e("s_mov_b32 exec_hi, 0x%x" % (0 if row == 1 else (0xffff << (16 * (row - 2)))))
            e("v_mov_b32 v12, v%d" % (12 + 4 * row))
            if row < 3:
                e("v_mov_b32 v28, v%d" % (32 if row == 1 else 8))
        e("s_mov_b64 exec, -1")
        e("v_mov_b32 v41, -2"); e("v_lshlrev_b32 v42, 2, v%d" % vL); e("v_min_u32 v12, v12, v41"); e("v_min_u32 v28, v28, v41")
        e("global_store_dword v42, v12, %s sc1" % sp(sB))
        e("s_mov_b32 exec_hi, 0xffff")
        e("global_store_dword v42, v28, %s offset:256 sc1" % sp(sB))
        e("s_mov_b64 exec, -1")
        self.stamp(9)

    def stage_R2(self):
        e = self.e
        e("v_lshrrev_b32 v24, 4, v%d" % vL); e("v_lshlrev_b32 v24, 2, v24")
        e("s_cmp_eq_u32 s%d, 0" % sPass); e("s_cbranch_scc0 L_R_r1")
        e("s_lshl_b32 s%d, s%d, 4" % (sT0, sIdx))
        self.addr(sB, pX, 0, [sT0])
        e("s_branch L_R_r2")
        self.lab("L_R_r1")
        e("s_lshr_b32 s%d, s%d, 1" % (sT0, sIdx)); e("s_lshl_b32 s%d, s%d, 7" % (sT0, sT0))
        e("s_and_b32 s%d, s%d, 1" % (sT1, sIdx)); e("s_lshl_b32 s%d, s%d, 4" % (sT1, sT1))
        self.addr(sB, pWs, M5, [sT0, sT1])
        self.lab("L_R_r2")
        e("global_load_dword v25, v24, %s sc1" % sp(sB))
        e("s_lshl_b32 s%d, s%d, 13" % (sT0, sPass)); e("s_lshl_b32 s%d, s%d, 7" % (sT1, sIdx))
        self.addr(sB, pWs, M3, [sT0, sT1])
        e("s_mul_i32 s%d, s%d, 4682" % (sT2, sIdx)); e("s_lshr_b32 s%d, s%d, 16" % (sT2, sT2))
        e("s_mul_i32 s%d, s%d, 14" % (sT3, sT2)); e("s_sub_u32 s%d, s%d, s%d" % (sT3, sIdx, sT3))
        e("s_lshl_b32 s%d, s%d, 9" % (sT2, sT2)); e("s_lshl_b32 s%d, s%d, 5" % (sT3, sT3)); e("s_add_u32 s%d, s%d, s%d" % (sT0, sT2, sT3))
        e("s_mul_i32 s%d, s%d, 0x%x" % (sT1, sPass, M2_R))
        self.addr(sA, pWs, M2, [sT0, sT1])
        e("v_mul_u32_u24 v29, %d, v%d" % (M2_SLOT, vL)); e("v_mov_b32 v41, -2")
        self.poll2(lambda b: ["global_load_dwordx4 v[%d:%d], v29, %s sc1" % (b, b + 3, sp(sA)),
                              "global_load_dwordx4 v[%d:%d], v29, %s offset:16 sc1" % (b + 4, b + 7, sp(sA))], 8, (8, 16), 32, "Qr")
        self.stamp(8)
        self.nop(1)
        for d in range(4):
            e("v_permlane32_swap_b32 v%d, v%d" % (32 + d, 36 + d))
        e("v_pk_add_f32 v[32:33], v[32:33], v[36:37]"); e("v_pk_add_f32 v[34:35], v[34:35], v[38:39]")
        self.nop(2)
        e("v_permlane16_swap_b32 v32, v34"); e("v_permlane16_swap_b32 v33, v35")
        e("v_pk_add_f32 v[32:33], v[32:33], v[34:35]")
        for n in (8, 4, 2, 1):
            self.nop(1 if n == 8 else 1)
            if n == 8: self.nop(1)
            e("v_add_f32_dpp v32, v32, v32 row_ror:%d row_mask:0xf bank_mask:0xf" % n)
            e("v_add_f32_dpp v33, v33, v33 row_ror:%d row_mask:0xf bank_mask:0xf" % n)
        e("v_cvt_pk_bf16_f32 v34, v32, v33")
        e("v_lshlrev_b32 v35, 16, v25"); e("v_and_b32 v36, 0xffff0000, v25")
        e("v_lshlrev_b32 v32, 16, v34"); e("v_and_b32 v33, 0xffff0000, v34")
        e("v_add_f32 v32, v32, v35"); e("v_add_f32 v33, v33, v36")
        e("v_cvt_pk_bf16_f32 v34, v32, v33")
        e("v_min_u32 v34, v34, v41")
        e("s_mov_b32 exec_lo, 0x00010001"); e("s_mov_b32 exec_hi, 0x00010001")
        e("global_store_dword v24, v34, %s sc1" % sp(sB))
        e("s_mov_b64 exec, -1")
        self.stamp(9)
        e("s_waitcnt vmcnt(1)")


    def probe_near(self):
        e = self.e
        sk = self.nl("Lpr"); lp = self.nl("Lprl"); bar = self.nl("Lprb")
        N = max(self.alN, 1)
        NP = int(self.o.get("nprobe", 5 if N <= 2 else 4))
        e("s_cmp_eq_u32 s%d, 0" % sPass); e("s_cbranch_scc0 %s" % sk)
        e("s_and_b32 s%d, s%d, 3" % (sT5, sIdx)); e("s_cmp_lt_u32 s%d, 2" % sT5); e("s_cbranch_scc0 %s" % sk)
        e("s_waitcnt vmcnt(0)")
        e("s_cmp_eq_u32 s%d, 0" % sWave); e("s_cbranch_scc0 %s" % bar)
        e("s_cmp_eq_u32 s%d, 1" % sT5)
        e("s_cselect_b32 s%d, s%d, s%d" % (sA, sVB, sKB)); e("s_cselect_b32 s%d, s%d, s%d" % (sA + 1, sVB + 1, sKB + 1))
        e("s_lshr_b32 s%d, s%d, 2" % (sT0, sIdx)); e("s_lshl_b32 s%d, s%d, 4" % (sT0, sT0))
        e("s_and_b32 s%d, s2, 7" % sT1); e("s_xor_b32 s%d, s%d, 4" % (sT1, sT1)); e("s_add_u32 s%d, s%d, s%d" % (sRho, sT0, sT1))
        e("s_mov_b32 s%d, s%d" % (sT0, sRho)); e("s_sub_i32 s%d, s%d, s2" % (sT1, sT0)); e("s_lshl_b32 s%d, s%d, 20" % (sT1, sT1)); e("s_add_i32 s%d, s%d, 3072" % (sT1, sT1))
        e("s_ashr_i32 s%d, s%d, 31" % (sT2, sT1))
        e("s_add_u32 s%d, s%d, s%d" % (sA, sA, sT1)); e("s_addc_u32 s%d, s%d, s%d" % (sA + 1, sA + 1, sT2))
        e("s_mul_i32 s%d, s%d, %d" % (sT4, sT0, self.stag)); e("s_and_b32 s%d, s%d, 63" % (sT4, sT4)); e("s_mul_i32 s%d, s%d, %d" % (sT4, sT4, self.stride))
        e("s_cmp_eq_u32 s%d, 1" % sT5); e("s_cselect_b32 s%d, 65, 29" % sT0)
        e("s_lshr_b32 s%d, s%d, 3" % (sT1, sRho)); e("s_add_u32 s%d, s%d, s%d" % (sT0, sT0, sT1)); e("s_add_u32 s%d, s%d, 32" % (sT0, sT0))
        e("s_sub_u32 s%d, 0, s%d" % (sT0, sT0)); e("s_and_b32 s%d, s%d, %d" % (sT0, sT0, N - 1)); e("s_add_u32 s%d, s%d, 32" % (sT0, sT0))
        e("s_mul_i32 s%d, s%d, %d" % (sT0, sT0, self.stride)); e("s_add_u32 s%d, s%d, s%d" % (sT1, sT4, sT0)); e("s_and_b32 s%d, s%d, 0x%x" % (sT1, sT1, 64 * self.stride - 1))
        if self.ilv == 2:
            assert N == 2
            lk = self.nl("Lprk")
            e("s_mov_b32 s%d, %d" % (sEx, N * self.stride))
            e("s_cmp_eq_u32 s%d, 1" % sT5); e("s_cbranch_scc0 %s" % lk)
            e("s_lshr_b32 s%d, s%d, 3" % (sT1, sRho)); e("s_add_u32 s%d, s%d, 93" % (sT1, sT1)); e("s_and_b32 s%d, s%d, 1" % (sT1, sT1))
            e("s_add_u32 s%d, s%d, 8" % (sT1, sT1))
            e("s_mul_i32 s%d, s%d, %d" % (sT1, sT1, self.stride)); e("s_add_u32 s%d, s%d, s%d" % (sT1, sT1, sT4)); e("s_and_b32 s%d, s%d, 0x%x" % (sT1, sT1, 64 * self.stride - 1))
            e("s_mov_b32 s%d, %d" % (sEx, 8 * self.stride))
            self.lab(lk)
        elif self.ilv:
            lk = self.nl("Lprk")
            e("s_mov_b32 s%d, %d" % (sEx, N * self.stride))
            e("s_cmp_eq_u32 s%d, 1" % sT5); e("s_cbranch_scc0 %s" % lk)
            e("s_lshr_b32 s%d, s%d, 3" % (sT1, sRho)); e("s_add_u32 s%d, s%d, %d" % (sT1, sT1, 93 + 2))
            e("s_sub_u32 s%d, 0, s%d" % (sT1, sT1)); e("s_and_b32 s%d, s%d, %d" % (sT1, sT1, N - 1)); e("s_add_u32 s%d, s%d, 2" % (sT1, sT1))
            e("s_and_b32 s%d, s%d, 1" % (sT0, sT1)); e("s_lshl_b32 s%d, s%d, 1" % (sT1, sT1)); e("s_sub_u32 s%d, s%d, s%d" % (sT1, sT1, sT0)); e("s_add_u32 s%d, s%d, 10" % (sT1, sT1))
            e("s_mul_i32 s%d, s%d, %d" % (sT1, sT1, self.stride)); e("s_add_u32 s%d, s%d, s%d" % (sT1, sT1, sT4)); e("s_and_b32 s%d, s%d, 0x%x" % (sT1, sT1, 64 * self.stride - 1))
            e("s_mov_b32 s%d, %d" % (sEx, 2 * N * self.stride))
            self.lab(lk)
        e("s_mov_b32 s%d, -1" % sT2); e("s_mov_b32 s%d, -1" % sT3); e("s_mov_b32 s%d, %d" % (sT0, NP))
        self.lab(lp)
        for par, acc in ((0, sT2), (1, sT3)):
            e("s_add_u32 s%d, s%d, %d" % (sT4, sT1, par * 8192 + 1024)); e("v_mov_b32 v8, s%d" % sT4)
            e("s_memtime s[90:91]"); e("s_waitcnt lgkmcnt(0)"); e("s_mov_b32 s%d, s90" % sT4)
            e("global_load_dword v9, v8, %s nt" % sp(sA))
            e("s_waitcnt vmcnt(0)")
            e("s_memtime s[90:91]"); e("s_waitcnt lgkmcnt(0)")
            e("s_sub_u32 s%d, s90, s%d" % (sT4, sT4)); e("s_min_u32 s%d, s%d, s%d" % (acc, acc, sT4))
        if self.ilv:
            e("s_add_u32 s%d, s%d, s%d" % (sT1, sT1, sEx))
        else:
            e("s_add_u32 s%d, s%d, %d" % (sT1, sT1, N * self.stride))
        e("s_and_b32 s%d, s%d, 0x%x" % (sT1, sT1, 64 * self.stride - 1))
        e("s_sub_u32 s%d, s%d, 1" % (sT0, sT0)); e("s_cmp_lg_u32 s%d, 0" % sT0); e("s_cbranch_scc1 %s" % lp)
        e("s_lshr_b32 s%d, s%d, 1" % (sT0, sRho)); e("s_lshr_b32 s%d, s2, 2" % sT1); e("s_xor_b32 s%d, s%d, s%d" % (sT0, sT0, sT1)); e("s_and_b32 s%d, s%d, 1" % (sT0, sT0))
        e("s_cmp_gt_u32 s%d, s%d" % (sT2, sT3)); e("s_cselect_b32 s%d, 1, 0" % sT1); e("s_xor_b32 s%d, s%d, s%d" % (sT1, sT1, sT0))
        if self.o.get("dbg_probe"):
            e("s_lshr_b32 s%d, s%d, 3" % (sT2, sT2)); e("s_min_u32 s%d, s%d, 0x3ff" % (sT2, sT2)); e("s_lshl_b32 s%d, s%d, 2" % (sT2, sT2))
            e("s_lshr_b32 s%d, s%d, 3" % (sT3, sT3)); e("s_min_u32 s%d, s%d, 0x3ff" % (sT3, sT3)); e("s_lshl_b32 s%d, s%d, 12" % (sT3, sT3))
            e("s_or_b32 s%d, s%d, s%d" % (sT1, sT1, sT2)); e("s_or_b32 s%d, s%d, s%d" % (sT1, sT1, sT3))
        e("v_mov_b32 v8, s%d" % sT1)
        e("s_lshr_b32 s%d, s%d, 2" % (sT0, sIdx)); e("s_lshl_b32 s%d, s%d, 7" % (sT0, sT0)); e("s_lshl_b32 s%d, s%d, 2" % (sT1, sT5))
        self.addr(sB, pWs, M8, [sT0, sT1])
        e("v_mov_b32 v9, 0")
        e("s_mov_b64 exec, 1")
        e("global_store_dword v9, v8, %s sc1" % sp(sB))
        e("s_mov_b64 exec, -1")
        self.lab(bar)
        e("s_barrier")
        self.lab(sk)


    def emit_issue_sub(self):
        e = self.e
        mask = 64 * self.stride - 1
        t0, t1, t2 = sOf2, sT0 + 0, sT0 + 0
        self.lab("L_issue")
        e("s_mov_b32 m0, s%d" % sSlot)
        e("s_add_u32 s%d, s%d, 4096" % (sSlot, sSlot))
        e("s_cmp_eq_u32 s%d, s%d" % (sSlot, sRe))
        e("s_cselect_b32 s%d, s%d, s%d" % (sSlot, sRs, sSlot))
        X, Y = 90, 91
        e("s_mov_b32 s%d, s%d" % (X, sJ))
        e("s_cmp_eq_u32 s%d, 0" % sIsV); e("s_cbranch_scc1 L_is_k")
        if self.ilv == 3:
            e("s_and_b32 s%d, s%d, 1" % (Y, sJ)); e("s_lshl_b32 s%d, s%d, 1" % (X, sJ)); e("s_sub_u32 s%d, s%d, s%d" % (X, X, Y)); e("s_add_u32 s%d, s%d, s%d" % (X, X, sVadd))
            e("s_bitcmp1_b32 s%d, 31" % sVadd); e("s_cbranch_scc1 L_is_vres")
            e("s_add_u32 s%d, s%d, 24" % (Y, sJ)); e("s_cmp_ge_u32 s%d, 16" % sJ); e("s_cselect_b32 s%d, s%d, s%d" % (X, Y, X))
            e("s_branch L_is_v2")
            self.lab("L_is_vres")
            e("s_cmp_lt_u32 s%d, 8" % sJ); e("s_cselect_b32 s%d, s%d, s%d" % (X, sJ, X))
            e("s_add_u32 s%d, s%d, 36" % (Y, sJ)); e("s_cmp_ge_u32 s%d, 24" % sJ); e("s_cselect_b32 s%d, s%d, s%d" % (X, Y, X))
            self.lab("L_is_v2")
        elif self.ilv == 2:
            e("s_bitcmp1_b32 s%d, 31" % sVadd); e("s_cbranch_scc1 L_is_vres")
            e("s_mul_i32 s%d, s%d, 43" % (Y, sJ)); e("s_lshr_b32 s%d, s%d, 8" % (Y, Y)); e("s_lshl_b32 s%d, s%d, 1" % (Y, Y))
            e("s_add_u32 s%d, s%d, s%d" % (X, sJ, Y)); e("s_add_u32 s%d, s%d, 8" % (X, X))
            e("s_branch L_is_v2")
            self.lab("L_is_vres")
            e("s_and_b32 s%d, s%d, 1" % (Y, sJ)); e("s_sub_u32 s%d, s%d, s%d" % (X, sJ, Y)); e("s_lshl_b32 s%d, s%d, 2" % (X, X)); e("s_add_u32 s%d, s%d, s%d" % (X, X, Y)); e("s_sub_u32 s%d, s%d, 18" % (X, X))
            e("s_cmp_lt_u32 s%d, 8" % sJ); e("s_cselect_b32 s%d, s%d, s%d" % (X, sJ, X))
            e("s_add_u32 s%d, s%d, 36" % (Y, sJ)); e("s_cmp_ge_u32 s%d, 20" % sJ); e("s_cselect_b32 s%d, s%d, s%d" % (X, Y, X))
            self.lab("L_is_v2")
        else:
            e("s_and_b32 s%d, s%d, 1" % (Y, sJ)); e("s_lshl_b32 s%d, s%d, 1" % (X, sJ)); e("s_sub_u32 s%d, s%d, s%d" % (X, X, Y)); e("s_add_u32 s%d, s%d, s%d" % (X, X, sVadd))
            e("s_bitcmp1_b32 s%d, 31" % sVadd); e("s_cbranch_scc1 L_is_vres")
            e("s_add_u32 s%d, s%d, 28" % (Y, sJ)); e("s_cmp_ge_u32 s%d, 20" % sJ); e("s_cselect_b32 s%d, s%d, s%d" % (X, Y, X))
            e("s_branch L_is_v2")
            self.lab("L_is_vres")
            e("s_cmp_lt_u32 s%d, 8" % sJ); e("s_cselect_b32 s%d, s%d, s%d" % (X, sJ, X))
            self.lab("L_is_v2")
        e("s_cmp_eq_u32 s%d, 2" % sNM); e("s_cbranch_scc1 L_is_near")
        e("s_branch L_is_own")
        self.lab("L_is_k")
        e("s_cmp_eq_u32 s%d, 1" % sNM); e("s_cbranch_scc0 L_is_own")
        if self.ilv == 3:
            e("s_cmp_ge_u32 s%d, 60" % sJ); e("s_cbranch_scc1 L_is_kown")
            e("s_cmp_ge_u32 s%d, 40" % sJ); e("s_cbranch_scc1 L_is_knear")
            e("s_cmp_lt_u32 s%d, 10" % sJ); e("s_cbranch_scc1 L_is_kown")
            e("s_bitcmp1_b32 s%d, 1" % sJ); e("s_cbranch_scc1 L_is_knear")
        elif self.ilv == 2:
            e("s_cmp_lt_u32 s%d, 8" % sJ); e("s_cbranch_scc1 L_is_kown")
            e("s_cmp_ge_u32 s%d, 56" % sJ); e("s_cbranch_scc1 L_is_kown")
            e("s_and_b32 s%d, s%d, 6" % (Y, sJ)); e("s_cmp_eq_u32 s%d, 6" % Y); e("s_cbranch_scc0 L_is_knear")
        else:
            e("s_cmp_ge_u32 s%d, 48" % sJ); e("s_cbranch_scc1 L_is_knear")
            e("s_cmp_lt_u32 s%d, 10" % sJ); e("s_cbranch_scc1 L_is_kown")
            e("s_bitcmp1_b32 s%d, 1" % sJ); e("s_cbranch_scc1 L_is_knear")
        self.lab("L_is_kown")
        e("s_mov_b32 s%d, s%d" % (sCUR, sKB)); e("s_mov_b32 s%d, s%d" % (sCUR + 1, sKB + 1))
        self.lab("L_is_own")
        e("s_lshl_b32 s%d, s%d, %d" % (Y, X, 10 if self.ilv == 2 else 11)); e("s_xor_b32 s%d, s%d, s%d" % (Y, Y, sWb))
        if self.ilv == 3:
            e("s_xor_b32 s%d, s%d, 8192" % (sOf2, Y)); e("s_cmp_ge_u32 s%d, 62" % X); e("s_cselect_b32 s%d, s%d, s%d" % (Y, sOf2, Y))
        e("s_and_b32 s%d, s%d, 8192" % (Y, Y))
        e("s_lshl_b32 s%d, s%d, 14" % (X, X)); e("s_add_u32 s%d, s%d, s%d" % (X, X, sRot)); e("s_and_b32 s%d, s%d, 0x%x" % (X, X, mask)); e("s_add_u32 s%d, s%d, s%d" % (sOf2, X, Y))
        e("s_branch L_is_go")
        self.lab("L_is_knear")
        e("s_mov_b32 s%d, s%d" % (sCUR, sKN)); e("s_mov_b32 s%d, s%d" % (sCUR + 1, sKN + 1))
        self.lab("L_is_near")
        e("s_lshl_b32 s%d, s%d, 14" % (X, X)); e("s_add_u32 s%d, s%d, s%d" % (X, X, sRotN)); e("s_and_b32 s%d, s%d, 0x%x" % (sOf2, X, mask))
        self.lab("L_is_go")
        e("s_add_u32 s%d, s%d, 1" % (sAc, sAc)); e("s_and_b32 s%d, s%d, %d" % (sAc, sAc, self.alN - 1))
        e("s_cmp_lt_u32 s%d, s%d" % (sAc, sAlloc))
        e("s_cbranch_scc1 L_is_alloc")
        for k in range(4):
            e("buffer_load_dwordx4 v%d, %s, s%d offen offset:%d nt lds" % (vo[k], sp(sCUR, 4), sOf2, k * 1024))
        e("s_branch L_is_done")
        self.lab("L_is_alloc")
        for k in range(4):
            e("buffer_load_dwordx4 v%d, %s, s%d offen offset:%d lds" % (vo[k], sp(sCUR, 4), sOf2, k * 1024))
        self.lab("L_is_done")
        e("s_add_u32 s%d, s%d, 1" % (sJ, sJ))
        e("s_cmp_lg_u32 s%d, s%d" % (sJ, sLen)); e("s_cbranch_scc0 L_is_next")
        e("s_setpc_b64 %s" % sp(sRet))
        self.lab("L_is_next")
        e("s_add_u32 s%d, s%d, 1" % (sSeg, sSeg))
        e("s_mov_b32 s%d, s%d" % (sJ, sZ)); e("s_mov_b32 s%d, s%d" % (sAlloc, sZ)); e("s_mov_b32 s%d, s%d" % (sNM, sZ))
        e("s_cmp_eq_u32 s%d, 5" % sSeg); e("s_cbranch_scc1 L_is_end")
        e("s_bitcmp1_b32 s%d, 0" % sSeg); e("s_cbranch_scc0 L_is_v")
        e("s_mov_b32 s%d, s%d" % (sIsV, sZ)); e("s_add_u32 s%d, s%d, 64" % (sLen, sZ))
        e("s_mov_b32 s%d, s%d" % (sCUR, sKB)); e("s_mov_b32 s%d, s%d" % (sCUR + 1, sKB + 1))
        e("s_cmp_eq_u32 s%d, 1" % sSeg)
        e("s_cselect_b32 s%d, %d, 0" % (sAlloc, self.alM)); e("s_cselect_b32 s%d, 0, 1" % sNM)
        e("s_add_u32 s%d, s%d, s%d" % (sAlloc, sAlloc, sZ)); e("s_add_u32 s%d, s%d, s%d" % (sNM, sNM, sZ))
        self.kpat()
        e("s_setpc_b64 %s" % sp(sRet))
        self.lab("L_is_v")
        e("s_add_u32 s%d, s%d, 1" % (sIsV, sZ)); e("s_add_u32 s%d, s%d, %d" % (sLen, sZ, 2 * NSTR_T)); e("s_add_u32 s%d, s%d, 10" % (sVadd, sZ))
        e("s_cmp_eq_u32 s%d, 2" % sSeg)
        e("s_cselect_b32 s%d, %d, 0" % (sAlloc, self.alM if self.alV else 0)); e("s_cselect_b32 s%d, 0, 2" % sNM)
        e("s_cselect_b32 s%d, s%d, s%d" % (sCUR, sVB, sVN)); e("s_cselect_b32 s%d, s%d, s%d" % (sCUR + 1, sVB + 1, sVN + 1))
        e("s_add_u32 s%d, s%d, s%d" % (sAlloc, sAlloc, sZ)); e("s_add_u32 s%d, s%d, s%d" % (sNM, sNM, sZ))
        self.vpat()
        e("s_setpc_b64 %s" % sp(sRet))
        self.lab("L_is_end")
        e("s_mov_b32 s%d, 0" % (sCUR + 2)); e("s_mov_b32 s%d, s%d" % (sIsV, sZ)); e("s_sub_u32 s%d, s%d, 1" % (sLen, sZ))
        e("s_setpc_b64 %s" % sp(sRet))

    def build(self):
        e = self.e
        self.prologue()
        early = int(self.o.get("early", 0)) and self.ilv
        if early:
            e("s_lshr_b32 s%d, s%d, 1" % (sT1, sWave)); e("s_lshl_b32 s%d, s%d, 13" % (sT1, sT1))
            for u in range(2):
                e("s_mov_b32 m0, s%d" % sSlot); e("s_add_u32 s%d, s%d, 4096" % (sSlot, sSlot))
                e("s_add_u32 s%d, s%d, %d" % (sT0, sRot, u * self.stride)); e("s_and_b32 s%d, s%d, 0x%x" % (sT0, sT0, 64 * self.stride - 1)); e("s_add_u32 s%d, s%d, s%d" % (sT0, sT0, sT1))
                for k in range(4):
                    e("buffer_load_dwordx4 v%d, %s, s%d offen offset:%d nt lds" % (vo[k], sp(sCUR, 4), sT0, k * 1024))
            e("s_add_u32 s%d, s%d, 2" % (sAc, sAc)); e("s_and_b32 s%d, s%d, %d" % (sAc, sAc, self.alN - 1))
        self.dbg_span(2)
        self.stamp(0)
        self.weights_setup('start')
        if self.ilv:
            e("s_lshr_b32 s%d, s%d, 1" % (sWb, sWave)); e("s_lshl_b32 s%d, s%d, 13" % (sWb, sWb))
            e("s_add_u32 s%d, s%d, %d" % (sJ, sZ, 2 if early else 0)); e("s_add_u32 s%d, s%d, %d" % (sLen, sZ, 2 * NRES_T)); e("s_add_u32 s%d, s%d, 1" % (sIsV, sZ))
            e("s_mov_b32 s%d, s%d" % (sNM, sZ)); e("s_sub_u32 s%d, s%d, 8" % (sVadd, sZ)); e("s_mov_b32 s%d, s%d" % (sSeg, sZ)); e("s_mov_b32 s%d, s%d" % (sAlloc, sZ))
            e("s_add_u32 s%d, s%d, s%d" % (sSlot, sSlot, sZ))
        elif self.swz:
            e("s_mov_b32 s%d, 0" % sN); e("s_lshr_b32 s%d, s%d, 1" % (sWb, sWave)); e("s_lshl_b32 s%d, s%d, 13" % (sWb, sWb)); e("s_mov_b32 s%d, 8192" % sSwM)
        e("v_min_u32 v9, 55, v%d" % vL); e("v_lshlrev_b32 v9, 4, v9")
        xr = 16 if int(self.o.get("gap2", 1)) else 32
        e("global_load_dwordx4 v[%d:%d], v9, %s" % (xr, xr + 3, sp(pX)))
        if early:
            self.xop(0); self.xop(1)
        self.clear_mailboxes()
        if int(self.o.get("cpf0", 0)):
            sk = self.nl("Lcp")
            e("s_cmp_eq_u32 s%d, 1" % sWave); e("s_cbranch_scc0 %s" % sk)
            e("s_getpc_b64 s[18:19]")
            self.lab("L_pcref0")
            e("s_add_u32 s18, s18, L_p1a_code-L_pcref0"); e("s_addc_u32 s19, s19, 0")
            e("v_lshlrev_b32 v8, 7, v%d" % vL)
            for k in range(4):
                e("v_min_u32 v9, L_endcode-L_p1a_code-4, v8"); e("global_load_dword v20, v9, s[18:19]"); e("v_add_u32 v8, 8192, v8")
            self.lab(sk)
        if not early:
            for u in range(self.R):
                self.group(u)
        self.stamp(1)
        self.p1a()
        self.stamp(2)
        self.lab("L_pass")
        self.gather_q()
        self.dbg_span_pass(6)
        self.stamp(3)
        self.kphase()
        self.stamp(4)
        self.softmax()
        self.vphase()
        self.stamp(5)
        self.combine_publish()
        self.dbg_span_pass(4)
        self.stamp(6)
        g2 = int(self.o.get("gap2", 1))
        e("s_cmp_eq_u32 s%d, 1" % sRole); e("s_cbranch_scc1 L_roleO")
        e("s_cmp_eq_u32 s%d, 4" % sRole); e("s_cbranch_scc1 L_roleD")
        if self.gapw:
            lw = self.nl("Lgw")
            e("s_cmp_eq_u32 s%d, 0" % sPass); e("s_cbranch_scc0 %s" % lw)
            e("s_cmp_eq_u32 s%d, 0" % sRole); e("s_cbranch_scc1 %s" % lw)
            self.weights_setup('gap')
            for i in range(14):
                self.xop(i)
            self.lab(lw)
        e("s_cmp_eq_u32 s%d, 2" % sRole); e("s_cbranch_scc1 L_roleB")
        e("s_cmp_eq_u32 s%d, 3" % sRole); e("s_cbranch_scc1 L_roleC")
        self.topup()
        self.l2pf_ilv(int(self.o.get("pfN", 0)))
        e("s_branch L_next")
        self.lab("L_roleO")
        self.stage_O2() if g2 else self.stage_S1()
        if self.p2n == 2:
            self.probe_near()
            self.topup(2)
            self.l2pf_ilv(int(self.o.get("pfO", 0)))
        else:
            self.topup()
        e("s_branch L_next")
        self.lab("L_roleB")
        if g2:
            self.stage_B2(); self.topup(); self.l2pf_ilv(int(self.o.get("pfB", 0)))
        else:
            self.topup(); self.stage_B()
        e("s_branch L_next")
        self.lab("L_roleC")
        if g2:
            self.stage_C2(); self.topup(int(self.o.get("tpaceC", 0)))
        else:
            self.topup(); self.stage_C()
        e("s_branch L_next")
        self.lab("L_roleD")
        e("s_cmp_eq_u32 s%d, 0" % sWave); e("s_cbranch_scc0 L_D_rdone")
        e("s_cmp_lt_u32 s%d, 56" % sIdx); e("s_cbranch_scc0 L_D_rdone")
        self.stage_R2() if g2 else self.stage_R()
        self.lab("L_D_rdone")
        self.topup()
        self.l2pf_ilv(int(self.o.get("pfD", 0)))
        e("s_cmp_eq_u32 s%d, 0" % sPass); e("s_cbranch_scc0 L_next")
        if g2:
            e("s_call_b64 %s, L_stageD_prep" % sp(sRet2))
            self.addr(sA, pWs, M5)
            self.poll_x2("M5")
            self.stamp(10)
            e("s_lshl_b32 s%d, s%d, 7" % (sT0, sIdx)); e("s_lshl_b32 s%d, s%d, 5" % (sT1, sWave))
            self.addr(sB, pWs, M6 + MR, [sT0] if self.onest else [sT0, sT1])
            e("s_call_b64 %s, L_stageD_rest" % sp(sRet2))
            if self.onest:
                self.wait_leftover()
            else:
                e("s_waitcnt vmcnt(1)")
        else:
            self.addr(sA, pWs, M5)
            self.gather_x(M5, "M5")
            self.stamp(10)
            self.addr(sA, pWs, M6 + MR)
            e("s_call_b64 %s, L_stageD" % sp(sRet2))
        self.lab("L_next")
        self.stamp(7)
        e("s_add_u32 s%d, s%d, 1" % (sPass, sPass))
        e("s_cmp_lt_u32 s%d, 2" % sPass)
        e("s_cbranch_scc1 L_pass")
        self.dump_stamps()
        self.dbg_span(3)
        e("s_waitcnt vmcnt(0)")
        self.lab("L_end")
        e("s_endpgm")
        if int(self.o.get("gap2", 1)):
            self.lab("L_stageD_prep")
            self.stageD2_prep()
            e("s_setpc_b64 %s" % sp(sRet2))
            self.lab("L_stageD_rest")
            self.stageD2_rest()
            e("s_setpc_b64 %s" % sp(sRet2))
        else:
            self.lab("L_stageD")
            self.stage_D(None)
            e("s_setpc_b64 %s" % sp(sRet2))
        if self.ilv:
            self.emit_issue_sub()
        else:
            self.emit_switch()
        self.lab("L_endcode")
        e("s_endpgm")
        return self.a.text()


HEADER = """; Persistent fused decode kernel: [attn -> mlp] x2, V tiles kept resident in registers across the two attention passes.
; @launch grid=(256,1,1) block=(256,1,1) lds=%d
.amdgcn_target "amdgcn-amd-amdhsa--gfx950"
.text
.globl %s
.p2align 8
.type %s,@function
%s:
"""
FOOTER = """.section .rodata,"a"
.p2align 6
.amdhsa_kernel %s
  .amdhsa_next_free_vgpr 512
  .amdhsa_next_free_sgpr 102
  .amdhsa_accum_offset 256
  .amdhsa_group_segment_fixed_size 0
  .amdhsa_kernarg_size 96
  .amdhsa_user_sgpr_count 2
  .amdhsa_user_sgpr_kernarg_segment_ptr 1
  .amdhsa_system_sgpr_workgroup_id_x 1
  .amdhsa_float_denorm_mode_32 3
.end_amdhsa_kernel
"""


def generate(opt=None):
    opt = opt or {}
    g = Gen(opt)
    body = g.build()
    return HEADER % (LDS_TOTAL, KNAME, KNAME, KNAME) + body + FOOTER % KNAME


if __name__ == "__main__":
    out = sys.argv[1] if len(sys.argv) > 1 else "gen/kernel.s"
    opt = {}
    for kv in sys.argv[2:]:
        k, v = kv.split("=")
        opt[k] = v
    open(out, "w").write(generate(opt))
    print("wrote", out)
```

```python
import sys, os
sys.path.insert(0, os.path.dirname(os.path.abspath(__file__)))
from asmlib import Asm

KNAME = "interleave_layers__mha_block_cached__glu_gated_swiglu__decode_kernel"

L_Q = 0
L_Z = 2176
L_SM = 2688
L_RED = 2752
L_ST = 2048
L_P = 3072
L_W = 7168
LDS_TOTAL = 163840
RING_NONE = 7168
RING_ROLE = 65536
O_ROW = 912
B_IMG3 = 28704
C_WAVE = 14336

M1 = 0x0; M1_R = 0x60000; M1_SLOT = 384
M2 = 0x100000; M2_R = 0x20000; M2_SLOT = 2048; M3 = 0xC4000; M4 = 0xC8000; M5 = 0xCC000; M6 = 0xCE000; MR = 0x2000
DBG = 0x200000

NRES_PAIRS = 7
NRES_T = 2 * NRES_PAIRS
NSTR_T = 32 - NRES_T
STRIDE = 16384
SPIN_LIMIT = 1 << 18
C_EXP = 0x3DB8AA3B
LOG2E = 0x3FB8AA3B

sW, sWave = 2, 3
pX, pK, pV, pWq, pWo, pW1, pW3, pW2, pOut, pDbg, pWs = 8, 10, 12, 14, 16, 20, 22, 24, 26, 28, 30
sKB, sVB = 32, 34
sCUR = 36
sSlot, sRs, sRe, sOff, sLeft, sSeg, sCs, sPass = 40, 41, 42, 43, 44, 45, 46, 47
sRole, sIdx, sH, sC, sNS, sVec, sWl, sSpin = 48, 49, 50, 51, 52, 53, 54, 55
sM = [56, 58, 60, 62]
sMd, sRet, sEx = 64, 66, 68
sT0, sT1, sT2, sT3, sT4, sT5 = 70, 71, 72, 73, 74, 75
sA = 76
sB = 78
sT15 = 80
sRho = 19
sWS = 84
sRet2 = 88
sWlds, sWlstep, sWoff, sWoff0, sWstep = 94, 95, 96, 97, 98
sAlloc = 99
sQok = 100
sJ, sLen, sIsV, sNM, sVadd = 43, 44, 16, 14, 54
sZ = 81
sN, sWb, sSwM, sOf2 = 16, 17, 14, 15
sKN, sVN, sRotN, sXch, sTm0, sTm1 = 10, 12, 0, 1, 16, 17
M7 = 0x300000
M8 = 0xD2000
sAc = 93
sRot = 101
sWo2 = 4
sWlds0, sWwrap = 6, 7
sWex = 82

vL = 0
vo = [1, 2, 3, 4]
vPh, vAd, vPa = 5, 6, 7
vSC = 8
vACC = 16
vLsum = 8
vW = 12


def sp(r, n=2):
    return "s[%d:%d]" % (r, r + n - 1)


def vr(r, n):
    return "v[%d:%d]" % (r, r + n - 1) if n > 1 else "v%d" % r


def res_reg(m, t, hh=None):
    base = m * 64 + 4 * t
    if m < 3:
        b = 64 + base; p = "v"
    else:
        b = base - 192; p = "a"
    if hh is None:
        return "%s[%d:%d]" % (p, b, b + 3)
    return "%s[%d:%d]" % (p, b + 2 * hh, b + 2 * hh + 1)


def res_T(k):
    return k if k < 4 else 2 * k - 4


def str_T(i):
    return 5 + 2 * i if i < 10 else i + 14


class LQ:
    def __init__(self, g):
        self.g = g; self.q = []
    def issue(self, instr, tag):
        self.g.e(instr); self.q.append(tag)
    def wait(self, tags):
        idx = [i for i, t in enumerate(self.q) if t in tags]
        if not idx:
            return
        last = max(idx)
        n = len(self.q) - 1 - last
        self.g.e("s_waitcnt lgkmcnt(%d)" % min(n, 15))
        self.q = self.q[last + 1:] if n <= 15 else self.q[len(self.q) - 15:]
    def drain(self):
        if self.q:
            self.g.e("s_waitcnt lgkmcnt(0)")
        self.q = []


class Gen:
    def __init__(self, opt):
        self.o = opt
        self.near = int(opt.get("near", 0))
        self.stride = 32768 if self.near else 16384
        self.stag = int(opt.get("stag", 0))
        self.l2pf = int(opt.get("l2pf", 0))
        self.l2pol = opt.get("l2pol", " nt")
        self.wpf = int(opt.get("wpf", 1))
        self.gapw = int(opt.get("gapw", 1))
        self.R = int(opt.get("R", 2))
        self.clr2 = int(opt.get("clr2", 0))
        self.onest = int(opt.get("onest", 1))
        self.q1w = int(opt.get("q1w", 0))
        self.ilv = int(opt.get("ilv", 0))
        self.swz = int(opt.get("swz", 0)) or int(opt.get("ilv", 0))
        self.klin = int(opt.get("klin", 0))
        self.p2n = int(opt.get("p2n", 0))
        self.alN = int(opt.get("alN", 0))
        self.alM = int(opt.get("alM", 0))
        self.alV = int(opt.get("alV", 1))
        self.kalloc = int(opt.get("kalloc", 0))
        self.a = Asm()
        self.e = self.a.e

    def resT(self, k):
        if self.ilv == 3:
            return k if k < 4 else (2 * k - 4 if k < 12 else k + 18)
        if self.ilv == 2:
            return k if k < 4 else (4 * k - 9 if k < 10 else k + 18)
        return res_T(k)

    def strT(self, i):
        if self.ilv == 3:
            return 5 + 2 * i if i < 8 else i + 12
        if self.ilv == 2:
            return 4 + i + i // 3
        return str_T(i)

    def lab(self, n):
        self.a.label(n)

    def nl(self, b="L"):
        return self.a.newlabel(b)

    def nop(self, n):
        if n > 0:
            self.e("s_nop %d" % (n - 1))

    def bf16r(self, dst, src, tmp):
        self.e("v_cvt_pk_bf16_f32 v%d, v%d, v%d" % (tmp, src, src))
        self.e("v_and_b32 v%d, 0xffff0000, v%d" % (dst, tmp))

    def allreduce16(self, x, op):
        e = self.e
        for n in (8, 4, 2, 1):
            self.nop(2)
            e("%s_dpp v%d, v%d, v%d row_ror:%d row_mask:0xf bank_mask:0xf" % (op, x, x, x, n))

    def xrows(self, x, tmp, op):
        e = self.e
        e("v_mov_b32 v%d, v%d" % (tmp, x)); self.nop(2)
        e("v_permlane16_swap_b32 v%d, v%d" % (x, tmp)); self.nop(1)
        e("%s v%d, v%d, v%d" % (op, x, x, tmp))
        e("v_mov_b32 v%d, v%d" % (tmp, x)); self.nop(2)
        e("v_permlane32_swap_b32 v%d, v%d" % (x, tmp)); self.nop(1)
        e("%s v%d, v%d, v%d" % (op, x, x, tmp))

    def allreduce64(self, x, tmp, op):
        self.allreduce16(x, op)
        self.xrows(x, tmp, op)

    def poll(self, loads, regs, tmp, name="P"):
        e = self.e
        L = self.nl(name); D = self.nl(name + "d")
        e("s_mov_b32 s%d, 0" % sSpin)
        self.lab(L)
        for ld in loads:
            e(ld)
        e("s_waitcnt vmcnt(0)")
        rr = list(regs)
        if len(rr) == 1:
            t = rr[0]
        else:
            first = True
            while rr:
                if first:
                    if len(rr) >= 3:
                        e("v_max3_u32 v%d, v%d, v%d, v%d" % (tmp, rr[0], rr[1], rr[2])); rr = rr[3:]
                    else:
                        e("v_max_u32 v%d, v%d, v%d" % (tmp, rr[0], rr[1])); rr = rr[2:]
                    first = False
                elif len(rr) >= 2:
                    e("v_max3_u32 v%d, v%d, v%d, v%d" % (tmp, tmp, rr[0], rr[1])); rr = rr[2:]
                else:
                    e("v_max_u32 v%d, v%d, v%d" % (tmp, tmp, rr[0])); rr = rr[1:]
            t = tmp
        e("v_cmp_eq_u32 vcc, -1, v%d" % t)
        e("s_cbranch_vccz %s" % D)
        e("s_add_u32 s%d, s%d, 1" % (sSpin, sSpin))
        e("s_cmp_lt_u32 s%d, %d" % (sSpin, SPIN_LIMIT))
        e("s_cbranch_scc1 %s" % L)
        self.lab(D)

    def addr(self, dst, base, off_imm=0, off_sregs=()):
        e = self.e
        if off_imm:
            e("s_add_u32 s%d, s%d, 0x%x" % (dst, base, off_imm))
        else:
            e("s_add_u32 s%d, s%d, 0" % (dst, base))
        e("s_addc_u32 s%d, s%d, 0" % (dst + 1, base + 1))
        for r in off_sregs:
            e("s_add_u32 s%d, s%d, s%d" % (dst, dst, r))
            e("s_addc_u32 s%d, s%d, 0" % (dst + 1, dst + 1))

    def stamp(self, idx):
        if not self.o.get("stamps"):
            return
        e = self.e
        sk = self.nl("St")
        e("s_cmp_eq_u32 s%d, 0" % sWave); e("s_cbranch_scc0 %s" % sk)
        e("s_memrealtime s[90:91]")
        e("s_waitcnt lgkmcnt(0)")
        e("s_lshl_b32 s92, s%d, 6" % sPass); e("s_add_u32 s92, s92, %d" % (L_ST + idx * 4))
        e("v_mov_b32 v62, s92"); e("v_mov_b32 v63, s90")
        e("ds_write_b32 v62, v63")
        e("s_waitcnt lgkmcnt(0)")
        self.lab(sk)

    def dbg_span(self, first):
        if not self.o.get("span"):
            return
        e = self.e
        sk = self.nl("Sp")
        e("s_cmp_eq_u32 s%d, 0" % sWave); e("s_cbranch_scc0 %s" % sk)
        e("s_memrealtime s[90:91]")
        e("s_waitcnt lgkmcnt(0)")
        if first == 2:
            e("s_not_b32 s90, s90")
        e("v_mov_b32 v62, %d" % (4 * first)); e("v_mov_b32 v63, s90")
        e("s_mov_b64 exec, 1")
        e("global_atomic_umax v62, v63, %s" % sp(pDbg))
        e("s_mov_b64 exec, -1")
        self.lab(sk)

    def dbg_span_pass(self, base):
        if not self.o.get("span"):
            return
        e = self.e
        sk = self.nl("Sp")
        e("s_cmp_eq_u32 s%d, 0" % sWave); e("s_cbranch_scc0 %s" % sk)
        e("s_memrealtime s[90:91]")
        e("s_waitcnt lgkmcnt(0)")
        e("s_lshl_b32 s92, s%d, 2" % sPass); e("s_add_u32 s92, s92, %d" % (4 * base))
        e("v_mov_b32 v62, s92"); e("v_mov_b32 v63, s90")
        e("s_mov_b64 exec, 1")
        e("global_atomic_umax v62, v63, %s" % sp(pDbg))
        e("s_mov_b64 exec, -1")
        e("s_waitcnt vmcnt(0)")
        self.lab(sk)

    def dump_stamps(self):
        if not self.o.get("stamps"):
            return
        e = self.e
        sk = self.nl("Sd")
        e("s_waitcnt vmcnt(0)")
        e("s_cmp_eq_u32 s%d, 0" % sWave); e("s_cbranch_scc0 %s" % sk)
        e("v_and_b32 v8, 31, v%d" % vL); e("v_lshlrev_b32 v8, 2, v8")
        e("ds_read_b32 v9, v8 offset:%d" % L_ST)
        e("s_lshl_b32 s%d, s2, 7" % sT0)
        self.addr(sA, pWs, DBG, [sT0])
        e("s_waitcnt lgkmcnt(0)")
        e("global_store_dword v8, v9, %s" % sp(sA))
        self.lab(sk)

    def issue(self):
        e = self.e
        if self.ilv:
            e("s_call_b64 %s, L_issue" % sp(sRet))
            return
        pol = self.o.get("pol", " nt")
        e("s_mov_b32 m0, s%d" % sSlot)
        e("s_add_u32 s%d, s%d, 4096" % (sSlot, sSlot))
        so = sOff
        if self.swz:
            so = sOf2
            e("s_lshl_b32 s%d, s%d, 12" % (sOf2, sN)); e("s_xor_b32 s%d, s%d, s%d" % (sOf2, sOf2, sWb)); e("s_and_b32 s%d, s%d, s%d" % (sOf2, sOf2, sSwM))
            e("s_add_u32 s%d, s%d, s%d" % (sOf2, sOf2, sOff)); e("s_add_u32 s%d, s%d, 1" % (sN, sN))
        if self.alN:
            la = self.nl("Ia"); ld = self.nl("Id")
            e("s_add_u32 s%d, s%d, 1" % (sAc, sAc)); e("s_and_b32 s%d, s%d, %d" % (sAc, sAc, self.alN - 1))
            e("s_cmp_lt_u32 s%d, s%d" % (sAc, sAlloc))
            e("s_cbranch_scc1 %s" % la)
        if self.kalloc:
            la = self.nl("Ia"); ld = self.nl("Id")
            e("s_cmp_gt_u32 s%d, 0" % sAlloc)
            e("s_cbranch_scc1 %s" % la)
        for s in range(4):
            e("buffer_load_dwordx4 v%d, %s, s%d offen offset:%d%s lds" % (vo[s], sp(sCUR, 4), so, s * 1024, pol))
        if self.kalloc or self.alN:
            e("s_branch %s" % ld)
            self.lab(la)
            for s in range(4):
                e("buffer_load_dwordx4 v%d, %s, s%d offen offset:%d lds" % (vo[s], sp(sCUR, 4), so, s * 1024))
            if self.kalloc:
                e("s_sub_u32 s%d, s%d, 1" % (sAlloc, sAlloc))
            self.lab(ld)
        e("s_cmp_eq_u32 s%d, s%d" % (sSlot, sRe))
        e("s_cselect_b32 s%d, s%d, s%d" % (sSlot, sRs, sSlot))
        e("s_add_u32 s%d, s%d, %d" % (sOff, sOff, self.stride))
        if self.stag:
            e("s_and_b32 s%d, s%d, 0x%x" % (sOff, sOff, 64 * self.stride - 1))
        e("s_sub_u32 s%d, s%d, 1" % (sLeft, sLeft))
        e("s_cmp_lg_u32 s%d, 0" % sLeft)
        sk = self.nl("Isk")
        e("s_cbranch_scc1 %s" % sk)
        e("s_call_b64 %s, L_switch" % sp(sRet))
        self.lab(sk)

    def kpat(self):
        e = self.e
        if self.klin:
            e("v_lshrrev_b32 v%d, 5, v%d" % (vo[1], vL))
            e("v_and_b32 v%d, 31, v%d" % (vo[0], vL)); e("v_xor_b32 v%d, v%d, v%d" % (vo[0], vo[0], vo[1]))
            e("v_lshlrev_b32 v%d, 4, v%d" % (vo[0], vo[0])); e("v_lshl_add_u32 v%d, v%d, 9, v%d" % (vo[0], vo[1], vo[0]))
            e("v_add_u32 v%d, 3072, v%d" % (vo[0], vo[0]))
            for i in range(1, 4):
                e("v_xor_b32 v%d, %d, v%d" % (vo[i], (2 * i) << 4, vo[0]))
            return
        e("v_and_b32 v%d, 7, v%d" % (vo[0], vL))
        e("v_lshlrev_b32 v%d, 9, v%d" % (vo[0], vo[0]))
        e("v_lshrrev_b32 v%d, 3, v%d" % (vo[1], vL))
        e("v_lshl_add_u32 v%d, v%d, 4, v%d" % (vo[0], vo[1], vo[0]))
        self.pat_fin()

    def vpat(self):
        e = self.e
        e("v_bfe_u32 v%d, v%d, 1, 3" % (vo[0], vL))
        e("v_lshlrev_b32 v%d, 9, v%d" % (vo[0], vo[0]))
        e("v_lshrrev_b32 v%d, 4, v%d" % (vo[1], vL))
        e("v_lshl_add_u32 v%d, v%d, 5, v%d" % (vo[0], vo[1], vo[0]))
        e("v_and_b32 v%d, 1, v%d" % (vo[1], vL))
        e("v_lshl_add_u32 v%d, v%d, 4, v%d" % (vo[0], vo[1], vo[0]))
        self.pat_fin()

    def pat_fin(self):
        e = self.e
        e("v_add_u32 v%d, 3072, v%d" % (vo[0], vo[0]))
        for s in range(1, 4):
            e("v_subrev_u32 v%d, %d, v%d" % (vo[s], 896 * s, vo[0]))

    def emit_switch(self):
        if self.p2n:
            return self.emit_switch_p2n()
        e = self.e
        self.lab("L_switch")
        e("s_add_u32 s%d, s%d, 1" % (sSeg, sSeg))
        e("s_cmp_eq_u32 s%d, 5" % sSeg)
        e("s_cbranch_scc1 L_sw_end")
        e("s_bitcmp1_b32 s%d, 0" % sSeg)
        e("s_cbranch_scc0 L_sw_v")
        e("s_mov_b32 s%d, s%d" % (sCUR, sKB)); e("s_mov_b32 s%d, s%d" % (sCUR + 1, sKB + 1))
        e("s_mov_b32 s%d, s%d" % (sOff, sRot)); e("s_mov_b32 s%d, 64" % sLeft)
        if self.kalloc:
            e("s_cmp_eq_u32 s%d, 1" % sSeg)
            e("s_cselect_b32 s%d, %d, 0" % (sAlloc, self.kalloc))
        if self.alN:
            e("s_cmp_eq_u32 s%d, 1" % sSeg)
            e("s_cselect_b32 s%d, %d, 0" % (sAlloc, self.alM))
        self.kpat()
        e("s_setpc_b64 %s" % sp(sRet))
        self.lab("L_sw_v")
        e("s_mov_b32 s%d, s%d" % (sCUR, sVB)); e("s_mov_b32 s%d, s%d" % (sCUR + 1, sVB + 1))
        e("s_add_u32 s%d, s%d, %d" % (sOff, sRot, 2 * NRES_T * self.stride)); e("s_and_b32 s%d, s%d, 0x%x" % (sOff, sOff, 64 * self.stride - 1))
        e("s_mov_b32 s%d, %d" % (sLeft, 2 * NSTR_T))
        if self.alN:
            e("s_cmp_eq_u32 s%d, 2" % sSeg)
            e("s_cselect_b32 s%d, %d, 0" % (sAlloc, self.alM if self.alV else 0))
        self.vpat()
        e("s_setpc_b64 %s" % sp(sRet))
        self.lab("L_sw_end")
        e("s_mov_b32 s%d, 0" % (sCUR + 2))
        e("s_mov_b32 s%d, 0" % sOff); e("s_mov_b32 s%d, 0x7fffffff" % sLeft)
        e("s_setpc_b64 %s" % sp(sRet))

    def emit_switch_p2n(self):
        e = self.e
        mask = 64 * self.stride - 1
        self.lab("L_switch")
        e("s_add_u32 s%d, s%d, 1" % (sSeg, sSeg))
        e("s_mov_b32 s%d, 0" % sAlloc)
        e("s_cmp_eq_u32 s%d, 1" % sSeg); e("s_cbranch_scc1 L_sw_1")
        e("s_cmp_eq_u32 s%d, 2" % sSeg); e("s_cbranch_scc1 L_sw_2")
        e("s_cmp_eq_u32 s%d, 3" % sSeg); e("s_cbranch_scc1 L_sw_3")
        e("s_cmp_eq_u32 s%d, 4" % sSeg); e("s_cbranch_scc1 L_sw_4")
        e("s_cmp_eq_u32 s%d, 5" % sSeg); e("s_cbranch_scc1 L_sw_5")
        e("s_mov_b32 s%d, 0" % (sCUR + 2))
        e("s_mov_b32 s%d, 0" % sOff); e("s_mov_b32 s%d, 0x7fffffff" % sLeft)
        e("s_setpc_b64 %s" % sp(sRet))
        self.lab("L_sw_1")
        e("s_mov_b32 s%d, %d" % (sAlloc, self.alM))
        e("s_mov_b32 s%d, 64" % sLeft)
        e("s_branch L_sw_k")
        self.lab("L_sw_3")
        if self.o.get("dryK2"):
            e("s_mov_b32 s%d, 0" % (sCUR + 2))
        e("s_mov_b32 s%d, %d" % (sLeft, 2 * NRES_T))
        self.lab("L_sw_k")
        e("s_mov_b32 s%d, s%d" % (sCUR, sKB)); e("s_mov_b32 s%d, s%d" % (sCUR + 1, sKB + 1))
        e("s_mov_b32 s%d, s%d" % (sOff, sRot))
        self.kpat()
        e("s_setpc_b64 %s" % sp(sRet))
        self.lab("L_sw_4")
        if self.swz:
            e("s_mov_b32 s%d, 0" % sSwM)
        e("s_mov_b32 s%d, s%d" % (sCUR, sKN)); e("s_mov_b32 s%d, s%d" % (sCUR + 1, sKN + 1))
        e("s_add_u32 s%d, s%d, %d" % (sOff, sRotN, 2 * NRES_T * self.stride)); e("s_and_b32 s%d, s%d, 0x%x" % (sOff, sOff, mask))
        e("s_mov_b32 s%d, %d" % (sLeft, 2 * NSTR_T))
        e("s_setpc_b64 %s" % sp(sRet))
        self.lab("L_sw_2")
        e("s_mov_b32 s%d, %d" % (sAlloc, self.alM if self.alV else 0))
        e("s_mov_b32 s%d, s%d" % (sCUR, sVB)); e("s_mov_b32 s%d, s%d" % (sCUR + 1, sVB + 1))
        e("s_add_u32 s%d, s%d, %d" % (sOff, sRot, 2 * NRES_T * self.stride))
        e("s_branch L_sw_v")
        self.lab("L_sw_5")
        if self.o.get("dryK2"):
            e("s_mov_b32 s%d, %d" % (sCUR + 2, 0 if self.o.get("dryV2") else 3072 + 63 * self.stride + 4096 + 8192))
        e("s_mov_b32 s%d, s%d" % (sCUR, sVN)); e("s_mov_b32 s%d, s%d" % (sCUR + 1, sVN + 1))
        e("s_add_u32 s%d, s%d, %d" % (sOff, sRotN, 2 * NRES_T * self.stride))
        self.lab("L_sw_v")
        e("s_and_b32 s%d, s%d, 0x%x" % (sOff, sOff, mask))
        e("s_mov_b32 s%d, %d" % (sLeft, 2 * NSTR_T))
        self.vpat()
        e("s_setpc_b64 %s" % sp(sRet))

    def now(self, dst, minus=None):
        e = self.e
        e("s_memrealtime s[90:91]"); e("s_waitcnt lgkmcnt(0)")
        if minus is None:
            e("s_mov_b32 s%d, s90" % dst)
        else:
            e("s_sub_u32 s%d, s90, s%d" % (dst, minus))

    def adv_cs(self):
        e = self.e
        e("s_add_u32 s%d, s%d, 8192" % (sCs, sCs))
        e("s_cmp_eq_u32 s%d, s%d" % (sCs, sRe))
        e("s_cselect_b32 s%d, s%d, s%d" % (sCs, sRs, sCs))

    def step_issue(self):
        w = 4 * (self.R - 1)
        self.e("s_waitcnt vmcnt(%d)" % w)
        self.issue()
        self.e("s_waitcnt vmcnt(%d)" % w)
        self.issue()

    def gwait(self, u):
        lo = max(0, u - self.R + 1)
        cnt = sum(4 + (1 if g < self.NX else 0) + (1 if (self.clr2 and 2 <= g <= 6) else 0) for g in range(lo, u))
        self.e("s_waitcnt vmcnt(%d)" % cnt)

    @property
    def NX(self):
        return 0 if self.o.get('noX') else 16

    def xop(self, i):
        e = self.e
        if i == 7:
            e("s_cmp_eq_u32 s%d, 2" % sRole)
            e("s_cselect_b32 s%d, s%d, s%d" % (sWS, sWo2, sWS))
            e("s_cselect_b32 s%d, s%d, s%d" % (sWS + 1, sWo2 + 1, sWS + 1))
            e("s_cselect_b32 s%d, s%d, s%d" % (sWoff, sWoff0, sWoff))
            e("s_cselect_b32 s%d, s%d, s%d" % (sWlds, sWlds0, sWlds))
        if 0 < i < 14:
            e("s_cmp_eq_u32 s%d, %d" % (sWwrap, i))
            e("s_cselect_b32 s%d, s%d, s%d" % (sWoff, sWoff0, sWoff))
            e("s_cselect_b32 s%d, s%d, s%d" % (sWlds, sWlds0, sWlds))
        if i == 14:
            e("s_cmp_eq_u32 s%d, 1" % sRole)
            e("s_cselect_b32 s%d, s%d, 0" % (sWS + 2, sWS + 2))
            e("s_cselect_b32 s%d, s%d, s%d" % (sWlds, sWlds, sVec))
            e("s_cselect_b32 s%d, s%d, 0" % (sWlstep, sWlstep))
        e("s_mov_b32 m0, s%d" % sWlds); e("s_add_u32 s%d, s%d, s%d" % (sWlds, sWlds, sWlstep))
        e("s_mov_b64 exec, %s" % sp(sWex))
        e("buffer_load_dwordx4 v%d, %s, s%d offen lds" % (vW, sp(sWS, 4), sWoff))
        e("s_mov_b64 exec, -1")
        e("s_add_u32 s%d, s%d, s%d" % (sWoff, sWoff, sWstep))

    def group(self, u):
        if u >= self.R:
            self.gwait(u)
        self.issue()
        if u < self.NX:
            self.xop(u)
        if self.clr2 and 2 <= u <= 6:
            self.clear_op(u - 2)

    def prologue(self):
        e = self.e
        e("s_cmp_ge_u32 s2, 256")
        e("s_cbranch_scc1 L_end")
        e("s_load_dwordx16 s[8:23], s[0:1], 0")
        e("s_load_dwordx8 s[24:31], s[0:1], 64")
        e("v_lshrrev_b32 v1, 6, v0")
        e("v_and_b32 v%d, 63, v0" % vL)
        e("s_nop 0")
        e("v_readfirstlane_b32 s%d, v1" % sWave)
        e("v_mov_b32 v9, 0"); e("s_nop 0"); e("v_readfirstlane_b32 s%d, v9" % sZ)
        x, r = sT0, sT1
        e("s_and_b32 s%d, s2, 7" % x)
        e("s_lshr_b32 s%d, s2, 3" % r)
        if int(self.o.get("rmap", 0)):
            e("s_mov_b32 s%d, 0" % sRole); e("s_mov_b32 s%d, 0" % sIdx)
            e("s_lshr_b32 s%d, s%d, 1" % (sT2, x))
            e("s_bitcmp1_b32 s%d, 0" % x); e("s_cbranch_scc1 L_rodd")
            e("s_and_b32 s%d, s%d, 15" % (sIdx, r)); e("s_lshl_b32 s%d, s%d, 2" % (sIdx, sIdx)); e("s_add_u32 s%d, s%d, s%d" % (sIdx, sIdx, sT2))
            e("s_cmp_lt_u32 s%d, 16" % r); e("s_cselect_b32 s%d, 1, 4" % sRole)
            e("s_branch L_rdone")
            self.lab("L_rodd")
            e("s_cmp_lt_u32 s%d, 14" % r); e("s_cbranch_scc0 L_rodd2")
            e("s_mov_b32 s%d, 2" % sRole); e("s_mul_i32 s%d, s%d, 14" % (sIdx, sT2)); e("s_add_u32 s%d, s%d, s%d" % (sIdx, sIdx, r))
            e("s_branch L_rdone")
            self.lab("L_rodd2")
            e("s_cmp_lt_u32 s%d, 22" % r); e("s_cbranch_scc0 L_rdone")
            e("s_sub_u32 s%d, s%d, 14" % (sT3, r)); e("s_lshr_b32 s%d, s%d, 2" % (sT4, sT3)); e("s_lshl_b32 s%d, s%d, 2" % (sT4, sT4)); e("s_add_u32 s%d, s%d, s%d" % (sT4, sT4, sT2))
            e("s_cmp_lt_u32 s%d, 7" % sT4); e("s_cbranch_scc0 L_rdone")
            e("s_mov_b32 s%d, 3" % sRole); e("s_and_b32 s%d, s%d, 3" % (sT3, sT3)); e("s_lshl_b32 s%d, s%d, 2" % (sIdx, sT4)); e("s_add_u32 s%d, s%d, s%d" % (sIdx, sIdx, sT3))
        else:
            e("s_mov_b32 s%d, 0" % sRole); e("s_mov_b32 s%d, 0" % sIdx)
            e("s_cmp_lt_u32 s%d, 8" % r); e("s_cbranch_scc0 L_r1")
            e("s_mov_b32 s%d, 1" % sRole); e("s_lshl_b32 s%d, s%d, 3" % (sIdx, r)); e("s_add_u32 s%d, s%d, s%d" % (sIdx, sIdx, x))
            e("s_branch L_rdone")
            self.lab("L_r1")
            e("s_cmp_lt_u32 s%d, 16" % r); e("s_cbranch_scc0 L_r2")
            e("s_sub_u32 s%d, s%d, 8" % (sT2, r))
            e("s_lshr_b32 s%d, s%d, 1" % (sT3, sT2)); e("s_lshl_b32 s%d, s%d, 3" % (sT3, sT3)); e("s_add_u32 s%d, s%d, s%d" % (sT3, sT3, x))
            e("s_cmp_lt_u32 s%d, 28" % sT3); e("s_cbranch_scc0 L_rdone")
            e("s_mov_b32 s%d, 2" % sRole); e("s_and_b32 s%d, s%d, 1" % (sT2, sT2)); e("s_lshl_b32 s%d, s%d, 1" % (sIdx, sT3))
            e("s_add_u32 s%d, s%d, s%d" % (sIdx, sIdx, sT2))
            e("s_branch L_rdone")
            self.lab("L_r2")
            e("s_cmp_lt_u32 s%d, 20" % r); e("s_cbranch_scc0 L_r3")
            e("s_cmp_lt_u32 s%d, 7" % x); e("s_cbranch_scc0 L_rdone")
            e("s_mov_b32 s%d, 3" % sRole); e("s_lshl_b32 s%d, s%d, 2" % (sIdx, x)); e("s_add_u32 s%d, s%d, s%d" % (sIdx, sIdx, r))
            e("s_sub_u32 s%d, s%d, 16" % (sIdx, sIdx))
            e("s_branch L_rdone")
            self.lab("L_r3")
            e("s_cmp_lt_u32 s%d, 28" % r); e("s_cbranch_scc0 L_rdone")
            e("s_mov_b32 s%d, 4" % sRole); e("s_sub_u32 s%d, s%d, 20" % (sIdx, r)); e("s_lshl_b32 s%d, s%d, 3" % (sIdx, sIdx))
            e("s_add_u32 s%d, s%d, s%d" % (sIdx, sIdx, x))
        self.lab("L_rdone")
        e("s_add_u32 s%d, s%d, s%d" % (sRole, sRole, sZ))
        e("s_lshr_b32 s%d, s2, 4" % sH); e("s_and_b32 s%d, s2, 15" % sC)
        e("s_mov_b32 s%d, %d" % (sT0, RING_ROLE)); e("s_mov_b32 s%d, 6" % sNS)
        e("s_cmp_eq_u32 s%d, 0" % sRole)
        e("s_cselect_b32 s%d, %d, s%d" % (sT0, RING_NONE, sT0)); e("s_cselect_b32 s%d, 8, s%d" % (sNS, sNS))
        e("s_lshl_b32 s%d, s%d, 12" % (sT1, sNS))
        e("s_mul_i32 s%d, s%d, s%d" % (sT2, sT1, sWave))
        e("s_add_u32 s%d, s%d, s%d" % (sRs, sT0, sT2))
        e("s_add_u32 s%d, s%d, s%d" % (sRe, sRs, sT1))
        e("s_mov_b32 s%d, s%d" % (sSlot, sRs)); e("s_mov_b32 s%d, s%d" % (sCs, sRs))
        e("s_lshl_b32 s%d, s%d, 10" % (sT2, sWave)); e("s_add_u32 s%d, s%d, %d" % (sVec, sT2, L_P))
        e("s_mov_b32 s%d, 0x00010001" % sM[0]); e("s_mov_b32 s%d, 0x00010001" % (sM[0] + 1))
        for u in range(1, 4):
            e("s_lshl_b64 %s, %s, %d" % (sp(sM[u]), sp(sM[0]), u))
        e("s_mov_b32 s%d, s%d" % (sPass, sZ))
        e("s_waitcnt lgkmcnt(0)")
        if not self.near:
            e("s_lshl_b32 s%d, s%d, 4" % (sT0, sH)); e("s_add_u32 s%d, s%d, s%d" % (sT0, sT0, sC))
            e("s_lshl_b32 s%d, s%d, 20" % (sT0, sT0))
            if self.swz:
                e("s_and_b32 s%d, s%d, 1" % (sT1, sWave)); e("s_lshl_b32 s%d, s%d, 12" % (sT1, sT1))
            else:
                e("s_lshl_b32 s%d, s%d, 12" % (sT1, sWave))
            e("s_add_u32 s%d, s%d, s%d" % (sT0, sT0, sT1))
        else:
            e("s_lshl_b32 s%d, s%d, 24" % (sT0, sH))
            e("s_lshr_b32 s%d, s2, 3" % sT1); e("s_and_b32 s%d, s%d, 1" % (sT1, sT1)); e("s_lshl_b32 s%d, s%d, 2" % (sT1, sT1))
            e("s_and_b32 s%d, s2, 3" % sT2); e("s_add_u32 s%d, s%d, s%d" % (sT1, sT1, sT2)); e("s_lshl_b32 s%d, s%d, 21" % (sT1, sT1))
            e("s_add_u32 s%d, s%d, s%d" % (sT0, sT0, sT1))
            e("s_lshr_b32 s%d, s2, 2" % sT1); e("s_xor_b32 s%d, s%d, s2" % (sT1, sT1))
            e("s_xor_b32 s%d, s%d, %d" % (sT1, sT1, int(self.o.get("cpol", 0)))); e("s_and_b32 s%d, s%d, 1" % (sT1, sT1))
            e("s_lshl_b32 s%d, s%d, 13" % (sT1, sT1)); e("s_add_u32 s%d, s%d, s%d" % (sT0, sT0, sT1))
            e("s_and_b32 s%d, s%d, 1" % (sT1, sWave)); e("s_lshl_b32 s%d, s%d, 12" % (sT1, sT1)); e("s_add_u32 s%d, s%d, s%d" % (sT0, sT0, sT1))
            e("s_lshr_b32 s%d, s%d, 1" % (sT1, sWave)); e("s_lshl_b32 s%d, s%d, 14" % (sT1, sT1)); e("s_add_u32 s%d, s%d, s%d" % (sT0, sT0, sT1))
        e("s_mov_b32 s%d, 0" % sAlloc); e("s_lshr_b32 s%d, s2, 3" % sAc); e("s_and_b32 s%d, s%d, 1" % (sT1, sWave)); e("s_add_u32 s%d, s%d, s%d" % (sAc, sAc, sT1))
        for (dst, src) in ((sKB, pK), (sVB, pV)):
            e("s_add_u32 s%d, s%d, s%d" % (dst, src, sT0)); e("s_addc_u32 s%d, s%d, 0" % (dst + 1, src + 1))
            e("s_sub_u32 s%d, s%d, 3072" % (dst, dst)); e("s_subb_u32 s%d, s%d, 0" % (dst + 1, dst + 1))
            e("s_and_b32 s%d, s%d, 0xffff" % (dst + 1, dst + 1))
        e("s_mov_b32 s%d, s%d" % (sCUR, sVB)); e("s_mov_b32 s%d, s%d" % (sCUR + 1, sVB + 1))
        e("s_mov_b32 s%d, %d" % (sCUR + 2, 3072 + 63 * self.stride + 4096 + (8192 if self.swz else 0))); e("s_mov_b32 s%d, 0x20000" % (sCUR + 3))
        if self.stag:
            e("s_mul_i32 s%d, s2, %d" % (sRot, self.stag)); e("s_and_b32 s%d, s%d, 63" % (sRot, sRot)); e("s_mul_i32 s%d, s%d, %d" % (sRot, sRot, self.stride))
        else:
            e("s_mov_b32 s%d, 0" % sRot)
        e("s_mov_b32 s%d, s%d" % (sOff, sRot)); e("s_mov_b32 s%d, %d" % (sLeft, 2 * NRES_T)); e("s_mov_b32 s%d, 0" % sSeg)
        self.vpat()

    def weights_setup(self, which):
        e0 = self.e
        sfx = "_" + which
        def e(x):
            for lb in ("L_wdone", "L_wO", "L_wB", "L_wC"):
                x = x.replace(lb, lb + sfx)
            e0(x)
        lab0 = self.lab
        self.lab = lambda n: lab0(n + sfx)
        e("s_mov_b32 s%d, 0x20000" % (sWS + 3))
        e("s_mov_b64 %s, -1" % sp(sWex))
        pdef = pWq if which == "start" else pW2
        e("s_mov_b32 s%d, s%d" % (sWS, pdef)); e("s_and_b32 s%d, s%d, 0xffff" % (sWS + 1, pdef + 1)); e("s_mov_b32 s%d, 0" % (sWS + 2))
        e("s_mov_b32 s%d, s%d" % (sWlds, sVec))
        e("s_mov_b32 s%d, 0" % sWlstep); e("s_mov_b32 s%d, 0" % sWoff); e("s_mov_b32 s%d, 0" % sWoff0); e("s_mov_b32 s%d, 0" % sWstep)
        e("s_mov_b32 s%d, 99" % sWwrap); e("s_mov_b32 s%d, 0" % sWlds0); e("s_mov_b64 %s, 0" % sp(sWo2))
        e("v_mov_b32 v%d, 0" % vW)
        e("s_cmp_eq_u32 s%d, 0" % sRole); e("s_cbranch_scc1 L_wdone")
        if which == "start" and self.gapw:
            e("s_cmp_eq_u32 s%d, 2" % sRole); e("s_cbranch_scc1 L_wdone")
            e("s_cmp_eq_u32 s%d, 3" % sRole); e("s_cbranch_scc1 L_wdone")
        e("s_mov_b32 s%d, 1024" % sWlstep)
        if which == "start":
            e("s_cmp_eq_u32 s%d, 1" % sRole); e("s_cbranch_scc1 L_wO")
        e("s_cmp_eq_u32 s%d, 2" % sRole); e("s_cbranch_scc1 L_wB")
        if which == "start":
            e("s_cmp_eq_u32 s%d, 3" % sRole); e("s_cbranch_scc1 L_wC")
        else:
            e("s_branch L_wC")
        if which == 'start':
            e("s_mov_b32 s%d, %d" % (sWS + 2, 448 * 8192))
            e("v_lshrrev_b32 v9, 3, v%d" % vL); e("v_lshlrev_b32 v%d, 13, v9" % vW)
            e("v_bfe_u32 v9, v%d, 4, 2" % vL); e("v_lshlrev_b32 v9, 1, v9")
            e("v_and_b32 v10, 7, v%d" % vL); e("v_xor_b32 v9, v9, v10"); e("v_lshl_add_u32 v%d, v9, 4, v%d" % (vW, vW))
            e("s_mul_i32 s%d, s%d, %d" % (sT1, sWave, 14 * 8 * 8192)); e("s_lshl_b32 s%d, s%d, 7" % (sT2, sIdx)); e("s_add_u32 s%d, s%d, s%d" % (sWoff, sT1, sT2))
            e("s_mov_b32 s%d, %d" % (sWstep, 8 * 8192))
            e("s_mul_i32 s%d, s%d, %d" % (sWlds, sWave, 14 * 1024)); e("s_add_u32 s%d, s%d, %d" % (sWlds, sWlds, L_W))
            e("s_branch L_wdone")
        self.lab("L_wC")
        e("s_mov_b32 s%d, s%d" % (sWS, pW2)); e("s_and_b32 s%d, s%d, 0xffff" % (sWS + 1, pW2 + 1)); e("s_mov_b32 s%d, %d" % (sWS + 2, 1792 * 896))
        e("v_lshrrev_b32 v9, 1, v%d" % vL); e("v_mul_u32_u24 v%d, 896, v9" % vW)
        e("v_and_b32 v9, 1, v%d" % vL); e("v_lshl_add_u32 v%d, v9, 4, v%d" % (vW, vW))
        e("s_mul_i32 s%d, s%d, %d" % (sT1, sWave, 448 * 896)); e("s_lshl_b32 s%d, s%d, 5" % (sT2, sIdx)); e("s_add_u32 s%d, s%d, s%d" % (sWoff, sT1, sT2))
        e("s_mov_b32 s%d, %d" % (sWstep, 32 * 896))
        e("s_mul_i32 s%d, s%d, %d" % (sWlds, sWave, C_WAVE)); e("s_add_u32 s%d, s%d, %d" % (sWlds, sWlds, L_W))
        e("s_mov_b32 s%d, s%d" % (sWoff0, sWoff)); e("s_mov_b32 s%d, s%d" % (sWlds0, sWlds))
        e("s_and_b32 s%d, s%d, 3" % (sT0, sIdx)); e("s_mul_i32 s%d, s%d, 7" % (sT0, sT0)); e("s_add_u32 s%d, s%d, 1" % (sT0, sT0)); e("s_lshr_b32 s%d, s%d, 1" % (sT0, sT0))
        e("s_sub_u32 s%d, 14, s%d" % (sWwrap, sT0))
        e("s_mul_i32 s%d, s%d, %d" % (sT1, sT0, 32 * 896)); e("s_add_u32 s%d, s%d, s%d" % (sWoff, sWoff, sT1))
        e("s_lshl_b32 s%d, s%d, 10" % (sT1, sT0)); e("s_add_u32 s%d, s%d, s%d" % (sWlds, sWlds, sT1))
        e("s_branch L_wdone")
        if which == 'start':
            self.lab("L_wO")
            e("s_mov_b32 s%d, s%d" % (sWS, pWo)); e("s_and_b32 s%d, s%d, 0xffff" % (sWS + 1, pWo + 1)); e("s_mov_b32 s%d, %d" % (sWS + 2, 4096 * 896))
            e("v_lshlrev_b32 v%d, 4, v%d" % (vW, vL))
            e("s_lshl_b32 s%d, s%d, 6" % (sT1, sIdx)); e("s_lshl_b32 s%d, s%d, 4" % (sT2, sWave)); e("s_add_u32 s%d, s%d, s%d" % (sT1, sT1, sT2))
            e("s_mul_i32 s%d, s%d, 896" % (sWoff, sT1))
            e("s_mov_b32 s%d, 896" % sWstep); e("s_mov_b32 s%d, %d" % (sWlstep, O_ROW))
            e("s_mul_i32 s%d, s%d, %d" % (sWlds, sWave, 16 * O_ROW)); e("s_add_u32 s%d, s%d, %d" % (sWlds, sWlds, L_W))
            e("s_mov_b32 s%d, -1" % sWex); e("s_mov_b32 s%d, 0x00ffffff" % (sWex + 1))
            e("s_branch L_wdone")
        self.lab("L_wB")
        e("s_bitcmp1_b32 s%d, 0" % sIdx)
        e("s_cselect_b32 s%d, s%d, s%d" % (sWS, pW3, pW1)); e("s_cselect_b32 s%d, s%d, s%d" % (sWS + 1, pW3 + 1, pW1 + 1))
        e("s_cselect_b32 s%d, s%d, s%d" % (sWo2, pW1, pW3)); e("s_cselect_b32 s%d, s%d, s%d" % (sWo2 + 1, pW1 + 1, pW3 + 1))
        e("s_cselect_b32 s%d, %d, 0" % (sT3, B_IMG3)); e("s_cselect_b32 s%d, 0, %d" % (sT4, B_IMG3))
        e("s_and_b32 s%d, s%d, 0xffff" % (sWS + 1, sWS + 1)); e("s_and_b32 s%d, s%d, 0xffff" % (sWo2 + 1, sWo2 + 1))
        e("s_mov_b32 s%d, %d" % (sWS + 2, 448 * 3584))
        e("v_lshrrev_b32 v9, 2, v%d" % vL); e("v_mul_u32_u24 v%d, 3584, v9" % vW)
        e("v_and_b32 v9, 3, v%d" % vL); e("v_lshl_add_u32 v%d, v9, 4, v%d" % (vW, vW))
        e("s_mul_i32 s%d, s%d, %d" % (sT1, sWave, 7 * 16 * 3584)); e("s_lshl_b32 s%d, s%d, 6" % (sT2, sIdx)); e("s_add_u32 s%d, s%d, s%d" % (sWoff, sT1, sT2))
        e("s_mov_b32 s%d, s%d" % (sWoff0, sWoff))
        e("s_mov_b32 s%d, %d" % (sWstep, 16 * 3584))
        e("s_mul_i32 s%d, s%d, %d" % (sWlds, sWave, 7 * 1024)); e("s_add_u32 s%d, s%d, %d" % (sWlds, sWlds, L_W))
        e("s_add_u32 s%d, s%d, s%d" % (sWlds0, sWlds, sT4)); e("s_add_u32 s%d, s%d, s%d" % (sWlds, sWlds, sT3))
        self.lab("L_wdone")
        self.lab = lab0

    def clear_mailboxes(self):
        e = self.e
        e("v_mov_b32 v10, -1")
        e("s_lshl_b32 s%d, s%d, 2" % (sT0, sH)); e("s_add_u32 s%d, s%d, s%d" % (sT0, sT0, sWave)); e("s_lshl_b32 s%d, s%d, 4" % (sT0, sT0))
        e("s_add_u32 s%d, s%d, s%d" % (sT0, sT0, sC)); e("s_mul_i32 s%d, s%d, %d" % (sT0, sT0, M1_SLOT))
        self.addr(sA, pWs, M1, [sT0])
        e("v_lshlrev_b32 v8, 2, v%d" % vL)
        e("v_and_b32 v9, 1, v%d" % vL); e("v_lshlrev_b32 v9, 2, v9"); e("v_add_u32 v9, 256, v9")
        for rho in range(2):
            e("global_store_dword v8, v10, %s sc1" % sp(sA))
            e("global_store_dword v9, v10, %s sc1" % sp(sA))
            if rho == 0:
                e("s_add_u32 s%d, s%d, 0x%x" % (sA, sA, M1_R)); e("s_addc_u32 s%d, s%d, 0" % (sA + 1, sA + 1))
        if self.p2n:
            e("s_lshl_b32 s%d, s2, 12" % sT0); e("s_lshl_b32 s%d, s%d, 10" % (sT1, sWave))
            self.addr(sA, pWs, M7, [sT0, sT1])
            for k in range(4):
                e("global_store_dword v8, v10, %s offset:%d sc1" % (sp(sA), k * 256))
        e("s_cmp_eq_u32 s%d, 0" % sWave); e("s_cbranch_scc0 L_cdone")
        e("s_cmp_eq_u32 s%d, 0" % sRole); e("s_cbranch_scc1 L_cdone")
        e("v_and_b32 v8, 31, v%d" % vL); e("v_lshlrev_b32 v8, 2, v8")
        e("s_lshl_b32 s%d, s%d, 7" % (sT0, sIdx))
        e("v_add_u32 v8, s%d, v8" % sT0)
        e("s_cmp_eq_u32 s%d, 1" % sRole); e("s_cbranch_scc1 L_cA")
        e("s_cmp_eq_u32 s%d, 2" % sRole); e("s_cbranch_scc1 L_cB")
        e("s_cmp_eq_u32 s%d, 3" % sRole); e("s_cbranch_scc1 L_cC")
        for off in (M3, M3 + MR, M6, M6 + MR):
            self.addr(sA, pWs, off); e("global_store_dword v8, v10, %s sc1" % sp(sA))
        e("s_branch L_cdone")
        self.lab("L_cA")
        if self.p2n == 2:
            lq = self.nl("Lc8")
            e("s_and_b32 s%d, s%d, 3" % (sT1, sIdx)); e("s_cmp_lt_u32 s%d, 2" % sT1); e("s_cbranch_scc0 %s" % lq)
            e("s_lshr_b32 s%d, s%d, 2" % (sT0, sIdx)); e("s_lshl_b32 s%d, s%d, 7" % (sT0, sT0)); e("s_lshl_b32 s%d, s%d, 2" % (sT1, sT1))
            self.addr(sA, pWs, M8, [sT0, sT1])
            e("v_mov_b32 v9, 0")
            e("global_store_dword v9, v10, %s sc1" % sp(sA))
            self.lab(lq)
        e("s_mul_i32 s%d, s%d, %d" % (sT0, sIdx, M2_SLOT))
        e("v_lshlrev_b32 v8, 2, v%d" % vL)
        for rho in range(2):
            self.addr(sA, pWs, M2 + rho * M2_R, [sT0])
            for k in range(M2_SLOT // 256):
                e("global_store_dword v8, v10, %s offset:%d sc1" % (sp(sA), k * 256))
        e("s_branch L_cdone")
        self.lab("L_cB")
        for off in (M4, M4 + MR):
            self.addr(sA, pWs, off); e("global_store_dword v8, v10, %s sc1" % sp(sA))
        e("s_branch L_cdone")
        self.lab("L_cC")
        self.addr(sA, pWs, M5); e("global_store_dword v8, v10, %s sc1" % sp(sA))
        self.lab("L_cdone")
        e("v_mov_b32 v11, 0")
        e("v_lshlrev_b32 v8, 2, v%d" % vL); e("v_add_u32 v8, %d, v8" % L_Z)
        e("ds_write_b32 v8, v11"); e("ds_write_b32 v8, v11 offset:256")

    def clear_op(self, k):
        e = self.e
        if k == 0:
            for d in range(4):
                e("v_mov_b32 v%d, -1" % (20 + d))
        if k in (0, 1):
            e("s_lshl_b32 s%d, s%d, 2" % (sT0, sH)); e("s_add_u32 s%d, s%d, s%d" % (sT0, sT0, sWave)); e("s_lshl_b32 s%d, s%d, 4" % (sT0, sT0))
            e("s_add_u32 s%d, s%d, s%d" % (sT0, sT0, sC)); e("s_mul_i32 s%d, s%d, %d" % (sT0, sT0, M1_SLOT))
            if k:
                e("s_add_u32 s%d, s%d, 0x%x" % (sT0, sT0, M1 + M1_R))
            e("v_min_u32 v25, 16, v%d" % vL)
        elif k == 2:
            e("s_lshl_b32 s%d, s2, 12" % sT0); e("s_lshl_b32 s%d, s%d, 10" % (sT1, sWave)); e("s_add_u32 s%d, s%d, s%d" % (sT0, sT0, sT1)); e("s_add_u32 s%d, s%d, 0x%x" % (sT0, sT0, M7))
            e("v_mov_b32 v25, v%d" % vL)
        elif k == 3:
            e("s_lshl_b32 s%d, s2, 12" % sT0); e("s_lshl_b32 s%d, s%d, 10" % (sT1, sWave)); e("s_add_u32 s%d, s%d, s%d" % (sT0, sT0, sT1)); e("s_add_u32 s%d, s%d, 0x%x" % (sT0, sT0, M7))
            e("s_lshl_b32 s%d, s%d, 7" % (sT2, sIdx))
            e("s_and_b32 s%d, s%d, 1" % (sT3, sWave)); e("s_lshr_b32 s%d, s%d, 1" % (sT4, sWave))
            e("s_mul_i32 s%d, s%d, 0x%x" % (sT1, sT4, M2_R)); e("s_lshl_b32 s%d, s%d, 11" % (sT5, sIdx)); e("s_add_u32 s%d, s%d, s%d" % (sT1, sT1, sT5))
            e("s_lshl_b32 s%d, s%d, 10" % (sT5, sT3)); e("s_add_u32 s%d, s%d, s%d" % (sT1, sT1, sT5)); e("s_add_u32 s%d, s%d, 0x%x" % (sT1, sT1, M2))
            e("s_cmp_eq_u32 s%d, 1" % sRole); e("s_cselect_b32 s%d, s%d, s%d" % (sT0, sT1, sT0))
            e("s_lshl_b32 s%d, s%d, 13" % (sT1, sT3)); e("s_add_u32 s%d, s%d, s%d" % (sT1, sT1, sT2)); e("s_add_u32 s%d, s%d, 0x%x" % (sT5, sT1, M4))
            e("s_cmp_eq_u32 s%d, 2" % sRole); e("s_cselect_b32 s%d, s%d, s%d" % (sT0, sT5, sT0))
            e("s_add_u32 s%d, s%d, 0x%x" % (sT5, sT2, M5))
            e("s_cmp_eq_u32 s%d, 3" % sRole); e("s_cselect_b32 s%d, s%d, s%d" % (sT0, sT5, sT0))
            e("s_mul_i32 s%d, s%d, 0x%x" % (sT5, sT4, M6 - M3)); e("s_add_u32 s%d, s%d, s%d" % (sT5, sT5, sT1)); e("s_add_u32 s%d, s%d, 0x%x" % (sT5, sT5, M3))
            e("s_cmp_eq_u32 s%d, 4" % sRole); e("s_cselect_b32 s%d, s%d, s%d" % (sT0, sT5, sT0))
            e("v_and_b32 v25, 7, v%d" % vL)
            e("s_cmp_lt_u32 s%d, 2" % sRole); e("s_cselect_b64 vcc, -1, 0")
            e("v_cndmask_b32 v25, v25, v%d, vcc" % vL)
        else:
            e("s_lshl_b32 s%d, s2, 12" % sT0); e("s_lshl_b32 s%d, s%d, 10" % (sT1, sWave)); e("s_add_u32 s%d, s%d, s%d" % (sT0, sT0, sT1)); e("s_add_u32 s%d, s%d, 0x%x" % (sT0, sT0, M7))
            e("s_lshl_b32 s%d, s2, 7" % sT1); e("s_add_u32 s%d, s%d, 0x%x" % (sT1, sT1, M8))
            e("s_cmp_lt_u32 s2, 16"); e("s_cselect_b32 s%d, s%d, s%d" % (sT0, sT1, sT0))
            e("v_and_b32 v25, 7, v%d" % vL)
        e("v_lshlrev_b32 v25, 4, v25"); e("v_add_u32 v25, s%d, v25" % sT0)
        e("global_store_dwordx4 v25, v[20:23], %s sc1" % sp(pWs))

    def lds_zero(self):
        e = self.e
        e("v_mov_b32 v11, 0")
        e("v_lshlrev_b32 v8, 2, v%d" % vL); e("v_add_u32 v8, %d, v8" % L_Z)
        e("ds_write_b32 v8, v11"); e("ds_write_b32 v8, v11 offset:256")

    def count_cleared(self):
        e = self.e
        e("s_waitcnt lgkmcnt(0)")
        e("s_barrier")
        e("s_cmp_eq_u32 s%d, 0" % sWave); e("s_cbranch_scc0 L_cnt_done")
        e("v_mov_b32 v10, 0"); e("v_mov_b32 v11, 1")
        e("s_mov_b64 exec, 1")
        e("global_atomic_add v10, v11, %s" % sp(pDbg))
        e("s_mov_b64 exec, -1")
        self.lab("L_cnt_done")

    def layernorm_to_vec(self):
        e = self.e
        X = 40
        for d in range(4):
            e("v_lshlrev_b32 v%d, 16, v%d" % (X + 2 * d, 32 + d))
            e("v_and_b32 v%d, 0xffff0000, v%d" % (X + 2 * d + 1, 32 + d))
        e("v_cmp_gt_u32 vcc, 56, v%d" % vL)
        e("v_add_f32 v48, v40, v41"); e("v_add_f32 v49, v42, v43"); e("v_add_f32 v50, v44, v45"); e("v_add_f32 v51, v46, v47")
        e("v_add_f32 v48, v48, v49"); e("v_add_f32 v50, v50, v51"); e("v_add_f32 v48, v48, v50")
        e("v_cndmask_b32 v48, 0, v48, vcc")
        self.allreduce64(48, 49, "v_add_f32")
        e("v_mul_f32 v48, 0x3b124925, v48")
        for i in range(8):
            e("v_sub_f32 v%d, v%d, v48" % (52 + i, X + i))
        e("v_mul_f32 v49, v52, v52")
        for i in range(1, 8):
            e("v_fmac_f32 v49, v%d, v%d" % (52 + i, 52 + i))
        e("v_cndmask_b32 v49, 0, v49, vcc")
        self.allreduce64(49, 50, "v_add_f32")
        e("v_mul_f32 v49, 0x3b124925, v49")
        self.bf16r(48, 48, 50)
        self.bf16r(49, 49, 50)
        e("v_add_f32 v49, 0x3727c5ac, v49")
        self.bf16r(49, 49, 50)
        e("v_sqrt_f32 v49, v49"); self.nop(1)
        self.bf16r(49, 49, 50)
        e("v_rcp_f32 v49, v49")
        for i in range(8):
            e("v_sub_f32 v%d, v%d, v48" % (52 + i, X + i))
        for i in range(0, 8, 2):
            e("v_cvt_pk_bf16_f32 v%d, v%d, v%d" % (36 + i // 2, 52 + i, 53 + i))
        for d in range(4):
            e("v_lshlrev_b32 v%d, 16, v%d" % (52 + 2 * d, 36 + d))
            e("v_and_b32 v%d, 0xffff0000, v%d" % (53 + 2 * d, 36 + d))
        for i in range(8):
            e("v_mul_f32 v%d, v%d, v49" % (52 + i, 52 + i))
        for i in range(0, 8, 2):
            e("v_cvt_pk_bf16_f32 v%d, v%d, v%d" % (36 + i // 2, 52 + i, 53 + i))
        e("v_lshlrev_b32 v48, 4, v%d" % vL); e("v_add_u32 v48, s%d, v48" % sVec)
        e("ds_write_b128 v48, v[36:39]")
        e("s_waitcnt lgkmcnt(0)")

    def gemv_chain(self, n, a_off, b_step, b_second, acc=8):
        e = self.e
        m = 0
        first = True
        while m < n:
            nb = min(4, n - m)
            for k in range(nb):
                o0, o1 = a_off(m + k)
                e("ds_read2_b64 v[%d:%d], v6 offset0:%d offset1:%d" % (32 + 4 * k, 35 + 4 * k, o0, o1))
                e("ds_read_b64_tr_b16 v[%d:%d], v7 offset:%d" % (48 + 4 * k, 49 + 4 * k, (m + k) * b_step))
                e("ds_read_b64_tr_b16 v[%d:%d], v7 offset:%d" % (50 + 4 * k, 51 + 4 * k, (m + k) * b_step + b_second))
            e("s_waitcnt lgkmcnt(0)")
            for k in range(nb):
                c = "0" if first else vr(acc, 4)
                e("v_mfma_f32_16x16x32_bf16 %s, %s, %s, %s" % (vr(acc, 4), vr(32 + 4 * k, 4), vr(48 + 4 * k, 4), c))
                first = False
            m += nb
        self.nop(8)

    def lane_rc(self):
        e = self.e
        e("v_lshrrev_b32 v10, 4, v%d" % vL); e("v_bfe_u32 v11, v%d, 2, 2" % vL)
        e("v_and_b32 v12, 3, v%d" % vL); e("v_and_b32 v13, 15, v%d" % vL)

    def stage_D(self, rho_reg_is_next):
        e = self.e
        self.layernorm_to_vec()
        self.lane_rc()
        e("v_lshlrev_b32 v6, 3, v10"); e("v_add_u32 v6, s%d, v6" % sVec)
        e("v_lshl_add_u32 v7, v10, 2, v11")
        e("v_bfe_u32 v14, v7, 1, 2"); e("v_xor_b32 v14, s%d, v14" % sWave)
        e("v_lshlrev_b32 v7, 7, v7"); e("v_lshl_add_u32 v7, v14, 5, v7"); e("v_lshl_add_u32 v7, v12, 3, v7"); e("v_add_u32 v7, %d, v7" % L_W)
        self.gemv_chain(14, lambda m: (8 * m, 8 * m + 4), 4096, 2048)
        e("v_mov_b32_dpp v9, v8 quad_perm:[1,0,3,2] row_mask:0xf bank_mask:0xf")
        e("v_cvt_pk_bf16_f32 v9, v8, v9")
        e("v_mov_b32 v14, -2"); e("v_min_u32 v9, v9, v14")
        e("s_lshl_b32 s%d, s%d, 7" % (sT0, sIdx)); e("s_lshl_b32 s%d, s%d, 5" % (sT1, sWave)); e("s_add_u32 s%d, s%d, s%d" % (sT0, sT0, sT1))
        e("v_lshlrev_b32 v14, 1, v%d" % vL); e("v_add_u32 v14, s%d, v14" % sT0)
        e("s_mov_b64 exec, 0x5555")
        e("global_store_dword v14, v9, %s sc1" % sp(sA))
        e("s_mov_b64 exec, -1")

    def p1a(self):
        e = self.e
        self.lab("L_p1a_code")
        e("v_lshrrev_b32 v%d, 5, v%d" % (vPh, vL)); e("v_lshlrev_b32 v%d, 12, v%d" % (vPh, vPh))
        e("v_and_b32 v%d, 31, v%d" % (vAd, vL)); e("v_lshl_add_u32 v%d, v%d, 3, v%d" % (vPh, vAd, vPh))
        R = self.R
        for T in range(NRES_T):
            u0, u1 = 2 * T + R, 2 * T + R + 1
            if self.p2n == 1 and T == 2:
                self.now(sTm0)
            if T == 12:
                self.gwait(u0)
                lq = self.nl("Lnq")
                e("s_mov_b32 s%d, s%d" % (sQok, sZ))
                e("v_cmp_gt_u32 vcc, 256, v36")
                e("s_cbranch_vccnz %s" % lq)
                e("s_add_u32 s%d, s%d, 1" % (sQok, sZ))
                e("s_lshl_b32 s%d, s%d, 9" % (sT1, sH))
                self.addr(sA, pWs, M6, [sT1])
                e("v_and_b32 v37, 31, v%d" % vL); e("v_lshlrev_b32 v37, 4, v37")
                e("global_load_dwordx4 v[32:35], v37, %s sc1" % sp(sA))
                self.lab(lq)
                self.issue()
            elif T == 10:
                self.gwait(u0)
                e("v_mov_b32 v37, 0")
                e("global_load_dword v36, v37, %s sc1" % sp(pDbg))
                self.issue()
            else:
                self.group(u0)
            if T == (3 if self.clr2 else 1):
                self.gwait(u1)
                self.count_cleared()
                self.issue()
                if u1 < self.NX:
                    self.xop(u1)
                if self.clr2 and 2 <= u1 <= 6:
                    self.clear_op(u1 - 2)
            elif T == 9:
                assert u1 - R >= 16
                self.gwait(u1)
                e("s_cmp_eq_u32 s%d, 4" % sRole); e("s_cbranch_scc0 L_noq1")
                e("s_barrier")
                if int(self.o.get("gap2", 1)):
                    e("s_call_b64 %s, L_stageD_prep" % sp(sRet2))
                    e("s_lshl_b32 s%d, s%d, 7" % (sT0, sIdx)); e("s_lshl_b32 s%d, s%d, 5" % (sT1, sWave))
                    self.addr(sB, pWs, M6, [sT0] if self.onest else [sT0, sT1])
                    e("s_call_b64 %s, L_stageD_rest" % sp(sRet2))
                else:
                    self.addr(sA, pWs, M6)
                    e("s_call_b64 %s, L_stageD" % sp(sRet2))
                self.lab("L_noq1")
                self.issue()
                e("v_lshrrev_b32 v%d, 5, v%d" % (vPh, vL)); e("v_lshlrev_b32 v%d, 12, v%d" % (vPh, vPh))
                e("v_and_b32 v%d, 31, v%d" % (vAd, vL)); e("v_lshl_add_u32 v%d, v%d, 3, v%d" % (vPh, vAd, vPh))
            else:
                self.group(u1)
            e("v_add_u32 v%d, s%d, v%d" % (vAd, sCs, vPh))
            if self.o.get("pstamps") and T in (0, 3, 8):
                self.stamp({0: 14, 3: 15, 8: 1}[T])
            for t in range(16):
                e("ds_read_b64_tr_b16 %s, v%d offset:%d" % (res_reg(T >> 1, t, T & 1), vAd, t * 256))
            self.adv_cs()
            e("s_waitcnt lgkmcnt(0)")
        if self.p2n == 1:
            self.now(sTm1, sTm0)

    def gather_q(self):
        e = self.e
        e("s_cmp_eq_u32 s%d, 0" % sPass); e("s_cbranch_scc0 L_gq")
        e("s_cmp_eq_u32 s%d, 1" % sQok); e("s_cbranch_scc0 L_gq_slow")
        e("v_max3_u32 v36, v32, v33, v34"); e("v_max_u32 v36, v36, v35")
        e("v_cmp_eq_u32 vcc, -1, v36")
        e("v_and_b32 v8, 31, v%d" % vL); e("v_lshlrev_b32 v8, 4, v8")
        e("s_cbranch_vccz L_gq_write")
        self.lab("L_gq_slow")
        L = self.nl("Lc"); Dn = self.nl("Lcd")
        e("v_mov_b32 v8, 0"); e("s_mov_b32 s%d, 0" % sSpin)
        self.lab(L)
        e("global_load_dword v9, v8, %s sc1" % sp(pDbg))
        e("s_waitcnt vmcnt(0)")
        e("v_cmp_gt_u32 vcc, 256, v9")
        e("s_cbranch_vccz %s" % Dn)
        e("s_add_u32 s%d, s%d, 1" % (sSpin, sSpin)); e("s_cmp_lt_u32 s%d, %d" % (sSpin, SPIN_LIMIT)); e("s_cbranch_scc1 %s" % L)
        self.lab(Dn)
        self.lab("L_gq")
        if self.q1w:
            e("s_cmp_eq_u32 s%d, 1" % sPass); e("s_cbranch_scc0 L_gq_p0")
            e("s_cmp_eq_u32 s%d, 0" % sWave); e("s_cbranch_scc0 L_gq_bar")
            e("s_lshl_b32 s%d, s%d, 9" % (sT1, sH))
            self.addr(sA, pWs, M6 + MR, [sT1])
            e("s_lshl_b32 s%d, s%d, 7" % (sT0, sH))
            self.addr(sB, pWs, M8, [sT0])
            e("v_and_b32 v8, 31, v%d" % vL); e("v_lshlrev_b32 v8, 4, v8"); e("v_mov_b32 v9, 0")
            self.ptmp = 10
            self.poll2(lambda b: ["global_load_dwordx4 v[%d:%d], v8, %s sc1" % (b, b + 3, sp(sA)),
                                  "global_load_dwordx2 v[%d:%d], v9, %s sc1" % (b + 4, b + 5, sp(sB))], 6, (20, 26), 32, "Qq", sleep=int(self.o.get("qsleep", 0)))
            self.ptmp = 31
            for k in range(4):
                e("ds_write_b128 v8, v[32:35] offset:%d" % (L_Q + 512 * k))
            e("v_mov_b32 v9, %d" % (L_SM + 32))
            e("ds_write_b64 v9, v[36:37]")
            e("s_waitcnt lgkmcnt(0)")
            self.lab("L_gq_bar")
            e("s_barrier")
            e("v_mov_b32 v9, %d" % (L_SM + 32))
            e("ds_read_b64 v[38:39], v9")
            e("s_waitcnt lgkmcnt(0)")
            self.near_setup()
            e("s_branch L_gq_end")
            self.lab("L_gq_p0")
        e("s_lshl_b32 s%d, s%d, 13" % (sT0, sPass)); e("s_lshl_b32 s%d, s%d, 9" % (sT1, sH))
        self.addr(sA, pWs, M6, [sT0, sT1])
        e("v_and_b32 v8, 31, v%d" % vL); e("v_lshlrev_b32 v8, 4, v8")
        lds_ = ["global_load_dwordx4 v[32:35], v8, %s sc1" % sp(sA)]
        chk = [32, 33, 34, 35]
        if self.p2n == 1:
            e("v_mov_b32 v37, 0")
            lds_.append("global_load_dwordx2 v[38:39], v37, %s offset:16 sc1" % sp(pDbg))
        if self.p2n == 2:
            e("s_lshl_b32 s%d, s%d, 7" % (sT0, sH))
            self.addr(sB, pWs, M8, [sT0])
            e("s_cmp_eq_u32 s%d, 0" % sPass)
            e("s_cselect_b32 s%d, s%d, s%d" % (sB, sA, sB)); e("s_cselect_b32 s%d, s%d, s%d" % (sB + 1, sA + 1, sB + 1))
            e("v_mov_b32 v37, 0")
            lds_.append("global_load_dwordx2 v[38:39], v37, %s sc1" % sp(sB))
            chk += [38, 39]
        self.poll(lds_, chk, 36, "Pq")
        if self.p2n and not self.q1w:
            self.near_setup()
        self.lab("L_gq_write")
        e("s_lshl_b32 s%d, s%d, 9" % (sT0, sWave))
        e("v_add_u32 v8, s%d, v8" % sT0)
        e("ds_write_b128 v8, v[32:35] offset:%d" % L_Q)
        e("s_waitcnt lgkmcnt(0)")
        if self.q1w:
            self.lab("L_gq_end")

    def near_setup(self):
        e = self.e
        d = self.nl("Lns")
        e("s_cmp_eq_u32 s%d, 1" % sPass); e("s_cbranch_scc0 %s" % d)
        if self.p2n == 1:
            e("v_readfirstlane_b32 s%d, v38" % sT0); e("v_readfirstlane_b32 s%d, v39" % sT1)
            e("s_nop 3")
            e("s_cmp_gt_u32 s%d, 128" % sT0); e("s_cselect_b32 s%d, 1, 0" % sT0)
            e("s_cmp_gt_u32 s%d, 128" % sT1); e("s_cselect_b32 s%d, 1, 0" % sT1)
        else:
            e("v_readfirstlane_b32 s%d, v38" % sT0); e("v_readfirstlane_b32 s%d, v39" % sT1)
            e("s_nop 3")
            e("s_and_b32 s%d, s%d, 1" % (sT1, sT1)); e("s_and_b32 s%d, s%d, 1" % (sT0, sT0))
        if "forceK" in self.o:
            e("s_mov_b32 s%d, %d" % (sT0, int(self.o["forceK"]))); e("s_mov_b32 s%d, %d" % (sT1, int(self.o["forceV"])))
        e("s_xor_b32 s%d, s%d, s%d" % (sXch, sT0, sT1))
        e("s_lshr_b32 s%d, s2, 1" % sT2); e("s_lshr_b32 s%d, s2, 2" % sT3); e("s_xor_b32 s%d, s%d, s%d" % (sT2, sT2, sT3)); e("s_and_b32 s%d, s%d, 1" % (sT2, sT2))
        e("s_xor_b32 s%d, s%d, s%d" % (sT0, sT0, sT2)); e("s_xor_b32 s%d, s%d, s%d" % (sT1, sT1, sT2))
        if self.swz:
            e("s_lshl_b32 s%d, s%d, 13" % (sT0, sT0)); e("s_lshl_b32 s%d, s%d, 13" % (sT1, sT1))
        else:
            e("s_and_b32 s%d, s%d, 1" % (sT2, sWave))
            e("s_lshl_b32 s%d, s%d, 1" % (sT0, sT0)); e("s_add_u32 s%d, s%d, s%d" % (sT0, sT0, sT2)); e("s_sub_i32 s%d, s%d, s%d" % (sT0, sT0, sWave)); e("s_lshl_b32 s%d, s%d, 12" % (sT0, sT0))
            e("s_lshl_b32 s%d, s%d, 1" % (sT1, sT1)); e("s_add_u32 s%d, s%d, s%d" % (sT1, sT1, sT2)); e("s_sub_i32 s%d, s%d, s%d" % (sT1, sT1, sWave)); e("s_lshl_b32 s%d, s%d, 12" % (sT1, sT1))
        e("s_xor_b32 s%d, s2, 4" % sT3); e("s_cmp_lt_u32 s%d, 2" % sWave); e("s_cselect_b32 s%d, s2, s%d" % (sT3, sT3))
        e("s_mul_i32 s%d, s%d, %d" % (sRotN, sT3, self.stag)); e("s_and_b32 s%d, s%d, 63" % (sRotN, sRotN)); e("s_mul_i32 s%d, s%d, %d" % (sRotN, sRotN, self.stride))
        e("s_sub_i32 s%d, s%d, s2" % (sT3, sT3)); e("s_lshl_b32 s%d, s%d, 20" % (sT3, sT3))
        e("s_add_i32 s%d, s%d, s%d" % (sT0, sT0, sT3)); e("s_add_i32 s%d, s%d, s%d" % (sT1, sT1, sT3))
        for (dst, src, dl) in ((sKN, sKB, sT0), (sVN, sVB, sT1)):
            e("s_ashr_i32 s%d, s%d, 31" % (sT2, dl))
            e("s_add_u32 s%d, s%d, s%d" % (dst, src, dl)); e("s_addc_u32 s%d, s%d, s%d" % (dst + 1, src + 1, sT2))
            e("s_and_b32 s%d, s%d, 0xffff" % (dst + 1, dst + 1))
        self.lab(d)

    def kphase(self):
        e = self.e
        if self.p2n == 1:
            self.now(sTm0)
        vQ, vZ = 16, 17
        if not self.klin:
            e("v_bfe_u32 v%d, v%d, 3, 1" % (vPh, vL)); e("v_lshlrev_b32 v%d, 12, v%d" % (vPh, vPh))
            e("v_lshrrev_b32 v%d, 4, v%d" % (vAd, vL)); e("v_lshl_add_u32 v%d, v%d, 7, v%d" % (vPh, vAd, vPh))
            e("v_lshlrev_b32 v%d, 4, v%d" % (vQ, vAd))
            e("v_and_b32 v%d, 7, v%d" % (vAd, vL)); e("v_lshl_add_u32 v%d, v%d, 4, v%d" % (vPh, vAd, vPh))
        else:
            e("v_bfe_u32 v%d, v%d, 3, 1" % (vPh, vL)); e("v_lshlrev_b32 v%d, 12, v%d" % (vPh, vPh))
            e("v_and_b32 v%d, 7, v%d" % (vAd, vL)); e("v_lshl_add_u32 v%d, v%d, 9, v%d" % (vPh, vAd, vPh))
            e("v_lshrrev_b32 v%d, 4, v%d" % (vQ, vL)); e("v_and_b32 v18, 3, v%d" % vL); e("v_xor_b32 v18, v18, v%d" % vQ)
            e("v_lshl_add_u32 v%d, v18, 4, v%d" % (vPh, vPh))
            e("v_bfe_u32 v18, v%d, 2, 1" % vL); e("v_lshlrev_b32 v18, 6, v18")
            e("v_sub_u32 v19, v%d, v18" % vPh); e("v_add_u32 v%d, v%d, v18" % (vPh, vPh)); e("v_mov_b32 v18, v19")
            e("v_lshlrev_b32 v%d, 4, v%d" % (vQ, vQ))
        e("s_lshl_b32 s%d, s%d, 9" % (sT0, sWave)); e("s_add_u32 s%d, s%d, %d" % (sT0, sT0, L_Q))
        e("v_add_u32 v%d, s%d, v%d" % (vQ, sT0, vQ))
        e("v_mov_b32 v%d, %d" % (vZ, L_Z))
        for i in range(8):
            e("v_mov_b32 v%d, 0" % (vSC + i))
        first_skip = self.nl("Kskip")
        e("s_mov_b32 s%d, 0" % sT15)
        e("s_cmp_eq_u32 s%d, 0" % sPass)
        e("s_cbranch_scc1 L_k0")
        if self.q1w:
            e("s_cmp_eq_u32 s%d, 0" % sWave); e("s_cbranch_scc1 %s" % first_skip)
        e("s_waitcnt vmcnt(0)")
        e("s_branch %s" % first_skip)
        parts = {2: [(0, 0, 0), (1, 1, 12), (2, 1, 0)], 3: [(0, 0, 0), (1, 1, 14), (2, 1, 0)]}.get(self.ilv, [(0, 0, 0), (1, 1, 0)])
        for (pi, a, stop) in parts:
            if pi == 2:
                self.xch_publish()
            self.lab("L_k%d" % pi)
            thr = int(self.o.get("thr", 0))
            if thr:
                lt = self.nl("Lthr")
                e("s_and_b32 s%d, s%d, %d" % (sT0, sT15, thr - 1)); e("s_and_b32 s%d, s2, 1" % sT1); e("s_or_b32 s%d, s%d, s%d" % (sT0, sT0, sT1))
                e("s_or_b32 s%d, s%d, s%d" % (sT0, sT0, sPass))
                e("s_cmp_eq_u32 s%d, 0" % sT0); e("s_cbranch_scc0 %s" % lt)
                e("s_waitcnt vmcnt(0)")
                self.lab(lt)
            self.step_issue()
            if pi == 0:
                self.lab(first_skip)
            e("s_lshl_b64 %s, %s, s%d" % (sp(sMd), sp(sM[0]), sT15))
            e("v_add_u32 v%d, s%d, v%d" % (vAd, sCs, vPh))
            if self.klin:
                e("v_add_u32 v19, s%d, v18" % sCs)
            e("v_cndmask_b32 v%d, v%d, v%d, %s" % (vPa, vZ, vQ, sp(sMd)))
            for b in range(0 if self.o.get("nocomp") else 2):
                for k in range(4):
                    c8 = 4 * b + k
                    e("ds_read_b128 v[%d:%d], v%d offset:%d" % (32 + 4 * k, 35 + 4 * k, vPa, c8 * 64))
                    if self.klin:
                        e("ds_read_b128 v[%d:%d], v%d offset:%d" % (48 + 4 * k, 51 + 4 * k, (19 if c8 & 1 else vAd), c8 * 64))
                    else:
                        e("ds_read_b128 v[%d:%d], v%d offset:%d" % (48 + 4 * k, 51 + 4 * k, vAd, c8 * 512))
                e("s_waitcnt lgkmcnt(0)")
                for k in range(4):
                    e("v_mfma_f32_16x16x32_bf16 %s, %s, %s, %s" % (vr(vSC + 4 * a, 4), vr(32 + 4 * k, 4), vr(48 + 4 * k, 4), vr(vSC + 4 * a, 4)))
            self.adv_cs()
            e("s_add_u32 s%d, s%d, 1" % (sT15, sT15))
            if stop:
                e("s_cmp_lg_u32 s%d, %d" % (sT15, stop))
            else:
                e("s_and_b32 s%d, s%d, 15" % (sT15, sT15))
            e("s_cbranch_scc1 L_k%d" % pi)
            if pi == 0:
                self.stamp(13)
        self.nop(8)

    def xch_publish(self):
        e = self.e
        S = vSC
        nx = self.nl("Lxp")
        e("s_cmp_eq_u32 s%d, 1" % sPass); e("s_cbranch_scc0 %s" % nx)
        e("s_cmp_eq_u32 s%d, 1" % sXch); e("s_cbranch_scc0 %s" % nx)
        self.nop(8)
        for i in range(0, 8, 2):
            e("v_cvt_pk_bf16_f32 v%d, v%d, v%d" % (20 + i // 2, S + i, S + i + 1))
        e("v_mov_b32 v25, -2"); e("v_lshlrev_b32 v24, 4, v%d" % vL)
        for d in range(4):
            e("v_min_u32 v%d, v%d, v25" % (20 + d, 20 + d))
        e("s_lshl_b32 s%d, s2, 12" % sT0); e("s_lshl_b32 s%d, s%d, 10" % (sT1, sWave))
        self.addr(sA, pWs, M7, [sT0, sT1])
        e("global_store_dwordx4 v24, v[20:23], %s sc1" % sp(sA))
        self.lab(nx)

    def softmax(self):
        e = self.e
        S = vSC
        if self.p2n == 1:
            self.now(sTm0, sTm0)
        for i in range(0, 8, 2):
            e("v_cvt_pk_bf16_f32 v%d, v%d, v%d" % (36 + i // 2, S + i, S + i + 1))
        if self.p2n:
            nx = self.nl("Lnx")
            e("s_cmp_eq_u32 s%d, 1" % sPass); e("s_cbranch_scc0 %s" % nx)
            e("s_cmp_eq_u32 s%d, 1" % sXch); e("s_cbranch_scc0 %s" % nx)
            e("v_lshlrev_b32 v40, 4, v%d" % vL)
            if self.ilv < 2:
                e("v_mov_b32 v41, -2")
                for d in range(4):
                    e("v_min_u32 v%d, v%d, v41" % (44 + d, 36 + d))
                e("s_lshl_b32 s%d, s2, 12" % sT0); e("s_lshl_b32 s%d, s%d, 10" % (sT1, sWave))
                self.addr(sA, pWs, M7, [sT0, sT1])
                e("global_store_dwordx4 v40, v[44:47], %s sc1" % sp(sA))
            e("s_xor_b32 s%d, s2, 4" % sT0); e("s_lshl_b32 s%d, s%d, 12" % (sT0, sT0)); e("s_xor_b32 s%d, s%d, 2" % (sT1, sWave)); e("s_lshl_b32 s%d, s%d, 10" % (sT1, sT1))
            self.addr(sA, pWs, M7, [sT0, sT1])
            self.poll(["global_load_dwordx4 v[48:51], v40, %s sc1" % sp(sA)], [48, 49, 50, 51], 52, "Px7")
            if self.ilv == 3:
                H = "0xffff0000"
                e("v_mov_b32 v52, %s" % H); e("v_mov_b32 v54, -1"); e("v_mov_b32 v55, -1")
                e("s_mov_b64 exec, 0xffff"); e("v_mov_b32 v52, 0"); e("v_mov_b32 v54, %s" % H); e("v_mov_b32 v55, %s" % H)
                e("s_mov_b32 exec_lo, 0"); e("s_mov_b32 exec_hi, 0xffff0000"); e("v_mov_b32 v55, 0")
                e("s_mov_b64 exec, -1")
                e("v_bfi_b32 v36, v52, v48, v36"); e("v_bfi_b32 v37, v52, v49, v37")
                e("v_bfi_b32 v38, v54, v50, v38"); e("v_bfi_b32 v39, v55, v51, v39")
            elif self.ilv == 2:
                e("v_mov_b32 v52, -1"); e("v_mov_b32 v53, 0xffff"); e("v_mov_b32 v54, -1"); e("v_mov_b32 v55, 0xffff")
                e("s_mov_b64 exec, 0xffff"); e("v_mov_b32 v52, 0"); e("v_mov_b32 v53, 0")
                e("s_mov_b32 exec_lo, 0"); e("s_mov_b32 exec_hi, 0xffff0000"); e("v_mov_b32 v54, 0"); e("v_mov_b32 v55, 0")
                e("s_mov_b64 exec, -1")
                e("v_bfi_b32 v36, v52, v48, v36"); e("v_bfi_b32 v37, v53, v49, v37")
                e("v_bfi_b32 v38, v54, v50, v38"); e("v_bfi_b32 v39, v55, v51, v39")
            elif self.ilv:
                e("v_mov_b32 v52, 0xffff0000"); e("v_mov_b32 v53, 0xffff0000")
                e("s_mov_b64 exec, 0xffff"); e("v_mov_b32 v52, 0")
                e("s_mov_b32 exec_lo, 0"); e("s_mov_b32 exec_hi, -1"); e("v_mov_b32 v53, -1")
                e("s_mov_b64 exec, -1")
                e("v_bfi_b32 v36, v52, v48, v36"); e("v_bfi_b32 v37, v52, v49, v37")
                e("v_bfi_b32 v38, v53, v50, v38"); e("v_bfi_b32 v39, v53, v51, v39")
            else:
                e("s_mov_b32 exec_lo, 0"); e("s_mov_b32 exec_hi, 0xffff0000")
                e("v_mov_b32 v37, v49")
                e("s_mov_b64 exec, -1")
                e("v_mov_b32 v38, v50"); e("v_mov_b32 v39, v51")
            self.lab(nx)
        for i in range(0, 8, 2):
            e("v_lshlrev_b32 v%d, 16, v%d" % (S + i, 36 + i // 2)); e("v_and_b32 v%d, 0xffff0000, v%d" % (S + i + 1, 36 + i // 2))
        e("v_max3_f32 v32, v%d, v%d, v%d" % (S, S + 1, S + 2)); e("v_max3_f32 v32, v32, v%d, v%d" % (S + 3, S + 4))
        e("v_max3_f32 v32, v32, v%d, v%d" % (S + 5, S + 6)); e("v_max_f32 v32, v32, v%d" % (S + 7))
        self.allreduce64(32, 33, "v_max_f32")
        e("s_lshl_b32 s%d, s%d, 2" % (sT0, sWave)); e("s_add_u32 s%d, s%d, %d" % (sT0, sT0, L_SM))
        e("v_mov_b32 v33, s%d" % sT0)
        e("ds_write_b32 v33, v32")
        if self.p2n == 1:
            e("s_lshl_b32 s%d, s%d, 3" % (sT0, sWave)); e("s_add_u32 s%d, s%d, %d" % (sT0, sT0, L_SM + 32))
            e("v_mov_b32 v33, s%d" % sT0); e("v_mov_b32 v34, s%d" % sTm1); e("v_mov_b32 v35, s%d" % sTm0)
            e("ds_write_b64 v33, v[34:35]")
        e("s_waitcnt lgkmcnt(0)")
        e("s_barrier")
        e("v_mov_b32 v33, %d" % L_SM)
        e("ds_read_b128 v[36:39], v33")
        if self.p2n == 1:
            nv = self.nl("Lnv")
            e("s_cmp_eq_u32 s%d, 0" % sPass); e("s_cbranch_scc0 %s" % nv)
            e("s_cmp_eq_u32 s%d, 0" % sWave); e("s_cbranch_scc0 %s" % nv)
            e("ds_read_b128 v[40:43], v33 offset:32"); e("ds_read_b128 v[44:47], v33 offset:48")
            e("s_waitcnt lgkmcnt(0)")
            e("v_add_u32 v40, v40, v42"); e("v_add_u32 v41, v41, v43"); e("v_add_u32 v44, v44, v46"); e("v_add_u32 v45, v45, v47")
            e("s_lshr_b32 s%d, s2, 1" % sT0); e("s_lshr_b32 s%d, s2, 2" % sT1); e("s_xor_b32 s%d, s%d, s%d" % (sT0, sT0, sT1)); e("s_and_b32 s%d, s%d, 1" % (sT0, sT0))
            e("v_cmp_ge_u32 vcc, v40, v44"); self.nop(2); e("v_cndmask_b32 v40, 0, 1, vcc")
            e("v_cmp_ge_u32 vcc, v41, v45"); self.nop(2); e("v_cndmask_b32 v41, 0, 1, vcc")
            e("v_xor_b32 v40, s%d, v40" % sT0); e("v_xor_b32 v41, s%d, v41" % sT0)
            e("v_cmp_eq_u32 vcc, 0, v%d" % vL); self.nop(2); e("v_cndmask_b32 v40, v40, v41, vcc")
            e("v_lshlrev_b32 v41, 2, v%d" % vL); e("v_add_u32 v41, 16, v41")
            e("s_mov_b64 exec, 3")
            e("global_atomic_add v41, v40, %s" % sp(pDbg))
            e("s_mov_b64 exec, -1")
            self.lab(nv)
        e("s_waitcnt lgkmcnt(0)")
        e("v_max3_f32 v32, v36, v37, v38"); e("v_max_f32 v32, v32, v39")
        e("s_mov_b32 s%d, 0x%x" % (sT0, C_EXP))
        for i in range(8):
            e("v_sub_f32 v%d, v%d, v32" % (S + i, S + i))
        for i in range(8):
            e("v_mul_f32 v%d, s%d, v%d" % (S + i, sT0, S + i))
        for i in range(8):
            e("v_exp_f32 v%d, v%d" % (S + i, S + i))
        self.nop(1)
        e("v_lshrrev_b32 v33, 4, v%d" % vL); e("v_lshlrev_b32 v33, 7, v33")
        e("v_and_b32 v34, 15, v%d" % vL); e("v_lshl_add_u32 v33, v34, 1, v33")
        e("s_lshl_b32 s%d, s%d, 10" % (sT0, sWave)); e("s_add_u32 s%d, s%d, %d" % (sT0, sT0, L_P))
        e("v_add_u32 v33, s%d, v33" % sT0)
        for i in range(0, 8, 2):
            a, r = i >> 2, i & 3
            e("v_cvt_pk_bf16_f32 v%d, v%d, v%d" % (36 + i // 2, S + i, S + i + 1))
            e("ds_write_b16 v33, v%d offset:%d" % (36 + i // 2, a * 512 + r * 32))
            e("ds_write_b16_d16_hi v33, v%d offset:%d" % (36 + i // 2, a * 512 + (r + 1) * 32))
        e("v_add_f32 v34, v%d, v%d" % (S, S + 1)); e("v_add_f32 v35, v%d, v%d" % (S + 2, S + 3))
        e("v_add_f32 v40, v%d, v%d" % (S + 4, S + 5)); e("v_add_f32 v41, v%d, v%d" % (S + 6, S + 7))
        e("v_add_f32 v34, v34, v35"); e("v_add_f32 v40, v40, v41"); e("v_add_f32 v34, v34, v40")
        self.allreduce64(34, 35, "v_add_f32")
        e("v_mov_b32 v%d, v34" % vLsum)
        e("v_mov_b32 v9, v32")
        e("s_waitcnt lgkmcnt(0)")

    def vphase(self):
        e = self.e
        e("v_lshrrev_b32 v%d, 5, v%d" % (vPh, vL)); e("v_lshlrev_b32 v%d, 12, v%d" % (vPh, vPh))
        e("v_and_b32 v%d, 31, v%d" % (vAd, vL)); e("v_lshl_add_u32 v%d, v%d, 3, v%d" % (vPh, vAd, vPh))
        e("v_lshrrev_b32 v%d, 4, v%d" % (vPa, vL)); e("v_lshlrev_b32 v%d, 3, v%d" % (vPa, vPa))
        e("s_lshl_b32 s%d, s%d, 10" % (sT0, sWave)); e("s_add_u32 s%d, s%d, %d" % (sT0, sT0, L_P))
        e("v_add_u32 v%d, s%d, v%d" % (vPa, sT0, vPa))
        for i in range(16):
            e("v_mov_b32 v%d, 0" % (vACC + i))
        acc = lambda T4: vr(vACC + 4 * T4, 4)
        after = {1: 0, 3: 1, 6: 2, 8: 3, 11: 4, 13: 5, 16: 6}
        pf_tiles = tuple(int(x) for x in str(self.o.get("wpft", "14,16")).split(",")) if (self.wpf and self.gapw) else ()
        cpf_tiles = tuple(int(x) for x in str(self.o.get("cpft", "9,11")).split(",")) if int(self.o.get("cpf", 1)) else ()
        if pf_tiles:
            self.wpf_setup()
        if cpf_tiles:
            e("s_getpc_b64 s[18:19]")
            self.lab("L_pcref")
            e("s_add_u32 s18, s18, L_gapcode-L_pcref"); e("s_addc_u32 s19, s19, 0")
            e("v_lshlrev_b32 v46, 7, v%d" % vL)
        any_x = bool(pf_tiles) or bool(cpf_tiles)
        pend = 0
        for i in range(NSTR_T):
            T = NRES_T + i
            if self.ilv:
                T = self.strT(i)
            if not any_x:
                self.step_issue()
            else:
                deep = int(self.o.get("deepV", 99))
                Rv = 4 if i >= deep else self.R
                hist = getattr(self, "_h", [])
                if i == deep:
                    lsk = self.nl("Ldp")
                    e("s_cmp_eq_u32 s%d, 0" % sPass); e("s_cbranch_scc0 %s" % lsk)
                    self.issue(); self.issue()
                    self.lab(lsk)
                    hist += [0, 0]
                w = 4 * (Rv - 1)
                for half in range(2):
                    ex = sum(hist[-(Rv - 1):]) if hist else 0
                    e("s_waitcnt vmcnt(%d)" % (w + ex))
                    self.issue()
                    if half == 0 and i in pf_tiles:
                        e("buffer_load_dword v44, v45, %s, s%d offen" % (sp(sWS, 4), sWoff))
                        e("s_add_u32 s%d, s%d, s%d" % (sWoff, sWoff, sWstep))
                        hist.append(1)
                    elif half == 0 and i in cpf_tiles:
                        e("v_min_u32 v47, L_endcode-L_gapcode-4, v46")
                        e("global_load_dword v47, v47, s[18:19]")
                        e("v_add_u32 v46, 8192, v46")
                        hist.append(1)
                    else:
                        hist.append(0)
                self._h = hist
            e("v_add_u32 v%d, s%d, v%d" % (vAd, sCs, vPh))
            e("ds_read_b64 v[32:33], v%d offset:%d" % (vPa, T * 32))
            for b in range(0 if self.o.get("nocomp") else 2):
                us = (2 * b, 2 * b + 1)
                k = 0
                for u in us:
                    for T4 in range(4):
                        e("ds_read_b64_tr_b16 v[%d:%d], v%d offset:%d" % (48 + 2 * k, 49 + 2 * k, vAd, (4 * T4 + u) * 256))
                        k += 1
                if b == 0:
                    e("s_waitcnt lgkmcnt(8)")
                for j, u in enumerate(us):
                    e("v_cndmask_b32 v%d, 0, v32, %s" % (36 + 2 * j, sp(sM[u])))
                    e("v_cndmask_b32 v%d, 0, v33, %s" % (37 + 2 * j, sp(sM[u])))
                e("s_waitcnt lgkmcnt(0)")
                k = 0
                for j, u in enumerate(us):
                    for T4 in range(4):
                        e("v_mfma_f32_16x16x16_bf16 %s, %s, %s, %s" % (acc(T4), vr(36 + 2 * j, 2), vr(48 + 2 * k, 2), acc(T4)))
                        k += 1
            self.adv_cs()
            if self.o.get("vstamps") and i in (5, 11, 14):
                self.stamp({5: 14, 11: 15, 14: 12}[i])
            if i in after and not self.o.get("nocomp"):
                self.res_pair(after[i])
        self.nop(8)

    def wpf_setup(self):
        e = self.e
        d = self.nl("Lpf"); lb = self.nl("LpfB")
        e("s_mov_b32 s%d, 0x20000" % (sWS + 3)); e("s_mov_b32 s%d, 0" % (sWS + 2))
        e("s_mov_b32 s%d, s%d" % (sWS, pW2)); e("s_and_b32 s%d, s%d, 0xffff" % (sWS + 1, pW2 + 1))
        e("s_mov_b32 s%d, 0" % sWoff); e("s_mov_b32 s%d, 0" % sWstep); e("v_mov_b32 v45, 0")
        e("s_cmp_eq_u32 s%d, 0" % sPass); e("s_cbranch_scc0 %s" % d)
        e("s_cmp_eq_u32 s%d, 2" % sRole); e("s_cbranch_scc1 %s" % lb)
        e("s_cmp_eq_u32 s%d, 3" % sRole); e("s_cbranch_scc0 %s" % d)
        e("s_mov_b32 s%d, %d" % (sWS + 2, 1792 * 896))
        e("v_mul_u32_u24 v45, 896, v%d" % vL)
        e("s_and_b32 s%d, s%d, 3" % (sT0, sIdx)); e("s_mul_i32 s%d, s%d, 448" % (sT0, sT0)); e("s_lshl_b32 s%d, s%d, 7" % (sT1, sWave)); e("s_add_u32 s%d, s%d, s%d" % (sT0, sT0, sT1))
        e("s_mul_i32 s%d, s%d, 896" % (sWoff, sT0)); e("s_lshr_b32 s%d, s%d, 2" % (sT1, sIdx)); e("s_lshl_b32 s%d, s%d, 7" % (sT1, sT1)); e("s_add_u32 s%d, s%d, s%d" % (sWoff, sWoff, sT1))
        e("s_mov_b32 s%d, %d" % (sWstep, 64 * 896))
        e("s_branch %s" % d)
        self.lab(lb)
        e("s_bitcmp1_b32 s%d, 0" % sIdx)
        e("s_cselect_b32 s%d, s%d, s%d" % (sWS, pW3, pW1)); e("s_cselect_b32 s%d, s%d, s%d" % (sWS + 1, pW3 + 1, pW1 + 1))
        e("s_and_b32 s%d, s%d, 0xffff" % (sWS + 1, sWS + 1))
        e("s_mov_b32 s%d, %d" % (sWS + 2, 448 * 3584))
        e("v_mul_u32_u24 v45, 3584, v%d" % vL)
        e("s_lshl_b32 s%d, s%d, 7" % (sT1, sWave)); e("s_mul_i32 s%d, s%d, 3584" % (sWoff, sT1))
        e("s_lshr_b32 s%d, s%d, 1" % (sT1, sIdx)); e("s_lshl_b32 s%d, s%d, 7" % (sT1, sT1)); e("s_add_u32 s%d, s%d, s%d" % (sWoff, sWoff, sT1))
        e("s_mov_b32 s%d, %d" % (sWstep, 64 * 3584))
        self.lab(d)

    def res_pair(self, m):
        e = self.e
        acc = lambda T4: vr(vACC + 4 * T4, 4)
        if self.ilv:
            e("ds_read2_b64 v[32:35], v%d offset0:%d offset1:%d" % (vPa, 4 * self.resT(2 * m), 4 * self.resT(2 * m + 1)))
        else:
            e("ds_read2_b64 v[32:35], v%d offset0:%d offset1:%d" % (vPa, 8 * m, 8 * m + 4))
        e("s_waitcnt lgkmcnt(0)")
        for u in range(4):
            A = 36 + 4 * (u & 1)
            for d in range(4):
                e("v_cndmask_b32 v%d, 0, v%d, %s" % (A + d, 32 + d, sp(sM[u])))
            self.nop(2)
            for T4 in range(4):
                e("v_mfma_f32_16x16x32_bf16 %s, %s, %s, %s" % (acc(T4), vr(A, 4), res_reg(m, 4 * T4 + u), acc(T4)))

    def combine_publish(self):
        e = self.e
        self.lab("L_gapcode")
        for u in range(4):
            X, Y, Z, W = (vACC + 4 * t + u for t in range(4))
            e("v_permlane16_swap_b32 v%d, v%d" % (X, Y))
            e("v_permlane16_swap_b32 v%d, v%d" % (Z, W))
        self.nop(2)
        for u in range(4):
            e("v_permlane32_swap_b32 v%d, v%d" % (vACC + u, vACC + 8 + u))
        e("v_lshrrev_b32 v32, 4, v%d" % vL); e("v_lshlrev_b32 v32, 8, v32")
        e("v_and_b32 v33, 15, v%d" % vL); e("v_lshl_add_u32 v32, v33, 2, v32")
        e("s_lshl_b32 s%d, s%d, 10" % (sT0, sWave)); e("s_add_u32 s%d, s%d, %d" % (sT0, sT0, L_P))
        e("v_add_u32 v32, s%d, v32" % sT0)
        for u in range(4):
            e("ds_write_b32 v32, v%d offset:%d" % (vACC + u, u * 64))
        e("s_lshl_b32 s%d, s%d, 2" % (sT0, sWave)); e("s_add_u32 s%d, s%d, %d" % (sT0, sT0, L_SM + 16))
        e("v_mov_b32 v33, s%d" % sT0)
        e("ds_write_b32 v33, v%d" % vLsum)
        e("s_waitcnt lgkmcnt(0)")
        e("s_barrier")
        e("s_lshl_b32 s%d, s%d, 8" % (sT0, sWave)); e("s_add_u32 s%d, s%d, %d" % (sT0, sT0, L_P))
        e("v_lshlrev_b32 v40, 2, v%d" % vL); e("v_add_u32 v32, s%d, v40" % sT0)
        for w in range(4):
            e("ds_read_b32 v%d, v32 offset:%d" % (34 + w, w * 1024))
        e("v_mov_b32 v33, %d" % (L_SM + 16))
        e("ds_read_b128 v[44:47], v33")
        e("s_waitcnt lgkmcnt(0)")
        e("v_add_f32 v34, v34, v35"); e("v_add_f32 v36, v36, v37"); e("v_add_f32 v34, v34, v36")
        e("v_add_f32 v44, v44, v45"); e("v_add_f32 v46, v46, v47"); e("v_add_f32 v44, v44, v46")
        e("v_mov_b32 v41, -2")
        e("v_min_u32 v34, v34, v41")
        e("v_and_b32 v42, 1, v%d" % vL); e("v_cmp_eq_u32 vcc, 1, v42"); self.nop(2)
        e("v_cndmask_b32 v43, v9, v44, vcc"); e("v_min_u32 v43, v43, v41")
        e("v_lshlrev_b32 v42, 2, v42"); e("v_add_u32 v42, 256, v42")
        e("s_lshl_b32 s%d, s%d, 2" % (sT0, sH)); e("s_add_u32 s%d, s%d, s%d" % (sT0, sT0, sWave)); e("s_lshl_b32 s%d, s%d, 4" % (sT0, sT0))
        e("s_add_u32 s%d, s%d, s%d" % (sT0, sT0, sC)); e("s_mul_i32 s%d, s%d, %d" % (sT0, sT0, M1_SLOT))
        e("s_mul_i32 s%d, s%d, 0x%x" % (sT1, sPass, M1_R))
        self.addr(sA, pWs, M1, [sT0, sT1])
        e("global_store_dword v40, v34, %s sc1" % sp(sA))
        e("global_store_dword v42, v43, %s sc1" % sp(sA))
        e("s_barrier")

    def l2pf_ilv(self, ntiles):
        if not ntiles or not self.ilv:
            return
        e = self.e
        D = self.nl("Lpfd")
        e("s_cmp_eq_u32 s%d, 0" % sPass); e("s_cbranch_scc0 %s" % D)
        tiles = [t for t in (3, 4, 6, 8, 10, 12)][:ntiles + 1]
        e("v_lshrrev_b32 v6, 5, v%d" % vL); e("v_lshlrev_b32 v6, 14, v6")
        e("v_and_b32 v5, 31, v%d" % vL); e("v_lshlrev_b32 v5, 7, v5"); e("v_add_u32 v5, 3072, v5")
        first = True
        for k in range(ntiles):
            e("s_cmp_eq_u32 s%d, 8" % sNS); e("s_cselect_b32 s%d, %d, %d" % (sT0, 2 * tiles[k + 1], 2 * tiles[k]))
            e("s_lshl_b32 s%d, s%d, 11" % (sT1, sT0)); e("s_xor_b32 s%d, s%d, s%d" % (sT1, sT1, sWb)); e("s_and_b32 s%d, s%d, 8192" % (sT1, sT1))
            e("s_lshl_b32 s%d, s%d, 14" % (sT0, sT0)); e("s_add_u32 s%d, s%d, s%d" % (sT0, sT0, sRot))
            e("v_add_u32 v7, s%d, v6" % sT0); e("v_and_b32 v7, 0x%x, v7" % (64 * self.stride - 1)); e("v_add_u32 v7, v7, v5")
            e("s_waitcnt vmcnt(0)")
            e("buffer_load_dword v8, v7, %s, s%d offen" % (sp(sCUR, 4), sT1))
        e("s_waitcnt vmcnt(0)")
        self.lab(D)

    def topup(self, tp=None):
        e = self.e
        L = self.nl("Tu"); D = self.nl("Tud")
        e("s_cmp_eq_u32 s%d, 0" % sPass); e("s_cbranch_scc0 %s" % D)
        e("s_sub_u32 s%d, s%d, %d" % (sT5, sNS, 4 if int(self.o.get("deepV", 99)) < NSTR_T else self.R))
        self.lab(L)
        if tp is None:
            tp = int(self.o.get("tpace", 1))
        if tp:
            e("s_waitcnt vmcnt(%d)" % (4 * (tp - 1)))
        self.issue()
        e("s_sub_u32 s%d, s%d, 1" % (sT5, sT5))
        e("s_cmp_lg_u32 s%d, 0" % sT5); e("s_cbranch_scc1 %s" % L)
        if self.l2pf:
            e("v_and_b32 v5, 31, v%d" % vL); e("v_lshlrev_b32 v5, 7, v5"); e("v_add_u32 v5, 3072, v5")
            e("v_lshrrev_b32 v6, 5, v%d" % vL); e("v_mul_u32_u24 v6, %d, v6" % self.stride); e("v_add_u32 v6, v5, v6")
            e("s_mov_b32 s%d, s%d" % (sT5, sOff))
            for k in range(self.l2pf):
                e("buffer_load_dword v5, v6, %s, s%d offen%s" % (sp(sCUR, 4), sT5, self.l2pol))
                e("s_add_u32 s%d, s%d, %d" % (sT5, sT5, 2 * self.stride))
                if self.stag:
                    e("s_and_b32 s%d, s%d, 0x%x" % (sT5, sT5, 64 * self.stride - 1))
        self.lab(D)

    def stage_S1(self):
        e = self.e
        e("s_mul_i32 s%d, s%d, %d" % (sT0, sIdx, 16 * M1_SLOT)); e("s_mul_i32 s%d, s%d, 0x%x" % (sT1, sPass, M1_R))
        self.addr(sA, pWs, M1 + 2304, [sT0, sT1])
        e("v_lshrrev_b32 v10, 4, v%d" % vL); e("v_mul_u32_u24 v10, %d, v10" % M1_SLOT)
        e("v_and_b32 v11, 15, v%d" % vL); e("v_lshl_add_u32 v11, v11, 4, v10")
        e("v_add_u32 v10, 256, v10")
        loads = []; regs = []
        for j in range(4):
            off = j * 4 * M1_SLOT - 2304
            loads.append("global_load_dwordx4 v[%d:%d], v11, %s offset:%d sc1" % (32 + 4 * j, 35 + 4 * j, sp(sA), off))
            loads.append("global_load_dwordx2 v[%d:%d], v10, %s offset:%d sc1" % (48 + 2 * j, 49 + 2 * j, sp(sA), off))
        self.poll(loads, list(range(32, 56)), 56, "Ps1")
        self.stamp(8)
        e("v_max3_f32 v56, v48, v50, v52"); e("v_max_f32 v56, v56, v54")
        self.xrows(56, 57, "v_max_f32")
        e("s_mov_b32 s%d, 0x%x" % (sT0, C_EXP))
        for j in range(4):
            e("v_sub_f32 v%d, v%d, v56" % (48 + 2 * j, 48 + 2 * j))
        for j in range(4):
            e("v_mul_f32 v%d, s%d, v%d" % (48 + 2 * j, sT0, 48 + 2 * j))
        for j in range(4):
            e("v_exp_f32 v%d, v%d" % (48 + 2 * j, 48 + 2 * j))
        self.nop(1)
        e("v_mul_f32 v56, v48, v49")
        for j in range(1, 4):
            e("v_fmac_f32 v56, v%d, v%d" % (48 + 2 * j, 49 + 2 * j))
        for d in range(4):
            e("v_mul_f32 v%d, v48, v%d" % (32 + d, 32 + d))
        for j in range(1, 4):
            for d in range(4):
                e("v_fmac_f32 v%d, v%d, v%d" % (32 + d, 48 + 2 * j, 32 + 4 * j + d))
        self.xrows(56, 57, "v_add_f32")
        e("v_rcp_f32 v56, v56")
        e("v_permlane32_swap_b32 v32, v34"); e("v_permlane32_swap_b32 v33, v35"); self.nop(1)
        e("v_add_f32 v32, v32, v34"); e("v_add_f32 v33, v33, v35")
        e("v_mov_b32 v34, v32"); e("v_mov_b32 v35, v33"); self.nop(2)
        e("v_permlane16_swap_b32 v32, v34"); e("v_permlane16_swap_b32 v33, v35"); self.nop(1)
        e("v_add_f32 v32, v32, v34"); e("v_add_f32 v33, v33, v35")
        e("v_mul_f32 v32, v32, v56"); e("v_mul_f32 v33, v33, v56")
        e("v_cvt_pk_bf16_f32 v32, v32, v33")
        e("v_mov_b32 v41, -2"); e("v_min_u32 v32, v32, v41")
        e("v_and_b32 v34, 15, v%d" % vL); e("v_lshlrev_b32 v34, 3, v34")
        e("v_lshrrev_b32 v35, 5, v%d" % vL); e("v_lshl_add_u32 v34, v35, 2, v34"); e("v_add_u32 v34, s%d, v34" % sVec)
        e("ds_write_b32 v34, v32")
        if self.o.get("dbg_a"):
            e("s_lshl_b32 s%d, s%d, 13" % (sT0, sPass)); e("s_lshl_b32 s%d, s%d, 7" % (sT1, sIdx))
            self.addr(sA, pWs, 0xC0000, [sT0, sT1])
            e("v_subrev_u32 v35, s%d, v34" % sVec)
            e("global_store_dword v35, v32, %s" % sp(sA))
        self.lane_rc()
        e("v_lshlrev_b32 v6, 3, v10"); e("v_add_u32 v6, s%d, v6" % sVec)
        e("v_lshl_add_u32 v7, v10, 2, v11"); e("v_mul_u32_u24 v7, %d, v7" % O_ROW); e("v_lshl_add_u32 v7, v12, 3, v7")
        e("s_mul_i32 s%d, s%d, 224" % (sT0, sWave)); e("s_add_u32 s%d, s%d, %d" % (sT0, sT0, L_W)); e("v_add_u32 v7, s%d, v7" % sT0)
        e("s_waitcnt lgkmcnt(0)")
        e("ds_read2_b64 v[36:39], v6 offset0:0 offset1:4"); e("ds_read2_b64 v[40:43], v6 offset0:8 offset1:12")
        for c0 in range(0, 7, 2):
            cts = [c for c in (c0, c0 + 1) if c < 7]
            k = 0
            for ct in cts:
                for m in range(2):
                    e("ds_read_b64_tr_b16 v[%d:%d], v7 offset:%d" % (48 + 4 * k, 49 + 4 * k, m * 32 * O_ROW + ct * 32))
                    e("ds_read_b64_tr_b16 v[%d:%d], v7 offset:%d" % (50 + 4 * k, 51 + 4 * k, (m * 32 + 16) * O_ROW + ct * 32))
                    k += 1
            e("s_waitcnt lgkmcnt(0)")
            k = 0
            for ct in cts:
                for m in range(2):
                    c = "0" if m == 0 else vr(8 + 4 * ct, 4)
                    e("v_mfma_f32_16x16x32_bf16 %s, %s, %s, %s" % (vr(8 + 4 * ct, 4), vr(36 + 4 * m, 4), vr(48 + 4 * k, 4), c))
                    k += 1
        self.nop(8)
        for row in range(1, 4):
            e("s_mov_b32 exec_lo, 0x%x" % (0xffff0000 if row == 1 else 0))
            e("s_mov_b32 exec_hi, 0x%x" % (0 if row == 1 else (0xffff << (16 * (row - 2)))))
            e("v_mov_b32 v8, v%d" % (8 + 4 * row))
            if row < 3:
                e("v_mov_b32 v24, v%d" % (24 + 4 * row))
        e("s_mov_b64 exec, -1")
        e("v_mov_b32 v41, -2"); e("v_min_u32 v8, v8, v41"); e("v_min_u32 v24, v24, v41")
        e("s_mul_i32 s%d, s%d, %d" % (sT0, sIdx, M2_SLOT)); e("s_mul_i32 s%d, s%d, 0x%x" % (sT1, sPass, M2_R)); e("s_mul_i32 s%d, s%d, 448" % (sT2, sWave))
        self.addr(sA, pWs, M2, [sT0, sT1, sT2])
        e("v_lshlrev_b32 v40, 2, v%d" % vL)
        e("global_store_dword v40, v8, %s sc1" % sp(sA))
        e("s_mov_b32 exec_hi, 0xffff")
        e("global_store_dword v40, v24, %s offset:256 sc1" % sp(sA))
        e("s_mov_b64 exec, -1")
        self.stamp(9)

    def reduce_waves16(self, src):
        e = self.e
        e("v_and_b32 v14, 15, v%d" % vL); e("v_lshlrev_b32 v14, 2, v14")
        e("s_lshl_b32 s%d, s%d, 6" % (sT0, sWave)); e("s_add_u32 s%d, s%d, %d" % (sT0, sT0, L_RED))
        e("v_add_u32 v15, s%d, v14" % sT0)
        e("ds_write_b32 v15, v%d" % src)
        e("s_waitcnt lgkmcnt(0)")
        e("s_barrier")
        for w in range(4):
            e("ds_read_b32 v%d, v14 offset:%d" % (16 + w, L_RED + w * 64))
        e("s_waitcnt lgkmcnt(0)")
        e("v_add_f32 v16, v16, v17"); e("v_add_f32 v18, v18, v19"); e("v_add_f32 v8, v16, v18")

    def stage_R(self):
        e = self.e
        e("v_lshrrev_b32 v20, 4, v%d" % vL); e("v_lshlrev_b32 v20, 2, v20")
        e("s_cmp_eq_u32 s%d, 0" % sPass); e("s_cbranch_scc0 L_R_r1")
        e("s_lshl_b32 s%d, s%d, 4" % (sT0, sIdx))
        self.addr(sB, pX, 0, [sT0])
        e("s_branch L_R_r2")
        self.lab("L_R_r1")
        e("s_lshr_b32 s%d, s%d, 1" % (sT0, sIdx)); e("s_lshl_b32 s%d, s%d, 7" % (sT0, sT0))
        e("s_and_b32 s%d, s%d, 1" % (sT1, sIdx)); e("s_lshl_b32 s%d, s%d, 4" % (sT1, sT1))
        self.addr(sB, pWs, M5, [sT0, sT1])
        self.lab("L_R_r2")
        e("global_load_dword v21, v20, %s sc1" % sp(sB))
        e("s_lshl_b32 s%d, s%d, 5" % (sT0, sIdx)); e("s_mul_i32 s%d, s%d, 0x%x" % (sT1, sPass, M2_R))
        self.addr(sA, pWs, M2, [sT0, sT1])
        e("v_mul_u32_u24 v8, %d, v%d" % (M2_SLOT, vL))
        self.poll(["global_load_dwordx4 v[32:35], v8, %s sc1" % sp(sA),
                   "global_load_dwordx4 v[36:39], v8, %s offset:16 sc1" % sp(sA)], list(range(32, 40)), 40, "Pa")
        self.stamp(8)
        for d in range(4):
            e("v_permlane32_swap_b32 v%d, v%d" % (32 + d, 36 + d))
        self.nop(1)
        for d in range(4):
            e("v_add_f32 v%d, v%d, v%d" % (32 + d, 32 + d, 36 + d))
        self.nop(2)
        e("v_permlane16_swap_b32 v32, v34"); e("v_permlane16_swap_b32 v33, v35"); self.nop(1)
        e("v_add_f32 v32, v32, v34"); e("v_add_f32 v33, v33, v35")
        for n in (8, 4, 2, 1):
            self.nop(1)
            e("v_add_f32_dpp v32, v32, v32 row_ror:%d row_mask:0xf bank_mask:0xf" % n)
            e("v_add_f32_dpp v33, v33, v33 row_ror:%d row_mask:0xf bank_mask:0xf" % n)
        e("v_cvt_pk_bf16_f32 v34, v32, v33")
        e("v_lshlrev_b32 v32, 16, v34"); e("v_and_b32 v33, 0xffff0000, v34")
        e("v_lshlrev_b32 v35, 16, v21"); e("v_and_b32 v36, 0xffff0000, v21")
        e("v_add_f32 v32, v32, v35"); e("v_add_f32 v33, v33, v36")
        e("v_cvt_pk_bf16_f32 v34, v32, v33")
        e("v_mov_b32 v41, -2"); e("v_min_u32 v34, v34, v41")
        e("s_lshl_b32 s%d, s%d, 13" % (sT0, sPass)); e("s_lshl_b32 s%d, s%d, 7" % (sT1, sIdx))
        self.addr(sA, pWs, M3, [sT0, sT1])
        e("s_mov_b32 exec_lo, 0x00010001"); e("s_mov_b32 exec_hi, 0x00010001")
        e("global_store_dword v20, v34, %s sc1" % sp(sA))
        e("s_mov_b64 exec, -1")
        self.stamp(9)

    def gather_x(self, base_off, slot_shift_mode):
        e = self.e
        e("v_min_u32 v8, 55, v%d" % vL)
        if slot_shift_mode == "M3":
            e("v_lshlrev_b32 v8, 7, v8")
        else:
            e("v_and_b32 v9, 1, v8"); e("v_lshrrev_b32 v8, 1, v8"); e("v_lshlrev_b32 v8, 7, v8"); e("v_lshl_add_u32 v8, v9, 4, v8")
        self.poll(["global_load_dwordx4 v[32:35], v8, %s sc1" % sp(sA)], [32, 33, 34, 35], 36, "Px")

    def stage_B(self):
        e = self.e
        e("s_lshl_b32 s%d, s%d, 13" % (sT0, sPass))
        self.addr(sA, pWs, M3, [sT0])
        self.gather_x(M3, "M3")
        self.stamp(8)
        if self.gapw:
            e("s_barrier")
        self.layernorm_to_vec()
        self.lane_rc()
        e("v_lshlrev_b32 v6, 3, v10"); e("v_add_u32 v6, s%d, v6" % sVec)
        e("v_lshl_add_u32 v7, v10, 2, v11"); e("v_lshlrev_b32 v7, 6, v7")
        e("v_and_b32 v14, 1, v12"); e("v_lshl_add_u32 v7, v14, 3, v7")
        e("v_lshrrev_b32 v14, 1, v12"); e("v_mul_u32_u24 v14, %d, v14" % B_IMG3); e("v_add_u32 v7, v7, v14")
        e("s_lshl_b32 s%d, s%d, 4" % (sT0, sWave)); e("s_add_u32 s%d, s%d, %d" % (sT0, sT0, L_W)); e("v_add_u32 v7, s%d, v7" % sT0)
        self.gemv_chain(14, lambda m: (8 * m, 8 * m + 4), 2048, 1024)
        self.bf16r(8, 8, 9)
        self.nop(1)
        e("v_mov_b32_dpp v10, v8 row_ror:8 row_mask:0xf bank_mask:0xf")
        e("v_mul_f32 v11, 0xbfb8aa3b, v8")
        e("v_exp_f32 v11, v11"); self.nop(1)
        e("v_add_f32 v11, 1.0, v11")
        e("v_rcp_f32 v11, v11"); self.nop(1)
        e("v_mul_f32 v11, v8, v11")
        self.bf16r(11, 11, 12)
        e("v_mul_f32 v11, v11, v10")
        self.nop(1)
        e("v_mov_b32_dpp v12, v11 quad_perm:[1,0,3,2] row_mask:0xf bank_mask:0xf")
        e("v_cvt_pk_bf16_f32 v12, v11, v12")
        e("v_mov_b32 v14, -2"); e("v_min_u32 v12, v12, v14")
        e("s_lshl_b32 s%d, s%d, 13" % (sT0, sPass)); e("s_lshl_b32 s%d, s%d, 7" % (sT1, sIdx)); e("s_lshl_b32 s%d, s%d, 4" % (sT2, sWave))
        self.addr(sA, pWs, M4, [sT0, sT1, sT2])
        e("v_lshlrev_b32 v14, 1, v%d" % vL)
        e("s_mov_b64 exec, 0x55")
        e("global_store_dword v14, v12, %s sc1" % sp(sA))
        e("s_mov_b64 exec, -1")

    def stage_C(self):
        e = self.e
        e("s_lshl_b32 s%d, s%d, 13" % (sT0, sPass)); e("s_lshl_b32 s%d, s%d, 8" % (sT1, sIdx))
        self.addr(sB, pWs, M3, [sT0, sT1])
        e("v_bfe_u32 v20, v%d, 3, 1" % vL); e("v_lshlrev_b32 v20, 7, v20")
        e("v_bfe_u32 v21, v%d, 1, 2" % vL); e("v_lshl_add_u32 v20, v21, 2, v20")
        self.poll(["global_load_dword v22, v20, %s sc1" % sp(sB)], [22], 23, "Pr")
        e("s_lshl_b32 s%d, s%d, 13" % (sT0, sPass)); e("s_mul_i32 s%d, s%d, %d" % (sT1, sWave, 14 * 128))
        self.addr(sA, pWs, M4, [sT0, sT1])
        e("v_min_u32 v8, 55, v%d" % vL)
        e("v_and_b32 v9, 3, v8"); e("v_lshrrev_b32 v8, 2, v8"); e("v_lshlrev_b32 v8, 7, v8"); e("v_lshl_add_u32 v8, v9, 4, v8")
        self.poll(["global_load_dwordx4 v[32:35], v8, %s sc1" % sp(sA)], [32, 33, 34, 35], 36, "Ph")
        self.stamp(8)
        e("v_lshlrev_b32 v8, 4, v%d" % vL); e("v_add_u32 v8, s%d, v8" % sVec)
        e("ds_write_b128 v8, v[32:35]")
        self.lane_rc()
        e("v_lshlrev_b32 v6, 3, v10"); e("v_add_u32 v6, s%d, v6" % sVec)
        e("s_mul_i32 s%d, s%d, %d" % (sT0, sWave, C_WAVE)); e("s_add_u32 s%d, s%d, %d" % (sT0, sT0, L_W))
        e("v_lshl_add_u32 v7, v10, 2, v11"); e("v_lshlrev_b32 v7, 5, v7"); e("v_lshl_add_u32 v7, v12, 3, v7"); e("v_add_u32 v7, s%d, v7" % sT0)
        e("s_waitcnt lgkmcnt(0)")
        self.gemv_chain(14, lambda m: (8 * m, 8 * m + 4), 1024, 512)
        self.reduce_waves16(8)
        e("s_cmp_eq_u32 s%d, 0" % sWave); e("s_cbranch_scc0 L_C_done")
        self.bf16r(8, 8, 9)
        e("v_and_b32 v23, 1, v%d" % vL); e("v_cmp_eq_u32 vcc, 1, v23")
        e("v_lshlrev_b32 v23, 16, v22"); e("v_and_b32 v22, 0xffff0000, v22")
        e("v_cndmask_b32 v22, v23, v22, vcc")
        e("v_add_f32 v8, v8, v22")
        self.nop(1)
        e("v_mov_b32_dpp v9, v8 quad_perm:[1,0,3,2] row_mask:0xf bank_mask:0xf")
        e("v_cvt_pk_bf16_f32 v9, v8, v9")
        e("v_lshlrev_b32 v14, 1, v%d" % vL)
        e("s_cmp_eq_u32 s%d, 0" % sPass); e("s_cbranch_scc0 L_C_out")
        e("v_mov_b32 v15, -2"); e("v_min_u32 v9, v9, v15")
        e("s_lshl_b32 s%d, s%d, 7" % (sT1, sIdx))
        self.addr(sA, pWs, M5, [sT1])
        e("s_mov_b64 exec, 0x5555")
        e("global_store_dword v14, v9, %s sc1" % sp(sA))
        e("s_mov_b64 exec, -1")
        e("s_branch L_C_done")
        self.lab("L_C_out")
        e("s_lshl_b32 s%d, s%d, 5" % (sT1, sIdx))
        self.addr(sA, pOut, 0, [sT1])
        e("s_mov_b64 exec, 0x5555")
        e("global_store_dword v14, v9, %s" % sp(sA))
        e("s_mov_b64 exec, -1")
        self.lab("L_C_done")


    def poll2(self, mk_loads, n, sets, dst, name="Q", sleep=0):
        e = self.e
        A, B = sets
        nl = len(mk_loads(A))
        L = self.nl(name); DA = self.nl(name + "a"); DB = self.nl(name + "b"); D = self.nl(name + "d")
        def check(base, target):
            rr = list(range(base, base + n))
            t = self.ptmp
            if n == 1:
                t = base
            else:
                if n >= 3:
                    e("v_max3_u32 v%d, v%d, v%d, v%d" % (t, rr[0], rr[1], rr[2])); rr = rr[3:]
                else:
                    e("v_max_u32 v%d, v%d, v%d" % (t, rr[0], rr[1])); rr = rr[2:]
                while rr:
                    if len(rr) >= 2:
                        e("v_max3_u32 v%d, v%d, v%d, v%d" % (t, t, rr[0], rr[1])); rr = rr[2:]
                    else:
                        e("v_max_u32 v%d, v%d, v%d" % (t, t, rr[0])); rr = rr[1:]
            e("v_cmp_eq_u32 vcc, -1, v%d" % t)
            e("s_cbranch_vccz %s" % target)
        e("s_mov_b32 s%d, 0" % sSpin)
        for ld in mk_loads(A): e(ld)
        self.lab(L)
        for ld in mk_loads(B): e(ld)
        e("s_waitcnt vmcnt(%d)" % nl)
        check(A, DA)
        for ld in mk_loads(A): e(ld)
        e("s_waitcnt vmcnt(%d)" % nl)
        check(B, DB)
        if sleep:
            e("s_sleep %d" % sleep)
        e("s_add_u32 s%d, s%d, 1" % (sSpin, sSpin))
        e("s_cmp_lt_u32 s%d, %d" % (sSpin, SPIN_LIMIT))
        e("s_cbranch_scc1 %s" % L)
        e("s_waitcnt vmcnt(0)")
        self.lab(DA)
        for i in range(n): e("v_mov_b32 v%d, v%d" % (dst + i, A + i))
        e("s_branch %s" % D)
        self.lab(DB)
        for i in range(n): e("v_mov_b32 v%d, v%d" % (dst + i, B + i))
        self.lab(D)

    ptmp = 31

    def rc2(self):
        e = self.e
        e("v_lshrrev_b32 v28, 4, v%d" % vL); e("v_bfe_u32 v29, v%d, 2, 2" % vL); e("v_and_b32 v30, 3, v%d" % vL)

    @property
    def NPRE(self):
        return 7 if self.o.get('stamps') else 8

    def breg(self, m):
        return 32 + 4 * (m % self.NPRE)

    def b_issue(self, lq, m, b_step, b_second):
        r = self.breg(m)
        lq.issue("ds_read_b64_tr_b16 v[%d:%d], v7 offset:%d" % (r, r + 1, m * b_step), ("B", m))
        lq.issue("ds_read_b64_tr_b16 v[%d:%d], v7 offset:%d" % (r + 2, r + 3, m * b_step + b_second), ("B", m))

    def chain2(self, lq, n, b_step, b_second, acc=16):
        e = self.e
        Ab = [20, 24, 28]
        def a_issue(m):
            lq.issue("ds_read2_b64 v[%d:%d], v6 offset0:%d offset1:%d" % (Ab[m % 3], Ab[m % 3] + 3, 8 * m, 8 * m + 4), ("A", m))
        for m in range(3):
            a_issue(m)
        for m in range(n):
            lq.wait([("A", m), ("B", m)])
            c = "0" if m == 0 else vr(acc, 4)
            e("v_mfma_f32_16x16x32_bf16 %s, %s, %s, %s" % (vr(acc, 4), vr(Ab[m % 3], 4), vr(self.breg(m), 4), c))
            if m + 3 < n:
                a_issue(m + 3)
            if m + self.NPRE < n:
                self.b_issue(lq, m + self.NPRE, b_step, b_second)
        self.nop(8)

    def ln2(self):
        e = self.e
        F = 20
        e("v_cmp_gt_u32 vcc, 56, v%d" % vL)
        for d in range(4):
            e("v_lshlrev_b32 v%d, 16, v%d" % (F + 2 * d, 16 + d))
            e("v_and_b32 v%d, 0xffff0000, v%d" % (F + 2 * d + 1, 16 + d))
        e("v_pk_add_f32 v[28:29], v[20:21], v[22:23]")
        e("v_pk_mul_f32 v[30:31], v[20:21], v[20:21]")
        e("v_pk_add_f32 v[16:17], v[24:25], v[26:27]")
        e("v_pk_fma_f32 v[30:31], v[22:23], v[22:23], v[30:31]")
        e("v_pk_add_f32 v[28:29], v[28:29], v[16:17]")
        e("v_pk_fma_f32 v[30:31], v[24:25], v[24:25], v[30:31]")
        e("v_add_f32 v28, v28, v29")
        e("v_pk_fma_f32 v[30:31], v[26:27], v[26:27], v[30:31]")
        e("v_cndmask_b32 v28, 0, v28, vcc")
        e("v_add_f32 v30, v30, v31")
        e("v_cndmask_b32 v30, 0, v30, vcc")
        for n in (8, 4, 2, 1):
            self.nop(1)
            e("v_add_f32_dpp v28, v28, v28 row_ror:%d row_mask:0xf bank_mask:0xf" % n)
            e("v_add_f32_dpp v30, v30, v30 row_ror:%d row_mask:0xf bank_mask:0xf" % n)
        for sw in ("v_permlane16_swap_b32", "v_permlane32_swap_b32"):
            e("v_mov_b32 v29, v28"); e("v_mov_b32 v31, v30"); self.nop(1)
            e("%s v28, v29" % sw); e("%s v30, v31" % sw)
            e("v_add_f32 v28, v28, v29"); e("v_add_f32 v30, v30, v31")
        e("v_mul_f32 v28, 0x3b124925, v28")
        e("v_mul_f32 v30, 0x3b124925, v30")
        e("v_cvt_pk_bf16_f32 v29, v28, v28")
        e("v_fma_f32 v30, -v28, v28, v30")
        e("v_and_b32 v28, 0xffff0000, v29")
        e("v_max_f32 v30, 0, v30")
        e("v_cvt_pk_bf16_f32 v31, v30, v30")
        e("v_pk_add_f32 v[20:21], v[20:21], v[28:29] op_sel_hi:[1,0] neg_lo:[0,1] neg_hi:[0,1]")
        e("v_and_b32 v30, 0xffff0000, v31")
        e("v_pk_add_f32 v[22:23], v[22:23], v[28:29] op_sel_hi:[1,0] neg_lo:[0,1] neg_hi:[0,1]")
        e("v_add_f32 v30, 0x3727c5ac, v30")
        e("v_pk_add_f32 v[24:25], v[24:25], v[28:29] op_sel_hi:[1,0] neg_lo:[0,1] neg_hi:[0,1]")
        e("v_cvt_pk_bf16_f32 v31, v30, v30")
        e("v_pk_add_f32 v[26:27], v[26:27], v[28:29] op_sel_hi:[1,0] neg_lo:[0,1] neg_hi:[0,1]")
        e("v_and_b32 v30, 0xffff0000, v31")
        e("v_cvt_pk_bf16_f32 v16, v20, v21")
        e("v_sqrt_f32 v30, v30")
        e("v_cvt_pk_bf16_f32 v17, v22, v23")
        e("v_cvt_pk_bf16_f32 v18, v24, v25")
        e("v_cvt_pk_bf16_f32 v31, v30, v30")
        e("v_cvt_pk_bf16_f32 v19, v26, v27")
        e("v_and_b32 v30, 0xffff0000, v31")
        e("v_lshlrev_b32 v20, 16, v16")
        e("v_rcp_f32 v30, v30")
        e("v_and_b32 v21, 0xffff0000, v16")
        for d in range(1, 4):
            e("v_lshlrev_b32 v%d, 16, v%d" % (F + 2 * d, 16 + d))
            e("v_and_b32 v%d, 0xffff0000, v%d" % (F + 2 * d + 1, 16 + d))
        for d in range(4):
            e("v_pk_mul_f32 v[%d:%d], v[%d:%d], v[30:31] op_sel_hi:[1,0]" % (F + 2 * d, F + 2 * d + 1, F + 2 * d, F + 2 * d + 1))
        for d in range(4):
            e("v_cvt_pk_bf16_f32 v%d, v%d, v%d" % (16 + d, F + 2 * d, F + 2 * d + 1))
        e("ds_write_b128 v5, v[16:19]")
        e("s_waitcnt lgkmcnt(0)")

    def prepBD(self, role):
        e = self.e
        self.rc2()
        e("v_lshlrev_b32 v6, 3, v28"); e("v_add_u32 v6, s%d, v6" % sVec)
        e("v_lshlrev_b32 v5, 4, v%d" % vL); e("v_add_u32 v5, s%d, v5" % sVec)
        e("v_lshl_add_u32 v7, v28, 2, v29")
        if role == "D":
            e("v_bfe_u32 v31, v7, 1, 2"); e("v_xor_b32 v31, s%d, v31" % sWave)
            e("v_lshlrev_b32 v7, 7, v7"); e("v_lshl_add_u32 v7, v31, 5, v7"); e("v_lshl_add_u32 v7, v30, 3, v7"); e("v_add_u32 v7, %d, v7" % L_W)
            st = (4096, 2048)
        elif role == "B":
            e("v_lshlrev_b32 v7, 6, v7")
            e("v_and_b32 v31, 1, v30"); e("v_lshl_add_u32 v7, v31, 3, v7")
            e("v_lshrrev_b32 v31, 1, v30"); e("v_mul_u32_u24 v31, %d, v31" % B_IMG3); e("v_add_u32 v7, v7, v31")
            e("s_lshl_b32 s%d, s%d, 4" % (sT0, sWave)); e("s_add_u32 s%d, s%d, %d" % (sT0, sT0, L_W)); e("v_add_u32 v7, s%d, v7" % sT0)
            st = (2048, 1024)
        else:
            e("s_mul_i32 s%d, s%d, %d" % (sT0, sWave, C_WAVE)); e("s_add_u32 s%d, s%d, %d" % (sT0, sT0, L_W))
            e("v_lshlrev_b32 v7, 5, v7"); e("v_lshl_add_u32 v7, v30, 3, v7"); e("v_add_u32 v7, s%d, v7" % sT0)
            st = (1024, 512)
        lq = LQ(self)
        for m in range(self.NPRE):
            self.b_issue(lq, m, st[0], st[1])
        return lq, st

    def poll_x2(self, mode):
        e = self.e
        e("v_min_u32 v19, 55, v%d" % vL)
        if mode == "M3":
            e("v_lshlrev_b32 v19, 7, v19")
        else:
            e("v_and_b32 v18, 1, v19"); e("v_lshrrev_b32 v19, 1, v19"); e("v_lshlrev_b32 v19, 7, v19"); e("v_lshl_add_u32 v19, v18, 4, v19")
        e("v_mov_b32 v29, v19")
        self.poll2(lambda b: ["global_load_dwordx4 v[%d:%d], v29, %s sc1" % (b, b + 3, sp(sA))], 4, (8, 12), 16, "Qx")

    def publish_pairs(self, val, tmp, base_pair, off_vreg, mask):
        e = self.e
        e("v_mov_b32_dpp v%d, v%d quad_perm:[1,0,3,2] row_mask:0xf bank_mask:0xf" % (tmp, val))
        e("v_cvt_pk_bf16_f32 v%d, v%d, v%d" % (tmp, val, tmp))
        e("v_min_u32 v%d, v%d, v%d" % (tmp, tmp, 27))
        e("s_mov_b64 exec, 0x%x" % mask)
        e("global_store_dword v%d, v%d, %s sc1" % (off_vreg, tmp, sp(base_pair)))
        e("s_mov_b64 exec, -1")

    def wait_leftover(self):
        e = self.e
        a = self.nl("Lwl"); b = self.nl("Lwl")
        e("s_cmp_eq_u32 s%d, 0" % sWave); e("s_cbranch_scc1 %s" % a)
        e("s_waitcnt vmcnt(0)"); e("s_branch %s" % b)
        self.lab(a); e("s_waitcnt vmcnt(1)"); self.lab(b)

    def publish_wg(self, val, tmp, base_pair, nper, mask):
        e = self.e
        sk = self.nl("Lpw")
        e("v_mov_b32_dpp v%d, v%d quad_perm:[1,0,3,2] row_mask:0xf bank_mask:0xf" % (tmp, val))
        e("s_mul_i32 s%d, s%d, %d" % (sT0, sWave, nper * 4)); e("s_add_u32 s%d, s%d, %d" % (sT0, sT0, L_RED))
        e("v_cvt_pk_bf16_f32 v%d, v%d, v%d" % (tmp, val, tmp))
        e("v_lshlrev_b32 v26, 1, v%d" % vL); e("v_add_u32 v26, s%d, v26" % sT0)
        e("v_min_u32 v%d, v%d, v%d" % (tmp, tmp, 27))
        e("s_mov_b64 exec, 0x%x" % mask)
        e("ds_write_b32 v26, v%d" % tmp)
        e("s_mov_b64 exec, -1")
        e("v_lshlrev_b32 v26, 2, v%d" % vL)
        e("s_waitcnt lgkmcnt(0)")
        e("s_barrier")
        e("s_cmp_eq_u32 s%d, 0" % sWave); e("s_cbranch_scc0 %s" % sk)
        e("ds_read_b32 v%d, v26 offset:%d" % (tmp, L_RED))
        e("s_mov_b64 exec, 0x%x" % ((1 << (4 * nper)) - 1) if 4 * nper < 32 else "s_mov_b32 exec_hi, 0")
        e("s_waitcnt lgkmcnt(0)")
        e("global_store_dword v26, v%d, %s sc1" % (tmp, sp(base_pair)))
        e("s_mov_b64 exec, -1")
        self.lab(sk)

    def stageD2_prep(self):
        self.lqD, self.stD = self.prepBD("D")

    def stageD2_rest(self):
        e = self.e
        lq = LQ(self); lq.q = [("B", m) for m in range(self.NPRE) for _ in range(2)]
        self.ln2(); lq.q = []
        self.chain2(lq, 14, 4096, 2048)
        e("v_mov_b32 v27, -2")
        if self.onest:
            self.publish_wg(16, 25, sB, 8, 0x5555)
        else:
            e("v_lshlrev_b32 v26, 1, v%d" % vL)
            self.publish_pairs(16, 25, sB, 26, 0x5555)

    def stage_B2(self):
        e = self.e
        e("s_waitcnt vmcnt(0)"); e("s_barrier")
        self.stamp(11)
        lq, st = self.prepBD("B")
        e("s_lshl_b32 s%d, s%d, 13" % (sT0, sPass)); e("s_lshl_b32 s%d, s%d, 7" % (sT1, sIdx)); e("s_lshl_b32 s%d, s%d, 4" % (sT2, sWave))
        self.addr(sB, pWs, M4, [sT0, sT1] if self.onest else [sT0, sT1, sT2])
        self.addr(sA, pWs, M3, [sT0])
        self.poll_x2("M3")
        self.stamp(8)
        self.ln2(); lq.q = []
        self.chain2(lq, 14, st[0], st[1])
        e("v_cvt_pk_bf16_f32 v17, v16, v16"); e("v_and_b32 v16, 0xffff0000, v17")
        e("v_mul_f32 v19, 0xbfb8aa3b, v16")
        e("v_exp_f32 v19, v19")
        e("v_mov_b32_dpp v18, v16 row_ror:8 row_mask:0xf bank_mask:0xf")
        e("v_add_f32 v19, 1.0, v19")
        e("v_rcp_f32 v19, v19"); e("v_mov_b32 v27, -2")
        e("v_mul_f32 v19, v16, v19")
        e("v_cvt_pk_bf16_f32 v17, v19, v19"); e("v_and_b32 v19, 0xffff0000, v17")
        e("v_mul_f32 v19, v19, v18")
        if self.onest:
            self.nop(2)
            self.publish_wg(19, 25, sB, 4, 0x55)
            self.stamp(9)
            self.wait_leftover()
        else:
            e("v_lshlrev_b32 v26, 1, v%d" % vL); self.nop(1)
            self.publish_pairs(19, 25, sB, 26, 0x55)
            self.stamp(9)
            e("s_waitcnt vmcnt(1)")

    def stage_C2(self):
        e = self.e
        e("s_waitcnt vmcnt(0)")
        self.stamp(11)
        lq, st = self.prepBD("C")
        e("s_lshl_b32 s%d, s%d, 13" % (sT0, sPass)); e("s_lshl_b32 s%d, s%d, 8" % (sT1, sIdx))
        self.addr(sB, pWs, M3, [sT0, sT1])
        e("v_bfe_u32 v20, v%d, 3, 1" % vL); e("v_lshlrev_b32 v20, 7, v20")
        e("v_bfe_u32 v21, v%d, 1, 2" % vL); e("v_lshl_add_u32 v20, v21, 2, v20")
        self.poll(["global_load_dword v22, v20, %s sc1" % sp(sB)], [22], 23, "Pr")
        self.stamp(12)
        e("v_and_b32 v23, 1, v%d" % vL); e("v_cmp_eq_u32 vcc, 1, v23")
        e("v_lshlrev_b32 v23, 16, v22"); e("v_and_b32 v22, 0xffff0000, v22")
        e("v_cndmask_b32 v22, v23, v22, vcc")
        e("v_and_b32 v23, 15, v%d" % vL); e("v_lshlrev_b32 v23, 2, v23")
        e("ds_write_b32 v23, v22 offset:%d" % (L_RED + 256))
        lq.q.append(("S", 0))
        e("s_lshl_b32 s%d, s%d, 13" % (sT0, sPass)); e("s_mul_i32 s%d, s%d, %d" % (sT1, sWave, 14 * 128))
        self.addr(sA, pWs, M4, [sT0, sT1])
        e("v_min_u32 v29, 55, v%d" % vL)
        e("v_and_b32 v28, 3, v29"); e("v_lshrrev_b32 v29, 2, v29"); e("v_lshlrev_b32 v29, 7, v29"); e("v_lshl_add_u32 v29, v28, 4, v29")
        e("s_cmp_eq_u32 s%d, 0" % sPass)
        e("s_lshl_b32 s%d, s%d, 7" % (sT1, sIdx)); e("s_lshl_b32 s%d, s%d, 5" % (sT2, sIdx))
        lo = self.nl("Lco"); ld = self.nl("Lcod")
        e("s_cmp_eq_u32 s%d, 0" % sPass); e("s_cbranch_scc0 %s" % lo)
        self.addr(sB, pWs, M5, [sT1]); e("s_branch %s" % ld)
        self.lab(lo); self.addr(sB, pOut, 0, [sT2]); self.lab(ld)
        self.poll2(lambda b: ["global_load_dwordx4 v[%d:%d], v29, %s sc1" % (b, b + 3, sp(sA))], 4, (8, 12), 16, "Qh")
        self.stamp(8)
        e("ds_write_b128 v5, v[16:19]")
        e("s_waitcnt lgkmcnt(0)"); lq.q = []
        self.chain2(lq, 14, st[0], st[1])
        e("v_and_b32 v20, 15, v%d" % vL); e("v_lshlrev_b32 v20, 2, v20")
        e("s_lshl_b32 s%d, s%d, 6" % (sT0, sWave)); e("s_add_u32 s%d, s%d, %d" % (sT0, sT0, L_RED))
        e("v_add_u32 v21, s%d, v20" % sT0)
        e("ds_write_b32 v21, v16")
        e("s_waitcnt lgkmcnt(0)")
        e("s_barrier")
        lz = self.nl("Lcz")
        e("s_cmp_eq_u32 s%d, 0" % sWave); e("s_cbranch_scc0 %s" % lz)
        for w in range(4):
            e("ds_read_b32 v%d, v20 offset:%d" % (22 + w, L_RED + w * 64))
        e("ds_read_b32 v21, v20 offset:%d" % (L_RED + 256))
        e("v_mov_b32 v27, -2"); e("v_lshlrev_b32 v26, 1, v%d" % vL)
        e("s_waitcnt lgkmcnt(0)")
        e("v_add_f32 v22, v22, v23"); e("v_add_f32 v24, v24, v25"); e("v_add_f32 v16, v22, v24")
        e("v_cvt_pk_bf16_f32 v17, v16, v16"); e("v_and_b32 v16, 0xffff0000, v17")
        e("v_add_f32 v16, v16, v21")
        self.nop(1)
        self.publish_pairs(16, 25, sB, 26, 0x5555)
        le = self.nl("Lce")
        self.stamp(9)
        e("s_waitcnt vmcnt(1)"); e("s_branch %s" % le)
        self.lab(lz)
        e("s_waitcnt vmcnt(0)")
        self.lab(le)


    def stage_O2(self):
        e = self.e
        self.rc2()
        e("v_lshlrev_b32 v6, 3, v28"); e("v_add_u32 v6, s%d, v6" % sVec)
        e("v_lshl_add_u32 v7, v28, 2, v29"); e("v_mul_u32_u24 v7, %d, v7" % O_ROW); e("v_lshl_add_u32 v7, v30, 3, v7")
        e("s_mul_i32 s%d, s%d, 224" % (sT0, sWave)); e("s_add_u32 s%d, s%d, %d" % (sT0, sT0, L_W)); e("v_add_u32 v7, s%d, v7" % sT0)
        e("v_and_b32 v5, 15, v%d" % vL); e("v_lshlrev_b32 v5, 3, v5")
        e("v_lshrrev_b32 v9, 5, v%d" % vL); e("v_lshl_add_u32 v5, v9, 2, v5"); e("v_add_u32 v5, s%d, v5" % sVec)
        e("s_mul_i32 s%d, s%d, %d" % (sT0, sIdx, M2_SLOT)); e("s_mul_i32 s%d, s%d, 0x%x" % (sT1, sPass, M2_R)); e("s_lshl_b32 s%d, s%d, 9" % (sT2, sWave))
        self.addr(sB, pWs, M2, [sT0, sT1, sT2])
        e("s_mul_i32 s%d, s%d, %d" % (sT0, sIdx, 16 * M1_SLOT)); e("s_mul_i32 s%d, s%d, 0x%x" % (sT1, sPass, M1_R))
        self.addr(sA, pWs, M1 + 2304, [sT0, sT1])
        e("v_mul_u32_u24 v10, %d, v28" % M1_SLOT)
        e("v_and_b32 v11, 15, v%d" % vL); e("v_lshl_add_u32 v11, v11, 4, v10")
        e("v_add_u32 v10, 256, v10")
        e("s_mov_b32 s%d, 0x%x" % (sT3, C_EXP))
        loads = []
        for j in range(4):
            off = j * 4 * M1_SLOT - 2304
            loads.append("global_load_dwordx2 v[%d:%d], v10, %s offset:%d sc1" % (48 + 2 * j, 49 + 2 * j, sp(sA), off))
            loads.append("global_load_dwordx4 v[%d:%d], v11, %s offset:%d sc1" % (32 + 4 * j, 35 + 4 * j, sp(sA), off))
        self.poll(loads, list(range(32, 56)), 56, "Ps1")
        self.stamp(8)
        e("v_max3_f32 v56, v48, v50, v52"); e("v_max_f32 v56, v56, v54")
        for sw in ("v_permlane16_swap_b32", "v_permlane32_swap_b32"):
            e("v_mov_b32 v57, v56"); self.nop(2); e("%s v56, v57" % sw); e("v_max_f32 v56, v56, v57")
        for j in range(4):
            e("v_sub_f32 v%d, v%d, v56" % (48 + 2 * j, 48 + 2 * j))
        for j in range(4):
            e("v_mul_f32 v%d, s%d, v%d" % (48 + 2 * j, sT3, 48 + 2 * j))
        for j in range(4):
            e("v_exp_f32 v%d, v%d" % (48 + 2 * j, 48 + 2 * j))
        self.nop(1)
        e("v_mul_f32 v56, v48, v49")
        e("v_pk_mul_f32 v[32:33], v[32:33], v[48:49] op_sel_hi:[1,0]"); e("v_pk_mul_f32 v[34:35], v[34:35], v[48:49] op_sel_hi:[1,0]")
        for j in range(1, 4):
            e("v_fmac_f32 v56, v%d, v%d" % (48 + 2 * j, 49 + 2 * j))
            e("v_pk_fma_f32 v[32:33], v[%d:%d], v[%d:%d], v[32:33] op_sel_hi:[1,0,1]" % (32 + 4 * j, 33 + 4 * j, 48 + 2 * j, 49 + 2 * j))
            e("v_pk_fma_f32 v[34:35], v[%d:%d], v[%d:%d], v[34:35] op_sel_hi:[1,0,1]" % (34 + 4 * j, 35 + 4 * j, 48 + 2 * j, 49 + 2 * j))
        e("v_mov_b32 v57, v56"); self.nop(1)
        e("v_permlane32_swap_b32 v32, v34"); e("v_permlane32_swap_b32 v33, v35"); e("v_permlane32_swap_b32 v56, v57")
        e("v_add_f32 v32, v32, v34"); e("v_add_f32 v33, v33, v35"); e("v_add_f32 v56, v56, v57")
        e("v_mov_b32 v34, v32"); e("v_mov_b32 v35, v33"); e("v_mov_b32 v57, v56"); self.nop(1)
        e("v_permlane16_swap_b32 v32, v34"); e("v_permlane16_swap_b32 v33, v35"); e("v_permlane16_swap_b32 v56, v57")
        e("v_add_f32 v56, v56, v57"); e("v_add_f32 v32, v32, v34"); e("v_rcp_f32 v56, v56"); e("v_add_f32 v33, v33, v35")
        self.nop(1)
        e("v_pk_mul_f32 v[32:33], v[32:33], v[56:57] op_sel_hi:[1,0]")
        e("v_cvt_pk_bf16_f32 v32, v32, v33")
        lq = LQ(self)
        lq.issue("ds_write_b32 v5, v32", "W")
        if self.o.get("dbg_a"):
            e("s_lshl_b32 s%d, s%d, 13" % (sT0, sPass)); e("s_lshl_b32 s%d, s%d, 7" % (sT1, sIdx))
            self.addr(sA, pWs, 0xC0000, [sT0, sT1])
            e("v_subrev_u32 v35, s%d, v5" % sVec)
            e("global_store_dword v35, v32, %s" % sp(sA))
        steps = [(ct, m) for ct in range(7) for m in range(2)]
        def b_iss(k):
            ct, m = steps[k]; r = 44 + 4 * (k % 5)
            lq.issue("ds_read_b64_tr_b16 v[%d:%d], v7 offset:%d" % (r, r + 1, m * 32 * O_ROW + ct * 32), ("B", k))
            lq.issue("ds_read_b64_tr_b16 v[%d:%d], v7 offset:%d" % (r + 2, r + 3, (m * 32 + 16) * O_ROW + ct * 32), ("B", k))
        for k in range(5):
            b_iss(k)
        lq.wait(["W"])
        lq.issue("ds_read2_b64 v[36:39], v6 offset0:0 offset1:4", "A"); lq.issue("ds_read2_b64 v[40:43], v6 offset0:8 offset1:12", "A")
        for k, (ct, m) in enumerate(steps):
            lq.wait([("B", k), "A"])
            acc = [12, 16, 20, 24, 28, 32, 8][ct]
            c = "0" if m == 0 else vr(acc, 4)
            e("v_mfma_f32_16x16x32_bf16 %s, %s, %s, %s" % (vr(acc, 4), vr(36 + 4 * m, 4), vr(44 + 4 * (k % 5), 4), c))
            if k + 5 < len(steps):
                b_iss(k + 5)
        self.nop(8)
        for row in range(1, 4):
            e("s_mov_b32 exec_lo, 0x%x" % (0xffff0000 if row == 1 else 0))
            e("s_mov_b32 exec_hi, 0x%x" % (0 if row == 1 else (0xffff << (16 * (row - 2)))))
            e("v_mov_b32 v12, v%d" % (12 + 4 * row))
            if row < 3:
                e("v_mov_b32 v28, v%d" % (32 if row == 1 else 8))
        e("s_mov_b64 exec, -1")
        e("v_mov_b32 v41, -2"); e("v_lshlrev_b32 v42, 2, v%d" % vL); e("v_min_u32 v12, v12, v41"); e("v_min_u32 v28, v28, v41")
        e("global_store_dword v42, v12, %s sc1" % sp(sB))
        e("s_mov_b32 exec_hi, 0xffff")
        e("global_store_dword v42, v28, %s offset:256 sc1" % sp(sB))
        e("s_mov_b64 exec, -1")
        self.stamp(9)

    def stage_R2(self):
        e = self.e
        e("v_lshrrev_b32 v24, 4, v%d" % vL); e("v_lshlrev_b32 v24, 2, v24")
        e("s_cmp_eq_u32 s%d, 0" % sPass); e("s_cbranch_scc0 L_R_r1")
        e("s_lshl_b32 s%d, s%d, 4" % (sT0, sIdx))
        self.addr(sB, pX, 0, [sT0])
        e("s_branch L_R_r2")
        self.lab("L_R_r1")
        e("s_lshr_b32 s%d, s%d, 1" % (sT0, sIdx)); e("s_lshl_b32 s%d, s%d, 7" % (sT0, sT0))
        e("s_and_b32 s%d, s%d, 1" % (sT1, sIdx)); e("s_lshl_b32 s%d, s%d, 4" % (sT1, sT1))
        self.addr(sB, pWs, M5, [sT0, sT1])
        self.lab("L_R_r2")
        e("global_load_dword v25, v24, %s sc1" % sp(sB))
        e("s_lshl_b32 s%d, s%d, 13" % (sT0, sPass)); e("s_lshl_b32 s%d, s%d, 7" % (sT1, sIdx))
        self.addr(sB, pWs, M3, [sT0, sT1])
        e("s_mul_i32 s%d, s%d, 4682" % (sT2, sIdx)); e("s_lshr_b32 s%d, s%d, 16" % (sT2, sT2))
        e("s_mul_i32 s%d, s%d, 14" % (sT3, sT2)); e("s_sub_u32 s%d, s%d, s%d" % (sT3, sIdx, sT3))
        e("s_lshl_b32 s%d, s%d, 9" % (sT2, sT2)); e("s_lshl_b32 s%d, s%d, 5" % (sT3, sT3)); e("s_add_u32 s%d, s%d, s%d" % (sT0, sT2, sT3))
        e("s_mul_i32 s%d, s%d, 0x%x" % (sT1, sPass, M2_R))
        self.addr(sA, pWs, M2, [sT0, sT1])
        e("v_mul_u32_u24 v29, %d, v%d" % (M2_SLOT, vL)); e("v_mov_b32 v41, -2")
        self.poll2(lambda b: ["global_load_dwordx4 v[%d:%d], v29, %s sc1" % (b, b + 3, sp(sA)),
                              "global_load_dwordx4 v[%d:%d], v29, %s offset:16 sc1" % (b + 4, b + 7, sp(sA))], 8, (8, 16), 32, "Qr")
        self.stamp(8)
        self.nop(1)
        for d in range(4):
            e("v_permlane32_swap_b32 v%d, v%d" % (32 + d, 36 + d))
        e("v_pk_add_f32 v[32:33], v[32:33], v[36:37]"); e("v_pk_add_f32 v[34:35], v[34:35], v[38:39]")
        self.nop(2)
        e("v_permlane16_swap_b32 v32, v34"); e("v_permlane16_swap_b32 v33, v35")
        e("v_pk_add_f32 v[32:33], v[32:33], v[34:35]")
        for n in (8, 4, 2, 1):
            self.nop(1 if n == 8 else 1)
            if n == 8: self.nop(1)
            e("v_add_f32_dpp v32, v32, v32 row_ror:%d row_mask:0xf bank_mask:0xf" % n)
            e("v_add_f32_dpp v33, v33, v33 row_ror:%d row_mask:0xf bank_mask:0xf" % n)
        e("v_cvt_pk_bf16_f32 v34, v32, v33")
        e("v_lshlrev_b32 v35, 16, v25"); e("v_and_b32 v36, 0xffff0000, v25")
        e("v_lshlrev_b32 v32, 16, v34"); e("v_and_b32 v33, 0xffff0000, v34")
        e("v_add_f32 v32, v32, v35"); e("v_add_f32 v33, v33, v36")
        e("v_cvt_pk_bf16_f32 v34, v32, v33")
        e("v_min_u32 v34, v34, v41")
        e("s_mov_b32 exec_lo, 0x00010001"); e("s_mov_b32 exec_hi, 0x00010001")
        e("global_store_dword v24, v34, %s sc1" % sp(sB))
        e("s_mov_b64 exec, -1")
        self.stamp(9)
        e("s_waitcnt vmcnt(1)")


    def probe_near(self):
        e = self.e
        sk = self.nl("Lpr"); lp = self.nl("Lprl"); bar = self.nl("Lprb")
        N = max(self.alN, 1)
        NP = int(self.o.get("nprobe", 5 if N <= 2 else 4))
        e("s_cmp_eq_u32 s%d, 0" % sPass); e("s_cbranch_scc0 %s" % sk)
        e("s_and_b32 s%d, s%d, 3" % (sT5, sIdx)); e("s_cmp_lt_u32 s%d, 2" % sT5); e("s_cbranch_scc0 %s" % sk)
        e("s_waitcnt vmcnt(0)")
        e("s_cmp_eq_u32 s%d, 0" % sWave); e("s_cbranch_scc0 %s" % bar)
        e("s_cmp_eq_u32 s%d, 1" % sT5)
        e("s_cselect_b32 s%d, s%d, s%d" % (sA, sVB, sKB)); e("s_cselect_b32 s%d, s%d, s%d" % (sA + 1, sVB + 1, sKB + 1))
        e("s_lshr_b32 s%d, s%d, 2" % (sT0, sIdx)); e("s_lshl_b32 s%d, s%d, 4" % (sT0, sT0))
        e("s_and_b32 s%d, s2, 7" % sT1); e("s_xor_b32 s%d, s%d, 4" % (sT1, sT1)); e("s_add_u32 s%d, s%d, s%d" % (sRho, sT0, sT1))
        e("s_mov_b32 s%d, s%d" % (sT0, sRho)); e("s_sub_i32 s%d, s%d, s2" % (sT1, sT0)); e("s_lshl_b32 s%d, s%d, 20" % (sT1, sT1)); e("s_add_i32 s%d, s%d, 3072" % (sT1, sT1))
        e("s_ashr_i32 s%d, s%d, 31" % (sT2, sT1))
        e("s_add_u32 s%d, s%d, s%d" % (sA, sA, sT1)); e("s_addc_u32 s%d, s%d, s%d" % (sA + 1, sA + 1, sT2))
        e("s_mul_i32 s%d, s%d, %d" % (sT4, sT0, self.stag)); e("s_and_b32 s%d, s%d, 63" % (sT4, sT4)); e("s_mul_i32 s%d, s%d, %d" % (sT4, sT4, self.stride))
        e("s_cmp_eq_u32 s%d, 1" % sT5); e("s_cselect_b32 s%d, 65, 29" % sT0)
        e("s_lshr_b32 s%d, s%d, 3" % (sT1, sRho)); e("s_add_u32 s%d, s%d, s%d" % (sT0, sT0, sT1)); e("s_add_u32 s%d, s%d, 32" % (sT0, sT0))
        e("s_sub_u32 s%d, 0, s%d" % (sT0, sT0)); e("s_and_b32 s%d, s%d, %d" % (sT0, sT0, N - 1)); e("s_add_u32 s%d, s%d, 32" % (sT0, sT0))
        e("s_mul_i32 s%d, s%d, %d" % (sT0, sT0, self.stride)); e("s_add_u32 s%d, s%d, s%d" % (sT1, sT4, sT0)); e("s_and_b32 s%d, s%d, 0x%x" % (sT1, sT1, 64 * self.stride - 1))
        if self.ilv == 2:
            assert N == 2
            lk = self.nl("Lprk")
            e("s_mov_b32 s%d, %d" % (sEx, N * self.stride))
            e("s_cmp_eq_u32 s%d, 1" % sT5); e("s_cbranch_scc0 %s" % lk)
            e("s_lshr_b32 s%d, s%d, 3" % (sT1, sRho)); e("s_add_u32 s%d, s%d, 93" % (sT1, sT1)); e("s_and_b32 s%d, s%d, 1" % (sT1, sT1))
            e("s_add_u32 s%d, s%d, 8" % (sT1, sT1))
            e("s_mul_i32 s%d, s%d, %d" % (sT1, sT1, self.stride)); e("s_add_u32 s%d, s%d, s%d" % (sT1, sT1, sT4)); e("s_and_b32 s%d, s%d, 0x%x" % (sT1, sT1, 64 * self.stride - 1))
            e("s_mov_b32 s%d, %d" % (sEx, 8 * self.stride))
            self.lab(lk)
        elif self.ilv:
            lk = self.nl("Lprk")
            e("s_mov_b32 s%d, %d" % (sEx, N * self.stride))
            e("s_cmp_eq_u32 s%d, 1" % sT5); e("s_cbranch_scc0 %s" % lk)
            e("s_lshr_b32 s%d, s%d, 3" % (sT1, sRho)); e("s_add_u32 s%d, s%d, %d" % (sT1, sT1, 93 + 2))
            e("s_sub_u32 s%d, 0, s%d" % (sT1, sT1)); e("s_and_b32 s%d, s%d, %d" % (sT1, sT1, N - 1)); e("s_add_u32 s%d, s%d, 2" % (sT1, sT1))
            e("s_and_b32 s%d, s%d, 1" % (sT0, sT1)); e("s_lshl_b32 s%d, s%d, 1" % (sT1, sT1)); e("s_sub_u32 s%d, s%d, s%d" % (sT1, sT1, sT0)); e("s_add_u32 s%d, s%d, 10" % (sT1, sT1))
            e("s_mul_i32 s%d, s%d, %d" % (sT1, sT1, self.stride)); e("s_add_u32 s%d, s%d, s%d" % (sT1, sT1, sT4)); e("s_and_b32 s%d, s%d, 0x%x" % (sT1, sT1, 64 * self.stride - 1))
            e("s_mov_b32 s%d, %d" % (sEx, 2 * N * self.stride))
            self.lab(lk)
        e("s_mov_b32 s%d, -1" % sT2); e("s_mov_b32 s%d, -1" % sT3); e("s_mov_b32 s%d, %d" % (sT0, NP))
        self.lab(lp)
        for par, acc in ((0, sT2), (1, sT3)):
            e("s_add_u32 s%d, s%d, %d" % (sT4, sT1, par * 8192 + 1024)); e("v_mov_b32 v8, s%d" % sT4)
            e("s_memtime s[90:91]"); e("s_waitcnt lgkmcnt(0)"); e("s_mov_b32 s%d, s90" % sT4)
            e("global_load_dword v9, v8, %s nt" % sp(sA))
            e("s_waitcnt vmcnt(0)")
            e("s_memtime s[90:91]"); e("s_waitcnt lgkmcnt(0)")
            e("s_sub_u32 s%d, s90, s%d" % (sT4, sT4)); e("s_min_u32 s%d, s%d, s%d" % (acc, acc, sT4))
        if self.ilv:
            e("s_add_u32 s%d, s%d, s%d" % (sT1, sT1, sEx))
        else:
            e("s_add_u32 s%d, s%d, %d" % (sT1, sT1, N * self.stride))
        e("s_and_b32 s%d, s%d, 0x%x" % (sT1, sT1, 64 * self.stride - 1))
        e("s_sub_u32 s%d, s%d, 1" % (sT0, sT0)); e("s_cmp_lg_u32 s%d, 0" % sT0); e("s_cbranch_scc1 %s" % lp)
        e("s_lshr_b32 s%d, s%d, 1" % (sT0, sRho)); e("s_lshr_b32 s%d, s2, 2" % sT1); e("s_xor_b32 s%d, s%d, s%d" % (sT0, sT0, sT1)); e("s_and_b32 s%d, s%d, 1" % (sT0, sT0))
        e("s_cmp_gt_u32 s%d, s%d" % (sT2, sT3)); e("s_cselect_b32 s%d, 1, 0" % sT1); e("s_xor_b32 s%d, s%d, s%d" % (sT1, sT1, sT0))
        if self.o.get("dbg_probe"):
            e("s_lshr_b32 s%d, s%d, 3" % (sT2, sT2)); e("s_min_u32 s%d, s%d, 0x3ff" % (sT2, sT2)); e("s_lshl_b32 s%d, s%d, 2" % (sT2, sT2))
            e("s_lshr_b32 s%d, s%d, 3" % (sT3, sT3)); e("s_min_u32 s%d, s%d, 0x3ff" % (sT3, sT3)); e("s_lshl_b32 s%d, s%d, 12" % (sT3, sT3))
            e("s_or_b32 s%d, s%d, s%d" % (sT1, sT1, sT2)); e("s_or_b32 s%d, s%d, s%d" % (sT1, sT1, sT3))
        e("v_mov_b32 v8, s%d" % sT1)
        e("s_lshr_b32 s%d, s%d, 2" % (sT0, sIdx)); e("s_lshl_b32 s%d, s%d, 7" % (sT0, sT0)); e("s_lshl_b32 s%d, s%d, 2" % (sT1, sT5))
        self.addr(sB, pWs, M8, [sT0, sT1])
        e("v_mov_b32 v9, 0")
        e("s_mov_b64 exec, 1")
        e("global_store_dword v9, v8, %s sc1" % sp(sB))
        e("s_mov_b64 exec, -1")
        self.lab(bar)
        e("s_barrier")
        self.lab(sk)


    def emit_issue_sub(self):
        e = self.e
        mask = 64 * self.stride - 1
        t0, t1, t2 = sOf2, sT0 + 0, sT0 + 0
        self.lab("L_issue")
        e("s_mov_b32 m0, s%d" % sSlot)
        e("s_add_u32 s%d, s%d, 4096" % (sSlot, sSlot))
        e("s_cmp_eq_u32 s%d, s%d" % (sSlot, sRe))
        e("s_cselect_b32 s%d, s%d, s%d" % (sSlot, sRs, sSlot))
        X, Y = 90, 91
        e("s_mov_b32 s%d, s%d" % (X, sJ))
        e("s_cmp_eq_u32 s%d, 0" % sIsV); e("s_cbranch_scc1 L_is_k")
        if self.ilv == 3:
            e("s_and_b32 s%d, s%d, 1" % (Y, sJ)); e("s_lshl_b32 s%d, s%d, 1" % (X, sJ)); e("s_sub_u32 s%d, s%d, s%d" % (X, X, Y)); e("s_add_u32 s%d, s%d, s%d" % (X, X, sVadd))
            e("s_bitcmp1_b32 s%d, 31" % sVadd); e("s_cbranch_scc1 L_is_vres")
            e("s_add_u32 s%d, s%d, 24" % (Y, sJ)); e("s_cmp_ge_u32 s%d, 16" % sJ); e("s_cselect_b32 s%d, s%d, s%d" % (X, Y, X))
            e("s_branch L_is_v2")
            self.lab("L_is_vres")
            e("s_cmp_lt_u32 s%d, 8" % sJ); e("s_cselect_b32 s%d, s%d, s%d" % (X, sJ, X))
            e("s_add_u32 s%d, s%d, 36" % (Y, sJ)); e("s_cmp_ge_u32 s%d, 24" % sJ); e("s_cselect_b32 s%d, s%d, s%d" % (X, Y, X))
            self.lab("L_is_v2")
        elif self.ilv == 2:
            e("s_bitcmp1_b32 s%d, 31" % sVadd); e("s_cbranch_scc1 L_is_vres")
            e("s_mul_i32 s%d, s%d, 43" % (Y, sJ)); e("s_lshr_b32 s%d, s%d, 8" % (Y, Y)); e("s_lshl_b32 s%d, s%d, 1" % (Y, Y))
            e("s_add_u32 s%d, s%d, s%d" % (X, sJ, Y)); e("s_add_u32 s%d, s%d, 8" % (X, X))
            e("s_branch L_is_v2")
            self.lab("L_is_vres")
            e("s_and_b32 s%d, s%d, 1" % (Y, sJ)); e("s_sub_u32 s%d, s%d, s%d" % (X, sJ, Y)); e("s_lshl_b32 s%d, s%d, 2" % (X, X)); e("s_add_u32 s%d, s%d, s%d" % (X, X, Y)); e("s_sub_u32 s%d, s%d, 18" % (X, X))
            e("s_cmp_lt_u32 s%d, 8" % sJ); e("s_cselect_b32 s%d, s%d, s%d" % (X, sJ, X))
            e("s_add_u32 s%d, s%d, 36" % (Y, sJ)); e("s_cmp_ge_u32 s%d, 20" % sJ); e("s_cselect_b32 s%d, s%d, s%d" % (X, Y, X))
            self.lab("L_is_v2")
        else:
            e("s_and_b32 s%d, s%d, 1" % (Y, sJ)); e("s_lshl_b32 s%d, s%d, 1" % (X, sJ)); e("s_sub_u32 s%d, s%d, s%d" % (X, X, Y)); e("s_add_u32 s%d, s%d, s%d" % (X, X, sVadd))
            e("s_bitcmp1_b32 s%d, 31" % sVadd); e("s_cbranch_scc1 L_is_vres")
            e("s_add_u32 s%d, s%d, 28" % (Y, sJ)); e("s_cmp_ge_u32 s%d, 20" % sJ); e("s_cselect_b32 s%d, s%d, s%d" % (X, Y, X))
            e("s_branch L_is_v2")
            self.lab("L_is_vres")
            e("s_cmp_lt_u32 s%d, 8" % sJ); e("s_cselect_b32 s%d, s%d, s%d" % (X, sJ, X))
            self.lab("L_is_v2")
        e("s_cmp_eq_u32 s%d, 2" % sNM); e("s_cbranch_scc1 L_is_near")
        e("s_branch L_is_own")
        self.lab("L_is_k")
        e("s_cmp_eq_u32 s%d, 1" % sNM); e("s_cbranch_scc0 L_is_own")
        if self.ilv == 3:
            e("s_cmp_ge_u32 s%d, 60" % sJ); e("s_cbranch_scc1 L_is_kown")
            e("s_cmp_ge_u32 s%d, 40" % sJ); e("s_cbranch_scc1 L_is_knear")
            e("s_cmp_lt_u32 s%d, 10" % sJ); e("s_cbranch_scc1 L_is_kown")
            e("s_bitcmp1_b32 s%d, 1" % sJ); e("s_cbranch_scc1 L_is_knear")
        elif self.ilv == 2:
            e("s_cmp_lt_u32 s%d, 8" % sJ); e("s_cbranch_scc1 L_is_kown")
            e("s_cmp_ge_u32 s%d, 56" % sJ); e("s_cbranch_scc1 L_is_kown")
            e("s_and_b32 s%d, s%d, 6" % (Y, sJ)); e("s_cmp_eq_u32 s%d, 6" % Y); e("s_cbranch_scc0 L_is_knear")
        else:
            e("s_cmp_ge_u32 s%d, 48" % sJ); e("s_cbranch_scc1 L_is_knear")
            e("s_cmp_lt_u32 s%d, 10" % sJ); e("s_cbranch_scc1 L_is_kown")
            e("s_bitcmp1_b32 s%d, 1" % sJ); e("s_cbranch_scc1 L_is_knear")
        self.lab("L_is_kown")
        e("s_mov_b32 s%d, s%d" % (sCUR, sKB)); e("s_mov_b32 s%d, s%d" % (sCUR + 1, sKB + 1))
        self.lab("L_is_own")
        e("s_lshl_b32 s%d, s%d, %d" % (Y, X, 10 if self.ilv == 2 else 11)); e("s_xor_b32 s%d, s%d, s%d" % (Y, Y, sWb))
        if self.ilv == 3:
            e("s_xor_b32 s%d, s%d, 8192" % (sOf2, Y)); e("s_cmp_ge_u32 s%d, 62" % X); e("s_cselect_b32 s%d, s%d, s%d" % (Y, sOf2, Y))
        e("s_and_b32 s%d, s%d, 8192" % (Y, Y))
        e("s_lshl_b32 s%d, s%d, 14" % (X, X)); e("s_add_u32 s%d, s%d, s%d" % (X, X, sRot)); e("s_and_b32 s%d, s%d, 0x%x" % (X, X, mask)); e("s_add_u32 s%d, s%d, s%d" % (sOf2, X, Y))
        e("s_branch L_is_go")
        self.lab("L_is_knear")
        e("s_mov_b32 s%d, s%d" % (sCUR, sKN)); e("s_mov_b32 s%d, s%d" % (sCUR + 1, sKN + 1))
        self.lab("L_is_near")
        e("s_lshl_b32 s%d, s%d, 14" % (X, X)); e("s_add_u32 s%d, s%d, s%d" % (X, X, sRotN)); e("s_and_b32 s%d, s%d, 0x%x" % (sOf2, X, mask))
        self.lab("L_is_go")
        e("s_add_u32 s%d, s%d, 1" % (sAc, sAc)); e("s_and_b32 s%d, s%d, %d" % (sAc, sAc, self.alN - 1))
        e("s_cmp_lt_u32 s%d, s%d" % (sAc, sAlloc))
        e("s_cbranch_scc1 L_is_alloc")
        for k in range(4):
            e("buffer_load_dwordx4 v%d, %s, s%d offen offset:%d nt lds" % (vo[k], sp(sCUR, 4), sOf2, k * 1024))
        e("s_branch L_is_done")
        self.lab("L_is_alloc")
        for k in range(4):
            e("buffer_load_dwordx4 v%d, %s, s%d offen offset:%d lds" % (vo[k], sp(sCUR, 4), sOf2, k * 1024))
        self.lab("L_is_done")
        e("s_add_u32 s%d, s%d, 1" % (sJ, sJ))
        e("s_cmp_lg_u32 s%d, s%d" % (sJ, sLen)); e("s_cbranch_scc0 L_is_next")
        e("s_setpc_b64 %s" % sp(sRet))
        self.lab("L_is_next")
        e("s_add_u32 s%d, s%d, 1" % (sSeg, sSeg))
        e("s_mov_b32 s%d, s%d" % (sJ, sZ)); e("s_mov_b32 s%d, s%d" % (sAlloc, sZ)); e("s_mov_b32 s%d, s%d" % (sNM, sZ))
        e("s_cmp_eq_u32 s%d, 5" % sSeg); e("s_cbranch_scc1 L_is_end")
        e("s_bitcmp1_b32 s%d, 0" % sSeg); e("s_cbranch_scc0 L_is_v")
        e("s_mov_b32 s%d, s%d" % (sIsV, sZ)); e("s_add_u32 s%d, s%d, 64" % (sLen, sZ))
        e("s_mov_b32 s%d, s%d" % (sCUR, sKB)); e("s_mov_b32 s%d, s%d" % (sCUR + 1, sKB + 1))
        e("s_cmp_eq_u32 s%d, 1" % sSeg)
        e("s_cselect_b32 s%d, %d, 0" % (sAlloc, self.alM)); e("s_cselect_b32 s%d, 0, 1" % sNM)
        e("s_add_u32 s%d, s%d, s%d" % (sAlloc, sAlloc, sZ)); e("s_add_u32 s%d, s%d, s%d" % (sNM, sNM, sZ))
        self.kpat()
        e("s_setpc_b64 %s" % sp(sRet))
        self.lab("L_is_v")
        e("s_add_u32 s%d, s%d, 1" % (sIsV, sZ)); e("s_add_u32 s%d, s%d, %d" % (sLen, sZ, 2 * NSTR_T)); e("s_add_u32 s%d, s%d, 10" % (sVadd, sZ))
        e("s_cmp_eq_u32 s%d, 2" % sSeg)
        e("s_cselect_b32 s%d, %d, 0" % (sAlloc, self.alM if self.alV else 0)); e("s_cselect_b32 s%d, 0, 2" % sNM)
        e("s_cselect_b32 s%d, s%d, s%d" % (sCUR, sVB, sVN)); e("s_cselect_b32 s%d, s%d, s%d" % (sCUR + 1, sVB + 1, sVN + 1))
        e("s_add_u32 s%d, s%d, s%d" % (sAlloc, sAlloc, sZ)); e("s_add_u32 s%d, s%d, s%d" % (sNM, sNM, sZ))
        self.vpat()
        e("s_setpc_b64 %s" % sp(sRet))
        self.lab("L_is_end")
        e("s_mov_b32 s%d, 0" % (sCUR + 2)); e("s_mov_b32 s%d, s%d" % (sIsV, sZ)); e("s_sub_u32 s%d, s%d, 1" % (sLen, sZ))
        e("s_setpc_b64 %s" % sp(sRet))

    def build(self):
        e = self.e
        self.prologue()
        early = int(self.o.get("early", 0)) and self.ilv
        if early:
            e("s_lshr_b32 s%d, s%d, 1" % (sT1, sWave)); e("s_lshl_b32 s%d, s%d, 13" % (sT1, sT1))
            for u in range(2):
                e("s_mov_b32 m0, s%d" % sSlot); e("s_add_u32 s%d, s%d, 4096" % (sSlot, sSlot))
                e("s_add_u32 s%d, s%d, %d" % (sT0, sRot, u * self.stride)); e("s_and_b32 s%d, s%d, 0x%x" % (sT0, sT0, 64 * self.stride - 1)); e("s_add_u32 s%d, s%d, s%d" % (sT0, sT0, sT1))
                for k in range(4):
                    e("buffer_load_dwordx4 v%d, %s, s%d offen offset:%d nt lds" % (vo[k], sp(sCUR, 4), sT0, k * 1024))
            e("s_add_u32 s%d, s%d, 2" % (sAc, sAc)); e("s_and_b32 s%d, s%d, %d" % (sAc, sAc, self.alN - 1))
        self.dbg_span(2)
        self.stamp(0)
        self.weights_setup('start')
        if self.ilv:
            e("s_lshr_b32 s%d, s%d, 1" % (sWb, sWave)); e("s_lshl_b32 s%d, s%d, 13" % (sWb, sWb))
            e("s_add_u32 s%d, s%d, %d" % (sJ, sZ, 2 if early else 0)); e("s_add_u32 s%d, s%d, %d" % (sLen, sZ, 2 * NRES_T)); e("s_add_u32 s%d, s%d, 1" % (sIsV, sZ))
            e("s_mov_b32 s%d, s%d" % (sNM, sZ)); e("s_sub_u32 s%d, s%d, 8" % (sVadd, sZ)); e("s_mov_b32 s%d, s%d" % (sSeg, sZ)); e("s_mov_b32 s%d, s%d" % (sAlloc, sZ))
            e("s_add_u32 s%d, s%d, s%d" % (sSlot, sSlot, sZ))
        elif self.swz:
            e("s_mov_b32 s%d, 0" % sN); e("s_lshr_b32 s%d, s%d, 1" % (sWb, sWave)); e("s_lshl_b32 s%d, s%d, 13" % (sWb, sWb)); e("s_mov_b32 s%d, 8192" % sSwM)
        e("v_min_u32 v9, 55, v%d" % vL); e("v_lshlrev_b32 v9, 4, v9")
        xr = 16 if int(self.o.get("gap2", 1)) else 32
        e("global_load_dwordx4 v[%d:%d], v9, %s" % (xr, xr + 3, sp(pX)))
        if early and self.NX:
            self.xop(0); self.xop(1)
        if self.clr2:
            self.lds_zero()
        else:
            self.clear_mailboxes()
        if int(self.o.get("cpf0", 0)):
            sk = self.nl("Lcp")
            e("s_cmp_eq_u32 s%d, 1" % sWave); e("s_cbranch_scc0 %s" % sk)
            e("s_getpc_b64 s[18:19]")
            self.lab("L_pcref0")
            e("s_add_u32 s18, s18, L_p1a_code-L_pcref0"); e("s_addc_u32 s19, s19, 0")
            e("v_lshlrev_b32 v8, 7, v%d" % vL)
            for k in range(4):
                e("v_min_u32 v9, L_endcode-L_p1a_code-4, v8"); e("global_load_dword v24, v9, s[18:19]"); e("v_add_u32 v8, 8192, v8")
            self.lab(sk)
        if not early:
            for u in range(self.R):
                self.group(u)
        self.stamp(1)
        self.p1a()
        self.stamp(2)
        self.lab("L_pass")
        self.gather_q()
        self.dbg_span_pass(6)
        self.stamp(3)
        self.kphase()
        self.stamp(4)
        self.softmax()
        self.vphase()
        self.stamp(5)
        self.combine_publish()
        self.dbg_span_pass(4)
        self.stamp(6)
        g2 = int(self.o.get("gap2", 1))
        e("s_cmp_eq_u32 s%d, 1" % sRole); e("s_cbranch_scc1 L_roleO")
        e("s_cmp_eq_u32 s%d, 4" % sRole); e("s_cbranch_scc1 L_roleD")
        if self.gapw:
            lw = self.nl("Lgw")
            e("s_cmp_eq_u32 s%d, 0" % sPass); e("s_cbranch_scc0 %s" % lw)
            e("s_cmp_eq_u32 s%d, 0" % sRole); e("s_cbranch_scc1 %s" % lw)
            self.weights_setup('gap')
            for i in range(14):
                self.xop(i)
            self.lab(lw)
        e("s_cmp_eq_u32 s%d, 2" % sRole); e("s_cbranch_scc1 L_roleB")
        e("s_cmp_eq_u32 s%d, 3" % sRole); e("s_cbranch_scc1 L_roleC")
        self.topup()
        self.l2pf_ilv(int(self.o.get("pfN", 0)))
        e("s_branch L_next")
        self.lab("L_roleO")
        self.stage_O2() if g2 else self.stage_S1()
        if self.p2n == 2:
            self.probe_near()
            self.topup(2)
            self.l2pf_ilv(int(self.o.get("pfO", 0)))
        else:
            self.topup()
        e("s_branch L_next")
        self.lab("L_roleB")
        if g2:
            self.stage_B2(); self.topup(); self.l2pf_ilv(int(self.o.get("pfB", 0)))
        else:
            self.topup(); self.stage_B()
        e("s_branch L_next")
        self.lab("L_roleC")
        if g2:
            self.stage_C2(); self.topup(int(self.o.get("tpaceC", 0)))
        else:
            self.topup(); self.stage_C()
        e("s_branch L_next")
        self.lab("L_roleD")
        e("s_cmp_eq_u32 s%d, 0" % sWave); e("s_cbranch_scc0 L_D_rdone")
        e("s_cmp_lt_u32 s%d, 56" % sIdx); e("s_cbranch_scc0 L_D_rdone")
        self.stage_R2() if g2 else self.stage_R()
        self.lab("L_D_rdone")
        self.topup()
        self.l2pf_ilv(int(self.o.get("pfD", 0)))
        e("s_cmp_eq_u32 s%d, 0" % sPass); e("s_cbranch_scc0 L_next")
        if g2:
            e("s_call_b64 %s, L_stageD_prep" % sp(sRet2))
            self.addr(sA, pWs, M5)
            self.poll_x2("M5")
            self.stamp(10)
            e("s_lshl_b32 s%d, s%d, 7" % (sT0, sIdx)); e("s_lshl_b32 s%d, s%d, 5" % (sT1, sWave))
            self.addr(sB, pWs, M6 + MR, [sT0] if self.onest else [sT0, sT1])
            e("s_call_b64 %s, L_stageD_rest" % sp(sRet2))
            if self.onest:
                self.wait_leftover()
            else:
                e("s_waitcnt vmcnt(1)")
        else:
            self.addr(sA, pWs, M5)
            self.gather_x(M5, "M5")
            self.stamp(10)
            self.addr(sA, pWs, M6 + MR)
            e("s_call_b64 %s, L_stageD" % sp(sRet2))
        self.lab("L_next")
        self.stamp(7)
        e("s_add_u32 s%d, s%d, 1" % (sPass, sPass))
        e("s_cmp_lt_u32 s%d, 2" % sPass)
        e("s_cbranch_scc1 L_pass")
        self.dump_stamps()
        self.dbg_span(3)
        e("s_waitcnt vmcnt(0)")
        self.lab("L_end")
        e("s_endpgm")
        if int(self.o.get("gap2", 1)):
            self.lab("L_stageD_prep")
            self.stageD2_prep()
            e("s_setpc_b64 %s" % sp(sRet2))
            self.lab("L_stageD_rest")
            self.stageD2_rest()
            e("s_setpc_b64 %s" % sp(sRet2))
        else:
            self.lab("L_stageD")
            self.stage_D(None)
            e("s_setpc_b64 %s" % sp(sRet2))
        if self.ilv:
            self.emit_issue_sub()
        else:
            self.emit_switch()
        self.lab("L_endcode")
        e("s_endpgm")
        return self.a.text()


HEADER = """; Persistent fused decode kernel: [attn -> mlp] x2, V tiles kept resident in registers across the two attention passes.
; @launch grid=(256,1,1) block=(256,1,1) lds=%d
.amdgcn_target "amdgcn-amd-amdhsa--gfx950"
.text
.globl %s
.p2align 8
.type %s,@function
%s:
"""
FOOTER = """.section .rodata,"a"
.p2align 6
.amdhsa_kernel %s
  .amdhsa_next_free_vgpr 512
  .amdhsa_next_free_sgpr 102
  .amdhsa_accum_offset 256
  .amdhsa_group_segment_fixed_size 0
  .amdhsa_kernarg_size 96
  .amdhsa_user_sgpr_count 2
  .amdhsa_user_sgpr_kernarg_segment_ptr 1
  .amdhsa_system_sgpr_workgroup_id_x 1
  .amdhsa_float_denorm_mode_32 3
.end_amdhsa_kernel
"""


def generate(opt=None):
    opt = opt or {}
    g = Gen(opt)
    body = g.build()
    return HEADER % (LDS_TOTAL, KNAME, KNAME, KNAME) + body + FOOTER % KNAME


if __name__ == "__main__":
    out = sys.argv[1] if len(sys.argv) > 1 else "gen/kernel.s"
    opt = {}
    for kv in sys.argv[2:]:
        k, v = kv.split("=")
        opt[k] = v
    open(out, "w").write(generate(opt))
    print("wrote", out)
```

```python
import sys, os
sys.path.insert(0, os.path.dirname(os.path.abspath(__file__)))
from asmlib import Asm

KNAME = "interleave_layers__mha_block_cached__glu_gated_swiglu__decode_kernel"

L_Q = 0
L_Z = 2176
L_SM = 2688
L_RED = 2752
L_ST = 2048
L_P = 3072
L_W = 7168
LDS_TOTAL = 163840
RING_NONE = 7168
RING_ROLE = 65536
O_ROW = 912
B_IMG3 = 28704
C_WAVE = 14336

M1 = 0x0; M1_R = 0x60000; M1_SLOT = 384
M2 = 0x100000; M2_R = 0x20000; M2_SLOT = 2048; M3 = 0xC4000; M4 = 0xC8000; M5 = 0xCC000; M6 = 0xCE000; MR = 0x2000
DBG = 0x200000

NRES_PAIRS = 7
NRES_T = 2 * NRES_PAIRS
NSTR_T = 32 - NRES_T
STRIDE = 16384
SPIN_LIMIT = 1 << 18
C_EXP = 0x3DB8AA3B
LOG2E = 0x3FB8AA3B

sW, sWave = 2, 3
pX, pK, pV, pWq, pWo, pW1, pW3, pW2, pOut, pDbg, pWs = 8, 10, 12, 14, 16, 20, 22, 24, 26, 28, 30
sKB, sVB = 32, 34
sCUR = 36
sSlot, sRs, sRe, sOff, sLeft, sSeg, sCs, sPass = 40, 41, 42, 43, 44, 45, 46, 47
sRole, sIdx, sH, sC, sNS, sVec, sWl, sSpin = 48, 49, 50, 51, 52, 53, 54, 55
sM = [56, 58, 60, 62]
sMd, sRet, sEx = 64, 66, 68
sT0, sT1, sT2, sT3, sT4, sT5 = 70, 71, 72, 73, 74, 75
sA = 76
sB = 78
sT15 = 80
sRho = 19
sWS = 84
sRet2 = 88
sWlds, sWlstep, sWoff, sWoff0, sWstep = 94, 95, 96, 97, 98
sAlloc = 99
sQok = 100
sJ, sLen, sIsV, sNM, sVadd = 43, 44, 16, 14, 54
sZ = 81
sN, sWb, sSwM, sOf2 = 16, 17, 14, 15
sKN, sVN, sRotN, sXch, sTm0, sTm1 = 10, 12, 0, 1, 16, 17
M7 = 0x300000
M8 = 0xD2000
sAc = 93
sRot = 101
sWo2 = 4
sWlds0, sWwrap = 6, 7
sWex = 82

vL = 0
vo = [1, 2, 3, 4]
vPh, vAd, vPa = 5, 6, 7
vSC = 8
vACC = 16
vLsum = 8
vW = 12


def sp(r, n=2):
    return "s[%d:%d]" % (r, r + n - 1)


def vr(r, n):
    return "v[%d:%d]" % (r, r + n - 1) if n > 1 else "v%d" % r


def res_reg(m, t, hh=None):
    base = m * 64 + 4 * t
    if m < 3:
        b = 64 + base; p = "v"
    else:
        b = base - 192; p = "a"
    if hh is None:
        return "%s[%d:%d]" % (p, b, b + 3)
    return "%s[%d:%d]" % (p, b + 2 * hh, b + 2 * hh + 1)


def res_T(k):
    return k if k < 4 else 2 * k - 4


def str_T(i):
    return 5 + 2 * i if i < 10 else i + 14


class LQ:
    def __init__(self, g):
        self.g = g; self.q = []
    def issue(self, instr, tag):
        self.g.e(instr); self.q.append(tag)
    def wait(self, tags):
        idx = [i for i, t in enumerate(self.q) if t in tags]
        if not idx:
            return
        last = max(idx)
        n = len(self.q) - 1 - last
        self.g.e("s_waitcnt lgkmcnt(%d)" % min(n, 15))
        self.q = self.q[last + 1:] if n <= 15 else self.q[len(self.q) - 15:]
    def drain(self):
        if self.q:
            self.g.e("s_waitcnt lgkmcnt(0)")
        self.q = []


class Gen:
    def __init__(self, opt):
        self.o = opt
        self.near = int(opt.get("near", 0))
        self.stride = 32768 if self.near else 16384
        self.stag = int(opt.get("stag", 0))
        self.l2pf = int(opt.get("l2pf", 0))
        self.l2pol = opt.get("l2pol", " nt")
        self.wpf = int(opt.get("wpf", 1))
        self.gapw = int(opt.get("gapw", 1))
        self.R = int(opt.get("R", 2))
        self.clr2 = int(opt.get("clr2", 0))
        self.onest = int(opt.get("onest", 1))
        self.q1w = int(opt.get("q1w", 0))
        self.ilv = int(opt.get("ilv", 0))
        self.swz = int(opt.get("swz", 0)) or int(opt.get("ilv", 0))
        self.klin = int(opt.get("klin", 0))
        self.p2n = int(opt.get("p2n", 0))
        self.alN = int(opt.get("alN", 0))
        self.alM = int(opt.get("alM", 0))
        self.alV = int(opt.get("alV", 1))
        self.kalloc = int(opt.get("kalloc", 0))
        self.a = Asm()
        self.e = self.a.e

    def resT(self, k):
        if self.ilv == 3:
            return k if k < 4 else (2 * k - 4 if k < 12 else k + 18)
        if self.ilv == 2:
            return k if k < 4 else (4 * k - 9 if k < 10 else k + 18)
        return res_T(k)

    def strT(self, i):
        if self.ilv == 3:
            return 5 + 2 * i if i < 8 else i + 12
        if self.ilv == 2:
            return 4 + i + i // 3
        return str_T(i)

    def lab(self, n):
        self.a.label(n)

    def nl(self, b="L"):
        return self.a.newlabel(b)

    def nop(self, n):
        if n > 0:
            self.e("s_nop %d" % (n - 1))

    def bf16r(self, dst, src, tmp):
        self.e("v_cvt_pk_bf16_f32 v%d, v%d, v%d" % (tmp, src, src))
        self.e("v_and_b32 v%d, 0xffff0000, v%d" % (dst, tmp))

    def allreduce16(self, x, op):
        e = self.e
        for n in (8, 4, 2, 1):
            self.nop(2)
            e("%s_dpp v%d, v%d, v%d row_ror:%d row_mask:0xf bank_mask:0xf" % (op, x, x, x, n))

    def xrows(self, x, tmp, op):
        e = self.e
        e("v_mov_b32 v%d, v%d" % (tmp, x)); self.nop(2)
        e("v_permlane16_swap_b32 v%d, v%d" % (x, tmp)); self.nop(1)
        e("%s v%d, v%d, v%d" % (op, x, x, tmp))
        e("v_mov_b32 v%d, v%d" % (tmp, x)); self.nop(2)
        e("v_permlane32_swap_b32 v%d, v%d" % (x, tmp)); self.nop(1)
        e("%s v%d, v%d, v%d" % (op, x, x, tmp))

    def allreduce64(self, x, tmp, op):
        self.allreduce16(x, op)
        self.xrows(x, tmp, op)

    def poll(self, loads, regs, tmp, name="P"):
        e = self.e
        L = self.nl(name); D = self.nl(name + "d")
        e("s_mov_b32 s%d, 0" % sSpin)
        self.lab(L)
        for ld in loads:
            e(ld)
        e("s_waitcnt vmcnt(0)")
        rr = list(regs)
        if len(rr) == 1:
            t = rr[0]
        else:
            first = True
            while rr:
                if first:
                    if len(rr) >= 3:
                        e("v_max3_u32 v%d, v%d, v%d, v%d" % (tmp, rr[0], rr[1], rr[2])); rr = rr[3:]
                    else:
                        e("v_max_u32 v%d, v%d, v%d" % (tmp, rr[0], rr[1])); rr = rr[2:]
                    first = False
                elif len(rr) >= 2:
                    e("v_max3_u32 v%d, v%d, v%d, v%d" % (tmp, tmp, rr[0], rr[1])); rr = rr[2:]
                else:
                    e("v_max_u32 v%d, v%d, v%d" % (tmp, tmp, rr[0])); rr = rr[1:]
            t = tmp
        e("v_cmp_eq_u32 vcc, -1, v%d" % t)
        e("s_cbranch_vccz %s" % D)
        e("s_add_u32 s%d, s%d, 1" % (sSpin, sSpin))
        e("s_cmp_lt_u32 s%d, %d" % (sSpin, SPIN_LIMIT))
        e("s_cbranch_scc1 %s" % L)
        self.lab(D)

    def addr(self, dst, base, off_imm=0, off_sregs=()):
        e = self.e
        if off_imm:
            e("s_add_u32 s%d, s%d, 0x%x" % (dst, base, off_imm))
        else:
            e("s_add_u32 s%d, s%d, 0" % (dst, base))
        e("s_addc_u32 s%d, s%d, 0" % (dst + 1, base + 1))
        for r in off_sregs:
            e("s_add_u32 s%d, s%d, s%d" % (dst, dst, r))
            e("s_addc_u32 s%d, s%d, 0" % (dst + 1, dst + 1))

    def stamp(self, idx):
        if not self.o.get("stamps"):
            return
        e = self.e
        sk = self.nl("St")
        e("s_cmp_eq_u32 s%d, 0" % sWave); e("s_cbranch_scc0 %s" % sk)
        e("s_memrealtime s[90:91]")
        e("s_waitcnt lgkmcnt(0)")
        e("s_lshl_b32 s92, s%d, 6" % sPass); e("s_add_u32 s92, s92, %d" % (L_ST + idx * 4))
        e("v_mov_b32 v62, s92"); e("v_mov_b32 v63, s90")
        e("ds_write_b32 v62, v63")
        e("s_waitcnt lgkmcnt(0)")
        self.lab(sk)

    def dbg_span(self, first):
        if not self.o.get("span"):
            return
        e = self.e
        sk = self.nl("Sp")
        e("s_cmp_eq_u32 s%d, 0" % sWave); e("s_cbranch_scc0 %s" % sk)
        e("s_memrealtime s[90:91]")
        e("s_waitcnt lgkmcnt(0)")
        if first == 2:
            e("s_not_b32 s90, s90")
        e("v_mov_b32 v62, %d" % (4 * first)); e("v_mov_b32 v63, s90")
        e("s_mov_b64 exec, 1")
        e("global_atomic_umax v62, v63, %s" % sp(pDbg))
        e("s_mov_b64 exec, -1")
        self.lab(sk)

    def dbg_span_pass(self, base):
        if not self.o.get("span"):
            return
        e = self.e
        sk = self.nl("Sp")
        e("s_cmp_eq_u32 s%d, 0" % sWave); e("s_cbranch_scc0 %s" % sk)
        e("s_memrealtime s[90:91]")
        e("s_waitcnt lgkmcnt(0)")
        e("s_lshl_b32 s92, s%d, 2" % sPass); e("s_add_u32 s92, s92, %d" % (4 * base))
        e("v_mov_b32 v62, s92"); e("v_mov_b32 v63, s90")
        e("s_mov_b64 exec, 1")
        e("global_atomic_umax v62, v63, %s" % sp(pDbg))
        e("s_mov_b64 exec, -1")
        e("s_waitcnt vmcnt(0)")
        self.lab(sk)

    def dump_stamps(self):
        if not self.o.get("stamps"):
            return
        e = self.e
        sk = self.nl("Sd")
        e("s_waitcnt vmcnt(0)")
        e("s_cmp_eq_u32 s%d, 0" % sWave); e("s_cbranch_scc0 %s" % sk)
        e("v_and_b32 v8, 31, v%d" % vL); e("v_lshlrev_b32 v8, 2, v8")
        e("ds_read_b32 v9, v8 offset:%d" % L_ST)
        e("s_lshl_b32 s%d, s2, 7" % sT0)
        self.addr(sA, pWs, DBG, [sT0])
        e("s_waitcnt lgkmcnt(0)")
        e("global_store_dword v8, v9, %s" % sp(sA))
        self.lab(sk)

    def issue(self):
        e = self.e
        if self.ilv:
            e("s_call_b64 %s, L_issue" % sp(sRet))
            return
        pol = self.o.get("pol", " nt")
        e("s_mov_b32 m0, s%d" % sSlot)
        e("s_add_u32 s%d, s%d, 4096" % (sSlot, sSlot))
        so = sOff
        if self.swz:
            so = sOf2
            e("s_lshl_b32 s%d, s%d, 12" % (sOf2, sN)); e("s_xor_b32 s%d, s%d, s%d" % (sOf2, sOf2, sWb)); e("s_and_b32 s%d, s%d, s%d" % (sOf2, sOf2, sSwM))
            e("s_add_u32 s%d, s%d, s%d" % (sOf2, sOf2, sOff)); e("s_add_u32 s%d, s%d, 1" % (sN, sN))
        if self.alN:
            la = self.nl("Ia"); ld = self.nl("Id")
            e("s_add_u32 s%d, s%d, 1" % (sAc, sAc)); e("s_and_b32 s%d, s%d, %d" % (sAc, sAc, self.alN - 1))
            e("s_cmp_lt_u32 s%d, s%d" % (sAc, sAlloc))
            e("s_cbranch_scc1 %s" % la)
        if self.kalloc:
            la = self.nl("Ia"); ld = self.nl("Id")
            e("s_cmp_gt_u32 s%d, 0" % sAlloc)
            e("s_cbranch_scc1 %s" % la)
        for s in range(4):
            e("buffer_load_dwordx4 v%d, %s, s%d offen offset:%d%s lds" % (vo[s], sp(sCUR, 4), so, s * 1024, pol))
        if self.kalloc or self.alN:
            e("s_branch %s" % ld)
            self.lab(la)
            for s in range(4):
                e("buffer_load_dwordx4 v%d, %s, s%d offen offset:%d lds" % (vo[s], sp(sCUR, 4), so, s * 1024))
            if self.kalloc:
                e("s_sub_u32 s%d, s%d, 1" % (sAlloc, sAlloc))
            self.lab(ld)
        e("s_cmp_eq_u32 s%d, s%d" % (sSlot, sRe))
        e("s_cselect_b32 s%d, s%d, s%d" % (sSlot, sRs, sSlot))
        e("s_add_u32 s%d, s%d, %d" % (sOff, sOff, self.stride))
        if self.stag:
            e("s_and_b32 s%d, s%d, 0x%x" % (sOff, sOff, 64 * self.stride - 1))
        e("s_sub_u32 s%d, s%d, 1" % (sLeft, sLeft))
        e("s_cmp_lg_u32 s%d, 0" % sLeft)
        sk = self.nl("Isk")
        e("s_cbranch_scc1 %s" % sk)
        e("s_call_b64 %s, L_switch" % sp(sRet))
        self.lab(sk)

    def kpat(self):
        e = self.e
        if self.klin:
            e("v_lshrrev_b32 v%d, 5, v%d" % (vo[1], vL))
            e("v_and_b32 v%d, 31, v%d" % (vo[0], vL)); e("v_xor_b32 v%d, v%d, v%d" % (vo[0], vo[0], vo[1]))
            e("v_lshlrev_b32 v%d, 4, v%d" % (vo[0], vo[0])); e("v_lshl_add_u32 v%d, v%d, 9, v%d" % (vo[0], vo[1], vo[0]))
            e("v_add_u32 v%d, 3072, v%d" % (vo[0], vo[0]))
            for i in range(1, 4):
                e("v_xor_b32 v%d, %d, v%d" % (vo[i], (2 * i) << 4, vo[0]))
            return
        e("v_and_b32 v%d, 7, v%d" % (vo[0], vL))
        e("v_lshlrev_b32 v%d, 9, v%d" % (vo[0], vo[0]))
        e("v_lshrrev_b32 v%d, 3, v%d" % (vo[1], vL))
        e("v_lshl_add_u32 v%d, v%d, 4, v%d" % (vo[0], vo[1], vo[0]))
        self.pat_fin()

    def vpat(self):
        e = self.e
        e("v_bfe_u32 v%d, v%d, 1, 3" % (vo[0], vL))
        e("v_lshlrev_b32 v%d, 9, v%d" % (vo[0], vo[0]))
        e("v_lshrrev_b32 v%d, 4, v%d" % (vo[1], vL))
        e("v_lshl_add_u32 v%d, v%d, 5, v%d" % (vo[0], vo[1], vo[0]))
        e("v_and_b32 v%d, 1, v%d" % (vo[1], vL))
        e("v_lshl_add_u32 v%d, v%d, 4, v%d" % (vo[0], vo[1], vo[0]))
        self.pat_fin()

    def pat_fin(self):
        e = self.e
        e("v_add_u32 v%d, 3072, v%d" % (vo[0], vo[0]))
        for s in range(1, 4):
            e("v_subrev_u32 v%d, %d, v%d" % (vo[s], 896 * s, vo[0]))

    def emit_switch(self):
        if self.p2n:
            return self.emit_switch_p2n()
        e = self.e
        self.lab("L_switch")
        e("s_add_u32 s%d, s%d, 1" % (sSeg, sSeg))
        e("s_cmp_eq_u32 s%d, 5" % sSeg)
        e("s_cbranch_scc1 L_sw_end")
        e("s_bitcmp1_b32 s%d, 0" % sSeg)
        e("s_cbranch_scc0 L_sw_v")
        e("s_mov_b32 s%d, s%d" % (sCUR, sKB)); e("s_mov_b32 s%d, s%d" % (sCUR + 1, sKB + 1))
        e("s_mov_b32 s%d, s%d" % (sOff, sRot)); e("s_mov_b32 s%d, 64" % sLeft)
        if self.kalloc:
            e("s_cmp_eq_u32 s%d, 1" % sSeg)
            e("s_cselect_b32 s%d, %d, 0" % (sAlloc, self.kalloc))
        if self.alN:
            e("s_cmp_eq_u32 s%d, 1" % sSeg)
            e("s_cselect_b32 s%d, %d, 0" % (sAlloc, self.alM))
        self.kpat()
        e("s_setpc_b64 %s" % sp(sRet))
        self.lab("L_sw_v")
        e("s_mov_b32 s%d, s%d" % (sCUR, sVB)); e("s_mov_b32 s%d, s%d" % (sCUR + 1, sVB + 1))
        e("s_add_u32 s%d, s%d, %d" % (sOff, sRot, 2 * NRES_T * self.stride)); e("s_and_b32 s%d, s%d, 0x%x" % (sOff, sOff, 64 * self.stride - 1))
        e("s_mov_b32 s%d, %d" % (sLeft, 2 * NSTR_T))
        if self.alN:
            e("s_cmp_eq_u32 s%d, 2" % sSeg)
            e("s_cselect_b32 s%d, %d, 0" % (sAlloc, self.alM if self.alV else 0))
        self.vpat()
        e("s_setpc_b64 %s" % sp(sRet))
        self.lab("L_sw_end")
        e("s_mov_b32 s%d, 0" % (sCUR + 2))
        e("s_mov_b32 s%d, 0" % sOff); e("s_mov_b32 s%d, 0x7fffffff" % sLeft)
        e("s_setpc_b64 %s" % sp(sRet))

    def emit_switch_p2n(self):
        e = self.e
        mask = 64 * self.stride - 1
        self.lab("L_switch")
        e("s_add_u32 s%d, s%d, 1" % (sSeg, sSeg))
        e("s_mov_b32 s%d, 0" % sAlloc)
        e("s_cmp_eq_u32 s%d, 1" % sSeg); e("s_cbranch_scc1 L_sw_1")
        e("s_cmp_eq_u32 s%d, 2" % sSeg); e("s_cbranch_scc1 L_sw_2")
        e("s_cmp_eq_u32 s%d, 3" % sSeg); e("s_cbranch_scc1 L_sw_3")
        e("s_cmp_eq_u32 s%d, 4" % sSeg); e("s_cbranch_scc1 L_sw_4")
        e("s_cmp_eq_u32 s%d, 5" % sSeg); e("s_cbranch_scc1 L_sw_5")
        e("s_mov_b32 s%d, 0" % (sCUR + 2))
        e("s_mov_b32 s%d, 0" % sOff); e("s_mov_b32 s%d, 0x7fffffff" % sLeft)
        e("s_setpc_b64 %s" % sp(sRet))
        self.lab("L_sw_1")
        e("s_mov_b32 s%d, %d" % (sAlloc, self.alM))
        e("s_mov_b32 s%d, 64" % sLeft)
        e("s_branch L_sw_k")
        self.lab("L_sw_3")
        if self.o.get("dryK2"):
            e("s_mov_b32 s%d, 0" % (sCUR + 2))
        e("s_mov_b32 s%d, %d" % (sLeft, 2 * NRES_T))
        self.lab("L_sw_k")
        e("s_mov_b32 s%d, s%d" % (sCUR, sKB)); e("s_mov_b32 s%d, s%d" % (sCUR + 1, sKB + 1))
        e("s_mov_b32 s%d, s%d" % (sOff, sRot))
        self.kpat()
        e("s_setpc_b64 %s" % sp(sRet))
        self.lab("L_sw_4")
        if self.swz:
            e("s_mov_b32 s%d, 0" % sSwM)
        e("s_mov_b32 s%d, s%d" % (sCUR, sKN)); e("s_mov_b32 s%d, s%d" % (sCUR + 1, sKN + 1))
        e("s_add_u32 s%d, s%d, %d" % (sOff, sRotN, 2 * NRES_T * self.stride)); e("s_and_b32 s%d, s%d, 0x%x" % (sOff, sOff, mask))
        e("s_mov_b32 s%d, %d" % (sLeft, 2 * NSTR_T))
        e("s_setpc_b64 %s" % sp(sRet))
        self.lab("L_sw_2")
        e("s_mov_b32 s%d, %d" % (sAlloc, self.alM if self.alV else 0))
        e("s_mov_b32 s%d, s%d" % (sCUR, sVB)); e("s_mov_b32 s%d, s%d" % (sCUR + 1, sVB + 1))
        e("s_add_u32 s%d, s%d, %d" % (sOff, sRot, 2 * NRES_T * self.stride))
        e("s_branch L_sw_v")
        self.lab("L_sw_5")
        if self.o.get("dryK2"):
            e("s_mov_b32 s%d, %d" % (sCUR + 2, 0 if self.o.get("dryV2") else 3072 + 63 * self.stride + 4096 + 8192))
        e("s_mov_b32 s%d, s%d" % (sCUR, sVN)); e("s_mov_b32 s%d, s%d" % (sCUR + 1, sVN + 1))
        e("s_add_u32 s%d, s%d, %d" % (sOff, sRotN, 2 * NRES_T * self.stride))
        self.lab("L_sw_v")
        e("s_and_b32 s%d, s%d, 0x%x" % (sOff, sOff, mask))
        e("s_mov_b32 s%d, %d" % (sLeft, 2 * NSTR_T))
        self.vpat()
        e("s_setpc_b64 %s" % sp(sRet))

    def now(self, dst, minus=None):
        e = self.e
        e("s_memrealtime s[90:91]"); e("s_waitcnt lgkmcnt(0)")
        if minus is None:
            e("s_mov_b32 s%d, s90" % dst)
        else:
            e("s_sub_u32 s%d, s90, s%d" % (dst, minus))

    def adv_cs(self):
        e = self.e
        e("s_add_u32 s%d, s%d, 8192" % (sCs, sCs))
        e("s_cmp_eq_u32 s%d, s%d" % (sCs, sRe))
        e("s_cselect_b32 s%d, s%d, s%d" % (sCs, sRs, sCs))

    def step_issue(self):
        w = 4 * (self.R - 1)
        self.e("s_waitcnt vmcnt(%d)" % w)
        self.issue()
        self.e("s_waitcnt vmcnt(%d)" % w)
        self.issue()

    def gwait(self, u):
        lo = max(0, u - self.R + 1)
        cnt = sum(4 + (1 if g < self.NX else 0) + (1 if (self.clr2 and 2 <= g <= 6) else 0) for g in range(lo, u))
        self.e("s_waitcnt vmcnt(%d)" % cnt)

    @property
    def NX(self):
        return 0 if self.o.get('noX') else 16

    def xop(self, i):
        e = self.e
        if i == 7:
            e("s_cmp_eq_u32 s%d, 2" % sRole)
            e("s_cselect_b32 s%d, s%d, s%d" % (sWS, sWo2, sWS))
            e("s_cselect_b32 s%d, s%d, s%d" % (sWS + 1, sWo2 + 1, sWS + 1))
            e("s_cselect_b32 s%d, s%d, s%d" % (sWoff, sWoff0, sWoff))
            e("s_cselect_b32 s%d, s%d, s%d" % (sWlds, sWlds0, sWlds))
        if 0 < i < 14:
            e("s_cmp_eq_u32 s%d, %d" % (sWwrap, i))
            e("s_cselect_b32 s%d, s%d, s%d" % (sWoff, sWoff0, sWoff))
            e("s_cselect_b32 s%d, s%d, s%d" % (sWlds, sWlds0, sWlds))
        if i == 14:
            e("s_cmp_eq_u32 s%d, 1" % sRole)
            e("s_cselect_b32 s%d, s%d, 0" % (sWS + 2, sWS + 2))
            e("s_cselect_b32 s%d, s%d, s%d" % (sWlds, sWlds, sVec))
            e("s_cselect_b32 s%d, s%d, 0" % (sWlstep, sWlstep))
        e("s_mov_b32 m0, s%d" % sWlds); e("s_add_u32 s%d, s%d, s%d" % (sWlds, sWlds, sWlstep))
        e("s_mov_b64 exec, %s" % sp(sWex))
        e("buffer_load_dwordx4 v%d, %s, s%d offen lds" % (vW, sp(sWS, 4), sWoff))
        e("s_mov_b64 exec, -1")
        e("s_add_u32 s%d, s%d, s%d" % (sWoff, sWoff, sWstep))

    def group(self, u):
        if u >= self.R:
            self.gwait(u)
        self.issue()
        if u < self.NX:
            self.xop(u)
        if self.clr2 and 2 <= u <= 6:
            self.clear_op(u - 2)

    def prologue(self):
        e = self.e
        e("s_cmp_ge_u32 s2, 256")
        e("s_cbranch_scc1 L_end")
        e("s_load_dwordx16 s[8:23], s[0:1], 0")
        e("s_load_dwordx8 s[24:31], s[0:1], 64")
        e("v_lshrrev_b32 v1, 6, v0")
        e("v_and_b32 v%d, 63, v0" % vL)
        e("s_nop 0")
        e("v_readfirstlane_b32 s%d, v1" % sWave)
        e("v_mov_b32 v9, 0"); e("s_nop 0"); e("v_readfirstlane_b32 s%d, v9" % sZ)
        x, r = sT0, sT1
        e("s_and_b32 s%d, s2, 7" % x)
        e("s_lshr_b32 s%d, s2, 3" % r)
        if int(self.o.get("rmap", 0)):
            e("s_mov_b32 s%d, 0" % sRole); e("s_mov_b32 s%d, 0" % sIdx)
            e("s_lshr_b32 s%d, s%d, 1" % (sT2, x))
            e("s_bitcmp1_b32 s%d, 0" % x); e("s_cbranch_scc1 L_rodd")
            e("s_and_b32 s%d, s%d, 15" % (sIdx, r)); e("s_lshl_b32 s%d, s%d, 2" % (sIdx, sIdx)); e("s_add_u32 s%d, s%d, s%d" % (sIdx, sIdx, sT2))
            e("s_cmp_lt_u32 s%d, 16" % r); e("s_cselect_b32 s%d, 1, 4" % sRole)
            e("s_branch L_rdone")
            self.lab("L_rodd")
            e("s_cmp_lt_u32 s%d, 14" % r); e("s_cbranch_scc0 L_rodd2")
            e("s_mov_b32 s%d, 2" % sRole); e("s_mul_i32 s%d, s%d, 14" % (sIdx, sT2)); e("s_add_u32 s%d, s%d, s%d" % (sIdx, sIdx, r))
            e("s_branch L_rdone")
            self.lab("L_rodd2")
            e("s_cmp_lt_u32 s%d, 22" % r); e("s_cbranch_scc0 L_rdone")
            e("s_sub_u32 s%d, s%d, 14" % (sT3, r)); e("s_lshr_b32 s%d, s%d, 2" % (sT4, sT3)); e("s_lshl_b32 s%d, s%d, 2" % (sT4, sT4)); e("s_add_u32 s%d, s%d, s%d" % (sT4, sT4, sT2))
            e("s_cmp_lt_u32 s%d, 7" % sT4); e("s_cbranch_scc0 L_rdone")
            e("s_mov_b32 s%d, 3" % sRole); e("s_and_b32 s%d, s%d, 3" % (sT3, sT3)); e("s_lshl_b32 s%d, s%d, 2" % (sIdx, sT4)); e("s_add_u32 s%d, s%d, s%d" % (sIdx, sIdx, sT3))
        else:
            e("s_mov_b32 s%d, 0" % sRole); e("s_mov_b32 s%d, 0" % sIdx)
            e("s_cmp_lt_u32 s%d, 8" % r); e("s_cbranch_scc0 L_r1")
            e("s_mov_b32 s%d, 1" % sRole); e("s_lshl_b32 s%d, s%d, 3" % (sIdx, r)); e("s_add_u32 s%d, s%d, s%d" % (sIdx, sIdx, x))
            e("s_branch L_rdone")
            self.lab("L_r1")
            e("s_cmp_lt_u32 s%d, 16" % r); e("s_cbranch_scc0 L_r2")
            e("s_sub_u32 s%d, s%d, 8" % (sT2, r))
            e("s_lshr_b32 s%d, s%d, 1" % (sT3, sT2)); e("s_lshl_b32 s%d, s%d, 3" % (sT3, sT3)); e("s_add_u32 s%d, s%d, s%d" % (sT3, sT3, x))
            e("s_cmp_lt_u32 s%d, 28" % sT3); e("s_cbranch_scc0 L_rdone")
            e("s_mov_b32 s%d, 2" % sRole); e("s_and_b32 s%d, s%d, 1" % (sT2, sT2)); e("s_lshl_b32 s%d, s%d, 1" % (sIdx, sT3))
            e("s_add_u32 s%d, s%d, s%d" % (sIdx, sIdx, sT2))
            e("s_branch L_rdone")
            self.lab("L_r2")
            e("s_cmp_lt_u32 s%d, 20" % r); e("s_cbranch_scc0 L_r3")
            e("s_cmp_lt_u32 s%d, 7" % x); e("s_cbranch_scc0 L_rdone")
            e("s_mov_b32 s%d, 3" % sRole); e("s_lshl_b32 s%d, s%d, 2" % (sIdx, x)); e("s_add_u32 s%d, s%d, s%d" % (sIdx, sIdx, r))
            e("s_sub_u32 s%d, s%d, 16" % (sIdx, sIdx))
            e("s_branch L_rdone")
            self.lab("L_r3")
            e("s_cmp_lt_u32 s%d, 28" % r); e("s_cbranch_scc0 L_rdone")
            e("s_mov_b32 s%d, 4" % sRole); e("s_sub_u32 s%d, s%d, 20" % (sIdx, r)); e("s_lshl_b32 s%d, s%d, 3" % (sIdx, sIdx))
            e("s_add_u32 s%d, s%d, s%d" % (sIdx, sIdx, x))
        self.lab("L_rdone")
        e("s_add_u32 s%d, s%d, s%d" % (sRole, sRole, sZ))
        e("s_lshr_b32 s%d, s2, 4" % sH); e("s_and_b32 s%d, s2, 15" % sC)
        e("s_mov_b32 s%d, %d" % (sT0, RING_ROLE)); e("s_mov_b32 s%d, 6" % sNS)
        e("s_cmp_eq_u32 s%d, 0" % sRole)
        e("s_cselect_b32 s%d, %d, s%d" % (sT0, RING_NONE, sT0)); e("s_cselect_b32 s%d, 8, s%d" % (sNS, sNS))
        e("s_lshl_b32 s%d, s%d, 12" % (sT1, sNS))
        e("s_mul_i32 s%d, s%d, s%d" % (sT2, sT1, sWave))
        e("s_add_u32 s%d, s%d, s%d" % (sRs, sT0, sT2))
        e("s_add_u32 s%d, s%d, s%d" % (sRe, sRs, sT1))
        e("s_mov_b32 s%d, s%d" % (sSlot, sRs)); e("s_mov_b32 s%d, s%d" % (sCs, sRs))
        e("s_lshl_b32 s%d, s%d, 10" % (sT2, sWave)); e("s_add_u32 s%d, s%d, %d" % (sVec, sT2, L_P))
        e("s_mov_b32 s%d, 0x00010001" % sM[0]); e("s_mov_b32 s%d, 0x00010001" % (sM[0] + 1))
        for u in range(1, 4):
            e("s_lshl_b64 %s, %s, %d" % (sp(sM[u]), sp(sM[0]), u))
        e("s_mov_b32 s%d, s%d" % (sPass, sZ))
        e("s_waitcnt lgkmcnt(0)")
        if not self.near:
            e("s_lshl_b32 s%d, s%d, 4" % (sT0, sH)); e("s_add_u32 s%d, s%d, s%d" % (sT0, sT0, sC))
            e("s_lshl_b32 s%d, s%d, 20" % (sT0, sT0))
            if self.swz:
                e("s_and_b32 s%d, s%d, 1" % (sT1, sWave)); e("s_lshl_b32 s%d, s%d, 12" % (sT1, sT1))
            else:
                e("s_lshl_b32 s%d, s%d, 12" % (sT1, sWave))
            e("s_add_u32 s%d, s%d, s%d" % (sT0, sT0, sT1))
        else:
            e("s_lshl_b32 s%d, s%d, 24" % (sT0, sH))
            e("s_lshr_b32 s%d, s2, 3" % sT1); e("s_and_b32 s%d, s%d, 1" % (sT1, sT1)); e("s_lshl_b32 s%d, s%d, 2" % (sT1, sT1))
            e("s_and_b32 s%d, s2, 3" % sT2); e("s_add_u32 s%d, s%d, s%d" % (sT1, sT1, sT2)); e("s_lshl_b32 s%d, s%d, 21" % (sT1, sT1))
            e("s_add_u32 s%d, s%d, s%d" % (sT0, sT0, sT1))
            e("s_lshr_b32 s%d, s2, 2" % sT1); e("s_xor_b32 s%d, s%d, s2" % (sT1, sT1))
            e("s_xor_b32 s%d, s%d, %d" % (sT1, sT1, int(self.o.get("cpol", 0)))); e("s_and_b32 s%d, s%d, 1" % (sT1, sT1))
            e("s_lshl_b32 s%d, s%d, 13" % (sT1, sT1)); e("s_add_u32 s%d, s%d, s%d" % (sT0, sT0, sT1))
            e("s_and_b32 s%d, s%d, 1" % (sT1, sWave)); e("s_lshl_b32 s%d, s%d, 12" % (sT1, sT1)); e("s_add_u32 s%d, s%d, s%d" % (sT0, sT0, sT1))
            e("s_lshr_b32 s%d, s%d, 1" % (sT1, sWave)); e("s_lshl_b32 s%d, s%d, 14" % (sT1, sT1)); e("s_add_u32 s%d, s%d, s%d" % (sT0, sT0, sT1))
        e("s_mov_b32 s%d, 0" % sAlloc); e("s_lshr_b32 s%d, s2, 3" % sAc); e("s_and_b32 s%d, s%d, 1" % (sT1, sWave)); e("s_add_u32 s%d, s%d, s%d" % (sAc, sAc, sT1))
        for (dst, src) in ((sKB, pK), (sVB, pV)):
            e("s_add_u32 s%d, s%d, s%d" % (dst, src, sT0)); e("s_addc_u32 s%d, s%d, 0" % (dst + 1, src + 1))
            e("s_sub_u32 s%d, s%d, 3072" % (dst, dst)); e("s_subb_u32 s%d, s%d, 0" % (dst + 1, dst + 1))
            e("s_and_b32 s%d, s%d, 0xffff" % (dst + 1, dst + 1))
        e("s_mov_b32 s%d, s%d" % (sCUR, sVB)); e("s_mov_b32 s%d, s%d" % (sCUR + 1, sVB + 1))
        e("s_mov_b32 s%d, %d" % (sCUR + 2, 3072 + 63 * self.stride + 4096 + (8192 if self.swz else 0))); e("s_mov_b32 s%d, 0x20000" % (sCUR + 3))
        if self.stag:
            e("s_mul_i32 s%d, s2, %d" % (sRot, self.stag)); e("s_and_b32 s%d, s%d, 63" % (sRot, sRot)); e("s_mul_i32 s%d, s%d, %d" % (sRot, sRot, self.stride))
        else:
            e("s_mov_b32 s%d, 0" % sRot)
        e("s_mov_b32 s%d, s%d" % (sOff, sRot)); e("s_mov_b32 s%d, %d" % (sLeft, 2 * NRES_T)); e("s_mov_b32 s%d, 0" % sSeg)
        self.vpat()

    def weights_setup(self, which):
        e0 = self.e
        sfx = "_" + which
        def e(x):
            for lb in ("L_wdone", "L_wO", "L_wB", "L_wC"):
                x = x.replace(lb, lb + sfx)
            e0(x)
        lab0 = self.lab
        self.lab = lambda n: lab0(n + sfx)
        e("s_mov_b32 s%d, 0x20000" % (sWS + 3))
        e("s_mov_b64 %s, -1" % sp(sWex))
        pdef = pWq if which == "start" else pW2
        e("s_mov_b32 s%d, s%d" % (sWS, pdef)); e("s_and_b32 s%d, s%d, 0xffff" % (sWS + 1, pdef + 1)); e("s_mov_b32 s%d, 0" % (sWS + 2))
        e("s_mov_b32 s%d, s%d" % (sWlds, sVec))
        e("s_mov_b32 s%d, 0" % sWlstep); e("s_mov_b32 s%d, 0" % sWoff); e("s_mov_b32 s%d, 0" % sWoff0); e("s_mov_b32 s%d, 0" % sWstep)
        e("s_mov_b32 s%d, 99" % sWwrap); e("s_mov_b32 s%d, 0" % sWlds0); e("s_mov_b64 %s, 0" % sp(sWo2))
        e("v_mov_b32 v%d, 0" % vW)
        e("s_cmp_eq_u32 s%d, 0" % sRole); e("s_cbranch_scc1 L_wdone")
        if which == "start" and self.gapw:
            e("s_cmp_eq_u32 s%d, 2" % sRole); e("s_cbranch_scc1 L_wdone")
            e("s_cmp_eq_u32 s%d, 3" % sRole); e("s_cbranch_scc1 L_wdone")
        e("s_mov_b32 s%d, 1024" % sWlstep)
        if which == "start":
            e("s_cmp_eq_u32 s%d, 1" % sRole); e("s_cbranch_scc1 L_wO")
        e("s_cmp_eq_u32 s%d, 2" % sRole); e("s_cbranch_scc1 L_wB")
        if which == "start":
            e("s_cmp_eq_u32 s%d, 3" % sRole); e("s_cbranch_scc1 L_wC")
        else:
            e("s_branch L_wC")
        if which == 'start':
            e("s_mov_b32 s%d, %d" % (sWS + 2, 448 * 8192))
            e("v_lshrrev_b32 v9, 3, v%d" % vL); e("v_lshlrev_b32 v%d, 13, v9" % vW)
            e("v_bfe_u32 v9, v%d, 4, 2" % vL); e("v_lshlrev_b32 v9, 1, v9")
            e("v_and_b32 v10, 7, v%d" % vL); e("v_xor_b32 v9, v9, v10"); e("v_lshl_add_u32 v%d, v9, 4, v%d" % (vW, vW))
            e("s_mul_i32 s%d, s%d, %d" % (sT1, sWave, 14 * 8 * 8192)); e("s_lshl_b32 s%d, s%d, 7" % (sT2, sIdx)); e("s_add_u32 s%d, s%d, s%d" % (sWoff, sT1, sT2))
            e("s_mov_b32 s%d, %d" % (sWstep, 8 * 8192))
            e("s_mul_i32 s%d, s%d, %d" % (sWlds, sWave, 14 * 1024)); e("s_add_u32 s%d, s%d, %d" % (sWlds, sWlds, L_W))
            e("s_branch L_wdone")
        self.lab("L_wC")
        e("s_mov_b32 s%d, s%d" % (sWS, pW2)); e("s_and_b32 s%d, s%d, 0xffff" % (sWS + 1, pW2 + 1)); e("s_mov_b32 s%d, %d" % (sWS + 2, 1792 * 896))
        e("v_lshrrev_b32 v9, 1, v%d" % vL); e("v_mul_u32_u24 v%d, 896, v9" % vW)
        e("v_and_b32 v9, 1, v%d" % vL); e("v_lshl_add_u32 v%d, v9, 4, v%d" % (vW, vW))
        e("s_mul_i32 s%d, s%d, %d" % (sT1, sWave, 448 * 896)); e("s_lshl_b32 s%d, s%d, 5" % (sT2, sIdx)); e("s_add_u32 s%d, s%d, s%d" % (sWoff, sT1, sT2))
        e("s_mov_b32 s%d, %d" % (sWstep, 32 * 896))
        e("s_mul_i32 s%d, s%d, %d" % (sWlds, sWave, C_WAVE)); e("s_add_u32 s%d, s%d, %d" % (sWlds, sWlds, L_W))
        e("s_mov_b32 s%d, s%d" % (sWoff0, sWoff)); e("s_mov_b32 s%d, s%d" % (sWlds0, sWlds))
        e("s_and_b32 s%d, s%d, 3" % (sT0, sIdx)); e("s_mul_i32 s%d, s%d, 7" % (sT0, sT0)); e("s_add_u32 s%d, s%d, 1" % (sT0, sT0)); e("s_lshr_b32 s%d, s%d, 1" % (sT0, sT0))
        e("s_sub_u32 s%d, 14, s%d" % (sWwrap, sT0))
        e("s_mul_i32 s%d, s%d, %d" % (sT1, sT0, 32 * 896)); e("s_add_u32 s%d, s%d, s%d" % (sWoff, sWoff, sT1))
        e("s_lshl_b32 s%d, s%d, 10" % (sT1, sT0)); e("s_add_u32 s%d, s%d, s%d" % (sWlds, sWlds, sT1))
        e("s_branch L_wdone")
        if which == 'start':
            self.lab("L_wO")
            e("s_mov_b32 s%d, s%d" % (sWS, pWo)); e("s_and_b32 s%d, s%d, 0xffff" % (sWS + 1, pWo + 1)); e("s_mov_b32 s%d, %d" % (sWS + 2, 4096 * 896))
            e("v_lshlrev_b32 v%d, 4, v%d" % (vW, vL))
            e("s_lshl_b32 s%d, s%d, 6" % (sT1, sIdx)); e("s_lshl_b32 s%d, s%d, 4" % (sT2, sWave)); e("s_add_u32 s%d, s%d, s%d" % (sT1, sT1, sT2))
            e("s_mul_i32 s%d, s%d, 896" % (sWoff, sT1))
            e("s_mov_b32 s%d, 896" % sWstep); e("s_mov_b32 s%d, %d" % (sWlstep, O_ROW))
            e("s_mul_i32 s%d, s%d, %d" % (sWlds, sWave, 16 * O_ROW)); e("s_add_u32 s%d, s%d, %d" % (sWlds, sWlds, L_W))
            e("s_mov_b32 s%d, -1" % sWex); e("s_mov_b32 s%d, 0x00ffffff" % (sWex + 1))
            e("s_branch L_wdone")
        self.lab("L_wB")
        e("s_bitcmp1_b32 s%d, 0" % sIdx)
        e("s_cselect_b32 s%d, s%d, s%d" % (sWS, pW3, pW1)); e("s_cselect_b32 s%d, s%d, s%d" % (sWS + 1, pW3 + 1, pW1 + 1))
        e("s_cselect_b32 s%d, s%d, s%d" % (sWo2, pW1, pW3)); e("s_cselect_b32 s%d, s%d, s%d" % (sWo2 + 1, pW1 + 1, pW3 + 1))
        e("s_cselect_b32 s%d, %d, 0" % (sT3, B_IMG3)); e("s_cselect_b32 s%d, 0, %d" % (sT4, B_IMG3))
        e("s_and_b32 s%d, s%d, 0xffff" % (sWS + 1, sWS + 1)); e("s_and_b32 s%d, s%d, 0xffff" % (sWo2 + 1, sWo2 + 1))
        e("s_mov_b32 s%d, %d" % (sWS + 2, 448 * 3584))
        e("v_lshrrev_b32 v9, 2, v%d" % vL); e("v_mul_u32_u24 v%d, 3584, v9" % vW)
        e("v_and_b32 v9, 3, v%d" % vL); e("v_lshl_add_u32 v%d, v9, 4, v%d" % (vW, vW))
        e("s_mul_i32 s%d, s%d, %d" % (sT1, sWave, 7 * 16 * 3584)); e("s_lshl_b32 s%d, s%d, 6" % (sT2, sIdx)); e("s_add_u32 s%d, s%d, s%d" % (sWoff, sT1, sT2))
        e("s_mov_b32 s%d, s%d" % (sWoff0, sWoff))
        e("s_mov_b32 s%d, %d" % (sWstep, 16 * 3584))
        e("s_mul_i32 s%d, s%d, %d" % (sWlds, sWave, 7 * 1024)); e("s_add_u32 s%d, s%d, %d" % (sWlds, sWlds, L_W))
        e("s_add_u32 s%d, s%d, s%d" % (sWlds0, sWlds, sT4)); e("s_add_u32 s%d, s%d, s%d" % (sWlds, sWlds, sT3))
        self.lab("L_wdone")
        self.lab = lab0

    def clear_mailboxes(self):
        e = self.e
        e("v_mov_b32 v10, -1")
        e("s_lshl_b32 s%d, s%d, 2" % (sT0, sH)); e("s_add_u32 s%d, s%d, s%d" % (sT0, sT0, sWave)); e("s_lshl_b32 s%d, s%d, 4" % (sT0, sT0))
        e("s_add_u32 s%d, s%d, s%d" % (sT0, sT0, sC)); e("s_mul_i32 s%d, s%d, %d" % (sT0, sT0, M1_SLOT))
        self.addr(sA, pWs, M1, [sT0])
        e("v_lshlrev_b32 v8, 2, v%d" % vL)
        e("v_and_b32 v9, 1, v%d" % vL); e("v_lshlrev_b32 v9, 2, v9"); e("v_add_u32 v9, 256, v9")
        for rho in range(2):
            e("global_store_dword v8, v10, %s sc1" % sp(sA))
            e("global_store_dword v9, v10, %s sc1" % sp(sA))
            if rho == 0:
                e("s_add_u32 s%d, s%d, 0x%x" % (sA, sA, M1_R)); e("s_addc_u32 s%d, s%d, 0" % (sA + 1, sA + 1))
        if self.p2n:
            e("s_lshl_b32 s%d, s2, 12" % sT0); e("s_lshl_b32 s%d, s%d, 10" % (sT1, sWave))
            self.addr(sA, pWs, M7, [sT0, sT1])
            for k in range(4):
                e("global_store_dword v8, v10, %s offset:%d sc1" % (sp(sA), k * 256))
        e("s_cmp_eq_u32 s%d, 0" % sWave); e("s_cbranch_scc0 L_cdone")
        e("s_cmp_eq_u32 s%d, 0" % sRole); e("s_cbranch_scc1 L_cdone")
        e("v_and_b32 v8, 31, v%d" % vL); e("v_lshlrev_b32 v8, 2, v8")
        e("s_lshl_b32 s%d, s%d, 7" % (sT0, sIdx))
        e("v_add_u32 v8, s%d, v8" % sT0)
        e("s_cmp_eq_u32 s%d, 1" % sRole); e("s_cbranch_scc1 L_cA")
        e("s_cmp_eq_u32 s%d, 2" % sRole); e("s_cbranch_scc1 L_cB")
        e("s_cmp_eq_u32 s%d, 3" % sRole); e("s_cbranch_scc1 L_cC")
        for off in (M3, M3 + MR, M6, M6 + MR):
            self.addr(sA, pWs, off); e("global_store_dword v8, v10, %s sc1" % sp(sA))
        e("s_branch L_cdone")
        self.lab("L_cA")
        if self.p2n == 2:
            lq = self.nl("Lc8")
            e("s_and_b32 s%d, s%d, 3" % (sT1, sIdx)); e("s_cmp_lt_u32 s%d, 2" % sT1); e("s_cbranch_scc0 %s" % lq)
            e("s_lshr_b32 s%d, s%d, 2" % (sT0, sIdx)); e("s_lshl_b32 s%d, s%d, 7" % (sT0, sT0)); e("s_lshl_b32 s%d, s%d, 2" % (sT1, sT1))
            self.addr(sA, pWs, M8, [sT0, sT1])
            e("v_mov_b32 v9, 0")
            e("global_store_dword v9, v10, %s sc1" % sp(sA))
            self.lab(lq)
        e("s_mul_i32 s%d, s%d, %d" % (sT0, sIdx, M2_SLOT))
        e("v_lshlrev_b32 v8, 2, v%d" % vL)
        for rho in range(2):
            self.addr(sA, pWs, M2 + rho * M2_R, [sT0])
            for k in range(M2_SLOT // 256):
                e("global_store_dword v8, v10, %s offset:%d sc1" % (sp(sA), k * 256))
        e("s_branch L_cdone")
        self.lab("L_cB")
        for off in (M4, M4 + MR):
            self.addr(sA, pWs, off); e("global_store_dword v8, v10, %s sc1" % sp(sA))
        e("s_branch L_cdone")
        self.lab("L_cC")
        self.addr(sA, pWs, M5); e("global_store_dword v8, v10, %s sc1" % sp(sA))
        self.lab("L_cdone")
        e("v_mov_b32 v11, 0")
        e("v_lshlrev_b32 v8, 2, v%d" % vL); e("v_add_u32 v8, %d, v8" % L_Z)
        e("ds_write_b32 v8, v11"); e("ds_write_b32 v8, v11 offset:256")

    def clear_op(self, k):
        e = self.e
        if k == 0:
            for d in range(4):
                e("v_mov_b32 v%d, -1" % (20 + d))
        if k in (0, 1):
            e("s_lshl_b32 s%d, s%d, 2" % (sT0, sH)); e("s_add_u32 s%d, s%d, s%d" % (sT0, sT0, sWave)); e("s_lshl_b32 s%d, s%d, 4" % (sT0, sT0))
            e("s_add_u32 s%d, s%d, s%d" % (sT0, sT0, sC)); e("s_mul_i32 s%d, s%d, %d" % (sT0, sT0, M1_SLOT))
            if k:
                e("s_add_u32 s%d, s%d, 0x%x" % (sT0, sT0, M1 + M1_R))
            e("v_min_u32 v25, 16, v%d" % vL)
        elif k == 2:
            e("s_lshl_b32 s%d, s2, 12" % sT0); e("s_lshl_b32 s%d, s%d, 10" % (sT1, sWave)); e("s_add_u32 s%d, s%d, s%d" % (sT0, sT0, sT1)); e("s_add_u32 s%d, s%d, 0x%x" % (sT0, sT0, M7))
            e("v_mov_b32 v25, v%d" % vL)
        elif k == 3:
            e("s_lshl_b32 s%d, s2, 12" % sT0); e("s_lshl_b32 s%d, s%d, 10" % (sT1, sWave)); e("s_add_u32 s%d, s%d, s%d" % (sT0, sT0, sT1)); e("s_add_u32 s%d, s%d, 0x%x" % (sT0, sT0, M7))
            e("s_lshl_b32 s%d, s%d, 7" % (sT2, sIdx))
            e("s_and_b32 s%d, s%d, 1" % (sT3, sWave)); e("s_lshr_b32 s%d, s%d, 1" % (sT4, sWave))
            e("s_mul_i32 s%d, s%d, 0x%x" % (sT1, sT4, M2_R)); e("s_lshl_b32 s%d, s%d, 11" % (sT5, sIdx)); e("s_add_u32 s%d, s%d, s%d" % (sT1, sT1, sT5))
            e("s_lshl_b32 s%d, s%d, 10" % (sT5, sT3)); e("s_add_u32 s%d, s%d, s%d" % (sT1, sT1, sT5)); e("s_add_u32 s%d, s%d, 0x%x" % (sT1, sT1, M2))
            e("s_cmp_eq_u32 s%d, 1" % sRole); e("s_cselect_b32 s%d, s%d, s%d" % (sT0, sT1, sT0))
            e("s_lshl_b32 s%d, s%d, 13" % (sT1, sT3)); e("s_add_u32 s%d, s%d, s%d" % (sT1, sT1, sT2)); e("s_add_u32 s%d, s%d, 0x%x" % (sT5, sT1, M4))
            e("s_cmp_eq_u32 s%d, 2" % sRole); e("s_cselect_b32 s%d, s%d, s%d" % (sT0, sT5, sT0))
            e("s_add_u32 s%d, s%d, 0x%x" % (sT5, sT2, M5))
            e("s_cmp_eq_u32 s%d, 3" % sRole); e("s_cselect_b32 s%d, s%d, s%d" % (sT0, sT5, sT0))
            e("s_mul_i32 s%d, s%d, 0x%x" % (sT5, sT4, M6 - M3)); e("s_add_u32 s%d, s%d, s%d" % (sT5, sT5, sT1)); e("s_add_u32 s%d, s%d, 0x%x" % (sT5, sT5, M3))
            e("s_cmp_eq_u32 s%d, 4" % sRole); e("s_cselect_b32 s%d, s%d, s%d" % (sT0, sT5, sT0))
            e("v_and_b32 v25, 7, v%d" % vL)
            e("s_cmp_lt_u32 s%d, 2" % sRole); e("s_cselect_b64 vcc, -1, 0")
            e("v_cndmask_b32 v25, v25, v%d, vcc" % vL)
        else:
            e("s_lshl_b32 s%d, s2, 12" % sT0); e("s_lshl_b32 s%d, s%d, 10" % (sT1, sWave)); e("s_add_u32 s%d, s%d, s%d" % (sT0, sT0, sT1)); e("s_add_u32 s%d, s%d, 0x%x" % (sT0, sT0, M7))
            e("s_lshl_b32 s%d, s2, 7" % sT1); e("s_add_u32 s%d, s%d, 0x%x" % (sT1, sT1, M8))
            e("s_cmp_lt_u32 s2, 16"); e("s_cselect_b32 s%d, s%d, s%d" % (sT0, sT1, sT0))
            e("v_and_b32 v25, 7, v%d" % vL)
        e("v_lshlrev_b32 v25, 4, v25"); e("v_add_u32 v25, s%d, v25" % sT0)
        e("global_store_dwordx4 v25, v[20:23], %s sc1" % sp(pWs))

    def lds_zero(self):
        e = self.e
        e("v_mov_b32 v11, 0")
        e("v_lshlrev_b32 v8, 2, v%d" % vL); e("v_add_u32 v8, %d, v8" % L_Z)
        e("ds_write_b32 v8, v11"); e("ds_write_b32 v8, v11 offset:256")

    def count_cleared(self):
        e = self.e
        e("s_waitcnt lgkmcnt(0)")
        e("s_barrier")
        e("s_cmp_eq_u32 s%d, 0" % sWave); e("s_cbranch_scc0 L_cnt_done")
        e("v_mov_b32 v10, 0"); e("v_mov_b32 v11, 1")
        e("s_mov_b64 exec, 1")
        e("global_atomic_add v10, v11, %s" % sp(pDbg))
        e("s_mov_b64 exec, -1")
        self.lab("L_cnt_done")

    def layernorm_to_vec(self):
        e = self.e
        X = 40
        for d in range(4):
            e("v_lshlrev_b32 v%d, 16, v%d" % (X + 2 * d, 32 + d))
            e("v_and_b32 v%d, 0xffff0000, v%d" % (X + 2 * d + 1, 32 + d))
        e("v_cmp_gt_u32 vcc, 56, v%d" % vL)
        e("v_add_f32 v48, v40, v41"); e("v_add_f32 v49, v42, v43"); e("v_add_f32 v50, v44, v45"); e("v_add_f32 v51, v46, v47")
        e("v_add_f32 v48, v48, v49"); e("v_add_f32 v50, v50, v51"); e("v_add_f32 v48, v48, v50")
        e("v_cndmask_b32 v48, 0, v48, vcc")
        self.allreduce64(48, 49, "v_add_f32")
        e("v_mul_f32 v48, 0x3b124925, v48")
        for i in range(8):
            e("v_sub_f32 v%d, v%d, v48" % (52 + i, X + i))
        e("v_mul_f32 v49, v52, v52")
        for i in range(1, 8):
            e("v_fmac_f32 v49, v%d, v%d" % (52 + i, 52 + i))
        e("v_cndmask_b32 v49, 0, v49, vcc")
        self.allreduce64(49, 50, "v_add_f32")
        e("v_mul_f32 v49, 0x3b124925, v49")
        self.bf16r(48, 48, 50)
        self.bf16r(49, 49, 50)
        e("v_add_f32 v49, 0x3727c5ac, v49")
        self.bf16r(49, 49, 50)
        e("v_sqrt_f32 v49, v49"); self.nop(1)
        self.bf16r(49, 49, 50)
        e("v_rcp_f32 v49, v49")
        for i in range(8):
            e("v_sub_f32 v%d, v%d, v48" % (52 + i, X + i))
        for i in range(0, 8, 2):
            e("v_cvt_pk_bf16_f32 v%d, v%d, v%d" % (36 + i // 2, 52 + i, 53 + i))
        for d in range(4):
            e("v_lshlrev_b32 v%d, 16, v%d" % (52 + 2 * d, 36 + d))
            e("v_and_b32 v%d, 0xffff0000, v%d" % (53 + 2 * d, 36 + d))
        for i in range(8):
            e("v_mul_f32 v%d, v%d, v49" % (52 + i, 52 + i))
        for i in range(0, 8, 2):
            e("v_cvt_pk_bf16_f32 v%d, v%d, v%d" % (36 + i // 2, 52 + i, 53 + i))
        e("v_lshlrev_b32 v48, 4, v%d" % vL); e("v_add_u32 v48, s%d, v48" % sVec)
        e("ds_write_b128 v48, v[36:39]")
        e("s_waitcnt lgkmcnt(0)")

    def gemv_chain(self, n, a_off, b_step, b_second, acc=8):
        e = self.e
        m = 0
        first = True
        while m < n:
            nb = min(4, n - m)
            for k in range(nb):
                o0, o1 = a_off(m + k)
                e("ds_read2_b64 v[%d:%d], v6 offset0:%d offset1:%d" % (32 + 4 * k, 35 + 4 * k, o0, o1))
                e("ds_read_b64_tr_b16 v[%d:%d], v7 offset:%d" % (48 + 4 * k, 49 + 4 * k, (m + k) * b_step))
                e("ds_read_b64_tr_b16 v[%d:%d], v7 offset:%d" % (50 + 4 * k, 51 + 4 * k, (m + k) * b_step + b_second))
            e("s_waitcnt lgkmcnt(0)")
            for k in range(nb):
                c = "0" if first else vr(acc, 4)
                e("v_mfma_f32_16x16x32_bf16 %s, %s, %s, %s" % (vr(acc, 4), vr(32 + 4 * k, 4), vr(48 + 4 * k, 4), c))
                first = False
            m += nb
        self.nop(8)

    def lane_rc(self):
        e = self.e
        e("v_lshrrev_b32 v10, 4, v%d" % vL); e("v_bfe_u32 v11, v%d, 2, 2" % vL)
        e("v_and_b32 v12, 3, v%d" % vL); e("v_and_b32 v13, 15, v%d" % vL)

    def stage_D(self, rho_reg_is_next):
        e = self.e
        self.layernorm_to_vec()
        self.lane_rc()
        e("v_lshlrev_b32 v6, 3, v10"); e("v_add_u32 v6, s%d, v6" % sVec)
        e("v_lshl_add_u32 v7, v10, 2, v11")
        e("v_bfe_u32 v14, v7, 1, 2"); e("v_xor_b32 v14, s%d, v14" % sWave)
        e("v_lshlrev_b32 v7, 7, v7"); e("v_lshl_add_u32 v7, v14, 5, v7"); e("v_lshl_add_u32 v7, v12, 3, v7"); e("v_add_u32 v7, %d, v7" % L_W)
        self.gemv_chain(14, lambda m: (8 * m, 8 * m + 4), 4096, 2048)
        e("v_mov_b32_dpp v9, v8 quad_perm:[1,0,3,2] row_mask:0xf bank_mask:0xf")
        e("v_cvt_pk_bf16_f32 v9, v8, v9")
        e("v_mov_b32 v14, -2"); e("v_min_u32 v9, v9, v14")
        e("s_lshl_b32 s%d, s%d, 7" % (sT0, sIdx)); e("s_lshl_b32 s%d, s%d, 5" % (sT1, sWave)); e("s_add_u32 s%d, s%d, s%d" % (sT0, sT0, sT1))
        e("v_lshlrev_b32 v14, 1, v%d" % vL); e("v_add_u32 v14, s%d, v14" % sT0)
        e("s_mov_b64 exec, 0x5555")
        e("global_store_dword v14, v9, %s sc1" % sp(sA))
        e("s_mov_b64 exec, -1")

    def p1a(self):
        e = self.e
        self.lab("L_p1a_code")
        e("v_lshrrev_b32 v%d, 5, v%d" % (vPh, vL)); e("v_lshlrev_b32 v%d, 12, v%d" % (vPh, vPh))
        e("v_and_b32 v%d, 31, v%d" % (vAd, vL)); e("v_lshl_add_u32 v%d, v%d, 3, v%d" % (vPh, vAd, vPh))
        R = self.R
        for T in range(NRES_T):
            u0, u1 = 2 * T + R, 2 * T + R + 1
            if self.p2n == 1 and T == 2:
                self.now(sTm0)
            if T == 12:
                self.gwait(u0)
                lq = self.nl("Lnq")
                e("s_mov_b32 s%d, s%d" % (sQok, sZ))
                e("v_cmp_gt_u32 vcc, 256, v36")
                e("s_cbranch_vccnz %s" % lq)
                e("s_add_u32 s%d, s%d, 1" % (sQok, sZ))
                e("s_lshl_b32 s%d, s%d, 9" % (sT1, sH))
                self.addr(sA, pWs, M6, [sT1])
                e("v_and_b32 v37, 31, v%d" % vL); e("v_lshlrev_b32 v37, 4, v37")
                e("global_load_dwordx4 v[32:35], v37, %s sc1" % sp(sA))
                self.lab(lq)
                self.issue()
            elif T == 10:
                self.gwait(u0)
                e("v_mov_b32 v37, 0")
                e("global_load_dword v36, v37, %s sc1" % sp(pDbg))
                self.issue()
            else:
                self.group(u0)
            if T == (3 if self.clr2 else 1):
                self.gwait(u1)
                self.count_cleared()
                self.issue()
                if u1 < self.NX:
                    self.xop(u1)
                if self.clr2 and 2 <= u1 <= 6:
                    self.clear_op(u1 - 2)
            elif T == 9:
                assert u1 - R >= 16
                self.gwait(u1)
                e("s_cmp_eq_u32 s%d, 4" % sRole); e("s_cbranch_scc0 L_noq1")
                e("s_barrier")
                if int(self.o.get("gap2", 1)):
                    e("s_call_b64 %s, L_stageD_prep" % sp(sRet2))
                    e("s_lshl_b32 s%d, s%d, 7" % (sT0, sIdx)); e("s_lshl_b32 s%d, s%d, 5" % (sT1, sWave))
                    self.addr(sB, pWs, M6, [sT0] if self.onest else [sT0, sT1])
                    e("s_call_b64 %s, L_stageD_rest" % sp(sRet2))
                else:
                    self.addr(sA, pWs, M6)
                    e("s_call_b64 %s, L_stageD" % sp(sRet2))
                self.lab("L_noq1")
                self.issue()
                e("v_lshrrev_b32 v%d, 5, v%d" % (vPh, vL)); e("v_lshlrev_b32 v%d, 12, v%d" % (vPh, vPh))
                e("v_and_b32 v%d, 31, v%d" % (vAd, vL)); e("v_lshl_add_u32 v%d, v%d, 3, v%d" % (vPh, vAd, vPh))
            else:
                self.group(u1)
            e("v_add_u32 v%d, s%d, v%d" % (vAd, sCs, vPh))
            if self.o.get("pstamps") and T in (0, 3, 8):
                self.stamp({0: 14, 3: 15, 8: 1}[T])
            for t in range(16):
                e("ds_read_b64_tr_b16 %s, v%d offset:%d" % (res_reg(T >> 1, t, T & 1), vAd, t * 256))
            self.adv_cs()
            e("s_waitcnt lgkmcnt(0)")
        if self.p2n == 1:
            self.now(sTm1, sTm0)

    def gather_q(self):
        e = self.e
        e("s_cmp_eq_u32 s%d, 0" % sPass); e("s_cbranch_scc0 L_gq")
        e("s_cmp_eq_u32 s%d, 1" % sQok); e("s_cbranch_scc0 L_gq_slow")
        e("v_max3_u32 v36, v32, v33, v34"); e("v_max_u32 v36, v36, v35")
        e("v_cmp_eq_u32 vcc, -1, v36")
        e("v_and_b32 v8, 31, v%d" % vL); e("v_lshlrev_b32 v8, 4, v8")
        e("s_cbranch_vccz L_gq_write")
        self.lab("L_gq_slow")
        L = self.nl("Lc"); Dn = self.nl("Lcd")
        e("v_mov_b32 v8, 0"); e("s_mov_b32 s%d, 0" % sSpin)
        self.lab(L)
        e("global_load_dword v9, v8, %s sc1" % sp(pDbg))
        e("s_waitcnt vmcnt(0)")
        e("v_cmp_gt_u32 vcc, 256, v9")
        e("s_cbranch_vccz %s" % Dn)
        e("s_add_u32 s%d, s%d, 1" % (sSpin, sSpin)); e("s_cmp_lt_u32 s%d, %d" % (sSpin, SPIN_LIMIT)); e("s_cbranch_scc1 %s" % L)
        self.lab(Dn)
        self.lab("L_gq")
        if self.q1w:
            e("s_cmp_eq_u32 s%d, 1" % sPass); e("s_cbranch_scc0 L_gq_p0")
            e("s_cmp_eq_u32 s%d, 0" % sWave); e("s_cbranch_scc0 L_gq_bar")
            e("s_lshl_b32 s%d, s%d, 9" % (sT1, sH))
            self.addr(sA, pWs, M6 + MR, [sT1])
            e("s_lshl_b32 s%d, s%d, 7" % (sT0, sH))
            self.addr(sB, pWs, M8, [sT0])
            e("v_and_b32 v8, 31, v%d" % vL); e("v_lshlrev_b32 v8, 4, v8"); e("v_mov_b32 v9, 0")
            self.ptmp = 10
            self.poll2(lambda b: ["global_load_dwordx4 v[%d:%d], v8, %s sc1" % (b, b + 3, sp(sA)),
                                  "global_load_dwordx2 v[%d:%d], v9, %s sc1" % (b + 4, b + 5, sp(sB))], 6, (20, 26), 32, "Qq", sleep=int(self.o.get("qsleep", 0)))
            self.ptmp = 31
            for k in range(4):
                e("ds_write_b128 v8, v[32:35] offset:%d" % (L_Q + 512 * k))
            e("v_mov_b32 v9, %d" % (L_SM + 32))
            e("ds_write_b64 v9, v[36:37]")
            e("s_waitcnt lgkmcnt(0)")
            self.lab("L_gq_bar")
            e("s_barrier")
            e("v_mov_b32 v9, %d" % (L_SM + 32))
            e("ds_read_b64 v[38:39], v9")
            e("s_waitcnt lgkmcnt(0)")
            self.near_setup()
            e("s_branch L_gq_end")
            self.lab("L_gq_p0")
        e("s_lshl_b32 s%d, s%d, 13" % (sT0, sPass)); e("s_lshl_b32 s%d, s%d, 9" % (sT1, sH))
        self.addr(sA, pWs, M6, [sT0, sT1])
        e("v_and_b32 v8, 31, v%d" % vL); e("v_lshlrev_b32 v8, 4, v8")
        lds_ = ["global_load_dwordx4 v[32:35], v8, %s sc1" % sp(sA)]
        chk = [32, 33, 34, 35]
        if self.p2n == 1:
            e("v_mov_b32 v37, 0")
            lds_.append("global_load_dwordx2 v[38:39], v37, %s offset:16 sc1" % sp(pDbg))
        if self.p2n == 2:
            e("s_lshl_b32 s%d, s%d, 7" % (sT0, sH))
            self.addr(sB, pWs, M8, [sT0])
            e("s_cmp_eq_u32 s%d, 0" % sPass)
            e("s_cselect_b32 s%d, s%d, s%d" % (sB, sA, sB)); e("s_cselect_b32 s%d, s%d, s%d" % (sB + 1, sA + 1, sB + 1))
            e("v_mov_b32 v37, 0")
            lds_.append("global_load_dwordx2 v[38:39], v37, %s sc1" % sp(sB))
            chk += [38, 39]
        self.poll(lds_, chk, 36, "Pq")
        if self.p2n and not self.q1w:
            self.near_setup()
        self.lab("L_gq_write")
        e("s_lshl_b32 s%d, s%d, 9" % (sT0, sWave))
        e("v_add_u32 v8, s%d, v8" % sT0)
        e("ds_write_b128 v8, v[32:35] offset:%d" % L_Q)
        e("s_waitcnt lgkmcnt(0)")
        if self.q1w:
            self.lab("L_gq_end")

    def near_setup(self):
        e = self.e
        d = self.nl("Lns")
        e("s_cmp_eq_u32 s%d, 1" % sPass); e("s_cbranch_scc0 %s" % d)
        if self.p2n == 1:
            e("v_readfirstlane_b32 s%d, v38" % sT0); e("v_readfirstlane_b32 s%d, v39" % sT1)
            e("s_nop 3")
            e("s_cmp_gt_u32 s%d, 128" % sT0); e("s_cselect_b32 s%d, 1, 0" % sT0)
            e("s_cmp_gt_u32 s%d, 128" % sT1); e("s_cselect_b32 s%d, 1, 0" % sT1)
        else:
            e("v_readfirstlane_b32 s%d, v38" % sT0); e("v_readfirstlane_b32 s%d, v39" % sT1)
            e("s_nop 3")
            e("s_and_b32 s%d, s%d, 1" % (sT1, sT1)); e("s_and_b32 s%d, s%d, 1" % (sT0, sT0))
        if "forceK" in self.o:
            e("s_mov_b32 s%d, %d" % (sT0, int(self.o["forceK"]))); e("s_mov_b32 s%d, %d" % (sT1, int(self.o["forceV"])))
        e("s_xor_b32 s%d, s%d, s%d" % (sXch, sT0, sT1))
        e("s_lshr_b32 s%d, s2, 1" % sT2); e("s_lshr_b32 s%d, s2, 2" % sT3); e("s_xor_b32 s%d, s%d, s%d" % (sT2, sT2, sT3)); e("s_and_b32 s%d, s%d, 1" % (sT2, sT2))
        e("s_xor_b32 s%d, s%d, s%d" % (sT0, sT0, sT2)); e("s_xor_b32 s%d, s%d, s%d" % (sT1, sT1, sT2))
        if self.swz:
            e("s_lshl_b32 s%d, s%d, 13" % (sT0, sT0)); e("s_lshl_b32 s%d, s%d, 13" % (sT1, sT1))
        else:
            e("s_and_b32 s%d, s%d, 1" % (sT2, sWave))
            e("s_lshl_b32 s%d, s%d, 1" % (sT0, sT0)); e("s_add_u32 s%d, s%d, s%d" % (sT0, sT0, sT2)); e("s_sub_i32 s%d, s%d, s%d" % (sT0, sT0, sWave)); e("s_lshl_b32 s%d, s%d, 12" % (sT0, sT0))
            e("s_lshl_b32 s%d, s%d, 1" % (sT1, sT1)); e("s_add_u32 s%d, s%d, s%d" % (sT1, sT1, sT2)); e("s_sub_i32 s%d, s%d, s%d" % (sT1, sT1, sWave)); e("s_lshl_b32 s%d, s%d, 12" % (sT1, sT1))
        e("s_xor_b32 s%d, s2, 4" % sT3); e("s_cmp_lt_u32 s%d, 2" % sWave); e("s_cselect_b32 s%d, s2, s%d" % (sT3, sT3))
        e("s_mul_i32 s%d, s%d, %d" % (sRotN, sT3, self.stag)); e("s_and_b32 s%d, s%d, 63" % (sRotN, sRotN)); e("s_mul_i32 s%d, s%d, %d" % (sRotN, sRotN, self.stride))
        e("s_sub_i32 s%d, s%d, s2" % (sT3, sT3)); e("s_lshl_b32 s%d, s%d, 20" % (sT3, sT3))
        e("s_add_i32 s%d, s%d, s%d" % (sT0, sT0, sT3)); e("s_add_i32 s%d, s%d, s%d" % (sT1, sT1, sT3))
        for (dst, src, dl) in ((sKN, sKB, sT0), (sVN, sVB, sT1)):
            e("s_ashr_i32 s%d, s%d, 31" % (sT2, dl))
            e("s_add_u32 s%d, s%d, s%d" % (dst, src, dl)); e("s_addc_u32 s%d, s%d, s%d" % (dst + 1, src + 1, sT2))
            e("s_and_b32 s%d, s%d, 0xffff" % (dst + 1, dst + 1))
        self.lab(d)

    def kphase(self):
        e = self.e
        if self.p2n == 1:
            self.now(sTm0)
        vQ, vZ = 16, 17
        if not self.klin:
            e("v_bfe_u32 v%d, v%d, 3, 1" % (vPh, vL)); e("v_lshlrev_b32 v%d, 12, v%d" % (vPh, vPh))
            e("v_lshrrev_b32 v%d, 4, v%d" % (vAd, vL)); e("v_lshl_add_u32 v%d, v%d, 7, v%d" % (vPh, vAd, vPh))
            e("v_lshlrev_b32 v%d, 4, v%d" % (vQ, vAd))
            e("v_and_b32 v%d, 7, v%d" % (vAd, vL)); e("v_lshl_add_u32 v%d, v%d, 4, v%d" % (vPh, vAd, vPh))
        else:
            e("v_bfe_u32 v%d, v%d, 3, 1" % (vPh, vL)); e("v_lshlrev_b32 v%d, 12, v%d" % (vPh, vPh))
            e("v_and_b32 v%d, 7, v%d" % (vAd, vL)); e("v_lshl_add_u32 v%d, v%d, 9, v%d" % (vPh, vAd, vPh))
            e("v_lshrrev_b32 v%d, 4, v%d" % (vQ, vL)); e("v_and_b32 v18, 3, v%d" % vL); e("v_xor_b32 v18, v18, v%d" % vQ)
            e("v_lshl_add_u32 v%d, v18, 4, v%d" % (vPh, vPh))
            e("v_bfe_u32 v18, v%d, 2, 1" % vL); e("v_lshlrev_b32 v18, 6, v18")
            e("v_sub_u32 v19, v%d, v18" % vPh); e("v_add_u32 v%d, v%d, v18" % (vPh, vPh)); e("v_mov_b32 v18, v19")
            e("v_lshlrev_b32 v%d, 4, v%d" % (vQ, vQ))
        e("s_lshl_b32 s%d, s%d, 9" % (sT0, sWave)); e("s_add_u32 s%d, s%d, %d" % (sT0, sT0, L_Q))
        e("v_add_u32 v%d, s%d, v%d" % (vQ, sT0, vQ))
        e("v_mov_b32 v%d, %d" % (vZ, L_Z))
        for i in range(8):
            e("v_mov_b32 v%d, 0" % (vSC + i))
        first_skip = self.nl("Kskip")
        e("s_mov_b32 s%d, 0" % sT15)
        e("s_cmp_eq_u32 s%d, 0" % sPass)
        e("s_cbranch_scc1 L_k0")
        if self.q1w:
            e("s_cmp_eq_u32 s%d, 0" % sWave); e("s_cbranch_scc1 %s" % first_skip)
        e("s_waitcnt vmcnt(0)")
        e("s_branch %s" % first_skip)
        parts = {2: [(0, 0, 0), (1, 1, 12), (2, 1, 0)], 3: [(0, 0, 0), (1, 1, 14), (2, 1, 0)]}.get(self.ilv, [(0, 0, 0), (1, 1, 0)])
        for (pi, a, stop) in parts:
            if pi == 2:
                self.xch_publish()
            self.lab("L_k%d" % pi)
            thr = int(self.o.get("thr", 0))
            if thr:
                lt = self.nl("Lthr")
                e("s_and_b32 s%d, s%d, %d" % (sT0, sT15, thr - 1)); e("s_and_b32 s%d, s2, 1" % sT1); e("s_or_b32 s%d, s%d, s%d" % (sT0, sT0, sT1))
                e("s_or_b32 s%d, s%d, s%d" % (sT0, sT0, sPass))
                e("s_cmp_eq_u32 s%d, 0" % sT0); e("s_cbranch_scc0 %s" % lt)
                e("s_waitcnt vmcnt(0)")
                self.lab(lt)
            self.step_issue()
            if pi == 0:
                self.lab(first_skip)
            e("s_lshl_b64 %s, %s, s%d" % (sp(sMd), sp(sM[0]), sT15))
            e("v_add_u32 v%d, s%d, v%d" % (vAd, sCs, vPh))
            if self.klin:
                e("v_add_u32 v19, s%d, v18" % sCs)
            e("v_cndmask_b32 v%d, v%d, v%d, %s" % (vPa, vZ, vQ, sp(sMd)))
            for b in range(0 if self.o.get("nocomp") else 2):
                for k in range(4):
                    c8 = 4 * b + k
                    e("ds_read_b128 v[%d:%d], v%d offset:%d" % (32 + 4 * k, 35 + 4 * k, vPa, c8 * 64))
                    if self.klin:
                        e("ds_read_b128 v[%d:%d], v%d offset:%d" % (48 + 4 * k, 51 + 4 * k, (19 if c8 & 1 else vAd), c8 * 64))
                    else:
                        e("ds_read_b128 v[%d:%d], v%d offset:%d" % (48 + 4 * k, 51 + 4 * k, vAd, c8 * 512))
                e("s_waitcnt lgkmcnt(0)")
                for k in range(4):
                    e("v_mfma_f32_16x16x32_bf16 %s, %s, %s, %s" % (vr(vSC + 4 * a, 4), vr(32 + 4 * k, 4), vr(48 + 4 * k, 4), vr(vSC + 4 * a, 4)))
            self.adv_cs()
            e("s_add_u32 s%d, s%d, 1" % (sT15, sT15))
            if stop:
                e("s_cmp_lg_u32 s%d, %d" % (sT15, stop))
            else:
                e("s_and_b32 s%d, s%d, 15" % (sT15, sT15))
            e("s_cbranch_scc1 L_k%d" % pi)
            if pi == 0:
                self.stamp(13)
        self.nop(8)

    def xch_publish(self):
        e = self.e
        S = vSC
        nx = self.nl("Lxp")
        e("s_cmp_eq_u32 s%d, 1" % sPass); e("s_cbranch_scc0 %s" % nx)
        e("s_cmp_eq_u32 s%d, 1" % sXch); e("s_cbranch_scc0 %s" % nx)
        self.nop(8)
        for i in range(0, 8, 2):
            e("v_cvt_pk_bf16_f32 v%d, v%d, v%d" % (20 + i // 2, S + i, S + i + 1))
        e("v_mov_b32 v25, -2"); e("v_lshlrev_b32 v24, 4, v%d" % vL)
        for d in range(4):
            e("v_min_u32 v%d, v%d, v25" % (20 + d, 20 + d))
        e("s_lshl_b32 s%d, s2, 12" % sT0); e("s_lshl_b32 s%d, s%d, 10" % (sT1, sWave))
        self.addr(sA, pWs, M7, [sT0, sT1])
        e("global_store_dwordx4 v24, v[20:23], %s sc1" % sp(sA))
        self.lab(nx)

    def softmax(self):
        e = self.e
        S = vSC
        if self.p2n == 1:
            self.now(sTm0, sTm0)
        for i in range(0, 8, 2):
            e("v_cvt_pk_bf16_f32 v%d, v%d, v%d" % (36 + i // 2, S + i, S + i + 1))
        if self.p2n:
            nx = self.nl("Lnx")
            e("s_cmp_eq_u32 s%d, 1" % sPass); e("s_cbranch_scc0 %s" % nx)
            e("s_cmp_eq_u32 s%d, 1" % sXch); e("s_cbranch_scc0 %s" % nx)
            e("v_lshlrev_b32 v40, 4, v%d" % vL)
            if self.ilv < 2:
                e("v_mov_b32 v41, -2")
                for d in range(4):
                    e("v_min_u32 v%d, v%d, v41" % (44 + d, 36 + d))
                e("s_lshl_b32 s%d, s2, 12" % sT0); e("s_lshl_b32 s%d, s%d, 10" % (sT1, sWave))
                self.addr(sA, pWs, M7, [sT0, sT1])
                e("global_store_dwordx4 v40, v[44:47], %s sc1" % sp(sA))
            e("s_xor_b32 s%d, s2, 4" % sT0); e("s_lshl_b32 s%d, s%d, 12" % (sT0, sT0)); e("s_xor_b32 s%d, s%d, 2" % (sT1, sWave)); e("s_lshl_b32 s%d, s%d, 10" % (sT1, sT1))
            self.addr(sA, pWs, M7, [sT0, sT1])
            self.poll(["global_load_dwordx4 v[48:51], v40, %s sc1" % sp(sA)], [48, 49, 50, 51], 52, "Px7")
            if self.ilv == 3:
                H = "0xffff0000"
                e("v_mov_b32 v52, %s" % H); e("v_mov_b32 v54, -1"); e("v_mov_b32 v55, -1")
                e("s_mov_b64 exec, 0xffff"); e("v_mov_b32 v52, 0"); e("v_mov_b32 v54, %s" % H); e("v_mov_b32 v55, %s" % H)
                e("s_mov_b32 exec_lo, 0"); e("s_mov_b32 exec_hi, 0xffff0000"); e("v_mov_b32 v55, 0")
                e("s_mov_b64 exec, -1")
                e("v_bfi_b32 v36, v52, v48, v36"); e("v_bfi_b32 v37, v52, v49, v37")
                e("v_bfi_b32 v38, v54, v50, v38"); e("v_bfi_b32 v39, v55, v51, v39")
            elif self.ilv == 2:
                e("v_mov_b32 v52, -1"); e("v_mov_b32 v53, 0xffff"); e("v_mov_b32 v54, -1"); e("v_mov_b32 v55, 0xffff")
                e("s_mov_b64 exec, 0xffff"); e("v_mov_b32 v52, 0"); e("v_mov_b32 v53, 0")
                e("s_mov_b32 exec_lo, 0"); e("s_mov_b32 exec_hi, 0xffff0000"); e("v_mov_b32 v54, 0"); e("v_mov_b32 v55, 0")
                e("s_mov_b64 exec, -1")
                e("v_bfi_b32 v36, v52, v48, v36"); e("v_bfi_b32 v37, v53, v49, v37")
                e("v_bfi_b32 v38, v54, v50, v38"); e("v_bfi_b32 v39, v55, v51, v39")
            elif self.ilv:
                e("v_mov_b32 v52, 0xffff0000"); e("v_mov_b32 v53, 0xffff0000")
                e("s_mov_b64 exec, 0xffff"); e("v_mov_b32 v52, 0")
                e("s_mov_b32 exec_lo, 0"); e("s_mov_b32 exec_hi, -1"); e("v_mov_b32 v53, -1")
                e("s_mov_b64 exec, -1")
                e("v_bfi_b32 v36, v52, v48, v36"); e("v_bfi_b32 v37, v52, v49, v37")
                e("v_bfi_b32 v38, v53, v50, v38"); e("v_bfi_b32 v39, v53, v51, v39")
            else:
                e("s_mov_b32 exec_lo, 0"); e("s_mov_b32 exec_hi, 0xffff0000")
                e("v_mov_b32 v37, v49")
                e("s_mov_b64 exec, -1")
                e("v_mov_b32 v38, v50"); e("v_mov_b32 v39, v51")
            self.lab(nx)
        for i in range(0, 8, 2):
            e("v_lshlrev_b32 v%d, 16, v%d" % (S + i, 36 + i // 2)); e("v_and_b32 v%d, 0xffff0000, v%d" % (S + i + 1, 36 + i // 2))
        e("v_max3_f32 v32, v%d, v%d, v%d" % (S, S + 1, S + 2)); e("v_max3_f32 v32, v32, v%d, v%d" % (S + 3, S + 4))
        e("v_max3_f32 v32, v32, v%d, v%d" % (S + 5, S + 6)); e("v_max_f32 v32, v32, v%d" % (S + 7))
        self.allreduce64(32, 33, "v_max_f32")
        e("s_lshl_b32 s%d, s%d, 2" % (sT0, sWave)); e("s_add_u32 s%d, s%d, %d" % (sT0, sT0, L_SM))
        e("v_mov_b32 v33, s%d" % sT0)
        e("ds_write_b32 v33, v32")
        if self.p2n == 1:
            e("s_lshl_b32 s%d, s%d, 3" % (sT0, sWave)); e("s_add_u32 s%d, s%d, %d" % (sT0, sT0, L_SM + 32))
            e("v_mov_b32 v33, s%d" % sT0); e("v_mov_b32 v34, s%d" % sTm1); e("v_mov_b32 v35, s%d" % sTm0)
            e("ds_write_b64 v33, v[34:35]")
        e("s_waitcnt lgkmcnt(0)")
        e("s_barrier")
        e("v_mov_b32 v33, %d" % L_SM)
        e("ds_read_b128 v[36:39], v33")
        if self.p2n == 1:
            nv = self.nl("Lnv")
            e("s_cmp_eq_u32 s%d, 0" % sPass); e("s_cbranch_scc0 %s" % nv)
            e("s_cmp_eq_u32 s%d, 0" % sWave); e("s_cbranch_scc0 %s" % nv)
            e("ds_read_b128 v[40:43], v33 offset:32"); e("ds_read_b128 v[44:47], v33 offset:48")
            e("s_waitcnt lgkmcnt(0)")
            e("v_add_u32 v40, v40, v42"); e("v_add_u32 v41, v41, v43"); e("v_add_u32 v44, v44, v46"); e("v_add_u32 v45, v45, v47")
            e("s_lshr_b32 s%d, s2, 1" % sT0); e("s_lshr_b32 s%d, s2, 2" % sT1); e("s_xor_b32 s%d, s%d, s%d" % (sT0, sT0, sT1)); e("s_and_b32 s%d, s%d, 1" % (sT0, sT0))
            e("v_cmp_ge_u32 vcc, v40, v44"); self.nop(2); e("v_cndmask_b32 v40, 0, 1, vcc")
            e("v_cmp_ge_u32 vcc, v41, v45"); self.nop(2); e("v_cndmask_b32 v41, 0, 1, vcc")
            e("v_xor_b32 v40, s%d, v40" % sT0); e("v_xor_b32 v41, s%d, v41" % sT0)
            e("v_cmp_eq_u32 vcc, 0, v%d" % vL); self.nop(2); e("v_cndmask_b32 v40, v40, v41, vcc")
            e("v_lshlrev_b32 v41, 2, v%d" % vL); e("v_add_u32 v41, 16, v41")
            e("s_mov_b64 exec, 3")
            e("global_atomic_add v41, v40, %s" % sp(pDbg))
            e("s_mov_b64 exec, -1")
            self.lab(nv)
        e("s_waitcnt lgkmcnt(0)")
        e("v_max3_f32 v32, v36, v37, v38"); e("v_max_f32 v32, v32, v39")
        e("s_mov_b32 s%d, 0x%x" % (sT0, C_EXP))
        for i in range(8):
            e("v_sub_f32 v%d, v%d, v32" % (S + i, S + i))
        for i in range(8):
            e("v_mul_f32 v%d, s%d, v%d" % (S + i, sT0, S + i))
        for i in range(8):
            e("v_exp_f32 v%d, v%d" % (S + i, S + i))
        self.nop(1)
        e("v_lshrrev_b32 v33, 4, v%d" % vL); e("v_lshlrev_b32 v33, 7, v33")
        e("v_and_b32 v34, 15, v%d" % vL); e("v_lshl_add_u32 v33, v34, 1, v33")
        e("s_lshl_b32 s%d, s%d, 10" % (sT0, sWave)); e("s_add_u32 s%d, s%d, %d" % (sT0, sT0, L_P))
        e("v_add_u32 v33, s%d, v33" % sT0)
        for i in range(0, 8, 2):
            a, r = i >> 2, i & 3
            e("v_cvt_pk_bf16_f32 v%d, v%d, v%d" % (36 + i // 2, S + i, S + i + 1))
            e("ds_write_b16 v33, v%d offset:%d" % (36 + i // 2, a * 512 + r * 32))
            e("ds_write_b16_d16_hi v33, v%d offset:%d" % (36 + i // 2, a * 512 + (r + 1) * 32))
        e("v_add_f32 v34, v%d, v%d" % (S, S + 1)); e("v_add_f32 v35, v%d, v%d" % (S + 2, S + 3))
        e("v_add_f32 v40, v%d, v%d" % (S + 4, S + 5)); e("v_add_f32 v41, v%d, v%d" % (S + 6, S + 7))
        e("v_add_f32 v34, v34, v35"); e("v_add_f32 v40, v40, v41"); e("v_add_f32 v34, v34, v40")
        self.allreduce64(34, 35, "v_add_f32")
        e("v_mov_b32 v%d, v34" % vLsum)
        e("v_mov_b32 v9, v32")
        e("s_waitcnt lgkmcnt(0)")

    def vphase(self):
        e = self.e
        e("v_lshrrev_b32 v%d, 5, v%d" % (vPh, vL)); e("v_lshlrev_b32 v%d, 12, v%d" % (vPh, vPh))
        e("v_and_b32 v%d, 31, v%d" % (vAd, vL)); e("v_lshl_add_u32 v%d, v%d, 3, v%d" % (vPh, vAd, vPh))
        e("v_lshrrev_b32 v%d, 4, v%d" % (vPa, vL)); e("v_lshlrev_b32 v%d, 3, v%d" % (vPa, vPa))
        e("s_lshl_b32 s%d, s%d, 10" % (sT0, sWave)); e("s_add_u32 s%d, s%d, %d" % (sT0, sT0, L_P))
        e("v_add_u32 v%d, s%d, v%d" % (vPa, sT0, vPa))
        for i in range(16):
            e("v_mov_b32 v%d, 0" % (vACC + i))
        acc = lambda T4: vr(vACC + 4 * T4, 4)
        after = {1: 0, 3: 1, 6: 2, 8: 3, 11: 4, 13: 5, 16: 6}
        pf_tiles = tuple(int(x) for x in str(self.o.get("wpft", "14,16")).split(",")) if (self.wpf and self.gapw) else ()
        cpf_tiles = tuple(int(x) for x in str(self.o.get("cpft", "9,11")).split(",")) if int(self.o.get("cpf", 1)) else ()
        if pf_tiles:
            self.wpf_setup()
        if cpf_tiles:
            e("s_getpc_b64 s[18:19]")
            self.lab("L_pcref")
            e("s_add_u32 s18, s18, L_gapcode-L_pcref"); e("s_addc_u32 s19, s19, 0")
            e("v_lshlrev_b32 v46, 7, v%d" % vL)
        any_x = bool(pf_tiles) or bool(cpf_tiles)
        pend = 0
        for i in range(NSTR_T):
            T = NRES_T + i
            if self.ilv:
                T = self.strT(i)
            if not any_x:
                self.step_issue()
            else:
                deep = int(self.o.get("deepV", 99))
                Rv = 4 if i >= deep else self.R
                hist = getattr(self, "_h", [])
                if i == deep:
                    lsk = self.nl("Ldp")
                    e("s_cmp_eq_u32 s%d, 0" % sPass); e("s_cbranch_scc0 %s" % lsk)
                    self.issue(); self.issue()
                    self.lab(lsk)
                    hist += [0, 0]
                w = 4 * (Rv - 1)
                for half in range(2):
                    ex = sum(hist[-(Rv - 1):]) if hist else 0
                    e("s_waitcnt vmcnt(%d)" % (w + ex))
                    self.issue()
                    if half == 0 and i in pf_tiles:
                        e("buffer_load_dword v44, v45, %s, s%d offen" % (sp(sWS, 4), sWoff))
                        e("s_add_u32 s%d, s%d, s%d" % (sWoff, sWoff, sWstep))
                        hist.append(1)
                    elif half == 0 and i in cpf_tiles:
                        e("v_min_u32 v47, L_endcode-L_gapcode-4, v46")
                        e("global_load_dword v47, v47, s[18:19]")
                        e("v_add_u32 v46, 8192, v46")
                        hist.append(1)
                    else:
                        hist.append(0)
                self._h = hist
            e("v_add_u32 v%d, s%d, v%d" % (vAd, sCs, vPh))
            e("ds_read_b64 v[32:33], v%d offset:%d" % (vPa, T * 32))
            for b in range(0 if self.o.get("nocomp") else 2):
                us = (2 * b, 2 * b + 1)
                k = 0
                for u in us:
                    for T4 in range(4):
                        e("ds_read_b64_tr_b16 v[%d:%d], v%d offset:%d" % (48 + 2 * k, 49 + 2 * k, vAd, (4 * T4 + u) * 256))
                        k += 1
                if b == 0:
                    e("s_waitcnt lgkmcnt(8)")
                for j, u in enumerate(us):
                    e("v_cndmask_b32 v%d, 0, v32, %s" % (36 + 2 * j, sp(sM[u])))
                    e("v_cndmask_b32 v%d, 0, v33, %s" % (37 + 2 * j, sp(sM[u])))
                e("s_waitcnt lgkmcnt(0)")
                k = 0
                for j, u in enumerate(us):
                    for T4 in range(4):
                        e("v_mfma_f32_16x16x16_bf16 %s, %s, %s, %s" % (acc(T4), vr(36 + 2 * j, 2), vr(48 + 2 * k, 2), acc(T4)))
                        k += 1
            self.adv_cs()
            if self.o.get("vstamps") and i in (5, 11, 14):
                self.stamp({5: 14, 11: 15, 14: 12}[i])
            if i in after and not self.o.get("nocomp"):
                self.res_pair(after[i])
        self.nop(8)

    def wpf_setup(self):
        e = self.e
        d = self.nl("Lpf"); lb = self.nl("LpfB")
        e("s_mov_b32 s%d, 0x20000" % (sWS + 3)); e("s_mov_b32 s%d, 0" % (sWS + 2))
        e("s_mov_b32 s%d, s%d" % (sWS, pW2)); e("s_and_b32 s%d, s%d, 0xffff" % (sWS + 1, pW2 + 1))
        e("s_mov_b32 s%d, 0" % sWoff); e("s_mov_b32 s%d, 0" % sWstep); e("v_mov_b32 v45, 0")
        e("s_cmp_eq_u32 s%d, 0" % sPass); e("s_cbranch_scc0 %s" % d)
        e("s_cmp_eq_u32 s%d, 2" % sRole); e("s_cbranch_scc1 %s" % lb)
        e("s_cmp_eq_u32 s%d, 3" % sRole); e("s_cbranch_scc0 %s" % d)
        e("s_mov_b32 s%d, %d" % (sWS + 2, 1792 * 896))
        e("v_mul_u32_u24 v45, 896, v%d" % vL)
        e("s_and_b32 s%d, s%d, 3" % (sT0, sIdx)); e("s_mul_i32 s%d, s%d, 448" % (sT0, sT0)); e("s_lshl_b32 s%d, s%d, 7" % (sT1, sWave)); e("s_add_u32 s%d, s%d, s%d" % (sT0, sT0, sT1))
        e("s_mul_i32 s%d, s%d, 896" % (sWoff, sT0)); e("s_lshr_b32 s%d, s%d, 2" % (sT1, sIdx)); e("s_lshl_b32 s%d, s%d, 7" % (sT1, sT1)); e("s_add_u32 s%d, s%d, s%d" % (sWoff, sWoff, sT1))
        e("s_mov_b32 s%d, %d" % (sWstep, 64 * 896))
        e("s_branch %s" % d)
        self.lab(lb)
        e("s_bitcmp1_b32 s%d, 0" % sIdx)
        e("s_cselect_b32 s%d, s%d, s%d" % (sWS, pW3, pW1)); e("s_cselect_b32 s%d, s%d, s%d" % (sWS + 1, pW3 + 1, pW1 + 1))
        e("s_and_b32 s%d, s%d, 0xffff" % (sWS + 1, sWS + 1))
        e("s_mov_b32 s%d, %d" % (sWS + 2, 448 * 3584))
        e("v_mul_u32_u24 v45, 3584, v%d" % vL)
        e("s_lshl_b32 s%d, s%d, 7" % (sT1, sWave)); e("s_mul_i32 s%d, s%d, 3584" % (sWoff, sT1))
        e("s_lshr_b32 s%d, s%d, 1" % (sT1, sIdx)); e("s_lshl_b32 s%d, s%d, 7" % (sT1, sT1)); e("s_add_u32 s%d, s%d, s%d" % (sWoff, sWoff, sT1))
        e("s_mov_b32 s%d, %d" % (sWstep, 64 * 3584))
        self.lab(d)

    def res_pair(self, m):
        e = self.e
        acc = lambda T4: vr(vACC + 4 * T4, 4)
        if self.ilv:
            e("ds_read2_b64 v[32:35], v%d offset0:%d offset1:%d" % (vPa, 4 * self.resT(2 * m), 4 * self.resT(2 * m + 1)))
        else:
            e("ds_read2_b64 v[32:35], v%d offset0:%d offset1:%d" % (vPa, 8 * m, 8 * m + 4))
        e("s_waitcnt lgkmcnt(0)")
        for u in range(4):
            A = 36 + 4 * (u & 1)
            for d in range(4):
                e("v_cndmask_b32 v%d, 0, v%d, %s" % (A + d, 32 + d, sp(sM[u])))
            self.nop(2)
            for T4 in range(4):
                e("v_mfma_f32_16x16x32_bf16 %s, %s, %s, %s" % (acc(T4), vr(A, 4), res_reg(m, 4 * T4 + u), acc(T4)))

    def combine_publish(self):
        e = self.e
        self.lab("L_gapcode")
        for u in range(4):
            X, Y, Z, W = (vACC + 4 * t + u for t in range(4))
            e("v_permlane16_swap_b32 v%d, v%d" % (X, Y))
            e("v_permlane16_swap_b32 v%d, v%d" % (Z, W))
        self.nop(2)
        for u in range(4):
            e("v_permlane32_swap_b32 v%d, v%d" % (vACC + u, vACC + 8 + u))
        e("v_lshrrev_b32 v32, 4, v%d" % vL); e("v_lshlrev_b32 v32, 8, v32")
        e("v_and_b32 v33, 15, v%d" % vL); e("v_lshl_add_u32 v32, v33, 2, v32")
        e("s_lshl_b32 s%d, s%d, 10" % (sT0, sWave)); e("s_add_u32 s%d, s%d, %d" % (sT0, sT0, L_P))
        e("v_add_u32 v32, s%d, v32" % sT0)
        for u in range(4):
            e("ds_write_b32 v32, v%d offset:%d" % (vACC + u, u * 64))
        e("s_lshl_b32 s%d, s%d, 2" % (sT0, sWave)); e("s_add_u32 s%d, s%d, %d" % (sT0, sT0, L_SM + 16))
        e("v_mov_b32 v33, s%d" % sT0)
        e("ds_write_b32 v33, v%d" % vLsum)
        e("s_waitcnt lgkmcnt(0)")
        e("s_barrier")
        e("s_lshl_b32 s%d, s%d, 8" % (sT0, sWave)); e("s_add_u32 s%d, s%d, %d" % (sT0, sT0, L_P))
        e("v_lshlrev_b32 v40, 2, v%d" % vL); e("v_add_u32 v32, s%d, v40" % sT0)
        for w in range(4):
            e("ds_read_b32 v%d, v32 offset:%d" % (34 + w, w * 1024))
        e("v_mov_b32 v33, %d" % (L_SM + 16))
        e("ds_read_b128 v[44:47], v33")
        e("s_waitcnt lgkmcnt(0)")
        e("v_add_f32 v34, v34, v35"); e("v_add_f32 v36, v36, v37"); e("v_add_f32 v34, v34, v36")
        e("v_add_f32 v44, v44, v45"); e("v_add_f32 v46, v46, v47"); e("v_add_f32 v44, v44, v46")
        e("v_mov_b32 v41, -2")
        e("v_min_u32 v34, v34, v41")
        e("v_and_b32 v42, 1, v%d" % vL); e("v_cmp_eq_u32 vcc, 1, v42"); self.nop(2)
        e("v_cndmask_b32 v43, v9, v44, vcc"); e("v_min_u32 v43, v43, v41")
        e("v_lshlrev_b32 v42, 2, v42"); e("v_add_u32 v42, 256, v42")
        e("s_lshl_b32 s%d, s%d, 2" % (sT0, sH)); e("s_add_u32 s%d, s%d, s%d" % (sT0, sT0, sWave)); e("s_lshl_b32 s%d, s%d, 4" % (sT0, sT0))
        e("s_add_u32 s%d, s%d, s%d" % (sT0, sT0, sC)); e("s_mul_i32 s%d, s%d, %d" % (sT0, sT0, M1_SLOT))
        e("s_mul_i32 s%d, s%d, 0x%x" % (sT1, sPass, M1_R))
        self.addr(sA, pWs, M1, [sT0, sT1])
        e("global_store_dword v40, v34, %s sc1" % sp(sA))
        if int(self.o.get("ml2", 0)):
            e("s_mov_b64 exec, 3")
        e("global_store_dword v42, v43, %s sc1" % sp(sA))
        if int(self.o.get("ml2", 0)):
            e("s_mov_b64 exec, -1")
        e("s_barrier")

    def l2pf_ilv(self, ntiles):
        if not ntiles or not self.ilv:
            return
        e = self.e
        D = self.nl("Lpfd")
        e("s_cmp_eq_u32 s%d, 0" % sPass); e("s_cbranch_scc0 %s" % D)
        tiles = [t for t in (3, 4, 6, 8, 10, 12)][:ntiles + 1]
        e("v_lshrrev_b32 v6, 5, v%d" % vL); e("v_lshlrev_b32 v6, 14, v6")
        e("v_and_b32 v5, 31, v%d" % vL); e("v_lshlrev_b32 v5, 7, v5"); e("v_add_u32 v5, 3072, v5")
        first = True
        for k in range(ntiles):
            e("s_cmp_eq_u32 s%d, 8" % sNS); e("s_cselect_b32 s%d, %d, %d" % (sT0, 2 * tiles[k + 1], 2 * tiles[k]))
            e("s_lshl_b32 s%d, s%d, 11" % (sT1, sT0)); e("s_xor_b32 s%d, s%d, s%d" % (sT1, sT1, sWb)); e("s_and_b32 s%d, s%d, 8192" % (sT1, sT1))
            e("s_lshl_b32 s%d, s%d, 14" % (sT0, sT0)); e("s_add_u32 s%d, s%d, s%d" % (sT0, sT0, sRot))
            e("v_add_u32 v7, s%d, v6" % sT0); e("v_and_b32 v7, 0x%x, v7" % (64 * self.stride - 1)); e("v_add_u32 v7, v7, v5")
            if int(self.o.get("pfpace", 1)):
                e("s_waitcnt vmcnt(0)")
            e("buffer_load_dword v8, v7, %s, s%d offen" % (sp(sCUR, 4), sT1))
        e("s_waitcnt vmcnt(0)")
        self.lab(D)

    def topup(self, tp=None):
        e = self.e
        L = self.nl("Tu"); D = self.nl("Tud")
        e("s_cmp_eq_u32 s%d, 0" % sPass); e("s_cbranch_scc0 %s" % D)
        e("s_sub_u32 s%d, s%d, %d" % (sT5, sNS, 4 if int(self.o.get("deepV", 99)) < NSTR_T else self.R))
        self.lab(L)
        if tp is None:
            tp = int(self.o.get("tpace", 1))
        if tp:
            e("s_waitcnt vmcnt(%d)" % (4 * (tp - 1)))
        self.issue()
        e("s_sub_u32 s%d, s%d, 1" % (sT5, sT5))
        e("s_cmp_lg_u32 s%d, 0" % sT5); e("s_cbranch_scc1 %s" % L)
        if self.l2pf:
            e("v_and_b32 v5, 31, v%d" % vL); e("v_lshlrev_b32 v5, 7, v5"); e("v_add_u32 v5, 3072, v5")
            e("v_lshrrev_b32 v6, 5, v%d" % vL); e("v_mul_u32_u24 v6, %d, v6" % self.stride); e("v_add_u32 v6, v5, v6")
            e("s_mov_b32 s%d, s%d" % (sT5, sOff))
            for k in range(self.l2pf):
                e("buffer_load_dword v5, v6, %s, s%d offen%s" % (sp(sCUR, 4), sT5, self.l2pol))
                e("s_add_u32 s%d, s%d, %d" % (sT5, sT5, 2 * self.stride))
                if self.stag:
                    e("s_and_b32 s%d, s%d, 0x%x" % (sT5, sT5, 64 * self.stride - 1))
        self.lab(D)

    def stage_S1(self):
        e = self.e
        e("s_mul_i32 s%d, s%d, %d" % (sT0, sIdx, 16 * M1_SLOT)); e("s_mul_i32 s%d, s%d, 0x%x" % (sT1, sPass, M1_R))
        self.addr(sA, pWs, M1 + 2304, [sT0, sT1])
        e("v_lshrrev_b32 v10, 4, v%d" % vL); e("v_mul_u32_u24 v10, %d, v10" % M1_SLOT)
        e("v_and_b32 v11, 15, v%d" % vL); e("v_lshl_add_u32 v11, v11, 4, v10")
        e("v_add_u32 v10, 256, v10")
        loads = []; regs = []
        for j in range(4):
            off = j * 4 * M1_SLOT - 2304
            loads.append("global_load_dwordx4 v[%d:%d], v11, %s offset:%d sc1" % (32 + 4 * j, 35 + 4 * j, sp(sA), off))
            loads.append("global_load_dwordx2 v[%d:%d], v10, %s offset:%d sc1" % (48 + 2 * j, 49 + 2 * j, sp(sA), off))
        self.poll(loads, list(range(32, 56)), 56, "Ps1")
        self.stamp(8)
        e("v_max3_f32 v56, v48, v50, v52"); e("v_max_f32 v56, v56, v54")
        self.xrows(56, 57, "v_max_f32")
        e("s_mov_b32 s%d, 0x%x" % (sT0, C_EXP))
        for j in range(4):
            e("v_sub_f32 v%d, v%d, v56" % (48 + 2 * j, 48 + 2 * j))
        for j in range(4):
            e("v_mul_f32 v%d, s%d, v%d" % (48 + 2 * j, sT0, 48 + 2 * j))
        for j in range(4):
            e("v_exp_f32 v%d, v%d" % (48 + 2 * j, 48 + 2 * j))
        self.nop(1)
        e("v_mul_f32 v56, v48, v49")
        for j in range(1, 4):
            e("v_fmac_f32 v56, v%d, v%d" % (48 + 2 * j, 49 + 2 * j))
        for d in range(4):
            e("v_mul_f32 v%d, v48, v%d" % (32 + d, 32 + d))
        for j in range(1, 4):
            for d in range(4):
                e("v_fmac_f32 v%d, v%d, v%d" % (32 + d, 48 + 2 * j, 32 + 4 * j + d))
        self.xrows(56, 57, "v_add_f32")
        e("v_rcp_f32 v56, v56")
        e("v_permlane32_swap_b32 v32, v34"); e("v_permlane32_swap_b32 v33, v35"); self.nop(1)
        e("v_add_f32 v32, v32, v34"); e("v_add_f32 v33, v33, v35")
        e("v_mov_b32 v34, v32"); e("v_mov_b32 v35, v33"); self.nop(2)
        e("v_permlane16_swap_b32 v32, v34"); e("v_permlane16_swap_b32 v33, v35"); self.nop(1)
        e("v_add_f32 v32, v32, v34"); e("v_add_f32 v33, v33, v35")
        e("v_mul_f32 v32, v32, v56"); e("v_mul_f32 v33, v33, v56")
        e("v_cvt_pk_bf16_f32 v32, v32, v33")
        e("v_mov_b32 v41, -2"); e("v_min_u32 v32, v32, v41")
        e("v_and_b32 v34, 15, v%d" % vL); e("v_lshlrev_b32 v34, 3, v34")
        e("v_lshrrev_b32 v35, 5, v%d" % vL); e("v_lshl_add_u32 v34, v35, 2, v34"); e("v_add_u32 v34, s%d, v34" % sVec)
        e("ds_write_b32 v34, v32")
        if self.o.get("dbg_a"):
            e("s_lshl_b32 s%d, s%d, 13" % (sT0, sPass)); e("s_lshl_b32 s%d, s%d, 7" % (sT1, sIdx))
            self.addr(sA, pWs, 0xC0000, [sT0, sT1])
            e("v_subrev_u32 v35, s%d, v34" % sVec)
            e("global_store_dword v35, v32, %s" % sp(sA))
        self.lane_rc()
        e("v_lshlrev_b32 v6, 3, v10"); e("v_add_u32 v6, s%d, v6" % sVec)
        e("v_lshl_add_u32 v7, v10, 2, v11"); e("v_mul_u32_u24 v7, %d, v7" % O_ROW); e("v_lshl_add_u32 v7, v12, 3, v7")
        e("s_mul_i32 s%d, s%d, 224" % (sT0, sWave)); e("s_add_u32 s%d, s%d, %d" % (sT0, sT0, L_W)); e("v_add_u32 v7, s%d, v7" % sT0)
        e("s_waitcnt lgkmcnt(0)")
        e("ds_read2_b64 v[36:39], v6 offset0:0 offset1:4"); e("ds_read2_b64 v[40:43], v6 offset0:8 offset1:12")
        for c0 in range(0, 7, 2):
            cts = [c for c in (c0, c0 + 1) if c < 7]
            k = 0
            for ct in cts:
                for m in range(2):
                    e("ds_read_b64_tr_b16 v[%d:%d], v7 offset:%d" % (48 + 4 * k, 49 + 4 * k, m * 32 * O_ROW + ct * 32))
                    e("ds_read_b64_tr_b16 v[%d:%d], v7 offset:%d" % (50 + 4 * k, 51 + 4 * k, (m * 32 + 16) * O_ROW + ct * 32))
                    k += 1
            e("s_waitcnt lgkmcnt(0)")
            k = 0
            for ct in cts:
                for m in range(2):
                    c = "0" if m == 0 else vr(8 + 4 * ct, 4)
                    e("v_mfma_f32_16x16x32_bf16 %s, %s, %s, %s" % (vr(8 + 4 * ct, 4), vr(36 + 4 * m, 4), vr(48 + 4 * k, 4), c))
                    k += 1
        self.nop(8)
        for row in range(1, 4):
            e("s_mov_b32 exec_lo, 0x%x" % (0xffff0000 if row == 1 else 0))
            e("s_mov_b32 exec_hi, 0x%x" % (0 if row == 1 else (0xffff << (16 * (row - 2)))))
            e("v_mov_b32 v8, v%d" % (8 + 4 * row))
            if row < 3:
                e("v_mov_b32 v24, v%d" % (24 + 4 * row))
        e("s_mov_b64 exec, -1")
        e("v_mov_b32 v41, -2"); e("v_min_u32 v8, v8, v41"); e("v_min_u32 v24, v24, v41")
        e("s_mul_i32 s%d, s%d, %d" % (sT0, sIdx, M2_SLOT)); e("s_mul_i32 s%d, s%d, 0x%x" % (sT1, sPass, M2_R)); e("s_mul_i32 s%d, s%d, 448" % (sT2, sWave))
        self.addr(sA, pWs, M2, [sT0, sT1, sT2])
        e("v_lshlrev_b32 v40, 2, v%d" % vL)
        e("global_store_dword v40, v8, %s sc1" % sp(sA))
        e("s_mov_b32 exec_hi, 0xffff")
        e("global_store_dword v40, v24, %s offset:256 sc1" % sp(sA))
        e("s_mov_b64 exec, -1")
        self.stamp(9)

    def reduce_waves16(self, src):
        e = self.e
        e("v_and_b32 v14, 15, v%d" % vL); e("v_lshlrev_b32 v14, 2, v14")
        e("s_lshl_b32 s%d, s%d, 6" % (sT0, sWave)); e("s_add_u32 s%d, s%d, %d" % (sT0, sT0, L_RED))
        e("v_add_u32 v15, s%d, v14" % sT0)
        e("ds_write_b32 v15, v%d" % src)
        e("s_waitcnt lgkmcnt(0)")
        e("s_barrier")
        for w in range(4):
            e("ds_read_b32 v%d, v14 offset:%d" % (16 + w, L_RED + w * 64))
        e("s_waitcnt lgkmcnt(0)")
        e("v_add_f32 v16, v16, v17"); e("v_add_f32 v18, v18, v19"); e("v_add_f32 v8, v16, v18")

    def stage_R(self):
        e = self.e
        e("v_lshrrev_b32 v20, 4, v%d" % vL); e("v_lshlrev_b32 v20, 2, v20")
        e("s_cmp_eq_u32 s%d, 0" % sPass); e("s_cbranch_scc0 L_R_r1")
        e("s_lshl_b32 s%d, s%d, 4" % (sT0, sIdx))
        self.addr(sB, pX, 0, [sT0])
        e("s_branch L_R_r2")
        self.lab("L_R_r1")
        e("s_lshr_b32 s%d, s%d, 1" % (sT0, sIdx)); e("s_lshl_b32 s%d, s%d, 7" % (sT0, sT0))
        e("s_and_b32 s%d, s%d, 1" % (sT1, sIdx)); e("s_lshl_b32 s%d, s%d, 4" % (sT1, sT1))
        self.addr(sB, pWs, M5, [sT0, sT1])
        self.lab("L_R_r2")
        e("global_load_dword v21, v20, %s sc1" % sp(sB))
        e("s_lshl_b32 s%d, s%d, 5" % (sT0, sIdx)); e("s_mul_i32 s%d, s%d, 0x%x" % (sT1, sPass, M2_R))
        self.addr(sA, pWs, M2, [sT0, sT1])
        e("v_mul_u32_u24 v8, %d, v%d" % (M2_SLOT, vL))
        self.poll(["global_load_dwordx4 v[32:35], v8, %s sc1" % sp(sA),
                   "global_load_dwordx4 v[36:39], v8, %s offset:16 sc1" % sp(sA)], list(range(32, 40)), 40, "Pa")
        self.stamp(8)
        for d in range(4):
            e("v_permlane32_swap_b32 v%d, v%d" % (32 + d, 36 + d))
        self.nop(1)
        for d in range(4):
            e("v_add_f32 v%d, v%d, v%d" % (32 + d, 32 + d, 36 + d))
        self.nop(2)
        e("v_permlane16_swap_b32 v32, v34"); e("v_permlane16_swap_b32 v33, v35"); self.nop(1)
        e("v_add_f32 v32, v32, v34"); e("v_add_f32 v33, v33, v35")
        for n in (8, 4, 2, 1):
            self.nop(1)
            e("v_add_f32_dpp v32, v32, v32 row_ror:%d row_mask:0xf bank_mask:0xf" % n)
            e("v_add_f32_dpp v33, v33, v33 row_ror:%d row_mask:0xf bank_mask:0xf" % n)
        e("v_cvt_pk_bf16_f32 v34, v32, v33")
        e("v_lshlrev_b32 v32, 16, v34"); e("v_and_b32 v33, 0xffff0000, v34")
        e("v_lshlrev_b32 v35, 16, v21"); e("v_and_b32 v36, 0xffff0000, v21")
        e("v_add_f32 v32, v32, v35"); e("v_add_f32 v33, v33, v36")
        e("v_cvt_pk_bf16_f32 v34, v32, v33")
        e("v_mov_b32 v41, -2"); e("v_min_u32 v34, v34, v41")
        e("s_lshl_b32 s%d, s%d, 13" % (sT0, sPass)); e("s_lshl_b32 s%d, s%d, 7" % (sT1, sIdx))
        self.addr(sA, pWs, M3, [sT0, sT1])
        e("s_mov_b32 exec_lo, 0x00010001"); e("s_mov_b32 exec_hi, 0x00010001")
        e("global_store_dword v20, v34, %s sc1" % sp(sA))
        e("s_mov_b64 exec, -1")
        self.stamp(9)

    def gather_x(self, base_off, slot_shift_mode):
        e = self.e
        e("v_min_u32 v8, 55, v%d" % vL)
        if slot_shift_mode == "M3":
            e("v_lshlrev_b32 v8, 7, v8")
        else:
            e("v_and_b32 v9, 1, v8"); e("v_lshrrev_b32 v8, 1, v8"); e("v_lshlrev_b32 v8, 7, v8"); e("v_lshl_add_u32 v8, v9, 4, v8")
        self.poll(["global_load_dwordx4 v[32:35], v8, %s sc1" % sp(sA)], [32, 33, 34, 35], 36, "Px")

    def stage_B(self):
        e = self.e
        e("s_lshl_b32 s%d, s%d, 13" % (sT0, sPass))
        self.addr(sA, pWs, M3, [sT0])
        self.gather_x(M3, "M3")
        self.stamp(8)
        if self.gapw:
            e("s_barrier")
        self.layernorm_to_vec()
        self.lane_rc()
        e("v_lshlrev_b32 v6, 3, v10"); e("v_add_u32 v6, s%d, v6" % sVec)
        e("v_lshl_add_u32 v7, v10, 2, v11"); e("v_lshlrev_b32 v7, 6, v7")
        e("v_and_b32 v14, 1, v12"); e("v_lshl_add_u32 v7, v14, 3, v7")
        e("v_lshrrev_b32 v14, 1, v12"); e("v_mul_u32_u24 v14, %d, v14" % B_IMG3); e("v_add_u32 v7, v7, v14")
        e("s_lshl_b32 s%d, s%d, 4" % (sT0, sWave)); e("s_add_u32 s%d, s%d, %d" % (sT0, sT0, L_W)); e("v_add_u32 v7, s%d, v7" % sT0)
        self.gemv_chain(14, lambda m: (8 * m, 8 * m + 4), 2048, 1024)
        self.bf16r(8, 8, 9)
        self.nop(1)
        e("v_mov_b32_dpp v10, v8 row_ror:8 row_mask:0xf bank_mask:0xf")
        e("v_mul_f32 v11, 0xbfb8aa3b, v8")
        e("v_exp_f32 v11, v11"); self.nop(1)
        e("v_add_f32 v11, 1.0, v11")
        e("v_rcp_f32 v11, v11"); self.nop(1)
        e("v_mul_f32 v11, v8, v11")
        self.bf16r(11, 11, 12)
        e("v_mul_f32 v11, v11, v10")
        self.nop(1)
        e("v_mov_b32_dpp v12, v11 quad_perm:[1,0,3,2] row_mask:0xf bank_mask:0xf")
        e("v_cvt_pk_bf16_f32 v12, v11, v12")
        e("v_mov_b32 v14, -2"); e("v_min_u32 v12, v12, v14")
        e("s_lshl_b32 s%d, s%d, 13" % (sT0, sPass)); e("s_lshl_b32 s%d, s%d, 7" % (sT1, sIdx)); e("s_lshl_b32 s%d, s%d, 4" % (sT2, sWave))
        self.addr(sA, pWs, M4, [sT0, sT1, sT2])
        e("v_lshlrev_b32 v14, 1, v%d" % vL)
        e("s_mov_b64 exec, 0x55")
        e("global_store_dword v14, v12, %s sc1" % sp(sA))
        e("s_mov_b64 exec, -1")

    def stage_C(self):
        e = self.e
        e("s_lshl_b32 s%d, s%d, 13" % (sT0, sPass)); e("s_lshl_b32 s%d, s%d, 8" % (sT1, sIdx))
        self.addr(sB, pWs, M3, [sT0, sT1])
        e("v_bfe_u32 v20, v%d, 3, 1" % vL); e("v_lshlrev_b32 v20, 7, v20")
        e("v_bfe_u32 v21, v%d, 1, 2" % vL); e("v_lshl_add_u32 v20, v21, 2, v20")
        self.poll(["global_load_dword v22, v20, %s sc1" % sp(sB)], [22], 23, "Pr")
        e("s_lshl_b32 s%d, s%d, 13" % (sT0, sPass)); e("s_mul_i32 s%d, s%d, %d" % (sT1, sWave, 14 * 128))
        self.addr(sA, pWs, M4, [sT0, sT1])
        e("v_min_u32 v8, 55, v%d" % vL)
        e("v_and_b32 v9, 3, v8"); e("v_lshrrev_b32 v8, 2, v8"); e("v_lshlrev_b32 v8, 7, v8"); e("v_lshl_add_u32 v8, v9, 4, v8")
        self.poll(["global_load_dwordx4 v[32:35], v8, %s sc1" % sp(sA)], [32, 33, 34, 35], 36, "Ph")
        self.stamp(8)
        e("v_lshlrev_b32 v8, 4, v%d" % vL); e("v_add_u32 v8, s%d, v8" % sVec)
        e("ds_write_b128 v8, v[32:35]")
        self.lane_rc()
        e("v_lshlrev_b32 v6, 3, v10"); e("v_add_u32 v6, s%d, v6" % sVec)
        e("s_mul_i32 s%d, s%d, %d" % (sT0, sWave, C_WAVE)); e("s_add_u32 s%d, s%d, %d" % (sT0, sT0, L_W))
        e("v_lshl_add_u32 v7, v10, 2, v11"); e("v_lshlrev_b32 v7, 5, v7"); e("v_lshl_add_u32 v7, v12, 3, v7"); e("v_add_u32 v7, s%d, v7" % sT0)
        e("s_waitcnt lgkmcnt(0)")
        self.gemv_chain(14, lambda m: (8 * m, 8 * m + 4), 1024, 512)
        self.reduce_waves16(8)
        e("s_cmp_eq_u32 s%d, 0" % sWave); e("s_cbranch_scc0 L_C_done")
        self.bf16r(8, 8, 9)
        e("v_and_b32 v23, 1, v%d" % vL); e("v_cmp_eq_u32 vcc, 1, v23")
        e("v_lshlrev_b32 v23, 16, v22"); e("v_and_b32 v22, 0xffff0000, v22")
        e("v_cndmask_b32 v22, v23, v22, vcc")
        e("v_add_f32 v8, v8, v22")
        self.nop(1)
        e("v_mov_b32_dpp v9, v8 quad_perm:[1,0,3,2] row_mask:0xf bank_mask:0xf")
        e("v_cvt_pk_bf16_f32 v9, v8, v9")
        e("v_lshlrev_b32 v14, 1, v%d" % vL)
        e("s_cmp_eq_u32 s%d, 0" % sPass); e("s_cbranch_scc0 L_C_out")
        e("v_mov_b32 v15, -2"); e("v_min_u32 v9, v9, v15")
        e("s_lshl_b32 s%d, s%d, 7" % (sT1, sIdx))
        self.addr(sA, pWs, M5, [sT1])
        e("s_mov_b64 exec, 0x5555")
        e("global_store_dword v14, v9, %s sc1" % sp(sA))
        e("s_mov_b64 exec, -1")
        e("s_branch L_C_done")
        self.lab("L_C_out")
        e("s_lshl_b32 s%d, s%d, 5" % (sT1, sIdx))
        self.addr(sA, pOut, 0, [sT1])
        e("s_mov_b64 exec, 0x5555")
        e("global_store_dword v14, v9, %s" % sp(sA))
        e("s_mov_b64 exec, -1")
        self.lab("L_C_done")


    def poll2(self, mk_loads, n, sets, dst, name="Q", sleep=0):
        e = self.e
        A, B = sets
        nl = len(mk_loads(A))
        L = self.nl(name); DA = self.nl(name + "a"); DB = self.nl(name + "b"); D = self.nl(name + "d")
        def check(base, target):
            rr = list(range(base, base + n))
            t = self.ptmp
            if n == 1:
                t = base
            else:
                if n >= 3:
                    e("v_max3_u32 v%d, v%d, v%d, v%d" % (t, rr[0], rr[1], rr[2])); rr = rr[3:]
                else:
                    e("v_max_u32 v%d, v%d, v%d" % (t, rr[0], rr[1])); rr = rr[2:]
                while rr:
                    if len(rr) >= 2:
                        e("v_max3_u32 v%d, v%d, v%d, v%d" % (t, t, rr[0], rr[1])); rr = rr[2:]
                    else:
                        e("v_max_u32 v%d, v%d, v%d" % (t, t, rr[0])); rr = rr[1:]
            e("v_cmp_eq_u32 vcc, -1, v%d" % t)
            e("s_cbranch_vccz %s" % target)
        e("s_mov_b32 s%d, 0" % sSpin)
        for ld in mk_loads(A): e(ld)
        self.lab(L)
        for ld in mk_loads(B): e(ld)
        e("s_waitcnt vmcnt(%d)" % nl)
        check(A, DA)
        for ld in mk_loads(A): e(ld)
        e("s_waitcnt vmcnt(%d)" % nl)
        check(B, DB)
        if sleep:
            e("s_sleep %d" % sleep)
        e("s_add_u32 s%d, s%d, 1" % (sSpin, sSpin))
        e("s_cmp_lt_u32 s%d, %d" % (sSpin, SPIN_LIMIT))
        e("s_cbranch_scc1 %s" % L)
        e("s_waitcnt vmcnt(0)")
        self.lab(DA)
        for i in range(n): e("v_mov_b32 v%d, v%d" % (dst + i, A + i))
        e("s_branch %s" % D)
        self.lab(DB)
        for i in range(n): e("v_mov_b32 v%d, v%d" % (dst + i, B + i))
        self.lab(D)

    ptmp = 31

    def rc2(self):
        e = self.e
        e("v_lshrrev_b32 v28, 4, v%d" % vL); e("v_bfe_u32 v29, v%d, 2, 2" % vL); e("v_and_b32 v30, 3, v%d" % vL)

    @property
    def NPRE(self):
        return 7 if self.o.get('stamps') else 8

    def breg(self, m):
        return 32 + 4 * (m % self.NPRE)

    def b_issue(self, lq, m, b_step, b_second):
        r = self.breg(m)
        lq.issue("ds_read_b64_tr_b16 v[%d:%d], v7 offset:%d" % (r, r + 1, m * b_step), ("B", m))
        lq.issue("ds_read_b64_tr_b16 v[%d:%d], v7 offset:%d" % (r + 2, r + 3, m * b_step + b_second), ("B", m))

    def chain2(self, lq, n, b_step, b_second, acc=16):
        e = self.e
        Ab = [20, 24, 28]
        def a_issue(m):
            lq.issue("ds_read2_b64 v[%d:%d], v6 offset0:%d offset1:%d" % (Ab[m % 3], Ab[m % 3] + 3, 8 * m, 8 * m + 4), ("A", m))
        for m in range(3):
            a_issue(m)
        for m in range(n):
            lq.wait([("A", m), ("B", m)])
            c = "0" if m == 0 else vr(acc, 4)
            e("v_mfma_f32_16x16x32_bf16 %s, %s, %s, %s" % (vr(acc, 4), vr(Ab[m % 3], 4), vr(self.breg(m), 4), c))
            if m + 3 < n:
                a_issue(m + 3)
            if m + self.NPRE < n:
                self.b_issue(lq, m + self.NPRE, b_step, b_second)
        self.nop(8)

    def ln2(self):
        e = self.e
        F = 20
        e("v_cmp_gt_u32 vcc, 56, v%d" % vL)
        for d in range(4):
            e("v_lshlrev_b32 v%d, 16, v%d" % (F + 2 * d, 16 + d))
            e("v_and_b32 v%d, 0xffff0000, v%d" % (F + 2 * d + 1, 16 + d))
        e("v_pk_add_f32 v[28:29], v[20:21], v[22:23]")
        e("v_pk_mul_f32 v[30:31], v[20:21], v[20:21]")
        e("v_pk_add_f32 v[16:17], v[24:25], v[26:27]")
        e("v_pk_fma_f32 v[30:31], v[22:23], v[22:23], v[30:31]")
        e("v_pk_add_f32 v[28:29], v[28:29], v[16:17]")
        e("v_pk_fma_f32 v[30:31], v[24:25], v[24:25], v[30:31]")
        e("v_add_f32 v28, v28, v29")
        e("v_pk_fma_f32 v[30:31], v[26:27], v[26:27], v[30:31]")
        e("v_cndmask_b32 v28, 0, v28, vcc")
        e("v_add_f32 v30, v30, v31")
        e("v_cndmask_b32 v30, 0, v30, vcc")
        for n in (8, 4, 2, 1):
            self.nop(1)
            e("v_add_f32_dpp v28, v28, v28 row_ror:%d row_mask:0xf bank_mask:0xf" % n)
            e("v_add_f32_dpp v30, v30, v30 row_ror:%d row_mask:0xf bank_mask:0xf" % n)
        for sw in ("v_permlane16_swap_b32", "v_permlane32_swap_b32"):
            e("v_mov_b32 v29, v28"); e("v_mov_b32 v31, v30"); self.nop(1)
            e("%s v28, v29" % sw); e("%s v30, v31" % sw)
            e("v_add_f32 v28, v28, v29"); e("v_add_f32 v30, v30, v31")
        e("v_mul_f32 v28, 0x3b124925, v28")
        e("v_mul_f32 v30, 0x3b124925, v30")
        e("v_cvt_pk_bf16_f32 v29, v28, v28")
        e("v_fma_f32 v30, -v28, v28, v30")
        e("v_and_b32 v28, 0xffff0000, v29")
        e("v_max_f32 v30, 0, v30")
        e("v_cvt_pk_bf16_f32 v31, v30, v30")
        e("v_pk_add_f32 v[20:21], v[20:21], v[28:29] op_sel_hi:[1,0] neg_lo:[0,1] neg_hi:[0,1]")
        e("v_and_b32 v30, 0xffff0000, v31")
        e("v_pk_add_f32 v[22:23], v[22:23], v[28:29] op_sel_hi:[1,0] neg_lo:[0,1] neg_hi:[0,1]")
        e("v_add_f32 v30, 0x3727c5ac, v30")
        e("v_pk_add_f32 v[24:25], v[24:25], v[28:29] op_sel_hi:[1,0] neg_lo:[0,1] neg_hi:[0,1]")
        e("v_cvt_pk_bf16_f32 v31, v30, v30")
        e("v_pk_add_f32 v[26:27], v[26:27], v[28:29] op_sel_hi:[1,0] neg_lo:[0,1] neg_hi:[0,1]")
        e("v_and_b32 v30, 0xffff0000, v31")
        e("v_cvt_pk_bf16_f32 v16, v20, v21")
        e("v_sqrt_f32 v30, v30")
        e("v_cvt_pk_bf16_f32 v17, v22, v23")
        e("v_cvt_pk_bf16_f32 v18, v24, v25")
        e("v_cvt_pk_bf16_f32 v31, v30, v30")
        e("v_cvt_pk_bf16_f32 v19, v26, v27")
        e("v_and_b32 v30, 0xffff0000, v31")
        e("v_lshlrev_b32 v20, 16, v16")
        e("v_rcp_f32 v30, v30")
        e("v_and_b32 v21, 0xffff0000, v16")
        for d in range(1, 4):
            e("v_lshlrev_b32 v%d, 16, v%d" % (F + 2 * d, 16 + d))
            e("v_and_b32 v%d, 0xffff0000, v%d" % (F + 2 * d + 1, 16 + d))
        for d in range(4):
            e("v_pk_mul_f32 v[%d:%d], v[%d:%d], v[30:31] op_sel_hi:[1,0]" % (F + 2 * d, F + 2 * d + 1, F + 2 * d, F + 2 * d + 1))
        for d in range(4):
            e("v_cvt_pk_bf16_f32 v%d, v%d, v%d" % (16 + d, F + 2 * d, F + 2 * d + 1))
        e("ds_write_b128 v5, v[16:19]")
        e("s_waitcnt lgkmcnt(0)")

    def prepBD(self, role):
        e = self.e
        self.rc2()
        e("v_lshlrev_b32 v6, 3, v28"); e("v_add_u32 v6, s%d, v6" % sVec)
        e("v_lshlrev_b32 v5, 4, v%d" % vL); e("v_add_u32 v5, s%d, v5" % sVec)
        e("v_lshl_add_u32 v7, v28, 2, v29")
        if role == "D":
            e("v_bfe_u32 v31, v7, 1, 2"); e("v_xor_b32 v31, s%d, v31" % sWave)
            e("v_lshlrev_b32 v7, 7, v7"); e("v_lshl_add_u32 v7, v31, 5, v7"); e("v_lshl_add_u32 v7, v30, 3, v7"); e("v_add_u32 v7, %d, v7" % L_W)
            st = (4096, 2048)
        elif role == "B":
            e("v_lshlrev_b32 v7, 6, v7")
            e("v_and_b32 v31, 1, v30"); e("v_lshl_add_u32 v7, v31, 3, v7")
            e("v_lshrrev_b32 v31, 1, v30"); e("v_mul_u32_u24 v31, %d, v31" % B_IMG3); e("v_add_u32 v7, v7, v31")
            e("s_lshl_b32 s%d, s%d, 4" % (sT0, sWave)); e("s_add_u32 s%d, s%d, %d" % (sT0, sT0, L_W)); e("v_add_u32 v7, s%d, v7" % sT0)
            st = (2048, 1024)
        else:
            e("s_mul_i32 s%d, s%d, %d" % (sT0, sWave, C_WAVE)); e("s_add_u32 s%d, s%d, %d" % (sT0, sT0, L_W))
            e("v_lshlrev_b32 v7, 5, v7"); e("v_lshl_add_u32 v7, v30, 3, v7"); e("v_add_u32 v7, s%d, v7" % sT0)
            st = (1024, 512)
        lq = LQ(self)
        for m in range(self.NPRE):
            self.b_issue(lq, m, st[0], st[1])
        return lq, st

    def poll_x2(self, mode):
        e = self.e
        e("v_min_u32 v19, 55, v%d" % vL)
        if mode == "M3":
            e("v_lshlrev_b32 v19, 7, v19")
        else:
            e("v_and_b32 v18, 1, v19"); e("v_lshrrev_b32 v19, 1, v19"); e("v_lshlrev_b32 v19, 7, v19"); e("v_lshl_add_u32 v19, v18, 4, v19")
        e("v_mov_b32 v29, v19")
        self.poll2(lambda b: ["global_load_dwordx4 v[%d:%d], v29, %s sc1" % (b, b + 3, sp(sA))], 4, (8, 12), 16, "Qx")

    def publish_pairs(self, val, tmp, base_pair, off_vreg, mask, final=False):
        e = self.e
        if final:
            l1 = self.nl("Lfo"); l2 = self.nl("Lfo")
            e("v_mov_b32_dpp v%d, v%d quad_perm:[1,0,3,2] row_mask:0xf bank_mask:0xf" % (tmp, val))
            e("v_cvt_pk_bf16_f32 v%d, v%d, v%d" % (tmp, val, tmp))
            e("s_mov_b64 exec, 0x%x" % mask)
            e("s_cmp_eq_u32 s%d, 0" % sPass); e("s_cbranch_scc0 %s" % l1)
            e("v_min_u32 v%d, v%d, v%d" % (tmp, tmp, 27))
            e("global_store_dword v%d, v%d, %s sc1" % (off_vreg, tmp, sp(base_pair)))
            e("s_branch %s" % l2)
            self.lab(l1)
            e("global_store_dword v%d, v%d, %s" % (off_vreg, tmp, sp(base_pair)))
            self.lab(l2)
            e("s_mov_b64 exec, -1")
            return
        e("v_mov_b32_dpp v%d, v%d quad_perm:[1,0,3,2] row_mask:0xf bank_mask:0xf" % (tmp, val))
        e("v_cvt_pk_bf16_f32 v%d, v%d, v%d" % (tmp, val, tmp))
        e("v_min_u32 v%d, v%d, v%d" % (tmp, tmp, 27))
        e("s_mov_b64 exec, 0x%x" % mask)
        e("global_store_dword v%d, v%d, %s sc1" % (off_vreg, tmp, sp(base_pair)))
        e("s_mov_b64 exec, -1")

    def wait_leftover(self):
        e = self.e
        a = self.nl("Lwl"); b = self.nl("Lwl")
        e("s_cmp_eq_u32 s%d, 0" % sWave); e("s_cbranch_scc1 %s" % a)
        e("s_waitcnt vmcnt(0)"); e("s_branch %s" % b)
        self.lab(a); e("s_waitcnt vmcnt(1)"); self.lab(b)

    def publish_wg(self, val, tmp, base_pair, nper, mask):
        e = self.e
        sk = self.nl("Lpw")
        e("v_mov_b32_dpp v%d, v%d quad_perm:[1,0,3,2] row_mask:0xf bank_mask:0xf" % (tmp, val))
        e("s_mul_i32 s%d, s%d, %d" % (sT0, sWave, nper * 4)); e("s_add_u32 s%d, s%d, %d" % (sT0, sT0, L_RED))
        e("v_cvt_pk_bf16_f32 v%d, v%d, v%d" % (tmp, val, tmp))
        e("v_lshlrev_b32 v26, 1, v%d" % vL); e("v_add_u32 v26, s%d, v26" % sT0)
        e("v_min_u32 v%d, v%d, v%d" % (tmp, tmp, 27))
        e("s_mov_b64 exec, 0x%x" % mask)
        e("ds_write_b32 v26, v%d" % tmp)
        e("s_mov_b64 exec, -1")
        e("v_lshlrev_b32 v26, 2, v%d" % vL)
        e("s_waitcnt lgkmcnt(0)")
        e("s_barrier")
        e("s_cmp_eq_u32 s%d, 0" % sWave); e("s_cbranch_scc0 %s" % sk)
        e("ds_read_b32 v%d, v26 offset:%d" % (tmp, L_RED))
        e("s_mov_b64 exec, 0x%x" % ((1 << (4 * nper)) - 1) if 4 * nper < 32 else "s_mov_b32 exec_hi, 0")
        e("s_waitcnt lgkmcnt(0)")
        e("global_store_dword v26, v%d, %s sc1" % (tmp, sp(base_pair)))
        e("s_mov_b64 exec, -1")
        self.lab(sk)

    def stageD2_prep(self):
        self.lqD, self.stD = self.prepBD("D")

    def stageD2_rest(self):
        e = self.e
        lq = LQ(self); lq.q = [("B", m) for m in range(self.NPRE) for _ in range(2)]
        self.ln2(); lq.q = []
        self.chain2(lq, 14, 4096, 2048)
        e("v_mov_b32 v27, -2")
        if self.onest:
            self.publish_wg(16, 25, sB, 8, 0x5555)
        else:
            e("v_lshlrev_b32 v26, 1, v%d" % vL)
            self.publish_pairs(16, 25, sB, 26, 0x5555)

    def stage_B2(self):
        e = self.e
        e("s_waitcnt vmcnt(0)"); e("s_barrier")
        self.stamp(11)
        lq, st = self.prepBD("B")
        e("s_lshl_b32 s%d, s%d, 13" % (sT0, sPass)); e("s_lshl_b32 s%d, s%d, 7" % (sT1, sIdx)); e("s_lshl_b32 s%d, s%d, 4" % (sT2, sWave))
        self.addr(sB, pWs, M4, [sT0, sT1] if self.onest else [sT0, sT1, sT2])
        self.addr(sA, pWs, M3, [sT0])
        self.poll_x2("M3")
        self.stamp(8)
        self.ln2(); lq.q = []
        self.chain2(lq, 14, st[0], st[1])
        e("v_cvt_pk_bf16_f32 v17, v16, v16"); e("v_and_b32 v16, 0xffff0000, v17")
        e("v_mul_f32 v19, 0xbfb8aa3b, v16")
        e("v_exp_f32 v19, v19")
        e("v_mov_b32_dpp v18, v16 row_ror:8 row_mask:0xf bank_mask:0xf")
        e("v_add_f32 v19, 1.0, v19")
        e("v_rcp_f32 v19, v19"); e("v_mov_b32 v27, -2")
        e("v_mul_f32 v19, v16, v19")
        e("v_cvt_pk_bf16_f32 v17, v19, v19"); e("v_and_b32 v19, 0xffff0000, v17")
        e("v_mul_f32 v19, v19, v18")
        if self.onest:
            self.nop(2)
            self.publish_wg(19, 25, sB, 4, 0x55)
            self.stamp(9)
            self.wait_leftover()
        else:
            e("v_lshlrev_b32 v26, 1, v%d" % vL); self.nop(1)
            self.publish_pairs(19, 25, sB, 26, 0x55)
            self.stamp(9)
            e("s_waitcnt vmcnt(1)")

    def stage_C2(self):
        e = self.e
        e("s_waitcnt vmcnt(0)")
        self.stamp(11)
        lq, st = self.prepBD("C")
        e("s_lshl_b32 s%d, s%d, 13" % (sT0, sPass)); e("s_lshl_b32 s%d, s%d, 8" % (sT1, sIdx))
        self.addr(sB, pWs, M3, [sT0, sT1])
        e("v_bfe_u32 v20, v%d, 3, 1" % vL); e("v_lshlrev_b32 v20, 7, v20")
        e("v_bfe_u32 v21, v%d, 1, 2" % vL); e("v_lshl_add_u32 v20, v21, 2, v20")
        self.poll(["global_load_dword v22, v20, %s sc1" % sp(sB)], [22], 23, "Pr")
        self.stamp(12)
        e("v_and_b32 v23, 1, v%d" % vL); e("v_cmp_eq_u32 vcc, 1, v23")
        e("v_lshlrev_b32 v23, 16, v22"); e("v_and_b32 v22, 0xffff0000, v22")
        e("v_cndmask_b32 v22, v23, v22, vcc")
        e("v_and_b32 v23, 15, v%d" % vL); e("v_lshlrev_b32 v23, 2, v23")
        e("ds_write_b32 v23, v22 offset:%d" % (L_RED + 256))
        lq.q.append(("S", 0))
        e("s_lshl_b32 s%d, s%d, 13" % (sT0, sPass)); e("s_mul_i32 s%d, s%d, %d" % (sT1, sWave, 14 * 128))
        self.addr(sA, pWs, M4, [sT0, sT1])
        e("v_min_u32 v29, 55, v%d" % vL)
        e("v_and_b32 v28, 3, v29"); e("v_lshrrev_b32 v29, 2, v29"); e("v_lshlrev_b32 v29, 7, v29"); e("v_lshl_add_u32 v29, v28, 4, v29")
        e("s_cmp_eq_u32 s%d, 0" % sPass)
        e("s_lshl_b32 s%d, s%d, 7" % (sT1, sIdx)); e("s_lshl_b32 s%d, s%d, 5" % (sT2, sIdx))
        lo = self.nl("Lco"); ld = self.nl("Lcod")
        e("s_cmp_eq_u32 s%d, 0" % sPass); e("s_cbranch_scc0 %s" % lo)
        self.addr(sB, pWs, M5, [sT1]); e("s_branch %s" % ld)
        self.lab(lo); self.addr(sB, pOut, 0, [sT2]); self.lab(ld)
        self.poll2(lambda b: ["global_load_dwordx4 v[%d:%d], v29, %s sc1" % (b, b + 3, sp(sA))], 4, (8, 12), 16, "Qh")
        self.stamp(8)
        e("ds_write_b128 v5, v[16:19]")
        e("s_waitcnt lgkmcnt(0)"); lq.q = []
        self.chain2(lq, 14, st[0], st[1])
        e("v_and_b32 v20, 15, v%d" % vL); e("v_lshlrev_b32 v20, 2, v20")
        e("s_lshl_b32 s%d, s%d, 6" % (sT0, sWave)); e("s_add_u32 s%d, s%d, %d" % (sT0, sT0, L_RED))
        e("v_add_u32 v21, s%d, v20" % sT0)
        e("ds_write_b32 v21, v16")
        e("s_waitcnt lgkmcnt(0)")
        e("s_barrier")
        lz = self.nl("Lcz")
        e("s_cmp_eq_u32 s%d, 0" % sWave); e("s_cbranch_scc0 %s" % lz)
        for w in range(4):
            e("ds_read_b32 v%d, v20 offset:%d" % (22 + w, L_RED + w * 64))
        e("ds_read_b32 v21, v20 offset:%d" % (L_RED + 256))
        e("v_mov_b32 v27, -2"); e("v_lshlrev_b32 v26, 1, v%d" % vL)
        e("s_waitcnt lgkmcnt(0)")
        e("v_add_f32 v22, v22, v23"); e("v_add_f32 v24, v24, v25"); e("v_add_f32 v16, v22, v24")
        e("v_cvt_pk_bf16_f32 v17, v16, v16"); e("v_and_b32 v16, 0xffff0000, v17")
        e("v_add_f32 v16, v16, v21")
        self.nop(1)
        self.publish_pairs(16, 25, sB, 26, 0x5555, final=bool(int(self.o.get("plainout", 0))))
        le = self.nl("Lce")
        self.stamp(9)
        e("s_waitcnt vmcnt(1)"); e("s_branch %s" % le)
        self.lab(lz)
        e("s_waitcnt vmcnt(0)")
        self.lab(le)


    def stage_O2(self):
        e = self.e
        self.rc2()
        e("v_lshlrev_b32 v6, 3, v28"); e("v_add_u32 v6, s%d, v6" % sVec)
        e("v_lshl_add_u32 v7, v28, 2, v29"); e("v_mul_u32_u24 v7, %d, v7" % O_ROW); e("v_lshl_add_u32 v7, v30, 3, v7")
        e("s_mul_i32 s%d, s%d, 224" % (sT0, sWave)); e("s_add_u32 s%d, s%d, %d" % (sT0, sT0, L_W)); e("v_add_u32 v7, s%d, v7" % sT0)
        e("v_and_b32 v5, 15, v%d" % vL); e("v_lshlrev_b32 v5, 3, v5")
        e("v_lshrrev_b32 v9, 5, v%d" % vL); e("v_lshl_add_u32 v5, v9, 2, v5"); e("v_add_u32 v5, s%d, v5" % sVec)
        e("s_mul_i32 s%d, s%d, %d" % (sT0, sIdx, M2_SLOT)); e("s_mul_i32 s%d, s%d, 0x%x" % (sT1, sPass, M2_R)); e("s_lshl_b32 s%d, s%d, 9" % (sT2, sWave))
        self.addr(sB, pWs, M2, [sT0, sT1, sT2])
        e("s_mul_i32 s%d, s%d, %d" % (sT0, sIdx, 16 * M1_SLOT)); e("s_mul_i32 s%d, s%d, 0x%x" % (sT1, sPass, M1_R))
        self.addr(sA, pWs, M1 + 2304, [sT0, sT1])
        e("v_mul_u32_u24 v10, %d, v28" % M1_SLOT)
        e("v_and_b32 v11, 15, v%d" % vL); e("v_lshl_add_u32 v11, v11, 4, v10")
        e("v_add_u32 v10, 256, v10")
        e("s_mov_b32 s%d, 0x%x" % (sT3, C_EXP))
        loads = []
        for j in range(4):
            off = j * 4 * M1_SLOT - 2304
            loads.append("global_load_dwordx2 v[%d:%d], v10, %s offset:%d sc1" % (48 + 2 * j, 49 + 2 * j, sp(sA), off))
            loads.append("global_load_dwordx4 v[%d:%d], v11, %s offset:%d sc1" % (32 + 4 * j, 35 + 4 * j, sp(sA), off))
        self.poll(loads, list(range(32, 56)), 56, "Ps1")
        self.stamp(8)
        e("v_max3_f32 v56, v48, v50, v52"); e("v_max_f32 v56, v56, v54")
        for sw in ("v_permlane16_swap_b32", "v_permlane32_swap_b32"):
            e("v_mov_b32 v57, v56"); self.nop(2); e("%s v56, v57" % sw); e("v_max_f32 v56, v56, v57")
        for j in range(4):
            e("v_sub_f32 v%d, v%d, v56" % (48 + 2 * j, 48 + 2 * j))
        for j in range(4):
            e("v_mul_f32 v%d, s%d, v%d" % (48 + 2 * j, sT3, 48 + 2 * j))
        for j in range(4):
            e("v_exp_f32 v%d, v%d" % (48 + 2 * j, 48 + 2 * j))
        self.nop(1)
        e("v_mul_f32 v56, v48, v49")
        e("v_pk_mul_f32 v[32:33], v[32:33], v[48:49] op_sel_hi:[1,0]"); e("v_pk_mul_f32 v[34:35], v[34:35], v[48:49] op_sel_hi:[1,0]")
        for j in range(1, 4):
            e("v_fmac_f32 v56, v%d, v%d" % (48 + 2 * j, 49 + 2 * j))
            e("v_pk_fma_f32 v[32:33], v[%d:%d], v[%d:%d], v[32:33] op_sel_hi:[1,0,1]" % (32 + 4 * j, 33 + 4 * j, 48 + 2 * j, 49 + 2 * j))
            e("v_pk_fma_f32 v[34:35], v[%d:%d], v[%d:%d], v[34:35] op_sel_hi:[1,0,1]" % (34 + 4 * j, 35 + 4 * j, 48 + 2 * j, 49 + 2 * j))
        e("v_mov_b32 v57, v56"); self.nop(1)
        e("v_permlane32_swap_b32 v32, v34"); e("v_permlane32_swap_b32 v33, v35"); e("v_permlane32_swap_b32 v56, v57")
        e("v_add_f32 v32, v32, v34"); e("v_add_f32 v33, v33, v35"); e("v_add_f32 v56, v56, v57")
        e("v_mov_b32 v34, v32"); e("v_mov_b32 v35, v33"); e("v_mov_b32 v57, v56"); self.nop(1)
        e("v_permlane16_swap_b32 v32, v34"); e("v_permlane16_swap_b32 v33, v35"); e("v_permlane16_swap_b32 v56, v57")
        e("v_add_f32 v56, v56, v57"); e("v_add_f32 v32, v32, v34"); e("v_rcp_f32 v56, v56"); e("v_add_f32 v33, v33, v35")
        self.nop(1)
        e("v_pk_mul_f32 v[32:33], v[32:33], v[56:57] op_sel_hi:[1,0]")
        e("v_cvt_pk_bf16_f32 v32, v32, v33")
        lq = LQ(self)
        lq.issue("ds_write_b32 v5, v32", "W")
        if self.o.get("dbg_a"):
            e("s_lshl_b32 s%d, s%d, 13" % (sT0, sPass)); e("s_lshl_b32 s%d, s%d, 7" % (sT1, sIdx))
            self.addr(sA, pWs, 0xC0000, [sT0, sT1])
            e("v_subrev_u32 v35, s%d, v5" % sVec)
            e("global_store_dword v35, v32, %s" % sp(sA))
        steps = [(ct, m) for ct in range(7) for m in range(2)]
        def b_iss(k):
            ct, m = steps[k]; r = 44 + 4 * (k % 5)
            lq.issue("ds_read_b64_tr_b16 v[%d:%d], v7 offset:%d" % (r, r + 1, m * 32 * O_ROW + ct * 32), ("B", k))
            lq.issue("ds_read_b64_tr_b16 v[%d:%d], v7 offset:%d" % (r + 2, r + 3, (m * 32 + 16) * O_ROW + ct * 32), ("B", k))
        for k in range(5):
            b_iss(k)
        lq.wait(["W"])
        lq.issue("ds_read2_b64 v[36:39], v6 offset0:0 offset1:4", "A"); lq.issue("ds_read2_b64 v[40:43], v6 offset0:8 offset1:12", "A")
        for k, (ct, m) in enumerate(steps):
            lq.wait([("B", k), "A"])
            acc = [12, 16, 20, 24, 28, 32, 8][ct]
            c = "0" if m == 0 else vr(acc, 4)
            e("v_mfma_f32_16x16x32_bf16 %s, %s, %s, %s" % (vr(acc, 4), vr(36 + 4 * m, 4), vr(44 + 4 * (k % 5), 4), c))
            if k + 5 < len(steps):
                b_iss(k + 5)
        self.nop(8)
        for row in range(1, 4):
            e("s_mov_b32 exec_lo, 0x%x" % (0xffff0000 if row == 1 else 0))
            e("s_mov_b32 exec_hi, 0x%x" % (0 if row == 1 else (0xffff << (16 * (row - 2)))))
            e("v_mov_b32 v12, v%d" % (12 + 4 * row))
            if row < 3:
                e("v_mov_b32 v28, v%d" % (32 if row == 1 else 8))
        e("s_mov_b64 exec, -1")
        e("v_mov_b32 v41, -2"); e("v_lshlrev_b32 v42, 2, v%d" % vL); e("v_min_u32 v12, v12, v41"); e("v_min_u32 v28, v28, v41")
        e("global_store_dword v42, v12, %s sc1" % sp(sB))
        e("s_mov_b32 exec_hi, 0xffff")
        e("global_store_dword v42, v28, %s offset:256 sc1" % sp(sB))
        e("s_mov_b64 exec, -1")
        self.stamp(9)


    def stage_O3(self):
        e = self.e
        self.rc2()
        e("v_lshlrev_b32 v6, 3, v28"); e("v_add_u32 v6, %d, v6" % L_P)
        e("v_lshl_add_u32 v7, v28, 2, v29"); e("v_mul_u32_u24 v7, %d, v7" % O_ROW); e("v_lshl_add_u32 v7, v30, 3, v7")
        e("s_mul_i32 s%d, s%d, 224" % (sT0, sWave)); e("s_add_u32 s%d, s%d, %d" % (sT0, sT0, L_W)); e("v_add_u32 v7, s%d, v7" % sT0)
        e("s_mul_i32 s%d, s%d, %d" % (sT0, sIdx, M2_SLOT)); e("s_mul_i32 s%d, s%d, 0x%x" % (sT1, sPass, M2_R)); e("s_lshl_b32 s%d, s%d, 9" % (sT2, sWave))
        self.addr(sB, pWs, M2, [sT0, sT1, sT2])
        e("s_mul_i32 s%d, s%d, %d" % (sT0, sIdx, 16 * M1_SLOT)); e("s_mul_i32 s%d, s%d, 0x%x" % (sT1, sPass, M1_R))
        self.addr(sA, pWs, M1, [sT0, sT1])
        e("v_lshrrev_b32 v29, 2, v%d" % vL); e("v_mul_u32_u24 v29, %d, v29" % M1_SLOT)
        e("v_add_u32 v28, 256, v29")
        e("s_lshl_b32 s%d, s%d, 6" % (sT0, sWave)); e("v_lshl_add_u32 v29, v30, 4, v29"); e("v_add_u32 v29, s%d, v29" % sT0)
        e("v_lshlrev_b32 v5, 3, v30"); e("v_lshrrev_b32 v24, 5, v%d" % vL); e("v_lshl_add_u32 v5, v24, 2, v5")
        e("s_lshl_b32 s%d, s%d, 5" % (sT0, sWave)); e("s_add_u32 s%d, s%d, %d" % (sT0, sT0, L_P)); e("v_add_u32 v5, s%d, v5" % sT0)
        e("s_mov_b32 s%d, 0x%x" % (sT3, C_EXP))
        lq = LQ(self)
        steps = [(ct, m) for ct in range(7) for m in range(2)]
        NB = 4 if self.o.get("stamps") else 5
        def b_iss(k):
            ct, m = steps[k]; r = 44 + 4 * (k % NB)
            lq.issue("ds_read_b64_tr_b16 v[%d:%d], v7 offset:%d" % (r, r + 1, m * 32 * O_ROW + ct * 32), ("B", k))
            lq.issue("ds_read_b64_tr_b16 v[%d:%d], v7 offset:%d" % (r + 2, r + 3, (m * 32 + 16) * O_ROW + ct * 32), ("B", k))
        for k in range(NB):
            b_iss(k)
        self.ptmp = 25
        self.poll2(lambda b: ["global_load_dwordx4 v[%d:%d], v29, %s sc1" % (b, b + 3, sp(sA)),
                              "global_load_dwordx2 v[%d:%d], v28, %s sc1" % (b + 4, b + 5, sp(sA))], 6, (8, 14), 32, "Qo")
        self.ptmp = 31
        self.stamp(8)
        def red_c(regs, op):
            for n in (4, 8):
                self.nop(2 if len(regs) == 1 else 1)
                for r in regs:
                    e("%s_dpp v%d, v%d, v%d row_ror:%d row_mask:0xf bank_mask:0xf" % (op, r, r, r, n))
            return
        e("v_mov_b32 v38, v36")
        red_c([38], "v_max_f32")
        for sw in ("v_permlane16_swap_b32", "v_permlane32_swap_b32"):
            e("v_mov_b32 v39, v38"); self.nop(2); e("%s v38, v39" % sw); e("v_max_f32 v38, v38, v39")
        e("v_sub_f32 v36, v36, v38"); e("v_mul_f32 v36, s%d, v36" % sT3); e("v_exp_f32 v36, v36"); self.nop(1)
        e("v_mul_f32 v37, v36, v37")
        e("v_pk_mul_f32 v[32:33], v[32:33], v[36:37] op_sel_hi:[1,0]"); e("v_pk_mul_f32 v[34:35], v[34:35], v[36:37] op_sel_hi:[1,0]")
        for n in (4, 8):
            self.nop(1)
            for r in (37, 32, 33, 34, 35):
                e("v_add_f32_dpp v%d, v%d, v%d row_ror:%d row_mask:0xf bank_mask:0xf" % (r, r, r, n))
        e("v_mov_b32 v38, v37"); self.nop(1)
        e("v_permlane32_swap_b32 v32, v34"); e("v_permlane32_swap_b32 v33, v35"); e("v_permlane32_swap_b32 v37, v38")
        e("v_add_f32 v32, v32, v34"); e("v_add_f32 v33, v33, v35"); e("v_add_f32 v37, v37, v38")
        e("v_mov_b32 v34, v32"); e("v_mov_b32 v35, v33"); e("v_mov_b32 v38, v37"); self.nop(1)
        e("v_permlane16_swap_b32 v32, v34"); e("v_permlane16_swap_b32 v33, v35"); e("v_permlane16_swap_b32 v37, v38")
        e("v_add_f32 v37, v37, v38"); e("v_add_f32 v32, v32, v34"); e("v_rcp_f32 v37, v37"); e("v_add_f32 v33, v33, v35")
        self.nop(1)
        e("v_mul_f32 v32, v32, v37"); e("v_mul_f32 v33, v33, v37")
        e("v_cvt_pk_bf16_f32 v32, v32, v33")
        e("ds_write_b32 v5, v32")
        if self.o.get("dbg_a"):
            e("s_lshl_b32 s%d, s%d, 13" % (sT0, sPass)); e("s_lshl_b32 s%d, s%d, 7" % (sT1, sIdx))
            self.addr(sA, pWs, 0xC0000, [sT0, sT1])
            e("v_subrev_u32 v35, %d, v5" % L_P)
            e("global_store_dword v35, v32, %s" % sp(sA))
        e("s_waitcnt lgkmcnt(0)"); lq.q = []
        e("s_barrier")
        lq.issue("ds_read2_b64 v[36:39], v6 offset0:0 offset1:4", "A"); lq.issue("ds_read2_b64 v[40:43], v6 offset0:8 offset1:12", "A")
        for k, (ct, m) in enumerate(steps):
            lq.wait([("B", k), "A"])
            acc = [20, 24, 28, 32, 8, 12, 16][ct]
            c = "0" if m == 0 else vr(acc, 4)
            if ct >= 4 and m == 0 and ct == 4:
                e("s_waitcnt vmcnt(0)")
            e("v_mfma_f32_16x16x32_bf16 %s, %s, %s, %s" % (vr(acc, 4), vr(36 + 4 * m, 4), vr(44 + 4 * (k % NB), 4), c))
            if k + NB < len(steps):
                b_iss(k + NB)
        self.nop(8)
        for row in range(1, 4):
            e("s_mov_b32 exec_lo, 0x%x" % (0xffff0000 if row == 1 else 0))
            e("s_mov_b32 exec_hi, 0x%x" % (0 if row == 1 else (0xffff << (16 * (row - 2)))))
            e("v_mov_b32 v20, v%d" % (20 + 4 * row))
            if row < 3:
                e("v_mov_b32 v8, v%d" % (8 + 4 * row))
        e("s_mov_b64 exec, -1")
        e("v_mov_b32 v41, -2"); e("v_lshlrev_b32 v42, 2, v%d" % vL); e("v_min_u32 v20, v20, v41"); e("v_min_u32 v8, v8, v41")
        e("global_store_dword v42, v20, %s sc1" % sp(sB))
        e("s_mov_b32 exec_hi, 0xffff")
        e("global_store_dword v42, v8, %s offset:256 sc1" % sp(sB))
        e("s_mov_b64 exec, -1")
        self.stamp(9)

    def stage_R2(self):
        e = self.e
        e("v_lshrrev_b32 v24, 4, v%d" % vL); e("v_lshlrev_b32 v24, 2, v24")
        e("s_cmp_eq_u32 s%d, 0" % sPass); e("s_cbranch_scc0 L_R_r1")
        e("s_lshl_b32 s%d, s%d, 4" % (sT0, sIdx))
        self.addr(sB, pX, 0, [sT0])
        e("s_branch L_R_r2")
        self.lab("L_R_r1")
        e("s_lshr_b32 s%d, s%d, 1" % (sT0, sIdx)); e("s_lshl_b32 s%d, s%d, 7" % (sT0, sT0))
        e("s_and_b32 s%d, s%d, 1" % (sT1, sIdx)); e("s_lshl_b32 s%d, s%d, 4" % (sT1, sT1))
        self.addr(sB, pWs, M5, [sT0, sT1])
        self.lab("L_R_r2")
        e("global_load_dword v25, v24, %s sc1" % sp(sB))
        e("s_lshl_b32 s%d, s%d, 13" % (sT0, sPass)); e("s_lshl_b32 s%d, s%d, 7" % (sT1, sIdx))
        self.addr(sB, pWs, M3, [sT0, sT1])
        e("s_mul_i32 s%d, s%d, 4682" % (sT2, sIdx)); e("s_lshr_b32 s%d, s%d, 16" % (sT2, sT2))
        e("s_mul_i32 s%d, s%d, 14" % (sT3, sT2)); e("s_sub_u32 s%d, s%d, s%d" % (sT3, sIdx, sT3))
        e("s_lshl_b32 s%d, s%d, 9" % (sT2, sT2)); e("s_lshl_b32 s%d, s%d, 5" % (sT3, sT3)); e("s_add_u32 s%d, s%d, s%d" % (sT0, sT2, sT3))
        e("s_mul_i32 s%d, s%d, 0x%x" % (sT1, sPass, M2_R))
        self.addr(sA, pWs, M2, [sT0, sT1])
        e("v_mul_u32_u24 v29, %d, v%d" % (M2_SLOT, vL)); e("v_mov_b32 v41, -2")
        self.poll2(lambda b: ["global_load_dwordx4 v[%d:%d], v29, %s sc1" % (b, b + 3, sp(sA)),
                              "global_load_dwordx4 v[%d:%d], v29, %s offset:16 sc1" % (b + 4, b + 7, sp(sA))], 8, (8, 16), 32, "Qr")
        self.stamp(8)
        self.nop(1)
        for d in range(4):
            e("v_permlane32_swap_b32 v%d, v%d" % (32 + d, 36 + d))
        e("v_pk_add_f32 v[32:33], v[32:33], v[36:37]"); e("v_pk_add_f32 v[34:35], v[34:35], v[38:39]")
        self.nop(2)
        e("v_permlane16_swap_b32 v32, v34"); e("v_permlane16_swap_b32 v33, v35")
        e("v_pk_add_f32 v[32:33], v[32:33], v[34:35]")
        for n in (8, 4, 2, 1):
            self.nop(1 if n == 8 else 1)
            if n == 8: self.nop(1)
            e("v_add_f32_dpp v32, v32, v32 row_ror:%d row_mask:0xf bank_mask:0xf" % n)
            e("v_add_f32_dpp v33, v33, v33 row_ror:%d row_mask:0xf bank_mask:0xf" % n)
        e("v_cvt_pk_bf16_f32 v34, v32, v33")
        e("v_lshlrev_b32 v35, 16, v25"); e("v_and_b32 v36, 0xffff0000, v25")
        e("v_lshlrev_b32 v32, 16, v34"); e("v_and_b32 v33, 0xffff0000, v34")
        e("v_add_f32 v32, v32, v35"); e("v_add_f32 v33, v33, v36")
        e("v_cvt_pk_bf16_f32 v34, v32, v33")
        e("v_min_u32 v34, v34, v41")
        e("s_mov_b32 exec_lo, 0x00010001"); e("s_mov_b32 exec_hi, 0x00010001")
        e("global_store_dword v24, v34, %s sc1" % sp(sB))
        e("s_mov_b64 exec, -1")
        self.stamp(9)
        e("s_waitcnt vmcnt(1)")


    def probe_near(self):
        e = self.e
        sk = self.nl("Lpr"); lp = self.nl("Lprl"); bar = self.nl("Lprb")
        N = max(self.alN, 1)
        NP = int(self.o.get("nprobe", 5 if N <= 2 else 4))
        e("s_cmp_eq_u32 s%d, 0" % sPass); e("s_cbranch_scc0 %s" % sk)
        e("s_and_b32 s%d, s%d, 3" % (sT5, sIdx)); e("s_cmp_lt_u32 s%d, 2" % sT5); e("s_cbranch_scc0 %s" % sk)
        e("s_waitcnt vmcnt(0)")
        e("s_cmp_eq_u32 s%d, 0" % sWave); e("s_cbranch_scc0 %s" % bar)
        e("s_cmp_eq_u32 s%d, 1" % sT5)
        e("s_cselect_b32 s%d, s%d, s%d" % (sA, sVB, sKB)); e("s_cselect_b32 s%d, s%d, s%d" % (sA + 1, sVB + 1, sKB + 1))
        e("s_lshr_b32 s%d, s%d, 2" % (sT0, sIdx)); e("s_lshl_b32 s%d, s%d, 4" % (sT0, sT0))
        e("s_and_b32 s%d, s2, 7" % sT1); e("s_xor_b32 s%d, s%d, 4" % (sT1, sT1)); e("s_add_u32 s%d, s%d, s%d" % (sRho, sT0, sT1))
        e("s_mov_b32 s%d, s%d" % (sT0, sRho)); e("s_sub_i32 s%d, s%d, s2" % (sT1, sT0)); e("s_lshl_b32 s%d, s%d, 20" % (sT1, sT1)); e("s_add_i32 s%d, s%d, 3072" % (sT1, sT1))
        e("s_ashr_i32 s%d, s%d, 31" % (sT2, sT1))
        e("s_add_u32 s%d, s%d, s%d" % (sA, sA, sT1)); e("s_addc_u32 s%d, s%d, s%d" % (sA + 1, sA + 1, sT2))
        e("s_mul_i32 s%d, s%d, %d" % (sT4, sT0, self.stag)); e("s_and_b32 s%d, s%d, 63" % (sT4, sT4)); e("s_mul_i32 s%d, s%d, %d" % (sT4, sT4, self.stride))
        e("s_cmp_eq_u32 s%d, 1" % sT5); e("s_cselect_b32 s%d, 65, 29" % sT0)
        e("s_lshr_b32 s%d, s%d, 3" % (sT1, sRho)); e("s_add_u32 s%d, s%d, s%d" % (sT0, sT0, sT1)); e("s_add_u32 s%d, s%d, 32" % (sT0, sT0))
        e("s_sub_u32 s%d, 0, s%d" % (sT0, sT0)); e("s_and_b32 s%d, s%d, %d" % (sT0, sT0, N - 1)); e("s_add_u32 s%d, s%d, 32" % (sT0, sT0))
        e("s_mul_i32 s%d, s%d, %d" % (sT0, sT0, self.stride)); e("s_add_u32 s%d, s%d, s%d" % (sT1, sT4, sT0)); e("s_and_b32 s%d, s%d, 0x%x" % (sT1, sT1, 64 * self.stride - 1))
        if self.ilv == 2:
            assert N == 2
            lk = self.nl("Lprk")
            e("s_mov_b32 s%d, %d" % (sEx, N * self.stride))
            e("s_cmp_eq_u32 s%d, 1" % sT5); e("s_cbranch_scc0 %s" % lk)
            e("s_lshr_b32 s%d, s%d, 3" % (sT1, sRho)); e("s_add_u32 s%d, s%d, 93" % (sT1, sT1)); e("s_and_b32 s%d, s%d, 1" % (sT1, sT1))
            e("s_add_u32 s%d, s%d, 8" % (sT1, sT1))
            e("s_mul_i32 s%d, s%d, %d" % (sT1, sT1, self.stride)); e("s_add_u32 s%d, s%d, s%d" % (sT1, sT1, sT4)); e("s_and_b32 s%d, s%d, 0x%x" % (sT1, sT1, 64 * self.stride - 1))
            e("s_mov_b32 s%d, %d" % (sEx, 8 * self.stride))
            self.lab(lk)
        elif self.ilv:
            lk = self.nl("Lprk")
            e("s_mov_b32 s%d, %d" % (sEx, N * self.stride))
            e("s_cmp_eq_u32 s%d, 1" % sT5); e("s_cbranch_scc0 %s" % lk)
            e("s_lshr_b32 s%d, s%d, 3" % (sT1, sRho)); e("s_add_u32 s%d, s%d, %d" % (sT1, sT1, 93 + 2))
            e("s_sub_u32 s%d, 0, s%d" % (sT1, sT1)); e("s_and_b32 s%d, s%d, %d" % (sT1, sT1, N - 1)); e("s_add_u32 s%d, s%d, 2" % (sT1, sT1))
            e("s_and_b32 s%d, s%d, 1" % (sT0, sT1)); e("s_lshl_b32 s%d, s%d, 1" % (sT1, sT1)); e("s_sub_u32 s%d, s%d, s%d" % (sT1, sT1, sT0)); e("s_add_u32 s%d, s%d, 10" % (sT1, sT1))
            e("s_mul_i32 s%d, s%d, %d" % (sT1, sT1, self.stride)); e("s_add_u32 s%d, s%d, s%d" % (sT1, sT1, sT4)); e("s_and_b32 s%d, s%d, 0x%x" % (sT1, sT1, 64 * self.stride - 1))
            e("s_mov_b32 s%d, %d" % (sEx, 2 * N * self.stride))
            self.lab(lk)
        e("s_mov_b32 s%d, -1" % sT2); e("s_mov_b32 s%d, -1" % sT3); e("s_mov_b32 s%d, %d" % (sT0, NP))
        self.lab(lp)
        for par, acc in ((0, sT2), (1, sT3)):
            e("s_add_u32 s%d, s%d, %d" % (sT4, sT1, par * 8192 + 1024)); e("v_mov_b32 v8, s%d" % sT4)
            e("s_memtime s[90:91]"); e("s_waitcnt lgkmcnt(0)"); e("s_mov_b32 s%d, s90" % sT4)
            e("global_load_dword v9, v8, %s nt" % sp(sA))
            e("s_waitcnt vmcnt(0)")
            e("s_memtime s[90:91]"); e("s_waitcnt lgkmcnt(0)")
            e("s_sub_u32 s%d, s90, s%d" % (sT4, sT4)); e("s_min_u32 s%d, s%d, s%d" % (acc, acc, sT4))
        if self.ilv:
            e("s_add_u32 s%d, s%d, s%d" % (sT1, sT1, sEx))
        else:
            e("s_add_u32 s%d, s%d, %d" % (sT1, sT1, N * self.stride))
        e("s_and_b32 s%d, s%d, 0x%x" % (sT1, sT1, 64 * self.stride - 1))
        e("s_sub_u32 s%d, s%d, 1" % (sT0, sT0)); e("s_cmp_lg_u32 s%d, 0" % sT0); e("s_cbranch_scc1 %s" % lp)
        e("s_lshr_b32 s%d, s%d, 1" % (sT0, sRho)); e("s_lshr_b32 s%d, s2, 2" % sT1); e("s_xor_b32 s%d, s%d, s%d" % (sT0, sT0, sT1)); e("s_and_b32 s%d, s%d, 1" % (sT0, sT0))
        e("s_cmp_gt_u32 s%d, s%d" % (sT2, sT3)); e("s_cselect_b32 s%d, 1, 0" % sT1); e("s_xor_b32 s%d, s%d, s%d" % (sT1, sT1, sT0))
        if self.o.get("dbg_probe"):
            e("s_lshr_b32 s%d, s%d, 3" % (sT2, sT2)); e("s_min_u32 s%d, s%d, 0x3ff" % (sT2, sT2)); e("s_lshl_b32 s%d, s%d, 2" % (sT2, sT2))
            e("s_lshr_b32 s%d, s%d, 3" % (sT3, sT3)); e("s_min_u32 s%d, s%d, 0x3ff" % (sT3, sT3)); e("s_lshl_b32 s%d, s%d, 12" % (sT3, sT3))
            e("s_or_b32 s%d, s%d, s%d" % (sT1, sT1, sT2)); e("s_or_b32 s%d, s%d, s%d" % (sT1, sT1, sT3))
        e("v_mov_b32 v8, s%d" % sT1)
        e("s_lshr_b32 s%d, s%d, 2" % (sT0, sIdx)); e("s_lshl_b32 s%d, s%d, 7" % (sT0, sT0)); e("s_lshl_b32 s%d, s%d, 2" % (sT1, sT5))
        self.addr(sB, pWs, M8, [sT0, sT1])
        e("v_mov_b32 v9, 0")
        e("s_mov_b64 exec, 1")
        e("global_store_dword v9, v8, %s sc1" % sp(sB))
        e("s_mov_b64 exec, -1")
        self.lab(bar)
        e("s_barrier")
        self.lab(sk)


    def emit_issue_sub(self):
        e = self.e
        mask = 64 * self.stride - 1
        t0, t1, t2 = sOf2, sT0 + 0, sT0 + 0
        self.lab("L_issue")
        e("s_mov_b32 m0, s%d" % sSlot)
        e("s_add_u32 s%d, s%d, 4096" % (sSlot, sSlot))
        e("s_cmp_eq_u32 s%d, s%d" % (sSlot, sRe))
        e("s_cselect_b32 s%d, s%d, s%d" % (sSlot, sRs, sSlot))
        X, Y = 90, 91
        e("s_mov_b32 s%d, s%d" % (X, sJ))
        e("s_cmp_eq_u32 s%d, 0" % sIsV); e("s_cbranch_scc1 L_is_k")
        if self.ilv == 3:
            e("s_and_b32 s%d, s%d, 1" % (Y, sJ)); e("s_lshl_b32 s%d, s%d, 1" % (X, sJ)); e("s_sub_u32 s%d, s%d, s%d" % (X, X, Y)); e("s_add_u32 s%d, s%d, s%d" % (X, X, sVadd))
            e("s_bitcmp1_b32 s%d, 31" % sVadd); e("s_cbranch_scc1 L_is_vres")
            e("s_add_u32 s%d, s%d, 24" % (Y, sJ)); e("s_cmp_ge_u32 s%d, 16" % sJ); e("s_cselect_b32 s%d, s%d, s%d" % (X, Y, X))
            e("s_branch L_is_v2")
            self.lab("L_is_vres")
            e("s_cmp_lt_u32 s%d, 8" % sJ); e("s_cselect_b32 s%d, s%d, s%d" % (X, sJ, X))
            e("s_add_u32 s%d, s%d, 36" % (Y, sJ)); e("s_cmp_ge_u32 s%d, 24" % sJ); e("s_cselect_b32 s%d, s%d, s%d" % (X, Y, X))
            self.lab("L_is_v2")
        elif self.ilv == 2:
            e("s_bitcmp1_b32 s%d, 31" % sVadd); e("s_cbranch_scc1 L_is_vres")
            e("s_mul_i32 s%d, s%d, 43" % (Y, sJ)); e("s_lshr_b32 s%d, s%d, 8" % (Y, Y)); e("s_lshl_b32 s%d, s%d, 1" % (Y, Y))
            e("s_add_u32 s%d, s%d, s%d" % (X, sJ, Y)); e("s_add_u32 s%d, s%d, 8" % (X, X))
            e("s_branch L_is_v2")
            self.lab("L_is_vres")
            e("s_and_b32 s%d, s%d, 1" % (Y, sJ)); e("s_sub_u32 s%d, s%d, s%d" % (X, sJ, Y)); e("s_lshl_b32 s%d, s%d, 2" % (X, X)); e("s_add_u32 s%d, s%d, s%d" % (X, X, Y)); e("s_sub_u32 s%d, s%d, 18" % (X, X))
            e("s_cmp_lt_u32 s%d, 8" % sJ); e("s_cselect_b32 s%d, s%d, s%d" % (X, sJ, X))
            e("s_add_u32 s%d, s%d, 36" % (Y, sJ)); e("s_cmp_ge_u32 s%d, 20" % sJ); e("s_cselect_b32 s%d, s%d, s%d" % (X, Y, X))
            self.lab("L_is_v2")
        else:
            e("s_and_b32 s%d, s%d, 1" % (Y, sJ)); e("s_lshl_b32 s%d, s%d, 1" % (X, sJ)); e("s_sub_u32 s%d, s%d, s%d" % (X, X, Y)); e("s_add_u32 s%d, s%d, s%d" % (X, X, sVadd))
            e("s_bitcmp1_b32 s%d, 31" % sVadd); e("s_cbranch_scc1 L_is_vres")
            e("s_add_u32 s%d, s%d, 28" % (Y, sJ)); e("s_cmp_ge_u32 s%d, 20" % sJ); e("s_cselect_b32 s%d, s%d, s%d" % (X, Y, X))
            e("s_branch L_is_v2")
            self.lab("L_is_vres")
            e("s_cmp_lt_u32 s%d, 8" % sJ); e("s_cselect_b32 s%d, s%d, s%d" % (X, sJ, X))
            self.lab("L_is_v2")
        e("s_cmp_eq_u32 s%d, 2" % sNM); e("s_cbranch_scc1 L_is_near")
        e("s_branch L_is_own")
        self.lab("L_is_k")
        e("s_cmp_eq_u32 s%d, 1" % sNM); e("s_cbranch_scc0 L_is_own")
        if self.ilv == 3:
            e("s_cmp_ge_u32 s%d, 60" % sJ); e("s_cbranch_scc1 L_is_kown")
            e("s_cmp_ge_u32 s%d, 40" % sJ); e("s_cbranch_scc1 L_is_knear")
            e("s_cmp_lt_u32 s%d, 10" % sJ); e("s_cbranch_scc1 L_is_kown")
            e("s_bitcmp1_b32 s%d, 1" % sJ); e("s_cbranch_scc1 L_is_knear")
        elif self.ilv == 2:
            e("s_cmp_lt_u32 s%d, 8" % sJ); e("s_cbranch_scc1 L_is_kown")
            e("s_cmp_ge_u32 s%d, 56" % sJ); e("s_cbranch_scc1 L_is_kown")
            e("s_and_b32 s%d, s%d, 6" % (Y, sJ)); e("s_cmp_eq_u32 s%d, 6" % Y); e("s_cbranch_scc0 L_is_knear")
        else:
            e("s_cmp_ge_u32 s%d, 48" % sJ); e("s_cbranch_scc1 L_is_knear")
            e("s_cmp_lt_u32 s%d, 10" % sJ); e("s_cbranch_scc1 L_is_kown")
            e("s_bitcmp1_b32 s%d, 1" % sJ); e("s_cbranch_scc1 L_is_knear")
        self.lab("L_is_kown")
        e("s_mov_b32 s%d, s%d" % (sCUR, sKB)); e("s_mov_b32 s%d, s%d" % (sCUR + 1, sKB + 1))
        self.lab("L_is_own")
        e("s_lshl_b32 s%d, s%d, %d" % (Y, X, 10 if self.ilv == 2 else 11)); e("s_xor_b32 s%d, s%d, s%d" % (Y, Y, sWb))
        if self.ilv == 3:
            e("s_xor_b32 s%d, s%d, 8192" % (sOf2, Y)); e("s_cmp_ge_u32 s%d, 62" % X); e("s_cselect_b32 s%d, s%d, s%d" % (Y, sOf2, Y))
        e("s_and_b32 s%d, s%d, 8192" % (Y, Y))
        e("s_lshl_b32 s%d, s%d, 14" % (X, X)); e("s_add_u32 s%d, s%d, s%d" % (X, X, sRot)); e("s_and_b32 s%d, s%d, 0x%x" % (X, X, mask)); e("s_add_u32 s%d, s%d, s%d" % (sOf2, X, Y))
        e("s_branch L_is_go")
        self.lab("L_is_knear")
        e("s_mov_b32 s%d, s%d" % (sCUR, sKN)); e("s_mov_b32 s%d, s%d" % (sCUR + 1, sKN + 1))
        self.lab("L_is_near")
        e("s_lshl_b32 s%d, s%d, 14" % (X, X)); e("s_add_u32 s%d, s%d, s%d" % (X, X, sRotN)); e("s_and_b32 s%d, s%d, 0x%x" % (sOf2, X, mask))
        self.lab("L_is_go")
        e("s_add_u32 s%d, s%d, 1" % (sAc, sAc)); e("s_and_b32 s%d, s%d, %d" % (sAc, sAc, self.alN - 1))
        e("s_cmp_lt_u32 s%d, s%d" % (sAc, sAlloc))
        e("s_cbranch_scc1 L_is_alloc")
        for k in range(4):
            e("buffer_load_dwordx4 v%d, %s, s%d offen offset:%d nt lds" % (vo[k], sp(sCUR, 4), sOf2, k * 1024))
        e("s_branch L_is_done")
        self.lab("L_is_alloc")
        for k in range(4):
            e("buffer_load_dwordx4 v%d, %s, s%d offen offset:%d lds" % (vo[k], sp(sCUR, 4), sOf2, k * 1024))
        self.lab("L_is_done")
        e("s_add_u32 s%d, s%d, 1" % (sJ, sJ))
        e("s_cmp_lg_u32 s%d, s%d" % (sJ, sLen)); e("s_cbranch_scc0 L_is_next")
        e("s_setpc_b64 %s" % sp(sRet))
        self.lab("L_is_next")
        e("s_add_u32 s%d, s%d, 1" % (sSeg, sSeg))
        e("s_mov_b32 s%d, s%d" % (sJ, sZ)); e("s_mov_b32 s%d, s%d" % (sAlloc, sZ)); e("s_mov_b32 s%d, s%d" % (sNM, sZ))
        e("s_cmp_eq_u32 s%d, 5" % sSeg); e("s_cbranch_scc1 L_is_end")
        e("s_bitcmp1_b32 s%d, 0" % sSeg); e("s_cbranch_scc0 L_is_v")
        e("s_mov_b32 s%d, s%d" % (sIsV, sZ)); e("s_add_u32 s%d, s%d, 64" % (sLen, sZ))
        e("s_mov_b32 s%d, s%d" % (sCUR, sKB)); e("s_mov_b32 s%d, s%d" % (sCUR + 1, sKB + 1))
        e("s_cmp_eq_u32 s%d, 1" % sSeg)
        e("s_cselect_b32 s%d, %d, 0" % (sAlloc, self.alM)); e("s_cselect_b32 s%d, 0, 1" % sNM)
        e("s_add_u32 s%d, s%d, s%d" % (sAlloc, sAlloc, sZ)); e("s_add_u32 s%d, s%d, s%d" % (sNM, sNM, sZ))
        self.kpat()
        e("s_setpc_b64 %s" % sp(sRet))
        self.lab("L_is_v")
        e("s_add_u32 s%d, s%d, 1" % (sIsV, sZ)); e("s_add_u32 s%d, s%d, %d" % (sLen, sZ, 2 * NSTR_T)); e("s_add_u32 s%d, s%d, 10" % (sVadd, sZ))
        e("s_cmp_eq_u32 s%d, 2" % sSeg)
        e("s_cselect_b32 s%d, %d, 0" % (sAlloc, self.alM if self.alV else 0)); e("s_cselect_b32 s%d, 0, 2" % sNM)
        e("s_cselect_b32 s%d, s%d, s%d" % (sCUR, sVB, sVN)); e("s_cselect_b32 s%d, s%d, s%d" % (sCUR + 1, sVB + 1, sVN + 1))
        e("s_add_u32 s%d, s%d, s%d" % (sAlloc, sAlloc, sZ)); e("s_add_u32 s%d, s%d, s%d" % (sNM, sNM, sZ))
        self.vpat()
        e("s_setpc_b64 %s" % sp(sRet))
        self.lab("L_is_end")
        e("s_mov_b32 s%d, 0" % (sCUR + 2)); e("s_mov_b32 s%d, s%d" % (sIsV, sZ)); e("s_sub_u32 s%d, s%d, 1" % (sLen, sZ))
        e("s_setpc_b64 %s" % sp(sRet))

    def build(self):
        e = self.e
        self.prologue()
        early = int(self.o.get("early", 0)) and self.ilv
        if early:
            e("s_lshr_b32 s%d, s%d, 1" % (sT1, sWave)); e("s_lshl_b32 s%d, s%d, 13" % (sT1, sT1))
            for u in range(2):
                e("s_mov_b32 m0, s%d" % sSlot); e("s_add_u32 s%d, s%d, 4096" % (sSlot, sSlot))
                e("s_add_u32 s%d, s%d, %d" % (sT0, sRot, u * self.stride)); e("s_and_b32 s%d, s%d, 0x%x" % (sT0, sT0, 64 * self.stride - 1)); e("s_add_u32 s%d, s%d, s%d" % (sT0, sT0, sT1))
                for k in range(4):
                    e("buffer_load_dwordx4 v%d, %s, s%d offen offset:%d nt lds" % (vo[k], sp(sCUR, 4), sT0, k * 1024))
            e("s_add_u32 s%d, s%d, 2" % (sAc, sAc)); e("s_and_b32 s%d, s%d, %d" % (sAc, sAc, self.alN - 1))
        self.dbg_span(2)
        self.stamp(0)
        self.weights_setup('start')
        if self.ilv:
            e("s_lshr_b32 s%d, s%d, 1" % (sWb, sWave)); e("s_lshl_b32 s%d, s%d, 13" % (sWb, sWb))
            e("s_add_u32 s%d, s%d, %d" % (sJ, sZ, 2 if early else 0)); e("s_add_u32 s%d, s%d, %d" % (sLen, sZ, 2 * NRES_T)); e("s_add_u32 s%d, s%d, 1" % (sIsV, sZ))
            e("s_mov_b32 s%d, s%d" % (sNM, sZ)); e("s_sub_u32 s%d, s%d, 8" % (sVadd, sZ)); e("s_mov_b32 s%d, s%d" % (sSeg, sZ)); e("s_mov_b32 s%d, s%d" % (sAlloc, sZ))
            e("s_add_u32 s%d, s%d, s%d" % (sSlot, sSlot, sZ))
        elif self.swz:
            e("s_mov_b32 s%d, 0" % sN); e("s_lshr_b32 s%d, s%d, 1" % (sWb, sWave)); e("s_lshl_b32 s%d, s%d, 13" % (sWb, sWb)); e("s_mov_b32 s%d, 8192" % sSwM)
        e("v_min_u32 v9, 55, v%d" % vL); e("v_lshlrev_b32 v9, 4, v9")
        xr = 16 if int(self.o.get("gap2", 1)) else 32
        e("global_load_dwordx4 v[%d:%d], v9, %s" % (xr, xr + 3, sp(pX)))
        if early and self.NX:
            self.xop(0); self.xop(1)
        if self.clr2:
            self.lds_zero()
        else:
            self.clear_mailboxes()
        if int(self.o.get("cpf0", 0)):
            sk = self.nl("Lcp")
            e("s_cmp_eq_u32 s%d, 1" % sWave); e("s_cbranch_scc0 %s" % sk)
            e("s_getpc_b64 s[18:19]")
            self.lab("L_pcref0")
            e("s_add_u32 s18, s18, L_p1a_code-L_pcref0"); e("s_addc_u32 s19, s19, 0")
            e("v_lshlrev_b32 v8, 7, v%d" % vL)
            for k in range(4):
                e("v_min_u32 v9, L_endcode-L_p1a_code-4, v8"); e("global_load_dword v24, v9, s[18:19]"); e("v_add_u32 v8, 8192, v8")
            self.lab(sk)
        if not early:
            for u in range(self.R):
                self.group(u)
        self.stamp(1)
        self.p1a()
        self.stamp(2)
        self.lab("L_pass")
        self.gather_q()
        self.dbg_span_pass(6)
        self.stamp(3)
        self.kphase()
        self.stamp(4)
        self.softmax()
        self.vphase()
        self.stamp(5)
        self.combine_publish()
        self.dbg_span_pass(4)
        self.stamp(6)
        g2 = int(self.o.get("gap2", 1))
        e("s_cmp_eq_u32 s%d, 1" % sRole); e("s_cbranch_scc1 L_roleO")
        e("s_cmp_eq_u32 s%d, 4" % sRole); e("s_cbranch_scc1 L_roleD")
        if self.gapw:
            lw = self.nl("Lgw")
            e("s_cmp_eq_u32 s%d, 0" % sPass); e("s_cbranch_scc0 %s" % lw)
            e("s_cmp_eq_u32 s%d, 0" % sRole); e("s_cbranch_scc1 %s" % lw)
            self.weights_setup('gap')
            for i in range(14):
                self.xop(i)
            self.lab(lw)
        e("s_cmp_eq_u32 s%d, 2" % sRole); e("s_cbranch_scc1 L_roleB")
        e("s_cmp_eq_u32 s%d, 3" % sRole); e("s_cbranch_scc1 L_roleC")
        self.topup()
        self.l2pf_ilv(int(self.o.get("pfN", 0)))
        e("s_branch L_next")
        self.lab("L_roleO")
        if int(self.o.get("o3", 0)):
            self.stage_O3()
        else:
            self.stage_O2() if g2 else self.stage_S1()
        if self.p2n == 2:
            self.probe_near()
            self.topup(2)
            if int(self.o.get("pfO", 0)):
                lo_ = self.nl("Lpo")
                e("s_bitcmp1_b32 s%d, 1" % sIdx); e("s_cbranch_scc0 %s" % lo_)
                self.l2pf_ilv(int(self.o.get("pfO", 0)))
                self.lab(lo_)
        else:
            self.topup()
        e("s_branch L_next")
        self.lab("L_roleB")
        if g2:
            self.stage_B2(); self.topup(); self.l2pf_ilv(int(self.o.get("pfB", 0)))
        else:
            self.topup(); self.stage_B()
        e("s_branch L_next")
        self.lab("L_roleC")
        if g2:
            self.stage_C2(); self.topup(int(self.o.get("tpaceC", 0)))
        else:
            self.topup(); self.stage_C()
        e("s_branch L_next")
        self.lab("L_roleD")
        e("s_cmp_eq_u32 s%d, 0" % sWave); e("s_cbranch_scc0 L_D_rdone")
        e("s_cmp_lt_u32 s%d, 56" % sIdx); e("s_cbranch_scc0 L_D_rdone")
        self.stage_R2() if g2 else self.stage_R()
        self.lab("L_D_rdone")
        self.topup()
        self.l2pf_ilv(int(self.o.get("pfD", 0)))
        e("s_cmp_eq_u32 s%d, 0" % sPass); e("s_cbranch_scc0 L_next")
        if g2:
            e("s_call_b64 %s, L_stageD_prep" % sp(sRet2))
            self.addr(sA, pWs, M5)
            self.poll_x2("M5")
            self.stamp(10)
            e("s_lshl_b32 s%d, s%d, 7" % (sT0, sIdx)); e("s_lshl_b32 s%d, s%d, 5" % (sT1, sWave))
            self.addr(sB, pWs, M6 + MR, [sT0] if self.onest else [sT0, sT1])
            e("s_call_b64 %s, L_stageD_rest" % sp(sRet2))
            if self.onest:
                self.wait_leftover()
            else:
                e("s_waitcnt vmcnt(1)")
        else:
            self.addr(sA, pWs, M5)
            self.gather_x(M5, "M5")
            self.stamp(10)
            self.addr(sA, pWs, M6 + MR)
            e("s_call_b64 %s, L_stageD" % sp(sRet2))
        self.lab("L_next")
        self.stamp(7)
        e("s_add_u32 s%d, s%d, 1" % (sPass, sPass))
        e("s_cmp_lt_u32 s%d, 2" % sPass)
        e("s_cbranch_scc1 L_pass")
        self.dump_stamps()
        self.dbg_span(3)
        e("s_waitcnt vmcnt(0)")
        self.lab("L_end")
        e("s_endpgm")
        if int(self.o.get("gap2", 1)):
            self.lab("L_stageD_prep")
            self.stageD2_prep()
            e("s_setpc_b64 %s" % sp(sRet2))
            self.lab("L_stageD_rest")
            self.stageD2_rest()
            e("s_setpc_b64 %s" % sp(sRet2))
        else:
            self.lab("L_stageD")
            self.stage_D(None)
            e("s_setpc_b64 %s" % sp(sRet2))
        if self.ilv:
            self.emit_issue_sub()
        else:
            self.emit_switch()
        self.lab("L_endcode")
        e("s_endpgm")
        return self.a.text()


HEADER = """; Fused decode step  x -> [MHA over a 32768-key cache -> SwiGLU MLP] x 2, one persistent launch (256 workgroups, one per CU).
;
;
;   their results on through sentinel-cleared mailboxes in d_ws (sc1 stores / sc1 polls; cleared at kernel start, d_debug[0] counts
; @launch grid=(256,1,1) block=(256,1,1) lds=%d
.amdgcn_target "amdgcn-amd-amdhsa--gfx950"
.text
.globl %s
.p2align 8
.type %s,@function
%s:
"""
FOOTER = """.section .rodata,"a"
.p2align 6
.amdhsa_kernel %s
  .amdhsa_next_free_vgpr 512
  .amdhsa_next_free_sgpr 102
  .amdhsa_accum_offset 256
  .amdhsa_group_segment_fixed_size 0
  .amdhsa_kernarg_size 96
  .amdhsa_user_sgpr_count 2
  .amdhsa_user_sgpr_kernarg_segment_ptr 1
  .amdhsa_system_sgpr_workgroup_id_x 1
  .amdhsa_float_denorm_mode_32 3
.end_amdhsa_kernel
"""


FINAL = dict(p2n="2", klin="1", ilv="1", q1w="1", stag="3", alN="2", alM="1", rmap="1", wpf="0", early="1", cpf0="1", clr2="1", pfN="3", pfO="3")


def generate(opt=None):
    opt = opt or {}
    if opt.pop("final", None):
        opt = dict(FINAL, **opt)
    g = Gen(opt)
    body = g.build()
    return HEADER % (LDS_TOTAL, KNAME, KNAME, KNAME) + body + FOOTER % KNAME


if __name__ == "__main__":
    out = sys.argv[1] if len(sys.argv) > 1 else "gen/kernel.s"
    opt = {}
    for kv in sys.argv[2:]:
        k, v = kv.split("=")
        opt[k] = v
    open(out, "w").write(generate(opt))
    print("wrote", out)
```

```python
import sys, os
sys.path.insert(0, os.path.dirname(os.path.abspath(__file__)))
from asmlib import Asm

KNAME = "interleave_layers__mha_block_cached__glu_gated_swiglu__decode_kernel"

L_Q = 0
L_Z = 2176
L_SM = 2688
L_RED = 2752
L_ST = 2048
L_P = 3072
L_W = 7168
LDS_TOTAL = 163840
RING_NONE = 7168
RING_ROLE = 65536
O_ROW = 912
B_IMG3 = 28704
C_WAVE = 14336

M1 = 0x0; M1_R = 0x60000; M1_SLOT = 384
M2 = 0x100000; M2_R = 0x20000; M2_SLOT = 2048; M3 = 0xC4000; M4 = 0xC8000; M5 = 0xCC000; M6 = 0xCE000; MR = 0x2000
DBG = 0x200000

NRES_PAIRS = 7
NRES_T = 2 * NRES_PAIRS
NSTR_T = 32 - NRES_T
STRIDE = 16384
SPIN_LIMIT = 1 << 18
C_EXP = 0x3DB8AA3B
LOG2E = 0x3FB8AA3B

sW, sWave = 2, 3
pX, pK, pV, pWq, pWo, pW1, pW3, pW2, pOut, pDbg, pWs = 8, 10, 12, 14, 16, 20, 22, 24, 26, 28, 30
sKB, sVB = 32, 34
sCUR = 36
sSlot, sRs, sRe, sOff, sLeft, sSeg, sCs, sPass = 40, 41, 42, 43, 44, 45, 46, 47
sRole, sIdx, sH, sC, sNS, sVec, sWl, sSpin = 48, 49, 50, 51, 52, 53, 54, 55
sM = [56, 58, 60, 62]
sMd, sRet, sEx = 64, 66, 68
sT0, sT1, sT2, sT3, sT4, sT5 = 70, 71, 72, 73, 74, 75
sA = 76
sB = 78
sT15 = 80
sRho = 19
sWS = 84
sRet2 = 88
sWlds, sWlstep, sWoff, sWoff0, sWstep = 94, 95, 96, 97, 98
sAlloc = 99
sQok = 100
sJ, sLen, sIsV, sNM, sVadd = 43, 44, 16, 14, 54
sZ = 81
sN, sWb, sSwM, sOf2 = 16, 17, 14, 15
sKN, sVN, sRotN, sXch, sTm0, sTm1 = 10, 12, 0, 1, 16, 17
M7 = 0x300000
M8 = 0xD2000
sAc = 93
sRot = 101
sWo2 = 4
sWlds0, sWwrap = 6, 7
sWex = 82

vL = 0
vo = [1, 2, 3, 4]
vPh, vAd, vPa = 5, 6, 7
vSC = 8
vACC = 16
vLsum = 8
vW = 12


def sp(r, n=2):
    return "s[%d:%d]" % (r, r + n - 1)


def vr(r, n):
    return "v[%d:%d]" % (r, r + n - 1) if n > 1 else "v%d" % r


def res_reg(m, t, hh=None):
    base = m * 64 + 4 * t
    if m < 3:
        b = 64 + base; p = "v"
    else:
        b = base - 192; p = "a"
    if hh is None:
        return "%s[%d:%d]" % (p, b, b + 3)
    return "%s[%d:%d]" % (p, b + 2 * hh, b + 2 * hh + 1)


def res_T(k):
    return k if k < 4 else 2 * k - 4


def str_T(i):
    return 5 + 2 * i if i < 10 else i + 14


class LQ:
    def __init__(self, g):
        self.g = g; self.q = []
    def issue(self, instr, tag):
        self.g.e(instr); self.q.append(tag)
    def wait(self, tags):
        idx = [i for i, t in enumerate(self.q) if t in tags]
        if not idx:
            return
        last = max(idx)
        n = len(self.q) - 1 - last
        self.g.e("s_waitcnt lgkmcnt(%d)" % min(n, 15))
        self.q = self.q[last + 1:] if n <= 15 else self.q[len(self.q) - 15:]
    def drain(self):
        if self.q:
            self.g.e("s_waitcnt lgkmcnt(0)")
        self.q = []


class Gen:
    def __init__(self, opt):
        self.o = opt
        self.near = int(opt.get("near", 0))
        self.stride = 32768 if self.near else 16384
        self.stag = int(opt.get("stag", 0))
        self.l2pf = int(opt.get("l2pf", 0))
        self.l2pol = opt.get("l2pol", " nt")
        self.wpf = int(opt.get("wpf", 1))
        self.gapw = int(opt.get("gapw", 1))
        self.R = int(opt.get("R", 2))
        self.clr2 = int(opt.get("clr2", 0))
        self.onest = int(opt.get("onest", 1))
        self.q1w = int(opt.get("q1w", 0))
        self.ilv = int(opt.get("ilv", 0))
        self.swz = int(opt.get("swz", 0)) or int(opt.get("ilv", 0))
        self.klin = int(opt.get("klin", 0))
        self.p2n = int(opt.get("p2n", 0))
        self.alN = int(opt.get("alN", 0))
        self.alM = int(opt.get("alM", 0))
        self.alV = int(opt.get("alV", 1))
        self.kalloc = int(opt.get("kalloc", 0))
        self.a = Asm()
        self.e = self.a.e

    def resT(self, k):
        if self.ilv == 3:
            return k if k < 4 else (2 * k - 4 if k < 12 else k + 18)
        if self.ilv == 2:
            return k if k < 4 else (4 * k - 9 if k < 10 else k + 18)
        return res_T(k)

    def strT(self, i):
        if self.ilv == 3:
            return 5 + 2 * i if i < 8 else i + 12
        if self.ilv == 2:
            return 4 + i + i // 3
        return str_T(i)

    def lab(self, n):
        self.a.label(n)

    def nl(self, b="L"):
        return self.a.newlabel(b)

    def nop(self, n):
        if n > 0:
            self.e("s_nop %d" % (n - 1))

    def bf16r(self, dst, src, tmp):
        self.e("v_cvt_pk_bf16_f32 v%d, v%d, v%d" % (tmp, src, src))
        self.e("v_and_b32 v%d, 0xffff0000, v%d" % (dst, tmp))

    def allreduce16(self, x, op):
        e = self.e
        for n in (8, 4, 2, 1):
            self.nop(2)
            e("%s_dpp v%d, v%d, v%d row_ror:%d row_mask:0xf bank_mask:0xf" % (op, x, x, x, n))

    def xrows(self, x, tmp, op):
        e = self.e
        e("v_mov_b32 v%d, v%d" % (tmp, x)); self.nop(2)
        e("v_permlane16_swap_b32 v%d, v%d" % (x, tmp)); self.nop(1)
        e("%s v%d, v%d, v%d" % (op, x, x, tmp))
        e("v_mov_b32 v%d, v%d" % (tmp, x)); self.nop(2)
        e("v_permlane32_swap_b32 v%d, v%d" % (x, tmp)); self.nop(1)
        e("%s v%d, v%d, v%d" % (op, x, x, tmp))

    def allreduce64(self, x, tmp, op):
        self.allreduce16(x, op)
        self.xrows(x, tmp, op)

    def poll(self, loads, regs, tmp, name="P"):
        e = self.e
        L = self.nl(name); D = self.nl(name + "d")
        e("s_mov_b32 s%d, 0" % sSpin)
        self.lab(L)
        for ld in loads:
            e(ld)
        e("s_waitcnt vmcnt(0)")
        rr = list(regs)
        if len(rr) == 1:
            t = rr[0]
        else:
            first = True
            while rr:
                if first:
                    if len(rr) >= 3:
                        e("v_max3_u32 v%d, v%d, v%d, v%d" % (tmp, rr[0], rr[1], rr[2])); rr = rr[3:]
                    else:
                        e("v_max_u32 v%d, v%d, v%d" % (tmp, rr[0], rr[1])); rr = rr[2:]
                    first = False
                elif len(rr) >= 2:
                    e("v_max3_u32 v%d, v%d, v%d, v%d" % (tmp, tmp, rr[0], rr[1])); rr = rr[2:]
                else:
                    e("v_max_u32 v%d, v%d, v%d" % (tmp, tmp, rr[0])); rr = rr[1:]
            t = tmp
        e("v_cmp_eq_u32 vcc, -1, v%d" % t)
        e("s_cbranch_vccz %s" % D)
        e("s_add_u32 s%d, s%d, 1" % (sSpin, sSpin))
        e("s_cmp_lt_u32 s%d, %d" % (sSpin, SPIN_LIMIT))
        e("s_cbranch_scc1 %s" % L)
        self.lab(D)

    def addr(self, dst, base, off_imm=0, off_sregs=()):
        e = self.e
        if off_imm:
            e("s_add_u32 s%d, s%d, 0x%x" % (dst, base, off_imm))
        else:
            e("s_add_u32 s%d, s%d, 0" % (dst, base))
        e("s_addc_u32 s%d, s%d, 0" % (dst + 1, base + 1))
        for r in off_sregs:
            e("s_add_u32 s%d, s%d, s%d" % (dst, dst, r))
            e("s_addc_u32 s%d, s%d, 0" % (dst + 1, dst + 1))

    def stamp(self, idx):
        if not self.o.get("stamps"):
            return
        e = self.e
        sk = self.nl("St")
        e("s_cmp_eq_u32 s%d, 0" % sWave); e("s_cbranch_scc0 %s" % sk)
        e("s_memrealtime s[90:91]")
        e("s_waitcnt lgkmcnt(0)")
        e("s_lshl_b32 s92, s%d, 6" % sPass); e("s_add_u32 s92, s92, %d" % (L_ST + idx * 4))
        e("v_mov_b32 v62, s92"); e("v_mov_b32 v63, s90")
        e("ds_write_b32 v62, v63")
        e("s_waitcnt lgkmcnt(0)")
        self.lab(sk)

    def dbg_span(self, first):
        if not self.o.get("span"):
            return
        e = self.e
        sk = self.nl("Sp")
        e("s_cmp_eq_u32 s%d, 0" % sWave); e("s_cbranch_scc0 %s" % sk)
        e("s_memrealtime s[90:91]")
        e("s_waitcnt lgkmcnt(0)")
        if first == 2:
            e("s_not_b32 s90, s90")
        e("v_mov_b32 v62, %d" % (4 * first)); e("v_mov_b32 v63, s90")
        e("s_mov_b64 exec, 1")
        e("global_atomic_umax v62, v63, %s" % sp(pDbg))
        e("s_mov_b64 exec, -1")
        self.lab(sk)

    def dbg_span_pass(self, base):
        if not self.o.get("span"):
            return
        e = self.e
        sk = self.nl("Sp")
        e("s_cmp_eq_u32 s%d, 0" % sWave); e("s_cbranch_scc0 %s" % sk)
        e("s_memrealtime s[90:91]")
        e("s_waitcnt lgkmcnt(0)")
        e("s_lshl_b32 s92, s%d, 2" % sPass); e("s_add_u32 s92, s92, %d" % (4 * base))
        e("v_mov_b32 v62, s92"); e("v_mov_b32 v63, s90")
        e("s_mov_b64 exec, 1")
        e("global_atomic_umax v62, v63, %s" % sp(pDbg))
        e("s_mov_b64 exec, -1")
        e("s_waitcnt vmcnt(0)")
        self.lab(sk)

    def dump_stamps(self):
        if not self.o.get("stamps"):
            return
        e = self.e
        sk = self.nl("Sd")
        e("s_waitcnt vmcnt(0)")
        e("s_cmp_eq_u32 s%d, 0" % sWave); e("s_cbranch_scc0 %s" % sk)
        e("v_and_b32 v8, 31, v%d" % vL); e("v_lshlrev_b32 v8, 2, v8")
        e("ds_read_b32 v9, v8 offset:%d" % L_ST)
        e("s_lshl_b32 s%d, s2, 7" % sT0)
        self.addr(sA, pWs, DBG, [sT0])
        e("s_waitcnt lgkmcnt(0)")
        e("global_store_dword v8, v9, %s" % sp(sA))
        self.lab(sk)

    def issue(self):
        e = self.e
        if self.ilv:
            e("s_call_b64 %s, L_issue" % sp(sRet))
            return
        pol = self.o.get("pol", " nt")
        e("s_mov_b32 m0, s%d" % sSlot)
        e("s_add_u32 s%d, s%d, 4096" % (sSlot, sSlot))
        so = sOff
        if self.swz:
            so = sOf2
            e("s_lshl_b32 s%d, s%d, 12" % (sOf2, sN)); e("s_xor_b32 s%d, s%d, s%d" % (sOf2, sOf2, sWb)); e("s_and_b32 s%d, s%d, s%d" % (sOf2, sOf2, sSwM))
            e("s_add_u32 s%d, s%d, s%d" % (sOf2, sOf2, sOff)); e("s_add_u32 s%d, s%d, 1" % (sN, sN))
        if self.alN:
            la = self.nl("Ia"); ld = self.nl("Id")
            e("s_add_u32 s%d, s%d, 1" % (sAc, sAc)); e("s_and_b32 s%d, s%d, %d" % (sAc, sAc, self.alN - 1))
            e("s_cmp_lt_u32 s%d, s%d" % (sAc, sAlloc))
            e("s_cbranch_scc1 %s" % la)
        if self.kalloc:
            la = self.nl("Ia"); ld = self.nl("Id")
            e("s_cmp_gt_u32 s%d, 0" % sAlloc)
            e("s_cbranch_scc1 %s" % la)
        for s in range(4):
            e("buffer_load_dwordx4 v%d, %s, s%d offen offset:%d%s lds" % (vo[s], sp(sCUR, 4), so, s * 1024, pol))
        if self.kalloc or self.alN:
            e("s_branch %s" % ld)
            self.lab(la)
            for s in range(4):
                e("buffer_load_dwordx4 v%d, %s, s%d offen offset:%d lds" % (vo[s], sp(sCUR, 4), so, s * 1024))
            if self.kalloc:
                e("s_sub_u32 s%d, s%d, 1" % (sAlloc, sAlloc))
            self.lab(ld)
        e("s_cmp_eq_u32 s%d, s%d" % (sSlot, sRe))
        e("s_cselect_b32 s%d, s%d, s%d" % (sSlot, sRs, sSlot))
        e("s_add_u32 s%d, s%d, %d" % (sOff, sOff, self.stride))
        if self.stag:
            e("s_and_b32 s%d, s%d, 0x%x" % (sOff, sOff, 64 * self.stride - 1))
        e("s_sub_u32 s%d, s%d, 1" % (sLeft, sLeft))
        e("s_cmp_lg_u32 s%d, 0" % sLeft)
        sk = self.nl("Isk")
        e("s_cbranch_scc1 %s" % sk)
        e("s_call_b64 %s, L_switch" % sp(sRet))
        self.lab(sk)

    def kpat(self):
        e = self.e
        if self.klin:
            e("v_lshrrev_b32 v%d, 5, v%d" % (vo[1], vL))
            e("v_and_b32 v%d, 31, v%d" % (vo[0], vL)); e("v_xor_b32 v%d, v%d, v%d" % (vo[0], vo[0], vo[1]))
            e("v_lshlrev_b32 v%d, 4, v%d" % (vo[0], vo[0])); e("v_lshl_add_u32 v%d, v%d, 9, v%d" % (vo[0], vo[1], vo[0]))
            e("v_add_u32 v%d, 3072, v%d" % (vo[0], vo[0]))
            for i in range(1, 4):
                e("v_xor_b32 v%d, %d, v%d" % (vo[i], (2 * i) << 4, vo[0]))
            return
        e("v_and_b32 v%d, 7, v%d" % (vo[0], vL))
        e("v_lshlrev_b32 v%d, 9, v%d" % (vo[0], vo[0]))
        e("v_lshrrev_b32 v%d, 3, v%d" % (vo[1], vL))
        e("v_lshl_add_u32 v%d, v%d, 4, v%d" % (vo[0], vo[1], vo[0]))
        self.pat_fin()

    def vpat(self):
        e = self.e
        e("v_bfe_u32 v%d, v%d, 1, 3" % (vo[0], vL))
        e("v_lshlrev_b32 v%d, 9, v%d" % (vo[0], vo[0]))
        e("v_lshrrev_b32 v%d, 4, v%d" % (vo[1], vL))
        e("v_lshl_add_u32 v%d, v%d, 5, v%d" % (vo[0], vo[1], vo[0]))
        e("v_and_b32 v%d, 1, v%d" % (vo[1], vL))
        e("v_lshl_add_u32 v%d, v%d, 4, v%d" % (vo[0], vo[1], vo[0]))
        self.pat_fin()

    def pat_fin(self):
        e = self.e
        e("v_add_u32 v%d, 3072, v%d" % (vo[0], vo[0]))
        for s in range(1, 4):
            e("v_subrev_u32 v%d, %d, v%d" % (vo[s], 896 * s, vo[0]))

    def emit_switch(self):
        if self.p2n:
            return self.emit_switch_p2n()
        e = self.e
        self.lab("L_switch")
        e("s_add_u32 s%d, s%d, 1" % (sSeg, sSeg))
        e("s_cmp_eq_u32 s%d, 5" % sSeg)
        e("s_cbranch_scc1 L_sw_end")
        e("s_bitcmp1_b32 s%d, 0" % sSeg)
        e("s_cbranch_scc0 L_sw_v")
        e("s_mov_b32 s%d, s%d" % (sCUR, sKB)); e("s_mov_b32 s%d, s%d" % (sCUR + 1, sKB + 1))
        e("s_mov_b32 s%d, s%d" % (sOff, sRot)); e("s_mov_b32 s%d, 64" % sLeft)
        if self.kalloc:
            e("s_cmp_eq_u32 s%d, 1" % sSeg)
            e("s_cselect_b32 s%d, %d, 0" % (sAlloc, self.kalloc))
        if self.alN:
            e("s_cmp_eq_u32 s%d, 1" % sSeg)
            e("s_cselect_b32 s%d, %d, 0" % (sAlloc, self.alM))
        self.kpat()
        e("s_setpc_b64 %s" % sp(sRet))
        self.lab("L_sw_v")
        e("s_mov_b32 s%d, s%d" % (sCUR, sVB)); e("s_mov_b32 s%d, s%d" % (sCUR + 1, sVB + 1))
        e("s_add_u32 s%d, s%d, %d" % (sOff, sRot, 2 * NRES_T * self.stride)); e("s_and_b32 s%d, s%d, 0x%x" % (sOff, sOff, 64 * self.stride - 1))
        e("s_mov_b32 s%d, %d" % (sLeft, 2 * NSTR_T))
        if self.alN:
            e("s_cmp_eq_u32 s%d, 2" % sSeg)
            e("s_cselect_b32 s%d, %d, 0" % (sAlloc, self.alM if self.alV else 0))
        self.vpat()
        e("s_setpc_b64 %s" % sp(sRet))
        self.lab("L_sw_end")
        e("s_mov_b32 s%d, 0" % (sCUR + 2))
        e("s_mov_b32 s%d, 0" % sOff); e("s_mov_b32 s%d, 0x7fffffff" % sLeft)
        e("s_setpc_b64 %s" % sp(sRet))

    def emit_switch_p2n(self):
        e = self.e
        mask = 64 * self.stride - 1
        self.lab("L_switch")
        e("s_add_u32 s%d, s%d, 1" % (sSeg, sSeg))
        e("s_mov_b32 s%d, 0" % sAlloc)
        e("s_cmp_eq_u32 s%d, 1" % sSeg); e("s_cbranch_scc1 L_sw_1")
        e("s_cmp_eq_u32 s%d, 2" % sSeg); e("s_cbranch_scc1 L_sw_2")
        e("s_cmp_eq_u32 s%d, 3" % sSeg); e("s_cbranch_scc1 L_sw_3")
        e("s_cmp_eq_u32 s%d, 4" % sSeg); e("s_cbranch_scc1 L_sw_4")
        e("s_cmp_eq_u32 s%d, 5" % sSeg); e("s_cbranch_scc1 L_sw_5")
        e("s_mov_b32 s%d, 0" % (sCUR + 2))
        e("s_mov_b32 s%d, 0" % sOff); e("s_mov_b32 s%d, 0x7fffffff" % sLeft)
        e("s_setpc_b64 %s" % sp(sRet))
        self.lab("L_sw_1")
        e("s_mov_b32 s%d, %d" % (sAlloc, self.alM))
        e("s_mov_b32 s%d, 64" % sLeft)
        e("s_branch L_sw_k")
        self.lab("L_sw_3")
        if self.o.get("dryK2"):
            e("s_mov_b32 s%d, 0" % (sCUR + 2))
        e("s_mov_b32 s%d, %d" % (sLeft, 2 * NRES_T))
        self.lab("L_sw_k")
        e("s_mov_b32 s%d, s%d" % (sCUR, sKB)); e("s_mov_b32 s%d, s%d" % (sCUR + 1, sKB + 1))
        e("s_mov_b32 s%d, s%d" % (sOff, sRot))
        self.kpat()
        e("s_setpc_b64 %s" % sp(sRet))
        self.lab("L_sw_4")
        if self.swz:
            e("s_mov_b32 s%d, 0" % sSwM)
        e("s_mov_b32 s%d, s%d" % (sCUR, sKN)); e("s_mov_b32 s%d, s%d" % (sCUR + 1, sKN + 1))
        e("s_add_u32 s%d, s%d, %d" % (sOff, sRotN, 2 * NRES_T * self.stride)); e("s_and_b32 s%d, s%d, 0x%x" % (sOff, sOff, mask))
        e("s_mov_b32 s%d, %d" % (sLeft, 2 * NSTR_T))
        e("s_setpc_b64 %s" % sp(sRet))
        self.lab("L_sw_2")
        e("s_mov_b32 s%d, %d" % (sAlloc, self.alM if self.alV else 0))
        e("s_mov_b32 s%d, s%d" % (sCUR, sVB)); e("s_mov_b32 s%d, s%d" % (sCUR + 1, sVB + 1))
        e("s_add_u32 s%d, s%d, %d" % (sOff, sRot, 2 * NRES_T * self.stride))
        e("s_branch L_sw_v")
        self.lab("L_sw_5")
        if self.o.get("dryK2"):
            e("s_mov_b32 s%d, %d" % (sCUR + 2, 0 if self.o.get("dryV2") else 3072 + 63 * self.stride + 4096 + 8192))
        e("s_mov_b32 s%d, s%d" % (sCUR, sVN)); e("s_mov_b32 s%d, s%d" % (sCUR + 1, sVN + 1))
        e("s_add_u32 s%d, s%d, %d" % (sOff, sRotN, 2 * NRES_T * self.stride))
        self.lab("L_sw_v")
        e("s_and_b32 s%d, s%d, 0x%x" % (sOff, sOff, mask))
        e("s_mov_b32 s%d, %d" % (sLeft, 2 * NSTR_T))
        self.vpat()
        e("s_setpc_b64 %s" % sp(sRet))

    def now(self, dst, minus=None):
        e = self.e
        e("s_memrealtime s[90:91]"); e("s_waitcnt lgkmcnt(0)")
        if minus is None:
            e("s_mov_b32 s%d, s90" % dst)
        else:
            e("s_sub_u32 s%d, s90, s%d" % (dst, minus))

    def adv_cs(self):
        e = self.e
        e("s_add_u32 s%d, s%d, 8192" % (sCs, sCs))
        e("s_cmp_eq_u32 s%d, s%d" % (sCs, sRe))
        e("s_cselect_b32 s%d, s%d, s%d" % (sCs, sRs, sCs))

    def step_issue(self):
        w = 4 * (self.R - 1)
        self.e("s_waitcnt vmcnt(%d)" % w)
        self.issue()
        self.e("s_waitcnt vmcnt(%d)" % w)
        self.issue()

    def gwait(self, u):
        lo = max(0, u - self.R + 1)
        cnt = sum(4 + (1 if g < self.NX else 0) + (1 if (self.clr2 and 2 <= g <= 6) else 0) for g in range(lo, u))
        self.e("s_waitcnt vmcnt(%d)" % cnt)

    @property
    def NX(self):
        return 0 if self.o.get('noX') else 16

    def xop(self, i):
        e = self.e
        if i == 7:
            e("s_cmp_eq_u32 s%d, 2" % sRole)
            e("s_cselect_b32 s%d, s%d, s%d" % (sWS, sWo2, sWS))
            e("s_cselect_b32 s%d, s%d, s%d" % (sWS + 1, sWo2 + 1, sWS + 1))
            e("s_cselect_b32 s%d, s%d, s%d" % (sWoff, sWoff0, sWoff))
            e("s_cselect_b32 s%d, s%d, s%d" % (sWlds, sWlds0, sWlds))
        if 0 < i < 14:
            e("s_cmp_eq_u32 s%d, %d" % (sWwrap, i))
            e("s_cselect_b32 s%d, s%d, s%d" % (sWoff, sWoff0, sWoff))
            e("s_cselect_b32 s%d, s%d, s%d" % (sWlds, sWlds0, sWlds))
        if i == 14:
            e("s_cmp_eq_u32 s%d, 1" % sRole)
            e("s_cselect_b32 s%d, s%d, 0" % (sWS + 2, sWS + 2))
            e("s_cselect_b32 s%d, s%d, s%d" % (sWlds, sWlds, sVec))
            e("s_cselect_b32 s%d, s%d, 0" % (sWlstep, sWlstep))
        e("s_mov_b32 m0, s%d" % sWlds); e("s_add_u32 s%d, s%d, s%d" % (sWlds, sWlds, sWlstep))
        e("s_mov_b64 exec, %s" % sp(sWex))
        e("buffer_load_dwordx4 v%d, %s, s%d offen lds" % (vW, sp(sWS, 4), sWoff))
        e("s_mov_b64 exec, -1")
        e("s_add_u32 s%d, s%d, s%d" % (sWoff, sWoff, sWstep))

    def group(self, u):
        if u >= self.R:
            self.gwait(u)
        self.issue()
        if u < self.NX:
            self.xop(u)
        if self.clr2 and 2 <= u <= 6:
            self.clear_op(u - 2)

    def prologue(self):
        e = self.e
        e("s_cmp_ge_u32 s2, 256")
        e("s_cbranch_scc1 L_end")
        e("s_load_dwordx16 s[8:23], s[0:1], 0")
        e("s_load_dwordx8 s[24:31], s[0:1], 64")
        e("v_lshrrev_b32 v1, 6, v0")
        e("v_and_b32 v%d, 63, v0" % vL)
        e("s_nop 0")
        e("v_readfirstlane_b32 s%d, v1" % sWave)
        e("v_mov_b32 v9, 0"); e("s_nop 0"); e("v_readfirstlane_b32 s%d, v9" % sZ)
        x, r = sT0, sT1
        e("s_and_b32 s%d, s2, 7" % x)
        e("s_lshr_b32 s%d, s2, 3" % r)
        if int(self.o.get("rmap", 0)):
            e("s_mov_b32 s%d, 0" % sRole); e("s_mov_b32 s%d, 0" % sIdx)
            e("s_lshr_b32 s%d, s%d, 1" % (sT2, x))
            e("s_bitcmp1_b32 s%d, 0" % x); e("s_cbranch_scc1 L_rodd")
            e("s_and_b32 s%d, s%d, 15" % (sIdx, r)); e("s_lshl_b32 s%d, s%d, 2" % (sIdx, sIdx)); e("s_add_u32 s%d, s%d, s%d" % (sIdx, sIdx, sT2))
            e("s_cmp_lt_u32 s%d, 16" % r); e("s_cselect_b32 s%d, 1, 4" % sRole)
            e("s_branch L_rdone")
            self.lab("L_rodd")
            e("s_cmp_lt_u32 s%d, 14" % r); e("s_cbranch_scc0 L_rodd2")
            e("s_mov_b32 s%d, 2" % sRole); e("s_mul_i32 s%d, s%d, 14" % (sIdx, sT2)); e("s_add_u32 s%d, s%d, s%d" % (sIdx, sIdx, r))
            e("s_branch L_rdone")
            self.lab("L_rodd2")
            e("s_cmp_lt_u32 s%d, 22" % r); e("s_cbranch_scc0 L_rdone")
            e("s_sub_u32 s%d, s%d, 14" % (sT3, r)); e("s_lshr_b32 s%d, s%d, 2" % (sT4, sT3)); e("s_lshl_b32 s%d, s%d, 2" % (sT4, sT4)); e("s_add_u32 s%d, s%d, s%d" % (sT4, sT4, sT2))
            e("s_cmp_lt_u32 s%d, 7" % sT4); e("s_cbranch_scc0 L_rdone")
            e("s_mov_b32 s%d, 3" % sRole); e("s_and_b32 s%d, s%d, 3" % (sT3, sT3)); e("s_lshl_b32 s%d, s%d, 2" % (sIdx, sT4)); e("s_add_u32 s%d, s%d, s%d" % (sIdx, sIdx, sT3))
        else:
            e("s_mov_b32 s%d, 0" % sRole); e("s_mov_b32 s%d, 0" % sIdx)
            e("s_cmp_lt_u32 s%d, 8" % r); e("s_cbranch_scc0 L_r1")
            e("s_mov_b32 s%d, 1" % sRole); e("s_lshl_b32 s%d, s%d, 3" % (sIdx, r)); e("s_add_u32 s%d, s%d, s%d" % (sIdx, sIdx, x))
            e("s_branch L_rdone")
            self.lab("L_r1")
            e("s_cmp_lt_u32 s%d, 16" % r); e("s_cbranch_scc0 L_r2")
            e("s_sub_u32 s%d, s%d, 8" % (sT2, r))
            e("s_lshr_b32 s%d, s%d, 1" % (sT3, sT2)); e("s_lshl_b32 s%d, s%d, 3" % (sT3, sT3)); e("s_add_u32 s%d, s%d, s%d" % (sT3, sT3, x))
            e("s_cmp_lt_u32 s%d, 28" % sT3); e("s_cbranch_scc0 L_rdone")
            e("s_mov_b32 s%d, 2" % sRole); e("s_and_b32 s%d, s%d, 1" % (sT2, sT2)); e("s_lshl_b32 s%d, s%d, 1" % (sIdx, sT3))
            e("s_add_u32 s%d, s%d, s%d" % (sIdx, sIdx, sT2))
            e("s_branch L_rdone")
            self.lab("L_r2")
            e("s_cmp_lt_u32 s%d, 20" % r); e("s_cbranch_scc0 L_r3")
            e("s_cmp_lt_u32 s%d, 7" % x); e("s_cbranch_scc0 L_rdone")
            e("s_mov_b32 s%d, 3" % sRole); e("s_lshl_b32 s%d, s%d, 2" % (sIdx, x)); e("s_add_u32 s%d, s%d, s%d" % (sIdx, sIdx, r))
            e("s_sub_u32 s%d, s%d, 16" % (sIdx, sIdx))
            e("s_branch L_rdone")
            self.lab("L_r3")
            e("s_cmp_lt_u32 s%d, 28" % r); e("s_cbranch_scc0 L_rdone")
            e("s_mov_b32 s%d, 4" % sRole); e("s_sub_u32 s%d, s%d, 20" % (sIdx, r)); e("s_lshl_b32 s%d, s%d, 3" % (sIdx, sIdx))
            e("s_add_u32 s%d, s%d, s%d" % (sIdx, sIdx, x))
        self.lab("L_rdone")
        e("s_add_u32 s%d, s%d, s%d" % (sRole, sRole, sZ))
        e("s_lshr_b32 s%d, s2, 4" % sH); e("s_and_b32 s%d, s2, 15" % sC)
        e("s_mov_b32 s%d, %d" % (sT0, RING_ROLE)); e("s_mov_b32 s%d, 6" % sNS)
        e("s_cmp_eq_u32 s%d, 0" % sRole)
        e("s_cselect_b32 s%d, %d, s%d" % (sT0, RING_NONE, sT0)); e("s_cselect_b32 s%d, 8, s%d" % (sNS, sNS))
        e("s_lshl_b32 s%d, s%d, 12" % (sT1, sNS))
        e("s_mul_i32 s%d, s%d, s%d" % (sT2, sT1, sWave))
        e("s_add_u32 s%d, s%d, s%d" % (sRs, sT0, sT2))
        e("s_add_u32 s%d, s%d, s%d" % (sRe, sRs, sT1))
        e("s_mov_b32 s%d, s%d" % (sSlot, sRs)); e("s_mov_b32 s%d, s%d" % (sCs, sRs))
        e("s_lshl_b32 s%d, s%d, 10" % (sT2, sWave)); e("s_add_u32 s%d, s%d, %d" % (sVec, sT2, L_P))
        e("s_mov_b32 s%d, 0x00010001" % sM[0]); e("s_mov_b32 s%d, 0x00010001" % (sM[0] + 1))
        for u in range(1, 4):
            e("s_lshl_b64 %s, %s, %d" % (sp(sM[u]), sp(sM[0]), u))
        e("s_mov_b32 s%d, s%d" % (sPass, sZ))
        e("s_waitcnt lgkmcnt(0)")
        if not self.near:
            e("s_lshl_b32 s%d, s%d, 4" % (sT0, sH)); e("s_add_u32 s%d, s%d, s%d" % (sT0, sT0, sC))
            e("s_lshl_b32 s%d, s%d, 20" % (sT0, sT0))
            if self.swz:
                e("s_and_b32 s%d, s%d, 1" % (sT1, sWave)); e("s_lshl_b32 s%d, s%d, 12" % (sT1, sT1))
            else:
                e("s_lshl_b32 s%d, s%d, 12" % (sT1, sWave))
            e("s_add_u32 s%d, s%d, s%d" % (sT0, sT0, sT1))
        else:
            e("s_lshl_b32 s%d, s%d, 24" % (sT0, sH))
            e("s_lshr_b32 s%d, s2, 3" % sT1); e("s_and_b32 s%d, s%d, 1" % (sT1, sT1)); e("s_lshl_b32 s%d, s%d, 2" % (sT1, sT1))
            e("s_and_b32 s%d, s2, 3" % sT2); e("s_add_u32 s%d, s%d, s%d" % (sT1, sT1, sT2)); e("s_lshl_b32 s%d, s%d, 21" % (sT1, sT1))
            e("s_add_u32 s%d, s%d, s%d" % (sT0, sT0, sT1))
            e("s_lshr_b32 s%d, s2, 2" % sT1); e("s_xor_b32 s%d, s%d, s2" % (sT1, sT1))
            e("s_xor_b32 s%d, s%d, %d" % (sT1, sT1, int(self.o.get("cpol", 0)))); e("s_and_b32 s%d, s%d, 1" % (sT1, sT1))
            e("s_lshl_b32 s%d, s%d, 13" % (sT1, sT1)); e("s_add_u32 s%d, s%d, s%d" % (sT0, sT0, sT1))
            e("s_and_b32 s%d, s%d, 1" % (sT1, sWave)); e("s_lshl_b32 s%d, s%d, 12" % (sT1, sT1)); e("s_add_u32 s%d, s%d, s%d" % (sT0, sT0, sT1))
            e("s_lshr_b32 s%d, s%d, 1" % (sT1, sWave)); e("s_lshl_b32 s%d, s%d, 14" % (sT1, sT1)); e("s_add_u32 s%d, s%d, s%d" % (sT0, sT0, sT1))
        e("s_mov_b32 s%d, 0" % sAlloc); e("s_lshr_b32 s%d, s2, 3" % sAc); e("s_and_b32 s%d, s%d, 1" % (sT1, sWave)); e("s_add_u32 s%d, s%d, s%d" % (sAc, sAc, sT1))
        for (dst, src) in ((sKB, pK), (sVB, pV)):
            e("s_add_u32 s%d, s%d, s%d" % (dst, src, sT0)); e("s_addc_u32 s%d, s%d, 0" % (dst + 1, src + 1))
            e("s_sub_u32 s%d, s%d, 3072" % (dst, dst)); e("s_subb_u32 s%d, s%d, 0" % (dst + 1, dst + 1))
            e("s_and_b32 s%d, s%d, 0xffff" % (dst + 1, dst + 1))
        e("s_mov_b32 s%d, s%d" % (sCUR, sVB)); e("s_mov_b32 s%d, s%d" % (sCUR + 1, sVB + 1))
        e("s_mov_b32 s%d, %d" % (sCUR + 2, 3072 + 63 * self.stride + 4096 + (8192 if self.swz else 0))); e("s_mov_b32 s%d, 0x20000" % (sCUR + 3))
        if self.stag:
            e("s_mul_i32 s%d, s2, %d" % (sRot, self.stag)); e("s_and_b32 s%d, s%d, 63" % (sRot, sRot)); e("s_mul_i32 s%d, s%d, %d" % (sRot, sRot, self.stride))
        else:
            e("s_mov_b32 s%d, 0" % sRot)
        e("s_mov_b32 s%d, s%d" % (sOff, sRot)); e("s_mov_b32 s%d, %d" % (sLeft, 2 * NRES_T)); e("s_mov_b32 s%d, 0" % sSeg)
        self.vpat()

    def weights_setup(self, which):
        e0 = self.e
        sfx = "_" + which
        def e(x):
            for lb in ("L_wdone", "L_wO", "L_wB", "L_wC"):
                x = x.replace(lb, lb + sfx)
            e0(x)
        lab0 = self.lab
        self.lab = lambda n: lab0(n + sfx)
        e("s_mov_b32 s%d, 0x20000" % (sWS + 3))
        e("s_mov_b64 %s, -1" % sp(sWex))
        pdef = pWq if which == "start" else pW2
        e("s_mov_b32 s%d, s%d" % (sWS, pdef)); e("s_and_b32 s%d, s%d, 0xffff" % (sWS + 1, pdef + 1)); e("s_mov_b32 s%d, 0" % (sWS + 2))
        e("s_mov_b32 s%d, s%d" % (sWlds, sVec))
        e("s_mov_b32 s%d, 0" % sWlstep); e("s_mov_b32 s%d, 0" % sWoff); e("s_mov_b32 s%d, 0" % sWoff0); e("s_mov_b32 s%d, 0" % sWstep)
        e("s_mov_b32 s%d, 99" % sWwrap); e("s_mov_b32 s%d, 0" % sWlds0); e("s_mov_b64 %s, 0" % sp(sWo2))
        e("v_mov_b32 v%d, 0" % vW)
        e("s_cmp_eq_u32 s%d, 0" % sRole); e("s_cbranch_scc1 L_wdone")
        if which == "start" and self.gapw:
            e("s_cmp_eq_u32 s%d, 2" % sRole); e("s_cbranch_scc1 L_wdone")
            e("s_cmp_eq_u32 s%d, 3" % sRole); e("s_cbranch_scc1 L_wdone")
        e("s_mov_b32 s%d, 1024" % sWlstep)
        if which == "start":
            e("s_cmp_eq_u32 s%d, 1" % sRole); e("s_cbranch_scc1 L_wO")
        e("s_cmp_eq_u32 s%d, 2" % sRole); e("s_cbranch_scc1 L_wB")
        if which == "start":
            e("s_cmp_eq_u32 s%d, 3" % sRole); e("s_cbranch_scc1 L_wC")
        else:
            e("s_branch L_wC")
        if which == 'start':
            e("s_mov_b32 s%d, %d" % (sWS + 2, 448 * 8192))
            e("v_lshrrev_b32 v9, 3, v%d" % vL); e("v_lshlrev_b32 v%d, 13, v9" % vW)
            e("v_bfe_u32 v9, v%d, 4, 2" % vL); e("v_lshlrev_b32 v9, 1, v9")
            e("v_and_b32 v10, 7, v%d" % vL); e("v_xor_b32 v9, v9, v10"); e("v_lshl_add_u32 v%d, v9, 4, v%d" % (vW, vW))
            e("s_mul_i32 s%d, s%d, %d" % (sT1, sWave, 14 * 8 * 8192)); e("s_lshl_b32 s%d, s%d, 7" % (sT2, sIdx)); e("s_add_u32 s%d, s%d, s%d" % (sWoff, sT1, sT2))
            e("s_mov_b32 s%d, %d" % (sWstep, 8 * 8192))
            e("s_mul_i32 s%d, s%d, %d" % (sWlds, sWave, 14 * 1024)); e("s_add_u32 s%d, s%d, %d" % (sWlds, sWlds, L_W))
            e("s_branch L_wdone")
        self.lab("L_wC")
        e("s_mov_b32 s%d, s%d" % (sWS, pW2)); e("s_and_b32 s%d, s%d, 0xffff" % (sWS + 1, pW2 + 1)); e("s_mov_b32 s%d, %d" % (sWS + 2, 1792 * 896))
        e("v_lshrrev_b32 v9, 1, v%d" % vL); e("v_mul_u32_u24 v%d, 896, v9" % vW)
        e("v_and_b32 v9, 1, v%d" % vL); e("v_lshl_add_u32 v%d, v9, 4, v%d" % (vW, vW))
        e("s_mul_i32 s%d, s%d, %d" % (sT1, sWave, 448 * 896)); e("s_lshl_b32 s%d, s%d, 5" % (sT2, sIdx)); e("s_add_u32 s%d, s%d, s%d" % (sWoff, sT1, sT2))
        e("s_mov_b32 s%d, %d" % (sWstep, 32 * 896))
        e("s_mul_i32 s%d, s%d, %d" % (sWlds, sWave, C_WAVE)); e("s_add_u32 s%d, s%d, %d" % (sWlds, sWlds, L_W))
        e("s_mov_b32 s%d, s%d" % (sWoff0, sWoff)); e("s_mov_b32 s%d, s%d" % (sWlds0, sWlds))
        e("s_and_b32 s%d, s%d, 3" % (sT0, sIdx)); e("s_mul_i32 s%d, s%d, 7" % (sT0, sT0)); e("s_add_u32 s%d, s%d, 1" % (sT0, sT0)); e("s_lshr_b32 s%d, s%d, 1" % (sT0, sT0))
        e("s_sub_u32 s%d, 14, s%d" % (sWwrap, sT0))
        e("s_mul_i32 s%d, s%d, %d" % (sT1, sT0, 32 * 896)); e("s_add_u32 s%d, s%d, s%d" % (sWoff, sWoff, sT1))
        e("s_lshl_b32 s%d, s%d, 10" % (sT1, sT0)); e("s_add_u32 s%d, s%d, s%d" % (sWlds, sWlds, sT1))
        e("s_branch L_wdone")
        if which == 'start':
            self.lab("L_wO")
            e("s_mov_b32 s%d, s%d" % (sWS, pWo)); e("s_and_b32 s%d, s%d, 0xffff" % (sWS + 1, pWo + 1)); e("s_mov_b32 s%d, %d" % (sWS + 2, 4096 * 896))
            e("v_lshlrev_b32 v%d, 4, v%d" % (vW, vL))
            e("s_lshl_b32 s%d, s%d, 6" % (sT1, sIdx)); e("s_lshl_b32 s%d, s%d, 4" % (sT2, sWave)); e("s_add_u32 s%d, s%d, s%d" % (sT1, sT1, sT2))
            e("s_mul_i32 s%d, s%d, 896" % (sWoff, sT1))
            e("s_mov_b32 s%d, 896" % sWstep); e("s_mov_b32 s%d, %d" % (sWlstep, O_ROW))
            e("s_mul_i32 s%d, s%d, %d" % (sWlds, sWave, 16 * O_ROW)); e("s_add_u32 s%d, s%d, %d" % (sWlds, sWlds, L_W))
            e("s_mov_b32 s%d, -1" % sWex); e("s_mov_b32 s%d, 0x00ffffff" % (sWex + 1))
            e("s_branch L_wdone")
        self.lab("L_wB")
        e("s_bitcmp1_b32 s%d, 0" % sIdx)
        e("s_cselect_b32 s%d, s%d, s%d" % (sWS, pW3, pW1)); e("s_cselect_b32 s%d, s%d, s%d" % (sWS + 1, pW3 + 1, pW1 + 1))
        e("s_cselect_b32 s%d, s%d, s%d" % (sWo2, pW1, pW3)); e("s_cselect_b32 s%d, s%d, s%d" % (sWo2 + 1, pW1 + 1, pW3 + 1))
        e("s_cselect_b32 s%d, %d, 0" % (sT3, B_IMG3)); e("s_cselect_b32 s%d, 0, %d" % (sT4, B_IMG3))
        e("s_and_b32 s%d, s%d, 0xffff" % (sWS + 1, sWS + 1)); e("s_and_b32 s%d, s%d, 0xffff" % (sWo2 + 1, sWo2 + 1))
        e("s_mov_b32 s%d, %d" % (sWS + 2, 448 * 3584))
        e("v_lshrrev_b32 v9, 2, v%d" % vL); e("v_mul_u32_u24 v%d, 3584, v9" % vW)
        e("v_and_b32 v9, 3, v%d" % vL); e("v_lshl_add_u32 v%d, v9, 4, v%d" % (vW, vW))
        e("s_mul_i32 s%d, s%d, %d" % (sT1, sWave, 7 * 16 * 3584)); e("s_lshl_b32 s%d, s%d, 6" % (sT2, sIdx)); e("s_add_u32 s%d, s%d, s%d" % (sWoff, sT1, sT2))
        e("s_mov_b32 s%d, s%d" % (sWoff0, sWoff))
        e("s_mov_b32 s%d, %d" % (sWstep, 16 * 3584))
        e("s_mul_i32 s%d, s%d, %d" % (sWlds, sWave, 7 * 1024)); e("s_add_u32 s%d, s%d, %d" % (sWlds, sWlds, L_W))
        e("s_add_u32 s%d, s%d, s%d" % (sWlds0, sWlds, sT4)); e("s_add_u32 s%d, s%d, s%d" % (sWlds, sWlds, sT3))
        self.lab("L_wdone")
        self.lab = lab0

    def clear_mailboxes(self):
        e = self.e
        e("v_mov_b32 v10, -1")
        e("s_lshl_b32 s%d, s%d, 2" % (sT0, sH)); e("s_add_u32 s%d, s%d, s%d" % (sT0, sT0, sWave)); e("s_lshl_b32 s%d, s%d, 4" % (sT0, sT0))
        e("s_add_u32 s%d, s%d, s%d" % (sT0, sT0, sC)); e("s_mul_i32 s%d, s%d, %d" % (sT0, sT0, M1_SLOT))
        self.addr(sA, pWs, M1, [sT0])
        e("v_lshlrev_b32 v8, 2, v%d" % vL)
        e("v_and_b32 v9, 1, v%d" % vL); e("v_lshlrev_b32 v9, 2, v9"); e("v_add_u32 v9, 256, v9")
        for rho in range(2):
            e("global_store_dword v8, v10, %s sc1" % sp(sA))
            e("global_store_dword v9, v10, %s sc1" % sp(sA))
            if rho == 0:
                e("s_add_u32 s%d, s%d, 0x%x" % (sA, sA, M1_R)); e("s_addc_u32 s%d, s%d, 0" % (sA + 1, sA + 1))
        if self.p2n:
            e("s_lshl_b32 s%d, s2, 12" % sT0); e("s_lshl_b32 s%d, s%d, 10" % (sT1, sWave))
            self.addr(sA, pWs, M7, [sT0, sT1])
            for k in range(4):
                e("global_store_dword v8, v10, %s offset:%d sc1" % (sp(sA), k * 256))
        e("s_cmp_eq_u32 s%d, 0" % sWave); e("s_cbranch_scc0 L_cdone")
        e("s_cmp_eq_u32 s%d, 0" % sRole); e("s_cbranch_scc1 L_cdone")
        e("v_and_b32 v8, 31, v%d" % vL); e("v_lshlrev_b32 v8, 2, v8")
        e("s_lshl_b32 s%d, s%d, 7" % (sT0, sIdx))
        e("v_add_u32 v8, s%d, v8" % sT0)
        e("s_cmp_eq_u32 s%d, 1" % sRole); e("s_cbranch_scc1 L_cA")
        e("s_cmp_eq_u32 s%d, 2" % sRole); e("s_cbranch_scc1 L_cB")
        e("s_cmp_eq_u32 s%d, 3" % sRole); e("s_cbranch_scc1 L_cC")
        for off in (M3, M3 + MR, M6, M6 + MR):
            self.addr(sA, pWs, off); e("global_store_dword v8, v10, %s sc1" % sp(sA))
        e("s_branch L_cdone")
        self.lab("L_cA")
        if self.p2n == 2:
            lq = self.nl("Lc8")
            e("s_and_b32 s%d, s%d, 3" % (sT1, sIdx)); e("s_cmp_lt_u32 s%d, 2" % sT1); e("s_cbranch_scc0 %s" % lq)
            e("s_lshr_b32 s%d, s%d, 2" % (sT0, sIdx)); e("s_lshl_b32 s%d, s%d, 7" % (sT0, sT0)); e("s_lshl_b32 s%d, s%d, 2" % (sT1, sT1))
            self.addr(sA, pWs, M8, [sT0, sT1])
            e("v_mov_b32 v9, 0")
            e("global_store_dword v9, v10, %s sc1" % sp(sA))
            self.lab(lq)
        e("s_mul_i32 s%d, s%d, %d" % (sT0, sIdx, M2_SLOT))
        e("v_lshlrev_b32 v8, 2, v%d" % vL)
        for rho in range(2):
            self.addr(sA, pWs, M2 + rho * M2_R, [sT0])
            for k in range(M2_SLOT // 256):
                e("global_store_dword v8, v10, %s offset:%d sc1" % (sp(sA), k * 256))
        e("s_branch L_cdone")
        self.lab("L_cB")
        for off in (M4, M4 + MR):
            self.addr(sA, pWs, off); e("global_store_dword v8, v10, %s sc1" % sp(sA))
        e("s_branch L_cdone")
        self.lab("L_cC")
        self.addr(sA, pWs, M5); e("global_store_dword v8, v10, %s sc1" % sp(sA))
        self.lab("L_cdone")
        e("v_mov_b32 v11, 0")
        e("v_lshlrev_b32 v8, 2, v%d" % vL); e("v_add_u32 v8, %d, v8" % L_Z)
        e("ds_write_b32 v8, v11"); e("ds_write_b32 v8, v11 offset:256")

    def clear_op(self, k):
        e = self.e
        if k == 0:
            for d in range(4):
                e("v_mov_b32 v%d, -1" % (20 + d))
        if k in (0, 1):
            e("s_lshl_b32 s%d, s%d, 2" % (sT0, sH)); e("s_add_u32 s%d, s%d, s%d" % (sT0, sT0, sWave)); e("s_lshl_b32 s%d, s%d, 4" % (sT0, sT0))
            e("s_add_u32 s%d, s%d, s%d" % (sT0, sT0, sC)); e("s_mul_i32 s%d, s%d, %d" % (sT0, sT0, M1_SLOT))
            if k:
                e("s_add_u32 s%d, s%d, 0x%x" % (sT0, sT0, M1 + M1_R))
            e("v_min_u32 v25, 16, v%d" % vL)
        elif k == 2:
            e("s_lshl_b32 s%d, s2, 12" % sT0); e("s_lshl_b32 s%d, s%d, 10" % (sT1, sWave)); e("s_add_u32 s%d, s%d, s%d" % (sT0, sT0, sT1)); e("s_add_u32 s%d, s%d, 0x%x" % (sT0, sT0, M7))
            e("v_mov_b32 v25, v%d" % vL)
        elif k == 3:
            e("s_lshl_b32 s%d, s2, 12" % sT0); e("s_lshl_b32 s%d, s%d, 10" % (sT1, sWave)); e("s_add_u32 s%d, s%d, s%d" % (sT0, sT0, sT1)); e("s_add_u32 s%d, s%d, 0x%x" % (sT0, sT0, M7))
            e("s_lshl_b32 s%d, s%d, 7" % (sT2, sIdx))
            e("s_and_b32 s%d, s%d, 1" % (sT3, sWave)); e("s_lshr_b32 s%d, s%d, 1" % (sT4, sWave))
            e("s_mul_i32 s%d, s%d, 0x%x" % (sT1, sT4, M2_R)); e("s_lshl_b32 s%d, s%d, 11" % (sT5, sIdx)); e("s_add_u32 s%d, s%d, s%d" % (sT1, sT1, sT5))
            e("s_lshl_b32 s%d, s%d, 10" % (sT5, sT3)); e("s_add_u32 s%d, s%d, s%d" % (sT1, sT1, sT5)); e("s_add_u32 s%d, s%d, 0x%x" % (sT1, sT1, M2))
            e("s_cmp_eq_u32 s%d, 1" % sRole); e("s_cselect_b32 s%d, s%d, s%d" % (sT0, sT1, sT0))
            e("s_lshl_b32 s%d, s%d, 13" % (sT1, sT3)); e("s_add_u32 s%d, s%d, s%d" % (sT1, sT1, sT2)); e("s_add_u32 s%d, s%d, 0x%x" % (sT5, sT1, M4))
            e("s_cmp_eq_u32 s%d, 2" % sRole); e("s_cselect_b32 s%d, s%d, s%d" % (sT0, sT5, sT0))
            e("s_add_u32 s%d, s%d, 0x%x" % (sT5, sT2, M5))
            e("s_cmp_eq_u32 s%d, 3" % sRole); e("s_cselect_b32 s%d, s%d, s%d" % (sT0, sT5, sT0))
            e("s_mul_i32 s%d, s%d, 0x%x" % (sT5, sT4, M6 - M3)); e("s_add_u32 s%d, s%d, s%d" % (sT5, sT5, sT1)); e("s_add_u32 s%d, s%d, 0x%x" % (sT5, sT5, M3))
            e("s_cmp_eq_u32 s%d, 4" % sRole); e("s_cselect_b32 s%d, s%d, s%d" % (sT0, sT5, sT0))
            e("v_and_b32 v25, 7, v%d" % vL)
            e("s_cmp_lt_u32 s%d, 2" % sRole); e("s_cselect_b64 vcc, -1, 0")
            e("v_cndmask_b32 v25, v25, v%d, vcc" % vL)
        else:
            e("s_lshl_b32 s%d, s2, 12" % sT0); e("s_lshl_b32 s%d, s%d, 10" % (sT1, sWave)); e("s_add_u32 s%d, s%d, s%d" % (sT0, sT0, sT1)); e("s_add_u32 s%d, s%d, 0x%x" % (sT0, sT0, M7))
            e("s_lshl_b32 s%d, s2, 7" % sT1); e("s_add_u32 s%d, s%d, 0x%x" % (sT1, sT1, M8))
            e("s_cmp_lt_u32 s2, 16"); e("s_cselect_b32 s%d, s%d, s%d" % (sT0, sT1, sT0))
            e("v_and_b32 v25, 7, v%d" % vL)
        e("v_lshlrev_b32 v25, 4, v25"); e("v_add_u32 v25, s%d, v25" % sT0)
        e("global_store_dwordx4 v25, v[20:23], %s sc1" % sp(pWs))

    def lds_zero(self):
        e = self.e
        e("v_mov_b32 v11, 0")
        e("v_lshlrev_b32 v8, 2, v%d" % vL); e("v_add_u32 v8, %d, v8" % L_Z)
        e("ds_write_b32 v8, v11"); e("ds_write_b32 v8, v11 offset:256")

    def count_cleared(self):
        e = self.e
        e("s_waitcnt lgkmcnt(0)")
        e("s_barrier")
        e("s_cmp_eq_u32 s%d, 0" % sWave); e("s_cbranch_scc0 L_cnt_done")
        e("v_mov_b32 v10, 0"); e("v_mov_b32 v11, 1")
        e("s_mov_b64 exec, 1")
        e("global_atomic_add v10, v11, %s" % sp(pDbg))
        e("s_mov_b64 exec, -1")
        self.lab("L_cnt_done")

    def layernorm_to_vec(self):
        e = self.e
        X = 40
        for d in range(4):
            e("v_lshlrev_b32 v%d, 16, v%d" % (X + 2 * d, 32 + d))
            e("v_and_b32 v%d, 0xffff0000, v%d" % (X + 2 * d + 1, 32 + d))
        e("v_cmp_gt_u32 vcc, 56, v%d" % vL)
        e("v_add_f32 v48, v40, v41"); e("v_add_f32 v49, v42, v43"); e("v_add_f32 v50, v44, v45"); e("v_add_f32 v51, v46, v47")
        e("v_add_f32 v48, v48, v49"); e("v_add_f32 v50, v50, v51"); e("v_add_f32 v48, v48, v50")
        e("v_cndmask_b32 v48, 0, v48, vcc")
        self.allreduce64(48, 49, "v_add_f32")
        e("v_mul_f32 v48, 0x3b124925, v48")
        for i in range(8):
            e("v_sub_f32 v%d, v%d, v48" % (52 + i, X + i))
        e("v_mul_f32 v49, v52, v52")
        for i in range(1, 8):
            e("v_fmac_f32 v49, v%d, v%d" % (52 + i, 52 + i))
        e("v_cndmask_b32 v49, 0, v49, vcc")
        self.allreduce64(49, 50, "v_add_f32")
        e("v_mul_f32 v49, 0x3b124925, v49")
        self.bf16r(48, 48, 50)
        self.bf16r(49, 49, 50)
        e("v_add_f32 v49, 0x3727c5ac, v49")
        self.bf16r(49, 49, 50)
        e("v_sqrt_f32 v49, v49"); self.nop(1)
        self.bf16r(49, 49, 50)
        e("v_rcp_f32 v49, v49")
        for i in range(8):
            e("v_sub_f32 v%d, v%d, v48" % (52 + i, X + i))
        for i in range(0, 8, 2):
            e("v_cvt_pk_bf16_f32 v%d, v%d, v%d" % (36 + i // 2, 52 + i, 53 + i))
        for d in range(4):
            e("v_lshlrev_b32 v%d, 16, v%d" % (52 + 2 * d, 36 + d))
            e("v_and_b32 v%d, 0xffff0000, v%d" % (53 + 2 * d, 36 + d))
        for i in range(8):
            e("v_mul_f32 v%d, v%d, v49" % (52 + i, 52 + i))
        for i in range(0, 8, 2):
            e("v_cvt_pk_bf16_f32 v%d, v%d, v%d" % (36 + i // 2, 52 + i, 53 + i))
        e("v_lshlrev_b32 v48, 4, v%d" % vL); e("v_add_u32 v48, s%d, v48" % sVec)
        e("ds_write_b128 v48, v[36:39]")
        e("s_waitcnt lgkmcnt(0)")

    def gemv_chain(self, n, a_off, b_step, b_second, acc=8):
        e = self.e
        m = 0
        first = True
        while m < n:
            nb = min(4, n - m)
            for k in range(nb):
                o0, o1 = a_off(m + k)
                e("ds_read2_b64 v[%d:%d], v6 offset0:%d offset1:%d" % (32 + 4 * k, 35 + 4 * k, o0, o1))
                e("ds_read_b64_tr_b16 v[%d:%d], v7 offset:%d" % (48 + 4 * k, 49 + 4 * k, (m + k) * b_step))
                e("ds_read_b64_tr_b16 v[%d:%d], v7 offset:%d" % (50 + 4 * k, 51 + 4 * k, (m + k) * b_step + b_second))
            e("s_waitcnt lgkmcnt(0)")
            for k in range(nb):
                c = "0" if first else vr(acc, 4)
                e("v_mfma_f32_16x16x32_bf16 %s, %s, %s, %s" % (vr(acc, 4), vr(32 + 4 * k, 4), vr(48 + 4 * k, 4), c))
                first = False
            m += nb
        self.nop(8)

    def lane_rc(self):
        e = self.e
        e("v_lshrrev_b32 v10, 4, v%d" % vL); e("v_bfe_u32 v11, v%d, 2, 2" % vL)
        e("v_and_b32 v12, 3, v%d" % vL); e("v_and_b32 v13, 15, v%d" % vL)

    def stage_D(self, rho_reg_is_next):
        e = self.e
        self.layernorm_to_vec()
        self.lane_rc()
        e("v_lshlrev_b32 v6, 3, v10"); e("v_add_u32 v6, s%d, v6" % sVec)
        e("v_lshl_add_u32 v7, v10, 2, v11")
        e("v_bfe_u32 v14, v7, 1, 2"); e("v_xor_b32 v14, s%d, v14" % sWave)
        e("v_lshlrev_b32 v7, 7, v7"); e("v_lshl_add_u32 v7, v14, 5, v7"); e("v_lshl_add_u32 v7, v12, 3, v7"); e("v_add_u32 v7, %d, v7" % L_W)
        self.gemv_chain(14, lambda m: (8 * m, 8 * m + 4), 4096, 2048)
        e("v_mov_b32_dpp v9, v8 quad_perm:[1,0,3,2] row_mask:0xf bank_mask:0xf")
        e("v_cvt_pk_bf16_f32 v9, v8, v9")
        e("v_mov_b32 v14, -2"); e("v_min_u32 v9, v9, v14")
        e("s_lshl_b32 s%d, s%d, 7" % (sT0, sIdx)); e("s_lshl_b32 s%d, s%d, 5" % (sT1, sWave)); e("s_add_u32 s%d, s%d, s%d" % (sT0, sT0, sT1))
        e("v_lshlrev_b32 v14, 1, v%d" % vL); e("v_add_u32 v14, s%d, v14" % sT0)
        e("s_mov_b64 exec, 0x5555")
        e("global_store_dword v14, v9, %s sc1" % sp(sA))
        e("s_mov_b64 exec, -1")

    def p1a(self):
        e = self.e
        self.lab("L_p1a_code")
        e("v_lshrrev_b32 v%d, 5, v%d" % (vPh, vL)); e("v_lshlrev_b32 v%d, 12, v%d" % (vPh, vPh))
        e("v_and_b32 v%d, 31, v%d" % (vAd, vL)); e("v_lshl_add_u32 v%d, v%d, 3, v%d" % (vPh, vAd, vPh))
        R = self.R
        for T in range(NRES_T):
            u0, u1 = 2 * T + R, 2 * T + R + 1
            if self.p2n == 1 and T == 2:
                self.now(sTm0)
            if T == 12:
                self.gwait(u0)
                lq = self.nl("Lnq")
                e("s_mov_b32 s%d, s%d" % (sQok, sZ))
                e("v_cmp_gt_u32 vcc, 256, v36")
                e("s_cbranch_vccnz %s" % lq)
                e("s_add_u32 s%d, s%d, 1" % (sQok, sZ))
                e("s_lshl_b32 s%d, s%d, 9" % (sT1, sH))
                self.addr(sA, pWs, M6, [sT1])
                e("v_and_b32 v37, 31, v%d" % vL); e("v_lshlrev_b32 v37, 4, v37")
                e("global_load_dwordx4 v[32:35], v37, %s sc1" % sp(sA))
                self.lab(lq)
                self.issue()
            elif T == 10:
                self.gwait(u0)
                e("v_mov_b32 v37, 0")
                e("global_load_dword v36, v37, %s sc1" % sp(pDbg))
                self.issue()
            else:
                self.group(u0)
            if T == (3 if self.clr2 else 1):
                self.gwait(u1)
                self.count_cleared()
                self.issue()
                if u1 < self.NX:
                    self.xop(u1)
                if self.clr2 and 2 <= u1 <= 6:
                    self.clear_op(u1 - 2)
            elif T == 9:
                assert u1 - R >= 16
                self.gwait(u1)
                e("s_cmp_eq_u32 s%d, 4" % sRole); e("s_cbranch_scc0 L_noq1")
                e("s_barrier")
                if int(self.o.get("gap2", 1)):
                    e("s_call_b64 %s, L_stageD_prep" % sp(sRet2))
                    e("s_lshl_b32 s%d, s%d, 7" % (sT0, sIdx)); e("s_lshl_b32 s%d, s%d, 5" % (sT1, sWave))
                    self.addr(sB, pWs, M6, [sT0] if self.onest else [sT0, sT1])
                    e("s_call_b64 %s, L_stageD_rest" % sp(sRet2))
                else:
                    self.addr(sA, pWs, M6)
                    e("s_call_b64 %s, L_stageD" % sp(sRet2))
                self.lab("L_noq1")
                self.issue()
                e("v_lshrrev_b32 v%d, 5, v%d" % (vPh, vL)); e("v_lshlrev_b32 v%d, 12, v%d" % (vPh, vPh))
                e("v_and_b32 v%d, 31, v%d" % (vAd, vL)); e("v_lshl_add_u32 v%d, v%d, 3, v%d" % (vPh, vAd, vPh))
            else:
                self.group(u1)
            e("v_add_u32 v%d, s%d, v%d" % (vAd, sCs, vPh))
            if self.o.get("pstamps") and T in (0, 3, 8):
                self.stamp({0: 14, 3: 15, 8: 1}[T])
            for t in range(16):
                e("ds_read_b64_tr_b16 %s, v%d offset:%d" % (res_reg(T >> 1, t, T & 1), vAd, t * 256))
            self.adv_cs()
            e("s_waitcnt lgkmcnt(0)")
        if self.p2n == 1:
            self.now(sTm1, sTm0)

    def gather_q(self):
        e = self.e
        e("s_cmp_eq_u32 s%d, 0" % sPass); e("s_cbranch_scc0 L_gq")
        e("s_cmp_eq_u32 s%d, 1" % sQok); e("s_cbranch_scc0 L_gq_slow")
        e("v_max3_u32 v36, v32, v33, v34"); e("v_max_u32 v36, v36, v35")
        e("v_cmp_eq_u32 vcc, -1, v36")
        e("v_and_b32 v8, 31, v%d" % vL); e("v_lshlrev_b32 v8, 4, v8")
        e("s_cbranch_vccz L_gq_write")
        self.lab("L_gq_slow")
        L = self.nl("Lc"); Dn = self.nl("Lcd")
        e("v_mov_b32 v8, 0"); e("s_mov_b32 s%d, 0" % sSpin)
        self.lab(L)
        e("global_load_dword v9, v8, %s sc1" % sp(pDbg))
        e("s_waitcnt vmcnt(0)")
        e("v_cmp_gt_u32 vcc, 256, v9")
        e("s_cbranch_vccz %s" % Dn)
        e("s_add_u32 s%d, s%d, 1" % (sSpin, sSpin)); e("s_cmp_lt_u32 s%d, %d" % (sSpin, SPIN_LIMIT)); e("s_cbranch_scc1 %s" % L)
        self.lab(Dn)
        self.lab("L_gq")
        if self.q1w:
            e("s_cmp_eq_u32 s%d, 1" % sPass); e("s_cbranch_scc0 L_gq_p0")
            e("s_cmp_eq_u32 s%d, 0" % sWave); e("s_cbranch_scc0 L_gq_bar")
            e("s_lshl_b32 s%d, s%d, 9" % (sT1, sH))
            self.addr(sA, pWs, M6 + MR, [sT1])
            e("s_lshl_b32 s%d, s%d, 7" % (sT0, sH))
            self.addr(sB, pWs, M8, [sT0])
            e("v_and_b32 v8, 31, v%d" % vL); e("v_lshlrev_b32 v8, 4, v8"); e("v_mov_b32 v9, 0")
            self.ptmp = 10
            self.poll2(lambda b: ["global_load_dwordx4 v[%d:%d], v8, %s sc1" % (b, b + 3, sp(sA)),
                                  "global_load_dwordx2 v[%d:%d], v9, %s sc1" % (b + 4, b + 5, sp(sB))], 6, (20, 26), 32, "Qq", sleep=int(self.o.get("qsleep", 0)))
            self.ptmp = 31
            for k in range(4):
                e("ds_write_b128 v8, v[32:35] offset:%d" % (L_Q + 512 * k))
            e("v_mov_b32 v9, %d" % (L_SM + 32))
            e("ds_write_b64 v9, v[36:37]")
            e("s_waitcnt lgkmcnt(0)")
            self.lab("L_gq_bar")
            e("s_barrier")
            e("v_mov_b32 v9, %d" % (L_SM + 32))
            e("ds_read_b64 v[38:39], v9")
            e("s_waitcnt lgkmcnt(0)")
            self.near_setup()
            e("s_branch L_gq_end")
            self.lab("L_gq_p0")
        e("s_lshl_b32 s%d, s%d, 13" % (sT0, sPass)); e("s_lshl_b32 s%d, s%d, 9" % (sT1, sH))
        self.addr(sA, pWs, M6, [sT0, sT1])
        e("v_and_b32 v8, 31, v%d" % vL); e("v_lshlrev_b32 v8, 4, v8")
        lds_ = ["global_load_dwordx4 v[32:35], v8, %s sc1" % sp(sA)]
        chk = [32, 33, 34, 35]
        if self.p2n == 1:
            e("v_mov_b32 v37, 0")
            lds_.append("global_load_dwordx2 v[38:39], v37, %s offset:16 sc1" % sp(pDbg))
        if self.p2n == 2:
            e("s_lshl_b32 s%d, s%d, 7" % (sT0, sH))
            self.addr(sB, pWs, M8, [sT0])
            e("s_cmp_eq_u32 s%d, 0" % sPass)
            e("s_cselect_b32 s%d, s%d, s%d" % (sB, sA, sB)); e("s_cselect_b32 s%d, s%d, s%d" % (sB + 1, sA + 1, sB + 1))
            e("v_mov_b32 v37, 0")
            lds_.append("global_load_dwordx2 v[38:39], v37, %s sc1" % sp(sB))
            chk += [38, 39]
        self.poll(lds_, chk, 36, "Pq")
        if self.p2n and not self.q1w:
            self.near_setup()
        self.lab("L_gq_write")
        e("s_lshl_b32 s%d, s%d, 9" % (sT0, sWave))
        e("v_add_u32 v8, s%d, v8" % sT0)
        e("ds_write_b128 v8, v[32:35] offset:%d" % L_Q)
        e("s_waitcnt lgkmcnt(0)")
        if self.q1w:
            self.lab("L_gq_end")

    def near_setup(self):
        e = self.e
        d = self.nl("Lns")
        e("s_cmp_eq_u32 s%d, 1" % sPass); e("s_cbranch_scc0 %s" % d)
        if self.p2n == 1:
            e("v_readfirstlane_b32 s%d, v38" % sT0); e("v_readfirstlane_b32 s%d, v39" % sT1)
            e("s_nop 3")
            e("s_cmp_gt_u32 s%d, 128" % sT0); e("s_cselect_b32 s%d, 1, 0" % sT0)
            e("s_cmp_gt_u32 s%d, 128" % sT1); e("s_cselect_b32 s%d, 1, 0" % sT1)
        else:
            e("v_readfirstlane_b32 s%d, v38" % sT0); e("v_readfirstlane_b32 s%d, v39" % sT1)
            e("s_nop 3")
            e("s_and_b32 s%d, s%d, 1" % (sT1, sT1)); e("s_and_b32 s%d, s%d, 1" % (sT0, sT0))
        if "forceK" in self.o:
            e("s_mov_b32 s%d, %d" % (sT0, int(self.o["forceK"]))); e("s_mov_b32 s%d, %d" % (sT1, int(self.o["forceV"])))
        e("s_xor_b32 s%d, s%d, s%d" % (sXch, sT0, sT1))
        e("s_lshr_b32 s%d, s2, 1" % sT2); e("s_lshr_b32 s%d, s2, 2" % sT3); e("s_xor_b32 s%d, s%d, s%d" % (sT2, sT2, sT3)); e("s_and_b32 s%d, s%d, 1" % (sT2, sT2))
        e("s_xor_b32 s%d, s%d, s%d" % (sT0, sT0, sT2)); e("s_xor_b32 s%d, s%d, s%d" % (sT1, sT1, sT2))
        if self.swz:
            e("s_lshl_b32 s%d, s%d, 13" % (sT0, sT0)); e("s_lshl_b32 s%d, s%d, 13" % (sT1, sT1))
        else:
            e("s_and_b32 s%d, s%d, 1" % (sT2, sWave))
            e("s_lshl_b32 s%d, s%d, 1" % (sT0, sT0)); e("s_add_u32 s%d, s%d, s%d" % (sT0, sT0, sT2)); e("s_sub_i32 s%d, s%d, s%d" % (sT0, sT0, sWave)); e("s_lshl_b32 s%d, s%d, 12" % (sT0, sT0))
            e("s_lshl_b32 s%d, s%d, 1" % (sT1, sT1)); e("s_add_u32 s%d, s%d, s%d" % (sT1, sT1, sT2)); e("s_sub_i32 s%d, s%d, s%d" % (sT1, sT1, sWave)); e("s_lshl_b32 s%d, s%d, 12" % (sT1, sT1))
        e("s_xor_b32 s%d, s2, 4" % sT3); e("s_cmp_lt_u32 s%d, 2" % sWave); e("s_cselect_b32 s%d, s2, s%d" % (sT3, sT3))
        e("s_mul_i32 s%d, s%d, %d" % (sRotN, sT3, self.stag)); e("s_and_b32 s%d, s%d, 63" % (sRotN, sRotN)); e("s_mul_i32 s%d, s%d, %d" % (sRotN, sRotN, self.stride))
        e("s_sub_i32 s%d, s%d, s2" % (sT3, sT3)); e("s_lshl_b32 s%d, s%d, 20" % (sT3, sT3))
        e("s_add_i32 s%d, s%d, s%d" % (sT0, sT0, sT3)); e("s_add_i32 s%d, s%d, s%d" % (sT1, sT1, sT3))
        for (dst, src, dl) in ((sKN, sKB, sT0), (sVN, sVB, sT1)):
            e("s_ashr_i32 s%d, s%d, 31" % (sT2, dl))
            e("s_add_u32 s%d, s%d, s%d" % (dst, src, dl)); e("s_addc_u32 s%d, s%d, s%d" % (dst + 1, src + 1, sT2))
            e("s_and_b32 s%d, s%d, 0xffff" % (dst + 1, dst + 1))
        self.lab(d)

    def kphase(self):
        e = self.e
        if self.p2n == 1:
            self.now(sTm0)
        vQ, vZ = 16, 17
        if not self.klin:
            e("v_bfe_u32 v%d, v%d, 3, 1" % (vPh, vL)); e("v_lshlrev_b32 v%d, 12, v%d" % (vPh, vPh))
            e("v_lshrrev_b32 v%d, 4, v%d" % (vAd, vL)); e("v_lshl_add_u32 v%d, v%d, 7, v%d" % (vPh, vAd, vPh))
            e("v_lshlrev_b32 v%d, 4, v%d" % (vQ, vAd))
            e("v_and_b32 v%d, 7, v%d" % (vAd, vL)); e("v_lshl_add_u32 v%d, v%d, 4, v%d" % (vPh, vAd, vPh))
        else:
            e("v_bfe_u32 v%d, v%d, 3, 1" % (vPh, vL)); e("v_lshlrev_b32 v%d, 12, v%d" % (vPh, vPh))
            e("v_and_b32 v%d, 7, v%d" % (vAd, vL)); e("v_lshl_add_u32 v%d, v%d, 9, v%d" % (vPh, vAd, vPh))
            e("v_lshrrev_b32 v%d, 4, v%d" % (vQ, vL)); e("v_and_b32 v18, 3, v%d" % vL); e("v_xor_b32 v18, v18, v%d" % vQ)
            e("v_lshl_add_u32 v%d, v18, 4, v%d" % (vPh, vPh))
            e("v_bfe_u32 v18, v%d, 2, 1" % vL); e("v_lshlrev_b32 v18, 6, v18")
            e("v_sub_u32 v19, v%d, v18" % vPh); e("v_add_u32 v%d, v%d, v18" % (vPh, vPh)); e("v_mov_b32 v18, v19")
            e("v_lshlrev_b32 v%d, 4, v%d" % (vQ, vQ))
        e("s_lshl_b32 s%d, s%d, 9" % (sT0, sWave)); e("s_add_u32 s%d, s%d, %d" % (sT0, sT0, L_Q))
        e("v_add_u32 v%d, s%d, v%d" % (vQ, sT0, vQ))
        e("v_mov_b32 v%d, %d" % (vZ, L_Z))
        for i in range(8):
            e("v_mov_b32 v%d, 0" % (vSC + i))
        first_skip = self.nl("Kskip")
        e("s_mov_b32 s%d, 0" % sT15)
        e("s_cmp_eq_u32 s%d, 0" % sPass)
        e("s_cbranch_scc1 L_k0")
        if self.q1w:
            e("s_cmp_eq_u32 s%d, 0" % sWave); e("s_cbranch_scc1 %s" % first_skip)
        e("s_waitcnt vmcnt(0)")
        e("s_branch %s" % first_skip)
        parts = {2: [(0, 0, 0), (1, 1, 12), (2, 1, 0)], 3: [(0, 0, 0), (1, 1, 14), (2, 1, 0)]}.get(self.ilv, [(0, 0, 0), (1, 1, 0)])
        for (pi, a, stop) in parts:
            if pi == 2:
                self.xch_publish()
            self.lab("L_k%d" % pi)
            thr = int(self.o.get("thr", 0))
            if thr:
                lt = self.nl("Lthr")
                e("s_and_b32 s%d, s%d, %d" % (sT0, sT15, thr - 1)); e("s_and_b32 s%d, s2, 1" % sT1); e("s_or_b32 s%d, s%d, s%d" % (sT0, sT0, sT1))
                e("s_or_b32 s%d, s%d, s%d" % (sT0, sT0, sPass))
                e("s_cmp_eq_u32 s%d, 0" % sT0); e("s_cbranch_scc0 %s" % lt)
                e("s_waitcnt vmcnt(0)")
                self.lab(lt)
            self.step_issue()
            if pi == 0:
                self.lab(first_skip)
            e("s_lshl_b64 %s, %s, s%d" % (sp(sMd), sp(sM[0]), sT15))
            e("v_add_u32 v%d, s%d, v%d" % (vAd, sCs, vPh))
            if self.klin:
                e("v_add_u32 v19, s%d, v18" % sCs)
            e("v_cndmask_b32 v%d, v%d, v%d, %s" % (vPa, vZ, vQ, sp(sMd)))
            for b in range(0 if self.o.get("nocomp") else 2):
                for k in range(4):
                    c8 = 4 * b + k
                    e("ds_read_b128 v[%d:%d], v%d offset:%d" % (32 + 4 * k, 35 + 4 * k, vPa, c8 * 64))
                    if self.klin:
                        e("ds_read_b128 v[%d:%d], v%d offset:%d" % (48 + 4 * k, 51 + 4 * k, (19 if c8 & 1 else vAd), c8 * 64))
                    else:
                        e("ds_read_b128 v[%d:%d], v%d offset:%d" % (48 + 4 * k, 51 + 4 * k, vAd, c8 * 512))
                e("s_waitcnt lgkmcnt(0)")
                for k in range(4):
                    e("v_mfma_f32_16x16x32_bf16 %s, %s, %s, %s" % (vr(vSC + 4 * a, 4), vr(32 + 4 * k, 4), vr(48 + 4 * k, 4), vr(vSC + 4 * a, 4)))
            self.adv_cs()
            e("s_add_u32 s%d, s%d, 1" % (sT15, sT15))
            if stop:
                e("s_cmp_lg_u32 s%d, %d" % (sT15, stop))
            else:
                e("s_and_b32 s%d, s%d, 15" % (sT15, sT15))
            e("s_cbranch_scc1 L_k%d" % pi)
            if pi == 0:
                self.stamp(13)
        self.nop(8)

    def xch_publish(self):
        e = self.e
        S = vSC
        nx = self.nl("Lxp")
        e("s_cmp_eq_u32 s%d, 1" % sPass); e("s_cbranch_scc0 %s" % nx)
        e("s_cmp_eq_u32 s%d, 1" % sXch); e("s_cbranch_scc0 %s" % nx)
        self.nop(8)
        for i in range(0, 8, 2):
            e("v_cvt_pk_bf16_f32 v%d, v%d, v%d" % (20 + i // 2, S + i, S + i + 1))
        e("v_mov_b32 v25, -2"); e("v_lshlrev_b32 v24, 4, v%d" % vL)
        for d in range(4):
            e("v_min_u32 v%d, v%d, v25" % (20 + d, 20 + d))
        e("s_lshl_b32 s%d, s2, 12" % sT0); e("s_lshl_b32 s%d, s%d, 10" % (sT1, sWave))
        self.addr(sA, pWs, M7, [sT0, sT1])
        e("global_store_dwordx4 v24, v[20:23], %s sc1" % sp(sA))
        self.lab(nx)

    def softmax(self):
        e = self.e
        S = vSC
        if self.p2n == 1:
            self.now(sTm0, sTm0)
        for i in range(0, 8, 2):
            e("v_cvt_pk_bf16_f32 v%d, v%d, v%d" % (36 + i // 2, S + i, S + i + 1))
        if self.p2n:
            nx = self.nl("Lnx")
            e("s_cmp_eq_u32 s%d, 1" % sPass); e("s_cbranch_scc0 %s" % nx)
            e("s_cmp_eq_u32 s%d, 1" % sXch); e("s_cbranch_scc0 %s" % nx)
            e("v_lshlrev_b32 v40, 4, v%d" % vL)
            if self.ilv < 2:
                e("v_mov_b32 v41, -2")
                for d in range(4):
                    e("v_min_u32 v%d, v%d, v41" % (44 + d, 36 + d))
                e("s_lshl_b32 s%d, s2, 12" % sT0); e("s_lshl_b32 s%d, s%d, 10" % (sT1, sWave))
                self.addr(sA, pWs, M7, [sT0, sT1])
                e("global_store_dwordx4 v40, v[44:47], %s sc1" % sp(sA))
            e("s_xor_b32 s%d, s2, 4" % sT0); e("s_lshl_b32 s%d, s%d, 12" % (sT0, sT0)); e("s_xor_b32 s%d, s%d, 2" % (sT1, sWave)); e("s_lshl_b32 s%d, s%d, 10" % (sT1, sT1))
            self.addr(sA, pWs, M7, [sT0, sT1])
            self.poll(["global_load_dwordx4 v[48:51], v40, %s sc1" % sp(sA)], [48, 49, 50, 51], 52, "Px7")
            if self.ilv == 3:
                H = "0xffff0000"
                e("v_mov_b32 v52, %s" % H); e("v_mov_b32 v54, -1"); e("v_mov_b32 v55, -1")
                e("s_mov_b64 exec, 0xffff"); e("v_mov_b32 v52, 0"); e("v_mov_b32 v54, %s" % H); e("v_mov_b32 v55, %s" % H)
                e("s_mov_b32 exec_lo, 0"); e("s_mov_b32 exec_hi, 0xffff0000"); e("v_mov_b32 v55, 0")
                e("s_mov_b64 exec, -1")
                e("v_bfi_b32 v36, v52, v48, v36"); e("v_bfi_b32 v37, v52, v49, v37")
                e("v_bfi_b32 v38, v54, v50, v38"); e("v_bfi_b32 v39, v55, v51, v39")
            elif self.ilv == 2:
                e("v_mov_b32 v52, -1"); e("v_mov_b32 v53, 0xffff"); e("v_mov_b32 v54, -1"); e("v_mov_b32 v55, 0xffff")
                e("s_mov_b64 exec, 0xffff"); e("v_mov_b32 v52, 0"); e("v_mov_b32 v53, 0")
                e("s_mov_b32 exec_lo, 0"); e("s_mov_b32 exec_hi, 0xffff0000"); e("v_mov_b32 v54, 0"); e("v_mov_b32 v55, 0")
                e("s_mov_b64 exec, -1")
                e("v_bfi_b32 v36, v52, v48, v36"); e("v_bfi_b32 v37, v53, v49, v37")
                e("v_bfi_b32 v38, v54, v50, v38"); e("v_bfi_b32 v39, v55, v51, v39")
            elif self.ilv:
                e("v_mov_b32 v52, 0xffff0000"); e("v_mov_b32 v53, 0xffff0000")
                e("s_mov_b64 exec, 0xffff"); e("v_mov_b32 v52, 0")
                e("s_mov_b32 exec_lo, 0"); e("s_mov_b32 exec_hi, -1"); e("v_mov_b32 v53, -1")
                e("s_mov_b64 exec, -1")
                e("v_bfi_b32 v36, v52, v48, v36"); e("v_bfi_b32 v37, v52, v49, v37")
                e("v_bfi_b32 v38, v53, v50, v38"); e("v_bfi_b32 v39, v53, v51, v39")
            else:
                e("s_mov_b32 exec_lo, 0"); e("s_mov_b32 exec_hi, 0xffff0000")
                e("v_mov_b32 v37, v49")
                e("s_mov_b64 exec, -1")
                e("v_mov_b32 v38, v50"); e("v_mov_b32 v39, v51")
            self.lab(nx)
        for i in range(0, 8, 2):
            e("v_lshlrev_b32 v%d, 16, v%d" % (S + i, 36 + i // 2)); e("v_and_b32 v%d, 0xffff0000, v%d" % (S + i + 1, 36 + i // 2))
        e("v_max3_f32 v32, v%d, v%d, v%d" % (S, S + 1, S + 2)); e("v_max3_f32 v32, v32, v%d, v%d" % (S + 3, S + 4))
        e("v_max3_f32 v32, v32, v%d, v%d" % (S + 5, S + 6)); e("v_max_f32 v32, v32, v%d" % (S + 7))
        self.allreduce64(32, 33, "v_max_f32")
        e("s_lshl_b32 s%d, s%d, 2" % (sT0, sWave)); e("s_add_u32 s%d, s%d, %d" % (sT0, sT0, L_SM))
        e("v_mov_b32 v33, s%d" % sT0)
        e("ds_write_b32 v33, v32")
        if self.p2n == 1:
            e("s_lshl_b32 s%d, s%d, 3" % (sT0, sWave)); e("s_add_u32 s%d, s%d, %d" % (sT0, sT0, L_SM + 32))
            e("v_mov_b32 v33, s%d" % sT0); e("v_mov_b32 v34, s%d" % sTm1); e("v_mov_b32 v35, s%d" % sTm0)
            e("ds_write_b64 v33, v[34:35]")
        e("s_waitcnt lgkmcnt(0)")
        e("s_barrier")
        e("v_mov_b32 v33, %d" % L_SM)
        e("ds_read_b128 v[36:39], v33")
        if self.p2n == 1:
            nv = self.nl("Lnv")
            e("s_cmp_eq_u32 s%d, 0" % sPass); e("s_cbranch_scc0 %s" % nv)
            e("s_cmp_eq_u32 s%d, 0" % sWave); e("s_cbranch_scc0 %s" % nv)
            e("ds_read_b128 v[40:43], v33 offset:32"); e("ds_read_b128 v[44:47], v33 offset:48")
            e("s_waitcnt lgkmcnt(0)")
            e("v_add_u32 v40, v40, v42"); e("v_add_u32 v41, v41, v43"); e("v_add_u32 v44, v44, v46"); e("v_add_u32 v45, v45, v47")
            e("s_lshr_b32 s%d, s2, 1" % sT0); e("s_lshr_b32 s%d, s2, 2" % sT1); e("s_xor_b32 s%d, s%d, s%d" % (sT0, sT0, sT1)); e("s_and_b32 s%d, s%d, 1" % (sT0, sT0))
            e("v_cmp_ge_u32 vcc, v40, v44"); self.nop(2); e("v_cndmask_b32 v40, 0, 1, vcc")
            e("v_cmp_ge_u32 vcc, v41, v45"); self.nop(2); e("v_cndmask_b32 v41, 0, 1, vcc")
            e("v_xor_b32 v40, s%d, v40" % sT0); e("v_xor_b32 v41, s%d, v41" % sT0)
            e("v_cmp_eq_u32 vcc, 0, v%d" % vL); self.nop(2); e("v_cndmask_b32 v40, v40, v41, vcc")
            e("v_lshlrev_b32 v41, 2, v%d" % vL); e("v_add_u32 v41, 16, v41")
            e("s_mov_b64 exec, 3")
            e("global_atomic_add v41, v40, %s" % sp(pDbg))
            e("s_mov_b64 exec, -1")
            self.lab(nv)
        e("s_waitcnt lgkmcnt(0)")
        e("v_max3_f32 v32, v36, v37, v38"); e("v_max_f32 v32, v32, v39")
        e("s_mov_b32 s%d, 0x%x" % (sT0, C_EXP))
        for i in range(8):
            e("v_sub_f32 v%d, v%d, v32" % (S + i, S + i))
        for i in range(8):
            e("v_mul_f32 v%d, s%d, v%d" % (S + i, sT0, S + i))
        for i in range(8):
            e("v_exp_f32 v%d, v%d" % (S + i, S + i))
        self.nop(1)
        e("v_lshrrev_b32 v33, 4, v%d" % vL); e("v_lshlrev_b32 v33, 7, v33")
        e("v_and_b32 v34, 15, v%d" % vL); e("v_lshl_add_u32 v33, v34, 1, v33")
        e("s_lshl_b32 s%d, s%d, 10" % (sT0, sWave)); e("s_add_u32 s%d, s%d, %d" % (sT0, sT0, L_P))
        e("v_add_u32 v33, s%d, v33" % sT0)
        for i in range(0, 8, 2):
            a, r = i >> 2, i & 3
            e("v_cvt_pk_bf16_f32 v%d, v%d, v%d" % (36 + i // 2, S + i, S + i + 1))
            e("ds_write_b16 v33, v%d offset:%d" % (36 + i // 2, a * 512 + r * 32))
            e("ds_write_b16_d16_hi v33, v%d offset:%d" % (36 + i // 2, a * 512 + (r + 1) * 32))
        e("v_add_f32 v34, v%d, v%d" % (S, S + 1)); e("v_add_f32 v35, v%d, v%d" % (S + 2, S + 3))
        e("v_add_f32 v40, v%d, v%d" % (S + 4, S + 5)); e("v_add_f32 v41, v%d, v%d" % (S + 6, S + 7))
        e("v_add_f32 v34, v34, v35"); e("v_add_f32 v40, v40, v41"); e("v_add_f32 v34, v34, v40")
        self.allreduce64(34, 35, "v_add_f32")
        e("v_mov_b32 v%d, v34" % vLsum)
        e("v_mov_b32 v9, v32")
        e("s_waitcnt lgkmcnt(0)")

    def vphase(self):
        e = self.e
        e("v_lshrrev_b32 v%d, 5, v%d" % (vPh, vL)); e("v_lshlrev_b32 v%d, 12, v%d" % (vPh, vPh))
        e("v_and_b32 v%d, 31, v%d" % (vAd, vL)); e("v_lshl_add_u32 v%d, v%d, 3, v%d" % (vPh, vAd, vPh))
        e("v_lshrrev_b32 v%d, 4, v%d" % (vPa, vL)); e("v_lshlrev_b32 v%d, 3, v%d" % (vPa, vPa))
        e("s_lshl_b32 s%d, s%d, 10" % (sT0, sWave)); e("s_add_u32 s%d, s%d, %d" % (sT0, sT0, L_P))
        e("v_add_u32 v%d, s%d, v%d" % (vPa, sT0, vPa))
        for i in range(16):
            e("v_mov_b32 v%d, 0" % (vACC + i))
        acc = lambda T4: vr(vACC + 4 * T4, 4)
        after = {1: 0, 3: 1, 6: 2, 8: 3, 11: 4, 13: 5, 16: 6}
        pf_tiles = tuple(int(x) for x in str(self.o.get("wpft", "14,16")).split(",")) if (self.wpf and self.gapw) else ()
        cpf_tiles = tuple(int(x) for x in str(self.o.get("cpft", "9,11")).split(",")) if int(self.o.get("cpf", 1)) else ()
        if pf_tiles:
            self.wpf_setup()
        if cpf_tiles:
            e("s_getpc_b64 s[18:19]")
            self.lab("L_pcref")
            e("s_add_u32 s18, s18, L_gapcode-L_pcref"); e("s_addc_u32 s19, s19, 0")
            e("v_lshlrev_b32 v46, 7, v%d" % vL)
        any_x = bool(pf_tiles) or bool(cpf_tiles)
        pend = 0
        for i in range(NSTR_T):
            T = NRES_T + i
            if self.ilv:
                T = self.strT(i)
            if not any_x:
                self.step_issue()
            else:
                deep = int(self.o.get("deepV", 99))
                Rv = 4 if i >= deep else self.R
                hist = getattr(self, "_h", [])
                if i == deep:
                    lsk = self.nl("Ldp")
                    e("s_cmp_eq_u32 s%d, 0" % sPass); e("s_cbranch_scc0 %s" % lsk)
                    self.issue(); self.issue()
                    self.lab(lsk)
                    hist += [0, 0]
                w = 4 * (Rv - 1)
                for half in range(2):
                    ex = sum(hist[-(Rv - 1):]) if hist else 0
                    e("s_waitcnt vmcnt(%d)" % (w + ex))
                    self.issue()
                    if half == 0 and i in pf_tiles:
                        e("buffer_load_dword v44, v45, %s, s%d offen" % (sp(sWS, 4), sWoff))
                        e("s_add_u32 s%d, s%d, s%d" % (sWoff, sWoff, sWstep))
                        hist.append(1)
                    elif half == 0 and i in cpf_tiles:
                        e("v_min_u32 v47, L_endcode-L_gapcode-4, v46")
                        e("global_load_dword v47, v47, s[18:19]")
                        e("v_add_u32 v46, 8192, v46")
                        hist.append(1)
                    else:
                        hist.append(0)
                self._h = hist
            e("v_add_u32 v%d, s%d, v%d" % (vAd, sCs, vPh))
            e("ds_read_b64 v[32:33], v%d offset:%d" % (vPa, T * 32))
            for b in range(0 if self.o.get("nocomp") else 2):
                us = (2 * b, 2 * b + 1)
                k = 0
                for u in us:
                    for T4 in range(4):
                        e("ds_read_b64_tr_b16 v[%d:%d], v%d offset:%d" % (48 + 2 * k, 49 + 2 * k, vAd, (4 * T4 + u) * 256))
                        k += 1
                if b == 0:
                    e("s_waitcnt lgkmcnt(8)")
                for j, u in enumerate(us):
                    e("v_cndmask_b32 v%d, 0, v32, %s" % (36 + 2 * j, sp(sM[u])))
                    e("v_cndmask_b32 v%d, 0, v33, %s" % (37 + 2 * j, sp(sM[u])))
                e("s_waitcnt lgkmcnt(0)")
                k = 0
                for j, u in enumerate(us):
                    for T4 in range(4):
                        e("v_mfma_f32_16x16x16_bf16 %s, %s, %s, %s" % (acc(T4), vr(36 + 2 * j, 2), vr(48 + 2 * k, 2), acc(T4)))
                        k += 1
            self.adv_cs()
            if self.o.get("vstamps") and i in (5, 11, 14):
                self.stamp({5: 14, 11: 15, 14: 12}[i])
            if i in after and not self.o.get("nocomp"):
                self.res_pair(after[i])
        self.nop(8)

    def wpf_setup(self):
        e = self.e
        d = self.nl("Lpf"); lb = self.nl("LpfB")
        e("s_mov_b32 s%d, 0x20000" % (sWS + 3)); e("s_mov_b32 s%d, 0" % (sWS + 2))
        e("s_mov_b32 s%d, s%d" % (sWS, pW2)); e("s_and_b32 s%d, s%d, 0xffff" % (sWS + 1, pW2 + 1))
        e("s_mov_b32 s%d, 0" % sWoff); e("s_mov_b32 s%d, 0" % sWstep); e("v_mov_b32 v45, 0")
        e("s_cmp_eq_u32 s%d, 0" % sPass); e("s_cbranch_scc0 %s" % d)
        e("s_cmp_eq_u32 s%d, 2" % sRole); e("s_cbranch_scc1 %s" % lb)
        e("s_cmp_eq_u32 s%d, 3" % sRole); e("s_cbranch_scc0 %s" % d)
        e("s_mov_b32 s%d, %d" % (sWS + 2, 1792 * 896))
        e("v_mul_u32_u24 v45, 896, v%d" % vL)
        e("s_and_b32 s%d, s%d, 3" % (sT0, sIdx)); e("s_mul_i32 s%d, s%d, 448" % (sT0, sT0)); e("s_lshl_b32 s%d, s%d, 7" % (sT1, sWave)); e("s_add_u32 s%d, s%d, s%d" % (sT0, sT0, sT1))
        e("s_mul_i32 s%d, s%d, 896" % (sWoff, sT0)); e("s_lshr_b32 s%d, s%d, 2" % (sT1, sIdx)); e("s_lshl_b32 s%d, s%d, 7" % (sT1, sT1)); e("s_add_u32 s%d, s%d, s%d" % (sWoff, sWoff, sT1))
        e("s_mov_b32 s%d, %d" % (sWstep, 64 * 896))
        e("s_branch %s" % d)
        self.lab(lb)
        e("s_bitcmp1_b32 s%d, 0" % sIdx)
        e("s_cselect_b32 s%d, s%d, s%d" % (sWS, pW3, pW1)); e("s_cselect_b32 s%d, s%d, s%d" % (sWS + 1, pW3 + 1, pW1 + 1))
        e("s_and_b32 s%d, s%d, 0xffff" % (sWS + 1, sWS + 1))
        e("s_mov_b32 s%d, %d" % (sWS + 2, 448 * 3584))
        e("v_mul_u32_u24 v45, 3584, v%d" % vL)
        e("s_lshl_b32 s%d, s%d, 7" % (sT1, sWave)); e("s_mul_i32 s%d, s%d, 3584" % (sWoff, sT1))
        e("s_lshr_b32 s%d, s%d, 1" % (sT1, sIdx)); e("s_lshl_b32 s%d, s%d, 7" % (sT1, sT1)); e("s_add_u32 s%d, s%d, s%d" % (sWoff, sWoff, sT1))
        e("s_mov_b32 s%d, %d" % (sWstep, 64 * 3584))
        self.lab(d)

    def res_pair(self, m):
        e = self.e
        acc = lambda T4: vr(vACC + 4 * T4, 4)
        if self.ilv:
            e("ds_read2_b64 v[32:35], v%d offset0:%d offset1:%d" % (vPa, 4 * self.resT(2 * m), 4 * self.resT(2 * m + 1)))
        else:
            e("ds_read2_b64 v[32:35], v%d offset0:%d offset1:%d" % (vPa, 8 * m, 8 * m + 4))
        e("s_waitcnt lgkmcnt(0)")
        for u in range(4):
            A = 36 + 4 * (u & 1)
            for d in range(4):
                e("v_cndmask_b32 v%d, 0, v%d, %s" % (A + d, 32 + d, sp(sM[u])))
            self.nop(2)
            for T4 in range(4):
                e("v_mfma_f32_16x16x32_bf16 %s, %s, %s, %s" % (acc(T4), vr(A, 4), res_reg(m, 4 * T4 + u), acc(T4)))

    def combine_publish(self):
        e = self.e
        self.lab("L_gapcode")
        for u in range(4):
            X, Y, Z, W = (vACC + 4 * t + u for t in range(4))
            e("v_permlane16_swap_b32 v%d, v%d" % (X, Y))
            e("v_permlane16_swap_b32 v%d, v%d" % (Z, W))
        self.nop(2)
        for u in range(4):
            e("v_permlane32_swap_b32 v%d, v%d" % (vACC + u, vACC + 8 + u))
        e("v_lshrrev_b32 v32, 4, v%d" % vL); e("v_lshlrev_b32 v32, 8, v32")
        e("v_and_b32 v33, 15, v%d" % vL); e("v_lshl_add_u32 v32, v33, 2, v32")
        e("s_lshl_b32 s%d, s%d, 10" % (sT0, sWave)); e("s_add_u32 s%d, s%d, %d" % (sT0, sT0, L_P))
        e("v_add_u32 v32, s%d, v32" % sT0)
        for u in range(4):
            e("ds_write_b32 v32, v%d offset:%d" % (vACC + u, u * 64))
        e("s_lshl_b32 s%d, s%d, 2" % (sT0, sWave)); e("s_add_u32 s%d, s%d, %d" % (sT0, sT0, L_SM + 16))
        e("v_mov_b32 v33, s%d" % sT0)
        e("ds_write_b32 v33, v%d" % vLsum)
        e("s_waitcnt lgkmcnt(0)")
        e("s_barrier")
        e("s_lshl_b32 s%d, s%d, 8" % (sT0, sWave)); e("s_add_u32 s%d, s%d, %d" % (sT0, sT0, L_P))
        e("v_lshlrev_b32 v40, 2, v%d" % vL); e("v_add_u32 v32, s%d, v40" % sT0)
        for w in range(4):
            e("ds_read_b32 v%d, v32 offset:%d" % (34 + w, w * 1024))
        e("v_mov_b32 v33, %d" % (L_SM + 16))
        e("ds_read_b128 v[44:47], v33")
        e("s_waitcnt lgkmcnt(0)")
        e("v_add_f32 v34, v34, v35"); e("v_add_f32 v36, v36, v37"); e("v_add_f32 v34, v34, v36")
        e("v_add_f32 v44, v44, v45"); e("v_add_f32 v46, v46, v47"); e("v_add_f32 v44, v44, v46")
        e("v_mov_b32 v41, -2")
        e("v_min_u32 v34, v34, v41")
        e("v_and_b32 v42, 1, v%d" % vL); e("v_cmp_eq_u32 vcc, 1, v42"); self.nop(2)
        e("v_cndmask_b32 v43, v9, v44, vcc"); e("v_min_u32 v43, v43, v41")
        e("v_lshlrev_b32 v42, 2, v42"); e("v_add_u32 v42, 256, v42")
        e("s_lshl_b32 s%d, s%d, 2" % (sT0, sH)); e("s_add_u32 s%d, s%d, s%d" % (sT0, sT0, sWave)); e("s_lshl_b32 s%d, s%d, 4" % (sT0, sT0))
        e("s_add_u32 s%d, s%d, s%d" % (sT0, sT0, sC)); e("s_mul_i32 s%d, s%d, %d" % (sT0, sT0, M1_SLOT))
        e("s_mul_i32 s%d, s%d, 0x%x" % (sT1, sPass, M1_R))
        self.addr(sA, pWs, M1, [sT0, sT1])
        e("global_store_dword v40, v34, %s sc1" % sp(sA))
        if int(self.o.get("ml2", 0)):
            e("s_mov_b64 exec, 3")
        e("global_store_dword v42, v43, %s sc1" % sp(sA))
        if int(self.o.get("ml2", 0)):
            e("s_mov_b64 exec, -1")
        e("s_barrier")

    def l2pf_ilv(self, ntiles):
        if not ntiles or not self.ilv:
            return
        e = self.e
        D = self.nl("Lpfd")
        e("s_cmp_eq_u32 s%d, 0" % sPass); e("s_cbranch_scc0 %s" % D)
        tiles = [t for t in (3, 4, 6, 8, 10, 12)][:ntiles + 1]
        e("v_lshrrev_b32 v6, 5, v%d" % vL); e("v_lshlrev_b32 v6, 14, v6")
        e("v_and_b32 v5, 31, v%d" % vL); e("v_lshlrev_b32 v5, 7, v5"); e("v_add_u32 v5, 3072, v5")
        first = True
        for k in range(ntiles):
            e("s_cmp_eq_u32 s%d, 8" % sNS); e("s_cselect_b32 s%d, %d, %d" % (sT0, 2 * tiles[k + 1], 2 * tiles[k]))
            e("s_lshl_b32 s%d, s%d, 11" % (sT1, sT0)); e("s_xor_b32 s%d, s%d, s%d" % (sT1, sT1, sWb)); e("s_and_b32 s%d, s%d, 8192" % (sT1, sT1))
            e("s_lshl_b32 s%d, s%d, 14" % (sT0, sT0)); e("s_add_u32 s%d, s%d, s%d" % (sT0, sT0, sRot))
            e("v_add_u32 v7, s%d, v6" % sT0); e("v_and_b32 v7, 0x%x, v7" % (64 * self.stride - 1)); e("v_add_u32 v7, v7, v5")
            if int(self.o.get("pfpace", 1)):
                e("s_waitcnt vmcnt(0)")
            e("buffer_load_dword v8, v7, %s, s%d offen" % (sp(sCUR, 4), sT1))
        e("s_waitcnt vmcnt(0)")
        self.lab(D)

    def topup(self, tp=None):
        e = self.e
        L = self.nl("Tu"); D = self.nl("Tud")
        e("s_cmp_eq_u32 s%d, 0" % sPass); e("s_cbranch_scc0 %s" % D)
        if int(self.o.get("tlbp", 0)):
            e("s_xor_b32 s%d, s2, 4" % sT0); e("s_sub_i32 s%d, s%d, s2" % (sT0, sT0)); e("s_lshl_b32 s%d, s%d, 20" % (sT0, sT0)); e("s_ashr_i32 s%d, s%d, 31" % (sT1, sT0))
            e("v_mov_b32 v26, 3072")
            for base in (sKB, sVB):
                e("s_add_u32 s%d, s%d, s%d" % (sA, base, sT0)); e("s_addc_u32 s%d, s%d, s%d" % (sA + 1, base + 1, sT1))
                e("global_load_dword v27, v26, %s nt" % sp(sA))
        e("s_sub_u32 s%d, s%d, %d" % (sT5, sNS, 4 if int(self.o.get("deepV", 99)) < NSTR_T else self.R))
        self.lab(L)
        if tp is None:
            tp = int(self.o.get("tpace", 1))
        if tp:
            e("s_waitcnt vmcnt(%d)" % (4 * (tp - 1)))
        self.issue()
        e("s_sub_u32 s%d, s%d, 1" % (sT5, sT5))
        e("s_cmp_lg_u32 s%d, 0" % sT5); e("s_cbranch_scc1 %s" % L)
        if self.l2pf:
            e("v_and_b32 v5, 31, v%d" % vL); e("v_lshlrev_b32 v5, 7, v5"); e("v_add_u32 v5, 3072, v5")
            e("v_lshrrev_b32 v6, 5, v%d" % vL); e("v_mul_u32_u24 v6, %d, v6" % self.stride); e("v_add_u32 v6, v5, v6")
            e("s_mov_b32 s%d, s%d" % (sT5, sOff))
            for k in range(self.l2pf):
                e("buffer_load_dword v5, v6, %s, s%d offen%s" % (sp(sCUR, 4), sT5, self.l2pol))
                e("s_add_u32 s%d, s%d, %d" % (sT5, sT5, 2 * self.stride))
                if self.stag:
                    e("s_and_b32 s%d, s%d, 0x%x" % (sT5, sT5, 64 * self.stride - 1))
        self.lab(D)

    def stage_S1(self):
        e = self.e
        e("s_mul_i32 s%d, s%d, %d" % (sT0, sIdx, 16 * M1_SLOT)); e("s_mul_i32 s%d, s%d, 0x%x" % (sT1, sPass, M1_R))
        self.addr(sA, pWs, M1 + 2304, [sT0, sT1])
        e("v_lshrrev_b32 v10, 4, v%d" % vL); e("v_mul_u32_u24 v10, %d, v10" % M1_SLOT)
        e("v_and_b32 v11, 15, v%d" % vL); e("v_lshl_add_u32 v11, v11, 4, v10")
        e("v_add_u32 v10, 256, v10")
        loads = []; regs = []
        for j in range(4):
            off = j * 4 * M1_SLOT - 2304
            loads.append("global_load_dwordx4 v[%d:%d], v11, %s offset:%d sc1" % (32 + 4 * j, 35 + 4 * j, sp(sA), off))
            loads.append("global_load_dwordx2 v[%d:%d], v10, %s offset:%d sc1" % (48 + 2 * j, 49 + 2 * j, sp(sA), off))
        self.poll(loads, list(range(32, 56)), 56, "Ps1")
        self.stamp(8)
        e("v_max3_f32 v56, v48, v50, v52"); e("v_max_f32 v56, v56, v54")
        self.xrows(56, 57, "v_max_f32")
        e("s_mov_b32 s%d, 0x%x" % (sT0, C_EXP))
        for j in range(4):
            e("v_sub_f32 v%d, v%d, v56" % (48 + 2 * j, 48 + 2 * j))
        for j in range(4):
            e("v_mul_f32 v%d, s%d, v%d" % (48 + 2 * j, sT0, 48 + 2 * j))
        for j in range(4):
            e("v_exp_f32 v%d, v%d" % (48 + 2 * j, 48 + 2 * j))
        self.nop(1)
        e("v_mul_f32 v56, v48, v49")
        for j in range(1, 4):
            e("v_fmac_f32 v56, v%d, v%d" % (48 + 2 * j, 49 + 2 * j))
        for d in range(4):
            e("v_mul_f32 v%d, v48, v%d" % (32 + d, 32 + d))
        for j in range(1, 4):
            for d in range(4):
                e("v_fmac_f32 v%d, v%d, v%d" % (32 + d, 48 + 2 * j, 32 + 4 * j + d))
        self.xrows(56, 57, "v_add_f32")
        e("v_rcp_f32 v56, v56")
        e("v_permlane32_swap_b32 v32, v34"); e("v_permlane32_swap_b32 v33, v35"); self.nop(1)
        e("v_add_f32 v32, v32, v34"); e("v_add_f32 v33, v33, v35")
        e("v_mov_b32 v34, v32"); e("v_mov_b32 v35, v33"); self.nop(2)
        e("v_permlane16_swap_b32 v32, v34"); e("v_permlane16_swap_b32 v33, v35"); self.nop(1)
        e("v_add_f32 v32, v32, v34"); e("v_add_f32 v33, v33, v35")
        e("v_mul_f32 v32, v32, v56"); e("v_mul_f32 v33, v33, v56")
        e("v_cvt_pk_bf16_f32 v32, v32, v33")
        e("v_mov_b32 v41, -2"); e("v_min_u32 v32, v32, v41")
        e("v_and_b32 v34, 15, v%d" % vL); e("v_lshlrev_b32 v34, 3, v34")
        e("v_lshrrev_b32 v35, 5, v%d" % vL); e("v_lshl_add_u32 v34, v35, 2, v34"); e("v_add_u32 v34, s%d, v34" % sVec)
        e("ds_write_b32 v34, v32")
        if self.o.get("dbg_a"):
            e("s_lshl_b32 s%d, s%d, 13" % (sT0, sPass)); e("s_lshl_b32 s%d, s%d, 7" % (sT1, sIdx))
            self.addr(sA, pWs, 0xC0000, [sT0, sT1])
            e("v_subrev_u32 v35, s%d, v34" % sVec)
            e("global_store_dword v35, v32, %s" % sp(sA))
        self.lane_rc()
        e("v_lshlrev_b32 v6, 3, v10"); e("v_add_u32 v6, s%d, v6" % sVec)
        e("v_lshl_add_u32 v7, v10, 2, v11"); e("v_mul_u32_u24 v7, %d, v7" % O_ROW); e("v_lshl_add_u32 v7, v12, 3, v7")
        e("s_mul_i32 s%d, s%d, 224" % (sT0, sWave)); e("s_add_u32 s%d, s%d, %d" % (sT0, sT0, L_W)); e("v_add_u32 v7, s%d, v7" % sT0)
        e("s_waitcnt lgkmcnt(0)")
        e("ds_read2_b64 v[36:39], v6 offset0:0 offset1:4"); e("ds_read2_b64 v[40:43], v6 offset0:8 offset1:12")
        for c0 in range(0, 7, 2):
            cts = [c for c in (c0, c0 + 1) if c < 7]
            k = 0
            for ct in cts:
                for m in range(2):
                    e("ds_read_b64_tr_b16 v[%d:%d], v7 offset:%d" % (48 + 4 * k, 49 + 4 * k, m * 32 * O_ROW + ct * 32))
                    e("ds_read_b64_tr_b16 v[%d:%d], v7 offset:%d" % (50 + 4 * k, 51 + 4 * k, (m * 32 + 16) * O_ROW + ct * 32))
                    k += 1
            e("s_waitcnt lgkmcnt(0)")
            k = 0
            for ct in cts:
                for m in range(2):
                    c = "0" if m == 0 else vr(8 + 4 * ct, 4)
                    e("v_mfma_f32_16x16x32_bf16 %s, %s, %s, %s" % (vr(8 + 4 * ct, 4), vr(36 + 4 * m, 4), vr(48 + 4 * k, 4), c))
                    k += 1
        self.nop(8)
        for row in range(1, 4):
            e("s_mov_b32 exec_lo, 0x%x" % (0xffff0000 if row == 1 else 0))
            e("s_mov_b32 exec_hi, 0x%x" % (0 if row == 1 else (0xffff << (16 * (row - 2)))))
            e("v_mov_b32 v8, v%d" % (8 + 4 * row))
            if row < 3:
                e("v_mov_b32 v24, v%d" % (24 + 4 * row))
        e("s_mov_b64 exec, -1")
        e("v_mov_b32 v41, -2"); e("v_min_u32 v8, v8, v41"); e("v_min_u32 v24, v24, v41")
        e("s_mul_i32 s%d, s%d, %d" % (sT0, sIdx, M2_SLOT)); e("s_mul_i32 s%d, s%d, 0x%x" % (sT1, sPass, M2_R)); e("s_mul_i32 s%d, s%d, 448" % (sT2, sWave))
        self.addr(sA, pWs, M2, [sT0, sT1, sT2])
        e("v_lshlrev_b32 v40, 2, v%d" % vL)
        e("global_store_dword v40, v8, %s sc1" % sp(sA))
        e("s_mov_b32 exec_hi, 0xffff")
        e("global_store_dword v40, v24, %s offset:256 sc1" % sp(sA))
        e("s_mov_b64 exec, -1")
        self.stamp(9)

    def reduce_waves16(self, src):
        e = self.e
        e("v_and_b32 v14, 15, v%d" % vL); e("v_lshlrev_b32 v14, 2, v14")
        e("s_lshl_b32 s%d, s%d, 6" % (sT0, sWave)); e("s_add_u32 s%d, s%d, %d" % (sT0, sT0, L_RED))
        e("v_add_u32 v15, s%d, v14" % sT0)
        e("ds_write_b32 v15, v%d" % src)
        e("s_waitcnt lgkmcnt(0)")
        e("s_barrier")
        for w in range(4):
            e("ds_read_b32 v%d, v14 offset:%d" % (16 + w, L_RED + w * 64))
        e("s_waitcnt lgkmcnt(0)")
        e("v_add_f32 v16, v16, v17"); e("v_add_f32 v18, v18, v19"); e("v_add_f32 v8, v16, v18")

    def stage_R(self):
        e = self.e
        e("v_lshrrev_b32 v20, 4, v%d" % vL); e("v_lshlrev_b32 v20, 2, v20")
        e("s_cmp_eq_u32 s%d, 0" % sPass); e("s_cbranch_scc0 L_R_r1")
        e("s_lshl_b32 s%d, s%d, 4" % (sT0, sIdx))
        self.addr(sB, pX, 0, [sT0])
        e("s_branch L_R_r2")
        self.lab("L_R_r1")
        e("s_lshr_b32 s%d, s%d, 1" % (sT0, sIdx)); e("s_lshl_b32 s%d, s%d, 7" % (sT0, sT0))
        e("s_and_b32 s%d, s%d, 1" % (sT1, sIdx)); e("s_lshl_b32 s%d, s%d, 4" % (sT1, sT1))
        self.addr(sB, pWs, M5, [sT0, sT1])
        self.lab("L_R_r2")
        e("global_load_dword v21, v20, %s sc1" % sp(sB))
        e("s_lshl_b32 s%d, s%d, 5" % (sT0, sIdx)); e("s_mul_i32 s%d, s%d, 0x%x" % (sT1, sPass, M2_R))
        self.addr(sA, pWs, M2, [sT0, sT1])
        e("v_mul_u32_u24 v8, %d, v%d" % (M2_SLOT, vL))
        self.poll(["global_load_dwordx4 v[32:35], v8, %s sc1" % sp(sA),
                   "global_load_dwordx4 v[36:39], v8, %s offset:16 sc1" % sp(sA)], list(range(32, 40)), 40, "Pa")
        self.stamp(8)
        for d in range(4):
            e("v_permlane32_swap_b32 v%d, v%d" % (32 + d, 36 + d))
        self.nop(1)
        for d in range(4):
            e("v_add_f32 v%d, v%d, v%d" % (32 + d, 32 + d, 36 + d))
        self.nop(2)
        e("v_permlane16_swap_b32 v32, v34"); e("v_permlane16_swap_b32 v33, v35"); self.nop(1)
        e("v_add_f32 v32, v32, v34"); e("v_add_f32 v33, v33, v35")
        for n in (8, 4, 2, 1):
            self.nop(1)
            e("v_add_f32_dpp v32, v32, v32 row_ror:%d row_mask:0xf bank_mask:0xf" % n)
            e("v_add_f32_dpp v33, v33, v33 row_ror:%d row_mask:0xf bank_mask:0xf" % n)
        e("v_cvt_pk_bf16_f32 v34, v32, v33")
        e("v_lshlrev_b32 v32, 16, v34"); e("v_and_b32 v33, 0xffff0000, v34")
        e("v_lshlrev_b32 v35, 16, v21"); e("v_and_b32 v36, 0xffff0000, v21")
        e("v_add_f32 v32, v32, v35"); e("v_add_f32 v33, v33, v36")
        e("v_cvt_pk_bf16_f32 v34, v32, v33")
        e("v_mov_b32 v41, -2"); e("v_min_u32 v34, v34, v41")
        e("s_lshl_b32 s%d, s%d, 13" % (sT0, sPass)); e("s_lshl_b32 s%d, s%d, 7" % (sT1, sIdx))
        self.addr(sA, pWs, M3, [sT0, sT1])
        e("s_mov_b32 exec_lo, 0x00010001"); e("s_mov_b32 exec_hi, 0x00010001")
        e("global_store_dword v20, v34, %s sc1" % sp(sA))
        e("s_mov_b64 exec, -1")
        self.stamp(9)

    def gather_x(self, base_off, slot_shift_mode):
        e = self.e
        e("v_min_u32 v8, 55, v%d" % vL)
        if slot_shift_mode == "M3":
            e("v_lshlrev_b32 v8, 7, v8")
        else:
            e("v_and_b32 v9, 1, v8"); e("v_lshrrev_b32 v8, 1, v8"); e("v_lshlrev_b32 v8, 7, v8"); e("v_lshl_add_u32 v8, v9, 4, v8")
        self.poll(["global_load_dwordx4 v[32:35], v8, %s sc1" % sp(sA)], [32, 33, 34, 35], 36, "Px")

    def stage_B(self):
        e = self.e
        e("s_lshl_b32 s%d, s%d, 13" % (sT0, sPass))
        self.addr(sA, pWs, M3, [sT0])
        self.gather_x(M3, "M3")
        self.stamp(8)
        if self.gapw:
            e("s_barrier")
        self.layernorm_to_vec()
        self.lane_rc()
        e("v_lshlrev_b32 v6, 3, v10"); e("v_add_u32 v6, s%d, v6" % sVec)
        e("v_lshl_add_u32 v7, v10, 2, v11"); e("v_lshlrev_b32 v7, 6, v7")
        e("v_and_b32 v14, 1, v12"); e("v_lshl_add_u32 v7, v14, 3, v7")
        e("v_lshrrev_b32 v14, 1, v12"); e("v_mul_u32_u24 v14, %d, v14" % B_IMG3); e("v_add_u32 v7, v7, v14")
        e("s_lshl_b32 s%d, s%d, 4" % (sT0, sWave)); e("s_add_u32 s%d, s%d, %d" % (sT0, sT0, L_W)); e("v_add_u32 v7, s%d, v7" % sT0)
        self.gemv_chain(14, lambda m: (8 * m, 8 * m + 4), 2048, 1024)
        self.bf16r(8, 8, 9)
        self.nop(1)
        e("v_mov_b32_dpp v10, v8 row_ror:8 row_mask:0xf bank_mask:0xf")
        e("v_mul_f32 v11, 0xbfb8aa3b, v8")
        e("v_exp_f32 v11, v11"); self.nop(1)
        e("v_add_f32 v11, 1.0, v11")
        e("v_rcp_f32 v11, v11"); self.nop(1)
        e("v_mul_f32 v11, v8, v11")
        self.bf16r(11, 11, 12)
        e("v_mul_f32 v11, v11, v10")
        self.nop(1)
        e("v_mov_b32_dpp v12, v11 quad_perm:[1,0,3,2] row_mask:0xf bank_mask:0xf")
        e("v_cvt_pk_bf16_f32 v12, v11, v12")
        e("v_mov_b32 v14, -2"); e("v_min_u32 v12, v12, v14")
        e("s_lshl_b32 s%d, s%d, 13" % (sT0, sPass)); e("s_lshl_b32 s%d, s%d, 7" % (sT1, sIdx)); e("s_lshl_b32 s%d, s%d, 4" % (sT2, sWave))
        self.addr(sA, pWs, M4, [sT0, sT1, sT2])
        e("v_lshlrev_b32 v14, 1, v%d" % vL)
        e("s_mov_b64 exec, 0x55")
        e("global_store_dword v14, v12, %s sc1" % sp(sA))
        e("s_mov_b64 exec, -1")

    def stage_C(self):
        e = self.e
        e("s_lshl_b32 s%d, s%d, 13" % (sT0, sPass)); e("s_lshl_b32 s%d, s%d, 8" % (sT1, sIdx))
        self.addr(sB, pWs, M3, [sT0, sT1])
        e("v_bfe_u32 v20, v%d, 3, 1" % vL); e("v_lshlrev_b32 v20, 7, v20")
        e("v_bfe_u32 v21, v%d, 1, 2" % vL); e("v_lshl_add_u32 v20, v21, 2, v20")
        self.poll(["global_load_dword v22, v20, %s sc1" % sp(sB)], [22], 23, "Pr")
        e("s_lshl_b32 s%d, s%d, 13" % (sT0, sPass)); e("s_mul_i32 s%d, s%d, %d" % (sT1, sWave, 14 * 128))
        self.addr(sA, pWs, M4, [sT0, sT1])
        e("v_min_u32 v8, 55, v%d" % vL)
        e("v_and_b32 v9, 3, v8"); e("v_lshrrev_b32 v8, 2, v8"); e("v_lshlrev_b32 v8, 7, v8"); e("v_lshl_add_u32 v8, v9, 4, v8")
        self.poll(["global_load_dwordx4 v[32:35], v8, %s sc1" % sp(sA)], [32, 33, 34, 35], 36, "Ph")
        self.stamp(8)
        e("v_lshlrev_b32 v8, 4, v%d" % vL); e("v_add_u32 v8, s%d, v8" % sVec)
        e("ds_write_b128 v8, v[32:35]")
        self.lane_rc()
        e("v_lshlrev_b32 v6, 3, v10"); e("v_add_u32 v6, s%d, v6" % sVec)
        e("s_mul_i32 s%d, s%d, %d" % (sT0, sWave, C_WAVE)); e("s_add_u32 s%d, s%d, %d" % (sT0, sT0, L_W))
        e("v_lshl_add_u32 v7, v10, 2, v11"); e("v_lshlrev_b32 v7, 5, v7"); e("v_lshl_add_u32 v7, v12, 3, v7"); e("v_add_u32 v7, s%d, v7" % sT0)
        e("s_waitcnt lgkmcnt(0)")
        self.gemv_chain(14, lambda m: (8 * m, 8 * m + 4), 1024, 512)
        self.reduce_waves16(8)
        e("s_cmp_eq_u32 s%d, 0" % sWave); e("s_cbranch_scc0 L_C_done")
        self.bf16r(8, 8, 9)
        e("v_and_b32 v23, 1, v%d" % vL); e("v_cmp_eq_u32 vcc, 1, v23")
        e("v_lshlrev_b32 v23, 16, v22"); e("v_and_b32 v22, 0xffff0000, v22")
        e("v_cndmask_b32 v22, v23, v22, vcc")
        e("v_add_f32 v8, v8, v22")
        self.nop(1)
        e("v_mov_b32_dpp v9, v8 quad_perm:[1,0,3,2] row_mask:0xf bank_mask:0xf")
        e("v_cvt_pk_bf16_f32 v9, v8, v9")
        e("v_lshlrev_b32 v14, 1, v%d" % vL)
        e("s_cmp_eq_u32 s%d, 0" % sPass); e("s_cbranch_scc0 L_C_out")
        e("v_mov_b32 v15, -2"); e("v_min_u32 v9, v9, v15")
        e("s_lshl_b32 s%d, s%d, 7" % (sT1, sIdx))
        self.addr(sA, pWs, M5, [sT1])
        e("s_mov_b64 exec, 0x5555")
        e("global_store_dword v14, v9, %s sc1" % sp(sA))
        e("s_mov_b64 exec, -1")
        e("s_branch L_C_done")
        self.lab("L_C_out")
        e("s_lshl_b32 s%d, s%d, 5" % (sT1, sIdx))
        self.addr(sA, pOut, 0, [sT1])
        e("s_mov_b64 exec, 0x5555")
        e("global_store_dword v14, v9, %s" % sp(sA))
        e("s_mov_b64 exec, -1")
        self.lab("L_C_done")


    def poll2(self, mk_loads, n, sets, dst, name="Q", sleep=0):
        e = self.e
        A, B = sets
        nl = len(mk_loads(A))
        L = self.nl(name); DA = self.nl(name + "a"); DB = self.nl(name + "b"); D = self.nl(name + "d")
        def check(base, target):
            rr = list(range(base, base + n))
            t = self.ptmp
            if n == 1:
                t = base
            else:
                if n >= 3:
                    e("v_max3_u32 v%d, v%d, v%d, v%d" % (t, rr[0], rr[1], rr[2])); rr = rr[3:]
                else:
                    e("v_max_u32 v%d, v%d, v%d" % (t, rr[0], rr[1])); rr = rr[2:]
                while rr:
                    if len(rr) >= 2:
                        e("v_max3_u32 v%d, v%d, v%d, v%d" % (t, t, rr[0], rr[1])); rr = rr[2:]
                    else:
                        e("v_max_u32 v%d, v%d, v%d" % (t, t, rr[0])); rr = rr[1:]
            e("v_cmp_eq_u32 vcc, -1, v%d" % t)
            e("s_cbranch_vccz %s" % target)
        e("s_mov_b32 s%d, 0" % sSpin)
        for ld in mk_loads(A): e(ld)
        self.lab(L)
        for ld in mk_loads(B): e(ld)
        e("s_waitcnt vmcnt(%d)" % nl)
        check(A, DA)
        for ld in mk_loads(A): e(ld)
        e("s_waitcnt vmcnt(%d)" % nl)
        check(B, DB)
        if sleep:
            e("s_sleep %d" % sleep)
        e("s_add_u32 s%d, s%d, 1" % (sSpin, sSpin))
        e("s_cmp_lt_u32 s%d, %d" % (sSpin, SPIN_LIMIT))
        e("s_cbranch_scc1 %s" % L)
        e("s_waitcnt vmcnt(0)")
        self.lab(DA)
        for i in range(n): e("v_mov_b32 v%d, v%d" % (dst + i, A + i))
        e("s_branch %s" % D)
        self.lab(DB)
        for i in range(n): e("v_mov_b32 v%d, v%d" % (dst + i, B + i))
        self.lab(D)

    ptmp = 31

    def rc2(self):
        e = self.e
        e("v_lshrrev_b32 v28, 4, v%d" % vL); e("v_bfe_u32 v29, v%d, 2, 2" % vL); e("v_and_b32 v30, 3, v%d" % vL)

    @property
    def NPRE(self):
        return 7 if self.o.get('stamps') else 8

    def breg(self, m):
        return 32 + 4 * (m % self.NPRE)

    def b_issue(self, lq, m, b_step, b_second):
        r = self.breg(m)
        lq.issue("ds_read_b64_tr_b16 v[%d:%d], v7 offset:%d" % (r, r + 1, m * b_step), ("B", m))
        lq.issue("ds_read_b64_tr_b16 v[%d:%d], v7 offset:%d" % (r + 2, r + 3, m * b_step + b_second), ("B", m))

    def chain2(self, lq, n, b_step, b_second, acc=16):
        e = self.e
        Ab = [20, 24, 28]
        def a_issue(m):
            lq.issue("ds_read2_b64 v[%d:%d], v6 offset0:%d offset1:%d" % (Ab[m % 3], Ab[m % 3] + 3, 8 * m, 8 * m + 4), ("A", m))
        for m in range(3):
            a_issue(m)
        for m in range(n):
            lq.wait([("A", m), ("B", m)])
            c = "0" if m == 0 else vr(acc, 4)
            e("v_mfma_f32_16x16x32_bf16 %s, %s, %s, %s" % (vr(acc, 4), vr(Ab[m % 3], 4), vr(self.breg(m), 4), c))
            if m + 3 < n:
                a_issue(m + 3)
            if m + self.NPRE < n:
                self.b_issue(lq, m + self.NPRE, b_step, b_second)
        self.nop(8)

    def ln2(self):
        e = self.e
        F = 20
        e("v_cmp_gt_u32 vcc, 56, v%d" % vL)
        for d in range(4):
            e("v_lshlrev_b32 v%d, 16, v%d" % (F + 2 * d, 16 + d))
            e("v_and_b32 v%d, 0xffff0000, v%d" % (F + 2 * d + 1, 16 + d))
        e("v_pk_add_f32 v[28:29], v[20:21], v[22:23]")
        e("v_pk_mul_f32 v[30:31], v[20:21], v[20:21]")
        e("v_pk_add_f32 v[16:17], v[24:25], v[26:27]")
        e("v_pk_fma_f32 v[30:31], v[22:23], v[22:23], v[30:31]")
        e("v_pk_add_f32 v[28:29], v[28:29], v[16:17]")
        e("v_pk_fma_f32 v[30:31], v[24:25], v[24:25], v[30:31]")
        e("v_add_f32 v28, v28, v29")
        e("v_pk_fma_f32 v[30:31], v[26:27], v[26:27], v[30:31]")
        e("v_cndmask_b32 v28, 0, v28, vcc")
        e("v_add_f32 v30, v30, v31")
        e("v_cndmask_b32 v30, 0, v30, vcc")
        for n in (8, 4, 2, 1):
            self.nop(1)
            e("v_add_f32_dpp v28, v28, v28 row_ror:%d row_mask:0xf bank_mask:0xf" % n)
            e("v_add_f32_dpp v30, v30, v30 row_ror:%d row_mask:0xf bank_mask:0xf" % n)
        for sw in ("v_permlane16_swap_b32", "v_permlane32_swap_b32"):
            e("v_mov_b32 v29, v28"); e("v_mov_b32 v31, v30"); self.nop(1)
            e("%s v28, v29" % sw); e("%s v30, v31" % sw)
            e("v_add_f32 v28, v28, v29"); e("v_add_f32 v30, v30, v31")
        e("v_mul_f32 v28, 0x3b124925, v28")
        e("v_mul_f32 v30, 0x3b124925, v30")
        e("v_cvt_pk_bf16_f32 v29, v28, v28")
        e("v_fma_f32 v30, -v28, v28, v30")
        e("v_and_b32 v28, 0xffff0000, v29")
        e("v_max_f32 v30, 0, v30")
        e("v_cvt_pk_bf16_f32 v31, v30, v30")
        e("v_pk_add_f32 v[20:21], v[20:21], v[28:29] op_sel_hi:[1,0] neg_lo:[0,1] neg_hi:[0,1]")
        e("v_and_b32 v30, 0xffff0000, v31")
        e("v_pk_add_f32 v[22:23], v[22:23], v[28:29] op_sel_hi:[1,0] neg_lo:[0,1] neg_hi:[0,1]")
        e("v_add_f32 v30, 0x3727c5ac, v30")
        e("v_pk_add_f32 v[24:25], v[24:25], v[28:29] op_sel_hi:[1,0] neg_lo:[0,1] neg_hi:[0,1]")
        e("v_cvt_pk_bf16_f32 v31, v30, v30")
        e("v_pk_add_f32 v[26:27], v[26:27], v[28:29] op_sel_hi:[1,0] neg_lo:[0,1] neg_hi:[0,1]")
        e("v_and_b32 v30, 0xffff0000, v31")
        e("v_cvt_pk_bf16_f32 v16, v20, v21")
        e("v_sqrt_f32 v30, v30")
        e("v_cvt_pk_bf16_f32 v17, v22, v23")
        e("v_cvt_pk_bf16_f32 v18, v24, v25")
        e("v_cvt_pk_bf16_f32 v31, v30, v30")
        e("v_cvt_pk_bf16_f32 v19, v26, v27")
        e("v_and_b32 v30, 0xffff0000, v31")
        e("v_lshlrev_b32 v20, 16, v16")
        e("v_rcp_f32 v30, v30")
        e("v_and_b32 v21, 0xffff0000, v16")
        for d in range(1, 4):
            e("v_lshlrev_b32 v%d, 16, v%d" % (F + 2 * d, 16 + d))
            e("v_and_b32 v%d, 0xffff0000, v%d" % (F + 2 * d + 1, 16 + d))
        for d in range(4):
            e("v_pk_mul_f32 v[%d:%d], v[%d:%d], v[30:31] op_sel_hi:[1,0]" % (F + 2 * d, F + 2 * d + 1, F + 2 * d, F + 2 * d + 1))
        for d in range(4):
            e("v_cvt_pk_bf16_f32 v%d, v%d, v%d" % (16 + d, F + 2 * d, F + 2 * d + 1))
        e("ds_write_b128 v5, v[16:19]")
        e("s_waitcnt lgkmcnt(0)")

    def prepBD(self, role):
        e = self.e
        self.rc2()
        e("v_lshlrev_b32 v6, 3, v28"); e("v_add_u32 v6, s%d, v6" % sVec)
        e("v_lshlrev_b32 v5, 4, v%d" % vL); e("v_add_u32 v5, s%d, v5" % sVec)
        e("v_lshl_add_u32 v7, v28, 2, v29")
        if role == "D":
            e("v_bfe_u32 v31, v7, 1, 2"); e("v_xor_b32 v31, s%d, v31" % sWave)
            e("v_lshlrev_b32 v7, 7, v7"); e("v_lshl_add_u32 v7, v31, 5, v7"); e("v_lshl_add_u32 v7, v30, 3, v7"); e("v_add_u32 v7, %d, v7" % L_W)
            st = (4096, 2048)
        elif role == "B":
            e("v_lshlrev_b32 v7, 6, v7")
            e("v_and_b32 v31, 1, v30"); e("v_lshl_add_u32 v7, v31, 3, v7")
            e("v_lshrrev_b32 v31, 1, v30"); e("v_mul_u32_u24 v31, %d, v31" % B_IMG3); e("v_add_u32 v7, v7, v31")
            e("s_lshl_b32 s%d, s%d, 4" % (sT0, sWave)); e("s_add_u32 s%d, s%d, %d" % (sT0, sT0, L_W)); e("v_add_u32 v7, s%d, v7" % sT0)
            st = (2048, 1024)
        else:
            e("s_mul_i32 s%d, s%d, %d" % (sT0, sWave, C_WAVE)); e("s_add_u32 s%d, s%d, %d" % (sT0, sT0, L_W))
            e("v_lshlrev_b32 v7, 5, v7"); e("v_lshl_add_u32 v7, v30, 3, v7"); e("v_add_u32 v7, s%d, v7" % sT0)
            st = (1024, 512)
        lq = LQ(self)
        for m in range(self.NPRE):
            self.b_issue(lq, m, st[0], st[1])
        return lq, st

    def poll_x2(self, mode):
        e = self.e
        e("v_min_u32 v19, 55, v%d" % vL)
        if mode == "M3":
            e("v_lshlrev_b32 v19, 7, v19")
        else:
            e("v_and_b32 v18, 1, v19"); e("v_lshrrev_b32 v19, 1, v19"); e("v_lshlrev_b32 v19, 7, v19"); e("v_lshl_add_u32 v19, v18, 4, v19")
        e("v_mov_b32 v29, v19")
        self.poll2(lambda b: ["global_load_dwordx4 v[%d:%d], v29, %s sc1" % (b, b + 3, sp(sA))], 4, (8, 12), 16, "Qx")

    def publish_pairs(self, val, tmp, base_pair, off_vreg, mask, final=False):
        e = self.e
        if final:
            l1 = self.nl("Lfo"); l2 = self.nl("Lfo")
            e("v_mov_b32_dpp v%d, v%d quad_perm:[1,0,3,2] row_mask:0xf bank_mask:0xf" % (tmp, val))
            e("v_cvt_pk_bf16_f32 v%d, v%d, v%d" % (tmp, val, tmp))
            e("s_mov_b64 exec, 0x%x" % mask)
            e("s_cmp_eq_u32 s%d, 0" % sPass); e("s_cbranch_scc0 %s" % l1)
            e("v_min_u32 v%d, v%d, v%d" % (tmp, tmp, 27))
            e("global_store_dword v%d, v%d, %s sc1" % (off_vreg, tmp, sp(base_pair)))
            e("s_branch %s" % l2)
            self.lab(l1)
            e("global_store_dword v%d, v%d, %s" % (off_vreg, tmp, sp(base_pair)))
            self.lab(l2)
            e("s_mov_b64 exec, -1")
            return
        e("v_mov_b32_dpp v%d, v%d quad_perm:[1,0,3,2] row_mask:0xf bank_mask:0xf" % (tmp, val))
        e("v_cvt_pk_bf16_f32 v%d, v%d, v%d" % (tmp, val, tmp))
        e("v_min_u32 v%d, v%d, v%d" % (tmp, tmp, 27))
        e("s_mov_b64 exec, 0x%x" % mask)
        e("global_store_dword v%d, v%d, %s sc1" % (off_vreg, tmp, sp(base_pair)))
        e("s_mov_b64 exec, -1")

    def wait_leftover(self):
        e = self.e
        a = self.nl("Lwl"); b = self.nl("Lwl")
        e("s_cmp_eq_u32 s%d, 0" % sWave); e("s_cbranch_scc1 %s" % a)
        e("s_waitcnt vmcnt(0)"); e("s_branch %s" % b)
        self.lab(a); e("s_waitcnt vmcnt(1)"); self.lab(b)

    def publish_wg(self, val, tmp, base_pair, nper, mask):
        e = self.e
        sk = self.nl("Lpw")
        e("v_mov_b32_dpp v%d, v%d quad_perm:[1,0,3,2] row_mask:0xf bank_mask:0xf" % (tmp, val))
        e("s_mul_i32 s%d, s%d, %d" % (sT0, sWave, nper * 4)); e("s_add_u32 s%d, s%d, %d" % (sT0, sT0, L_RED))
        e("v_cvt_pk_bf16_f32 v%d, v%d, v%d" % (tmp, val, tmp))
        e("v_lshlrev_b32 v26, 1, v%d" % vL); e("v_add_u32 v26, s%d, v26" % sT0)
        e("v_min_u32 v%d, v%d, v%d" % (tmp, tmp, 27))
        e("s_mov_b64 exec, 0x%x" % mask)
        e("ds_write_b32 v26, v%d" % tmp)
        e("s_mov_b64 exec, -1")
        e("v_lshlrev_b32 v26, 2, v%d" % vL)
        e("s_waitcnt lgkmcnt(0)")
        e("s_barrier")
        e("s_cmp_eq_u32 s%d, 0" % sWave); e("s_cbranch_scc0 %s" % sk)
        e("ds_read_b32 v%d, v26 offset:%d" % (tmp, L_RED))
        e("s_mov_b64 exec, 0x%x" % ((1 << (4 * nper)) - 1) if 4 * nper < 32 else "s_mov_b32 exec_hi, 0")
        e("s_waitcnt lgkmcnt(0)")
        e("global_store_dword v26, v%d, %s sc1" % (tmp, sp(base_pair)))
        e("s_mov_b64 exec, -1")
        self.lab(sk)

    def stageD2_prep(self):
        self.lqD, self.stD = self.prepBD("D")

    def stageD2_rest(self):
        e = self.e
        lq = LQ(self); lq.q = [("B", m) for m in range(self.NPRE) for _ in range(2)]
        self.ln2(); lq.q = []
        self.chain2(lq, 14, 4096, 2048)
        e("v_mov_b32 v27, -2")
        if self.onest:
            self.publish_wg(16, 25, sB, 8, 0x5555)
        else:
            e("v_lshlrev_b32 v26, 1, v%d" % vL)
            self.publish_pairs(16, 25, sB, 26, 0x5555)

    def stage_B2(self):
        e = self.e
        e("s_waitcnt vmcnt(0)"); e("s_barrier")
        self.stamp(11)
        lq, st = self.prepBD("B")
        e("s_lshl_b32 s%d, s%d, 13" % (sT0, sPass)); e("s_lshl_b32 s%d, s%d, 7" % (sT1, sIdx)); e("s_lshl_b32 s%d, s%d, 4" % (sT2, sWave))
        self.addr(sB, pWs, M4, [sT0, sT1] if self.onest else [sT0, sT1, sT2])
        self.addr(sA, pWs, M3, [sT0])
        self.poll_x2("M3")
        self.stamp(8)
        self.ln2(); lq.q = []
        self.chain2(lq, 14, st[0], st[1])
        e("v_cvt_pk_bf16_f32 v17, v16, v16"); e("v_and_b32 v16, 0xffff0000, v17")
        e("v_mul_f32 v19, 0xbfb8aa3b, v16")
        e("v_exp_f32 v19, v19")
        e("v_mov_b32_dpp v18, v16 row_ror:8 row_mask:0xf bank_mask:0xf")
        e("v_add_f32 v19, 1.0, v19")
        e("v_rcp_f32 v19, v19"); e("v_mov_b32 v27, -2")
        e("v_mul_f32 v19, v16, v19")
        e("v_cvt_pk_bf16_f32 v17, v19, v19"); e("v_and_b32 v19, 0xffff0000, v17")
        e("v_mul_f32 v19, v19, v18")
        if self.onest:
            self.nop(2)
            self.publish_wg(19, 25, sB, 4, 0x55)
            self.stamp(9)
            self.wait_leftover()
        else:
            e("v_lshlrev_b32 v26, 1, v%d" % vL); self.nop(1)
            self.publish_pairs(19, 25, sB, 26, 0x55)
            self.stamp(9)
            e("s_waitcnt vmcnt(1)")

    def stage_C2(self):
        e = self.e
        e("s_waitcnt vmcnt(0)")
        self.stamp(11)
        lq, st = self.prepBD("C")
        e("s_lshl_b32 s%d, s%d, 13" % (sT0, sPass)); e("s_lshl_b32 s%d, s%d, 8" % (sT1, sIdx))
        self.addr(sB, pWs, M3, [sT0, sT1])
        e("v_bfe_u32 v20, v%d, 3, 1" % vL); e("v_lshlrev_b32 v20, 7, v20")
        e("v_bfe_u32 v21, v%d, 1, 2" % vL); e("v_lshl_add_u32 v20, v21, 2, v20")
        self.poll(["global_load_dword v22, v20, %s sc1" % sp(sB)], [22], 23, "Pr")
        self.stamp(12)
        e("v_and_b32 v23, 1, v%d" % vL); e("v_cmp_eq_u32 vcc, 1, v23")
        e("v_lshlrev_b32 v23, 16, v22"); e("v_and_b32 v22, 0xffff0000, v22")
        e("v_cndmask_b32 v22, v23, v22, vcc")
        e("v_and_b32 v23, 15, v%d" % vL); e("v_lshlrev_b32 v23, 2, v23")
        e("ds_write_b32 v23, v22 offset:%d" % (L_RED + 256))
        lq.q.append(("S", 0))
        e("s_lshl_b32 s%d, s%d, 13" % (sT0, sPass)); e("s_mul_i32 s%d, s%d, %d" % (sT1, sWave, 14 * 128))
        self.addr(sA, pWs, M4, [sT0, sT1])
        e("v_min_u32 v29, 55, v%d" % vL)
        e("v_and_b32 v28, 3, v29"); e("v_lshrrev_b32 v29, 2, v29"); e("v_lshlrev_b32 v29, 7, v29"); e("v_lshl_add_u32 v29, v28, 4, v29")
        e("s_cmp_eq_u32 s%d, 0" % sPass)
        e("s_lshl_b32 s%d, s%d, 7" % (sT1, sIdx)); e("s_lshl_b32 s%d, s%d, 5" % (sT2, sIdx))
        lo = self.nl("Lco"); ld = self.nl("Lcod")
        e("s_cmp_eq_u32 s%d, 0" % sPass); e("s_cbranch_scc0 %s" % lo)
        self.addr(sB, pWs, M5, [sT1]); e("s_branch %s" % ld)
        self.lab(lo); self.addr(sB, pOut, 0, [sT2]); self.lab(ld)
        self.poll2(lambda b: ["global_load_dwordx4 v[%d:%d], v29, %s sc1" % (b, b + 3, sp(sA))], 4, (8, 12), 16, "Qh")
        self.stamp(8)
        e("ds_write_b128 v5, v[16:19]")
        e("s_waitcnt lgkmcnt(0)"); lq.q = []
        self.chain2(lq, 14, st[0], st[1])
        e("v_and_b32 v20, 15, v%d" % vL); e("v_lshlrev_b32 v20, 2, v20")
        e("s_lshl_b32 s%d, s%d, 6" % (sT0, sWave)); e("s_add_u32 s%d, s%d, %d" % (sT0, sT0, L_RED))
        e("v_add_u32 v21, s%d, v20" % sT0)
        e("ds_write_b32 v21, v16")
        e("s_waitcnt lgkmcnt(0)")
        e("s_barrier")
        lz = self.nl("Lcz")
        e("s_cmp_eq_u32 s%d, 0" % sWave); e("s_cbranch_scc0 %s" % lz)
        for w in range(4):
            e("ds_read_b32 v%d, v20 offset:%d" % (22 + w, L_RED + w * 64))
        e("ds_read_b32 v21, v20 offset:%d" % (L_RED + 256))
        e("v_mov_b32 v27, -2"); e("v_lshlrev_b32 v26, 1, v%d" % vL)
        e("s_waitcnt lgkmcnt(0)")
        e("v_add_f32 v22, v22, v23"); e("v_add_f32 v24, v24, v25"); e("v_add_f32 v16, v22, v24")
        e("v_cvt_pk_bf16_f32 v17, v16, v16"); e("v_and_b32 v16, 0xffff0000, v17")
        e("v_add_f32 v16, v16, v21")
        self.nop(1)
        self.publish_pairs(16, 25, sB, 26, 0x5555, final=bool(int(self.o.get("plainout", 0))))
        le = self.nl("Lce")
        self.stamp(9)
        e("s_waitcnt vmcnt(1)"); e("s_branch %s" % le)
        self.lab(lz)
        e("s_waitcnt vmcnt(0)")
        self.lab(le)


    def stage_O2(self):
        e = self.e
        self.rc2()
        e("v_lshlrev_b32 v6, 3, v28"); e("v_add_u32 v6, s%d, v6" % sVec)
        e("v_lshl_add_u32 v7, v28, 2, v29"); e("v_mul_u32_u24 v7, %d, v7" % O_ROW); e("v_lshl_add_u32 v7, v30, 3, v7")
        e("s_mul_i32 s%d, s%d, 224" % (sT0, sWave)); e("s_add_u32 s%d, s%d, %d" % (sT0, sT0, L_W)); e("v_add_u32 v7, s%d, v7" % sT0)
        e("v_and_b32 v5, 15, v%d" % vL); e("v_lshlrev_b32 v5, 3, v5")
        e("v_lshrrev_b32 v9, 5, v%d" % vL); e("v_lshl_add_u32 v5, v9, 2, v5"); e("v_add_u32 v5, s%d, v5" % sVec)
        e("s_mul_i32 s%d, s%d, %d" % (sT0, sIdx, M2_SLOT)); e("s_mul_i32 s%d, s%d, 0x%x" % (sT1, sPass, M2_R)); e("s_lshl_b32 s%d, s%d, 9" % (sT2, sWave))
        self.addr(sB, pWs, M2, [sT0, sT1, sT2])
        e("s_mul_i32 s%d, s%d, %d" % (sT0, sIdx, 16 * M1_SLOT)); e("s_mul_i32 s%d, s%d, 0x%x" % (sT1, sPass, M1_R))
        self.addr(sA, pWs, M1 + 2304, [sT0, sT1])
        e("v_mul_u32_u24 v10, %d, v28" % M1_SLOT)
        e("v_and_b32 v11, 15, v%d" % vL); e("v_lshl_add_u32 v11, v11, 4, v10")
        e("v_add_u32 v10, 256, v10")
        e("s_mov_b32 s%d, 0x%x" % (sT3, C_EXP))
        loads = []
        for j in range(4):
            off = j * 4 * M1_SLOT - 2304
            loads.append("global_load_dwordx2 v[%d:%d], v10, %s offset:%d sc1" % (48 + 2 * j, 49 + 2 * j, sp(sA), off))
            loads.append("global_load_dwordx4 v[%d:%d], v11, %s offset:%d sc1" % (32 + 4 * j, 35 + 4 * j, sp(sA), off))
        self.poll(loads, list(range(32, 56)), 56, "Ps1")
        self.stamp(8)
        e("v_max3_f32 v56, v48, v50, v52"); e("v_max_f32 v56, v56, v54")
        for sw in ("v_permlane16_swap_b32", "v_permlane32_swap_b32"):
            e("v_mov_b32 v57, v56"); self.nop(2); e("%s v56, v57" % sw); e("v_max_f32 v56, v56, v57")
        for j in range(4):
            e("v_sub_f32 v%d, v%d, v56" % (48 + 2 * j, 48 + 2 * j))
        for j in range(4):
            e("v_mul_f32 v%d, s%d, v%d" % (48 + 2 * j, sT3, 48 + 2 * j))
        for j in range(4):
            e("v_exp_f32 v%d, v%d" % (48 + 2 * j, 48 + 2 * j))
        self.nop(1)
        e("v_mul_f32 v56, v48, v49")
        e("v_pk_mul_f32 v[32:33], v[32:33], v[48:49] op_sel_hi:[1,0]"); e("v_pk_mul_f32 v[34:35], v[34:35], v[48:49] op_sel_hi:[1,0]")
        for j in range(1, 4):
            e("v_fmac_f32 v56, v%d, v%d" % (48 + 2 * j, 49 + 2 * j))
            e("v_pk_fma_f32 v[32:33], v[%d:%d], v[%d:%d], v[32:33] op_sel_hi:[1,0,1]" % (32 + 4 * j, 33 + 4 * j, 48 + 2 * j, 49 + 2 * j))
            e("v_pk_fma_f32 v[34:35], v[%d:%d], v[%d:%d], v[34:35] op_sel_hi:[1,0,1]" % (34 + 4 * j, 35 + 4 * j, 48 + 2 * j, 49 + 2 * j))
        e("v_mov_b32 v57, v56"); self.nop(1)
        e("v_permlane32_swap_b32 v32, v34"); e("v_permlane32_swap_b32 v33, v35"); e("v_permlane32_swap_b32 v56, v57")
        e("v_add_f32 v32, v32, v34"); e("v_add_f32 v33, v33, v35"); e("v_add_f32 v56, v56, v57")
        e("v_mov_b32 v34, v32"); e("v_mov_b32 v35, v33"); e("v_mov_b32 v57, v56"); self.nop(1)
        e("v_permlane16_swap_b32 v32, v34"); e("v_permlane16_swap_b32 v33, v35"); e("v_permlane16_swap_b32 v56, v57")
        e("v_add_f32 v56, v56, v57"); e("v_add_f32 v32, v32, v34"); e("v_rcp_f32 v56, v56"); e("v_add_f32 v33, v33, v35")
        self.nop(1)
        e("v_pk_mul_f32 v[32:33], v[32:33], v[56:57] op_sel_hi:[1,0]")
        e("v_cvt_pk_bf16_f32 v32, v32, v33")
        lq = LQ(self)
        lq.issue("ds_write_b32 v5, v32", "W")
        if self.o.get("dbg_a"):
            e("s_lshl_b32 s%d, s%d, 13" % (sT0, sPass)); e("s_lshl_b32 s%d, s%d, 7" % (sT1, sIdx))
            self.addr(sA, pWs, 0xC0000, [sT0, sT1])
            e("v_subrev_u32 v35, s%d, v5" % sVec)
            e("global_store_dword v35, v32, %s" % sp(sA))
        steps = [(ct, m) for ct in range(7) for m in range(2)]
        def b_iss(k):
            ct, m = steps[k]; r = 44 + 4 * (k % 5)
            lq.issue("ds_read_b64_tr_b16 v[%d:%d], v7 offset:%d" % (r, r + 1, m * 32 * O_ROW + ct * 32), ("B", k))
            lq.issue("ds_read_b64_tr_b16 v[%d:%d], v7 offset:%d" % (r + 2, r + 3, (m * 32 + 16) * O_ROW + ct * 32), ("B", k))
        for k in range(5):
            b_iss(k)
        lq.wait(["W"])
        lq.issue("ds_read2_b64 v[36:39], v6 offset0:0 offset1:4", "A"); lq.issue("ds_read2_b64 v[40:43], v6 offset0:8 offset1:12", "A")
        for k, (ct, m) in enumerate(steps):
            lq.wait([("B", k), "A"])
            acc = [12, 16, 20, 24, 28, 32, 8][ct]
            c = "0" if m == 0 else vr(acc, 4)
            e("v_mfma_f32_16x16x32_bf16 %s, %s, %s, %s" % (vr(acc, 4), vr(36 + 4 * m, 4), vr(44 + 4 * (k % 5), 4), c))
            if k + 5 < len(steps):
                b_iss(k + 5)
        self.nop(8)
        for row in range(1, 4):
            e("s_mov_b32 exec_lo, 0x%x" % (0xffff0000 if row == 1 else 0))
            e("s_mov_b32 exec_hi, 0x%x" % (0 if row == 1 else (0xffff << (16 * (row - 2)))))
            e("v_mov_b32 v12, v%d" % (12 + 4 * row))
            if row < 3:
                e("v_mov_b32 v28, v%d" % (32 if row == 1 else 8))
        e("s_mov_b64 exec, -1")
        e("v_mov_b32 v41, -2"); e("v_lshlrev_b32 v42, 2, v%d" % vL); e("v_min_u32 v12, v12, v41"); e("v_min_u32 v28, v28, v41")
        e("global_store_dword v42, v12, %s sc1" % sp(sB))
        e("s_mov_b32 exec_hi, 0xffff")
        e("global_store_dword v42, v28, %s offset:256 sc1" % sp(sB))
        e("s_mov_b64 exec, -1")
        self.stamp(9)


    def stage_O3(self):
        e = self.e
        self.rc2()
        e("v_lshlrev_b32 v6, 3, v28"); e("v_add_u32 v6, %d, v6" % L_P)
        e("v_lshl_add_u32 v7, v28, 2, v29"); e("v_mul_u32_u24 v7, %d, v7" % O_ROW); e("v_lshl_add_u32 v7, v30, 3, v7")
        e("s_mul_i32 s%d, s%d, 224" % (sT0, sWave)); e("s_add_u32 s%d, s%d, %d" % (sT0, sT0, L_W)); e("v_add_u32 v7, s%d, v7" % sT0)
        e("s_mul_i32 s%d, s%d, %d" % (sT0, sIdx, M2_SLOT)); e("s_mul_i32 s%d, s%d, 0x%x" % (sT1, sPass, M2_R)); e("s_lshl_b32 s%d, s%d, 9" % (sT2, sWave))
        self.addr(sB, pWs, M2, [sT0, sT1, sT2])
        e("s_mul_i32 s%d, s%d, %d" % (sT0, sIdx, 16 * M1_SLOT)); e("s_mul_i32 s%d, s%d, 0x%x" % (sT1, sPass, M1_R))
        self.addr(sA, pWs, M1, [sT0, sT1])
        e("v_lshrrev_b32 v29, 2, v%d" % vL); e("v_mul_u32_u24 v29, %d, v29" % M1_SLOT)
        e("v_add_u32 v28, 256, v29")
        e("s_lshl_b32 s%d, s%d, 6" % (sT0, sWave)); e("v_lshl_add_u32 v29, v30, 4, v29"); e("v_add_u32 v29, s%d, v29" % sT0)
        e("v_lshlrev_b32 v5, 3, v30"); e("v_lshrrev_b32 v24, 5, v%d" % vL); e("v_lshl_add_u32 v5, v24, 2, v5")
        e("s_lshl_b32 s%d, s%d, 5" % (sT0, sWave)); e("s_add_u32 s%d, s%d, %d" % (sT0, sT0, L_P)); e("v_add_u32 v5, s%d, v5" % sT0)
        e("s_mov_b32 s%d, 0x%x" % (sT3, C_EXP))
        lq = LQ(self)
        steps = [(ct, m) for ct in range(7) for m in range(2)]
        NB = 4 if self.o.get("stamps") else 5
        def b_iss(k):
            ct, m = steps[k]; r = 44 + 4 * (k % NB)
            lq.issue("ds_read_b64_tr_b16 v[%d:%d], v7 offset:%d" % (r, r + 1, m * 32 * O_ROW + ct * 32), ("B", k))
            lq.issue("ds_read_b64_tr_b16 v[%d:%d], v7 offset:%d" % (r + 2, r + 3, (m * 32 + 16) * O_ROW + ct * 32), ("B", k))
        for k in range(NB):
            b_iss(k)
        self.ptmp = 25
        self.poll2(lambda b: ["global_load_dwordx4 v[%d:%d], v29, %s sc1" % (b, b + 3, sp(sA)),
                              "global_load_dwordx2 v[%d:%d], v28, %s sc1" % (b + 4, b + 5, sp(sA))], 6, (8, 14), 32, "Qo")
        self.ptmp = 31
        self.stamp(8)
        def red_c(regs, op):
            for n in (4, 8):
                self.nop(2 if len(regs) == 1 else 1)
                for r in regs:
                    e("%s_dpp v%d, v%d, v%d row_ror:%d row_mask:0xf bank_mask:0xf" % (op, r, r, r, n))
            return
        e("v_mov_b32 v38, v36")
        red_c([38], "v_max_f32")
        for sw in ("v_permlane16_swap_b32", "v_permlane32_swap_b32"):
            e("v_mov_b32 v39, v38"); self.nop(2); e("%s v38, v39" % sw); e("v_max_f32 v38, v38, v39")
        e("v_sub_f32 v36, v36, v38"); e("v_mul_f32 v36, s%d, v36" % sT3); e("v_exp_f32 v36, v36"); self.nop(1)
        e("v_mul_f32 v37, v36, v37")
        e("v_pk_mul_f32 v[32:33], v[32:33], v[36:37] op_sel_hi:[1,0]"); e("v_pk_mul_f32 v[34:35], v[34:35], v[36:37] op_sel_hi:[1,0]")
        for n in (4, 8):
            self.nop(1)
            for r in (37, 32, 33, 34, 35):
                e("v_add_f32_dpp v%d, v%d, v%d row_ror:%d row_mask:0xf bank_mask:0xf" % (r, r, r, n))
        e("v_mov_b32 v38, v37"); self.nop(1)
        e("v_permlane32_swap_b32 v32, v34"); e("v_permlane32_swap_b32 v33, v35"); e("v_permlane32_swap_b32 v37, v38")
        e("v_add_f32 v32, v32, v34"); e("v_add_f32 v33, v33, v35"); e("v_add_f32 v37, v37, v38")
        e("v_mov_b32 v34, v32"); e("v_mov_b32 v35, v33"); e("v_mov_b32 v38, v37"); self.nop(1)
        e("v_permlane16_swap_b32 v32, v34"); e("v_permlane16_swap_b32 v33, v35"); e("v_permlane16_swap_b32 v37, v38")
        e("v_add_f32 v37, v37, v38"); e("v_add_f32 v32, v32, v34"); e("v_rcp_f32 v37, v37"); e("v_add_f32 v33, v33, v35")
        self.nop(1)
        e("v_mul_f32 v32, v32, v37"); e("v_mul_f32 v33, v33, v37")
        e("v_cvt_pk_bf16_f32 v32, v32, v33")
        e("ds_write_b32 v5, v32")
        if self.o.get("dbg_a"):
            e("s_lshl_b32 s%d, s%d, 13" % (sT0, sPass)); e("s_lshl_b32 s%d, s%d, 7" % (sT1, sIdx))
            self.addr(sA, pWs, 0xC0000, [sT0, sT1])
            e("v_subrev_u32 v35, %d, v5" % L_P)
            e("global_store_dword v35, v32, %s" % sp(sA))
        e("s_waitcnt lgkmcnt(0)"); lq.q = []
        e("s_barrier")
        lq.issue("ds_read2_b64 v[36:39], v6 offset0:0 offset1:4", "A"); lq.issue("ds_read2_b64 v[40:43], v6 offset0:8 offset1:12", "A")
        for k, (ct, m) in enumerate(steps):
            lq.wait([("B", k), "A"])
            acc = [20, 24, 28, 32, 8, 12, 16][ct]
            c = "0" if m == 0 else vr(acc, 4)
            if ct >= 4 and m == 0 and ct == 4:
                e("s_waitcnt vmcnt(0)")
            e("v_mfma_f32_16x16x32_bf16 %s, %s, %s, %s" % (vr(acc, 4), vr(36 + 4 * m, 4), vr(44 + 4 * (k % NB), 4), c))
            if k + NB < len(steps):
                b_iss(k + NB)
        self.nop(8)
        for row in range(1, 4):
            e("s_mov_b32 exec_lo, 0x%x" % (0xffff0000 if row == 1 else 0))
            e("s_mov_b32 exec_hi, 0x%x" % (0 if row == 1 else (0xffff << (16 * (row - 2)))))
            e("v_mov_b32 v20, v%d" % (20 + 4 * row))
            if row < 3:
                e("v_mov_b32 v8, v%d" % (8 + 4 * row))
        e("s_mov_b64 exec, -1")
        e("v_mov_b32 v41, -2"); e("v_lshlrev_b32 v42, 2, v%d" % vL); e("v_min_u32 v20, v20, v41"); e("v_min_u32 v8, v8, v41")
        e("global_store_dword v42, v20, %s sc1" % sp(sB))
        e("s_mov_b32 exec_hi, 0xffff")
        e("global_store_dword v42, v8, %s offset:256 sc1" % sp(sB))
        e("s_mov_b64 exec, -1")
        self.stamp(9)

    def stage_R2(self):
        e = self.e
        e("v_lshrrev_b32 v24, 4, v%d" % vL); e("v_lshlrev_b32 v24, 2, v24")
        e("s_cmp_eq_u32 s%d, 0" % sPass); e("s_cbranch_scc0 L_R_r1")
        e("s_lshl_b32 s%d, s%d, 4" % (sT0, sIdx))
        self.addr(sB, pX, 0, [sT0])
        e("s_branch L_R_r2")
        self.lab("L_R_r1")
        e("s_lshr_b32 s%d, s%d, 1" % (sT0, sIdx)); e("s_lshl_b32 s%d, s%d, 7" % (sT0, sT0))
        e("s_and_b32 s%d, s%d, 1" % (sT1, sIdx)); e("s_lshl_b32 s%d, s%d, 4" % (sT1, sT1))
        self.addr(sB, pWs, M5, [sT0, sT1])
        self.lab("L_R_r2")
        e("global_load_dword v25, v24, %s sc1" % sp(sB))
        e("s_lshl_b32 s%d, s%d, 13" % (sT0, sPass)); e("s_lshl_b32 s%d, s%d, 7" % (sT1, sIdx))
        self.addr(sB, pWs, M3, [sT0, sT1])
        e("s_mul_i32 s%d, s%d, 4682" % (sT2, sIdx)); e("s_lshr_b32 s%d, s%d, 16" % (sT2, sT2))
        e("s_mul_i32 s%d, s%d, 14" % (sT3, sT2)); e("s_sub_u32 s%d, s%d, s%d" % (sT3, sIdx, sT3))
        e("s_lshl_b32 s%d, s%d, 9" % (sT2, sT2)); e("s_lshl_b32 s%d, s%d, 5" % (sT3, sT3)); e("s_add_u32 s%d, s%d, s%d" % (sT0, sT2, sT3))
        e("s_mul_i32 s%d, s%d, 0x%x" % (sT1, sPass, M2_R))
        self.addr(sA, pWs, M2, [sT0, sT1])
        e("v_mul_u32_u24 v29, %d, v%d" % (M2_SLOT, vL)); e("v_mov_b32 v41, -2")
        self.poll2(lambda b: ["global_load_dwordx4 v[%d:%d], v29, %s sc1" % (b, b + 3, sp(sA)),
                              "global_load_dwordx4 v[%d:%d], v29, %s offset:16 sc1" % (b + 4, b + 7, sp(sA))], 8, (8, 16), 32, "Qr")
        self.stamp(8)
        self.nop(1)
        for d in range(4):
            e("v_permlane32_swap_b32 v%d, v%d" % (32 + d, 36 + d))
        e("v_pk_add_f32 v[32:33], v[32:33], v[36:37]"); e("v_pk_add_f32 v[34:35], v[34:35], v[38:39]")
        self.nop(2)
        e("v_permlane16_swap_b32 v32, v34"); e("v_permlane16_swap_b32 v33, v35")
        e("v_pk_add_f32 v[32:33], v[32:33], v[34:35]")
        for n in (8, 4, 2, 1):
            self.nop(1 if n == 8 else 1)
            if n == 8: self.nop(1)
            e("v_add_f32_dpp v32, v32, v32 row_ror:%d row_mask:0xf bank_mask:0xf" % n)
            e("v_add_f32_dpp v33, v33, v33 row_ror:%d row_mask:0xf bank_mask:0xf" % n)
        e("v_cvt_pk_bf16_f32 v34, v32, v33")
        e("v_lshlrev_b32 v35, 16, v25"); e("v_and_b32 v36, 0xffff0000, v25")
        e("v_lshlrev_b32 v32, 16, v34"); e("v_and_b32 v33, 0xffff0000, v34")
        e("v_add_f32 v32, v32, v35"); e("v_add_f32 v33, v33, v36")
        e("v_cvt_pk_bf16_f32 v34, v32, v33")
        e("v_min_u32 v34, v34, v41")
        e("s_mov_b32 exec_lo, 0x00010001"); e("s_mov_b32 exec_hi, 0x00010001")
        e("global_store_dword v24, v34, %s sc1" % sp(sB))
        e("s_mov_b64 exec, -1")
        self.stamp(9)
        e("s_waitcnt vmcnt(1)")


    def probe_near(self):
        e = self.e
        sk = self.nl("Lpr"); lp = self.nl("Lprl"); bar = self.nl("Lprb")
        N = max(self.alN, 1)
        NP = int(self.o.get("nprobe", 5 if N <= 2 else 4))
        e("s_cmp_eq_u32 s%d, 0" % sPass); e("s_cbranch_scc0 %s" % sk)
        e("s_and_b32 s%d, s%d, 3" % (sT5, sIdx)); e("s_cmp_lt_u32 s%d, 2" % sT5); e("s_cbranch_scc0 %s" % sk)
        e("s_waitcnt vmcnt(0)")
        e("s_cmp_eq_u32 s%d, 0" % sWave); e("s_cbranch_scc0 %s" % bar)
        e("s_cmp_eq_u32 s%d, 1" % sT5)
        e("s_cselect_b32 s%d, s%d, s%d" % (sA, sVB, sKB)); e("s_cselect_b32 s%d, s%d, s%d" % (sA + 1, sVB + 1, sKB + 1))
        e("s_lshr_b32 s%d, s%d, 2" % (sT0, sIdx)); e("s_lshl_b32 s%d, s%d, 4" % (sT0, sT0))
        e("s_and_b32 s%d, s2, 7" % sT1); e("s_xor_b32 s%d, s%d, 4" % (sT1, sT1)); e("s_add_u32 s%d, s%d, s%d" % (sRho, sT0, sT1))
        e("s_mov_b32 s%d, s%d" % (sT0, sRho)); e("s_sub_i32 s%d, s%d, s2" % (sT1, sT0)); e("s_lshl_b32 s%d, s%d, 20" % (sT1, sT1)); e("s_add_i32 s%d, s%d, 3072" % (sT1, sT1))
        e("s_ashr_i32 s%d, s%d, 31" % (sT2, sT1))
        e("s_add_u32 s%d, s%d, s%d" % (sA, sA, sT1)); e("s_addc_u32 s%d, s%d, s%d" % (sA + 1, sA + 1, sT2))
        e("s_mul_i32 s%d, s%d, %d" % (sT4, sT0, self.stag)); e("s_and_b32 s%d, s%d, 63" % (sT4, sT4)); e("s_mul_i32 s%d, s%d, %d" % (sT4, sT4, self.stride))
        e("s_cmp_eq_u32 s%d, 1" % sT5); e("s_cselect_b32 s%d, 65, 29" % sT0)
        e("s_lshr_b32 s%d, s%d, 3" % (sT1, sRho)); e("s_add_u32 s%d, s%d, s%d" % (sT0, sT0, sT1)); e("s_add_u32 s%d, s%d, 32" % (sT0, sT0))
        e("s_sub_u32 s%d, 0, s%d" % (sT0, sT0)); e("s_and_b32 s%d, s%d, %d" % (sT0, sT0, N - 1)); e("s_add_u32 s%d, s%d, 32" % (sT0, sT0))
        e("s_mul_i32 s%d, s%d, %d" % (sT0, sT0, self.stride)); e("s_add_u32 s%d, s%d, s%d" % (sT1, sT4, sT0)); e("s_and_b32 s%d, s%d, 0x%x" % (sT1, sT1, 64 * self.stride - 1))
        if self.ilv == 2:
            assert N == 2
            lk = self.nl("Lprk")
            e("s_mov_b32 s%d, %d" % (sEx, N * self.stride))
            e("s_cmp_eq_u32 s%d, 1" % sT5); e("s_cbranch_scc0 %s" % lk)
            e("s_lshr_b32 s%d, s%d, 3" % (sT1, sRho)); e("s_add_u32 s%d, s%d, 93" % (sT1, sT1)); e("s_and_b32 s%d, s%d, 1" % (sT1, sT1))
            e("s_add_u32 s%d, s%d, 8" % (sT1, sT1))
            e("s_mul_i32 s%d, s%d, %d" % (sT1, sT1, self.stride)); e("s_add_u32 s%d, s%d, s%d" % (sT1, sT1, sT4)); e("s_and_b32 s%d, s%d, 0x%x" % (sT1, sT1, 64 * self.stride - 1))
            e("s_mov_b32 s%d, %d" % (sEx, 8 * self.stride))
            self.lab(lk)
        elif self.ilv:
            lk = self.nl("Lprk")
            e("s_mov_b32 s%d, %d" % (sEx, N * self.stride))
            e("s_cmp_eq_u32 s%d, 1" % sT5); e("s_cbranch_scc0 %s" % lk)
            e("s_lshr_b32 s%d, s%d, 3" % (sT1, sRho)); e("s_add_u32 s%d, s%d, %d" % (sT1, sT1, 93 + 2))
            e("s_sub_u32 s%d, 0, s%d" % (sT1, sT1)); e("s_and_b32 s%d, s%d, %d" % (sT1, sT1, N - 1)); e("s_add_u32 s%d, s%d, 2" % (sT1, sT1))
            e("s_and_b32 s%d, s%d, 1" % (sT0, sT1)); e("s_lshl_b32 s%d, s%d, 1" % (sT1, sT1)); e("s_sub_u32 s%d, s%d, s%d" % (sT1, sT1, sT0)); e("s_add_u32 s%d, s%d, 10" % (sT1, sT1))
            e("s_mul_i32 s%d, s%d, %d" % (sT1, sT1, self.stride)); e("s_add_u32 s%d, s%d, s%d" % (sT1, sT1, sT4)); e("s_and_b32 s%d, s%d, 0x%x" % (sT1, sT1, 64 * self.stride - 1))
            e("s_mov_b32 s%d, %d" % (sEx, 2 * N * self.stride))
            self.lab(lk)
        e("s_mov_b32 s%d, -1" % sT2); e("s_mov_b32 s%d, -1" % sT3); e("s_mov_b32 s%d, %d" % (sT0, NP))
        self.lab(lp)
        for par, acc in ((0, sT2), (1, sT3)):
            e("s_add_u32 s%d, s%d, %d" % (sT4, sT1, par * 8192 + 1024)); e("v_mov_b32 v8, s%d" % sT4)
            e("s_memtime s[90:91]"); e("s_waitcnt lgkmcnt(0)"); e("s_mov_b32 s%d, s90" % sT4)
            e("global_load_dword v9, v8, %s nt" % sp(sA))
            e("s_waitcnt vmcnt(0)")
            e("s_memtime s[90:91]"); e("s_waitcnt lgkmcnt(0)")
            e("s_sub_u32 s%d, s90, s%d" % (sT4, sT4)); e("s_min_u32 s%d, s%d, s%d" % (acc, acc, sT4))
        if self.ilv:
            e("s_add_u32 s%d, s%d, s%d" % (sT1, sT1, sEx))
        else:
            e("s_add_u32 s%d, s%d, %d" % (sT1, sT1, N * self.stride))
        e("s_and_b32 s%d, s%d, 0x%x" % (sT1, sT1, 64 * self.stride - 1))
        e("s_sub_u32 s%d, s%d, 1" % (sT0, sT0)); e("s_cmp_lg_u32 s%d, 0" % sT0); e("s_cbranch_scc1 %s" % lp)
        e("s_lshr_b32 s%d, s%d, 1" % (sT0, sRho)); e("s_lshr_b32 s%d, s2, 2" % sT1); e("s_xor_b32 s%d, s%d, s%d" % (sT0, sT0, sT1)); e("s_and_b32 s%d, s%d, 1" % (sT0, sT0))
        e("s_cmp_gt_u32 s%d, s%d" % (sT2, sT3)); e("s_cselect_b32 s%d, 1, 0" % sT1); e("s_xor_b32 s%d, s%d, s%d" % (sT1, sT1, sT0))
        if self.o.get("dbg_probe"):
            e("s_lshr_b32 s%d, s%d, 3" % (sT2, sT2)); e("s_min_u32 s%d, s%d, 0x3ff" % (sT2, sT2)); e("s_lshl_b32 s%d, s%d, 2" % (sT2, sT2))
            e("s_lshr_b32 s%d, s%d, 3" % (sT3, sT3)); e("s_min_u32 s%d, s%d, 0x3ff" % (sT3, sT3)); e("s_lshl_b32 s%d, s%d, 12" % (sT3, sT3))
            e("s_or_b32 s%d, s%d, s%d" % (sT1, sT1, sT2)); e("s_or_b32 s%d, s%d, s%d" % (sT1, sT1, sT3))
        e("v_mov_b32 v8, s%d" % sT1)
        e("s_lshr_b32 s%d, s%d, 2" % (sT0, sIdx)); e("s_lshl_b32 s%d, s%d, 7" % (sT0, sT0)); e("s_lshl_b32 s%d, s%d, 2" % (sT1, sT5))
        self.addr(sB, pWs, M8, [sT0, sT1])
        e("v_mov_b32 v9, 0")
        e("s_mov_b64 exec, 1")
        e("global_store_dword v9, v8, %s sc1" % sp(sB))
        e("s_mov_b64 exec, -1")
        self.lab(bar)
        e("s_barrier")
        self.lab(sk)


    def emit_issue_sub(self):
        e = self.e
        mask = 64 * self.stride - 1
        t0, t1, t2 = sOf2, sT0 + 0, sT0 + 0
        self.lab("L_issue")
        e("s_mov_b32 m0, s%d" % sSlot)
        e("s_add_u32 s%d, s%d, 4096" % (sSlot, sSlot))
        e("s_cmp_eq_u32 s%d, s%d" % (sSlot, sRe))
        e("s_cselect_b32 s%d, s%d, s%d" % (sSlot, sRs, sSlot))
        X, Y = 90, 91
        e("s_mov_b32 s%d, s%d" % (X, sJ))
        e("s_cmp_eq_u32 s%d, 0" % sIsV); e("s_cbranch_scc1 L_is_k")
        if self.ilv == 3:
            e("s_and_b32 s%d, s%d, 1" % (Y, sJ)); e("s_lshl_b32 s%d, s%d, 1" % (X, sJ)); e("s_sub_u32 s%d, s%d, s%d" % (X, X, Y)); e("s_add_u32 s%d, s%d, s%d" % (X, X, sVadd))
            e("s_bitcmp1_b32 s%d, 31" % sVadd); e("s_cbranch_scc1 L_is_vres")
            e("s_add_u32 s%d, s%d, 24" % (Y, sJ)); e("s_cmp_ge_u32 s%d, 16" % sJ); e("s_cselect_b32 s%d, s%d, s%d" % (X, Y, X))
            e("s_branch L_is_v2")
            self.lab("L_is_vres")
            e("s_cmp_lt_u32 s%d, 8" % sJ); e("s_cselect_b32 s%d, s%d, s%d" % (X, sJ, X))
            e("s_add_u32 s%d, s%d, 36" % (Y, sJ)); e("s_cmp_ge_u32 s%d, 24" % sJ); e("s_cselect_b32 s%d, s%d, s%d" % (X, Y, X))
            self.lab("L_is_v2")
        elif self.ilv == 2:
            e("s_bitcmp1_b32 s%d, 31" % sVadd); e("s_cbranch_scc1 L_is_vres")
            e("s_mul_i32 s%d, s%d, 43" % (Y, sJ)); e("s_lshr_b32 s%d, s%d, 8" % (Y, Y)); e("s_lshl_b32 s%d, s%d, 1" % (Y, Y))
            e("s_add_u32 s%d, s%d, s%d" % (X, sJ, Y)); e("s_add_u32 s%d, s%d, 8" % (X, X))
            e("s_branch L_is_v2")
            self.lab("L_is_vres")
            e("s_and_b32 s%d, s%d, 1" % (Y, sJ)); e("s_sub_u32 s%d, s%d, s%d" % (X, sJ, Y)); e("s_lshl_b32 s%d, s%d, 2" % (X, X)); e("s_add_u32 s%d, s%d, s%d" % (X, X, Y)); e("s_sub_u32 s%d, s%d, 18" % (X, X))
            e("s_cmp_lt_u32 s%d, 8" % sJ); e("s_cselect_b32 s%d, s%d, s%d" % (X, sJ, X))
            e("s_add_u32 s%d, s%d, 36" % (Y, sJ)); e("s_cmp_ge_u32 s%d, 20" % sJ); e("s_cselect_b32 s%d, s%d, s%d" % (X, Y, X))
            self.lab("L_is_v2")
        else:
            e("s_and_b32 s%d, s%d, 1" % (Y, sJ)); e("s_lshl_b32 s%d, s%d, 1" % (X, sJ)); e("s_sub_u32 s%d, s%d, s%d" % (X, X, Y)); e("s_add_u32 s%d, s%d, s%d" % (X, X, sVadd))
            e("s_bitcmp1_b32 s%d, 31" % sVadd); e("s_cbranch_scc1 L_is_vres")
            e("s_add_u32 s%d, s%d, 28" % (Y, sJ)); e("s_cmp_ge_u32 s%d, 20" % sJ); e("s_cselect_b32 s%d, s%d, s%d" % (X, Y, X))
            e("s_branch L_is_v2")
            self.lab("L_is_vres")
            e("s_cmp_lt_u32 s%d, 8" % sJ); e("s_cselect_b32 s%d, s%d, s%d" % (X, sJ, X))
            self.lab("L_is_v2")
        e("s_cmp_eq_u32 s%d, 2" % sNM); e("s_cbranch_scc1 L_is_near")
        e("s_branch L_is_own")
        self.lab("L_is_k")
        e("s_cmp_eq_u32 s%d, 1" % sNM); e("s_cbranch_scc0 L_is_own")
        if self.ilv == 3:
            e("s_cmp_ge_u32 s%d, 60" % sJ); e("s_cbranch_scc1 L_is_kown")
            e("s_cmp_ge_u32 s%d, 40" % sJ); e("s_cbranch_scc1 L_is_knear")
            e("s_cmp_lt_u32 s%d, 10" % sJ); e("s_cbranch_scc1 L_is_kown")
            e("s_bitcmp1_b32 s%d, 1" % sJ); e("s_cbranch_scc1 L_is_knear")
        elif self.ilv == 2:
            e("s_cmp_lt_u32 s%d, 8" % sJ); e("s_cbranch_scc1 L_is_kown")
            e("s_cmp_ge_u32 s%d, 56" % sJ); e("s_cbranch_scc1 L_is_kown")
            e("s_and_b32 s%d, s%d, 6" % (Y, sJ)); e("s_cmp_eq_u32 s%d, 6" % Y); e("s_cbranch_scc0 L_is_knear")
        else:
            e("s_cmp_ge_u32 s%d, 48" % sJ); e("s_cbranch_scc1 L_is_knear")
            e("s_cmp_lt_u32 s%d, 10" % sJ); e("s_cbranch_scc1 L_is_kown")
            e("s_bitcmp1_b32 s%d, 1" % sJ); e("s_cbranch_scc1 L_is_knear")
        self.lab("L_is_kown")
        e("s_mov_b32 s%d, s%d" % (sCUR, sKB)); e("s_mov_b32 s%d, s%d" % (sCUR + 1, sKB + 1))
        self.lab("L_is_own")
        e("s_lshl_b32 s%d, s%d, %d" % (Y, X, 10 if self.ilv == 2 else 11)); e("s_xor_b32 s%d, s%d, s%d" % (Y, Y, sWb))
        if self.ilv == 3:
            e("s_xor_b32 s%d, s%d, 8192" % (sOf2, Y)); e("s_cmp_ge_u32 s%d, 62" % X); e("s_cselect_b32 s%d, s%d, s%d" % (Y, sOf2, Y))
        e("s_and_b32 s%d, s%d, 8192" % (Y, Y))
        e("s_lshl_b32 s%d, s%d, 14" % (X, X)); e("s_add_u32 s%d, s%d, s%d" % (X, X, sRot)); e("s_and_b32 s%d, s%d, 0x%x" % (X, X, mask)); e("s_add_u32 s%d, s%d, s%d" % (sOf2, X, Y))
        e("s_branch L_is_go")
        self.lab("L_is_knear")
        e("s_mov_b32 s%d, s%d" % (sCUR, sKN)); e("s_mov_b32 s%d, s%d" % (sCUR + 1, sKN + 1))
        self.lab("L_is_near")
        e("s_lshl_b32 s%d, s%d, 14" % (X, X)); e("s_add_u32 s%d, s%d, s%d" % (X, X, sRotN)); e("s_and_b32 s%d, s%d, 0x%x" % (sOf2, X, mask))
        self.lab("L_is_go")
        e("s_add_u32 s%d, s%d, 1" % (sAc, sAc)); e("s_and_b32 s%d, s%d, %d" % (sAc, sAc, self.alN - 1))
        e("s_cmp_lt_u32 s%d, s%d" % (sAc, sAlloc))
        e("s_cbranch_scc1 L_is_alloc")
        for k in range(4):
            e("buffer_load_dwordx4 v%d, %s, s%d offen offset:%d nt lds" % (vo[k], sp(sCUR, 4), sOf2, k * 1024))
        e("s_branch L_is_done")
        self.lab("L_is_alloc")
        for k in range(4):
            e("buffer_load_dwordx4 v%d, %s, s%d offen offset:%d lds" % (vo[k], sp(sCUR, 4), sOf2, k * 1024))
        self.lab("L_is_done")
        e("s_add_u32 s%d, s%d, 1" % (sJ, sJ))
        e("s_cmp_lg_u32 s%d, s%d" % (sJ, sLen)); e("s_cbranch_scc0 L_is_next")
        e("s_setpc_b64 %s" % sp(sRet))
        self.lab("L_is_next")
        e("s_add_u32 s%d, s%d, 1" % (sSeg, sSeg))
        e("s_mov_b32 s%d, s%d" % (sJ, sZ)); e("s_mov_b32 s%d, s%d" % (sAlloc, sZ)); e("s_mov_b32 s%d, s%d" % (sNM, sZ))
        e("s_cmp_eq_u32 s%d, 5" % sSeg); e("s_cbranch_scc1 L_is_end")
        e("s_bitcmp1_b32 s%d, 0" % sSeg); e("s_cbranch_scc0 L_is_v")
        e("s_mov_b32 s%d, s%d" % (sIsV, sZ)); e("s_add_u32 s%d, s%d, 64" % (sLen, sZ))
        e("s_mov_b32 s%d, s%d" % (sCUR, sKB)); e("s_mov_b32 s%d, s%d" % (sCUR + 1, sKB + 1))
        e("s_cmp_eq_u32 s%d, 1" % sSeg)
        e("s_cselect_b32 s%d, %d, 0" % (sAlloc, self.alM)); e("s_cselect_b32 s%d, 0, 1" % sNM)
        e("s_add_u32 s%d, s%d, s%d" % (sAlloc, sAlloc, sZ)); e("s_add_u32 s%d, s%d, s%d" % (sNM, sNM, sZ))
        self.kpat()
        e("s_setpc_b64 %s" % sp(sRet))
        self.lab("L_is_v")
        e("s_add_u32 s%d, s%d, 1" % (sIsV, sZ)); e("s_add_u32 s%d, s%d, %d" % (sLen, sZ, 2 * NSTR_T)); e("s_add_u32 s%d, s%d, 10" % (sVadd, sZ))
        e("s_cmp_eq_u32 s%d, 2" % sSeg)
        e("s_cselect_b32 s%d, %d, 0" % (sAlloc, self.alM if self.alV else 0)); e("s_cselect_b32 s%d, 0, 2" % sNM)
        e("s_cselect_b32 s%d, s%d, s%d" % (sCUR, sVB, sVN)); e("s_cselect_b32 s%d, s%d, s%d" % (sCUR + 1, sVB + 1, sVN + 1))
        e("s_add_u32 s%d, s%d, s%d" % (sAlloc, sAlloc, sZ)); e("s_add_u32 s%d, s%d, s%d" % (sNM, sNM, sZ))
        self.vpat()
        e("s_setpc_b64 %s" % sp(sRet))
        self.lab("L_is_end")
        e("s_mov_b32 s%d, 0" % (sCUR + 2)); e("s_mov_b32 s%d, s%d" % (sIsV, sZ)); e("s_sub_u32 s%d, s%d, 1" % (sLen, sZ))
        e("s_setpc_b64 %s" % sp(sRet))

    def build(self):
        e = self.e
        self.prologue()
        early = int(self.o.get("early", 0)) and self.ilv
        if early:
            e("s_lshr_b32 s%d, s%d, 1" % (sT1, sWave)); e("s_lshl_b32 s%d, s%d, 13" % (sT1, sT1))
            for u in range(2):
                e("s_mov_b32 m0, s%d" % sSlot); e("s_add_u32 s%d, s%d, 4096" % (sSlot, sSlot))
                e("s_add_u32 s%d, s%d, %d" % (sT0, sRot, u * self.stride)); e("s_and_b32 s%d, s%d, 0x%x" % (sT0, sT0, 64 * self.stride - 1)); e("s_add_u32 s%d, s%d, s%d" % (sT0, sT0, sT1))
                for k in range(4):
                    e("buffer_load_dwordx4 v%d, %s, s%d offen offset:%d nt lds" % (vo[k], sp(sCUR, 4), sT0, k * 1024))
            e("s_add_u32 s%d, s%d, 2" % (sAc, sAc)); e("s_and_b32 s%d, s%d, %d" % (sAc, sAc, self.alN - 1))
            if int(self.o.get("tlbk", 0)):
                e("v_mov_b32 v26, 3072")
                e("global_load_dword v27, v26, %s nt" % sp(sKB))
        self.dbg_span(2)
        self.stamp(0)
        self.weights_setup('start')
        if self.ilv:
            e("s_lshr_b32 s%d, s%d, 1" % (sWb, sWave)); e("s_lshl_b32 s%d, s%d, 13" % (sWb, sWb))
            e("s_add_u32 s%d, s%d, %d" % (sJ, sZ, 2 if early else 0)); e("s_add_u32 s%d, s%d, %d" % (sLen, sZ, 2 * NRES_T)); e("s_add_u32 s%d, s%d, 1" % (sIsV, sZ))
            e("s_mov_b32 s%d, s%d" % (sNM, sZ)); e("s_sub_u32 s%d, s%d, 8" % (sVadd, sZ)); e("s_mov_b32 s%d, s%d" % (sSeg, sZ)); e("s_mov_b32 s%d, s%d" % (sAlloc, sZ))
            e("s_add_u32 s%d, s%d, s%d" % (sSlot, sSlot, sZ))
        elif self.swz:
            e("s_mov_b32 s%d, 0" % sN); e("s_lshr_b32 s%d, s%d, 1" % (sWb, sWave)); e("s_lshl_b32 s%d, s%d, 13" % (sWb, sWb)); e("s_mov_b32 s%d, 8192" % sSwM)
        e("v_min_u32 v9, 55, v%d" % vL); e("v_lshlrev_b32 v9, 4, v9")
        xr = 16 if int(self.o.get("gap2", 1)) else 32
        e("global_load_dwordx4 v[%d:%d], v9, %s" % (xr, xr + 3, sp(pX)))
        if early and self.NX:
            self.xop(0); self.xop(1)
        if self.clr2:
            self.lds_zero()
        else:
            self.clear_mailboxes()
        if int(self.o.get("cpf0", 0)):
            sk = self.nl("Lcp")
            e("s_cmp_eq_u32 s%d, 1" % sWave); e("s_cbranch_scc0 %s" % sk)
            e("s_getpc_b64 s[18:19]")
            self.lab("L_pcref0")
            e("s_add_u32 s18, s18, L_p1a_code-L_pcref0"); e("s_addc_u32 s19, s19, 0")
            e("v_lshlrev_b32 v8, 7, v%d" % vL)
            for k in range(4):
                e("v_min_u32 v9, L_endcode-L_p1a_code-4, v8"); e("global_load_dword v24, v9, s[18:19]"); e("v_add_u32 v8, 8192, v8")
            self.lab(sk)
        if not early:
            for u in range(self.R):
                self.group(u)
        self.stamp(1)
        self.p1a()
        self.stamp(2)
        self.lab("L_pass")
        self.gather_q()
        self.dbg_span_pass(6)
        self.stamp(3)
        self.kphase()
        self.stamp(4)
        self.softmax()
        self.vphase()
        self.stamp(5)
        self.combine_publish()
        self.dbg_span_pass(4)
        self.stamp(6)
        g2 = int(self.o.get("gap2", 1))
        e("s_cmp_eq_u32 s%d, 1" % sRole); e("s_cbranch_scc1 L_roleO")
        e("s_cmp_eq_u32 s%d, 4" % sRole); e("s_cbranch_scc1 L_roleD")
        if self.gapw:
            lw = self.nl("Lgw")
            e("s_cmp_eq_u32 s%d, 0" % sPass); e("s_cbranch_scc0 %s" % lw)
            e("s_cmp_eq_u32 s%d, 0" % sRole); e("s_cbranch_scc1 %s" % lw)
            self.weights_setup('gap')
            for i in range(14):
                self.xop(i)
            self.lab(lw)
        e("s_cmp_eq_u32 s%d, 2" % sRole); e("s_cbranch_scc1 L_roleB")
        e("s_cmp_eq_u32 s%d, 3" % sRole); e("s_cbranch_scc1 L_roleC")
        self.topup()
        self.l2pf_ilv(int(self.o.get("pfN", 0)))
        e("s_branch L_next")
        self.lab("L_roleO")
        if int(self.o.get("o3", 0)):
            self.stage_O3()
        else:
            self.stage_O2() if g2 else self.stage_S1()
        if self.p2n == 2:
            self.probe_near()
            self.topup(2)
            if int(self.o.get("pfO", 0)):
                lo_ = self.nl("Lpo")
                e("s_bitcmp1_b32 s%d, 1" % sIdx); e("s_cbranch_scc0 %s" % lo_)
                self.l2pf_ilv(int(self.o.get("pfO", 0)))
                self.lab(lo_)
        else:
            self.topup()
        e("s_branch L_next")
        self.lab("L_roleB")
        if g2:
            self.stage_B2(); self.topup(); self.l2pf_ilv(int(self.o.get("pfB", 0)))
        else:
            self.topup(); self.stage_B()
        e("s_branch L_next")
        self.lab("L_roleC")
        if g2:
            self.stage_C2(); self.topup(int(self.o.get("tpaceC", 0)))
        else:
            self.topup(); self.stage_C()
        e("s_branch L_next")
        self.lab("L_roleD")
        e("s_cmp_eq_u32 s%d, 0" % sWave); e("s_cbranch_scc0 L_D_rdone")
        e("s_cmp_lt_u32 s%d, 56" % sIdx); e("s_cbranch_scc0 L_D_rdone")
        self.stage_R2() if g2 else self.stage_R()
        self.lab("L_D_rdone")
        self.topup()
        self.l2pf_ilv(int(self.o.get("pfD", 0)))
        e("s_cmp_eq_u32 s%d, 0" % sPass); e("s_cbranch_scc0 L_next")
        if g2:
            e("s_call_b64 %s, L_stageD_prep" % sp(sRet2))
            self.addr(sA, pWs, M5)
            self.poll_x2("M5")
            self.stamp(10)
            e("s_lshl_b32 s%d, s%d, 7" % (sT0, sIdx)); e("s_lshl_b32 s%d, s%d, 5" % (sT1, sWave))
            self.addr(sB, pWs, M6 + MR, [sT0] if self.onest else [sT0, sT1])
            e("s_call_b64 %s, L_stageD_rest" % sp(sRet2))
            if self.onest:
                self.wait_leftover()
            else:
                e("s_waitcnt vmcnt(1)")
        else:
            self.addr(sA, pWs, M5)
            self.gather_x(M5, "M5")
            self.stamp(10)
            self.addr(sA, pWs, M6 + MR)
            e("s_call_b64 %s, L_stageD" % sp(sRet2))
        self.lab("L_next")
        self.stamp(7)
        e("s_add_u32 s%d, s%d, 1" % (sPass, sPass))
        e("s_cmp_lt_u32 s%d, 2" % sPass)
        e("s_cbranch_scc1 L_pass")
        self.dump_stamps()
        self.dbg_span(3)
        e("s_waitcnt vmcnt(0)")
        self.lab("L_end")
        e("s_endpgm")
        if int(self.o.get("gap2", 1)):
            self.lab("L_stageD_prep")
            self.stageD2_prep()
            e("s_setpc_b64 %s" % sp(sRet2))
            self.lab("L_stageD_rest")
            self.stageD2_rest()
            e("s_setpc_b64 %s" % sp(sRet2))
        else:
            self.lab("L_stageD")
            self.stage_D(None)
            e("s_setpc_b64 %s" % sp(sRet2))
        if self.ilv:
            self.emit_issue_sub()
        else:
            self.emit_switch()
        self.lab("L_endcode")
        e("s_endpgm")
        return self.a.text()


HEADER = """; Fused decode step  x -> [MHA over a 32768-key cache -> SwiGLU MLP] x 2, one persistent launch (256 workgroups, one per CU).
;
;
;   their results on through sentinel-cleared mailboxes in d_ws (sc1 stores / sc1 polls; cleared at kernel start, d_debug[0] counts
; @launch grid=(256,1,1) block=(256,1,1) lds=%d
.amdgcn_target "amdgcn-amd-amdhsa--gfx950"
.text
.globl %s
.p2align 8
.type %s,@function
%s:
"""
FOOTER = """.section .rodata,"a"
.p2align 6
.amdhsa_kernel %s
  .amdhsa_next_free_vgpr 512
  .amdhsa_next_free_sgpr 102
  .amdhsa_accum_offset 256
  .amdhsa_group_segment_fixed_size 0
  .amdhsa_kernarg_size 96
  .amdhsa_user_sgpr_count 2
  .amdhsa_user_sgpr_kernarg_segment_ptr 1
  .amdhsa_system_sgpr_workgroup_id_x 1
  .amdhsa_float_denorm_mode_32 3
.end_amdhsa_kernel
"""


FINAL = dict(p2n="2", klin="1", ilv="1", q1w="1", stag="3", alN="2", alM="1", rmap="1", wpf="0", early="1", cpf0="1", clr2="1", pfN="3", pfO="3", tlbk="1")


def generate(opt=None):
    opt = opt or {}
    if opt.pop("final", None):
        opt = dict(FINAL, **opt)
    g = Gen(opt)
    body = g.build()
    return HEADER % (LDS_TOTAL, KNAME, KNAME, KNAME) + body + FOOTER % KNAME


if __name__ == "__main__":
    out = sys.argv[1] if len(sys.argv) > 1 else "gen/kernel.s"
    opt = {}
    for kv in sys.argv[2:]:
        k, v = kv.split("=")
        opt[k] = v
    open(out, "w").write(generate(opt))
    print("wrote", out)
```
